```python
import torch

def _softmax(x, axis=-1):
    return torch.softmax(x, dim=axis)
def _gelu(x):
    return torch.nn.functional.gelu(x, approximate="tanh")
def _silu(x):
    return torch.nn.functional.silu(x)
def _sigmoid(x):
    return torch.sigmoid(x)
def _layernorm(x, axis=-1, eps=1e-5):
    m = x.mean(dim=axis, keepdim=True)
    v = x.var(dim=axis, keepdim=True, unbiased=False)
    return (x - m) / torch.sqrt(v + eps)
def _scatter_add(tgt, idx, src, axis=0):
    return tgt.clone().index_add_(axis, idx, src)
def _segment_sum(src, seg, n):
    out = torch.zeros((n,) + src.shape[1:], dtype=src.dtype)
    return out.index_add_(0, seg, src)
def _pad(x, pw):
    flat = tuple(v for pair in reversed(pw) for v in pair)
    return torch.nn.functional.pad(x, flat)

kernel_name = 'interleave_layers__mha_block__dense_activation_mish__prompt'

def setup_inputs():

    _w = (lambda a: (lambda t: t.to(torch.bfloat16) if t.is_floating_point() else t)(torch.as_tensor(a)))
    def _A_setup():
        B, S, D, H = 1, 2048, 512, 32
        return {
            "x": _w((lambda *s: torch.randn(*s, dtype=torch.bfloat16) * 0.05)(B, S, D)),
            "wqkv": _w((lambda *s: torch.randn(*s, dtype=torch.bfloat16) * 0.05)(D, 3 * D)),
            "wo": _w((lambda *s: torch.randn(*s, dtype=torch.bfloat16) * 0.05)(D, D)),
        }
    _A_in = _A_setup()

    def _B_setup():
        B, S, D, F = 1, 2048, 512, 1376
        return {
            "x": _w((lambda *s: torch.randn(*s, dtype=torch.bfloat16) * 0.05)(B, S, D)),
            "w1": _w((lambda *s: torch.randn(*s, dtype=torch.bfloat16) * 1.6)(D, F) * (D ** -0.5)),
            "b1": _w((lambda *s: torch.randn(*s, dtype=torch.bfloat16) * 0.2)(F)),
            "w2": _w((lambda *s: torch.randn(*s, dtype=torch.bfloat16) * 0.2)(F, D) * (F ** -0.5)),
        }
    _B_in = _B_setup()

    return {
        "A_x": _A_in["x"],
        "A_wqkv": _A_in["wqkv"],
        "A_wo": _A_in["wo"],
        "B_x": _B_in["x"],
        "B_w1": _B_in["w1"],
        "B_b1": _B_in["b1"],
        "B_w2": _B_in["w2"],
    }

def reference(A_x, A_wqkv, A_wo, B_x, B_w1, B_b1, B_w2):
    def _A_ref(x, wqkv, wo):
        B, S, D = x.shape
        H = 32
        Dh = D // H
        qkv = (lambda x, *d: x.permute(*d))((x @ wqkv).reshape(B, S, 3, H, Dh), 2, 0, 3, 1, 4)
        q, k, v = qkv[0], qkv[1], qkv[2]
        scores = torch.einsum("bhqd,bhkd->bhqk", q, k) * (Dh ** -0.5)
        p = _softmax(scores, axis=-1)
        o = torch.einsum("bhqk,bhkd->bhqd", p, v)
        return (lambda x, *d: x.permute(*d))(o, 0, 2, 1, 3).reshape(B, S, D) @ wo

    def _B_ref(x, w1, b1, w2):
        h = torch.einsum("bsd,df->bsf", x, w1) + b1
        sp = torch.log1p(torch.exp(-torch.abs(h))) + torch.where(h > 0, h, torch.zeros_like(h))
        act = h * torch.tanh(sp)
        return torch.einsum("bsf,fd->bsd", act, w2)

    x = A_x
    x = x + _A_ref(_layernorm(x, axis=-1), A_wqkv, A_wo)
    x = x + _B_ref(_layernorm(x, axis=-1), B_w1, B_b1, B_w2)
    x = x + _A_ref(_layernorm(x, axis=-1), A_wqkv, A_wo)
    x = x + _B_ref(_layernorm(x, axis=-1), B_w1, B_b1, B_w2)
    return x
```

```python
import re

_REG = re.compile(r'\b([vsa])\[(\d+):(\d+)\]|\b([vsa])(\d+)\b|\b(vcc|exec|m0|scc)\b')

def regs_of(tok):
    out = set()
    for m in _REG.finditer(tok):
        if m.group(1):
            for i in range(int(m.group(2)), int(m.group(3)) + 1):
                out.add((m.group(1), i))
        elif m.group(4):
            out.add((m.group(4), int(m.group(5))))
        else:
            out.add((m.group(6), 0))
    return out

def split_ops(s):
    out, depth, cur = [], 0, ''
    for ch in s:
        if ch in '[(':
            depth += 1
        if ch in '])':
            depth -= 1
        if ch == ',' and depth == 0:
            out.append(cur.strip()); cur = ''
        else:
            cur += ch
    if cur.strip():
        out.append(cur.strip())
    return out

TRANS = ('v_exp_f32', 'v_log_f32', 'v_rcp_f32', 'v_rsq_f32', 'v_sqrt_f32', 'v_sin_f32', 'v_cos_f32', 'v_rcp_iflag_f32')

class Ins:
    __slots__ = ('text', 'mn', 'ops', 'kind', 'wr', 'rd', 'passes', 'srcc', 'srcab', 'label', 'target', 'states', 'sdata', 'comment')
    def __init__(self, text):
        self.text = text
        self.label = None; self.target = None
        self.wr = set(); self.rd = set(); self.kind = 'other'; self.passes = 0
        self.srcc = set(); self.srcab = set(); self.states = 1; self.sdata = set()
        t = text.split(';')[0].strip()
        if not t:
            self.kind = 'none'; self.states = 0; self.mn = ''; self.ops = []; return
        if t.endswith(':'):
            self.kind = 'label'; self.label = t[:-1]; self.states = 0; self.mn = ''; self.ops = []; return
        if t.startswith('.'):
            self.kind = 'none'; self.states = 0; self.mn = t.split()[0]; self.ops = []; return
        parts = t.split(None, 1)
        mn = parts[0]; self.mn = mn
        rest = parts[1] if len(parts) > 1 else ''
        ops = split_ops(rest); self.ops = ops
        R = [regs_of(o) for o in ops]
        allr = lambda idx: set().union(*[R[i] for i in idx]) if idx else set()
        n = len(ops)
        if mn == 's_nop':
            self.kind = 'salu'; self.states = int(ops[0], 0) + 1
        elif mn.startswith('v_mfma'):
            self.kind = 'mfma'
            self.wr = R[0]; self.srcab = R[1] | R[2]; self.srcc = R[3]; self.rd = self.srcab | self.srcc
            if '32x32x16' in mn or '32x32x8' in mn: self.passes = 8
            elif '16x16x32' in mn or '16x16x16' in mn: self.passes = 4
            elif '4x4x4' in mn: self.passes = 2
            else: raise ValueError(mn)
        elif mn.startswith('v_'):
            self.kind = 'valu'
            if mn.startswith('v_cmp'):
                self.wr = R[0]; self.rd = allr(range(1, n))
            elif mn.startswith('v_permlane') and 'swap' in mn:
                self.wr = R[0] | R[1]; self.rd = R[0] | R[1]
            elif mn.startswith(('v_add_co', 'v_sub_co', 'v_addc_co', 'v_subb_co', 'v_subrev_co')):
                self.wr = R[0] | R[1]; self.rd = allr(range(2, n))
            else:
                self.wr = R[0]; self.rd = allr(range(1, n))
                if mn.startswith(('v_fmac', 'v_dot2c', 'v_pk_fmac', 'v_writelane')):
                    self.rd |= R[0]
                if mn.startswith('v_cndmask') and n == 3:
                    self.rd.add(('vcc', 0))
            if mn.startswith('v_nop'):
                self.wr = set(); self.rd = set()
        elif mn.startswith(('buffer_', 'global_', 'flat_')):
            self.kind = 'vmem'
            lds = re.search(r'\blds\b', rest) is not None or 'load_lds' in mn
            if 'load' in mn:
                if lds:
                    self.rd = allr(range(0, n)) | {('m0', 0)}
                    self.kind = 'vmem_lds'
                else:
                    self.wr = R[0]; self.rd = allr(range(1, n))
                    if 'd16' in mn: self.rd |= R[0]
            elif 'store' in mn or 'atomic' in mn:
                self.rd = allr(range(0, n))
                d = R[0] if mn.startswith('buffer_') else R[1]
                if 'x3' in mn or 'x4' in mn:
                    self.sdata = d
                if 'atomic' in mn and 'sc0' in rest:
                    self.wr = R[0]
            else:
                pass
        elif mn.startswith('ds_'):
            self.kind = 'ds'
            if mn.startswith(('ds_read', 'ds_bpermute', 'ds_permute', 'ds_swizzle')):
                self.wr = R[0]; self.rd = allr(range(1, n))
            else:
                self.rd = allr(range(0, n))
        elif mn.startswith('s_'):
            self.kind = 'salu'
            if mn.startswith(('s_cbranch', 's_branch')):
                self.kind = 'branch'; self.target = ops[0]
                if 'vcc' in mn: self.rd = {('vcc', 0)}
                if 'exec' in mn: self.rd = {('exec', 0)}
            elif mn.startswith(('s_load', 's_buffer_load', 's_memtime', 's_memrealtime')):
                self.kind = 'smem'; self.wr = R[0]; self.rd = allr(range(1, n))
            elif mn.startswith(('s_cmp', 's_bitcmp', 's_waitcnt', 's_barrier', 's_endpgm', 's_setprio', 's_sleep', 's_setreg')):
                self.rd = allr(range(0, n))
            else:
                self.wr = R[0] if n else set(); self.rd = allr(range(1, n))
                if 'saveexec' in mn:
                    self.wr = self.wr | {('exec', 0)}
        else:
            raise ValueError('unknown instr ' + text)

def vonly(s):
    return {r for r in s if r[0] in ('v', 'a')}
def sonly(s):
    return {r for r in s if r[0] in ('s', 'vcc')}

XDL_RD = {2: 5, 4: 8, 8: 12, 16: 20}
XDL_OVL = {2: 4, 4: 6, 8: 10, 16: 18}
XDL_WAR = {2: 1, 4: 3, 8: 7, 16: 15}

def need(p, c):
    w = 0
    if p.kind == 'valu':
        pw = vonly(p.wr); ps = sonly(p.wr)
        isdot = p.mn.startswith('v_dot')
        if c.kind == 'mfma' and pw & c.rd:
            w = max(w, 3 if isdot else 2)
        if c.kind == 'valu':
            if p.mn.startswith(TRANS) and not c.mn.startswith(TRANS) and pw & (c.rd):
                w = max(w, 1)
            if c.mn.startswith(('v_readlane', 'v_readfirstlane')) and pw & c.rd:
                w = max(w, 1)
            if (c.mn.startswith('v_permlane') or 'dpp' in c.text or 'row_' in c.text or 'quad_perm' in c.text) and pw & c.rd:
                w = max(w, 2)
            if ps & c.rd:
                w = max(w, 4 if c.mn.startswith(('v_readlane', 'v_writelane')) else 2)
            if isdot and pw & (c.rd | c.wr):
                if c.mn == p.mn:
                    ab = regs_of(c.ops[1]) | regs_of(c.ops[2])
                    if pw & ab: w = max(w, 3)
                else:
                    w = max(w, 3)
            if 'op_sel' in p.text or 'sdwa' in p.text:
                if pw & (c.rd | c.wr): w = max(w, 1)
        if c.kind in ('vmem', 'vmem_lds', 'ds') and isdot and pw & c.rd:
            w = max(w, 3)
        if c.kind in ('vmem', 'vmem_lds') and ps & c.rd:
            w = max(w, 5)
        if c.kind == 'branch' and ('vcc', 0) in ps and ('vcc', 0) in c.rd:
            w = max(w, 5)
    if p.kind == 'mfma':
        d = p.wr
        if c.kind == 'mfma':
            if d & c.srcab:
                w = max(w, XDL_RD[p.passes])
            if d & c.srcc:
                if d == c.srcc and c.passes == p.passes:
                    w = max(w, 2 if p.passes == 2 else 0)
                else:
                    w = max(w, XDL_OVL[p.passes])
            elif d & c.wr:
                w = max(w, XDL_OVL[p.passes])
        elif c.kind in ('valu', 'vmem', 'vmem_lds', 'ds'):
            if d & (c.rd | c.wr):
                w = max(w, XDL_RD[p.passes])
            if c.kind == 'valu' and vonly(p.srcc) & c.wr:
                w = max(w, XDL_WAR[p.passes])
            if c.kind != 'valu' and vonly(p.srcc) & c.wr:
                w = max(w, XDL_WAR[p.passes])
    if p.kind == 'vmem' and p.sdata:
        if p.sdata & c.wr:
            w = max(w, 2 if c.kind in ('valu', 'mfma') else 1)
    if p.kind == 'salu' and ('m0', 0) in p.wr and c.kind == 'vmem_lds':
        w = max(w, 1)
    return w

MAXW = 20

class Asm:
    def __init__(self):
        self.ins = []
        self.nlab = 0
        self.autonop = True
        self.pads = 0
    def lab(self, base='L'):
        self.nlab += 1
        return f'{base}_{self.nlab}'
    def __call__(self, text):
        for line in text.split('\n'):
            if line.strip() == '':
                continue
            self._emit(Ins(line.strip()))
    def _emit(self, c):
        if c.states and self.autonop:
            dist = 0; req = 0
            for p in reversed(self.ins):
                if dist >= MAXW: break
                if p.kind == 'branch' and p.mn == 's_branch':
                    break
                if p.mn == 's_endpgm':
                    break
                if p.states:
                    n = need(p, c)
                    if n > dist:
                        req = max(req, n - dist)
                    dist += p.states
            while req > 0:
                k = min(req, 16)
                self.ins.append(Ins(f's_nop {k-1}')); self.pads += k
                req -= k
        self.ins.append(c)
    def label(self, name):
        self.ins.append(Ins(name + ':'))
    def check_branches(self):
        pos = {i.label: k for k, i in enumerate(self.ins) if i.kind == 'label'}
        errs = []
        for k, b in enumerate(self.ins):
            if b.kind != 'branch' or b.target not in pos: continue
            tail = []; d = 0
            for p in reversed(self.ins[:k + 1]):
                if d >= MAXW: break
                if p.states:
                    tail.append((p, d)); d += p.states
                if p is not b and p.mn in ('s_branch', 's_endpgm'): break
            d2 = 0
            for c in self.ins[pos[b.target]:]:
                if d2 >= MAXW: break
                if c.states:
                    for p, dp in tail:
                        between = dp + d2
                        if need(p, c) > between:
                            errs.append((b.text, p.text, c.text, need(p, c), between))
                    d2 += c.states
                    if c.mn in ('s_branch', 's_endpgm'): break
        return errs
    def text(self):
        out = []
        for i in self.ins:
            out.append(i.text if i.kind in ('label',) or i.text.startswith(('.', ';')) else '  ' + i.text)
        return '\n'.join(out) + '\n'

def v(a, n=1):
    return f'v{a}' if n == 1 else f'v[{a}:{a+n-1}]'
def s(a, n=1):
    return f's{a}' if n == 1 else f's[{a}:{a+n-1}]'
```

```python
MB = 1 << 20
S, D, H, DH, F = 2048, 512, 32, 16, 1376
NTT = S // 32
KS_D = D // 16
KS_F = F // 16
FT_D = D // 32
FT_F = F // 32
FT_QKV = 3 * D // 32
KSX = KS_D + 1
off = 0
def alloc(n, al=4096):
    global off
    off = (off + al - 1) // al * al
    o = off; off += n
    return o
Q = [alloc(2 * MB) for _ in range(2)]
K = [alloc(2 * MB) for _ in range(2)]
V = [alloc(2 * MB) for _ in range(2)]
O = [alloc(2 * MB) for _ in range(2)]
ACT = [alloc(NTT * KS_F * 1024) for _ in range(2)]
X = [alloc(2 * MB) for _ in range(4)]
ST = [alloc(NTT * 16 * 32 * 8) for _ in range(5)]
WQKVF = alloc(FT_QKV * KSX * 1024)
W1F = alloc(FT_F * KSX * 1024 + 2 * KSX * 1024)
WOF = alloc(FT_D * KS_D * 1024)
W2F = alloc(FT_D * 96 * 1024)
FLAGS = alloc(8 * MB)
WS_USED = off
WS_BYTES = 268435456
PERM = [[4*h + i for i in range(4)] + [8 + 4*h + i for i in range(4)] for h in range(2)]
QSCALE = 0.25 * 1.4426950408889634
```

```python
import sys, struct
sys.path.insert(0, 'work')
from asmlib import *
import layout as L

def f32(x):
    return '0x%08x' % struct.unpack('<I', struct.pack('<f', x))[0]

class Prog:
    def __init__(self):
        self.a = Asm()
        self.kernels = []
        self.launches = []
    def entry(self, name, nvgpr, accum, nsgpr=102):
        a = self.a
        a(f'.globl {name}')
        a('.p2align 8')
        a(f'.type {name},@function')
        a.label(name)
        self.kernels.append((name, nvgpr, accum, nsgpr))
    def text(self):
        hdr = open('interleave_layers__mha_block__dense_activation_mish__prompt.s.ref').read().split('\n')
        hdr = [l for l in hdr[:11]]
        out = '\n'.join(hdr) + '\n'
        for n, g, b, lds in self.launches:
            out += f'; @launch kernel={n} grid=({g},1,1) block=({b},1,1) lds={lds}\n'
        out += '.amdgcn_target "amdgcn-amd-amdhsa--gfx950"\n.text\n'
        out += self.a.text()
        out += '.section .rodata,"a"\n'
        for n, nv, acc, ns in self.kernels:
            out += f'''.p2align 6
.amdhsa_kernel {n}
  .amdhsa_next_free_vgpr {nv}
  .amdhsa_next_free_sgpr {ns}
  .amdhsa_accum_offset {acc}
  .amdhsa_group_segment_fixed_size 0
  .amdhsa_kernarg_size 80
  .amdhsa_user_sgpr_count 2
  .amdhsa_user_sgpr_kernarg_segment_ptr 1
  .amdhsa_system_sgpr_workgroup_id_x 1
.end_amdhsa_kernel
'''
        return out

def srd(a, d, b, nbytes):
    if d != b:
        a(f's_mov_b32 s{d}, s{b}')
    a(f's_and_b32 s{d+1}, s{b+1}, 0xffff')
    a(f's_mov_b32 s{d+2}, {nbytes}')
    a(f's_mov_b32 s{d+3}, 0x00020000')

import os
STAMP = int(os.environ.get('STAMP', 0))
def stamp(a, idx):
    if not STAMP: return
    r = 70 + 4*idx
    a(f's_memtime s[{r}:{r+1}]')
    a(f's_memrealtime s[{r+2}:{r+3}]')
    a('s_waitcnt lgkmcnt(0)')
def stamp_store(a, n, wave_s, srdreg=4, vt=4, nw=8):
    if not STAMP: return
    a('s_lshl_b32 s66, s2, 4')
    a(f's_add_u32 s66, s66, s{wave_s}')
    a('s_lshl_b32 s66, s66, 6')
    a(f's_add_u32 s66, s66, {L.FLAGS + 512*1024}')
    a(f'v_mov_b32 v{vt+2}, 0')
    for i in range(n):
        a(f'v_mov_b32 v{vt}, s{70+4*i}')
        a(f'v_mov_b32 v{vt+1}, s{72+4*i}')
        a(f'buffer_store_dwordx2 v[{vt}:{vt+1}], v{vt+2}, s[{srdreg}:{srdreg+3}], s66 offen offset:{8*i}')
        a('s_waitcnt vmcnt(0)')

MFMA = 'v_mfma_f32_32x32x16_bf16'
ONES = '0x3f803f80'

def gen_attn(p, NW=8, UN=4):
    a = p.a
    NQ = 8 // NW
    nv = 128
    body = 'attn_body'
    p.entry('attn0_kernel', nv, nv)
    a('s_mov_b32 s40, 0')
    a(f's_branch {body}')
    p.entry('attn1_kernel', nv, nv)
    a(f's_mov_b32 s40, {2*L.MB}')
    a.label(body)
    a('s_cmp_ge_u32 s2, 256')
    a('s_cbranch_scc1 attn_end')
    stamp(a, 0)
    a('s_load_dwordx2 s[4:5], s[0:1], 72')
    VL16 = 1
    VVA = 2
    VKA = 3
    T0, T1, T2, T3 = 4, 5, 6, 7
    KB = [8, 12]
    VB = [[16, 20], [24, 28]]
    QF = [32 + 4*i for i in range(NQ)]
    base = 40
    PB = [[base + 8*i, base + 8*i + 4] for i in range(NQ)]; base += 8*NQ
    OA = [base + 16*i for i in range(NQ)]; base += 16*NQ
    SB = [[base + 32*i, base + 32*i + 16] for i in range(NQ)]; base += 32*NQ
    assert base <= 256
    nvu = (base + 7)//8*8
    p.kernels[-1] = (p.kernels[-1][0], nvu, nvu, 102); p.kernels[-2] = (p.kernels[-2][0], nvu, nvu, 102)
    a(f'v_and_b32 v{T0}, 63, v0')
    a(f'v_lshlrev_b32 v{VL16}, 4, v{T0}')
    a(f'v_lshrrev_b32 v{T1}, 6, v0')
    a(f'v_readfirstlane_b32 s41, v{T1}')
    a('s_and_b32 s42, s2, 7')
    a('s_lshl_b32 s42, s42, 2')
    a('s_lshr_b32 s43, s2, 3')
    a('s_and_b32 s44, s43, 3')
    a('s_add_u32 s42, s42, s44')
    a('s_lshr_b32 s43, s2, 5')
    a('s_lshl_b32 s44, s42, 16')
    a('s_add_u32 s44, s44, s40')
    a('s_lshl_b32 s45, s41, 10')
    a('s_add_u32 s46, s44, s45')
    a(f's_add_u32 s47, s46, {L.V[0]}')
    a(f's_add_u32 s46, s46, {L.K[0]}')
    a('s_waitcnt lgkmcnt(0)')
    srd(a, 4, 4, L.WS_BYTES)
    a('s_lshl_b32 s48, s43, 3')
    a(f's_mul_i32 s49, s41, {NQ}')
    a('s_add_u32 s48, s48, s49')
    a('s_lshl_b32 s49, s48, 10')
    a('s_add_u32 s49, s49, s44')
    assert L.Q[0] == 0
    nch = 64 // NW
    a('s_mov_b32 m0, s45')
    a(f'buffer_load_dwordx4 v{VL16}, s[4:7], s46 offen lds')
    a('s_add_u32 m0, s45, 0x10000')
    a(f'buffer_load_dwordx4 v{VL16}, s[4:7], s47 offen lds')
    for i in range(NQ):
        a(f'buffer_load_dwordx4 {v(QF[i],4)}, v{VL16}, s[4:7], s49 offen offset:{1024*i}')
    for c in range(1, nch):
        a(f's_add_u32 s46, s46, {NW*1024}')
        a(f's_add_u32 s47, s47, {NW*1024}')
        a(f's_add_u32 m0, s45, {c*NW*1024}')
        a(f'buffer_load_dwordx4 v{VL16}, s[4:7], s46 offen lds')
        a(f's_add_u32 m0, s45, {0x10000 + c*NW*1024}')
        a(f'buffer_load_dwordx4 v{VL16}, s[4:7], s47 offen lds')
    a(f'v_and_b32 v{T1}, 15, v{T0}')
    a(f'v_lshlrev_b32 v{T1}, 4, v{T1}')
    a(f'v_lshrrev_b32 v{T2}, 5, v{T0}')
    a(f'v_lshlrev_b32 v{T2}, 8, v{T2}')
    a(f'v_add_u32 v{VVA}, v{T1}, v{T2}')
    a(f'v_add_u32 v{VVA}, 0x10000, v{VVA}')
    a(f'v_mov_b32 v{VKA}, v{VL16}')
    for b in range(2):
        for g in range(2):
            for r in range(4):
                a(f'v_mov_b32 v{VB[b][g]+r}, {ONES}')
    for i in range(NQ):
        for r in range(16):
            a(f'v_mov_b32 v{OA[i]+r}, 0')
    for r in range(4):
        a(f'v_mov_b32 v{PB[NQ-1][1]+r}, 0')
    a('s_mov_b32 s50, 0x0000ffff')
    a('s_mov_b32 s51, 0x0000ffff')
    first = UN + 2
    nfirst = (first + NW - 1)//NW
    left = 2*(nch - nfirst)
    a(f's_waitcnt vmcnt({left})')
    a('s_barrier')
    stamp(a, 1)
    a(f'ds_read_b128 {v(KB[0],4)}, v{VKA}')
    a(f'ds_read_b128 {v(KB[1],4)}, v{VKA} offset:1024')
    a('s_mov_b64 exec, s[50:51]')
    a(f'ds_read_b128 {v(VB[0][0],4)}, v{VVA}')
    a(f'ds_read_b128 {v(VB[0][1],4)}, v{VVA} offset:512')
    a('s_mov_b64 exec, -1')
    a('s_waitcnt lgkmcnt(3)')
    for i in range(NQ):
        a(f'{MFMA} {v(SB[i][0],16)}, {v(KB[0],4)}, {v(QF[i],4)}, 0')
    a(f's_mov_b32 s52, {64//UN}')
    a('s_nop 7')
    a('.p2align 6')
    a.label('attn_loop')
    def pv1_of(i, buf):
        return f'{MFMA} {v(OA[i],16)}, {v(VB[buf][1],4)}, {v(PB[i][1],4)}, {v(OA[i],16)}'
    for u in range(UN):
        cur, nxt = u % 2, (u + 1) % 2
        a('s_waitcnt lgkmcnt(0)')
        seq = []
        for i in range(NQ):
            S = SB[i][cur]
            qk = f'{MFMA} {v(SB[i][nxt],16)}, {v(KB[nxt],4)}, {v(QF[i],4)}, 0'
            pv0 = f'{MFMA} {v(OA[i],16)}, {v(VB[cur][0],4)}, {v(PB[i][0],4)}, {v(OA[i],16)}'
            e = [f'v_exp_f32 v{S+r}, v{S+r}' for r in range(16)]
            c = [f'v_cvt_pk_bf16_f32 v{PB[i][r//4]+r%4}, v{S+2*r}, v{S+2*r+1}' for r in range(8)]
            seq.append((qk, pv0, e, c))
        vloads = [
            's_mov_b64 exec, s[50:51]',
            f'ds_read_b128 {v(VB[nxt][0],4)}, v{VVA} offset:{(u+1)*1024}',
            f'ds_read_b128 {v(VB[nxt][1],4)}, v{VVA} offset:{(u+1)*1024+512}',
            's_mov_b64 exec, -1',
        ]
        for i, (qk, pv0, e, c) in enumerate(seq):
            a(qk)
            if i == 0:
                a(f'ds_read_b128 {v(KB[cur],4)}, v{VKA} offset:{(u+2)*1024}')
            a(e[0]); a(e[1]); a(e[2]); a(e[3])
            a(c[0]); a(c[1])
            a(e[4])
            if i == 0:
                a(pv1_of(NQ-1, nxt))
                for l in vloads: a(l)
            else:
                a(pv1_of(i-1, cur))
            a(e[5]); a(e[6]); a(e[7])
            a(c[2]); a(c[3])
            a(e[8]); a(e[9]); a(e[10])
            a(pv0)
            a(e[11])
            a(c[4]); a(c[5])
            a(e[12]); a(e[13]); a(e[14]); a(e[15])
            a(c[6]); a(c[7])
        if u == UN - 1:
            a(f'v_add_u32 v{VKA}, {UN*1024}, v{VKA}')
            a(f'v_add_u32 v{VVA}, {UN*1024}, v{VVA}')
    nit = 64 // UN
    a(f's_cmp_lt_u32 s52, {nit-2}')
    a('s_cbranch_scc1 attn_nosync')
    a(f's_cmp_eq_u32 s52, {nit-1}')
    a('s_cbranch_scc1 attn_nosync')
    a(f's_waitcnt vmcnt({nch})')
    a(f's_cmp_eq_u32 s52, {nit}')
    a('s_cbranch_scc1 attn_half')
    a('s_waitcnt vmcnt(0)')
    a.label('attn_half')
    a('s_barrier')
    a.label('attn_nosync')
    a('s_sub_u32 s52, s52, 1')
    a('s_cmp_lg_u32 s52, 0')
    a('s_cbranch_scc1 attn_loop')
    assert 3*UN + 2 <= 32 and UN % 2 == 0
    a(pv1_of(NQ-1, 1))
    a('s_waitcnt lgkmcnt(0)')
    stamp(a, 2)
    a('s_lshl_b32 s53, s48, 15')
    a('s_lshl_b32 s54, s42, 10')
    a('s_add_u32 s53, s53, s54')
    a('s_add_u32 s53, s53, s40')
    a(f's_add_u32 s53, s53, {L.O[0]}')
    a(f's_mov_b32 s56, {f32(2.0**-90)}')
    a(f's_mov_b32 s57, {f32(2.0**120)}')
    for i in range(NQ):
        Oa = OA[i]
        done = a.lab('attn_fin')
        a(f'v_add_f32 v{T0}, abs(v{Oa}), abs(v{Oa+1})')
        a(f'v_add_f32 v{T1}, abs(v{Oa+2}), abs(v{Oa+3})')
        a(f'v_add_f32 v{T2}, abs(v{Oa+4}), abs(v{Oa+5})')
        a(f'v_add_f32 v{T3}, abs(v{Oa+6}), abs(v{Oa+7})')
        a(f'v_add_f32 v{T0}, v{T0}, v{T1}')
        a(f'v_add_f32 v{T2}, v{T2}, v{T3}')
        a(f'v_add_f32 v{T0}, v{T0}, v{T2}')
        a(f'v_cmp_gt_f32 s[58:59], s57, v{T0}')
        a(f'v_cmp_gt_f32 s[60:61], s57, v{Oa+8}')
        a(f'v_cmp_lt_f32 s[62:63], s56, v{Oa+8}')
        a('s_and_b64 s[58:59], s[58:59], s[60:61]')
        a('s_and_b64 s[58:59], s[58:59], s[62:63]')
        a('s_cmp_eq_u64 s[58:59], -1')
        a(f's_cbranch_scc1 {done}')
        S = SB[i][0]; M = SB[i][1]; AL = M + 1; TA = M + 2; TB = M + 3; KA2 = M + 4; VA2 = M + 5
        a(f'v_mov_b32 v{KA2}, v{VL16}')
        a(f'v_subrev_u32 v{VA2}, 0x10000, v{VVA}')
        a(f'v_mov_b32 v{M}, {f32(-3.0e38)}')
        for r in range(16):
            a(f'v_mov_b32 v{Oa+r}, 0')
        a('s_mov_b32 s55, 64')
        lp = a.lab('attn_slow')
        a.label(lp)
        a(f'ds_read_b128 {v(KB[0],4)}, v{KA2}')
        a('s_mov_b64 exec, s[50:51]')
        a(f'ds_read_b128 {v(VB[0][0],4)}, v{VA2}')
        a(f'ds_read_b128 {v(VB[0][1],4)}, v{VA2} offset:512')
        a('s_mov_b64 exec, -1')
        a('s_waitcnt lgkmcnt(0)')
        a(f'{MFMA} {v(S,16)}, {v(KB[0],4)}, {v(QF[i],4)}, 0')
        a(f'v_add_u32 v{KA2}, 1024, v{KA2}')
        a(f'v_add_u32 v{VA2}, 1024, v{VA2}')
        a(f'v_max3_f32 v{TA}, v{S}, v{S+1}, v{M}')
        for r in range(2, 16, 2):
            a(f'v_max3_f32 v{TA}, v{S+r}, v{S+r+1}, v{TA}')
        a(f'v_mov_b32 v{TB}, v{TA}')
        a(f'v_permlane32_swap_b32 v{TA}, v{TB}')
        a(f'v_max_f32 v{TA}, v{TA}, v{TB}')
        a(f'v_sub_f32 v{AL}, v{M}, v{TA}')
        a(f'v_exp_f32 v{AL}, v{AL}')
        a(f'v_mov_b32 v{M}, v{TA}')
        for r in range(16):
            a(f'v_sub_f32 v{S+r}, v{S+r}, v{M}')
            a(f'v_exp_f32 v{S+r}, v{S+r}')
        for r in range(16):
            a(f'v_mul_f32 v{Oa+r}, v{AL}, v{Oa+r}')
        for r in range(8):
            a(f'v_cvt_pk_bf16_f32 v{PB[i][r//4]+r%4}, v{S+2*r}, v{S+2*r+1}')
        a(f'{MFMA} {v(Oa,16)}, {v(VB[0][0],4)}, {v(PB[i][0],4)}, {v(Oa,16)}')
        a(f'{MFMA} {v(Oa,16)}, {v(VB[0][1],4)}, {v(PB[i][1],4)}, {v(Oa,16)}')
        a('s_sub_u32 s55, s55, 1')
        a('s_cmp_lg_u32 s55, 0')
        a('s_nop 7')
        a(f's_cbranch_scc1 {lp}')
        a('s_nop 7')
        a.label(done)
        a(f'v_rcp_f32 v{T0}, v{Oa+8}')
        for r in range(8):
            a(f'v_mul_f32 v{Oa+r}, v{T0}, v{Oa+r}')
        for r in range(4):
            a(f'v_cvt_pk_bf16_f32 v{PB[i][0]+r}, v{Oa+2*r}, v{Oa+2*r+1}')
        a(f'buffer_store_dwordx4 {v(PB[i][0],4)}, v{VL16}, s[4:7], s53 offen')
        if i + 1 < NQ:
            a(f's_add_u32 s53, s53, {32*1024}')
    a('s_waitcnt vmcnt(0)') if STAMP else None
    stamp(a, 3)
    stamp_store(a, 4, 41)
    a.label('attn_end')
    a('s_endpgm')
    return NW * 64, 128 * 1024 + 4096


def split3(a, x, hi, mid, lo, t):
    a(f'v_and_b32 v{hi}, 0xffff0000, v{x}')
    a(f'v_sub_f32 v{t}, v{x}, v{hi}')
    a(f'v_and_b32 v{mid}, 0xffff0000, v{t}')
    a(f'v_sub_f32 v{t}, v{t}, v{mid}')
    a(f'v_and_b32 v{lo}, 0xffff0000, v{t}')
def pack_hi(a, d, lo, hi):
    a(f'v_lshrrev_b32 v{d}, 16, v{lo}')
    a(f'v_or_b32 v{d}, v{d}, v{hi}')

def gen_prep(p):
    a = p.a
    nv = 64
    p.entry('prep_kernel', nv, nv)
    a('s_cmp_ge_u32 s2, 214')
    a('s_cbranch_scc1 prep_end')
    a('s_load_dwordx4 s[8:11], s[0:1], 0')
    a('s_load_dwordx2 s[12:13], s[0:1], 16')
    a('s_load_dwordx4 s[16:19], s[0:1], 32')
    a('s_load_dwordx2 s[20:21], s[0:1], 48')
    a('s_load_dwordx2 s[4:5], s[0:1], 72')
    LN, L16, T0, T1, T2, T3 = 1, 2, 3, 4, 5, 6
    a(f'v_and_b32 v{LN}, 63, v0')
    a(f'v_lshlrev_b32 v{L16}, 4, v{LN}')
    a(f'v_lshrrev_b32 v{T0}, 6, v0')
    a(f'v_readfirstlane_b32 s41, v{T0}')
    a('s_waitcnt lgkmcnt(0)')
    srd(a, 4, 4, L.WS_BYTES)
    a('s_cmp_ge_u32 s2, 150')
    a('s_cbranch_scc1 prep_x')
    a('s_mov_b32 s27, 0x00020000')
    lab_w1, lab_wo, lab_w2, lab_go = 'prep_w1', 'prep_wo', 'prep_w2', 'prep_go'
    a('s_cmp_ge_u32 s2, 48')
    a(f's_cbranch_scc1 {lab_w1}')
    a('s_mov_b32 s24, s10'); a('s_and_b32 s25, s11, 0xffff'); a(f's_mov_b32 s26, {512*1536*2}')
    a('s_mov_b32 s30, 3072'); a('s_mov_b32 s31, 1'); a(f's_mov_b32 s33, {L.WQKVF}'); a(f's_mov_b32 s34, {L.KSX}')
    a('s_mov_b32 s37, s2'); a('s_mov_b32 s38, 0'); a('s_mov_b32 s36, 32')
    a(f's_branch {lab_go}')
    a.label(lab_w1)
    a('s_cmp_ge_u32 s2, 91')
    a(f's_cbranch_scc1 {lab_wo}')
    a('s_mov_b32 s24, s16'); a('s_and_b32 s25, s17, 0xffff'); a(f's_mov_b32 s26, {512*1376*2}')
    a('s_mov_b32 s30, 2752'); a('s_mov_b32 s31, 2'); a(f's_mov_b32 s33, {L.W1F}'); a(f's_mov_b32 s34, {L.KSX}')
    a('s_sub_u32 s37, s2, 48'); a('s_mov_b32 s38, 0'); a('s_mov_b32 s36, 32')
    a(f's_branch {lab_go}')
    a.label(lab_wo)
    a('s_cmp_ge_u32 s2, 107')
    a(f's_cbranch_scc1 {lab_w2}')
    a('s_mov_b32 s24, s12'); a('s_and_b32 s25, s13, 0xffff'); a(f's_mov_b32 s26, {512*512*2}')
    a('s_mov_b32 s30, 1024'); a('s_mov_b32 s31, 0'); a(f's_mov_b32 s33, {L.WOF}'); a(f's_mov_b32 s34, 32')
    a('s_sub_u32 s37, s2, 91'); a('s_mov_b32 s38, 0'); a('s_mov_b32 s36, 32')
    a(f's_branch {lab_go}')
    a.label(lab_w2)
    a('s_mov_b32 s24, s20'); a('s_and_b32 s25, s21, 0xffff'); a(f's_mov_b32 s26, {1376*512*2}')
    a('s_mov_b32 s30, 1024'); a('s_mov_b32 s31, 0'); a(f's_mov_b32 s33, {L.W2F}'); a(f's_mov_b32 s34, 86')
    a('s_sub_u32 s35, s2, 107'); a('s_lshl_b32 s35, s35, 5')
    a(f's_mul_hi_u32 s37, s35, {(2**32 + 85)//86}')
    a('s_mul_i32 s38, s37, 86'); a('s_sub_u32 s38, s35, s38')
    a('s_mov_b32 s36, 86')
    a.label(lab_go)
    a('s_lshl_b32 s39, s41, 3')
    a('s_add_u32 s38, s38, s39')
    a('s_cmp_ge_u32 s38, s36')
    a('s_cselect_b32 s39, s36, 0'); a('s_cselect_b32 s42, 1, 0')
    a('s_sub_u32 s38, s38, s39'); a('s_add_u32 s37, s37, s42')
    a(f'v_lshrrev_b32 v{T0}, 2, v{LN}')
    a(f'v_mul_lo_u32 v{T0}, v{T0}, s30')
    a(f'v_and_b32 v{T1}, 3, v{LN}')
    a(f'v_lshl_add_u32 v{T0}, v{T1}, 4, v{T0}')
    a(f'v_lshrrev_b32 v{T1}, 5, v{LN}')
    a(f'v_lshlrev_b32 v{T1}, 2, v{T1}')
    a(f'v_bfe_u32 v{T2}, v{LN}, 2, 2')
    a(f'v_add_u32 v{T1}, v{T1}, v{T2}')
    a(f'v_lshlrev_b32 v{T1}, 6, v{T1}')
    a(f'v_bfe_u32 v{T2}, v{LN}, 4, 1')
    a(f'v_lshl_add_u32 v{T1}, v{T2}, 5, v{T1}')
    a(f'v_and_b32 v{T2}, 3, v{LN}')
    a(f'v_lshl_add_u32 v{T1}, v{T2}, 3, v{T1}')
    a('s_lshl_b32 s43, s41, 13')
    a(f'v_add_u32 v{T1}, s43, v{T1}')
    for i in range(8):
        a('s_lshl_b32 s52, s38, 4')
        a('s_mul_i32 s52, s52, s30')
        a('s_lshl_b32 s53, s37, 6')
        a('s_add_u32 s52, s52, s53')
        a(f's_add_u32 m0, s43, {i*1024}')
        a(f's_mul_i32 s{44+i}, s37, s34')
        a(f'buffer_load_dwordx4 v{T0}, s[24:27], s52 offen lds')
        a(f's_add_u32 s{44+i}, s{44+i}, s38')
        a(f's_lshl_b32 s{44+i}, s{44+i}, 10')
        a(f's_add_u32 s{44+i}, s{44+i}, s33')
        if i < 7:
            a('s_add_u32 s38, s38, 1')
            a('s_cmp_ge_u32 s38, s36')
            a('s_cselect_b32 s39, s36, 0'); a('s_cselect_b32 s42, 1, 0')
            a('s_sub_u32 s38, s38, s39'); a('s_add_u32 s37, s37, s42')
    FR = 16
    CS = 8
    a(f'v_mov_b32 v{CS}, 0')
    a(f'v_mov_b32 v{T3}, {ONES}')
    a('s_waitcnt vmcnt(0)')
    for i in range(8):
        a(f'ds_read_b64_tr_b16 {v(FR+4*i,2)}, v{T1} offset:{i*1024}')
        a(f'ds_read_b64_tr_b16 {v(FR+4*i+2,2)}, v{T1} offset:{i*1024+512}')
    a('s_waitcnt lgkmcnt(0)')
    for i in range(8):
        a(f'buffer_store_dwordx4 {v(FR+4*i,4)}, v{L16}, s[4:7], s{44+i} offen')
    a('s_cmp_eq_u32 s31, 0')
    a('s_cbranch_scc1 prep_end')
    for i in range(32):
        a(f'v_dot2_f32_bf16 v{CS}, v{FR+i}, v{T3}, v{CS}')
    a(f'v_lshlrev_b32 v{T2}, 2, v0')
    a(f'ds_write_b32 v{T2}, v{CS} offset:32768')
    a('s_waitcnt lgkmcnt(0)')
    a('s_barrier')
    a('s_cmp_lg_u32 s41, 0')
    a('s_cbranch_scc1 prep_end')
    a(f'v_and_b32 v{T2}, 31, v{LN}')
    a(f'v_lshlrev_b32 v{T2}, 2, v{T2}')
    for i in range(8):
        a(f'ds_read_b32 v{48+i}, v{T2} offset:{32768+128*i}')
    B = 9
    a(f'v_mov_b32 v{B}, 0')
    a('s_cmp_lg_u32 s31, 2')
    a('s_cbranch_scc1 prep_nobias')
    a('s_mov_b32 s24, s18'); a('s_and_b32 s25, s19, 0xffff'); a(f's_mov_b32 s26, {1376*2}')
    a('s_lshl_b32 s53, s37, 6')
    a(f'v_lshrrev_b32 v{T2}, 1, v{T2}')
    a(f'buffer_load_ushort v{B}, v{T2}, s[24:27], s53 offen')
    a('s_waitcnt vmcnt(0)')
    a(f'v_lshlrev_b32 v{B}, 16, v{B}')
    a.label('prep_nobias')
    a('s_waitcnt lgkmcnt(0)')
    a('v_add_f32 v48, v48, v49'); a('v_add_f32 v50, v50, v51'); a('v_add_f32 v52, v52, v53'); a('v_add_f32 v54, v54, v55')
    a('v_add_f32 v48, v48, v50'); a('v_add_f32 v52, v52, v54'); a('v_add_f32 v48, v48, v52')
    HI, MID, LO = 10, 11, 12
    split3(a, 48, HI, MID, LO, 13)
    pack_hi(a, 56, HI, HI); pack_hi(a, 57, HI, B); pack_hi(a, 58, B, B)
    a(f'v_lshrrev_b32 v59, 16, v{MID}')
    pack_hi(a, 60, LO, MID)
    a(f'v_cmp_gt_u32 vcc, 32, v{LN}')
    a('v_cndmask_b32 v56, v60, v56, vcc')
    a('v_cndmask_b32 v57, 0, v57, vcc')
    a('v_cndmask_b32 v58, 0, v58, vcc')
    a('v_cndmask_b32 v59, 0, v59, vcc')
    a('s_mul_i32 s52, s37, s34')
    a('s_add_u32 s52, s52, 32')
    a('s_lshl_b32 s52, s52, 10')
    a('s_add_u32 s52, s52, s33')
    a(f'buffer_store_dwordx4 v[56:59], v{L16}, s[4:7], s52 offen')
    a('s_branch prep_end')
    a.label('prep_x')
    srd(a, 8, 8, 2048*512*2)
    a('s_sub_u32 s42, s2, 150')
    a(f'v_and_b32 v{T0}, 31, v{LN}')
    a(f'v_lshlrev_b32 v{T0}, 10, v{T0}')
    a(f'v_lshrrev_b32 v{T1}, 5, v{LN}')
    a(f'v_lshl_add_u32 v{T0}, v{T1}, 4, v{T0}')
    a('s_lshl_b32 s43, s42, 15')
    a('s_lshl_b32 s44, s41, 8')
    a('s_add_u32 s44, s44, s43')
    for i in range(8):
        a(f'buffer_load_dwordx4 {v(FR+4*i,4)}, v{T0}, s[8:11], s44 offen offset:{32*i}')
    a('s_lshl_b32 s45, s41, 13')
    a('s_add_u32 s45, s45, s43')
    a(f's_add_u32 s45, s45, {L.X[0]}')
    a('s_add_u32 s46, s45, 4096')
    a('s_lshl_b32 s47, s42, 12')
    a('s_lshl_b32 s48, s41, 10')
    a('s_add_u32 s47, s47, s48')
    a(f's_add_u32 s47, s47, {L.ST[0]}')
    a(f'v_mov_b32 v{T3}, {ONES}')
    a(f'v_lshlrev_b32 v{T2}, 2, v{LN}')
    a('s_waitcnt vmcnt(0)')
    for i in range(8):
        a(f'v_permlane32_swap_b32 v{FR+4*i}, v{FR+4*i+2}')
        a(f'v_permlane32_swap_b32 v{FR+4*i+1}, v{FR+4*i+3}')
    for i in range(8):
        a(f'buffer_store_dwordx4 {v(FR+4*i,4)}, v{L16}, s[4:7], s{45 + i//4} offen offset:{1024*(i%4)}')
    for sl in range(4):
        s1, s2 = 48 + 2*sl, 49 + 2*sl
        a(f'v_mov_b32 v{s1}, 0'); a(f'v_mov_b32 v{s2}, 0')
        for r in range(8):
            a(f'v_dot2_f32_bf16 v{s1}, v{FR+8*sl+r}, v{T3}, v{s1}')
        for r in range(8):
            a(f'v_dot2_f32_bf16 v{s2}, v{FR+8*sl+r}, v{FR+8*sl+r}, v{s2}')
    for sl in range(4):
        s1, s2 = 48 + 2*sl, 49 + 2*sl
        a(f'v_permlane32_swap_b32 v{s1}, v{s2}')
        a(f'v_add_f32 v{s1}, v{s1}, v{s2}')
        a(f'buffer_store_dword v{s1}, v{T2}, s[4:7], s47 offen offset:{256*sl}')
    a.label('prep_end')
    a('s_endpgm')
    return 256, 32768 + 1024

def gen_gemmA(p, kind, DEPTH=3):
    a = p.a
    qkv = kind == 'qkv'
    nm = kind
    nv = 256
    for l in range(2):
        p.entry(f'{nm}{l}_kernel', nv, nv)
        xi = 2*l + (0 if qkv else 1)
        a(f's_mov_b32 s40, {L.X[xi]}')
        a(f's_mov_b32 s39, {L.ST[xi]}')
        a(f's_mov_b32 s38, {2*L.MB*l if qkv else L.ACT[l]}')
        if l == 0:
            a(f's_branch {nm}_body')
    a.label(f'{nm}_body')
    a('s_cmp_ge_u32 s2, 256')
    a(f's_cbranch_scc1 {nm}_end')
    stamp(a, 0)
    a('s_load_dwordx2 s[4:5], s[0:1], 72')
    LN, L16, L4, T0, T1, T2, T3 = 1, 2, 3, 4, 5, 6, 7
    RS, RQ = 8, 9
    XE = 12
    STV = 16
    WB = [32 + 12*i for i in range(3)]
    ACC = [80 + 16*i for i in range(3)]
    XF = 128
    a(f'v_and_b32 v{LN}, 63, v0')
    a(f'v_lshlrev_b32 v{L16}, 4, v{LN}')
    a(f'v_lshlrev_b32 v{L4}, 2, v{LN}')
    a(f'v_lshrrev_b32 v{T0}, 6, v0')
    a(f'v_readfirstlane_b32 s41, v{T0}')
    a('s_and_b32 s42, s2, 7'); a('s_lshr_b32 s43, s2, 3')
    a('s_lshr_b32 s44, s42, 1'); a('s_lshl_b32 s44, s44, 2'); a('s_and_b32 s45, s43, 3'); a('s_add_u32 s44, s44, s45')
    a('s_and_b32 s45, s42, 1'); a('s_lshl_b32 s45, s45, 3'); a('s_lshr_b32 s46, s43, 2'); a('s_add_u32 s45, s45, s46')
    if not qkv:
        a('s_cmp_ge_u32 s45, 15')
        a(f's_cbranch_scc1 {nm}_end')
    a('s_lshl_b32 s46, s44, 2'); a('s_add_u32 s46, s46, s41')
    a('s_lshl_b32 s47, s46, 15'); a('s_add_u32 s47, s47, s40')
    a('s_lshl_b32 s48, s46, 12'); a('s_add_u32 s48, s48, s39')
    ftstride = (16 if qkv else 1) * L.KSX * 1024
    a(f's_mul_i32 s49, s45, {(1 if qkv else 3) * L.KSX * 1024}')
    a(f's_add_u32 s49, s49, {L.WQKVF if qkv else L.W1F}')
    a('s_lshl_b32 s50, s41, 10')
    a('s_add_u32 s51, s49, s50')
    a(f's_add_u32 s52, s51, {ftstride}')
    a(f's_add_u32 s53, s52, {ftstride}')
    a('s_mul_i32 s54, s41, 3072')
    a('s_waitcnt lgkmcnt(0)')
    srd(a, 4, 4, L.WS_BYTES)
    nvm = [0]
    def vm(t):
        a(t); nvm[0] += 1
    for i in range(16):
        vm(f'buffer_load_dword v{STV+i}, v{L4}, s[4:7], s48 offen offset:{256*i}')
    a('s_min_u32 s55, s41, 2')
    a(f's_mul_i32 s56, s55, {ftstride}')
    a('s_add_u32 s56, s56, s49')
    a(f's_add_u32 s56, s56, {32*1024}')
    a('s_lshl_b32 s55, s55, 10')
    a(f's_add_u32 m0, s55, {32*3072}')
    vm(f'buffer_load_dwordx4 v{L16}, s[4:7], s56 offen lds')
    def chunk_ops(c):
        ops = []
        for j in range(3):
            g = [f's_add_u32 m0, s54, {c*4*3072 + j*1024}',
                 f'buffer_load_dwordx4 v{L16}, s[4:7], s{51+j} offen lds',
                 f's_add_u32 s{51+j}, s{51+j}, 4096']
            ops.append(g)
        for j in range(4):
            g = [f'buffer_load_dwordx4 {v(XF+16*c+4*j,4)}, v{L16}, s[4:7], s47 offen offset:{1024*j}']
            if j == 3: g.append('s_add_u32 s47, s47, 4096')
            ops.append(g)
        return ops
    done_at = {}
    def issue(g):
        for t in g:
            if t.startswith('buffer'): vm(t)
            else: a(t)
    for c in range(DEPTH):
        for g in chunk_ops(c): issue(g)
        done_at[c] = nvm[0]
    def sync(c):
        a(f's_waitcnt vmcnt({nvm[0] - done_at[c]})')
        a('s_barrier')
    def rd(s_):
        for j in range(3):
            a(f'ds_read_b128 {v(WB[s_%3]+4*j,4)}, v{L16B if s_ >= 21 else L16} offset:{(s_ - (21 if s_ >= 21 else 0))*3072 + j*1024}')
    L16B = 10
    a(f'v_add_u32 v{L16B}, {21*3072}, v{L16}')
    sv = []
    for st in (8, 4, 2, 1):
        for i in range(st):
            sv.append(f'v_add_f32 v{STV+i}, v{STV+i}, v{STV+i+st}')
    sv.append(f'v_mov_b32 v{STV+1}, v{STV}')
    sv.append(f'v_permlane32_swap_b32 v{STV}, v{STV+1}')
    sv.append(f'v_mul_f32 v{STV}, {f32(-1.0/512)}, v{STV}')
    sv.append(f'v_mul_f32 v{STV+1}, {f32(1.0/512)}, v{STV+1}')
    sv.append(f'v_fma_f32 v{STV+1}, -v{STV}, v{STV}, v{STV+1}')
    sv.append(f'v_max_f32 v{STV+1}, 0, v{STV+1}')
    sv.append(f'v_add_f32 v{STV+1}, {f32(1e-5)}, v{STV+1}')
    sv.append(f'v_rsq_f32 v{RS}, v{STV+1}')
    sv.append(f'v_mul_f32 v{STV+1}, v{STV+1}, v{RS}')
    class Rec:
        def __call__(self, t): sv.append(t)
    r = Rec()
    MH, MM, ML, SH, SM, SL, TT = STV+2, STV+3, STV+4, STV+5, STV+6, STV+7, STV+8
    split3(r, STV, MH, MM, ML, TT)
    split3(r, STV+1, SH, SM, SL, TT)
    pack_hi(r, XE, MH, MM); pack_hi(r, XE+1, ML, SH); pack_hi(r, XE+2, SM, SL)
    sv.append(f'v_lshrrev_b32 v{XE+3}, 16, v{MH}')
    sv.append(f'v_mul_f32 v{RQ}, {f32(L.QSCALE if qkv else 1.4426950408889634)}, v{RS}')
    sync(0)
    stamp(a, 1)
    rd(0); rd(1)
    NS = 33
    pend = []
    for s_ in range(NS):
        c, j = divmod(s_, 4)
        if j == 0 and c + DEPTH < 8:
            pend = chunk_ops(c + DEPTH); pc = c + DEPTH
        nxt = s_ + 2
        if nxt < NS and nxt % 4 == 0 and nxt // 4 < 8:
            sync(nxt // 4)
        a(f's_waitcnt lgkmcnt({3 if s_ + 1 < NS else 0})')
        xf = v(XF + 4*s_, 4) if s_ < 32 else v(XE, 4)
        for f in range(3):
            wf = v(WB[s_ % 3] + 4*f, 4)
            cc = '0' if s_ == 0 else v(ACC[f], 16)
            if qkv and f == 2:
                a(f'{MFMA} {v(ACC[f],16)}, {xf}, {wf}, {cc}')
            else:
                a(f'{MFMA} {v(ACC[f],16)}, {wf}, {xf}, {cc}')
            if f == 0 and nxt < NS:
                rd(nxt)
            if f >= 1 and pend:
                issue(pend.pop(0))
                if not pend: done_at[pc] = nvm[0]
            for _ in range(2):
                if sv and s_ >= 1: a(sv.pop(0))
        if j == 3 and pend:
            while pend: issue(pend.pop(0))
            done_at[pc] = nvm[0]
    assert not sv
    stamp(a, 2)
    if qkv:
        a('s_lshl_b32 s55, s41, 8')
        a(f's_add_u32 s55, s55, {100*1024}')
        a(f'v_add_u32 v{T0}, s55, v{L4}')
        a(f'ds_write_b32 v{T0}, v{RS}')
        a(f'v_lshrrev_b32 v{T1}, 5, v{LN}')
        a(f'v_lshlrev_b32 v{T1}, 4, v{T1}')
        a(f'v_add_u32 v{T1}, s55, v{T1}')
        a('s_waitcnt lgkmcnt(0)')
        for j in range(4):
            a(f'ds_read_b128 {v(STV+4*j,4)}, v{T1} offset:{32*j}')
        a('s_lshl_b32 s56, s45, 17'); a('s_lshl_b32 s57, s46, 10'); a('s_add_u32 s56, s56, s57'); a('s_add_u32 s56, s56, s38')
        a('s_add_u32 s57, s56, 0x10000')
        a(f's_add_u32 s58, s56, {L.K[0]}'); a(f's_add_u32 s59, s57, {L.K[0]}')
        a(f's_add_u32 s60, s56, {L.V[0]}')
        for f in range(2):
            sc = RQ if f == 0 else RS
            for hd in range(2):
                o = WB[0] + 4*(2*f + hd)
                for r_ in range(8):
                    a(f'v_mul_f32 v{ACC[f]+8*hd+r_}, v{sc}, v{ACC[f]+8*hd+r_}')
                for r_ in range(4):
                    a(f'v_cvt_pk_bf16_f32 v{o+r_}, v{ACC[f]+8*hd+2*r_}, v{ACC[f]+8*hd+2*r_+1}')
                a(f'buffer_store_dwordx4 {v(o,4)}, v{L16}, s[4:7], s{56+2*f+hd} offen')
        a(f'v_bfe_u32 v{T0}, v{LN}, 4, 1'); a(f'v_lshlrev_b32 v{T0}, 16, v{T0}')
        a(f'v_lshrrev_b32 v{T1}, 5, v{LN}'); a(f'v_lshl_add_u32 v{T0}, v{T1}, 8, v{T0}')
        a(f'v_and_b32 v{T1}, 15, v{LN}'); a(f'v_lshl_add_u32 v{T0}, v{T1}, 4, v{T0}')
        a('s_waitcnt lgkmcnt(0)')
        for g in range(2):
            o = WB[0] + 16 + 4*g
            for r_ in range(8):
                a(f'v_mul_f32 v{ACC[2]+8*g+r_}, v{STV+8*g+r_}, v{ACC[2]+8*g+r_}')
            for r_ in range(4):
                a(f'v_cvt_pk_bf16_f32 v{o+r_}, v{ACC[2]+8*g+2*r_}, v{ACC[2]+8*g+2*r_+1}')
            a(f'buffer_store_dwordx4 {v(o,4)}, v{T0}, s[4:7], s60 offen offset:{512*g}')
    else:
        a('s_mul_i32 s56, s46, 86'); a('s_mul_i32 s57, s45, 6'); a('s_add_u32 s56, s56, s57')
        a('s_lshl_b32 s56, s56, 10'); a('s_add_u32 s56, s56, s38'); a('s_add_u32 s57, s56, 4096')
        U = XF
        for f in range(3):
            if f == 1:
                a('s_cmp_eq_u32 s45, 14')
                a(f's_cbranch_scc1 {nm}_fin')
            A = ACC[f]; Uf = U + 32*f
            for r_ in range(16):
                a(f'v_mul_f32 v{Uf+r_}, v{RQ}, v{A+r_}')
            for r_ in range(16):
                a(f'v_exp_f32 v{Uf+r_}, v{Uf+r_}')
                a(f'v_mul_f32 v{A+r_}, v{RS}, v{A+r_}')
            for r_ in range(16):
                a(f'v_add_f32 v{Uf+16+r_}, 2.0, v{Uf+r_}')
            for r_ in range(16):
                a(f'v_fma_f32 v{Uf+r_}, v{Uf+r_}, v{Uf+16+r_}, 2.0')
            for r_ in range(16):
                a(f'v_rcp_f32 v{Uf+r_}, v{Uf+r_}')
            for r_ in range(16):
                a(f'v_mul_f32 v{Uf+r_}, v{A+r_}, v{Uf+r_}')
            for r_ in range(16):
                a(f'v_fma_f32 v{A+r_}, v{Uf+r_}, -2.0, v{A+r_}')
            for g in range(2):
                o = Uf + 16 + 4*g
                for r_ in range(4):
                    a(f'v_cvt_pk_bf16_f32 v{o+r_}, v{A+8*g+2*r_}, v{A+8*g+2*r_+1}')
                k = 2*f + g
                a(f'buffer_store_dwordx4 {v(o,4)}, v{L16}, s[4:7], s{56 + k//4} offen offset:{1024*(k%4)}')
        a.label(f'{nm}_fin')
    if STAMP: a('s_waitcnt vmcnt(0)')
    stamp(a, 3)
    stamp_store(a, 4, 41)
    a.label(f'{nm}_end')
    a('s_endpgm')
    return 256, 101*1024

def gen_gemmB(p, kind, WIN=8):
    a = p.a
    wo = kind == 'wo'
    nm = kind
    KS = 32 if wo else 86
    nv = 256
    for l in range(2):
        p.entry(f'{nm}{l}_kernel', nv, nv)
        xi = 2*l + (0 if wo else 1)
        a(f's_mov_b32 s40, {L.O[l] if wo else L.ACT[l]}')
        a(f's_mov_b32 s39, {L.X[xi]}')
        fin = xi == 3
        a(f's_mov_b32 s38, {0 if fin else L.X[xi+1]}')
        a(f's_mov_b32 s37, {0 if fin else L.ST[xi+1]}')
        a(f's_mov_b32 s36, {1 if fin else 0}')
        if l == 0:
            a(f's_branch {nm}_body')
    a.label(f'{nm}_body')
    a('s_cmp_ge_u32 s2, 256')
    a(f's_cbranch_scc1 {nm}_end')
    stamp(a, 0)
    a('s_load_dwordx2 s[4:5], s[0:1], 72')
    a('s_load_dwordx2 s[8:9], s[0:1], 56')
    LN, L16, L4, T0, T1, T2, T3 = 1, 2, 3, 4, 5, 6, 7
    RES = 8
    ACC = [[16 + 16*(2*i+j) for j in range(2)] for i in range(2)]
    FB = 80
    assert FB + 16*WIN <= 256
    a(f'v_and_b32 v{LN}, 63, v0')
    a(f'v_lshlrev_b32 v{L16}, 4, v{LN}')
    a(f'v_lshlrev_b32 v{L4}, 2, v{LN}')
    a(f'v_lshrrev_b32 v{T0}, 6, v0')
    a(f'v_readfirstlane_b32 s41, v{T0}')
    a('s_and_b32 s42, s2, 7'); a('s_lshr_b32 s43, s2, 3')
    a('s_lshl_b32 s44, s42, 2'); a('s_and_b32 s45, s43, 3'); a('s_add_u32 s44, s44, s45')
    a('s_lshr_b32 s45, s43, 2')
    a('s_lshr_b32 s46, s41, 1'); a('s_and_b32 s47, s41, 1')
    a('s_lshl_b32 s48, s44, 1'); a('s_add_u32 s48, s48, s46')
    a('s_xor_b32 s49, s48, 1')
    a('s_lshl_b32 s50, s45, 1'); a('s_add_u32 s50, s50, s47')
    a('s_xor_b32 s51, s50, 1')
    if wo:
        nst = 8
        a('s_lshl_b32 s52, s41, 3')
    else:
        nst = 22
        a('s_mul_i32 s52, s41, 22')
        a('s_mul_i32 s53, s41, 21'); a('s_add_u32 s53, s53, 1')
        a('s_cmp_ge_u32 s41, 2')
        a('s_cselect_b32 s52, s53, s52')
    wbase = L.WOF if wo else L.W2F
    for i, (t, b) in enumerate(((48, 40), (49, 40), (50, None), (51, None))):
        a(f's_mul_i32 s{56+i}, s{t}, {KS}')
        a(f's_add_u32 s{56+i}, s{56+i}, s52')
        a(f's_lshl_b32 s{56+i}, s{56+i}, 10')
        a(f's_add_u32 s{56+i}, s{56+i}, ' + (f's{b}' if b else f'{wbase}'))
    a('s_lshl_b32 s60, s48, 5'); a('s_lshl_b32 s61, s50, 1'); a('s_add_u32 s60, s60, s61'); a('s_lshl_b32 s60, s60, 10')
    a('s_add_u32 s61, s60, s39')
    a('s_waitcnt lgkmcnt(0)')
    srd(a, 4, 4, L.WS_BYTES)
    srd(a, 8, 8, 2*L.MB)
    a(f'buffer_load_dwordx4 {v(RES,4)}, v{L16}, s[4:7], s61 offen')
    a(f'buffer_load_dwordx4 {v(RES+4,4)}, v{L16}, s[4:7], s61 offen offset:1024')
    def loads(st):
        fb = FB + 16*(st % WIN)
        out = []
        for i in (0, 2, 1, 3):
            out.append(f'buffer_load_dwordx4 {v(fb+4*i,4)}, v{L16}, s[4:7], s{56+i} offen offset:{1024*(st%4)}')
        if st % 4 == 3:
            for i in range(4): out.append(f's_add_u32 s{56+i}, s{56+i}, 4096')
        return out
    def mm(st):
        fb = FB + 16*(st % WIN)
        return [f'{MFMA} {v(ACC[i][j],16)}, {v(fb+8+4*j,4)}, {v(fb+4*i,4)}, {v(ACC[i][j],16)}' for (i, j) in ((0,0),(1,0),(0,1),(1,1))]
    if not wo:
        a('s_cmp_ge_u32 s41, 2')
        a(f's_cbranch_scc1 {nm}_skip0')
    for t in loads(0): a(t)
    if not wo:
        a.label(f'{nm}_skip0')
    npre = min(WIN, nst)
    for st in range(1, npre):
        for t in loads(st): a(t)
    for i in range(64):
        a(f'v_mov_b32 v{16+i}, 0')
    stamp(a, 1)
    for st in range(nst):
        issued = min(nst, st + WIN)
        a(f's_waitcnt vmcnt({4*(issued - st - 1)})')
        if st == 0 and not wo:
            a('s_cmp_ge_u32 s41, 2')
            a(f's_cbranch_scc1 {nm}_skip1')
        for t in mm(st): a(t)
        if st == 0 and not wo:
            a.label(f'{nm}_skip1')
        if st + WIN < nst:
            for t in loads(st + WIN): a(t)
    stamp(a, 2)
    for k in range(1, 4):
        a(f's_xor_b32 s62, s41, {k}')
        a(f's_mul_i32 s62, s62, {3*4096}')
        a(f'v_add_u32 v{T0+k-1}, s62, v{L16}')
    for k in range(1, 4):
        A = ACC[k >> 1][k & 1]
        for q in range(4):
            a(f'ds_write_b128 v{T0+k-1}, {v(A+4*q,4)} offset:{(k-1)*4096 + q*1024}')
    a(f's_mul_i32 s62, s41, {3*4096}')
    a(f'v_add_u32 v{T3}, s62, v{L16}')
    for r_ in range(8):
        a(f'v_lshlrev_b32 v{FB+2*r_}, 16, v{RES+r_}')
        a(f'v_and_b32 v{FB+2*r_+1}, 0xffff0000, v{RES+r_}')
    A0 = ACC[0][0]
    for r_ in range(16):
        a(f'v_add_f32 v{A0+r_}, v{A0+r_}, v{FB+r_}')
    a('s_waitcnt lgkmcnt(0)')
    a('s_barrier')
    RB = FB + 16
    for k in range(3):
        for q in range(4):
            a(f'ds_read_b128 {v(RB+16*k+4*q,4)}, v{T3} offset:{k*4096 + q*1024}')
    for k in range(3):
        a(f's_waitcnt lgkmcnt({8-4*k})')
        for r_ in range(16):
            a(f'v_add_f32 v{A0+r_}, v{A0+r_}, v{RB+16*k+r_}')
    for r_ in range(8):
        a(f'v_cvt_pk_bf16_f32 v{RES+r_}, v{A0+2*r_}, v{A0+2*r_+1}')
    if not wo:
        a('s_cmp_eq_u32 s36, 1')
        a(f's_cbranch_scc1 {nm}_final')
    a('s_add_u32 s61, s60, s38')
    a(f'buffer_store_dwordx4 {v(RES,4)}, v{L16}, s[4:7], s61 offen')
    a(f'buffer_store_dwordx4 {v(RES+4,4)}, v{L16}, s[4:7], s61 offen offset:1024')
    a(f'v_add_f32 v{T0}, v{A0}, v{A0+1}')
    a(f'v_mul_f32 v{T1}, v{A0}, v{A0}')
    a(f'v_fmac_f32 v{T1}, v{A0+1}, v{A0+1}')
    for r_ in range(2, 16):
        a(f'v_add_f32 v{T0}, v{T0}, v{A0+r_}')
        a(f'v_fmac_f32 v{T1}, v{A0+r_}, v{A0+r_}')
    a('s_lshl_b32 s62, s48, 12'); a('s_lshl_b32 s63, s50, 8'); a('s_add_u32 s62, s62, s63'); a('s_add_u32 s62, s62, s37')
    a(f'v_permlane32_swap_b32 v{T0}, v{T1}')
    a(f'v_add_f32 v{T0}, v{T0}, v{T1}')
    a(f'buffer_store_dword v{T0}, v{L4}, s[4:7], s62 offen')
    if not wo:
        a(f's_branch {nm}_fin')
        a.label(f'{nm}_final')
        a(f'v_and_b32 v{T0}, 31, v{LN}'); a(f'v_lshlrev_b32 v{T0}, 10, v{T0}')
        a(f'v_lshrrev_b32 v{T1}, 5, v{LN}'); a(f'v_lshl_add_u32 v{T0}, v{T1}, 4, v{T0}')
        a('s_lshl_b32 s62, s48, 15'); a('s_lshl_b32 s63, s50, 6'); a('s_add_u32 s62, s62, s63')
        for g in range(2):
            a(f'v_permlane32_swap_b32 v{RES+4*g}, v{RES+4*g+2}')
            a(f'v_permlane32_swap_b32 v{RES+4*g+1}, v{RES+4*g+3}')
            a(f'buffer_store_dwordx4 {v(RES+4*g,4)}, v{T0}, s[8:11], s62 offen offset:{32*g}')
        a.label(f'{nm}_fin')
    if STAMP: a('s_waitcnt vmcnt(0)')
    stamp(a, 3)
    stamp_store(a, 4, 41)
    a.label(f'{nm}_end')
    a('s_endpgm')
    return 256, 48*1024

def build_all():
    p = Prog()
    NW = int(os.environ.get('NW', 8)); UN = int(os.environ.get('UN', 8))
    cfg = {}
    cfg['prep'] = gen_prep(p)
    cfg['qkv'] = gen_gemmA(p, 'qkv')
    cfg['attn'] = gen_attn(p, NW, UN)
    cfg['wo'] = gen_gemmB(p, 'wo')
    cfg['ffn1'] = gen_gemmA(p, 'ffn1')
    cfg['ffn2'] = gen_gemmB(p, 'ffn2')
    p.launches.append(('prep_kernel', 214, *cfg['prep']))
    for l in range(2):
        for k in ('qkv', 'attn', 'wo', 'ffn1', 'ffn2'):
            p.launches.append((f'{k}{l}_kernel', 256, *cfg[k]))
    return p

if __name__ == '__main__':
    p = build_all()
    errs = p.a.check_branches()
    for e in errs: print('HAZARD', e, file=sys.stderr)
    open(sys.argv[1], 'w').write(p.text())
    print('pads', p.a.pads, 'instrs', sum(1 for i in p.a.ins if i.states), file=sys.stderr)
```

```python
import sys, struct
sys.path.insert(0, 'work')
from asmlib import *
import layout as L

def f32(x):
    return '0x%08x' % struct.unpack('<I', struct.pack('<f', x))[0]

class Prog:
    def __init__(self):
        self.a = Asm()
        self.kernels = []
        self.launches = []
    def entry(self, name, nvgpr, accum, nsgpr=102):
        a = self.a
        a(f'.globl {name}')
        a('.p2align 8')
        a(f'.type {name},@function')
        a.label(name)
        self.kernels.append((name, nvgpr, accum, nsgpr))
    def text(self):
        hdr = open('interleave_layers__mha_block__dense_activation_mish__prompt.s.ref').read().split('\n')
        hdr = [l for l in hdr[:11]]
        out = '\n'.join(hdr) + '\n'
        for n, g, b, lds in self.launches:
            out += f'; @launch kernel={n} grid=({g},1,1) block=({b},1,1) lds={lds}\n'
        out += '.amdgcn_target "amdgcn-amd-amdhsa--gfx950"\n.text\n'
        out += self.a.text()
        out += '.section .rodata,"a"\n'
        for n, nv, acc, ns in self.kernels:
            out += f'''.p2align 6
.amdhsa_kernel {n}
  .amdhsa_next_free_vgpr {nv}
  .amdhsa_next_free_sgpr {ns}
  .amdhsa_accum_offset {acc}
  .amdhsa_group_segment_fixed_size 0
  .amdhsa_kernarg_size 80
  .amdhsa_user_sgpr_count 2
  .amdhsa_user_sgpr_kernarg_segment_ptr 1
  .amdhsa_system_sgpr_workgroup_id_x 1
.end_amdhsa_kernel
'''
        return out

def srd(a, d, b, nbytes):
    if d != b:
        a(f's_mov_b32 s{d}, s{b}')
    a(f's_and_b32 s{d+1}, s{b+1}, 0xffff')
    a(f's_mov_b32 s{d+2}, {nbytes}')
    a(f's_mov_b32 s{d+3}, 0x00020000')

import os
STAMP = int(os.environ.get('STAMP', 0))
def stamp(a, idx):
    if not STAMP: return
    r = 70 + 4*idx
    a(f's_memtime s[{r}:{r+1}]')
    a(f's_memrealtime s[{r+2}:{r+3}]')
    a('s_waitcnt lgkmcnt(0)')
def stamp_store(a, n, wave_s, srdreg=4, vt=4, nw=8):
    if not STAMP: return
    a('s_lshl_b32 s66, s2, 4')
    a(f's_add_u32 s66, s66, s{wave_s}')
    a('s_lshl_b32 s66, s66, 6')
    a(f's_add_u32 s66, s66, {L.FLAGS + 512*1024}')
    a(f'v_mov_b32 v{vt+2}, 0')
    for i in range(n):
        a(f'v_mov_b32 v{vt}, s{70+4*i}')
        a(f'v_mov_b32 v{vt+1}, s{72+4*i}')
        a(f'buffer_store_dwordx2 v[{vt}:{vt+1}], v{vt+2}, s[{srdreg}:{srdreg+3}], s66 offen offset:{8*i}')
        a('s_waitcnt vmcnt(0)')

MFMA = 'v_mfma_f32_32x32x16_bf16'
ONES = '0x3f803f80'

def gen_attn(p, NW=8, UN=4):
    a = p.a
    NQ = 8 // NW
    nv = 128
    body = 'attn_body'
    p.entry('attn0_kernel', nv, nv)
    a('s_mov_b32 s40, 0')
    a(f's_branch {body}')
    p.entry('attn1_kernel', nv, nv)
    a(f's_mov_b32 s40, {2*L.MB}')
    a.label(body)
    a('s_cmp_ge_u32 s2, 256')
    a('s_cbranch_scc1 attn_end')
    stamp(a, 0)
    a('s_load_dwordx2 s[4:5], s[0:1], 72')
    VL16 = 1
    VVA = 2
    VKA = 3
    T0, T1, T2, T3 = 4, 5, 6, 7
    KB = [8, 12]
    VB = [[16, 20], [24, 28]]
    QF = [32 + 4*i for i in range(NQ)]
    base = 40
    PB = [[base + 8*i, base + 8*i + 4] for i in range(NQ)]; base += 8*NQ
    OA = [base + 16*i for i in range(NQ)]; base += 16*NQ
    SB = [[base + 32*i, base + 32*i + 16] for i in range(NQ)]; base += 32*NQ
    assert base <= 256
    nvu = (base + 7)//8*8
    p.kernels[-1] = (p.kernels[-1][0], nvu, nvu, 102); p.kernels[-2] = (p.kernels[-2][0], nvu, nvu, 102)
    a(f'v_and_b32 v{T0}, 63, v0')
    a(f'v_lshlrev_b32 v{VL16}, 4, v{T0}')
    a(f'v_lshrrev_b32 v{T1}, 6, v0')
    a(f'v_readfirstlane_b32 s41, v{T1}')
    a('s_and_b32 s42, s2, 7')
    a('s_lshl_b32 s42, s42, 2')
    a('s_lshr_b32 s43, s2, 3')
    a('s_and_b32 s44, s43, 3')
    a('s_add_u32 s42, s42, s44')
    a('s_lshr_b32 s43, s2, 5')
    a('s_lshl_b32 s44, s42, 16')
    a('s_add_u32 s44, s44, s40')
    a('s_lshl_b32 s45, s41, 10')
    a('s_add_u32 s46, s44, s45')
    a(f's_add_u32 s47, s46, {L.V[0]}')
    a(f's_add_u32 s46, s46, {L.K[0]}')
    a('s_waitcnt lgkmcnt(0)')
    srd(a, 4, 4, L.WS_BYTES)
    a('s_lshl_b32 s48, s43, 3')
    a(f's_mul_i32 s49, s41, {NQ}')
    a('s_add_u32 s48, s48, s49')
    a('s_lshl_b32 s49, s48, 10')
    a('s_add_u32 s49, s49, s44')
    assert L.Q[0] == 0
    nch = 64 // NW
    a('s_mov_b32 m0, s45')
    a(f'buffer_load_dwordx4 v{VL16}, s[4:7], s46 offen lds')
    a('s_add_u32 m0, s45, 0x10000')
    a(f'buffer_load_dwordx4 v{VL16}, s[4:7], s47 offen lds')
    for i in range(NQ):
        a(f'buffer_load_dwordx4 {v(QF[i],4)}, v{VL16}, s[4:7], s49 offen offset:{1024*i}')
    for c in range(1, nch):
        a(f's_add_u32 s46, s46, {NW*1024}')
        a(f's_add_u32 s47, s47, {NW*1024}')
        a(f's_add_u32 m0, s45, {c*NW*1024}')
        a(f'buffer_load_dwordx4 v{VL16}, s[4:7], s46 offen lds')
        a(f's_add_u32 m0, s45, {0x10000 + c*NW*1024}')
        a(f'buffer_load_dwordx4 v{VL16}, s[4:7], s47 offen lds')
    a(f'v_and_b32 v{T1}, 15, v{T0}')
    a(f'v_lshlrev_b32 v{T1}, 4, v{T1}')
    a(f'v_lshrrev_b32 v{T2}, 5, v{T0}')
    a(f'v_lshlrev_b32 v{T2}, 8, v{T2}')
    a(f'v_add_u32 v{VVA}, v{T1}, v{T2}')
    a(f'v_add_u32 v{VVA}, 0x10000, v{VVA}')
    a(f'v_mov_b32 v{VKA}, v{VL16}')
    for b in range(2):
        for g in range(2):
            for r in range(4):
                a(f'v_mov_b32 v{VB[b][g]+r}, {ONES}')
    for i in range(NQ):
        for r in range(16):
            a(f'v_mov_b32 v{OA[i]+r}, 0')
    for r in range(4):
        a(f'v_mov_b32 v{PB[NQ-1][1]+r}, 0')
    a('s_mov_b32 s50, 0x0000ffff')
    a('s_mov_b32 s51, 0x0000ffff')
    first = UN + 2
    nfirst = (first + NW - 1)//NW
    left = 2*(nch - nfirst)
    a(f's_waitcnt vmcnt({left})')
    a('s_barrier')
    stamp(a, 1)
    a(f'ds_read_b128 {v(KB[0],4)}, v{VKA}')
    a(f'ds_read_b128 {v(KB[1],4)}, v{VKA} offset:1024')
    a('s_mov_b64 exec, s[50:51]')
    a(f'ds_read_b128 {v(VB[0][0],4)}, v{VVA}')
    a(f'ds_read_b128 {v(VB[0][1],4)}, v{VVA} offset:512')
    a('s_mov_b64 exec, -1')
    a('s_waitcnt lgkmcnt(3)')
    for i in range(NQ):
        a(f'{MFMA} {v(SB[i][0],16)}, {v(KB[0],4)}, {v(QF[i],4)}, 0')
    a(f's_mov_b32 s52, {64//UN}')
    a('s_nop 7')
    a('.p2align 6')
    a.label('attn_loop')
    def pv1_of(i, buf):
        return f'{MFMA} {v(OA[i],16)}, {v(VB[buf][1],4)}, {v(PB[i][1],4)}, {v(OA[i],16)}'
    for u in range(UN):
        cur, nxt = u % 2, (u + 1) % 2
        a('s_waitcnt lgkmcnt(0)')
        seq = []
        for i in range(NQ):
            S = SB[i][cur]
            qk = f'{MFMA} {v(SB[i][nxt],16)}, {v(KB[nxt],4)}, {v(QF[i],4)}, 0'
            pv0 = f'{MFMA} {v(OA[i],16)}, {v(VB[cur][0],4)}, {v(PB[i][0],4)}, {v(OA[i],16)}'
            e = [f'v_exp_f32 v{S+r}, v{S+r}' for r in range(16)]
            c = [f'v_cvt_pk_bf16_f32 v{PB[i][r//4]+r%4}, v{S+2*r}, v{S+2*r+1}' for r in range(8)]
            seq.append((qk, pv0, e, c))
        vloads = [
            's_mov_b64 exec, s[50:51]',
            f'ds_read_b128 {v(VB[nxt][0],4)}, v{VVA} offset:{(u+1)*1024}',
            f'ds_read_b128 {v(VB[nxt][1],4)}, v{VVA} offset:{(u+1)*1024+512}',
            's_mov_b64 exec, -1',
        ]
        for i, (qk, pv0, e, c) in enumerate(seq):
            a(qk)
            if i == 0:
                a(f'ds_read_b128 {v(KB[cur],4)}, v{VKA} offset:{(u+2)*1024}')
            a(e[0]); a(e[1]); a(e[2]); a(e[3])
            a(c[0]); a(c[1])
            a(e[4])
            if i == 0:
                a(pv1_of(NQ-1, nxt))
                for l in vloads: a(l)
            else:
                a(pv1_of(i-1, cur))
            a(e[5]); a(e[6]); a(e[7])
            a(c[2]); a(c[3])
            a(e[8]); a(e[9]); a(e[10])
            a(pv0)
            a(e[11])
            a(c[4]); a(c[5])
            a(e[12]); a(e[13]); a(e[14]); a(e[15])
            a(c[6]); a(c[7])
        if u == UN - 1:
            a(f'v_add_u32 v{VKA}, {UN*1024}, v{VKA}')
            a(f'v_add_u32 v{VVA}, {UN*1024}, v{VVA}')
    nit = 64 // UN
    a(f's_cmp_lt_u32 s52, {nit-2}')
    a('s_cbranch_scc1 attn_nosync')
    a(f's_cmp_eq_u32 s52, {nit-1}')
    a('s_cbranch_scc1 attn_nosync')
    a(f's_waitcnt vmcnt({nch})')
    a(f's_cmp_eq_u32 s52, {nit}')
    a('s_cbranch_scc1 attn_half')
    a('s_waitcnt vmcnt(0)')
    a.label('attn_half')
    a('s_barrier')
    a.label('attn_nosync')
    a('s_sub_u32 s52, s52, 1')
    a('s_cmp_lg_u32 s52, 0')
    a('s_cbranch_scc1 attn_loop')
    assert 3*UN + 2 <= 32 and UN % 2 == 0
    a(pv1_of(NQ-1, 1))
    a('s_waitcnt lgkmcnt(0)')
    stamp(a, 2)
    a('s_lshl_b32 s53, s48, 15')
    a('s_lshl_b32 s54, s42, 10')
    a('s_add_u32 s53, s53, s54')
    a('s_add_u32 s53, s53, s40')
    a(f's_add_u32 s53, s53, {L.O[0]}')
    a(f's_mov_b32 s56, {f32(2.0**-90)}')
    a(f's_mov_b32 s57, {f32(2.0**120)}')
    for i in range(NQ):
        Oa = OA[i]
        done = a.lab('attn_fin')
        a(f'v_add_f32 v{T0}, abs(v{Oa}), abs(v{Oa+1})')
        a(f'v_add_f32 v{T1}, abs(v{Oa+2}), abs(v{Oa+3})')
        a(f'v_add_f32 v{T2}, abs(v{Oa+4}), abs(v{Oa+5})')
        a(f'v_add_f32 v{T3}, abs(v{Oa+6}), abs(v{Oa+7})')
        a(f'v_add_f32 v{T0}, v{T0}, v{T1}')
        a(f'v_add_f32 v{T2}, v{T2}, v{T3}')
        a(f'v_add_f32 v{T0}, v{T0}, v{T2}')
        a(f'v_cmp_gt_f32 s[58:59], s57, v{T0}')
        a(f'v_cmp_gt_f32 s[60:61], s57, v{Oa+8}')
        a(f'v_cmp_lt_f32 s[62:63], s56, v{Oa+8}')
        a('s_and_b64 s[58:59], s[58:59], s[60:61]')
        a('s_and_b64 s[58:59], s[58:59], s[62:63]')
        a('s_cmp_eq_u64 s[58:59], -1')
        a(f's_cbranch_scc1 {done}')
        S = SB[i][0]; M = SB[i][1]; AL = M + 1; TA = M + 2; TB = M + 3; KA2 = M + 4; VA2 = M + 5
        a(f'v_mov_b32 v{KA2}, v{VL16}')
        a(f'v_subrev_u32 v{VA2}, 0x10000, v{VVA}')
        a(f'v_mov_b32 v{M}, {f32(-3.0e38)}')
        for r in range(16):
            a(f'v_mov_b32 v{Oa+r}, 0')
        a('s_mov_b32 s55, 64')
        lp = a.lab('attn_slow')
        a.label(lp)
        a(f'ds_read_b128 {v(KB[0],4)}, v{KA2}')
        a('s_mov_b64 exec, s[50:51]')
        a(f'ds_read_b128 {v(VB[0][0],4)}, v{VA2}')
        a(f'ds_read_b128 {v(VB[0][1],4)}, v{VA2} offset:512')
        a('s_mov_b64 exec, -1')
        a('s_waitcnt lgkmcnt(0)')
        a(f'{MFMA} {v(S,16)}, {v(KB[0],4)}, {v(QF[i],4)}, 0')
        a(f'v_add_u32 v{KA2}, 1024, v{KA2}')
        a(f'v_add_u32 v{VA2}, 1024, v{VA2}')
        a(f'v_max3_f32 v{TA}, v{S}, v{S+1}, v{M}')
        for r in range(2, 16, 2):
            a(f'v_max3_f32 v{TA}, v{S+r}, v{S+r+1}, v{TA}')
        a(f'v_mov_b32 v{TB}, v{TA}')
        a(f'v_permlane32_swap_b32 v{TA}, v{TB}')
        a(f'v_max_f32 v{TA}, v{TA}, v{TB}')
        a(f'v_sub_f32 v{AL}, v{M}, v{TA}')
        a(f'v_exp_f32 v{AL}, v{AL}')
        a(f'v_mov_b32 v{M}, v{TA}')
        for r in range(16):
            a(f'v_sub_f32 v{S+r}, v{S+r}, v{M}')
            a(f'v_exp_f32 v{S+r}, v{S+r}')
        for r in range(16):
            a(f'v_mul_f32 v{Oa+r}, v{AL}, v{Oa+r}')
        for r in range(8):
            a(f'v_cvt_pk_bf16_f32 v{PB[i][r//4]+r%4}, v{S+2*r}, v{S+2*r+1}')
        a(f'{MFMA} {v(Oa,16)}, {v(VB[0][0],4)}, {v(PB[i][0],4)}, {v(Oa,16)}')
        a(f'{MFMA} {v(Oa,16)}, {v(VB[0][1],4)}, {v(PB[i][1],4)}, {v(Oa,16)}')
        a('s_sub_u32 s55, s55, 1')
        a('s_cmp_lg_u32 s55, 0')
        a('s_nop 7')
        a(f's_cbranch_scc1 {lp}')
        a('s_nop 7')
        a.label(done)
        a(f'v_rcp_f32 v{T0}, v{Oa+8}')
        for r in range(8):
            a(f'v_mul_f32 v{Oa+r}, v{T0}, v{Oa+r}')
        for r in range(4):
            a(f'v_cvt_pk_bf16_f32 v{PB[i][0]+r}, v{Oa+2*r}, v{Oa+2*r+1}')
        a(f'buffer_store_dwordx4 {v(PB[i][0],4)}, v{VL16}, s[4:7], s53 offen')
        if i + 1 < NQ:
            a(f's_add_u32 s53, s53, {32*1024}')
    a('s_waitcnt vmcnt(0)') if STAMP else None
    stamp(a, 3)
    stamp_store(a, 4, 41)
    a.label('attn_end')
    a('s_endpgm')
    return NW * 64, 128 * 1024 + 4096


def split3(a, x, hi, mid, lo, t):
    a(f'v_and_b32 v{hi}, 0xffff0000, v{x}')
    a(f'v_sub_f32 v{t}, v{x}, v{hi}')
    a(f'v_and_b32 v{mid}, 0xffff0000, v{t}')
    a(f'v_sub_f32 v{t}, v{t}, v{mid}')
    a(f'v_and_b32 v{lo}, 0xffff0000, v{t}')
def pack_hi(a, d, lo, hi):
    a(f'v_lshrrev_b32 v{d}, 16, v{lo}')
    a(f'v_or_b32 v{d}, v{d}, v{hi}')

def gen_prep(p, clear=False):
    a = p.a
    nv = 64
    p.entry('prep_kernel', nv, nv)
    a(f's_cmp_ge_u32 s2, {(214, 224, 215)[int(clear)]}')
    a('s_cbranch_scc1 prep_end')
    a('s_load_dwordx4 s[8:11], s[0:1], 0')
    a('s_load_dwordx2 s[12:13], s[0:1], 16')
    a('s_load_dwordx4 s[16:19], s[0:1], 32')
    a('s_load_dwordx2 s[20:21], s[0:1], 48')
    a('s_load_dwordx2 s[4:5], s[0:1], 72')
    LN, L16, T0, T1, T2, T3 = 1, 2, 3, 4, 5, 6
    a(f'v_and_b32 v{LN}, 63, v0')
    a(f'v_lshlrev_b32 v{L16}, 4, v{LN}')
    a(f'v_lshrrev_b32 v{T0}, 6, v0')
    a(f'v_readfirstlane_b32 s41, v{T0}')
    a('s_waitcnt lgkmcnt(0)')
    srd(a, 4, 4, L.WS_BYTES)
    if clear:
        a('s_cmp_lt_u32 s2, 214')
        a('s_cbranch_scc1 prep_noclr')
        if clear == 2:
            a(f'v_lshlrev_b32 v{T0}, 8, v0')
            a('v_mov_b32 v8, 0')
            for i in range(5):
                a(f's_mov_b32 s42, {L.FLAGS + i*65536}')
                a(f'buffer_store_dword v8, v{T0}, s[4:7], s42 offen')
        else:
            a('s_sub_u32 s42, s2, 214'); a('s_lshl_b32 s42, s42, 12'); a(f's_add_u32 s42, s42, {L.FLAGS}')
            a(f'v_lshlrev_b32 v{T0}, 4, v0')
            for r in range(4): a(f'v_mov_b32 v{8+r}, 0')
            a(f'buffer_store_dwordx4 v[8:11], v{T0}, s[4:7], s42 offen')
        a('s_branch prep_end')
        a.label('prep_noclr')
    a('s_cmp_ge_u32 s2, 150')
    a('s_cbranch_scc1 prep_x')
    a('s_mov_b32 s27, 0x00020000')
    lab_w1, lab_wo, lab_w2, lab_go = 'prep_w1', 'prep_wo', 'prep_w2', 'prep_go'
    a('s_cmp_ge_u32 s2, 48')
    a(f's_cbranch_scc1 {lab_w1}')
    a('s_mov_b32 s24, s10'); a('s_and_b32 s25, s11, 0xffff'); a(f's_mov_b32 s26, {512*1536*2}')
    a('s_mov_b32 s30, 3072'); a('s_mov_b32 s31, 1'); a(f's_mov_b32 s33, {L.WQKVF}'); a(f's_mov_b32 s34, {L.KSX}')
    a('s_mov_b32 s37, s2'); a('s_mov_b32 s38, 0'); a('s_mov_b32 s36, 32')
    a(f's_branch {lab_go}')
    a.label(lab_w1)
    a('s_cmp_ge_u32 s2, 91')
    a(f's_cbranch_scc1 {lab_wo}')
    a('s_mov_b32 s24, s16'); a('s_and_b32 s25, s17, 0xffff'); a(f's_mov_b32 s26, {512*1376*2}')
    a('s_mov_b32 s30, 2752'); a('s_mov_b32 s31, 2'); a(f's_mov_b32 s33, {L.W1F}'); a(f's_mov_b32 s34, {L.KSX}')
    a('s_sub_u32 s37, s2, 48'); a('s_mov_b32 s38, 0'); a('s_mov_b32 s36, 32')
    a(f's_branch {lab_go}')
    a.label(lab_wo)
    a('s_cmp_ge_u32 s2, 107')
    a(f's_cbranch_scc1 {lab_w2}')
    a('s_mov_b32 s24, s12'); a('s_and_b32 s25, s13, 0xffff'); a(f's_mov_b32 s26, {512*512*2}')
    a('s_mov_b32 s30, 1024'); a('s_mov_b32 s31, 0'); a(f's_mov_b32 s33, {L.WOF}'); a(f's_mov_b32 s34, 32')
    a('s_sub_u32 s37, s2, 91'); a('s_mov_b32 s38, 0'); a('s_mov_b32 s36, 32')
    a(f's_branch {lab_go}')
    a.label(lab_w2)
    a('s_mov_b32 s24, s20'); a('s_and_b32 s25, s21, 0xffff'); a(f's_mov_b32 s26, {1376*512*2}')
    a('s_mov_b32 s30, 1024'); a('s_mov_b32 s31, 0'); a(f's_mov_b32 s33, {L.W2F}'); a(f's_mov_b32 s34, 86')
    a('s_sub_u32 s35, s2, 107'); a('s_lshl_b32 s35, s35, 5')
    a(f's_mul_hi_u32 s37, s35, {(2**32 + 85)//86}')
    a('s_mul_i32 s38, s37, 86'); a('s_sub_u32 s38, s35, s38')
    a('s_mov_b32 s36, 86')
    a.label(lab_go)
    a('s_lshl_b32 s39, s41, 3')
    a('s_add_u32 s38, s38, s39')
    a('s_cmp_ge_u32 s38, s36')
    a('s_cselect_b32 s39, s36, 0'); a('s_cselect_b32 s42, 1, 0')
    a('s_sub_u32 s38, s38, s39'); a('s_add_u32 s37, s37, s42')
    a(f'v_lshrrev_b32 v{T0}, 2, v{LN}')
    a(f'v_mul_lo_u32 v{T0}, v{T0}, s30')
    a(f'v_and_b32 v{T1}, 3, v{LN}')
    a(f'v_lshl_add_u32 v{T0}, v{T1}, 4, v{T0}')
    a(f'v_lshrrev_b32 v{T1}, 5, v{LN}')
    a(f'v_lshlrev_b32 v{T1}, 2, v{T1}')
    a(f'v_bfe_u32 v{T2}, v{LN}, 2, 2')
    a(f'v_add_u32 v{T1}, v{T1}, v{T2}')
    a(f'v_lshlrev_b32 v{T1}, 6, v{T1}')
    a(f'v_bfe_u32 v{T2}, v{LN}, 4, 1')
    a(f'v_lshl_add_u32 v{T1}, v{T2}, 5, v{T1}')
    a(f'v_and_b32 v{T2}, 3, v{LN}')
    a(f'v_lshl_add_u32 v{T1}, v{T2}, 3, v{T1}')
    a('s_lshl_b32 s43, s41, 13')
    a(f'v_add_u32 v{T1}, s43, v{T1}')
    for i in range(8):
        a('s_lshl_b32 s52, s38, 4')
        a('s_mul_i32 s52, s52, s30')
        a('s_lshl_b32 s53, s37, 6')
        a('s_add_u32 s52, s52, s53')
        a(f's_add_u32 m0, s43, {i*1024}')
        a(f's_mul_i32 s{44+i}, s37, s34')
        a(f'buffer_load_dwordx4 v{T0}, s[24:27], s52 offen lds')
        a(f's_add_u32 s{44+i}, s{44+i}, s38')
        a(f's_lshl_b32 s{44+i}, s{44+i}, 10')
        a(f's_add_u32 s{44+i}, s{44+i}, s33')
        if i < 7:
            a('s_add_u32 s38, s38, 1')
            a('s_cmp_ge_u32 s38, s36')
            a('s_cselect_b32 s39, s36, 0'); a('s_cselect_b32 s42, 1, 0')
            a('s_sub_u32 s38, s38, s39'); a('s_add_u32 s37, s37, s42')
    FR = 16
    CS = 8
    a(f'v_mov_b32 v{CS}, 0')
    a(f'v_mov_b32 v{T3}, {ONES}')
    a('s_waitcnt vmcnt(0)')
    for i in range(8):
        a(f'ds_read_b64_tr_b16 {v(FR+4*i,2)}, v{T1} offset:{i*1024}')
        a(f'ds_read_b64_tr_b16 {v(FR+4*i+2,2)}, v{T1} offset:{i*1024+512}')
    a('s_waitcnt lgkmcnt(0)')
    for i in range(8):
        a(f'buffer_store_dwordx4 {v(FR+4*i,4)}, v{L16}, s[4:7], s{44+i} offen')
    a('s_cmp_eq_u32 s31, 0')
    a('s_cbranch_scc1 prep_end')
    for i in range(32):
        a(f'v_dot2_f32_bf16 v{CS}, v{FR+i}, v{T3}, v{CS}')
    a(f'v_lshlrev_b32 v{T2}, 2, v0')
    a(f'ds_write_b32 v{T2}, v{CS} offset:32768')
    a('s_waitcnt lgkmcnt(0)')
    a('s_barrier')
    a('s_cmp_lg_u32 s41, 0')
    a('s_cbranch_scc1 prep_end')
    a(f'v_and_b32 v{T2}, 31, v{LN}')
    a(f'v_lshlrev_b32 v{T2}, 2, v{T2}')
    for i in range(8):
        a(f'ds_read_b32 v{48+i}, v{T2} offset:{32768+128*i}')
    B = 9
    a(f'v_mov_b32 v{B}, 0')
    a('s_cmp_lg_u32 s31, 2')
    a('s_cbranch_scc1 prep_nobias')
    a('s_mov_b32 s24, s18'); a('s_and_b32 s25, s19, 0xffff'); a(f's_mov_b32 s26, {1376*2}')
    a('s_lshl_b32 s53, s37, 6')
    a(f'v_lshrrev_b32 v{T2}, 1, v{T2}')
    a(f'buffer_load_ushort v{B}, v{T2}, s[24:27], s53 offen')
    a('s_waitcnt vmcnt(0)')
    a(f'v_lshlrev_b32 v{B}, 16, v{B}')
    a.label('prep_nobias')
    a('s_waitcnt lgkmcnt(0)')
    a('v_add_f32 v48, v48, v49'); a('v_add_f32 v50, v50, v51'); a('v_add_f32 v52, v52, v53'); a('v_add_f32 v54, v54, v55')
    a('v_add_f32 v48, v48, v50'); a('v_add_f32 v52, v52, v54'); a('v_add_f32 v48, v48, v52')
    HI, MID, LO = 10, 11, 12
    split3(a, 48, HI, MID, LO, 13)
    pack_hi(a, 56, HI, HI); pack_hi(a, 57, HI, B); pack_hi(a, 58, B, B)
    a(f'v_lshrrev_b32 v59, 16, v{MID}')
    pack_hi(a, 60, LO, MID)
    a(f'v_cmp_gt_u32 vcc, 32, v{LN}')
    a('v_cndmask_b32 v56, v60, v56, vcc')
    a('v_cndmask_b32 v57, 0, v57, vcc')
    a('v_cndmask_b32 v58, 0, v58, vcc')
    a('v_cndmask_b32 v59, 0, v59, vcc')
    a('s_mul_i32 s52, s37, s34')
    a('s_add_u32 s52, s52, 32')
    a('s_lshl_b32 s52, s52, 10')
    a('s_add_u32 s52, s52, s33')
    a(f'buffer_store_dwordx4 v[56:59], v{L16}, s[4:7], s52 offen')
    a('s_branch prep_end')
    a.label('prep_x')
    srd(a, 8, 8, 2048*512*2)
    a('s_sub_u32 s42, s2, 150')
    a(f'v_and_b32 v{T0}, 31, v{LN}')
    a(f'v_lshlrev_b32 v{T0}, 10, v{T0}')
    a(f'v_lshrrev_b32 v{T1}, 5, v{LN}')
    a(f'v_lshl_add_u32 v{T0}, v{T1}, 4, v{T0}')
    a('s_lshl_b32 s43, s42, 15')
    a('s_lshl_b32 s44, s41, 8')
    a('s_add_u32 s44, s44, s43')
    for i in range(8):
        a(f'buffer_load_dwordx4 {v(FR+4*i,4)}, v{T0}, s[8:11], s44 offen offset:{32*i}')
    a('s_lshl_b32 s45, s41, 13')
    a('s_add_u32 s45, s45, s43')
    a(f's_add_u32 s45, s45, {L.X[0]}')
    a('s_add_u32 s46, s45, 4096')
    a('s_lshl_b32 s47, s42, 12')
    a('s_lshl_b32 s48, s41, 10')
    a('s_add_u32 s47, s47, s48')
    a(f's_add_u32 s47, s47, {L.ST[0]}')
    a(f'v_mov_b32 v{T3}, {ONES}')
    a(f'v_lshlrev_b32 v{T2}, 2, v{LN}')
    a('s_waitcnt vmcnt(0)')
    for i in range(8):
        a(f'v_permlane32_swap_b32 v{FR+4*i}, v{FR+4*i+2}')
        a(f'v_permlane32_swap_b32 v{FR+4*i+1}, v{FR+4*i+3}')
    for i in range(8):
        a(f'buffer_store_dwordx4 {v(FR+4*i,4)}, v{L16}, s[4:7], s{45 + i//4} offen offset:{1024*(i%4)}')
    for sl in range(4):
        s1, s2 = 48 + 2*sl, 49 + 2*sl
        a(f'v_mov_b32 v{s1}, 0'); a(f'v_mov_b32 v{s2}, 0')
        for r in range(8):
            a(f'v_dot2_f32_bf16 v{s1}, v{FR+8*sl+r}, v{T3}, v{s1}')
        for r in range(8):
            a(f'v_dot2_f32_bf16 v{s2}, v{FR+8*sl+r}, v{FR+8*sl+r}, v{s2}')
    for sl in range(4):
        s1, s2 = 48 + 2*sl, 49 + 2*sl
        a(f'v_permlane32_swap_b32 v{s1}, v{s2}')
        if clear == 2:
            a(f'v_add_f32 v{56+sl}, v{s1}, v{s2}')
        else:
            a(f'v_add_f32 v{s1}, v{s1}, v{s2}')
            a(f'buffer_store_dword v{s1}, v{T2}, s[4:7], s47 offen offset:{256*sl}')
    if clear == 2:
        a(f'buffer_store_dwordx4 v[56:59], v{L16}, s[4:7], s47 offen')
    a.label('prep_end')
    a('s_endpgm')
    return 256, 32768 + 1024

def gen_gemmA(p, kind, DEPTH=3):
    a = p.a
    qkv = kind == 'qkv'
    nm = kind
    nv = 256
    for l in range(2):
        p.entry(f'{nm}{l}_kernel', nv, nv)
        xi = 2*l + (0 if qkv else 1)
        a(f's_mov_b32 s40, {L.X[xi]}')
        a(f's_mov_b32 s39, {L.ST[xi]}')
        a(f's_mov_b32 s38, {2*L.MB*l if qkv else L.ACT[l]}')
        if l == 0:
            a(f's_branch {nm}_body')
    a.label(f'{nm}_body')
    a('s_cmp_ge_u32 s2, 256')
    a(f's_cbranch_scc1 {nm}_end')
    stamp(a, 0)
    a('s_load_dwordx2 s[4:5], s[0:1], 72')
    LN, L16, L4, T0, T1, T2, T3 = 1, 2, 3, 4, 5, 6, 7
    RS, RQ = 8, 9
    XE = 12
    STV = 16
    WB = [32 + 12*i for i in range(3)]
    ACC = [80 + 16*i for i in range(3)]
    XF = 128
    a(f'v_and_b32 v{LN}, 63, v0')
    a(f'v_lshlrev_b32 v{L16}, 4, v{LN}')
    a(f'v_lshlrev_b32 v{L4}, 2, v{LN}')
    a(f'v_lshrrev_b32 v{T0}, 6, v0')
    a(f'v_readfirstlane_b32 s41, v{T0}')
    a('s_and_b32 s42, s2, 7'); a('s_lshr_b32 s43, s2, 3')
    a('s_lshr_b32 s44, s42, 1'); a('s_lshl_b32 s44, s44, 2'); a('s_and_b32 s45, s43, 3'); a('s_add_u32 s44, s44, s45')
    a('s_and_b32 s45, s42, 1'); a('s_lshl_b32 s45, s45, 3'); a('s_lshr_b32 s46, s43, 2'); a('s_add_u32 s45, s45, s46')
    if not qkv:
        a('s_cmp_ge_u32 s45, 15')
        a(f's_cbranch_scc1 {nm}_end')
    a('s_lshl_b32 s46, s44, 2'); a('s_add_u32 s46, s46, s41')
    a('s_lshl_b32 s47, s46, 15'); a('s_add_u32 s47, s47, s40')
    a('s_lshl_b32 s48, s46, 12'); a('s_add_u32 s48, s48, s39')
    ftstride = (16 if qkv else 1) * L.KSX * 1024
    a(f's_mul_i32 s49, s45, {(1 if qkv else 3) * L.KSX * 1024}')
    a(f's_add_u32 s49, s49, {L.WQKVF if qkv else L.W1F}')
    a('s_lshl_b32 s50, s41, 10')
    a('s_add_u32 s51, s49, s50')
    a(f's_add_u32 s52, s51, {ftstride}')
    a(f's_add_u32 s53, s52, {ftstride}')
    a('s_mul_i32 s54, s41, 3072')
    a('s_waitcnt lgkmcnt(0)')
    srd(a, 4, 4, L.WS_BYTES)
    nvm = [0]
    def vm(t):
        a(t); nvm[0] += 1
    for i in range(16):
        vm(f'buffer_load_dword v{STV+i}, v{L4}, s[4:7], s48 offen offset:{256*i}')
    a('s_min_u32 s55, s41, 2')
    a(f's_mul_i32 s56, s55, {ftstride}')
    a('s_add_u32 s56, s56, s49')
    a(f's_add_u32 s56, s56, {32*1024}')
    a('s_lshl_b32 s55, s55, 10')
    a(f's_add_u32 m0, s55, {32*3072}')
    vm(f'buffer_load_dwordx4 v{L16}, s[4:7], s56 offen lds')
    def chunk_ops(c):
        ops = []
        for j in range(3):
            g = [f's_add_u32 m0, s54, {c*4*3072 + j*1024}',
                 f'buffer_load_dwordx4 v{L16}, s[4:7], s{51+j} offen lds',
                 f's_add_u32 s{51+j}, s{51+j}, 4096']
            ops.append(g)
        for j in range(4):
            g = [f'buffer_load_dwordx4 {v(XF+16*c+4*j,4)}, v{L16}, s[4:7], s47 offen offset:{1024*j}']
            if j == 3: g.append('s_add_u32 s47, s47, 4096')
            ops.append(g)
        return ops
    done_at = {}
    def issue(g):
        for t in g:
            if t.startswith('buffer'): vm(t)
            else: a(t)
    for c in range(DEPTH):
        for g in chunk_ops(c): issue(g)
        done_at[c] = nvm[0]
    def sync(c):
        a(f's_waitcnt vmcnt({nvm[0] - done_at[c]})')
        a('s_barrier')
    def rd(s_):
        for j in range(3):
            a(f'ds_read_b128 {v(WB[s_%3]+4*j,4)}, v{L16B if s_ >= 21 else L16} offset:{(s_ - (21 if s_ >= 21 else 0))*3072 + j*1024}')
    L16B = 10
    a(f'v_add_u32 v{L16B}, {21*3072}, v{L16}')
    sv = []
    for st in (8, 4, 2, 1):
        for i in range(st):
            sv.append(f'v_add_f32 v{STV+i}, v{STV+i}, v{STV+i+st}')
    sv.append(f'v_mov_b32 v{STV+1}, v{STV}')
    sv.append(f'v_permlane32_swap_b32 v{STV}, v{STV+1}')
    sv.append(f'v_mul_f32 v{STV}, {f32(-1.0/512)}, v{STV}')
    sv.append(f'v_mul_f32 v{STV+1}, {f32(1.0/512)}, v{STV+1}')
    sv.append(f'v_fma_f32 v{STV+1}, -v{STV}, v{STV}, v{STV+1}')
    sv.append(f'v_max_f32 v{STV+1}, 0, v{STV+1}')
    sv.append(f'v_add_f32 v{STV+1}, {f32(1e-5)}, v{STV+1}')
    sv.append(f'v_rsq_f32 v{RS}, v{STV+1}')
    sv.append(f'v_mul_f32 v{STV+1}, v{STV+1}, v{RS}')
    class Rec:
        def __call__(self, t): sv.append(t)
    r = Rec()
    MH, MM, ML, SH, SM, SL, TT = STV+2, STV+3, STV+4, STV+5, STV+6, STV+7, STV+8
    split3(r, STV, MH, MM, ML, TT)
    split3(r, STV+1, SH, SM, SL, TT)
    pack_hi(r, XE, MH, MM); pack_hi(r, XE+1, ML, SH); pack_hi(r, XE+2, SM, SL)
    sv.append(f'v_lshrrev_b32 v{XE+3}, 16, v{MH}')
    sv.append(f'v_mul_f32 v{RQ}, {f32(L.QSCALE if qkv else 1.4426950408889634)}, v{RS}')
    sync(0)
    stamp(a, 1)
    rd(0); rd(1)
    NS = 33
    pend = []
    for s_ in range(NS):
        c, j = divmod(s_, 4)
        if j == 0 and c + DEPTH < 8:
            pend = chunk_ops(c + DEPTH); pc = c + DEPTH
        nxt = s_ + 2
        if nxt < NS and nxt % 4 == 0 and nxt // 4 < 8:
            sync(nxt // 4)
        a(f's_waitcnt lgkmcnt({3 if s_ + 1 < NS else 0})')
        xf = v(XF + 4*s_, 4) if s_ < 32 else v(XE, 4)
        for f in range(3):
            wf = v(WB[s_ % 3] + 4*f, 4)
            cc = '0' if s_ == 0 else v(ACC[f], 16)
            if qkv and f == 2:
                a(f'{MFMA} {v(ACC[f],16)}, {xf}, {wf}, {cc}')
            else:
                a(f'{MFMA} {v(ACC[f],16)}, {wf}, {xf}, {cc}')
            if f == 0 and nxt < NS:
                rd(nxt)
            if f >= 1 and pend:
                issue(pend.pop(0))
                if not pend: done_at[pc] = nvm[0]
            for _ in range(2):
                if sv and s_ >= 1: a(sv.pop(0))
        if j == 3 and pend:
            while pend: issue(pend.pop(0))
            done_at[pc] = nvm[0]
    assert not sv
    stamp(a, 2)
    if qkv:
        a('s_lshl_b32 s55, s41, 8')
        a(f's_add_u32 s55, s55, {100*1024}')
        a(f'v_add_u32 v{T0}, s55, v{L4}')
        a(f'ds_write_b32 v{T0}, v{RS}')
        a(f'v_lshrrev_b32 v{T1}, 5, v{LN}')
        a(f'v_lshlrev_b32 v{T1}, 4, v{T1}')
        a(f'v_add_u32 v{T1}, s55, v{T1}')
        a('s_waitcnt lgkmcnt(0)')
        for j in range(4):
            a(f'ds_read_b128 {v(STV+4*j,4)}, v{T1} offset:{32*j}')
        a('s_lshl_b32 s56, s45, 17'); a('s_lshl_b32 s57, s46, 10'); a('s_add_u32 s56, s56, s57'); a('s_add_u32 s56, s56, s38')
        a('s_add_u32 s57, s56, 0x10000')
        a(f's_add_u32 s58, s56, {L.K[0]}'); a(f's_add_u32 s59, s57, {L.K[0]}')
        a(f's_add_u32 s60, s56, {L.V[0]}')
        for f in range(2):
            sc = RQ if f == 0 else RS
            for hd in range(2):
                o = WB[0] + 4*(2*f + hd)
                for r_ in range(8):
                    a(f'v_mul_f32 v{ACC[f]+8*hd+r_}, v{sc}, v{ACC[f]+8*hd+r_}')
                for r_ in range(4):
                    a(f'v_cvt_pk_bf16_f32 v{o+r_}, v{ACC[f]+8*hd+2*r_}, v{ACC[f]+8*hd+2*r_+1}')
                a(f'buffer_store_dwordx4 {v(o,4)}, v{L16}, s[4:7], s{56+2*f+hd} offen')
        a(f'v_bfe_u32 v{T0}, v{LN}, 4, 1'); a(f'v_lshlrev_b32 v{T0}, 16, v{T0}')
        a(f'v_lshrrev_b32 v{T1}, 5, v{LN}'); a(f'v_lshl_add_u32 v{T0}, v{T1}, 8, v{T0}')
        a(f'v_and_b32 v{T1}, 15, v{LN}'); a(f'v_lshl_add_u32 v{T0}, v{T1}, 4, v{T0}')
        a('s_waitcnt lgkmcnt(0)')
        for g in range(2):
            o = WB[0] + 16 + 4*g
            for r_ in range(8):
                a(f'v_mul_f32 v{ACC[2]+8*g+r_}, v{STV+8*g+r_}, v{ACC[2]+8*g+r_}')
            for r_ in range(4):
                a(f'v_cvt_pk_bf16_f32 v{o+r_}, v{ACC[2]+8*g+2*r_}, v{ACC[2]+8*g+2*r_+1}')
            a(f'buffer_store_dwordx4 {v(o,4)}, v{T0}, s[4:7], s60 offen offset:{512*g}')
    else:
        a('s_mul_i32 s56, s46, 86'); a('s_mul_i32 s57, s45, 6'); a('s_add_u32 s56, s56, s57')
        a('s_lshl_b32 s56, s56, 10'); a('s_add_u32 s56, s56, s38'); a('s_add_u32 s57, s56, 4096')
        U = XF
        for f in range(3):
            if f == 1:
                a('s_cmp_eq_u32 s45, 14')
                a(f's_cbranch_scc1 {nm}_fin')
            A = ACC[f]; Uf = U + 32*f
            for r_ in range(16):
                a(f'v_mul_f32 v{Uf+r_}, v{RQ}, v{A+r_}')
            for r_ in range(16):
                a(f'v_exp_f32 v{Uf+r_}, v{Uf+r_}')
                a(f'v_mul_f32 v{A+r_}, v{RS}, v{A+r_}')
            for r_ in range(16):
                a(f'v_add_f32 v{Uf+16+r_}, 2.0, v{Uf+r_}')
            for r_ in range(16):
                a(f'v_fma_f32 v{Uf+r_}, v{Uf+r_}, v{Uf+16+r_}, 2.0')
            for r_ in range(16):
                a(f'v_rcp_f32 v{Uf+r_}, v{Uf+r_}')
            for r_ in range(16):
                a(f'v_mul_f32 v{Uf+r_}, v{A+r_}, v{Uf+r_}')
            for r_ in range(16):
                a(f'v_fma_f32 v{A+r_}, v{Uf+r_}, -2.0, v{A+r_}')
            for g in range(2):
                o = Uf + 16 + 4*g
                for r_ in range(4):
                    a(f'v_cvt_pk_bf16_f32 v{o+r_}, v{A+8*g+2*r_}, v{A+8*g+2*r_+1}')
                k = 2*f + g
                a(f'buffer_store_dwordx4 {v(o,4)}, v{L16}, s[4:7], s{56 + k//4} offen offset:{1024*(k%4)}')
        a.label(f'{nm}_fin')
    if STAMP: a('s_waitcnt vmcnt(0)')
    stamp(a, 3)
    stamp_store(a, 4, 41)
    a.label(f'{nm}_end')
    a('s_endpgm')
    return 256, 101*1024

def gen_gemmB(p, kind, WIN=8):
    a = p.a
    wo = kind == 'wo'
    nm = kind
    KS = 32 if wo else 86
    nv = 256
    for l in range(2):
        p.entry(f'{nm}{l}_kernel', nv, nv)
        xi = 2*l + (0 if wo else 1)
        a(f's_mov_b32 s40, {L.O[l] if wo else L.ACT[l]}')
        a(f's_mov_b32 s39, {L.X[xi]}')
        fin = xi == 3
        a(f's_mov_b32 s38, {0 if fin else L.X[xi+1]}')
        a(f's_mov_b32 s37, {0 if fin else L.ST[xi+1]}')
        a(f's_mov_b32 s36, {1 if fin else 0}')
        if l == 0:
            a(f's_branch {nm}_body')
    a.label(f'{nm}_body')
    a('s_cmp_ge_u32 s2, 256')
    a(f's_cbranch_scc1 {nm}_end')
    stamp(a, 0)
    a('s_load_dwordx2 s[4:5], s[0:1], 72')
    a('s_load_dwordx2 s[8:9], s[0:1], 56')
    LN, L16, L4, T0, T1, T2, T3 = 1, 2, 3, 4, 5, 6, 7
    RES = 8
    ACC = [[16 + 16*(2*i+j) for j in range(2)] for i in range(2)]
    FB = 80
    assert FB + 16*WIN <= 256
    a(f'v_and_b32 v{LN}, 63, v0')
    a(f'v_lshlrev_b32 v{L16}, 4, v{LN}')
    a(f'v_lshlrev_b32 v{L4}, 2, v{LN}')
    a(f'v_lshrrev_b32 v{T0}, 6, v0')
    a(f'v_readfirstlane_b32 s41, v{T0}')
    a('s_and_b32 s42, s2, 7'); a('s_lshr_b32 s43, s2, 3')
    a('s_lshl_b32 s44, s42, 2'); a('s_and_b32 s45, s43, 3'); a('s_add_u32 s44, s44, s45')
    a('s_lshr_b32 s45, s43, 2')
    a('s_lshr_b32 s46, s41, 1'); a('s_and_b32 s47, s41, 1')
    a('s_lshl_b32 s48, s44, 1'); a('s_add_u32 s48, s48, s46')
    a('s_xor_b32 s49, s48, 1')
    a('s_lshl_b32 s50, s45, 1'); a('s_add_u32 s50, s50, s47')
    a('s_xor_b32 s51, s50, 1')
    if wo:
        nst = 8
        a('s_lshl_b32 s52, s41, 3')
    else:
        nst = 22
        a('s_mul_i32 s52, s41, 22')
        a('s_mul_i32 s53, s41, 21'); a('s_add_u32 s53, s53, 1')
        a('s_cmp_ge_u32 s41, 2')
        a('s_cselect_b32 s52, s53, s52')
    wbase = L.WOF if wo else L.W2F
    for i, (t, b) in enumerate(((48, 40), (49, 40), (50, None), (51, None))):
        a(f's_mul_i32 s{56+i}, s{t}, {KS}')
        a(f's_add_u32 s{56+i}, s{56+i}, s52')
        a(f's_lshl_b32 s{56+i}, s{56+i}, 10')
        a(f's_add_u32 s{56+i}, s{56+i}, ' + (f's{b}' if b else f'{wbase}'))
    a('s_lshl_b32 s60, s48, 5'); a('s_lshl_b32 s61, s50, 1'); a('s_add_u32 s60, s60, s61'); a('s_lshl_b32 s60, s60, 10')
    a('s_add_u32 s61, s60, s39')
    a('s_waitcnt lgkmcnt(0)')
    srd(a, 4, 4, L.WS_BYTES)
    srd(a, 8, 8, 2*L.MB)
    a(f'buffer_load_dwordx4 {v(RES,4)}, v{L16}, s[4:7], s61 offen')
    a(f'buffer_load_dwordx4 {v(RES+4,4)}, v{L16}, s[4:7], s61 offen offset:1024')
    def loads(st):
        fb = FB + 16*(st % WIN)
        out = []
        for i in (0, 2, 1, 3):
            out.append(f'buffer_load_dwordx4 {v(fb+4*i,4)}, v{L16}, s[4:7], s{56+i} offen offset:{1024*(st%4)}')
        if st % 4 == 3:
            for i in range(4): out.append(f's_add_u32 s{56+i}, s{56+i}, 4096')
        return out
    def mm(st):
        fb = FB + 16*(st % WIN)
        return [f'{MFMA} {v(ACC[i][j],16)}, {v(fb+8+4*j,4)}, {v(fb+4*i,4)}, {v(ACC[i][j],16)}' for (i, j) in ((0,0),(1,0),(0,1),(1,1))]
    if not wo:
        a('s_cmp_ge_u32 s41, 2')
        a(f's_cbranch_scc1 {nm}_skip0')
    for t in loads(0): a(t)
    if not wo:
        a.label(f'{nm}_skip0')
    npre = min(WIN, nst)
    for st in range(1, npre):
        for t in loads(st): a(t)
    for i in range(64):
        a(f'v_mov_b32 v{16+i}, 0')
    stamp(a, 1)
    for st in range(nst):
        issued = min(nst, st + WIN)
        a(f's_waitcnt vmcnt({4*(issued - st - 1)})')
        if st == 0 and not wo:
            a('s_cmp_ge_u32 s41, 2')
            a(f's_cbranch_scc1 {nm}_skip1')
        for t in mm(st): a(t)
        if st == 0 and not wo:
            a.label(f'{nm}_skip1')
        if st + WIN < nst:
            for t in loads(st + WIN): a(t)
    stamp(a, 2)
    for k in range(1, 4):
        a(f's_xor_b32 s62, s41, {k}')
        a(f's_mul_i32 s62, s62, {3*4096}')
        a(f'v_add_u32 v{T0+k-1}, s62, v{L16}')
    for k in range(1, 4):
        A = ACC[k >> 1][k & 1]
        for q in range(4):
            a(f'ds_write_b128 v{T0+k-1}, {v(A+4*q,4)} offset:{(k-1)*4096 + q*1024}')
    a(f's_mul_i32 s62, s41, {3*4096}')
    a(f'v_add_u32 v{T3}, s62, v{L16}')
    for r_ in range(8):
        a(f'v_lshlrev_b32 v{FB+2*r_}, 16, v{RES+r_}')
        a(f'v_and_b32 v{FB+2*r_+1}, 0xffff0000, v{RES+r_}')
    A0 = ACC[0][0]
    for r_ in range(16):
        a(f'v_add_f32 v{A0+r_}, v{A0+r_}, v{FB+r_}')
    a('s_waitcnt lgkmcnt(0)')
    a('s_barrier')
    RB = FB + 16
    for k in range(3):
        for q in range(4):
            a(f'ds_read_b128 {v(RB+16*k+4*q,4)}, v{T3} offset:{k*4096 + q*1024}')
    for k in range(3):
        a(f's_waitcnt lgkmcnt({8-4*k})')
        for r_ in range(16):
            a(f'v_add_f32 v{A0+r_}, v{A0+r_}, v{RB+16*k+r_}')
    for r_ in range(8):
        a(f'v_cvt_pk_bf16_f32 v{RES+r_}, v{A0+2*r_}, v{A0+2*r_+1}')
    if not wo:
        a('s_cmp_eq_u32 s36, 1')
        a(f's_cbranch_scc1 {nm}_final')
    a('s_add_u32 s61, s60, s38')
    a(f'buffer_store_dwordx4 {v(RES,4)}, v{L16}, s[4:7], s61 offen')
    a(f'buffer_store_dwordx4 {v(RES+4,4)}, v{L16}, s[4:7], s61 offen offset:1024')
    a(f'v_add_f32 v{T0}, v{A0}, v{A0+1}')
    a(f'v_mul_f32 v{T1}, v{A0}, v{A0}')
    a(f'v_fmac_f32 v{T1}, v{A0+1}, v{A0+1}')
    for r_ in range(2, 16):
        a(f'v_add_f32 v{T0}, v{T0}, v{A0+r_}')
        a(f'v_fmac_f32 v{T1}, v{A0+r_}, v{A0+r_}')
    a('s_lshl_b32 s62, s48, 12'); a('s_lshl_b32 s63, s50, 8'); a('s_add_u32 s62, s62, s63'); a('s_add_u32 s62, s62, s37')
    a(f'v_permlane32_swap_b32 v{T0}, v{T1}')
    a(f'v_add_f32 v{T0}, v{T0}, v{T1}')
    a(f'buffer_store_dword v{T0}, v{L4}, s[4:7], s62 offen')
    if not wo:
        a(f's_branch {nm}_fin')
        a.label(f'{nm}_final')
        a(f'v_and_b32 v{T0}, 31, v{LN}'); a(f'v_lshlrev_b32 v{T0}, 10, v{T0}')
        a(f'v_lshrrev_b32 v{T1}, 5, v{LN}'); a(f'v_lshl_add_u32 v{T0}, v{T1}, 4, v{T0}')
        a('s_lshl_b32 s62, s48, 15'); a('s_lshl_b32 s63, s50, 6'); a('s_add_u32 s62, s62, s63')
        for g in range(2):
            a(f'v_permlane32_swap_b32 v{RES+4*g}, v{RES+4*g+2}')
            a(f'v_permlane32_swap_b32 v{RES+4*g+1}, v{RES+4*g+3}')
            a(f'buffer_store_dwordx4 {v(RES+4*g,4)}, v{T0}, s[8:11], s62 offen offset:{32*g}')
        a.label(f'{nm}_fin')
    if STAMP: a('s_waitcnt vmcnt(0)')
    stamp(a, 3)
    stamp_store(a, 4, 41)
    a.label(f'{nm}_end')
    a('s_endpgm')
    return 256, 48*1024

def build_all():
    p = Prog()
    NW = int(os.environ.get('NW', 8)); UN = int(os.environ.get('UN', 8))
    cfg = {}
    cfg['prep'] = gen_prep(p)
    cfg['qkv'] = gen_gemmA(p, 'qkv')
    cfg['attn'] = gen_attn(p, NW, UN)
    cfg['wo'] = gen_gemmB(p, 'wo')
    cfg['ffn1'] = gen_gemmA(p, 'ffn1')
    cfg['ffn2'] = gen_gemmB(p, 'ffn2')
    p.launches.append(('prep_kernel', 214, *cfg['prep']))
    for l in range(2):
        for k in ('qkv', 'attn', 'wo', 'ffn1', 'ffn2'):
            p.launches.append((f'{k}{l}_kernel', 256, *cfg[k]))
    return p

if __name__ == '__main__':
    p = build_all()
    errs = p.a.check_branches()
    for e in errs: print('HAZARD', e, file=sys.stderr)
    open(sys.argv[1], 'w').write(p.text())
    print('pads', p.a.pads, 'instrs', sum(1 for i in p.a.ins if i.states), file=sys.stderr)
```

```python
import sys, os
sys.path.insert(0, 'work')
from gen import *

CNT = L.FLAGS
PHS = 128 * 256
def areg(a0, n=4): return f'a[{a0}:{a0+n-1}]'
FT = 33 * 1024
WT = 3 * FT
RED = WT; PART = WT; SCR = WT + 56*1024
OPT = dict(x.split('=') for x in os.environ.get('OPT', '').split(',') if x)

def gen_main(p):
    a = p.a
    p.entry('main_kernel', 512, 256)
    a('s_cmp_ge_u32 s2, 256')
    a('s_cbranch_scc1 main_end')
    a('s_load_dwordx2 s[4:5], s[0:1], 72')
    a('s_load_dwordx2 s[8:9], s[0:1], 56')
    LN, L16, L4, T0, T1, T2, T3 = 1, 2, 3, 4, 5, 6, 7
    RES = 8
    a(f'v_and_b32 v{LN}, 63, v0')
    a(f'v_lshlrev_b32 v{L16}, 4, v{LN}')
    a(f'v_lshlrev_b32 v{L4}, 2, v{LN}')
    a(f'v_lshrrev_b32 v{T0}, 6, v0')
    a(f'v_readfirstlane_b32 s12, v{T0}')
    a('s_and_b32 s13, s2, 7'); a('s_lshr_b32 s14, s2, 3')
    a('s_lshl_b32 s15, s13, 1'); a('s_and_b32 s29, s14, 1'); a('s_add_u32 s15, s15, s29')
    a('s_lshr_b32 s16, s14, 1')
    a('s_lshl_b32 s17, s15, 2'); a('s_add_u32 s17, s17, s12')
    a('s_lshl_b32 s18, s13, 2'); a('s_and_b32 s29, s14, 3'); a('s_add_u32 s18, s18, s29')
    a('s_lshr_b32 s19, s14, 2')
    a('s_lshl_b32 s20, s18, 1'); a('s_lshr_b32 s29, s12, 1'); a('s_add_u32 s20, s20, s29'); a('s_xor_b32 s21, s20, 1')
    a('s_lshl_b32 s22, s19, 1'); a('s_and_b32 s29, s12, 1'); a('s_add_u32 s22, s22, s29'); a('s_xor_b32 s23, s22, 1')
    a('s_mov_b32 s24, s18'); a('s_mov_b32 s25, s19')
    a('s_mov_b32 s26, 0'); a('s_mov_b32 s27, 0'); a(f's_mov_b32 s28, {CNT}')
    a('s_mov_b32 s30, 0x0000ffff'); a('s_mov_b32 s31, 0x0000ffff')
    a('s_lshl_b32 s32, s20, 5'); a('s_lshl_b32 s29, s22, 1'); a('s_add_u32 s32, s32, s29'); a('s_lshl_b32 s32, s32, 10')
    a('s_mul_i32 s33, s12, 22'); a('s_mul_i32 s29, s12, 21'); a('s_add_u32 s29, s29, 1')
    a('s_cmp_ge_u32 s12, 2'); a('s_cselect_b32 s33, s29, s33')
    a('s_lshl_b32 s34, s16, 2'); a('s_lshr_b32 s29, s17, 4'); a('s_add_u32 s34, s34, s29')
    a('s_lshr_b32 s29, s24, 1'); a('s_lshl_b32 s29, s29, 2'); a('s_add_u32 s35, s29, s12')
    a('s_lshr_b32 s36, s25, 1'); a('s_add_u32 s36, s36, s29')
    a('s_lshl_b32 s37, s25, 2'); a('s_add_u32 s37, s37, s12'); a('s_lshl_b32 s37, s37, 2'); a('s_lshr_b32 s29, s24, 3'); a('s_add_u32 s37, s37, s29')
    a('s_lshl_b32 s38, s18, 2'); a('s_add_u32 s38, s38, s12')
    a('s_waitcnt lgkmcnt(0)')
    srd(a, 4, 4, L.WS_BYTES)
    srd(a, 8, 8, 2*L.MB)

    stamps = [0]
    def st():
        if not STAMP: return
        i = stamps[0]; stamps[0] += 1
        a('s_memtime s[96:97]'); a('s_memrealtime s[98:99]'); a('s_waitcnt lgkmcnt(0)')
        a(f'v_writelane_b32 v0, s96, {2*i}')
        a(f'v_writelane_b32 v0, s98, {2*i+1}')

    def wtile_dma(qkv):
        ftstride = (16 if qkv else 1) * FT
        pre = [f's_mul_i32 s60, s16, {(1 if qkv else 3) * FT}',
               f's_add_u32 s60, s60, {L.WQKVF if qkv else L.W1F}',
               's_lshl_b32 s64, s12, 12',
               's_add_u32 s61, s60, s64',
               's_min_u32 s65, s12, 2',
               f's_mul_i32 s66, s65, {ftstride}',
               's_add_u32 s66, s66, s60',
               f's_add_u32 s66, s66, {32*1024}',
               f's_mul_i32 s65, s65, {FT}']
        groups = [pre]
        for half in range(2):
            for j in range(3):
                g = [f's_add_u32 m0, s64, {j*FT + half*16384}',
                     f's_add_u32 s62, s61, {j*ftstride + half*16384}']
                g += [f'buffer_load_dwordx4 v{L16}, s[4:7], s62 offen offset:{1024*q} lds' for q in range(4)]
                groups.append(g)
        groups.append([f's_add_u32 m0, s65, {32*1024}', 's_nop 0', f'buffer_load_dwordx4 v{L16}, s[4:7], s66 offen lds'])
        return groups

    def poll(ph, idxs, target, prev_layer=False):
        go = a.lab('go'); lp = a.lab('poll')
        o = ph*PHS - (5*PHS if prev_layer else 0)
        a(f's_add_u32 s50, s28, {o & 0xffffffff}')
        a(f's_lshl_b32 s52, s{idxs[0]}, 8')
        a(f'v_mov_b32 v{T0}, s52')
        if len(idxs) > 1:
            a(f's_lshl_b32 s52, s{idxs[1]}, 8')
            a(f'v_writelane_b32 v{T0}, s52, 1')
        a('s_mov_b32 s51, 0')
        a(f's_mov_b64 exec, {(1 << len(idxs)) - 1}')
        a.label(lp)
        a(f'buffer_load_dword v{T1}, v{T0}, s[4:7], s50 offen sc1')
        a('s_add_u32 s51, s51, 1')
        a('s_waitcnt vmcnt(0)')
        a(f'v_cmp_gt_u32 vcc, {target}, v{T1}')
        a('s_cmp_eq_u64 vcc, 0')
        a(f's_cbranch_scc1 {go}')
        a('s_cmp_lt_u32 s51, 0x200000')
        a(f's_cbranch_scc1 {lp}')
        a.label(go)
        a('s_mov_b64 exec, -1')
    def signal(ph, idx):
        a(f's_lshl_b32 s50, s{idx}, 8')
        a('s_add_u32 s50, s50, s28')
        a(f's_add_u32 s50, s50, {ph*PHS}')
        a(f'v_mov_b32 v{T0}, 0')
        a(f'v_mov_b32 v{T1}, 1')
        a('s_waitcnt vmcnt(0)')
        a('s_mov_b64 exec, 1')
        a(f'buffer_atomic_add v{T1}, v{T0}, s[4:7], s50 offen sc1')
        a('s_mov_b64 exec, -1')

    def gemmA_pre(qkv):
        xi0 = 0 if qkv else 1
        stsz = L.ST[1] - L.ST[0]
        a('s_lshl_b32 s47, s17, 15'); a('s_lshl_b32 s29, s27, 1'); a('s_add_u32 s47, s47, s29'); a(f's_add_u32 s47, s47, {L.X[xi0]}')
        a('s_lshl_b32 s48, s17, 12'); a(f's_mul_i32 s29, s26, {2*stsz}'); a('s_add_u32 s48, s48, s29'); a(f's_add_u32 s48, s48, {L.ST[xi0]}')
        a(f'v_add_u32 v70, {FT}, v{L16}')
        a(f'v_add_u32 v71, {2*FT}, v{L16}')
        if qkv:
            a('s_lshl_b32 s56, s16, 17'); a('s_lshl_b32 s57, s17, 10'); a('s_add_u32 s56, s56, s57'); a('s_add_u32 s56, s56, s27')
            a('s_add_u32 s57, s56, 0x10000')
            a(f's_add_u32 s58, s56, {L.K[0]}'); a(f's_add_u32 s59, s57, {L.K[0]}')
            a(f's_add_u32 s54, s56, {L.V[0]}')
            a('s_lshl_b32 s55, s12, 8'); a(f's_add_u32 s55, s55, {SCR}')
            a(f'v_add_u32 v76, s55, v{L4}')
            a(f'v_lshrrev_b32 v77, 5, v{LN}'); a('v_lshlrev_b32 v77, 4, v77'); a('v_add_u32 v77, s55, v77')
            a(f'v_bfe_u32 v78, v{LN}, 4, 1'); a('v_lshlrev_b32 v78, 16, v78')
            a(f'v_lshrrev_b32 v79, 5, v{LN}'); a('v_lshl_add_u32 v78, v79, 8, v78')
            a(f'v_and_b32 v79, 15, v{LN}'); a('v_lshl_add_u32 v78, v79, 4, v78')
        else:
            actsz = L.ACT[1] - L.ACT[0]
            a('s_mul_i32 s56, s17, 86'); a('s_mul_i32 s57, s16, 6'); a('s_add_u32 s56, s56, s57')
            a('s_lshl_b32 s56, s56, 10'); a(f's_mul_i32 s57, s26, {actsz}'); a('s_add_u32 s56, s56, s57')
            a(f's_add_u32 s56, s56, {L.ACT[0]}'); a('s_add_u32 s57, s56, 4096')
            a('s_cmp_eq_u32 s16, 14')
            a(f's_cselect_b32 s29, {64*L.MB}, 0')
            a('s_add_u32 s58, s56, s29'); a('s_add_u32 s57, s57, s29')

    def gemmA(qkv):
        RS, RQ = 68, 69
        WA = [L16, 70, 71]
        XE = 72
        STV = 16
        WB = [32 + 8*i for i in range(4)]
        ACC = [80 + 16*i for i in range(3)]
        XF = 128
        fa, fb, fc = (1, 2, 0) if qkv else (0, 1, 2)
        nvm = [0]; at = {}
        def xload(i):
            a(f'buffer_load_dwordx4 {v(XF+4*i,4)}, v{L16}, s[4:7], s47 offen offset:{1024*(i%4)} sc1'); nvm[0] += 1
            if i % 4 == 3: a('s_add_u32 s47, s47, 4096')
            at[i] = nvm[0]
        PRE = 12
        for i in range(8): xload(i)
        for i in range(4):
            a(f'buffer_load_dwordx4 {v(STV+4*i,4)}, v{L16}, s[4:7], s48 offen offset:{1024*i} sc1'); nvm[0] += 1
        for i in range(8, PRE): xload(i)
        def mf(f, xf, wf, first):
            cc = '0' if first else v(ACC[f], 16)
            if qkv and f == 2: a(f'{MFMA} {v(ACC[f],16)}, {xf}, {wf}, {cc}')
            else: a(f'{MFMA} {v(ACC[f],16)}, {wf}, {xf}, {cc}')
        def rd1(s_):
            for j, f in enumerate((fa, fb)):
                a(f'ds_read_b128 {v(WB[s_%4]+4*j,4)}, v{WA[f]} offset:{s_*1024}')
        def rd2(s_):
            a(f'ds_read_b128 {v(32+4*(s_%8),4)}, v{WA[fc]} offset:{s_*1024}')
        sv = []
        for stp in (8, 4, 2, 1):
            for i in range(stp): sv.append(f'v_add_f32 v{STV+i}, v{STV+i}, v{STV+i+stp}')
        sv.append(f'v_mov_b32 v{STV+1}, v{STV}')
        sv.append(f'v_permlane32_swap_b32 v{STV}, v{STV+1}')
        sv.append(f'v_mul_f32 v{STV}, {f32(-1.0/512)}, v{STV}')
        sv.append(f'v_mul_f32 v{STV+1}, {f32(1.0/512)}, v{STV+1}')
        sv.append(f'v_fma_f32 v{STV+1}, -v{STV}, v{STV}, v{STV+1}')
        sv.append(f'v_max_f32 v{STV+1}, 0, v{STV+1}')
        sv.append(f'v_add_f32 v{STV+1}, {f32(1e-5)}, v{STV+1}')
        sv.append(f'v_rsq_f32 v{RS}, v{STV+1}')
        sv.append(f'v_mul_f32 v{STV+1}, v{STV+1}, v{RS}')
        r = sv.append
        MH, MM, ML, SH, SM, SL, TT = STV+2, STV+3, STV+4, STV+5, STV+6, STV+7, STV+8
        split3(r, STV, MH, MM, ML, TT); split3(r, STV+1, SH, SM, SL, TT)
        pack_hi(r, XE, MH, MM); pack_hi(r, XE+1, ML, SH); pack_hi(r, XE+2, SM, SL)
        sv.append(f'v_lshrrev_b32 v{XE+3}, 16, v{MH}')
        sv.append(f'v_mul_f32 v{RQ}, {f32(L.QSCALE if qkv else 1.4426950408889634)}, v{RS}')
        def epi(f):
            A = ACC[f]; out = []
            if qkv:
                if f < 2:
                    sc = RQ if f == 0 else RS
                    for hd in range(2):
                        for r_ in range(0, 8, 2):
                            out.append(f'v_pk_mul_f32 {v(A+8*hd+r_,2)}, {v(A+8*hd+r_,2)}, {v(RS,2)} op_sel:[0,{sc-RS}] op_sel_hi:[1,{sc-RS}]')
                        for r_ in range(4):
                            out.append(f'v_cvt_pk_bf16_f32 v{A+8*hd+r_}, v{A+8*hd+2*r_}, v{A+8*hd+2*r_+1}')
                        out.append(f'buffer_store_dwordx4 {v(A+8*hd,4)}, v{L16}, s[4:7], s{56+2*f+hd} offen sc1')
                else:
                    for g in range(2):
                        for r_ in range(0, 8, 2):
                            out.append(f'v_pk_mul_f32 {v(A+8*g+r_,2)}, {v(A+8*g+r_,2)}, {v(STV+8*g+r_,2)}')
                        for r_ in range(4):
                            out.append(f'v_cvt_pk_bf16_f32 v{A+8*g+r_}, v{A+8*g+2*r_}, v{A+8*g+2*r_+1}')
                        out.append(f'buffer_store_dwordx4 {v(A+8*g,4)}, v78, s[4:7], s54 offen offset:{512*g} sc1')
            else:
                U = STV
                for g in range(2):
                    B = A + 8*g
                    for r_ in range(8): out.append(f'v_mul_f32 v{U+r_}, v{RQ}, v{B+r_}')
                    for r_ in range(8):
                        out.append(f'v_exp_f32 v{U+r_}, v{U+r_}')
                        out.append(f'v_mul_f32 v{B+r_}, v{RS}, v{B+r_}')
                    for r_ in range(8): out.append(f'v_add_f32 v{U+8+r_}, 2.0, v{U+r_}')
                    for r_ in range(8): out.append(f'v_fma_f32 v{U+r_}, v{U+r_}, v{U+8+r_}, 2.0')
                    for r_ in range(8): out.append(f'v_rcp_f32 v{U+r_}, v{U+r_}')
                    for r_ in range(8): out.append(f'v_mul_f32 v{U+r_}, v{B+r_}, v{U+r_}')
                    for r_ in range(8): out.append(f'v_fma_f32 v{B+r_}, v{U+r_}, -2.0, v{B+r_}')
                    for r_ in range(4): out.append(f'v_cvt_pk_bf16_f32 v{B+r_}, v{B+2*r_}, v{B+2*r_+1}')
                    k = 2*f + g
                    sreg = 56 if k < 2 else (58 if k < 4 else 57)
                    out.append(f'buffer_store_dwordx4 {v(B,4)}, v{L16}, s[4:7], s{sreg} offen offset:{1024*(k%4)} sc1')
            return out
        def cost(t):
            return 8 if t.startswith(TRANS) else (16 if t.startswith('buffer') else 4)
        rd1(0); rd1(1); rd1(2)
        nx = PRE
        for s_ in range(33):
            lg = min(2, 32 - s_) * 2
            npend2 = max(0, s_ - 29)
            if s_ < 32: a(f's_waitcnt vmcnt({nvm[0] - at[s_]}) lgkmcnt({lg + 2*max(0, s_-30)})')
            else: a(f's_waitcnt lgkmcnt({2*2})')
            xf = v(XF + 4*s_, 4) if s_ < 32 else v(XE, 4)
            mf(fa, xf, v(WB[s_%4], 4), s_ == 0)
            if s_ + 3 < 33: rd1(s_ + 3)
            else:
                b = (s_ - 1) % 4
                k0 = 2*(s_ - 30)
                a(f'ds_read_b128 {v(WB[b],4)}, v{WA[fc]} offset:{k0*1024}')
                a(f'ds_read_b128 {v(WB[b]+4,4)}, v{WA[fc]} offset:{(k0+1)*1024}')
            if s_ >= 8:
                for _ in range(2):
                    if sv: a(sv.pop(0))
            mf(fb, xf, v(WB[s_%4]+4, 4), s_ == 0)
            if nx < 32 and s_ % 2 == 0:
                xload(nx); xload(nx+1); xload(nx+2); xload(nx+3); nx += 4
            elif s_ >= 8:
                for _ in range(2):
                    if sv: a(sv.pop(0))
            if s_ == 26 and qkv:
                assert not sv
                a(f'ds_write_b32 v76, v{RS}')
            if s_ == 28 and qkv:
                for j in range(4): a(f'ds_read_b128 {v(STV+4*j,4)}, v77 offset:{32*j}')
        assert not sv
        def slot(k): return WB[(1 + (k % 8)//2) % 4] + 4*(k % 2)
        ev = epi(fa) + epi(fb)
        nrd = 6
        for k in range(33):
            a(f's_waitcnt lgkmcnt({min(nrd - k - 1, 15)})')
            xf = v(XF + 4*k, 4) if k < 32 else v(XE, 4)
            mf(fc, xf, v(slot(k), 4), k == 0)
            if nrd < 33:
                a(f'ds_read_b128 {v(slot(nrd),4)}, v{WA[fc]} offset:{nrd*1024}'); nrd += 1
            if k >= 2:
                budget = 20 if sum(map(cost, ev)) <= 20*(32 - k) else 44
                while ev and budget >= cost(ev[0]):
                    budget -= cost(ev[0]); a(ev.pop(0))
        for t in ev: a(t)
        st()
        for t in epi(fc): a(t)

    WOA = 0; W2A = 64
    def wB_loads(wo, steps):
        KS = 32 if wo else 86
        base = WOA if wo else W2A
        first = steps[0]
        pre = []
        for i, ft in enumerate((22, 23)):
            pre.append(f's_mul_i32 s{67+i}, s{ft}, {KS}')
            if wo:
                pre.append('s_lshl_b32 s29, s12, 3'); pre.append(f's_add_u32 s{67+i}, s{67+i}, s29')
            else:
                pre.append(f's_add_u32 s{67+i}, s{67+i}, s33')
            pre.append(f's_lshl_b32 s{67+i}, s{67+i}, 10')
            pre.append(f's_add_u32 s{67+i}, s{67+i}, {(L.WOF if wo else L.W2F) + first*1024}')
        groups = [pre]
        for n0 in range(0, len(steps), 4):
            for i in range(2):
                g = [f'buffer_load_dwordx4 {areg(base + 8*stp + 4*i)}, v{L16}, s[4:7], s{67+i} offen offset:{1024*q}' for q, stp in enumerate(steps[n0:n0+4])]
                g.append(f's_add_u32 s{67+i}, s{67+i}, 4096')
                groups.append(g)
        return groups

    def gemmB_pre(wo):
        KS = 32 if wo else 86
        actsz = L.ACT[1] - L.ACT[0]
        for i, t in enumerate((20, 21)):
            a(f's_mul_i32 s{56+i}, s{t}, {KS}')
            if wo:
                a('s_lshl_b32 s29, s12, 3'); a(f's_add_u32 s{56+i}, s{56+i}, s29')
            else:
                a(f's_add_u32 s{56+i}, s{56+i}, s33')
            a(f's_lshl_b32 s{56+i}, s{56+i}, 10')
            if wo:
                a(f's_add_u32 s{56+i}, s{56+i}, s27'); a(f's_add_u32 s{56+i}, s{56+i}, {L.O[0]}')
            else:
                a(f's_mul_i32 s29, s26, {actsz}'); a(f's_add_u32 s{56+i}, s{56+i}, s29'); a(f's_add_u32 s{56+i}, s{56+i}, {L.ACT[0]}')
        xo = 1 if wo else 2
        stsz = L.ST[1] - L.ST[0]
        a('s_lshl_b32 s58, s27, 1'); a('s_add_u32 s58, s58, s32'); a(f's_add_u32 s58, s58, {L.X[xo]}')
        a('s_lshl_b32 s59, s20, 12'); a('s_lshr_b32 s54, s22, 2'); a('s_lshl_b32 s54, s54, 10'); a('s_add_u32 s59, s59, s54')
        a('s_and_b32 s54, s22, 3'); a('s_lshl_b32 s54, s54, 2'); a('s_add_u32 s59, s59, s54')
        a(f's_mul_i32 s54, s26, {2*stsz}'); a('s_add_u32 s59, s59, s54'); a(f's_add_u32 s59, s59, {L.ST[xo]}')
        A0 = 16
        for r_ in range(8):
            a(f'v_lshlrev_b32 v{A0+2*r_}, 16, v{RES+r_}')
            a(f'v_and_b32 v{A0+2*r_+1}, 0xffff0000, v{RES+r_}')
        for k in range(1, 4):
            a(f's_xor_b32 s55, s12, {k}'); a(f's_mul_i32 s55, s55, {3*4096}'); a(f's_add_u32 s55, s55, {RED + (k-1)*4096}')
            a(f'v_add_u32 v{RES+k-1}, s55, v{L16}')
        a(f's_mul_i32 s55, s12, {3*4096}'); a(f's_add_u32 s55, s55, {RED}')
        a(f'v_add_u32 v{RES+3}, s55, v{L16}')

    def gemmB(wo, tail_groups=()):
        nst = 8 if wo else 22
        wbase = WOA if wo else W2A
        ACC = [[16 + 16*(2*i+j) for j in range(2)] for i in range(2)]
        FB = 80
        nvm = [0]; at = {}
        def loads(stp):
            for i in range(2):
                a(f'buffer_load_dwordx4 {v(FB+8*stp+4*i,4)}, v{L16}, s[4:7], s{56+i} offen offset:{1024*(stp%4)} sc1'); nvm[0] += 1
            if stp % 4 == 3:
                for i in range(2): a(f's_add_u32 s{56+i}, s{56+i}, 4096')
            at[stp] = nvm[0]
        WIN = 8
        npre = min(WIN, nst)
        for stp in range(npre): loads(stp)
        issued = npre
        LAG = 4
        tail = list(tail_groups)
        def own(stp):
            a(f'{MFMA} {v(ACC[0][0],16)}, {areg(wbase+8*stp)}, {v(FB+8*stp,4)}, {v(ACC[0][0],16)}')
        for stp in range(nst):
            a(f's_waitcnt vmcnt({nvm[0] - at[stp]})')
            if stp == 0 and not wo:
                sk = a.lab('ffn2_s0')
                a('s_cmp_lt_u32 s12, 2')
                a(f's_cbranch_scc1 {sk}')
                for r_ in range(8): a(f'v_mov_b32 v{FB+r_}, 0')
                a('s_nop 1')
                a.label(sk)
            for n, (i, j) in enumerate(((1,0),(0,1),(1,1))):
                cc = '0' if stp == 0 else v(ACC[i][j],16)
                a(f'{MFMA} {v(ACC[i][j],16)}, {areg(wbase+8*stp+4*j)}, {v(FB+8*stp+4*i,4)}, {cc}')
                if n == 0 and issued < nst:
                    loads(issued); issued += 1
                    if issued < nst: loads(issued); issued += 1
                elif n == 0 and tail:
                    for t in tail.pop(0):
                        a(t)
                        if t.startswith('buffer'): nvm[0] += 1
            if stp < nst - LAG: own(stp)
        assert not tail
        wr = []
        for k in range(1, 4):
            A = ACC[k >> 1][k & 1]
            for q in range(4):
                wr.append(f'ds_write_b128 v{RES+k-1}, {v(A+4*q,4)} offset:{q*1024}')
        wr = wr[4:8] + wr[0:4] + wr[8:12]
        own(nst - LAG)
        a('s_nop 7')
        for n in range(1, LAG):
            own(nst - LAG + n)
            for t in wr[4*(n-1):4*n]: a(t)
        st()
        a('s_waitcnt lgkmcnt(0)')
        a('s_barrier')
        RB = FB; A0 = ACC[0][0]
        for k in range(3):
            for q in range(4):
                a(f'ds_read_b128 {v(RB+16*k+4*q,4)}, v{RES+3} offset:{k*4096 + q*1024}')
        for k in range(3):
            a(f's_waitcnt lgkmcnt({8-4*k})')
            for r_ in range(0, 16, 2):
                a(f'v_pk_add_f32 {v(A0+r_,2)}, {v(A0+r_,2)}, {v(RB+16*k+r_,2)}')
        for r_ in range(8):
            a(f'v_cvt_pk_bf16_f32 v{RES+r_}, v{A0+2*r_}, v{A0+2*r_+1}')
        if not wo:
            a('s_cmp_eq_u32 s26, 1')
            a('s_cbranch_scc1 main_final')
        a(f'buffer_store_dwordx4 {v(RES,4)}, v{L16}, s[4:7], s58 offen sc1')
        a(f'buffer_store_dwordx4 {v(RES+4,4)}, v{L16}, s[4:7], s58 offen offset:1024 sc1')
        a(f'v_pk_add_f32 {v(RB,2)}, {v(A0,2)}, {v(A0+2,2)}')
        a(f'v_pk_mul_f32 {v(RB+2,2)}, {v(A0,2)}, {v(A0,2)}')
        a(f'v_pk_fma_f32 {v(RB+2,2)}, {v(A0+2,2)}, {v(A0+2,2)}, {v(RB+2,2)}')
        for r_ in range(4, 16, 2):
            a(f'v_pk_add_f32 {v(RB,2)}, {v(RB,2)}, {v(A0+r_,2)}')
            a(f'v_pk_fma_f32 {v(RB+2,2)}, {v(A0+r_,2)}, {v(A0+r_,2)}, {v(RB+2,2)}')
        a(f'v_add_f32 v{T2}, v{RB}, v{RB+1}')
        a(f'v_add_f32 v{T3}, v{RB+2}, v{RB+3}')
        a(f'v_permlane32_swap_b32 v{T2}, v{T3}')
        a(f'v_add_f32 v{T2}, v{T2}, v{T3}')
        a(f'buffer_store_dword v{T2}, v{L16}, s[4:7], s59 offen sc1')

    SB = [16, 32]; PB = [48, 52]; OA = [56, 72]; QF = [88, 92]; VR = 96
    def kreg(kt): return v(224 + 4*kt, 4) if kt < 8 else areg(224 + 4*(kt-8))
    def vreg(kt, g): return v(VR + 8*kt + 4*g, 4)
    VOFF, PADDR = T2, T3
    def attn_pre():
        a(f'v_and_b32 v{T0}, 27, v{LN}')
        a(f'v_cmp_eq_u32 vcc, 16, v{T0}')
        a(f'v_mov_b32 v{T1}, {ONES}')
        a(f'v_cndmask_b32 v{VR}, 0, v{T1}, vcc')
        a(f'v_cndmask_b32 v{VR+1}, 0, v{T1}, vcc')
        for r_ in range(2, 128, 2): a(f'v_pk_mov_b32 {v(VR+r_,2)}, {v(VR,2)}, {v(VR,2)}')
        a(f'v_and_b32 v{T1}, 15, v{LN}'); a(f'v_lshlrev_b32 v{T1}, 4, v{T1}')
        a(f'v_lshrrev_b32 v{VOFF}, 5, v{LN}'); a(f'v_lshl_add_u32 v{VOFF}, v{VOFF}, 8, v{T1}')
        a('s_lshl_b32 s44, s24, 16'); a('s_add_u32 s44, s44, s27')
        a('s_lshl_b32 s45, s12, 14'); a('s_add_u32 s45, s45, s44')
        a(f's_add_u32 s46, s45, {L.K[0]}'); a(f's_add_u32 s47, s45, {L.V[0]}')
        a('s_lshl_b32 s48, s25, 13'); a('s_add_u32 s48, s48, s44')
        a('s_lshl_b32 s49, s12, 1')
        a('s_add_u32 s53, s49, 2'); a('s_and_b32 s53, s53, 7'); a('s_lshl_b32 s53, s53, 10'); a('s_add_u32 s53, s53, s48')
    def attn(extra_groups):
        nvm = [0]
        atk, atv, atq = {}, {}, {}
        def qaddr(p_):
            return [f's_add_u32 s53, s49, {2 + p_}', 's_and_b32 s53, s53, 7', 's_lshl_b32 s53, s53, 10', 's_add_u32 s53, s53, s48']
        def qload(p_):
            a(f'buffer_load_dwordx4 {v(QF[p_%2],4)}, v{L16}, s[4:7], s53 offen sc1'); nvm[0] += 1
            atq[p_] = nvm[0]
        def kload(kts):
            for kt in kts:
                a(f'buffer_load_dwordx4 {kreg(kt)}, v{L16}, s[4:7], s46 offen offset:{1024*(kt%4)} sc1'); nvm[0] += 1
                if kt % 4 == 3: a('s_add_u32 s46, s46, 4096')
                atk[kt] = nvm[0]
        def vload(kts):
            a('s_mov_b64 exec, s[30:31]')
            for kt in kts:
                for g in range(2):
                    a(f'buffer_load_dwordx4 {vreg(kt,g)}, v{VOFF}, s[4:7], s47 offen offset:{1024*(kt%4)+512*g} sc1'); nvm[0] += 1
                if kt % 4 == 3: a('s_add_u32 s47, s47, 4096')
                atv[kt] = nvm[0]
            a('s_mov_b64 exec, -1')
        qload(0)
        kload([0, 1]); vload([0]); kload([2, 3]); vload([1, 2, 3]); kload([4, 5, 6, 7]); vload([4, 5, 6, 7])
        waited = [0]
        def need_vm(at):
            if at > waited[0]:
                a(f's_waitcnt vmcnt({nvm[0] - at})'); waited[0] = at
        need_vm(atk[0])
        a(f'{MFMA} {v(SB[0],16)}, {kreg(0)}, {v(QF[0],4)}, 0')
        extra = list(extra_groups)
        N = 128
        sal = []
        def hide():
            if sal: a(sal.pop(0))
        for n in range(N):
            p_, kt = divmod(n, 16)
            cur = n % 2; nx = (n + 1) % 2
            S = SB[cur]; O = OA[p_ % 2]
            e = [f'v_exp_f32 v{S+r}, v{S+r}' for r in range(16)]
            c = [f'v_cvt_pk_bf16_f32 v{PB[r//4]+r%4}, v{S+2*r}, v{S+2*r+1}' for r in range(8)]
            if kt == 0 and p_ + 1 < 8: sal += qaddr(p_ + 1)
            if kt == 3 and 1 <= p_ <= 6:
                pp = p_ - 1; slot = 2 - pp // 2
                sal += [f's_add_u32 s53, s49, {2 + pp}', 's_and_b32 s53, s53, 7', f's_mul_i32 s53, s53, {3*2304}', f's_add_u32 s53, s53, {PART + slot*2304}']
            if n + 1 < N:
                p2, kt2 = divmod(n + 1, 16)
                if p_ == 0 and kt2 > 0: need_vm(atk[kt2])
                if kt2 == 0: need_vm(atq[p2])
                a(f'{MFMA} {v(SB[nx],16)}, {kreg(kt2)}, {v(QF[p2%2],4)}, 0')
                hide()
            if p_ == 0 and kt == 1: kload([8, 9, 10, 11]); vload([8, 9, 10, 11])
            if p_ == 0 and kt == 4: kload([12, 13, 14, 15]); vload([12, 13, 14, 15])
            if kt == 2 and p_ + 1 < 8:
                assert not sal
                qload(p_ + 1)
            a(e[0]); a(e[1]); a(e[2]); a(e[3]); a(c[0]); a(c[1]); a(e[4])
            if n > 0:
                pp, pk = divmod(n - 1, 16)
                a(f'{MFMA} {v(OA[pp%2],16)}, {vreg(pk,1)}, {v(PB[1],4)}, {v(OA[pp%2],16)}')
                hide()
            if p_ >= 1 and kt >= 6 and kt % 2 == 0 and extra:
                for t in extra.pop(0):
                    a(t)
                    if t.startswith('buffer'): nvm[0] += 1
            a(e[5]); a(e[6]); a(e[7]); a(c[2]); a(c[3]); a(e[8]); a(e[9]); a(e[10])
            if p_ == 0: need_vm(atv[kt])
            a(f'{MFMA} {v(O,16)}, {vreg(kt,0)}, {v(PB[0],4)}, {"0" if kt == 0 else v(O,16)}')
            hide()
            a(e[11]); a(c[4]); a(c[5]); a(e[12]); a(e[13])
            if kt == 5 and 1 <= p_ <= 6:
                assert not sal
                Op = OA[(p_ - 1) % 2]
                a(f'v_add_u32 v{PADDR}, s53, v{L16}')
                a(f'v_add_u32 v{T0}, s53, v{L4}')
                a(f'ds_write_b128 v{PADDR}, {v(Op,4)}')
                a(f'ds_write_b128 v{PADDR}, {v(Op+4,4)} offset:1024')
                a(f'ds_write_b32 v{T0}, v{Op+8} offset:2048')
            if p_ == 7 and kt == 8:
                a('s_waitcnt vmcnt(0) lgkmcnt(0)')
                a('s_barrier')
                a(f's_mul_i32 s53, s49, {3*2304}'); a(f's_add_u32 s53, s53, {PART}')
                a(f'v_add_u32 v{PADDR}, s53, v{L16}')
                a(f'v_add_u32 v{T0}, s53, v{L4}')
            if p_ == 7 and 9 <= kt <= 14:
                i_ = kt - 9
                b = VR + 12*i_; o = i_*2304
                a(f'ds_read_b128 {v(b,4)}, v{PADDR} offset:{o}')
                a(f'ds_read_b128 {v(b+4,4)}, v{PADDR} offset:{o+1024}')
                a(f'ds_read_b32 v{b+8}, v{T0} offset:{o+2048}')
            a(e[14]); a(e[15]); a(c[6]); a(c[7])
        assert not extra, len(extra)
        a(f'{MFMA} {v(OA[1],16)}, {vreg(15,1)}, {v(PB[1],4)}, {v(OA[1],16)}')
        st()
        RB = VR
        a('s_lshl_b32 s53, s25, 3'); a('s_add_u32 s53, s53, s49')
        a('s_lshl_b32 s54, s53, 15'); a('s_lshl_b32 s55, s24, 10'); a('s_add_u32 s54, s54, s55')
        a('s_add_u32 s54, s54, s27'); a(f's_add_u32 s54, s54, {L.O[0]}')
        a(f's_mov_b32 s56, {f32(2.0**-90)}'); a(f's_mov_b32 s57, {f32(2.0**120)}')
        a('s_waitcnt lgkmcnt(0)')
        U = SB[0]
        for i in range(2):
            Oa = OA[i]
            for sl in range(3):
                b = RB + 12*(3*i + sl)
                for r_ in range(0, 8, 2): a(f'v_pk_add_f32 {v(Oa+r_,2)}, {v(Oa+r_,2)}, {v(b+r_,2)}')
                a(f'v_add_f32 v{Oa+8}, v{Oa+8}, v{b+8}')
            done = a.lab('attn_fin')
            a(f'v_add_f32 v{U}, abs(v{Oa}), abs(v{Oa+1})'); a(f'v_add_f32 v{U+1}, abs(v{Oa+2}), abs(v{Oa+3})')
            a(f'v_add_f32 v{U+2}, abs(v{Oa+4}), abs(v{Oa+5})'); a(f'v_add_f32 v{U+3}, abs(v{Oa+6}), abs(v{Oa+7})')
            a(f'v_add_f32 v{U}, v{U}, v{U+1}'); a(f'v_add_f32 v{U+2}, v{U+2}, v{U+3}'); a(f'v_add_f32 v{U}, v{U}, v{U+2}')
            a(f'v_cmp_gt_f32 s[58:59], s57, v{U}')
            a(f'v_cmp_gt_f32 s[60:61], s57, v{Oa+8}')
            a(f'v_cmp_lt_f32 s[62:63], s56, v{Oa+8}')
            a('s_and_b64 s[58:59], s[58:59], s[60:61]')
            a('s_and_b64 s[58:59], s[58:59], s[62:63]')
            a('s_cmp_eq_u64 s[58:59], -1')
            a(f's_cbranch_scc1 {done}')
            S = SB[0]; M = SB[1]; AL = M + 1; TA = M + 2; TB = M + 3
            KT = 224; V0 = 228; V1 = 232
            a(f'v_and_b32 v{TA}, 27, v{LN}')
            a(f'v_cmp_eq_u32 vcc, 16, v{TA}')
            a(f'v_mov_b32 v{TB}, {ONES}')
            a(f'v_cndmask_b32 v{TA}, 0, v{TB}, vcc')
            for r_ in range(8): a(f'v_mov_b32 v{V0+r_}, v{TA}')
            a(f'v_mov_b32 v{M}, {f32(-3.0e38)}')
            for r_ in range(16): a(f'v_mov_b32 v{Oa+r_}, 0')
            a('s_and_b32 s39, s35, 0xfffffffc')
            for q in range(4):
                a(f's_add_u32 s40, s39, {q}')
                poll(0, [40], 16)
            a(f's_add_u32 s46, s44, {L.K[0]}'); a(f's_add_u32 s47, s44, {L.V[0]}')
            a('s_mov_b32 s55, 64')
            lp = a.lab('attn_slow')
            a.label(lp)
            a(f'buffer_load_dwordx4 {v(KT,4)}, v{L16}, s[4:7], s46 offen sc1')
            a('s_mov_b64 exec, s[30:31]')
            a(f'buffer_load_dwordx4 {v(V0,4)}, v{VOFF}, s[4:7], s47 offen sc1')
            a(f'buffer_load_dwordx4 {v(V1,4)}, v{VOFF}, s[4:7], s47 offen offset:512 sc1')
            a('s_mov_b64 exec, -1')
            a('s_add_u32 s46, s46, 1024'); a('s_add_u32 s47, s47, 1024')
            a('s_waitcnt vmcnt(0)')
            a(f'{MFMA} {v(S,16)}, {v(KT,4)}, {v(QF[i],4)}, 0')
            a(f'v_max3_f32 v{TA}, v{S}, v{S+1}, v{M}')
            for r_ in range(2, 16, 2): a(f'v_max3_f32 v{TA}, v{S+r_}, v{S+r_+1}, v{TA}')
            a(f'v_mov_b32 v{TB}, v{TA}')
            a(f'v_permlane32_swap_b32 v{TA}, v{TB}')
            a(f'v_max_f32 v{TA}, v{TA}, v{TB}')
            a(f'v_sub_f32 v{AL}, v{M}, v{TA}')
            a(f'v_exp_f32 v{AL}, v{AL}')
            a(f'v_mov_b32 v{M}, v{TA}')
            for r_ in range(16):
                a(f'v_sub_f32 v{S+r_}, v{S+r_}, v{M}')
                a(f'v_exp_f32 v{S+r_}, v{S+r_}')
            for r_ in range(16): a(f'v_mul_f32 v{Oa+r_}, v{AL}, v{Oa+r_}')
            for r_ in range(8): a(f'v_cvt_pk_bf16_f32 v{PB[r_//4]+r_%4}, v{S+2*r_}, v{S+2*r_+1}')
            a(f'{MFMA} {v(Oa,16)}, {v(V0,4)}, {v(PB[0],4)}, {v(Oa,16)}')
            a(f'{MFMA} {v(Oa,16)}, {v(V1,4)}, {v(PB[1],4)}, {v(Oa,16)}')
            a('s_sub_u32 s55, s55, 1')
            a('s_cmp_lg_u32 s55, 0')
            a('s_nop 7')
            a(f's_cbranch_scc1 {lp}')
            a('s_nop 7')
            a.label(done)
            a(f'v_rcp_f32 v{U}, v{Oa+8}')
            for r_ in range(0, 8, 2): a(f'v_pk_mul_f32 {v(Oa+r_,2)}, {v(Oa+r_,2)}, {v(U,2)} op_sel:[0,0] op_sel_hi:[1,0]')
            for r_ in range(4): a(f'v_cvt_pk_bf16_f32 v{Oa+12+r_}, v{Oa+2*r_}, v{Oa+2*r_+1}')
            a(f'buffer_store_dwordx4 {v(Oa+12,4)}, v{L16}, s[4:7], s54 offen sc1')
            if i == 0: a(f's_add_u32 s54, s54, {32*1024}')

    def run_groups(gs):
        for g in gs:
            for t in g: a(t)
    def touch_wqkv():
        per = L.FT_QKV * FT // 32
        g = [f's_mul_i32 s60, s14, {per}', f's_mul_i32 s61, s12, {per//4}', 's_add_u32 s60, s60, s61', f's_add_u32 s60, s60, {L.WQKVF}',
             f'v_lshlrev_b32 v{T0}, 7, v{LN}', 's_add_u32 s61, s60, 4480',
             f'buffer_load_dword v{T1}, v{T0}, s[4:7], s60 offen', f'buffer_load_dword v{T1}, v{T0}, s[4:7], s61 offen']
        return [g]

    st()
    run_groups(wtile_dma(True))
    a(f's_add_u32 s55, s32, {L.X[0]}')
    a(f'buffer_load_dwordx4 {v(RES,4)}, v{L16}, s[4:7], s55 offen')
    a(f'buffer_load_dwordx4 {v(RES+4,4)}, v{L16}, s[4:7], s55 offen offset:1024')
    gemmA_pre(True)
    a('s_waitcnt vmcnt(0)')
    a('s_barrier')
    a('s_branch main_qkv')
    a.label('main_layer')
    if STAMP:
        stamps[0] = 0; st()
    a('s_barrier')
    gemmA_pre(True)
    poll(4, [17], 16, prev_layer=True)
    a.label('main_qkv')
    if STAMP: stamps[0] = 1
    st()
    gemmA(True)
    signal(0, 34)
    st()
    a('s_barrier')
    attn_pre()
    poll(0, [35, 36], 16)
    st()
    extra = wtile_dma(False) + wB_loads(True, list(range(8))) + wB_loads(False, list(range(20))) + touch_wqkv()
    attn(extra)
    signal(1, 37)
    st()
    a('s_barrier')
    run_groups(wB_loads(False, [20, 21]))
    gemmB_pre(True)
    poll(1, [38], 8)
    st()
    gemmB(True)
    signal(2, 20)
    st()
    a('s_cmp_eq_u32 s16, 15')
    a('s_cbranch_scc1 main_skip_ffn1')
    gemmA_pre(False)
    poll(2, [17], 16)
    st()
    gemmA(False)
    signal(3, 17)
    a.label('main_skip_ffn1')
    if STAMP: stamps[0] = 12
    st()
    a('s_barrier')
    gemmB_pre(False)
    poll(3, [20, 21], 15)
    st()
    gemmB(False, wtile_dma(True))
    signal(4, 20)
    st()
    def dump():
        if not STAMP: return
        a('s_lshl_b32 s50, s2, 2'); a('s_add_u32 s50, s50, s12'); a('s_lshl_b32 s50, s50, 1'); a('s_add_u32 s50, s50, s26')
        a('s_lshl_b32 s50, s50, 8'); a(f's_add_u32 s50, s50, {L.FLAGS + 512*1024}')
        a(f'buffer_store_dword v0, v{L4}, s[4:7], s50 offen')
        a('s_waitcnt vmcnt(0)')
    dump()
    a('s_mov_b32 s26, 1'); a(f's_mov_b32 s27, {2*L.MB}'); a(f's_add_u32 s28, s28, {5*PHS}')
    a('s_branch main_layer')
    a.label('main_final')
    a(f'v_and_b32 v{T0}, 31, v{LN}'); a(f'v_lshlrev_b32 v{T0}, 10, v{T0}')
    a(f'v_lshrrev_b32 v{T1}, 5, v{LN}'); a(f'v_lshl_add_u32 v{T0}, v{T1}, 4, v{T0}')
    a('s_lshl_b32 s55, s20, 15'); a('s_lshl_b32 s54, s22, 6'); a('s_add_u32 s55, s55, s54')
    for g in range(2):
        a(f'v_permlane32_swap_b32 v{RES+4*g}, v{RES+4*g+2}')
        a(f'v_permlane32_swap_b32 v{RES+4*g+1}, v{RES+4*g+3}')
        a(f'buffer_store_dwordx4 {v(RES+4*g,4)}, v{T0}, s[8:11], s55 offen offset:{32*g}')
    if STAMP:
        a('s_waitcnt vmcnt(0)')
        stamps[0] = 15
        st(); dump()
    a.label('main_end')
    a('s_endpgm')
    return 256, 160*1024

if __name__ == '__main__':
    p = Prog()
    cfg = gen_prep(p, clear=2)
    p.launches.append(('prep_kernel', 215, *cfg))
    cfg = gen_main(p)
    p.launches.append(('main_kernel', 256, *cfg))
    errs = p.a.check_branches()
    for e in errs: print('HAZARD', e, file=sys.stderr)
    open(sys.argv[1], 'w').write(p.text())
    print('pads', p.a.pads, 'instrs', sum(1 for i in p.a.ins if i.states), file=sys.stderr)
```

```python
import sys, struct
sys.path.insert(0, 'work')
from asmlib import *
import layout as L

def f32(x):
    return '0x%08x' % struct.unpack('<I', struct.pack('<f', x))[0]

class Prog:
    def __init__(self):
        self.a = Asm()
        self.kernels = []
        self.launches = []
    def entry(self, name, nvgpr, accum, nsgpr=102):
        a = self.a
        a(f'.globl {name}')
        a('.p2align 8')
        a(f'.type {name},@function')
        a.label(name)
        self.kernels.append((name, nvgpr, accum, nsgpr))
    def text(self):
        hdr = open('interleave_layers__mha_block__dense_activation_mish__prompt.s.ref').read().split('\n')
        hdr = [l for l in hdr[:11]]
        out = '\n'.join(hdr) + '\n'
        for n, g, b, lds in self.launches:
            out += f'; @launch kernel={n} grid=({g},1,1) block=({b},1,1) lds={lds}\n'
        out += '.amdgcn_target "amdgcn-amd-amdhsa--gfx950"\n.text\n'
        out += self.a.text()
        out += '.section .rodata,"a"\n'
        for n, nv, acc, ns in self.kernels:
            out += f'''.p2align 6
.amdhsa_kernel {n}
  .amdhsa_next_free_vgpr {nv}
  .amdhsa_next_free_sgpr {ns}
  .amdhsa_accum_offset {acc}
  .amdhsa_group_segment_fixed_size 0
  .amdhsa_kernarg_size 80
  .amdhsa_user_sgpr_count 2
  .amdhsa_user_sgpr_kernarg_segment_ptr 1
  .amdhsa_system_sgpr_workgroup_id_x 1
.end_amdhsa_kernel
'''
        return out

def srd(a, d, b, nbytes):
    if d != b:
        a(f's_mov_b32 s{d}, s{b}')
    a(f's_and_b32 s{d+1}, s{b+1}, 0xffff')
    a(f's_mov_b32 s{d+2}, {nbytes}')
    a(f's_mov_b32 s{d+3}, 0x00020000')

import os
STAMP = int(os.environ.get('STAMP', 0))
def stamp(a, idx):
    if not STAMP: return
    r = 70 + 4*idx
    a(f's_memtime s[{r}:{r+1}]')
    a(f's_memrealtime s[{r+2}:{r+3}]')
    a('s_waitcnt lgkmcnt(0)')
def stamp_store(a, n, wave_s, srdreg=4, vt=4, nw=8):
    if not STAMP: return
    a('s_lshl_b32 s66, s2, 4')
    a(f's_add_u32 s66, s66, s{wave_s}')
    a('s_lshl_b32 s66, s66, 6')
    a(f's_add_u32 s66, s66, {L.FLAGS + 512*1024}')
    a(f'v_mov_b32 v{vt+2}, 0')
    for i in range(n):
        a(f'v_mov_b32 v{vt}, s{70+4*i}')
        a(f'v_mov_b32 v{vt+1}, s{72+4*i}')
        a(f'buffer_store_dwordx2 v[{vt}:{vt+1}], v{vt+2}, s[{srdreg}:{srdreg+3}], s66 offen offset:{8*i}')
        a('s_waitcnt vmcnt(0)')

MFMA = 'v_mfma_f32_32x32x16_bf16'
ONES = '0x3f803f80'

def gen_attn(p, NW=8, UN=4):
    a = p.a
    NQ = 8 // NW
    nv = 128
    body = 'attn_body'
    p.entry('attn0_kernel', nv, nv)
    a('s_mov_b32 s40, 0')
    a(f's_branch {body}')
    p.entry('attn1_kernel', nv, nv)
    a(f's_mov_b32 s40, {2*L.MB}')
    a.label(body)
    a('s_cmp_ge_u32 s2, 256')
    a('s_cbranch_scc1 attn_end')
    stamp(a, 0)
    a('s_load_dwordx2 s[4:5], s[0:1], 72')
    VL16 = 1
    VVA = 2
    VKA = 3
    T0, T1, T2, T3 = 4, 5, 6, 7
    KB = [8, 12]
    VB = [[16, 20], [24, 28]]
    QF = [32 + 4*i for i in range(NQ)]
    base = 40
    PB = [[base + 8*i, base + 8*i + 4] for i in range(NQ)]; base += 8*NQ
    OA = [base + 16*i for i in range(NQ)]; base += 16*NQ
    SB = [[base + 32*i, base + 32*i + 16] for i in range(NQ)]; base += 32*NQ
    assert base <= 256
    nvu = (base + 7)//8*8
    p.kernels[-1] = (p.kernels[-1][0], nvu, nvu, 102); p.kernels[-2] = (p.kernels[-2][0], nvu, nvu, 102)
    a(f'v_and_b32 v{T0}, 63, v0')
    a(f'v_lshlrev_b32 v{VL16}, 4, v{T0}')
    a(f'v_lshrrev_b32 v{T1}, 6, v0')
    a(f'v_readfirstlane_b32 s41, v{T1}')
    a('s_and_b32 s42, s2, 7')
    a('s_lshl_b32 s42, s42, 2')
    a('s_lshr_b32 s43, s2, 3')
    a('s_and_b32 s44, s43, 3')
    a('s_add_u32 s42, s42, s44')
    a('s_lshr_b32 s43, s2, 5')
    a('s_lshl_b32 s44, s42, 16')
    a('s_add_u32 s44, s44, s40')
    a('s_lshl_b32 s45, s41, 10')
    a('s_add_u32 s46, s44, s45')
    a(f's_add_u32 s47, s46, {L.V[0]}')
    a(f's_add_u32 s46, s46, {L.K[0]}')
    a('s_waitcnt lgkmcnt(0)')
    srd(a, 4, 4, L.WS_BYTES)
    a('s_lshl_b32 s48, s43, 3')
    a(f's_mul_i32 s49, s41, {NQ}')
    a('s_add_u32 s48, s48, s49')
    a('s_lshl_b32 s49, s48, 10')
    a('s_add_u32 s49, s49, s44')
    assert L.Q[0] == 0
    nch = 64 // NW
    a('s_mov_b32 m0, s45')
    a(f'buffer_load_dwordx4 v{VL16}, s[4:7], s46 offen lds')
    a('s_add_u32 m0, s45, 0x10000')
    a(f'buffer_load_dwordx4 v{VL16}, s[4:7], s47 offen lds')
    for i in range(NQ):
        a(f'buffer_load_dwordx4 {v(QF[i],4)}, v{VL16}, s[4:7], s49 offen offset:{1024*i}')
    for c in range(1, nch):
        a(f's_add_u32 s46, s46, {NW*1024}')
        a(f's_add_u32 s47, s47, {NW*1024}')
        a(f's_add_u32 m0, s45, {c*NW*1024}')
        a(f'buffer_load_dwordx4 v{VL16}, s[4:7], s46 offen lds')
        a(f's_add_u32 m0, s45, {0x10000 + c*NW*1024}')
        a(f'buffer_load_dwordx4 v{VL16}, s[4:7], s47 offen lds')
    a(f'v_and_b32 v{T1}, 15, v{T0}')
    a(f'v_lshlrev_b32 v{T1}, 4, v{T1}')
    a(f'v_lshrrev_b32 v{T2}, 5, v{T0}')
    a(f'v_lshlrev_b32 v{T2}, 8, v{T2}')
    a(f'v_add_u32 v{VVA}, v{T1}, v{T2}')
    a(f'v_add_u32 v{VVA}, 0x10000, v{VVA}')
    a(f'v_mov_b32 v{VKA}, v{VL16}')
    for b in range(2):
        for g in range(2):
            for r in range(4):
                a(f'v_mov_b32 v{VB[b][g]+r}, {ONES}')
    for i in range(NQ):
        for r in range(16):
            a(f'v_mov_b32 v{OA[i]+r}, 0')
    for r in range(4):
        a(f'v_mov_b32 v{PB[NQ-1][1]+r}, 0')
    a('s_mov_b32 s50, 0x0000ffff')
    a('s_mov_b32 s51, 0x0000ffff')
    first = UN + 2
    nfirst = (first + NW - 1)//NW
    left = 2*(nch - nfirst)
    a(f's_waitcnt vmcnt({left})')
    a('s_barrier')
    stamp(a, 1)
    a(f'ds_read_b128 {v(KB[0],4)}, v{VKA}')
    a(f'ds_read_b128 {v(KB[1],4)}, v{VKA} offset:1024')
    a('s_mov_b64 exec, s[50:51]')
    a(f'ds_read_b128 {v(VB[0][0],4)}, v{VVA}')
    a(f'ds_read_b128 {v(VB[0][1],4)}, v{VVA} offset:512')
    a('s_mov_b64 exec, -1')
    a('s_waitcnt lgkmcnt(3)')
    for i in range(NQ):
        a(f'{MFMA} {v(SB[i][0],16)}, {v(KB[0],4)}, {v(QF[i],4)}, 0')
    a(f's_mov_b32 s52, {64//UN}')
    a('s_nop 7')
    a('.p2align 6')
    a.label('attn_loop')
    def pv1_of(i, buf):
        return f'{MFMA} {v(OA[i],16)}, {v(VB[buf][1],4)}, {v(PB[i][1],4)}, {v(OA[i],16)}'
    for u in range(UN):
        cur, nxt = u % 2, (u + 1) % 2
        a('s_waitcnt lgkmcnt(0)')
        seq = []
        for i in range(NQ):
            S = SB[i][cur]
            qk = f'{MFMA} {v(SB[i][nxt],16)}, {v(KB[nxt],4)}, {v(QF[i],4)}, 0'
            pv0 = f'{MFMA} {v(OA[i],16)}, {v(VB[cur][0],4)}, {v(PB[i][0],4)}, {v(OA[i],16)}'
            e = [f'v_exp_f32 v{S+r}, v{S+r}' for r in range(16)]
            c = [f'v_cvt_pk_bf16_f32 v{PB[i][r//4]+r%4}, v{S+2*r}, v{S+2*r+1}' for r in range(8)]
            seq.append((qk, pv0, e, c))
        vloads = [
            's_mov_b64 exec, s[50:51]',
            f'ds_read_b128 {v(VB[nxt][0],4)}, v{VVA} offset:{(u+1)*1024}',
            f'ds_read_b128 {v(VB[nxt][1],4)}, v{VVA} offset:{(u+1)*1024+512}',
            's_mov_b64 exec, -1',
        ]
        for i, (qk, pv0, e, c) in enumerate(seq):
            a(qk)
            if i == 0:
                a(f'ds_read_b128 {v(KB[cur],4)}, v{VKA} offset:{(u+2)*1024}')
            a(e[0]); a(e[1]); a(e[2]); a(e[3])
            a(c[0]); a(c[1])
            a(e[4])
            if i == 0:
                a(pv1_of(NQ-1, nxt))
                for l in vloads: a(l)
            else:
                a(pv1_of(i-1, cur))
            a(e[5]); a(e[6]); a(e[7])
            a(c[2]); a(c[3])
            a(e[8]); a(e[9]); a(e[10])
            a(pv0)
            a(e[11])
            a(c[4]); a(c[5])
            a(e[12]); a(e[13]); a(e[14]); a(e[15])
            a(c[6]); a(c[7])
        if u == UN - 1:
            a(f'v_add_u32 v{VKA}, {UN*1024}, v{VKA}')
            a(f'v_add_u32 v{VVA}, {UN*1024}, v{VVA}')
    nit = 64 // UN
    a(f's_cmp_lt_u32 s52, {nit-2}')
    a('s_cbranch_scc1 attn_nosync')
    a(f's_cmp_eq_u32 s52, {nit-1}')
    a('s_cbranch_scc1 attn_nosync')
    a(f's_waitcnt vmcnt({nch})')
    a(f's_cmp_eq_u32 s52, {nit}')
    a('s_cbranch_scc1 attn_half')
    a('s_waitcnt vmcnt(0)')
    a.label('attn_half')
    a('s_barrier')
    a.label('attn_nosync')
    a('s_sub_u32 s52, s52, 1')
    a('s_cmp_lg_u32 s52, 0')
    a('s_cbranch_scc1 attn_loop')
    assert 3*UN + 2 <= 32 and UN % 2 == 0
    a(pv1_of(NQ-1, 1))
    a('s_waitcnt lgkmcnt(0)')
    stamp(a, 2)
    a('s_lshl_b32 s53, s48, 15')
    a('s_lshl_b32 s54, s42, 10')
    a('s_add_u32 s53, s53, s54')
    a('s_add_u32 s53, s53, s40')
    a(f's_add_u32 s53, s53, {L.O[0]}')
    a(f's_mov_b32 s56, {f32(2.0**-90)}')
    a(f's_mov_b32 s57, {f32(2.0**120)}')
    for i in range(NQ):
        Oa = OA[i]
        done = a.lab('attn_fin')
        a(f'v_add_f32 v{T0}, abs(v{Oa}), abs(v{Oa+1})')
        a(f'v_add_f32 v{T1}, abs(v{Oa+2}), abs(v{Oa+3})')
        a(f'v_add_f32 v{T2}, abs(v{Oa+4}), abs(v{Oa+5})')
        a(f'v_add_f32 v{T3}, abs(v{Oa+6}), abs(v{Oa+7})')
        a(f'v_add_f32 v{T0}, v{T0}, v{T1}')
        a(f'v_add_f32 v{T2}, v{T2}, v{T3}')
        a(f'v_add_f32 v{T0}, v{T0}, v{T2}')
        a(f'v_cmp_gt_f32 s[58:59], s57, v{T0}')
        a(f'v_cmp_gt_f32 s[60:61], s57, v{Oa+8}')
        a(f'v_cmp_lt_f32 s[62:63], s56, v{Oa+8}')
        a('s_and_b64 s[58:59], s[58:59], s[60:61]')
        a('s_and_b64 s[58:59], s[58:59], s[62:63]')
        a('s_cmp_eq_u64 s[58:59], -1')
        a(f's_cbranch_scc1 {done}')
        S = SB[i][0]; M = SB[i][1]; AL = M + 1; TA = M + 2; TB = M + 3; KA2 = M + 4; VA2 = M + 5
        a(f'v_mov_b32 v{KA2}, v{VL16}')
        a(f'v_subrev_u32 v{VA2}, 0x10000, v{VVA}')
        a(f'v_mov_b32 v{M}, {f32(-3.0e38)}')
        for r in range(16):
            a(f'v_mov_b32 v{Oa+r}, 0')
        a('s_mov_b32 s55, 64')
        lp = a.lab('attn_slow')
        a.label(lp)
        a(f'ds_read_b128 {v(KB[0],4)}, v{KA2}')
        a('s_mov_b64 exec, s[50:51]')
        a(f'ds_read_b128 {v(VB[0][0],4)}, v{VA2}')
        a(f'ds_read_b128 {v(VB[0][1],4)}, v{VA2} offset:512')
        a('s_mov_b64 exec, -1')
        a('s_waitcnt lgkmcnt(0)')
        a(f'{MFMA} {v(S,16)}, {v(KB[0],4)}, {v(QF[i],4)}, 0')
        a(f'v_add_u32 v{KA2}, 1024, v{KA2}')
        a(f'v_add_u32 v{VA2}, 1024, v{VA2}')
        a(f'v_max3_f32 v{TA}, v{S}, v{S+1}, v{M}')
        for r in range(2, 16, 2):
            a(f'v_max3_f32 v{TA}, v{S+r}, v{S+r+1}, v{TA}')
        a(f'v_mov_b32 v{TB}, v{TA}')
        a(f'v_permlane32_swap_b32 v{TA}, v{TB}')
        a(f'v_max_f32 v{TA}, v{TA}, v{TB}')
        a(f'v_sub_f32 v{AL}, v{M}, v{TA}')
        a(f'v_exp_f32 v{AL}, v{AL}')
        a(f'v_mov_b32 v{M}, v{TA}')
        for r in range(16):
            a(f'v_sub_f32 v{S+r}, v{S+r}, v{M}')
            a(f'v_exp_f32 v{S+r}, v{S+r}')
        for r in range(16):
            a(f'v_mul_f32 v{Oa+r}, v{AL}, v{Oa+r}')
        for r in range(8):
            a(f'v_cvt_pk_bf16_f32 v{PB[i][r//4]+r%4}, v{S+2*r}, v{S+2*r+1}')
        a(f'{MFMA} {v(Oa,16)}, {v(VB[0][0],4)}, {v(PB[i][0],4)}, {v(Oa,16)}')
        a(f'{MFMA} {v(Oa,16)}, {v(VB[0][1],4)}, {v(PB[i][1],4)}, {v(Oa,16)}')
        a('s_sub_u32 s55, s55, 1')
        a('s_cmp_lg_u32 s55, 0')
        a('s_nop 7')
        a(f's_cbranch_scc1 {lp}')
        a('s_nop 7')
        a.label(done)
        a(f'v_rcp_f32 v{T0}, v{Oa+8}')
        for r in range(8):
            a(f'v_mul_f32 v{Oa+r}, v{T0}, v{Oa+r}')
        for r in range(4):
            a(f'v_cvt_pk_bf16_f32 v{PB[i][0]+r}, v{Oa+2*r}, v{Oa+2*r+1}')
        a(f'buffer_store_dwordx4 {v(PB[i][0],4)}, v{VL16}, s[4:7], s53 offen')
        if i + 1 < NQ:
            a(f's_add_u32 s53, s53, {32*1024}')
    a('s_waitcnt vmcnt(0)') if STAMP else None
    stamp(a, 3)
    stamp_store(a, 4, 41)
    a.label('attn_end')
    a('s_endpgm')
    return NW * 64, 128 * 1024 + 4096


def split3(a, x, hi, mid, lo, t):
    a(f'v_and_b32 v{hi}, 0xffff0000, v{x}')
    a(f'v_sub_f32 v{t}, v{x}, v{hi}')
    a(f'v_and_b32 v{mid}, 0xffff0000, v{t}')
    a(f'v_sub_f32 v{t}, v{t}, v{mid}')
    a(f'v_and_b32 v{lo}, 0xffff0000, v{t}')
def pack_hi(a, d, lo, hi):
    a(f'v_lshrrev_b32 v{d}, 16, v{lo}')
    a(f'v_or_b32 v{d}, v{d}, v{hi}')

def gen_prep(p, clear=False):
    a = p.a
    nv = 64
    p.entry('prep_kernel', nv, nv)
    a(f's_cmp_ge_u32 s2, {(214, 224, 215)[int(clear)]}')
    a('s_cbranch_scc1 prep_end')
    a('s_load_dwordx4 s[8:11], s[0:1], 0')
    a('s_load_dwordx2 s[12:13], s[0:1], 16')
    a('s_load_dwordx4 s[16:19], s[0:1], 32')
    a('s_load_dwordx2 s[20:21], s[0:1], 48')
    a('s_load_dwordx2 s[4:5], s[0:1], 72')
    LN, L16, T0, T1, T2, T3 = 1, 2, 3, 4, 5, 6
    a(f'v_and_b32 v{LN}, 63, v0')
    a(f'v_lshlrev_b32 v{L16}, 4, v{LN}')
    a(f'v_lshrrev_b32 v{T0}, 6, v0')
    a(f'v_readfirstlane_b32 s41, v{T0}')
    a('s_waitcnt lgkmcnt(0)')
    srd(a, 4, 4, L.WS_BYTES)
    TLB = int(os.environ.get('TLB', 0))
    if TLB == 1:
        a(f'v_lshlrev_b32 v60, 21, v{LN}')
        a(f'v_min_u32 v60, {L.WS_USED - 4}, v60')
        a('buffer_load_dword v61, v60, s[4:7], 0 offen')
    if TLB == 2:
        a('s_lshr_b32 s42, s2, 3'); a('s_lshl_b32 s42, s42, 21')
        a(f'v_lshlrev_b32 v60, 15, v{LN}')
        a('v_add_u32 v60, s42, v60')
        a(f'v_min_u32 v60, {L.WS_USED - 4}, v60')
        a('buffer_load_dword v61, v60, s[4:7], 0 offen')
    if clear:
        a('s_cmp_lt_u32 s2, 214')
        a('s_cbranch_scc1 prep_noclr')
        if clear == 2:
            a(f'v_lshlrev_b32 v{T0}, 8, v0')
            a('v_mov_b32 v8, 0')
            for i in range(5):
                a(f's_mov_b32 s42, {L.FLAGS + i*65536}')
                a(f'buffer_store_dword v8, v{T0}, s[4:7], s42 offen')
        else:
            a('s_sub_u32 s42, s2, 214'); a('s_lshl_b32 s42, s42, 12'); a(f's_add_u32 s42, s42, {L.FLAGS}')
            a(f'v_lshlrev_b32 v{T0}, 4, v0')
            for r in range(4): a(f'v_mov_b32 v{8+r}, 0')
            a(f'buffer_store_dwordx4 v[8:11], v{T0}, s[4:7], s42 offen')
        a('s_branch prep_end')
        a.label('prep_noclr')
    a('s_cmp_ge_u32 s2, 150')
    a('s_cbranch_scc1 prep_x')
    a('s_mov_b32 s27, 0x00020000')
    lab_w1, lab_wo, lab_w2, lab_go = 'prep_w1', 'prep_wo', 'prep_w2', 'prep_go'
    a('s_cmp_ge_u32 s2, 48')
    a(f's_cbranch_scc1 {lab_w1}')
    a('s_mov_b32 s24, s10'); a('s_and_b32 s25, s11, 0xffff'); a(f's_mov_b32 s26, {512*1536*2}')
    a('s_mov_b32 s30, 3072'); a('s_mov_b32 s31, 1'); a(f's_mov_b32 s33, {L.WQKVF}'); a(f's_mov_b32 s34, {L.KSX}')
    a('s_mov_b32 s37, s2'); a('s_mov_b32 s38, 0'); a('s_mov_b32 s36, 32')
    a(f's_branch {lab_go}')
    a.label(lab_w1)
    a('s_cmp_ge_u32 s2, 91')
    a(f's_cbranch_scc1 {lab_wo}')
    a('s_mov_b32 s24, s16'); a('s_and_b32 s25, s17, 0xffff'); a(f's_mov_b32 s26, {512*1376*2}')
    a('s_mov_b32 s30, 2752'); a('s_mov_b32 s31, 2'); a(f's_mov_b32 s33, {L.W1F}'); a(f's_mov_b32 s34, {L.KSX}')
    a('s_sub_u32 s37, s2, 48'); a('s_mov_b32 s38, 0'); a('s_mov_b32 s36, 32')
    a(f's_branch {lab_go}')
    a.label(lab_wo)
    a('s_cmp_ge_u32 s2, 107')
    a(f's_cbranch_scc1 {lab_w2}')
    a('s_mov_b32 s24, s12'); a('s_and_b32 s25, s13, 0xffff'); a(f's_mov_b32 s26, {512*512*2}')
    a('s_mov_b32 s30, 1024'); a('s_mov_b32 s31, 0'); a(f's_mov_b32 s33, {L.WOF}'); a(f's_mov_b32 s34, 32')
    a('s_sub_u32 s37, s2, 91'); a('s_mov_b32 s38, 0'); a('s_mov_b32 s36, 32')
    a(f's_branch {lab_go}')
    a.label(lab_w2)
    a('s_mov_b32 s24, s20'); a('s_and_b32 s25, s21, 0xffff'); a(f's_mov_b32 s26, {1376*512*2}')
    a('s_mov_b32 s30, 1024'); a('s_mov_b32 s31, 0'); a(f's_mov_b32 s33, {L.W2F}'); a(f's_mov_b32 s34, 86')
    a('s_sub_u32 s35, s2, 107'); a('s_lshl_b32 s35, s35, 5')
    a(f's_mul_hi_u32 s37, s35, {(2**32 + 85)//86}')
    a('s_mul_i32 s38, s37, 86'); a('s_sub_u32 s38, s35, s38')
    a('s_mov_b32 s36, 86')
    a.label(lab_go)
    a('s_lshl_b32 s39, s41, 3')
    a('s_add_u32 s38, s38, s39')
    a('s_cmp_ge_u32 s38, s36')
    a('s_cselect_b32 s39, s36, 0'); a('s_cselect_b32 s42, 1, 0')
    a('s_sub_u32 s38, s38, s39'); a('s_add_u32 s37, s37, s42')
    a(f'v_lshrrev_b32 v{T0}, 2, v{LN}')
    a(f'v_mul_lo_u32 v{T0}, v{T0}, s30')
    a(f'v_and_b32 v{T1}, 3, v{LN}')
    a(f'v_lshl_add_u32 v{T0}, v{T1}, 4, v{T0}')
    a(f'v_lshrrev_b32 v{T1}, 5, v{LN}')
    a(f'v_lshlrev_b32 v{T1}, 2, v{T1}')
    a(f'v_bfe_u32 v{T2}, v{LN}, 2, 2')
    a(f'v_add_u32 v{T1}, v{T1}, v{T2}')
    a(f'v_lshlrev_b32 v{T1}, 6, v{T1}')
    a(f'v_bfe_u32 v{T2}, v{LN}, 4, 1')
    a(f'v_lshl_add_u32 v{T1}, v{T2}, 5, v{T1}')
    a(f'v_and_b32 v{T2}, 3, v{LN}')
    a(f'v_lshl_add_u32 v{T1}, v{T2}, 3, v{T1}')
    a('s_lshl_b32 s43, s41, 13')
    a(f'v_add_u32 v{T1}, s43, v{T1}')
    for i in range(8):
        a('s_lshl_b32 s52, s38, 4')
        a('s_mul_i32 s52, s52, s30')
        a('s_lshl_b32 s53, s37, 6')
        a('s_add_u32 s52, s52, s53')
        a(f's_add_u32 m0, s43, {i*1024}')
        a(f's_mul_i32 s{44+i}, s37, s34')
        a(f'buffer_load_dwordx4 v{T0}, s[24:27], s52 offen lds')
        a(f's_add_u32 s{44+i}, s{44+i}, s38')
        a(f's_lshl_b32 s{44+i}, s{44+i}, 10')
        a(f's_add_u32 s{44+i}, s{44+i}, s33')
        if i < 7:
            a('s_add_u32 s38, s38, 1')
            a('s_cmp_ge_u32 s38, s36')
            a('s_cselect_b32 s39, s36, 0'); a('s_cselect_b32 s42, 1, 0')
            a('s_sub_u32 s38, s38, s39'); a('s_add_u32 s37, s37, s42')
    FR = 16
    CS = 8
    a(f'v_mov_b32 v{CS}, 0')
    a(f'v_mov_b32 v{T3}, {ONES}')
    a('s_waitcnt vmcnt(0)')
    for i in range(8):
        a(f'ds_read_b64_tr_b16 {v(FR+4*i,2)}, v{T1} offset:{i*1024}')
        a(f'ds_read_b64_tr_b16 {v(FR+4*i+2,2)}, v{T1} offset:{i*1024+512}')
    a('s_waitcnt lgkmcnt(0)')
    for i in range(8):
        a(f'buffer_store_dwordx4 {v(FR+4*i,4)}, v{L16}, s[4:7], s{44+i} offen')
    a('s_cmp_eq_u32 s31, 0')
    a('s_cbranch_scc1 prep_end')
    for i in range(32):
        a(f'v_dot2_f32_bf16 v{CS}, v{FR+i}, v{T3}, v{CS}')
    a(f'v_lshlrev_b32 v{T2}, 2, v0')
    a(f'ds_write_b32 v{T2}, v{CS} offset:32768')
    a('s_waitcnt lgkmcnt(0)')
    a('s_barrier')
    a('s_cmp_lg_u32 s41, 0')
    a('s_cbranch_scc1 prep_end')
    a(f'v_and_b32 v{T2}, 31, v{LN}')
    a(f'v_lshlrev_b32 v{T2}, 2, v{T2}')
    for i in range(8):
        a(f'ds_read_b32 v{48+i}, v{T2} offset:{32768+128*i}')
    B = 9
    a(f'v_mov_b32 v{B}, 0')
    a('s_cmp_lg_u32 s31, 2')
    a('s_cbranch_scc1 prep_nobias')
    a('s_mov_b32 s24, s18'); a('s_and_b32 s25, s19, 0xffff'); a(f's_mov_b32 s26, {1376*2}')
    a('s_lshl_b32 s53, s37, 6')
    a(f'v_lshrrev_b32 v{T2}, 1, v{T2}')
    a(f'buffer_load_ushort v{B}, v{T2}, s[24:27], s53 offen')
    a('s_waitcnt vmcnt(0)')
    a(f'v_lshlrev_b32 v{B}, 16, v{B}')
    a.label('prep_nobias')
    a('s_waitcnt lgkmcnt(0)')
    a('v_add_f32 v48, v48, v49'); a('v_add_f32 v50, v50, v51'); a('v_add_f32 v52, v52, v53'); a('v_add_f32 v54, v54, v55')
    a('v_add_f32 v48, v48, v50'); a('v_add_f32 v52, v52, v54'); a('v_add_f32 v48, v48, v52')
    HI, MID, LO = 10, 11, 12
    split3(a, 48, HI, MID, LO, 13)
    pack_hi(a, 56, HI, HI); pack_hi(a, 57, HI, B); pack_hi(a, 58, B, B)
    a(f'v_lshrrev_b32 v59, 16, v{MID}')
    pack_hi(a, 60, LO, MID)
    a(f'v_cmp_gt_u32 vcc, 32, v{LN}')
    a('v_cndmask_b32 v56, v60, v56, vcc')
    a('v_cndmask_b32 v57, 0, v57, vcc')
    a('v_cndmask_b32 v58, 0, v58, vcc')
    a('v_cndmask_b32 v59, 0, v59, vcc')
    a('s_mul_i32 s52, s37, s34')
    a('s_add_u32 s52, s52, 32')
    a('s_lshl_b32 s52, s52, 10')
    a('s_add_u32 s52, s52, s33')
    a(f'buffer_store_dwordx4 v[56:59], v{L16}, s[4:7], s52 offen')
    a('s_branch prep_end')
    a.label('prep_x')
    srd(a, 8, 8, 2048*512*2)
    a('s_sub_u32 s42, s2, 150')
    a(f'v_and_b32 v{T0}, 31, v{LN}')
    a(f'v_lshlrev_b32 v{T0}, 10, v{T0}')
    a(f'v_lshrrev_b32 v{T1}, 5, v{LN}')
    a(f'v_lshl_add_u32 v{T0}, v{T1}, 4, v{T0}')
    a('s_lshl_b32 s43, s42, 15')
    a('s_lshl_b32 s44, s41, 8')
    a('s_add_u32 s44, s44, s43')
    for i in range(8):
        a(f'buffer_load_dwordx4 {v(FR+4*i,4)}, v{T0}, s[8:11], s44 offen offset:{32*i}')
    a('s_lshl_b32 s45, s41, 13')
    a('s_add_u32 s45, s45, s43')
    a(f's_add_u32 s45, s45, {L.X[0]}')
    a('s_add_u32 s46, s45, 4096')
    a('s_lshl_b32 s47, s42, 12')
    a('s_lshl_b32 s48, s41, 10')
    a('s_add_u32 s47, s47, s48')
    a(f's_add_u32 s47, s47, {L.ST[0]}')
    a(f'v_mov_b32 v{T3}, {ONES}')
    a(f'v_lshlrev_b32 v{T2}, 2, v{LN}')
    a('s_waitcnt vmcnt(0)')
    for i in range(8):
        a(f'v_permlane32_swap_b32 v{FR+4*i}, v{FR+4*i+2}')
        a(f'v_permlane32_swap_b32 v{FR+4*i+1}, v{FR+4*i+3}')
    for i in range(8):
        a(f'buffer_store_dwordx4 {v(FR+4*i,4)}, v{L16}, s[4:7], s{45 + i//4} offen offset:{1024*(i%4)}')
    for sl in range(4):
        s1, s2 = 48 + 2*sl, 49 + 2*sl
        a(f'v_mov_b32 v{s1}, 0'); a(f'v_mov_b32 v{s2}, 0')
        for r in range(8):
            a(f'v_dot2_f32_bf16 v{s1}, v{FR+8*sl+r}, v{T3}, v{s1}')
        for r in range(8):
            a(f'v_dot2_f32_bf16 v{s2}, v{FR+8*sl+r}, v{FR+8*sl+r}, v{s2}')
    for sl in range(4):
        s1, s2 = 48 + 2*sl, 49 + 2*sl
        a(f'v_permlane32_swap_b32 v{s1}, v{s2}')
        if clear == 2:
            a(f'v_add_f32 v{56+sl}, v{s1}, v{s2}')
        else:
            a(f'v_add_f32 v{s1}, v{s1}, v{s2}')
            a(f'buffer_store_dword v{s1}, v{T2}, s[4:7], s47 offen offset:{256*sl}')
    if clear == 2:
        a(f'buffer_store_dwordx4 v[56:59], v{L16}, s[4:7], s47 offen')
    a.label('prep_end')
    a('s_endpgm')
    return 256, 32768 + 1024

def gen_gemmA(p, kind, DEPTH=3):
    a = p.a
    qkv = kind == 'qkv'
    nm = kind
    nv = 256
    for l in range(2):
        p.entry(f'{nm}{l}_kernel', nv, nv)
        xi = 2*l + (0 if qkv else 1)
        a(f's_mov_b32 s40, {L.X[xi]}')
        a(f's_mov_b32 s39, {L.ST[xi]}')
        a(f's_mov_b32 s38, {2*L.MB*l if qkv else L.ACT[l]}')
        if l == 0:
            a(f's_branch {nm}_body')
    a.label(f'{nm}_body')
    a('s_cmp_ge_u32 s2, 256')
    a(f's_cbranch_scc1 {nm}_end')
    stamp(a, 0)
    a('s_load_dwordx2 s[4:5], s[0:1], 72')
    LN, L16, L4, T0, T1, T2, T3 = 1, 2, 3, 4, 5, 6, 7
    RS, RQ = 8, 9
    XE = 12
    STV = 16
    WB = [32 + 12*i for i in range(3)]
    ACC = [80 + 16*i for i in range(3)]
    XF = 128
    a(f'v_and_b32 v{LN}, 63, v0')
    a(f'v_lshlrev_b32 v{L16}, 4, v{LN}')
    a(f'v_lshlrev_b32 v{L4}, 2, v{LN}')
    a(f'v_lshrrev_b32 v{T0}, 6, v0')
    a(f'v_readfirstlane_b32 s41, v{T0}')
    a('s_and_b32 s42, s2, 7'); a('s_lshr_b32 s43, s2, 3')
    a('s_lshr_b32 s44, s42, 1'); a('s_lshl_b32 s44, s44, 2'); a('s_and_b32 s45, s43, 3'); a('s_add_u32 s44, s44, s45')
    a('s_and_b32 s45, s42, 1'); a('s_lshl_b32 s45, s45, 3'); a('s_lshr_b32 s46, s43, 2'); a('s_add_u32 s45, s45, s46')
    if not qkv:
        a('s_cmp_ge_u32 s45, 15')
        a(f's_cbranch_scc1 {nm}_end')
    a('s_lshl_b32 s46, s44, 2'); a('s_add_u32 s46, s46, s41')
    a('s_lshl_b32 s47, s46, 15'); a('s_add_u32 s47, s47, s40')
    a('s_lshl_b32 s48, s46, 12'); a('s_add_u32 s48, s48, s39')
    ftstride = (16 if qkv else 1) * L.KSX * 1024
    a(f's_mul_i32 s49, s45, {(1 if qkv else 3) * L.KSX * 1024}')
    a(f's_add_u32 s49, s49, {L.WQKVF if qkv else L.W1F}')
    a('s_lshl_b32 s50, s41, 10')
    a('s_add_u32 s51, s49, s50')
    a(f's_add_u32 s52, s51, {ftstride}')
    a(f's_add_u32 s53, s52, {ftstride}')
    a('s_mul_i32 s54, s41, 3072')
    a('s_waitcnt lgkmcnt(0)')
    srd(a, 4, 4, L.WS_BYTES)
    nvm = [0]
    def vm(t):
        a(t); nvm[0] += 1
    for i in range(16):
        vm(f'buffer_load_dword v{STV+i}, v{L4}, s[4:7], s48 offen offset:{256*i}')
    a('s_min_u32 s55, s41, 2')
    a(f's_mul_i32 s56, s55, {ftstride}')
    a('s_add_u32 s56, s56, s49')
    a(f's_add_u32 s56, s56, {32*1024}')
    a('s_lshl_b32 s55, s55, 10')
    a(f's_add_u32 m0, s55, {32*3072}')
    vm(f'buffer_load_dwordx4 v{L16}, s[4:7], s56 offen lds')
    def chunk_ops(c):
        ops = []
        for j in range(3):
            g = [f's_add_u32 m0, s54, {c*4*3072 + j*1024}',
                 f'buffer_load_dwordx4 v{L16}, s[4:7], s{51+j} offen lds',
                 f's_add_u32 s{51+j}, s{51+j}, 4096']
            ops.append(g)
        for j in range(4):
            g = [f'buffer_load_dwordx4 {v(XF+16*c+4*j,4)}, v{L16}, s[4:7], s47 offen offset:{1024*j}']
            if j == 3: g.append('s_add_u32 s47, s47, 4096')
            ops.append(g)
        return ops
    done_at = {}
    def issue(g):
        for t in g:
            if t.startswith('buffer'): vm(t)
            else: a(t)
    for c in range(DEPTH):
        for g in chunk_ops(c): issue(g)
        done_at[c] = nvm[0]
    def sync(c):
        a(f's_waitcnt vmcnt({nvm[0] - done_at[c]})')
        a('s_barrier')
    def rd(s_):
        for j in range(3):
            a(f'ds_read_b128 {v(WB[s_%3]+4*j,4)}, v{L16B if s_ >= 21 else L16} offset:{(s_ - (21 if s_ >= 21 else 0))*3072 + j*1024}')
    L16B = 10
    a(f'v_add_u32 v{L16B}, {21*3072}, v{L16}')
    sv = []
    for st in (8, 4, 2, 1):
        for i in range(st):
            sv.append(f'v_add_f32 v{STV+i}, v{STV+i}, v{STV+i+st}')
    sv.append(f'v_mov_b32 v{STV+1}, v{STV}')
    sv.append(f'v_permlane32_swap_b32 v{STV}, v{STV+1}')
    sv.append(f'v_mul_f32 v{STV}, {f32(-1.0/512)}, v{STV}')
    sv.append(f'v_mul_f32 v{STV+1}, {f32(1.0/512)}, v{STV+1}')
    sv.append(f'v_fma_f32 v{STV+1}, -v{STV}, v{STV}, v{STV+1}')
    sv.append(f'v_max_f32 v{STV+1}, 0, v{STV+1}')
    sv.append(f'v_add_f32 v{STV+1}, {f32(1e-5)}, v{STV+1}')
    sv.append(f'v_rsq_f32 v{RS}, v{STV+1}')
    sv.append(f'v_mul_f32 v{STV+1}, v{STV+1}, v{RS}')
    class Rec:
        def __call__(self, t): sv.append(t)
    r = Rec()
    MH, MM, ML, SH, SM, SL, TT = STV+2, STV+3, STV+4, STV+5, STV+6, STV+7, STV+8
    split3(r, STV, MH, MM, ML, TT)
    split3(r, STV+1, SH, SM, SL, TT)
    pack_hi(r, XE, MH, MM); pack_hi(r, XE+1, ML, SH); pack_hi(r, XE+2, SM, SL)
    sv.append(f'v_lshrrev_b32 v{XE+3}, 16, v{MH}')
    sv.append(f'v_mul_f32 v{RQ}, {f32(L.QSCALE if qkv else 1.4426950408889634)}, v{RS}')
    sync(0)
    stamp(a, 1)
    rd(0); rd(1)
    NS = 33
    pend = []
    for s_ in range(NS):
        c, j = divmod(s_, 4)
        if j == 0 and c + DEPTH < 8:
            pend = chunk_ops(c + DEPTH); pc = c + DEPTH
        nxt = s_ + 2
        if nxt < NS and nxt % 4 == 0 and nxt // 4 < 8:
            sync(nxt // 4)
        a(f's_waitcnt lgkmcnt({3 if s_ + 1 < NS else 0})')
        xf = v(XF + 4*s_, 4) if s_ < 32 else v(XE, 4)
        for f in range(3):
            wf = v(WB[s_ % 3] + 4*f, 4)
            cc = '0' if s_ == 0 else v(ACC[f], 16)
            if qkv and f == 2:
                a(f'{MFMA} {v(ACC[f],16)}, {xf}, {wf}, {cc}')
            else:
                a(f'{MFMA} {v(ACC[f],16)}, {wf}, {xf}, {cc}')
            if f == 0 and nxt < NS:
                rd(nxt)
            if f >= 1 and pend:
                issue(pend.pop(0))
                if not pend: done_at[pc] = nvm[0]
            for _ in range(2):
                if sv and s_ >= 1: a(sv.pop(0))
        if j == 3 and pend:
            while pend: issue(pend.pop(0))
            done_at[pc] = nvm[0]
    assert not sv
    stamp(a, 2)
    if qkv:
        a('s_lshl_b32 s55, s41, 8')
        a(f's_add_u32 s55, s55, {100*1024}')
        a(f'v_add_u32 v{T0}, s55, v{L4}')
        a(f'ds_write_b32 v{T0}, v{RS}')
        a(f'v_lshrrev_b32 v{T1}, 5, v{LN}')
        a(f'v_lshlrev_b32 v{T1}, 4, v{T1}')
        a(f'v_add_u32 v{T1}, s55, v{T1}')
        a('s_waitcnt lgkmcnt(0)')
        for j in range(4):
            a(f'ds_read_b128 {v(STV+4*j,4)}, v{T1} offset:{32*j}')
        a('s_lshl_b32 s56, s45, 17'); a('s_lshl_b32 s57, s46, 10'); a('s_add_u32 s56, s56, s57'); a('s_add_u32 s56, s56, s38')
        a('s_add_u32 s57, s56, 0x10000')
        a(f's_add_u32 s58, s56, {L.K[0]}'); a(f's_add_u32 s59, s57, {L.K[0]}')
        a(f's_add_u32 s60, s56, {L.V[0]}')
        for f in range(2):
            sc = RQ if f == 0 else RS
            for hd in range(2):
                o = WB[0] + 4*(2*f + hd)
                for r_ in range(8):
                    a(f'v_mul_f32 v{ACC[f]+8*hd+r_}, v{sc}, v{ACC[f]+8*hd+r_}')
                for r_ in range(4):
                    a(f'v_cvt_pk_bf16_f32 v{o+r_}, v{ACC[f]+8*hd+2*r_}, v{ACC[f]+8*hd+2*r_+1}')
                a(f'buffer_store_dwordx4 {v(o,4)}, v{L16}, s[4:7], s{56+2*f+hd} offen')
        a(f'v_bfe_u32 v{T0}, v{LN}, 4, 1'); a(f'v_lshlrev_b32 v{T0}, 16, v{T0}')
        a(f'v_lshrrev_b32 v{T1}, 5, v{LN}'); a(f'v_lshl_add_u32 v{T0}, v{T1}, 8, v{T0}')
        a(f'v_and_b32 v{T1}, 15, v{LN}'); a(f'v_lshl_add_u32 v{T0}, v{T1}, 4, v{T0}')
        a('s_waitcnt lgkmcnt(0)')
        for g in range(2):
            o = WB[0] + 16 + 4*g
            for r_ in range(8):
                a(f'v_mul_f32 v{ACC[2]+8*g+r_}, v{STV+8*g+r_}, v{ACC[2]+8*g+r_}')
            for r_ in range(4):
                a(f'v_cvt_pk_bf16_f32 v{o+r_}, v{ACC[2]+8*g+2*r_}, v{ACC[2]+8*g+2*r_+1}')
            a(f'buffer_store_dwordx4 {v(o,4)}, v{T0}, s[4:7], s60 offen offset:{512*g}')
    else:
        a('s_mul_i32 s56, s46, 86'); a('s_mul_i32 s57, s45, 6'); a('s_add_u32 s56, s56, s57')
        a('s_lshl_b32 s56, s56, 10'); a('s_add_u32 s56, s56, s38'); a('s_add_u32 s57, s56, 4096')
        U = XF
        for f in range(3):
            if f == 1:
                a('s_cmp_eq_u32 s45, 14')
                a(f's_cbranch_scc1 {nm}_fin')
            A = ACC[f]; Uf = U + 32*f
            for r_ in range(16):
                a(f'v_mul_f32 v{Uf+r_}, v{RQ}, v{A+r_}')
            for r_ in range(16):
                a(f'v_exp_f32 v{Uf+r_}, v{Uf+r_}')
                a(f'v_mul_f32 v{A+r_}, v{RS}, v{A+r_}')
            for r_ in range(16):
                a(f'v_add_f32 v{Uf+16+r_}, 2.0, v{Uf+r_}')
            for r_ in range(16):
                a(f'v_fma_f32 v{Uf+r_}, v{Uf+r_}, v{Uf+16+r_}, 2.0')
            for r_ in range(16):
                a(f'v_rcp_f32 v{Uf+r_}, v{Uf+r_}')
            for r_ in range(16):
                a(f'v_mul_f32 v{Uf+r_}, v{A+r_}, v{Uf+r_}')
            for r_ in range(16):
                a(f'v_fma_f32 v{A+r_}, v{Uf+r_}, -2.0, v{A+r_}')
            for g in range(2):
                o = Uf + 16 + 4*g
                for r_ in range(4):
                    a(f'v_cvt_pk_bf16_f32 v{o+r_}, v{A+8*g+2*r_}, v{A+8*g+2*r_+1}')
                k = 2*f + g
                a(f'buffer_store_dwordx4 {v(o,4)}, v{L16}, s[4:7], s{56 + k//4} offen offset:{1024*(k%4)}')
        a.label(f'{nm}_fin')
    if STAMP: a('s_waitcnt vmcnt(0)')
    stamp(a, 3)
    stamp_store(a, 4, 41)
    a.label(f'{nm}_end')
    a('s_endpgm')
    return 256, 101*1024

def gen_gemmB(p, kind, WIN=8):
    a = p.a
    wo = kind == 'wo'
    nm = kind
    KS = 32 if wo else 86
    nv = 256
    for l in range(2):
        p.entry(f'{nm}{l}_kernel', nv, nv)
        xi = 2*l + (0 if wo else 1)
        a(f's_mov_b32 s40, {L.O[l] if wo else L.ACT[l]}')
        a(f's_mov_b32 s39, {L.X[xi]}')
        fin = xi == 3
        a(f's_mov_b32 s38, {0 if fin else L.X[xi+1]}')
        a(f's_mov_b32 s37, {0 if fin else L.ST[xi+1]}')
        a(f's_mov_b32 s36, {1 if fin else 0}')
        if l == 0:
            a(f's_branch {nm}_body')
    a.label(f'{nm}_body')
    a('s_cmp_ge_u32 s2, 256')
    a(f's_cbranch_scc1 {nm}_end')
    stamp(a, 0)
    a('s_load_dwordx2 s[4:5], s[0:1], 72')
    a('s_load_dwordx2 s[8:9], s[0:1], 56')
    LN, L16, L4, T0, T1, T2, T3 = 1, 2, 3, 4, 5, 6, 7
    RES = 8
    ACC = [[16 + 16*(2*i+j) for j in range(2)] for i in range(2)]
    FB = 80
    assert FB + 16*WIN <= 256
    a(f'v_and_b32 v{LN}, 63, v0')
    a(f'v_lshlrev_b32 v{L16}, 4, v{LN}')
    a(f'v_lshlrev_b32 v{L4}, 2, v{LN}')
    a(f'v_lshrrev_b32 v{T0}, 6, v0')
    a(f'v_readfirstlane_b32 s41, v{T0}')
    a('s_and_b32 s42, s2, 7'); a('s_lshr_b32 s43, s2, 3')
    a('s_lshl_b32 s44, s42, 2'); a('s_and_b32 s45, s43, 3'); a('s_add_u32 s44, s44, s45')
    a('s_lshr_b32 s45, s43, 2')
    a('s_lshr_b32 s46, s41, 1'); a('s_and_b32 s47, s41, 1')
    a('s_lshl_b32 s48, s44, 1'); a('s_add_u32 s48, s48, s46')
    a('s_xor_b32 s49, s48, 1')
    a('s_lshl_b32 s50, s45, 1'); a('s_add_u32 s50, s50, s47')
    a('s_xor_b32 s51, s50, 1')
    if wo:
        nst = 8
        a('s_lshl_b32 s52, s41, 3')
    else:
        nst = 22
        a('s_mul_i32 s52, s41, 22')
        a('s_mul_i32 s53, s41, 21'); a('s_add_u32 s53, s53, 1')
        a('s_cmp_ge_u32 s41, 2')
        a('s_cselect_b32 s52, s53, s52')
    wbase = L.WOF if wo else L.W2F
    for i, (t, b) in enumerate(((48, 40), (49, 40), (50, None), (51, None))):
        a(f's_mul_i32 s{56+i}, s{t}, {KS}')
        a(f's_add_u32 s{56+i}, s{56+i}, s52')
        a(f's_lshl_b32 s{56+i}, s{56+i}, 10')
        a(f's_add_u32 s{56+i}, s{56+i}, ' + (f's{b}' if b else f'{wbase}'))
    a('s_lshl_b32 s60, s48, 5'); a('s_lshl_b32 s61, s50, 1'); a('s_add_u32 s60, s60, s61'); a('s_lshl_b32 s60, s60, 10')
    a('s_add_u32 s61, s60, s39')
    a('s_waitcnt lgkmcnt(0)')
    srd(a, 4, 4, L.WS_BYTES)
    srd(a, 8, 8, 2*L.MB)
    a(f'buffer_load_dwordx4 {v(RES,4)}, v{L16}, s[4:7], s61 offen')
    a(f'buffer_load_dwordx4 {v(RES+4,4)}, v{L16}, s[4:7], s61 offen offset:1024')
    def loads(st):
        fb = FB + 16*(st % WIN)
        out = []
        for i in (0, 2, 1, 3):
            out.append(f'buffer_load_dwordx4 {v(fb+4*i,4)}, v{L16}, s[4:7], s{56+i} offen offset:{1024*(st%4)}')
        if st % 4 == 3:
            for i in range(4): out.append(f's_add_u32 s{56+i}, s{56+i}, 4096')
        return out
    def mm(st):
        fb = FB + 16*(st % WIN)
        return [f'{MFMA} {v(ACC[i][j],16)}, {v(fb+8+4*j,4)}, {v(fb+4*i,4)}, {v(ACC[i][j],16)}' for (i, j) in ((0,0),(1,0),(0,1),(1,1))]
    if not wo:
        a('s_cmp_ge_u32 s41, 2')
        a(f's_cbranch_scc1 {nm}_skip0')
    for t in loads(0): a(t)
    if not wo:
        a.label(f'{nm}_skip0')
    npre = min(WIN, nst)
    for st in range(1, npre):
        for t in loads(st): a(t)
    for i in range(64):
        a(f'v_mov_b32 v{16+i}, 0')
    stamp(a, 1)
    for st in range(nst):
        issued = min(nst, st + WIN)
        a(f's_waitcnt vmcnt({4*(issued - st - 1)})')
        if st == 0 and not wo:
            a('s_cmp_ge_u32 s41, 2')
            a(f's_cbranch_scc1 {nm}_skip1')
        for t in mm(st): a(t)
        if st == 0 and not wo:
            a.label(f'{nm}_skip1')
        if st + WIN < nst:
            for t in loads(st + WIN): a(t)
    stamp(a, 2)
    for k in range(1, 4):
        a(f's_xor_b32 s62, s41, {k}')
        a(f's_mul_i32 s62, s62, {3*4096}')
        a(f'v_add_u32 v{T0+k-1}, s62, v{L16}')
    for k in range(1, 4):
        A = ACC[k >> 1][k & 1]
        for q in range(4):
            a(f'ds_write_b128 v{T0+k-1}, {v(A+4*q,4)} offset:{(k-1)*4096 + q*1024}')
    a(f's_mul_i32 s62, s41, {3*4096}')
    a(f'v_add_u32 v{T3}, s62, v{L16}')
    for r_ in range(8):
        a(f'v_lshlrev_b32 v{FB+2*r_}, 16, v{RES+r_}')
        a(f'v_and_b32 v{FB+2*r_+1}, 0xffff0000, v{RES+r_}')
    A0 = ACC[0][0]
    for r_ in range(16):
        a(f'v_add_f32 v{A0+r_}, v{A0+r_}, v{FB+r_}')
    a('s_waitcnt lgkmcnt(0)')
    a('s_barrier')
    RB = FB + 16
    for k in range(3):
        for q in range(4):
            a(f'ds_read_b128 {v(RB+16*k+4*q,4)}, v{T3} offset:{k*4096 + q*1024}')
    for k in range(3):
        a(f's_waitcnt lgkmcnt({8-4*k})')
        for r_ in range(16):
            a(f'v_add_f32 v{A0+r_}, v{A0+r_}, v{RB+16*k+r_}')
    for r_ in range(8):
        a(f'v_cvt_pk_bf16_f32 v{RES+r_}, v{A0+2*r_}, v{A0+2*r_+1}')
    if not wo:
        a('s_cmp_eq_u32 s36, 1')
        a(f's_cbranch_scc1 {nm}_final')
    a('s_add_u32 s61, s60, s38')
    a(f'buffer_store_dwordx4 {v(RES,4)}, v{L16}, s[4:7], s61 offen')
    a(f'buffer_store_dwordx4 {v(RES+4,4)}, v{L16}, s[4:7], s61 offen offset:1024')
    a(f'v_add_f32 v{T0}, v{A0}, v{A0+1}')
    a(f'v_mul_f32 v{T1}, v{A0}, v{A0}')
    a(f'v_fmac_f32 v{T1}, v{A0+1}, v{A0+1}')
    for r_ in range(2, 16):
        a(f'v_add_f32 v{T0}, v{T0}, v{A0+r_}')
        a(f'v_fmac_f32 v{T1}, v{A0+r_}, v{A0+r_}')
    a('s_lshl_b32 s62, s48, 12'); a('s_lshl_b32 s63, s50, 8'); a('s_add_u32 s62, s62, s63'); a('s_add_u32 s62, s62, s37')
    a(f'v_permlane32_swap_b32 v{T0}, v{T1}')
    a(f'v_add_f32 v{T0}, v{T0}, v{T1}')
    a(f'buffer_store_dword v{T0}, v{L4}, s[4:7], s62 offen')
    if not wo:
        a(f's_branch {nm}_fin')
        a.label(f'{nm}_final')
        a(f'v_and_b32 v{T0}, 31, v{LN}'); a(f'v_lshlrev_b32 v{T0}, 10, v{T0}')
        a(f'v_lshrrev_b32 v{T1}, 5, v{LN}'); a(f'v_lshl_add_u32 v{T0}, v{T1}, 4, v{T0}')
        a('s_lshl_b32 s62, s48, 15'); a('s_lshl_b32 s63, s50, 6'); a('s_add_u32 s62, s62, s63')
        for g in range(2):
            a(f'v_permlane32_swap_b32 v{RES+4*g}, v{RES+4*g+2}')
            a(f'v_permlane32_swap_b32 v{RES+4*g+1}, v{RES+4*g+3}')
            a(f'buffer_store_dwordx4 {v(RES+4*g,4)}, v{T0}, s[8:11], s62 offen offset:{32*g}')
        a.label(f'{nm}_fin')
    if STAMP: a('s_waitcnt vmcnt(0)')
    stamp(a, 3)
    stamp_store(a, 4, 41)
    a.label(f'{nm}_end')
    a('s_endpgm')
    return 256, 48*1024

def build_all():
    p = Prog()
    NW = int(os.environ.get('NW', 8)); UN = int(os.environ.get('UN', 8))
    cfg = {}
    cfg['prep'] = gen_prep(p)
    cfg['qkv'] = gen_gemmA(p, 'qkv')
    cfg['attn'] = gen_attn(p, NW, UN)
    cfg['wo'] = gen_gemmB(p, 'wo')
    cfg['ffn1'] = gen_gemmA(p, 'ffn1')
    cfg['ffn2'] = gen_gemmB(p, 'ffn2')
    p.launches.append(('prep_kernel', 214, *cfg['prep']))
    for l in range(2):
        for k in ('qkv', 'attn', 'wo', 'ffn1', 'ffn2'):
            p.launches.append((f'{k}{l}_kernel', 256, *cfg[k]))
    return p

if __name__ == '__main__':
    p = build_all()
    errs = p.a.check_branches()
    for e in errs: print('HAZARD', e, file=sys.stderr)
    open(sys.argv[1], 'w').write(p.text())
    print('pads', p.a.pads, 'instrs', sum(1 for i in p.a.ins if i.states), file=sys.stderr)
```

```python
import sys, struct
sys.path.insert(0, 'work')
from asmlib import *
import layout as L

def f32(x):
    return '0x%08x' % struct.unpack('<I', struct.pack('<f', x))[0]

class Prog:
    def __init__(self):
        self.a = Asm()
        self.kernels = []
        self.launches = []
    def entry(self, name, nvgpr, accum, nsgpr=102):
        a = self.a
        a(f'.globl {name}')
        a('.p2align 8')
        a(f'.type {name},@function')
        a.label(name)
        self.kernels.append((name, nvgpr, accum, nsgpr))
    def text(self):
        hdr = open('interleave_layers__mha_block__dense_activation_mish__prompt.s.ref').read().split('\n')
        hdr = [l for l in hdr[:11]]
        out = '\n'.join(hdr) + '\n'
        for n, g, b, lds in self.launches:
            out += f'; @launch kernel={n} grid=({g},1,1) block=({b},1,1) lds={lds}\n'
        out += '.amdgcn_target "amdgcn-amd-amdhsa--gfx950"\n.text\n'
        out += self.a.text()
        out += '.section .rodata,"a"\n'
        for n, nv, acc, ns in self.kernels:
            out += f'''.p2align 6
.amdhsa_kernel {n}
  .amdhsa_next_free_vgpr {nv}
  .amdhsa_next_free_sgpr {ns}
  .amdhsa_accum_offset {acc}
  .amdhsa_group_segment_fixed_size 0
  .amdhsa_kernarg_size 80
  .amdhsa_user_sgpr_count 2
  .amdhsa_user_sgpr_kernarg_segment_ptr 1
  .amdhsa_system_sgpr_workgroup_id_x 1
.end_amdhsa_kernel
'''
        return out

def srd(a, d, b, nbytes):
    if d != b:
        a(f's_mov_b32 s{d}, s{b}')
    a(f's_and_b32 s{d+1}, s{b+1}, 0xffff')
    a(f's_mov_b32 s{d+2}, {nbytes}')
    a(f's_mov_b32 s{d+3}, 0x00020000')

import os
STAMP = int(os.environ.get('STAMP', 0))
def stamp(a, idx):
    if not STAMP: return
    r = 70 + 4*idx
    a(f's_memtime s[{r}:{r+1}]')
    a(f's_memrealtime s[{r+2}:{r+3}]')
    a('s_waitcnt lgkmcnt(0)')
def stamp_store(a, n, wave_s, srdreg=4, vt=4, nw=8):
    if not STAMP: return
    a('s_lshl_b32 s66, s2, 4')
    a(f's_add_u32 s66, s66, s{wave_s}')
    a('s_lshl_b32 s66, s66, 6')
    a(f's_add_u32 s66, s66, {L.FLAGS + 7*L.MB}')
    a(f'v_mov_b32 v{vt+2}, 0')
    for i in range(n):
        a(f'v_mov_b32 v{vt}, s{70+4*i}')
        a(f'v_mov_b32 v{vt+1}, s{72+4*i}')
        a(f'buffer_store_dwordx2 v[{vt}:{vt+1}], v{vt+2}, s[{srdreg}:{srdreg+3}], s66 offen offset:{8*i}')
        a('s_waitcnt vmcnt(0)')

MFMA = 'v_mfma_f32_32x32x16_bf16'
ONES = '0x3f803f80'

def gen_attn(p, NW=8, UN=4):
    a = p.a
    NQ = 8 // NW
    nv = 128
    body = 'attn_body'
    p.entry('attn0_kernel', nv, nv)
    a('s_mov_b32 s40, 0')
    a(f's_branch {body}')
    p.entry('attn1_kernel', nv, nv)
    a(f's_mov_b32 s40, {2*L.MB}')
    a.label(body)
    a('s_cmp_ge_u32 s2, 256')
    a('s_cbranch_scc1 attn_end')
    stamp(a, 0)
    a('s_load_dwordx2 s[4:5], s[0:1], 72')
    VL16 = 1
    VVA = 2
    VKA = 3
    T0, T1, T2, T3 = 4, 5, 6, 7
    KB = [8, 12]
    VB = [[16, 20], [24, 28]]
    QF = [32 + 4*i for i in range(NQ)]
    base = 40
    PB = [[base + 8*i, base + 8*i + 4] for i in range(NQ)]; base += 8*NQ
    OA = [base + 16*i for i in range(NQ)]; base += 16*NQ
    SB = [[base + 32*i, base + 32*i + 16] for i in range(NQ)]; base += 32*NQ
    assert base <= 256
    nvu = (base + 7)//8*8
    p.kernels[-1] = (p.kernels[-1][0], nvu, nvu, 102); p.kernels[-2] = (p.kernels[-2][0], nvu, nvu, 102)
    a(f'v_and_b32 v{T0}, 63, v0')
    a(f'v_lshlrev_b32 v{VL16}, 4, v{T0}')
    a(f'v_lshrrev_b32 v{T1}, 6, v0')
    a(f'v_readfirstlane_b32 s41, v{T1}')
    a('s_and_b32 s42, s2, 7')
    a('s_lshl_b32 s42, s42, 2')
    a('s_lshr_b32 s43, s2, 3')
    a('s_and_b32 s44, s43, 3')
    a('s_add_u32 s42, s42, s44')
    a('s_lshr_b32 s43, s2, 5')
    a('s_lshl_b32 s44, s42, 16')
    a('s_add_u32 s44, s44, s40')
    a('s_lshl_b32 s45, s41, 10')
    a('s_add_u32 s46, s44, s45')
    a(f's_add_u32 s47, s46, {L.V[0]}')
    a(f's_add_u32 s46, s46, {L.K[0]}')
    a('s_waitcnt lgkmcnt(0)')
    srd(a, 4, 4, L.WS_BYTES)
    a('s_lshl_b32 s48, s43, 3')
    a(f's_mul_i32 s49, s41, {NQ}')
    a('s_add_u32 s48, s48, s49')
    a('s_lshl_b32 s49, s48, 10')
    a('s_add_u32 s49, s49, s44')
    assert L.Q[0] == 0
    nch = 64 // NW
    a('s_mov_b32 m0, s45')
    a(f'buffer_load_dwordx4 v{VL16}, s[4:7], s46 offen lds')
    a('s_add_u32 m0, s45, 0x10000')
    a(f'buffer_load_dwordx4 v{VL16}, s[4:7], s47 offen lds')
    for i in range(NQ):
        a(f'buffer_load_dwordx4 {v(QF[i],4)}, v{VL16}, s[4:7], s49 offen offset:{1024*i}')
    for c in range(1, nch):
        a(f's_add_u32 s46, s46, {NW*1024}')
        a(f's_add_u32 s47, s47, {NW*1024}')
        a(f's_add_u32 m0, s45, {c*NW*1024}')
        a(f'buffer_load_dwordx4 v{VL16}, s[4:7], s46 offen lds')
        a(f's_add_u32 m0, s45, {0x10000 + c*NW*1024}')
        a(f'buffer_load_dwordx4 v{VL16}, s[4:7], s47 offen lds')
    a(f'v_and_b32 v{T1}, 15, v{T0}')
    a(f'v_lshlrev_b32 v{T1}, 4, v{T1}')
    a(f'v_lshrrev_b32 v{T2}, 5, v{T0}')
    a(f'v_lshlrev_b32 v{T2}, 8, v{T2}')
    a(f'v_add_u32 v{VVA}, v{T1}, v{T2}')
    a(f'v_add_u32 v{VVA}, 0x10000, v{VVA}')
    a(f'v_mov_b32 v{VKA}, v{VL16}')
    for b in range(2):
        for g in range(2):
            for r in range(4):
                a(f'v_mov_b32 v{VB[b][g]+r}, {ONES}')
    for i in range(NQ):
        for r in range(16):
            a(f'v_mov_b32 v{OA[i]+r}, 0')
    for r in range(4):
        a(f'v_mov_b32 v{PB[NQ-1][1]+r}, 0')
    a('s_mov_b32 s50, 0x0000ffff')
    a('s_mov_b32 s51, 0x0000ffff')
    first = UN + 2
    nfirst = (first + NW - 1)//NW
    left = 2*(nch - nfirst)
    a(f's_waitcnt vmcnt({left})')
    a('s_barrier')
    stamp(a, 1)
    a(f'ds_read_b128 {v(KB[0],4)}, v{VKA}')
    a(f'ds_read_b128 {v(KB[1],4)}, v{VKA} offset:1024')
    a('s_mov_b64 exec, s[50:51]')
    a(f'ds_read_b128 {v(VB[0][0],4)}, v{VVA}')
    a(f'ds_read_b128 {v(VB[0][1],4)}, v{VVA} offset:512')
    a('s_mov_b64 exec, -1')
    a('s_waitcnt lgkmcnt(3)')
    for i in range(NQ):
        a(f'{MFMA} {v(SB[i][0],16)}, {v(KB[0],4)}, {v(QF[i],4)}, 0')
    a(f's_mov_b32 s52, {64//UN}')
    a('s_nop 7')
    a('.p2align 6')
    a.label('attn_loop')
    def pv1_of(i, buf):
        return f'{MFMA} {v(OA[i],16)}, {v(VB[buf][1],4)}, {v(PB[i][1],4)}, {v(OA[i],16)}'
    for u in range(UN):
        cur, nxt = u % 2, (u + 1) % 2
        a('s_waitcnt lgkmcnt(0)')
        seq = []
        for i in range(NQ):
            S = SB[i][cur]
            qk = f'{MFMA} {v(SB[i][nxt],16)}, {v(KB[nxt],4)}, {v(QF[i],4)}, 0'
            pv0 = f'{MFMA} {v(OA[i],16)}, {v(VB[cur][0],4)}, {v(PB[i][0],4)}, {v(OA[i],16)}'
            e = [f'v_exp_f32 v{S+r}, v{S+r}' for r in range(16)]
            c = [f'v_cvt_pk_bf16_f32 v{PB[i][r//4]+r%4}, v{S+2*r}, v{S+2*r+1}' for r in range(8)]
            seq.append((qk, pv0, e, c))
        vloads = [
            's_mov_b64 exec, s[50:51]',
            f'ds_read_b128 {v(VB[nxt][0],4)}, v{VVA} offset:{(u+1)*1024}',
            f'ds_read_b128 {v(VB[nxt][1],4)}, v{VVA} offset:{(u+1)*1024+512}',
            's_mov_b64 exec, -1',
        ]
        for i, (qk, pv0, e, c) in enumerate(seq):
            a(qk)
            if i == 0:
                a(f'ds_read_b128 {v(KB[cur],4)}, v{VKA} offset:{(u+2)*1024}')
            a(e[0]); a(e[1]); a(e[2]); a(e[3])
            a(c[0]); a(c[1])
            a(e[4])
            if i == 0:
                a(pv1_of(NQ-1, nxt))
                for l in vloads: a(l)
            else:
                a(pv1_of(i-1, cur))
            a(e[5]); a(e[6]); a(e[7])
            a(c[2]); a(c[3])
            a(e[8]); a(e[9]); a(e[10])
            a(pv0)
            a(e[11])
            a(c[4]); a(c[5])
            a(e[12]); a(e[13]); a(e[14]); a(e[15])
            a(c[6]); a(c[7])
        if u == UN - 1:
            a(f'v_add_u32 v{VKA}, {UN*1024}, v{VKA}')
            a(f'v_add_u32 v{VVA}, {UN*1024}, v{VVA}')
    nit = 64 // UN
    a(f's_cmp_lt_u32 s52, {nit-2}')
    a('s_cbranch_scc1 attn_nosync')
    a(f's_cmp_eq_u32 s52, {nit-1}')
    a('s_cbranch_scc1 attn_nosync')
    a(f's_waitcnt vmcnt({nch})')
    a(f's_cmp_eq_u32 s52, {nit}')
    a('s_cbranch_scc1 attn_half')
    a('s_waitcnt vmcnt(0)')
    a.label('attn_half')
    a('s_barrier')
    a.label('attn_nosync')
    a('s_sub_u32 s52, s52, 1')
    a('s_cmp_lg_u32 s52, 0')
    a('s_cbranch_scc1 attn_loop')
    assert 3*UN + 2 <= 32 and UN % 2 == 0
    a(pv1_of(NQ-1, 1))
    a('s_waitcnt lgkmcnt(0)')
    stamp(a, 2)
    a('s_lshl_b32 s53, s48, 15')
    a('s_lshl_b32 s54, s42, 10')
    a('s_add_u32 s53, s53, s54')
    a('s_add_u32 s53, s53, s40')
    a(f's_add_u32 s53, s53, {L.O[0]}')
    a(f's_mov_b32 s56, {f32(2.0**-90)}')
    a(f's_mov_b32 s57, {f32(2.0**120)}')
    for i in range(NQ):
        Oa = OA[i]
        done = a.lab('attn_fin')
        a(f'v_add_f32 v{T0}, abs(v{Oa}), abs(v{Oa+1})')
        a(f'v_add_f32 v{T1}, abs(v{Oa+2}), abs(v{Oa+3})')
        a(f'v_add_f32 v{T2}, abs(v{Oa+4}), abs(v{Oa+5})')
        a(f'v_add_f32 v{T3}, abs(v{Oa+6}), abs(v{Oa+7})')
        a(f'v_add_f32 v{T0}, v{T0}, v{T1}')
        a(f'v_add_f32 v{T2}, v{T2}, v{T3}')
        a(f'v_add_f32 v{T0}, v{T0}, v{T2}')
        a(f'v_cmp_gt_f32 s[58:59], s57, v{T0}')
        a(f'v_cmp_gt_f32 s[60:61], s57, v{Oa+8}')
        a(f'v_cmp_lt_f32 s[62:63], s56, v{Oa+8}')
        a('s_and_b64 s[58:59], s[58:59], s[60:61]')
        a('s_and_b64 s[58:59], s[58:59], s[62:63]')
        a('s_cmp_eq_u64 s[58:59], -1')
        a(f's_cbranch_scc1 {done}')
        S = SB[i][0]; M = SB[i][1]; AL = M + 1; TA = M + 2; TB = M + 3; KA2 = M + 4; VA2 = M + 5
        a(f'v_mov_b32 v{KA2}, v{VL16}')
        a(f'v_subrev_u32 v{VA2}, 0x10000, v{VVA}')
        a(f'v_mov_b32 v{M}, {f32(-3.0e38)}')
        for r in range(16):
            a(f'v_mov_b32 v{Oa+r}, 0')
        a('s_mov_b32 s55, 64')
        lp = a.lab('attn_slow')
        a.label(lp)
        a(f'ds_read_b128 {v(KB[0],4)}, v{KA2}')
        a('s_mov_b64 exec, s[50:51]')
        a(f'ds_read_b128 {v(VB[0][0],4)}, v{VA2}')
        a(f'ds_read_b128 {v(VB[0][1],4)}, v{VA2} offset:512')
        a('s_mov_b64 exec, -1')
        a('s_waitcnt lgkmcnt(0)')
        a(f'{MFMA} {v(S,16)}, {v(KB[0],4)}, {v(QF[i],4)}, 0')
        a(f'v_add_u32 v{KA2}, 1024, v{KA2}')
        a(f'v_add_u32 v{VA2}, 1024, v{VA2}')
        a(f'v_max3_f32 v{TA}, v{S}, v{S+1}, v{M}')
        for r in range(2, 16, 2):
            a(f'v_max3_f32 v{TA}, v{S+r}, v{S+r+1}, v{TA}')
        a(f'v_mov_b32 v{TB}, v{TA}')
        a(f'v_permlane32_swap_b32 v{TA}, v{TB}')
        a(f'v_max_f32 v{TA}, v{TA}, v{TB}')
        a(f'v_sub_f32 v{AL}, v{M}, v{TA}')
        a(f'v_exp_f32 v{AL}, v{AL}')
        a(f'v_mov_b32 v{M}, v{TA}')
        for r in range(16):
            a(f'v_sub_f32 v{S+r}, v{S+r}, v{M}')
            a(f'v_exp_f32 v{S+r}, v{S+r}')
        for r in range(16):
            a(f'v_mul_f32 v{Oa+r}, v{AL}, v{Oa+r}')
        for r in range(8):
            a(f'v_cvt_pk_bf16_f32 v{PB[i][r//4]+r%4}, v{S+2*r}, v{S+2*r+1}')
        a(f'{MFMA} {v(Oa,16)}, {v(VB[0][0],4)}, {v(PB[i][0],4)}, {v(Oa,16)}')
        a(f'{MFMA} {v(Oa,16)}, {v(VB[0][1],4)}, {v(PB[i][1],4)}, {v(Oa,16)}')
        a('s_sub_u32 s55, s55, 1')
        a('s_cmp_lg_u32 s55, 0')
        a('s_nop 7')
        a(f's_cbranch_scc1 {lp}')
        a('s_nop 7')
        a.label(done)
        a(f'v_rcp_f32 v{T0}, v{Oa+8}')
        for r in range(8):
            a(f'v_mul_f32 v{Oa+r}, v{T0}, v{Oa+r}')
        for r in range(4):
            a(f'v_cvt_pk_bf16_f32 v{PB[i][0]+r}, v{Oa+2*r}, v{Oa+2*r+1}')
        a(f'buffer_store_dwordx4 {v(PB[i][0],4)}, v{VL16}, s[4:7], s53 offen')
        if i + 1 < NQ:
            a(f's_add_u32 s53, s53, {32*1024}')
    a('s_waitcnt vmcnt(0)') if STAMP else None
    stamp(a, 3)
    stamp_store(a, 4, 41)
    a.label('attn_end')
    a('s_endpgm')
    return NW * 64, 128 * 1024 + 4096


def split3(a, x, hi, mid, lo, t):
    a(f'v_and_b32 v{hi}, 0xffff0000, v{x}')
    a(f'v_sub_f32 v{t}, v{x}, v{hi}')
    a(f'v_and_b32 v{mid}, 0xffff0000, v{t}')
    a(f'v_sub_f32 v{t}, v{t}, v{mid}')
    a(f'v_and_b32 v{lo}, 0xffff0000, v{t}')
def pack_hi(a, d, lo, hi):
    a(f'v_lshrrev_b32 v{d}, 16, v{lo}')
    a(f'v_or_b32 v{d}, v{d}, v{hi}')

def gen_prep(p, clear=False):
    a = p.a
    nv = 64
    p.entry('prep_kernel', nv, nv)
    a(f's_cmp_ge_u32 s2, {(214, 224, 215)[int(clear)]}')
    a('s_cbranch_scc1 prep_end')
    a('s_load_dwordx4 s[8:11], s[0:1], 0')
    a('s_load_dwordx2 s[12:13], s[0:1], 16')
    a('s_load_dwordx4 s[16:19], s[0:1], 32')
    a('s_load_dwordx2 s[20:21], s[0:1], 48')
    a('s_load_dwordx2 s[4:5], s[0:1], 72')
    LN, L16, T0, T1, T2, T3 = 1, 2, 3, 4, 5, 6
    a(f'v_and_b32 v{LN}, 63, v0')
    a(f'v_lshlrev_b32 v{L16}, 4, v{LN}')
    a(f'v_lshrrev_b32 v{T0}, 6, v0')
    a(f'v_readfirstlane_b32 s41, v{T0}')
    a('s_waitcnt lgkmcnt(0)')
    srd(a, 4, 4, L.WS_BYTES)
    if int(os.environ.get('CPF', 1 if clear == 2 else 0)):
        a('s_getpc_b64 s[60:61]')
        a.label('prep_pc')
        a('s_lshr_b32 s62, s2, 3'); a('s_and_b32 s62, s62, 1'); a('s_lshl_b32 s62, s62, 15')
        a('s_add_u32 s62, s62, main_kernel-prep_pc')
        a('s_add_u32 s60, s60, s62'); a('s_addc_u32 s61, s61, 0')
        a('v_lshlrev_b32 v62, 7, v0')
        a('s_lshr_b32 s63, s2, 3'); a('s_and_b32 s63, s63, 1'); a('s_lshl_b32 s63, s63, 15')
        a('s_sub_u32 s63, main_end-main_kernel, s63')
        a('v_min_u32 v62, s63, v62')
        a('v_mov_b32 v63, s61')
        a('v_add_co_u32 v62, vcc, s60, v62')
        a('v_addc_co_u32 v63, vcc, 0, v63, vcc')
        a('global_load_dword v61, v[62:63], off')
    TLB = int(os.environ.get('TLB', 0))
    if TLB == 1:
        a(f'v_lshlrev_b32 v60, 21, v{LN}')
        a(f'v_min_u32 v60, {L.WS_USED - 4}, v60')
        a('buffer_load_dword v61, v60, s[4:7], 0 offen')
    if TLB == 2:
        a('s_lshr_b32 s42, s2, 3'); a('s_lshl_b32 s42, s42, 21')
        a(f'v_lshlrev_b32 v60, 15, v{LN}')
        a('v_add_u32 v60, s42, v60')
        a(f'v_min_u32 v60, {L.WS_USED - 4}, v60')
        a('buffer_load_dword v61, v60, s[4:7], 0 offen')
    if clear:
        a('s_cmp_lt_u32 s2, 214')
        a('s_cbranch_scc1 prep_noclr')
        if clear == 2:
            CST = int(os.environ.get('CST', 512))
            a(f'v_mul_u32_u24 v{T0}, {CST}, v0')
            a('v_mov_b32 v8, 0')
            for i in range(5):
                a(f's_mov_b32 s42, {L.FLAGS + i*256*CST}')
                a(f'buffer_store_dword v8, v{T0}, s[4:7], s42 offen')
                for fo in (128, 256):
                    a(f'buffer_store_dword v8, v{T0}, s[4:7], s42 offen offset:{fo}')
        else:
            a('s_sub_u32 s42, s2, 214'); a('s_lshl_b32 s42, s42, 12'); a(f's_add_u32 s42, s42, {L.FLAGS}')
            a(f'v_lshlrev_b32 v{T0}, 4, v0')
            for r in range(4): a(f'v_mov_b32 v{8+r}, 0')
            a(f'buffer_store_dwordx4 v[8:11], v{T0}, s[4:7], s42 offen')
        a('s_branch prep_end')
        a.label('prep_noclr')
    a('s_cmp_ge_u32 s2, 150')
    a('s_cbranch_scc1 prep_x')
    a('s_mov_b32 s27, 0x00020000')
    lab_w1, lab_wo, lab_w2, lab_go = 'prep_w1', 'prep_wo', 'prep_w2', 'prep_go'
    a('s_cmp_ge_u32 s2, 48')
    a(f's_cbranch_scc1 {lab_w1}')
    a('s_mov_b32 s24, s10'); a('s_and_b32 s25, s11, 0xffff'); a(f's_mov_b32 s26, {512*1536*2}')
    a('s_mov_b32 s30, 3072'); a('s_mov_b32 s31, 1'); a(f's_mov_b32 s33, {L.WQKVF}'); a(f's_mov_b32 s34, {L.KSX}')
    a('s_mov_b32 s37, s2'); a('s_mov_b32 s38, 0'); a('s_mov_b32 s36, 32')
    a(f's_branch {lab_go}')
    a.label(lab_w1)
    a('s_cmp_ge_u32 s2, 91')
    a(f's_cbranch_scc1 {lab_wo}')
    a('s_mov_b32 s24, s16'); a('s_and_b32 s25, s17, 0xffff'); a(f's_mov_b32 s26, {512*1376*2}')
    a('s_mov_b32 s30, 2752'); a('s_mov_b32 s31, 2'); a(f's_mov_b32 s33, {L.W1F}'); a(f's_mov_b32 s34, {L.KSX}')
    a('s_sub_u32 s37, s2, 48'); a('s_mov_b32 s38, 0'); a('s_mov_b32 s36, 32')
    a(f's_branch {lab_go}')
    a.label(lab_wo)
    a('s_cmp_ge_u32 s2, 107')
    a(f's_cbranch_scc1 {lab_w2}')
    a('s_mov_b32 s24, s12'); a('s_and_b32 s25, s13, 0xffff'); a(f's_mov_b32 s26, {512*512*2}')
    a('s_mov_b32 s30, 1024'); a('s_mov_b32 s31, 0'); a(f's_mov_b32 s33, {L.WOF}'); a(f's_mov_b32 s34, 32')
    a('s_sub_u32 s37, s2, 91'); a('s_mov_b32 s38, 0'); a('s_mov_b32 s36, 32')
    a(f's_branch {lab_go}')
    a.label(lab_w2)
    a('s_mov_b32 s24, s20'); a('s_and_b32 s25, s21, 0xffff'); a(f's_mov_b32 s26, {1376*512*2}')
    a('s_mov_b32 s30, 1024'); a('s_mov_b32 s31, 0'); a(f's_mov_b32 s33, {L.W2F}'); a(f's_mov_b32 s34, 86')
    a('s_sub_u32 s35, s2, 107'); a('s_lshl_b32 s35, s35, 5')
    a(f's_mul_hi_u32 s37, s35, {(2**32 + 85)//86}')
    a('s_mul_i32 s38, s37, 86'); a('s_sub_u32 s38, s35, s38')
    a('s_mov_b32 s36, 86')
    a.label(lab_go)
    a('s_lshl_b32 s39, s41, 3')
    a('s_add_u32 s38, s38, s39')
    a('s_cmp_ge_u32 s38, s36')
    a('s_cselect_b32 s39, s36, 0'); a('s_cselect_b32 s42, 1, 0')
    a('s_sub_u32 s38, s38, s39'); a('s_add_u32 s37, s37, s42')
    a(f'v_lshrrev_b32 v{T0}, 2, v{LN}')
    a(f'v_mul_lo_u32 v{T0}, v{T0}, s30')
    a(f'v_and_b32 v{T1}, 3, v{LN}')
    a(f'v_lshl_add_u32 v{T0}, v{T1}, 4, v{T0}')
    a(f'v_lshrrev_b32 v{T1}, 5, v{LN}')
    a(f'v_lshlrev_b32 v{T1}, 2, v{T1}')
    a(f'v_bfe_u32 v{T2}, v{LN}, 2, 2')
    a(f'v_add_u32 v{T1}, v{T1}, v{T2}')
    a(f'v_lshlrev_b32 v{T1}, 6, v{T1}')
    a(f'v_bfe_u32 v{T2}, v{LN}, 4, 1')
    a(f'v_lshl_add_u32 v{T1}, v{T2}, 5, v{T1}')
    a(f'v_and_b32 v{T2}, 3, v{LN}')
    a(f'v_lshl_add_u32 v{T1}, v{T2}, 3, v{T1}')
    a('s_lshl_b32 s43, s41, 13')
    a(f'v_add_u32 v{T1}, s43, v{T1}')
    for i in range(8):
        a('s_lshl_b32 s52, s38, 4')
        a('s_mul_i32 s52, s52, s30')
        a('s_lshl_b32 s53, s37, 6')
        a('s_add_u32 s52, s52, s53')
        a(f's_add_u32 m0, s43, {i*1024}')
        a(f's_mul_i32 s{44+i}, s37, s34')
        a(f'buffer_load_dwordx4 v{T0}, s[24:27], s52 offen lds')
        a(f's_add_u32 s{44+i}, s{44+i}, s38')
        a(f's_lshl_b32 s{44+i}, s{44+i}, 10')
        a(f's_add_u32 s{44+i}, s{44+i}, s33')
        if i < 7:
            a('s_add_u32 s38, s38, 1')
            a('s_cmp_ge_u32 s38, s36')
            a('s_cselect_b32 s39, s36, 0'); a('s_cselect_b32 s42, 1, 0')
            a('s_sub_u32 s38, s38, s39'); a('s_add_u32 s37, s37, s42')
    FR = 16
    CS = 8
    a(f'v_mov_b32 v{CS}, 0')
    a(f'v_mov_b32 v{T3}, {ONES}')
    a('s_waitcnt vmcnt(0)')
    for i in range(8):
        a(f'ds_read_b64_tr_b16 {v(FR+4*i,2)}, v{T1} offset:{i*1024}')
        a(f'ds_read_b64_tr_b16 {v(FR+4*i+2,2)}, v{T1} offset:{i*1024+512}')
    a('s_waitcnt lgkmcnt(0)')
    for i in range(8):
        a(f'buffer_store_dwordx4 {v(FR+4*i,4)}, v{L16}, s[4:7], s{44+i} offen')
    a('s_cmp_eq_u32 s31, 0')
    a('s_cbranch_scc1 prep_end')
    for i in range(32):
        a(f'v_dot2_f32_bf16 v{CS}, v{FR+i}, v{T3}, v{CS}')
    a(f'v_lshlrev_b32 v{T2}, 2, v0')
    a(f'ds_write_b32 v{T2}, v{CS} offset:32768')
    a('s_waitcnt lgkmcnt(0)')
    a('s_barrier')
    a('s_cmp_lg_u32 s41, 0')
    a('s_cbranch_scc1 prep_end')
    a(f'v_and_b32 v{T2}, 31, v{LN}')
    a(f'v_lshlrev_b32 v{T2}, 2, v{T2}')
    for i in range(8):
        a(f'ds_read_b32 v{48+i}, v{T2} offset:{32768+128*i}')
    B = 9
    a(f'v_mov_b32 v{B}, 0')
    a('s_cmp_lg_u32 s31, 2')
    a('s_cbranch_scc1 prep_nobias')
    a('s_mov_b32 s24, s18'); a('s_and_b32 s25, s19, 0xffff'); a(f's_mov_b32 s26, {1376*2}')
    a('s_lshl_b32 s53, s37, 6')
    a(f'v_lshrrev_b32 v{T2}, 1, v{T2}')
    a(f'buffer_load_ushort v{B}, v{T2}, s[24:27], s53 offen')
    a('s_waitcnt vmcnt(0)')
    a(f'v_lshlrev_b32 v{B}, 16, v{B}')
    a.label('prep_nobias')
    a('s_waitcnt lgkmcnt(0)')
    a('v_add_f32 v48, v48, v49'); a('v_add_f32 v50, v50, v51'); a('v_add_f32 v52, v52, v53'); a('v_add_f32 v54, v54, v55')
    a('v_add_f32 v48, v48, v50'); a('v_add_f32 v52, v52, v54'); a('v_add_f32 v48, v48, v52')
    HI, MID, LO = 10, 11, 12
    split3(a, 48, HI, MID, LO, 13)
    pack_hi(a, 56, HI, HI); pack_hi(a, 57, HI, B); pack_hi(a, 58, B, B)
    a(f'v_lshrrev_b32 v59, 16, v{MID}')
    pack_hi(a, 60, LO, MID)
    a(f'v_cmp_gt_u32 vcc, 32, v{LN}')
    a('v_cndmask_b32 v56, v60, v56, vcc')
    a('v_cndmask_b32 v57, 0, v57, vcc')
    a('v_cndmask_b32 v58, 0, v58, vcc')
    a('v_cndmask_b32 v59, 0, v59, vcc')
    a('s_mul_i32 s52, s37, s34')
    a('s_add_u32 s52, s52, 32')
    a('s_lshl_b32 s52, s52, 10')
    a('s_add_u32 s52, s52, s33')
    a(f'buffer_store_dwordx4 v[56:59], v{L16}, s[4:7], s52 offen')
    a('s_branch prep_end')
    a.label('prep_x')
    srd(a, 8, 8, 2048*512*2)
    a('s_sub_u32 s42, s2, 150')
    a(f'v_and_b32 v{T0}, 31, v{LN}')
    a(f'v_lshlrev_b32 v{T0}, 10, v{T0}')
    a(f'v_lshrrev_b32 v{T1}, 5, v{LN}')
    a(f'v_lshl_add_u32 v{T0}, v{T1}, 4, v{T0}')
    a('s_lshl_b32 s43, s42, 15')
    a('s_lshl_b32 s44, s41, 8')
    a('s_add_u32 s44, s44, s43')
    for i in range(8):
        a(f'buffer_load_dwordx4 {v(FR+4*i,4)}, v{T0}, s[8:11], s44 offen offset:{32*i}')
    a('s_lshl_b32 s45, s41, 13')
    a('s_add_u32 s45, s45, s43')
    a(f's_add_u32 s45, s45, {L.X[0]}')
    a('s_add_u32 s46, s45, 4096')
    a('s_lshl_b32 s47, s42, 12')
    a('s_lshl_b32 s48, s41, 10')
    a('s_add_u32 s47, s47, s48')
    a(f's_add_u32 s47, s47, {L.ST[0]}')
    a(f'v_mov_b32 v{T3}, {ONES}')
    a(f'v_lshlrev_b32 v{T2}, 2, v{LN}')
    a('s_waitcnt vmcnt(0)')
    for i in range(8):
        a(f'v_permlane32_swap_b32 v{FR+4*i}, v{FR+4*i+2}')
        a(f'v_permlane32_swap_b32 v{FR+4*i+1}, v{FR+4*i+3}')
    for i in range(8):
        a(f'buffer_store_dwordx4 {v(FR+4*i,4)}, v{L16}, s[4:7], s{45 + i//4} offen offset:{1024*(i%4)}')
    for sl in range(4):
        s1, s2 = 48 + 2*sl, 49 + 2*sl
        a(f'v_mov_b32 v{s1}, 0'); a(f'v_mov_b32 v{s2}, 0')
        for r in range(8):
            a(f'v_dot2_f32_bf16 v{s1}, v{FR+8*sl+r}, v{T3}, v{s1}')
        for r in range(8):
            a(f'v_dot2_f32_bf16 v{s2}, v{FR+8*sl+r}, v{FR+8*sl+r}, v{s2}')
    for sl in range(4):
        s1, s2 = 48 + 2*sl, 49 + 2*sl
        a(f'v_permlane32_swap_b32 v{s1}, v{s2}')
        if False:
            a(f'v_add_f32 v{56+sl}, v{s1}, v{s2}')
        else:
            a(f'v_add_f32 v{s1}, v{s1}, v{s2}')
            a(f'buffer_store_dword v{s1}, v{T2}, s[4:7], s47 offen offset:{256*sl}')

    a.label('prep_end')
    a('s_endpgm')
    return 256, 32768 + 1024

def gen_gemmA(p, kind, DEPTH=3):
    a = p.a
    qkv = kind == 'qkv'
    nm = kind
    nv = 256
    for l in range(2):
        p.entry(f'{nm}{l}_kernel', nv, nv)
        xi = 2*l + (0 if qkv else 1)
        a(f's_mov_b32 s40, {L.X[xi]}')
        a(f's_mov_b32 s39, {L.ST[xi]}')
        a(f's_mov_b32 s38, {2*L.MB*l if qkv else L.ACT[l]}')
        if l == 0:
            a(f's_branch {nm}_body')
    a.label(f'{nm}_body')
    a('s_cmp_ge_u32 s2, 256')
    a(f's_cbranch_scc1 {nm}_end')
    stamp(a, 0)
    a('s_load_dwordx2 s[4:5], s[0:1], 72')
    LN, L16, L4, T0, T1, T2, T3 = 1, 2, 3, 4, 5, 6, 7
    RS, RQ = 8, 9
    XE = 12
    STV = 16
    WB = [32 + 12*i for i in range(3)]
    ACC = [80 + 16*i for i in range(3)]
    XF = 128
    a(f'v_and_b32 v{LN}, 63, v0')
    a(f'v_lshlrev_b32 v{L16}, 4, v{LN}')
    a(f'v_lshlrev_b32 v{L4}, 2, v{LN}')
    a(f'v_lshrrev_b32 v{T0}, 6, v0')
    a(f'v_readfirstlane_b32 s41, v{T0}')
    a('s_and_b32 s42, s2, 7'); a('s_lshr_b32 s43, s2, 3')
    a('s_lshr_b32 s44, s42, 1'); a('s_lshl_b32 s44, s44, 2'); a('s_and_b32 s45, s43, 3'); a('s_add_u32 s44, s44, s45')
    a('s_and_b32 s45, s42, 1'); a('s_lshl_b32 s45, s45, 3'); a('s_lshr_b32 s46, s43, 2'); a('s_add_u32 s45, s45, s46')
    if not qkv:
        a('s_cmp_ge_u32 s45, 15')
        a(f's_cbranch_scc1 {nm}_end')
    a('s_lshl_b32 s46, s44, 2'); a('s_add_u32 s46, s46, s41')
    a('s_lshl_b32 s47, s46, 15'); a('s_add_u32 s47, s47, s40')
    a('s_lshl_b32 s48, s46, 12'); a('s_add_u32 s48, s48, s39')
    ftstride = (16 if qkv else 1) * L.KSX * 1024
    a(f's_mul_i32 s49, s45, {(1 if qkv else 3) * L.KSX * 1024}')
    a(f's_add_u32 s49, s49, {L.WQKVF if qkv else L.W1F}')
    a('s_lshl_b32 s50, s41, 10')
    a('s_add_u32 s51, s49, s50')
    a(f's_add_u32 s52, s51, {ftstride}')
    a(f's_add_u32 s53, s52, {ftstride}')
    a('s_mul_i32 s54, s41, 3072')
    a('s_waitcnt lgkmcnt(0)')
    srd(a, 4, 4, L.WS_BYTES)
    nvm = [0]
    def vm(t):
        a(t); nvm[0] += 1
    for i in range(16):
        vm(f'buffer_load_dword v{STV+i}, v{L4}, s[4:7], s48 offen offset:{256*i}')
    a('s_min_u32 s55, s41, 2')
    a(f's_mul_i32 s56, s55, {ftstride}')
    a('s_add_u32 s56, s56, s49')
    a(f's_add_u32 s56, s56, {32*1024}')
    a('s_lshl_b32 s55, s55, 10')
    a(f's_add_u32 m0, s55, {32*3072}')
    vm(f'buffer_load_dwordx4 v{L16}, s[4:7], s56 offen lds')
    def chunk_ops(c):
        ops = []
        for j in range(3):
            g = [f's_add_u32 m0, s54, {c*4*3072 + j*1024}',
                 f'buffer_load_dwordx4 v{L16}, s[4:7], s{51+j} offen lds',
                 f's_add_u32 s{51+j}, s{51+j}, 4096']
            ops.append(g)
        for j in range(4):
            g = [f'buffer_load_dwordx4 {v(XF+16*c+4*j,4)}, v{L16}, s[4:7], s47 offen offset:{1024*j}']
            if j == 3: g.append('s_add_u32 s47, s47, 4096')
            ops.append(g)
        return ops
    done_at = {}
    def issue(g):
        for t in g:
            if t.startswith('buffer'): vm(t)
            else: a(t)
    for c in range(DEPTH):
        for g in chunk_ops(c): issue(g)
        done_at[c] = nvm[0]
    def sync(c):
        a(f's_waitcnt vmcnt({nvm[0] - done_at[c]})')
        a('s_barrier')
    def rd(s_):
        for j in range(3):
            a(f'ds_read_b128 {v(WB[s_%3]+4*j,4)}, v{L16B if s_ >= 21 else L16} offset:{(s_ - (21 if s_ >= 21 else 0))*3072 + j*1024}')
    L16B = 10
    a(f'v_add_u32 v{L16B}, {21*3072}, v{L16}')
    sv = []
    for st in (8, 4, 2, 1):
        for i in range(st):
            sv.append(f'v_add_f32 v{STV+i}, v{STV+i}, v{STV+i+st}')
    sv.append(f'v_mov_b32 v{STV+1}, v{STV}')
    sv.append(f'v_permlane32_swap_b32 v{STV}, v{STV+1}')
    sv.append(f'v_mul_f32 v{STV}, {f32(-1.0/512)}, v{STV}')
    sv.append(f'v_mul_f32 v{STV+1}, {f32(1.0/512)}, v{STV+1}')
    sv.append(f'v_fma_f32 v{STV+1}, -v{STV}, v{STV}, v{STV+1}')
    sv.append(f'v_max_f32 v{STV+1}, 0, v{STV+1}')
    sv.append(f'v_add_f32 v{STV+1}, {f32(1e-5)}, v{STV+1}')
    sv.append(f'v_rsq_f32 v{RS}, v{STV+1}')
    sv.append(f'v_mul_f32 v{STV+1}, v{STV+1}, v{RS}')
    class Rec:
        def __call__(self, t): sv.append(t)
    r = Rec()
    MH, MM, ML, SH, SM, SL, TT = STV+2, STV+3, STV+4, STV+5, STV+6, STV+7, STV+8
    split3(r, STV, MH, MM, ML, TT)
    split3(r, STV+1, SH, SM, SL, TT)
    pack_hi(r, XE, MH, MM); pack_hi(r, XE+1, ML, SH); pack_hi(r, XE+2, SM, SL)
    sv.append(f'v_lshrrev_b32 v{XE+3}, 16, v{MH}')
    sv.append(f'v_mul_f32 v{RQ}, {f32(L.QSCALE if qkv else 1.4426950408889634)}, v{RS}')
    sync(0)
    stamp(a, 1)
    rd(0); rd(1)
    NS = 33
    pend = []
    for s_ in range(NS):
        c, j = divmod(s_, 4)
        if j == 0 and c + DEPTH < 8:
            pend = chunk_ops(c + DEPTH); pc = c + DEPTH
        nxt = s_ + 2
        if nxt < NS and nxt % 4 == 0 and nxt // 4 < 8:
            sync(nxt // 4)
        a(f's_waitcnt lgkmcnt({3 if s_ + 1 < NS else 0})')
        xf = v(XF + 4*s_, 4) if s_ < 32 else v(XE, 4)
        for f in range(3):
            wf = v(WB[s_ % 3] + 4*f, 4)
            cc = '0' if s_ == 0 else v(ACC[f], 16)
            if qkv and f == 2:
                a(f'{MFMA} {v(ACC[f],16)}, {xf}, {wf}, {cc}')
            else:
                a(f'{MFMA} {v(ACC[f],16)}, {wf}, {xf}, {cc}')
            if f == 0 and nxt < NS:
                rd(nxt)
            if f >= 1 and pend:
                issue(pend.pop(0))
                if not pend: done_at[pc] = nvm[0]
            for _ in range(2):
                if sv and s_ >= 1: a(sv.pop(0))
        if j == 3 and pend:
            while pend: issue(pend.pop(0))
            done_at[pc] = nvm[0]
    assert not sv
    stamp(a, 2)
    if qkv:
        a('s_lshl_b32 s55, s41, 8')
        a(f's_add_u32 s55, s55, {100*1024}')
        a(f'v_add_u32 v{T0}, s55, v{L4}')
        a(f'ds_write_b32 v{T0}, v{RS}')
        a(f'v_lshrrev_b32 v{T1}, 5, v{LN}')
        a(f'v_lshlrev_b32 v{T1}, 4, v{T1}')
        a(f'v_add_u32 v{T1}, s55, v{T1}')
        a('s_waitcnt lgkmcnt(0)')
        for j in range(4):
            a(f'ds_read_b128 {v(STV+4*j,4)}, v{T1} offset:{32*j}')
        a('s_lshl_b32 s56, s45, 17'); a('s_lshl_b32 s57, s46, 10'); a('s_add_u32 s56, s56, s57'); a('s_add_u32 s56, s56, s38')
        a('s_add_u32 s57, s56, 0x10000')
        a(f's_add_u32 s58, s56, {L.K[0]}'); a(f's_add_u32 s59, s57, {L.K[0]}')
        a(f's_add_u32 s60, s56, {L.V[0]}')
        for f in range(2):
            sc = RQ if f == 0 else RS
            for hd in range(2):
                o = WB[0] + 4*(2*f + hd)
                for r_ in range(8):
                    a(f'v_mul_f32 v{ACC[f]+8*hd+r_}, v{sc}, v{ACC[f]+8*hd+r_}')
                for r_ in range(4):
                    a(f'v_cvt_pk_bf16_f32 v{o+r_}, v{ACC[f]+8*hd+2*r_}, v{ACC[f]+8*hd+2*r_+1}')
                a(f'buffer_store_dwordx4 {v(o,4)}, v{L16}, s[4:7], s{56+2*f+hd} offen')
        a(f'v_bfe_u32 v{T0}, v{LN}, 4, 1'); a(f'v_lshlrev_b32 v{T0}, 16, v{T0}')
        a(f'v_lshrrev_b32 v{T1}, 5, v{LN}'); a(f'v_lshl_add_u32 v{T0}, v{T1}, 8, v{T0}')
        a(f'v_and_b32 v{T1}, 15, v{LN}'); a(f'v_lshl_add_u32 v{T0}, v{T1}, 4, v{T0}')
        a('s_waitcnt lgkmcnt(0)')
        for g in range(2):
            o = WB[0] + 16 + 4*g
            for r_ in range(8):
                a(f'v_mul_f32 v{ACC[2]+8*g+r_}, v{STV+8*g+r_}, v{ACC[2]+8*g+r_}')
            for r_ in range(4):
                a(f'v_cvt_pk_bf16_f32 v{o+r_}, v{ACC[2]+8*g+2*r_}, v{ACC[2]+8*g+2*r_+1}')
            a(f'buffer_store_dwordx4 {v(o,4)}, v{T0}, s[4:7], s60 offen offset:{512*g}')
    else:
        a('s_mul_i32 s56, s46, 86'); a('s_mul_i32 s57, s45, 6'); a('s_add_u32 s56, s56, s57')
        a('s_lshl_b32 s56, s56, 10'); a('s_add_u32 s56, s56, s38'); a('s_add_u32 s57, s56, 4096')
        U = XF
        for f in range(3):
            if f == 1:
                a('s_cmp_eq_u32 s45, 14')
                a(f's_cbranch_scc1 {nm}_fin')
            A = ACC[f]; Uf = U + 32*f
            for r_ in range(16):
                a(f'v_mul_f32 v{Uf+r_}, v{RQ}, v{A+r_}')
            for r_ in range(16):
                a(f'v_exp_f32 v{Uf+r_}, v{Uf+r_}')
                a(f'v_mul_f32 v{A+r_}, v{RS}, v{A+r_}')
            for r_ in range(16):
                a(f'v_add_f32 v{Uf+16+r_}, 2.0, v{Uf+r_}')
            for r_ in range(16):
                a(f'v_fma_f32 v{Uf+r_}, v{Uf+r_}, v{Uf+16+r_}, 2.0')
            for r_ in range(16):
                a(f'v_rcp_f32 v{Uf+r_}, v{Uf+r_}')
            for r_ in range(16):
                a(f'v_mul_f32 v{Uf+r_}, v{A+r_}, v{Uf+r_}')
            for r_ in range(16):
                a(f'v_fma_f32 v{A+r_}, v{Uf+r_}, -2.0, v{A+r_}')
            for g in range(2):
                o = Uf + 16 + 4*g
                for r_ in range(4):
                    a(f'v_cvt_pk_bf16_f32 v{o+r_}, v{A+8*g+2*r_}, v{A+8*g+2*r_+1}')
                k = 2*f + g
                a(f'buffer_store_dwordx4 {v(o,4)}, v{L16}, s[4:7], s{56 + k//4} offen offset:{1024*(k%4)}')
        a.label(f'{nm}_fin')
    if STAMP: a('s_waitcnt vmcnt(0)')
    stamp(a, 3)
    stamp_store(a, 4, 41)
    a.label(f'{nm}_end')
    a('s_endpgm')
    return 256, 101*1024

def gen_gemmB(p, kind, WIN=8):
    a = p.a
    wo = kind == 'wo'
    nm = kind
    KS = 32 if wo else 86
    nv = 256
    for l in range(2):
        p.entry(f'{nm}{l}_kernel', nv, nv)
        xi = 2*l + (0 if wo else 1)
        a(f's_mov_b32 s40, {L.O[l] if wo else L.ACT[l]}')
        a(f's_mov_b32 s39, {L.X[xi]}')
        fin = xi == 3
        a(f's_mov_b32 s38, {0 if fin else L.X[xi+1]}')
        a(f's_mov_b32 s37, {0 if fin else L.ST[xi+1]}')
        a(f's_mov_b32 s36, {1 if fin else 0}')
        if l == 0:
            a(f's_branch {nm}_body')
    a.label(f'{nm}_body')
    a('s_cmp_ge_u32 s2, 256')
    a(f's_cbranch_scc1 {nm}_end')
    stamp(a, 0)
    a('s_load_dwordx2 s[4:5], s[0:1], 72')
    a('s_load_dwordx2 s[8:9], s[0:1], 56')
    LN, L16, L4, T0, T1, T2, T3 = 1, 2, 3, 4, 5, 6, 7
    RES = 8
    ACC = [[16 + 16*(2*i+j) for j in range(2)] for i in range(2)]
    FB = 80
    assert FB + 16*WIN <= 256
    a(f'v_and_b32 v{LN}, 63, v0')
    a(f'v_lshlrev_b32 v{L16}, 4, v{LN}')
    a(f'v_lshlrev_b32 v{L4}, 2, v{LN}')
    a(f'v_lshrrev_b32 v{T0}, 6, v0')
    a(f'v_readfirstlane_b32 s41, v{T0}')
    a('s_and_b32 s42, s2, 7'); a('s_lshr_b32 s43, s2, 3')
    a('s_lshl_b32 s44, s42, 2'); a('s_and_b32 s45, s43, 3'); a('s_add_u32 s44, s44, s45')
    a('s_lshr_b32 s45, s43, 2')
    a('s_lshr_b32 s46, s41, 1'); a('s_and_b32 s47, s41, 1')
    a('s_lshl_b32 s48, s44, 1'); a('s_add_u32 s48, s48, s46')
    a('s_xor_b32 s49, s48, 1')
    a('s_lshl_b32 s50, s45, 1'); a('s_add_u32 s50, s50, s47')
    a('s_xor_b32 s51, s50, 1')
    if wo:
        nst = 8
        a('s_lshl_b32 s52, s41, 3')
    else:
        nst = 22
        a('s_mul_i32 s52, s41, 22')
        a('s_mul_i32 s53, s41, 21'); a('s_add_u32 s53, s53, 1')
        a('s_cmp_ge_u32 s41, 2')
        a('s_cselect_b32 s52, s53, s52')
    wbase = L.WOF if wo else L.W2F
    for i, (t, b) in enumerate(((48, 40), (49, 40), (50, None), (51, None))):
        a(f's_mul_i32 s{56+i}, s{t}, {KS}')
        a(f's_add_u32 s{56+i}, s{56+i}, s52')
        a(f's_lshl_b32 s{56+i}, s{56+i}, 10')
        a(f's_add_u32 s{56+i}, s{56+i}, ' + (f's{b}' if b else f'{wbase}'))
    a('s_lshl_b32 s60, s48, 5'); a('s_lshl_b32 s61, s50, 1'); a('s_add_u32 s60, s60, s61'); a('s_lshl_b32 s60, s60, 10')
    a('s_add_u32 s61, s60, s39')
    a('s_waitcnt lgkmcnt(0)')
    srd(a, 4, 4, L.WS_BYTES)
    srd(a, 8, 8, 2*L.MB)
    a(f'buffer_load_dwordx4 {v(RES,4)}, v{L16}, s[4:7], s61 offen')
    a(f'buffer_load_dwordx4 {v(RES+4,4)}, v{L16}, s[4:7], s61 offen offset:1024')
    def loads(st):
        fb = FB + 16*(st % WIN)
        out = []
        for i in (0, 2, 1, 3):
            out.append(f'buffer_load_dwordx4 {v(fb+4*i,4)}, v{L16}, s[4:7], s{56+i} offen offset:{1024*(st%4)}')
        if st % 4 == 3:
            for i in range(4): out.append(f's_add_u32 s{56+i}, s{56+i}, 4096')
        return out
    def mm(st):
        fb = FB + 16*(st % WIN)
        return [f'{MFMA} {v(ACC[i][j],16)}, {v(fb+8+4*j,4)}, {v(fb+4*i,4)}, {v(ACC[i][j],16)}' for (i, j) in ((0,0),(1,0),(0,1),(1,1))]
    if not wo:
        a('s_cmp_ge_u32 s41, 2')
        a(f's_cbranch_scc1 {nm}_skip0')
    for t in loads(0): a(t)
    if not wo:
        a.label(f'{nm}_skip0')
    npre = min(WIN, nst)
    for st in range(1, npre):
        for t in loads(st): a(t)
    for i in range(64):
        a(f'v_mov_b32 v{16+i}, 0')
    stamp(a, 1)
    for st in range(nst):
        issued = min(nst, st + WIN)
        a(f's_waitcnt vmcnt({4*(issued - st - 1)})')
        if st == 0 and not wo:
            a('s_cmp_ge_u32 s41, 2')
            a(f's_cbranch_scc1 {nm}_skip1')
        for t in mm(st): a(t)
        if st == 0 and not wo:
            a.label(f'{nm}_skip1')
        if st + WIN < nst:
            for t in loads(st + WIN): a(t)
    stamp(a, 2)
    for k in range(1, 4):
        a(f's_xor_b32 s62, s41, {k}')
        a(f's_mul_i32 s62, s62, {3*4096}')
        a(f'v_add_u32 v{T0+k-1}, s62, v{L16}')
    for k in range(1, 4):
        A = ACC[k >> 1][k & 1]
        for q in range(4):
            a(f'ds_write_b128 v{T0+k-1}, {v(A+4*q,4)} offset:{(k-1)*4096 + q*1024}')
    a(f's_mul_i32 s62, s41, {3*4096}')
    a(f'v_add_u32 v{T3}, s62, v{L16}')
    for r_ in range(8):
        a(f'v_lshlrev_b32 v{FB+2*r_}, 16, v{RES+r_}')
        a(f'v_and_b32 v{FB+2*r_+1}, 0xffff0000, v{RES+r_}')
    A0 = ACC[0][0]
    for r_ in range(16):
        a(f'v_add_f32 v{A0+r_}, v{A0+r_}, v{FB+r_}')
    a('s_waitcnt lgkmcnt(0)')
    a('s_barrier')
    RB = FB + 16
    for k in range(3):
        for q in range(4):
            a(f'ds_read_b128 {v(RB+16*k+4*q,4)}, v{T3} offset:{k*4096 + q*1024}')
    for k in range(3):
        a(f's_waitcnt lgkmcnt({8-4*k})')
        for r_ in range(16):
            a(f'v_add_f32 v{A0+r_}, v{A0+r_}, v{RB+16*k+r_}')
    for r_ in range(8):
        a(f'v_cvt_pk_bf16_f32 v{RES+r_}, v{A0+2*r_}, v{A0+2*r_+1}')
    if not wo:
        a('s_cmp_eq_u32 s36, 1')
        a(f's_cbranch_scc1 {nm}_final')
    a('s_add_u32 s61, s60, s38')
    a(f'buffer_store_dwordx4 {v(RES,4)}, v{L16}, s[4:7], s61 offen')
    a(f'buffer_store_dwordx4 {v(RES+4,4)}, v{L16}, s[4:7], s61 offen offset:1024')
    a(f'v_add_f32 v{T0}, v{A0}, v{A0+1}')
    a(f'v_mul_f32 v{T1}, v{A0}, v{A0}')
    a(f'v_fmac_f32 v{T1}, v{A0+1}, v{A0+1}')
    for r_ in range(2, 16):
        a(f'v_add_f32 v{T0}, v{T0}, v{A0+r_}')
        a(f'v_fmac_f32 v{T1}, v{A0+r_}, v{A0+r_}')
    a('s_lshl_b32 s62, s48, 12'); a('s_lshl_b32 s63, s50, 8'); a('s_add_u32 s62, s62, s63'); a('s_add_u32 s62, s62, s37')
    a(f'v_permlane32_swap_b32 v{T0}, v{T1}')
    a(f'v_add_f32 v{T0}, v{T0}, v{T1}')
    a(f'buffer_store_dword v{T0}, v{L4}, s[4:7], s62 offen')
    if not wo:
        a(f's_branch {nm}_fin')
        a.label(f'{nm}_final')
        a(f'v_and_b32 v{T0}, 31, v{LN}'); a(f'v_lshlrev_b32 v{T0}, 10, v{T0}')
        a(f'v_lshrrev_b32 v{T1}, 5, v{LN}'); a(f'v_lshl_add_u32 v{T0}, v{T1}, 4, v{T0}')
        a('s_lshl_b32 s62, s48, 15'); a('s_lshl_b32 s63, s50, 6'); a('s_add_u32 s62, s62, s63')
        for g in range(2):
            a(f'v_permlane32_swap_b32 v{RES+4*g}, v{RES+4*g+2}')
            a(f'v_permlane32_swap_b32 v{RES+4*g+1}, v{RES+4*g+3}')
            a(f'buffer_store_dwordx4 {v(RES+4*g,4)}, v{T0}, s[8:11], s62 offen offset:{32*g}')
        a.label(f'{nm}_fin')
    if STAMP: a('s_waitcnt vmcnt(0)')
    stamp(a, 3)
    stamp_store(a, 4, 41)
    a.label(f'{nm}_end')
    a('s_endpgm')
    return 256, 48*1024

def build_all():
    p = Prog()
    NW = int(os.environ.get('NW', 8)); UN = int(os.environ.get('UN', 8))
    cfg = {}
    cfg['prep'] = gen_prep(p)
    cfg['qkv'] = gen_gemmA(p, 'qkv')
    cfg['attn'] = gen_attn(p, NW, UN)
    cfg['wo'] = gen_gemmB(p, 'wo')
    cfg['ffn1'] = gen_gemmA(p, 'ffn1')
    cfg['ffn2'] = gen_gemmB(p, 'ffn2')
    p.launches.append(('prep_kernel', 214, *cfg['prep']))
    for l in range(2):
        for k in ('qkv', 'attn', 'wo', 'ffn1', 'ffn2'):
            p.launches.append((f'{k}{l}_kernel', 256, *cfg[k]))
    return p

if __name__ == '__main__':
    p = build_all()
    errs = p.a.check_branches()
    for e in errs: print('HAZARD', e, file=sys.stderr)
    open(sys.argv[1], 'w').write(p.text())
    print('pads', p.a.pads, 'instrs', sum(1 for i in p.a.ins if i.states), file=sys.stderr)
```

```python
import sys, os
sys.path.insert(0, 'work')
from gen import *

CNT = L.FLAGS
CST = int(os.environ.get('CST', 512))
PHS = 128 * CST
def areg(a0, n=4): return f'a[{a0}:{a0+n-1}]'
FT = 33 * 1024
WT = 3 * FT
RED = WT; PART = WT; SCR = WT + 56*1024
OPT = dict(la='256', bwin='12'); OPT.update(x.split('=') for x in os.environ.get('OPT', '').split(',') if x)

def gen_main(p):
    a = p.a
    p.entry('main_kernel', 512, 256)
    a('s_cmp_ge_u32 s2, 256')
    a('s_cbranch_scc1 main_end')
    a('s_load_dwordx2 s[4:5], s[0:1], 72')
    a('s_load_dwordx2 s[8:9], s[0:1], 56')
    LN, L16, L4, T0, T1, T2, T3 = 1, 2, 3, 4, 5, 6, 7
    RES = 8
    PT = 'v0'
    a(f'v_and_b32 v{LN}, 63, v0')
    a(f'v_lshlrev_b32 v{L16}, 4, v{LN}')
    a(f'v_lshlrev_b32 v{L4}, 2, v{LN}')
    a(f'v_lshrrev_b32 v{T0}, 6, v0')
    a(f'v_readfirstlane_b32 s12, v{T0}')
    a('s_and_b32 s13, s2, 7'); a('s_lshr_b32 s14, s2, 3')
    a('s_lshl_b32 s15, s13, 1'); a('s_and_b32 s29, s14, 1'); a('s_add_u32 s15, s15, s29')
    a('s_lshr_b32 s16, s14, 1')
    a('s_lshl_b32 s17, s15, 2'); a('s_add_u32 s17, s17, s12')
    a('s_lshl_b32 s18, s13, 2'); a('s_and_b32 s29, s14, 3'); a('s_add_u32 s18, s18, s29')
    a('s_lshr_b32 s19, s14, 2')
    a('s_lshl_b32 s20, s18, 1'); a('s_lshr_b32 s29, s12, 1'); a('s_add_u32 s20, s20, s29'); a('s_xor_b32 s21, s20, 1')
    a('s_lshl_b32 s22, s19, 1'); a('s_and_b32 s29, s12, 1'); a('s_add_u32 s22, s22, s29'); a('s_xor_b32 s23, s22, 1')
    a('s_mov_b32 s24, s18'); a('s_mov_b32 s25, s19')
    a('s_mov_b32 s26, 0'); a('s_mov_b32 s27, 0'); a(f's_mov_b32 s28, {CNT}')
    a('s_mov_b32 s30, 0x0000ffff'); a('s_mov_b32 s31, 0x0000ffff')
    a('s_lshl_b32 s32, s20, 5'); a('s_lshl_b32 s29, s22, 1'); a('s_add_u32 s32, s32, s29'); a('s_lshl_b32 s32, s32, 10')
    a('s_mul_i32 s33, s12, 22'); a('s_mul_i32 s29, s12, 21'); a('s_add_u32 s29, s29, 1')
    a('s_cmp_ge_u32 s12, 2'); a('s_cselect_b32 s33, s29, s33')
    a('s_lshl_b32 s34, s16, 2'); a('s_lshr_b32 s29, s17, 4'); a('s_add_u32 s34, s34, s29')
    a('s_lshr_b32 s29, s24, 1'); a('s_lshl_b32 s29, s29, 2'); a('s_add_u32 s35, s29, s12')
    a('s_lshr_b32 s36, s25, 1'); a('s_add_u32 s36, s36, s29')
    a('s_lshl_b32 s37, s25, 2'); a('s_add_u32 s37, s37, s12'); a('s_lshl_b32 s37, s37, 2'); a('s_lshr_b32 s29, s24, 3'); a('s_add_u32 s37, s37, s29')
    a('s_lshl_b32 s38, s18, 2'); a('s_add_u32 s38, s38, s12')
    a('s_waitcnt lgkmcnt(0)')
    srd(a, 4, 4, L.WS_BYTES)
    srd(a, 8, 8, 2*L.MB)

    stamps = [0]
    def st():
        if not STAMP: return
        i = stamps[0]; stamps[0] += 1
        a('s_memtime s[96:97]'); a('s_memrealtime s[98:99]'); a('s_waitcnt lgkmcnt(0)')
        a(f'v_writelane_b32 v0, s96, {2*i+2}')
        a(f'v_writelane_b32 v0, s98, {2*i+3}')

    fine = [16]
    def fst(tag):
        if not STAMP or OPT.get('fine') != tag: return
        i = fine[0]; fine[0] += 1
        assert i < 31
        a('s_memtime s[92:93]'); a('s_memrealtime s[94:95]'); a('s_waitcnt lgkmcnt(0)')
        a(f'v_writelane_b32 v0, s92, {2*i+2}')
        a(f'v_writelane_b32 v0, s94, {2*i+3}')

    def wtile_dma(qkv):
        ftstride = (16 if qkv else 1) * FT
        pre = [f's_mul_i32 s60, s16, {(1 if qkv else 3) * FT}',
               f's_add_u32 s60, s60, {L.WQKVF if qkv else L.W1F}',
               's_lshl_b32 s64, s12, 12',
               's_add_u32 s61, s60, s64',
               's_min_u32 s65, s12, 2',
               f's_mul_i32 s66, s65, {ftstride}',
               's_add_u32 s66, s66, s60',
               f's_add_u32 s66, s66, {32*1024}',
               f's_mul_i32 s65, s65, {FT}']
        groups = [pre]
        for half in range(2):
            for j in range(3):
                g = [f's_add_u32 m0, s64, {j*FT + half*16384}',
                     f's_add_u32 s62, s61, {j*ftstride + half*16384}']
                g += [f'buffer_load_dwordx4 v{L16}, s[4:7], s62 offen offset:{1024*q} lds' for q in range(4)]
                groups.append(g)
        groups.append([f's_add_u32 m0, s65, {32*1024}', 's_nop 0', f'buffer_load_dwordx4 v{L16}, s[4:7], s66 offen lds'])
        return groups

    FOFF = int(OPT.get('la', 0))
    def poll(ph, idxs, target, prev_layer=False):
        go = a.lab('go'); lp = a.lab('poll')
        o = ph*PHS - (5*PHS if prev_layer else 0)
        a(f's_add_u32 s50, s28, {o & 0xffffffff}')
        a(f's_mul_i32 s52, s{idxs[0]}, {CST}')
        a(f'v_mov_b32 v{T0}, s52')
        if len(idxs) > 1:
            a(f's_mul_i32 s52, s{idxs[1]}, {CST}')
            a(f'v_writelane_b32 v{T0}, s52, 1')
        a('s_mov_b32 s51, 0')
        if OPT.get('d0'): a(f's_sleep {OPT["d0"]}')
        a(f's_mov_b64 exec, {(1 << len(idxs)) - 1}')
        if OPT.get('pp'):
            a(f'buffer_load_dword v{T1}, v{T0}, s[4:7], s50 offen sc1')
            a(f's_sleep {OPT["pp"]}')
            a.label(lp)
            a(f'buffer_load_dword {PT}, v{T0}, s[4:7], s50 offen sc1')
            a('s_add_u32 s51, s51, 1')
            a('s_waitcnt vmcnt(1)')
            a(f'v_cmp_gt_u32 vcc, {target}, v{T1}')
            a('s_cmp_eq_u64 vcc, 0')
            a(f's_cbranch_scc1 {go}')
            a(f'buffer_load_dword v{T1}, v{T0}, s[4:7], s50 offen sc1')
            a('s_waitcnt vmcnt(1)')
            a(f'v_cmp_gt_u32 vcc, {target}, {PT}')
            a('s_cmp_eq_u64 vcc, 0')
            a(f's_cbranch_scc1 {go}')
            a('s_cmp_lt_u32 s51, 0x200000')
            a(f's_cbranch_scc1 {lp}')
        else:
            a.label(lp)
            pf = {'0': 'sc1', '1': 'sc0 sc1', '2': 'sc1 nt', '3': 'sc0 sc1 nt'}[OPT.get('pf', '0')]
            fo = f'offset:{FOFF} ' if OPT.get('la') else ''
            a(f'buffer_load_dword v{T1}, v{T0}, s[4:7], s50 offen {fo}{pf}')
            a('s_add_u32 s51, s51, 1')
            a('s_waitcnt vmcnt(0)')
            a(f'v_cmp_gt_u32 vcc, {1 if OPT.get("la") else target}, v{T1}')
            a('s_cmp_eq_u64 vcc, 0')
            a(f's_cbranch_scc1 {go}')
            if OPT.get('sl'): a(f's_sleep {OPT["sl"]}')
            a('s_cmp_lt_u32 s51, 0x200000')
            a(f's_cbranch_scc1 {lp}')
        a.label(go)
        a('s_mov_b64 exec, -1')
    TARGET = {0: 16, 1: 8, 2: 16, 3: 15, 4: 16}
    FOFF = int(OPT.get('la', 0))
    def signal(ph, idx, touch=None):
        a(f's_mul_i32 s50, s{idx}, {CST}')
        a('s_add_u32 s50, s50, s28')
        a(f's_add_u32 s50, s50, {ph*PHS}')
        a(f'v_mov_b32 v{T0}, 0')
        a(f'v_mov_b32 v{T1}, 1')
        if touch and OPT.get('tl'):
            a('s_mov_b32 s90, -1'); a('s_mov_b32 s91, 0xffff')
        a('s_waitcnt vmcnt(0)')
        if touch and OPT.get('tl'): a(f'v_lshlrev_b32 v{T2}, 7, v{LN}')
        a('s_mov_b64 exec, 1')
        if OPT.get('la'):
            sk = a.lab('notlast')
            a(f'buffer_atomic_add v{T1}, v{T0}, s[4:7], s50 offen sc0 sc1')
            if touch and OPT.get('tl'):
                sreg, nl = touch
                a(f's_mov_b64 exec, {hex((1 << nl) - 1)}' if nl <= 32 else 's_mov_b64 exec, s[90:91]')
                a(f'buffer_load_dword v{T3}, v{T2}, s[4:7], s{sreg} offen sc1')
                a('s_mov_b64 exec, 1')
                a('s_waitcnt vmcnt(1)')
            else:
                a('s_waitcnt vmcnt(0)')
            a(f'v_readfirstlane_b32 s52, v{T1}')
            a(f'v_mov_b32 v{T1}, 1')
            a(f's_cmp_lg_u32 s52, {TARGET[ph]-1}')
            a(f's_cbranch_scc1 {sk}')
            a(f'buffer_store_dword v{T1}, v{T0}, s[4:7], s50 offen offset:{FOFF} sc1')
            a.label(sk)
        else:
            a(f'buffer_atomic_add v{T1}, v{T0}, s[4:7], s50 offen sc1')
        a('s_mov_b64 exec, -1')

    def gemmA_pre(qkv):
        xi0 = 0 if qkv else 1
        stsz = L.ST[1] - L.ST[0]
        a('s_lshl_b32 s47, s17, 15'); a('s_lshl_b32 s29, s27, 1'); a('s_add_u32 s47, s47, s29'); a(f's_add_u32 s47, s47, {L.X[xi0]}')
        a('s_lshl_b32 s48, s17, 12'); a(f's_mul_i32 s29, s26, {2*stsz}'); a('s_add_u32 s48, s48, s29'); a(f's_add_u32 s48, s48, {L.ST[xi0]}')
        a('s_lshl_b32 s55, s12, 10'); a(f's_add_u32 s55, s55, {SCR + 1024}')
        a(f'v_add_u32 v64, s55, v{L16}')
        a(f'v_add_u32 v65, s55, v{L4}')
        a(f'v_add_u32 v70, {FT}, v{L16}')
        a(f'v_add_u32 v71, {2*FT}, v{L16}')
        if qkv:
            a('s_lshl_b32 s56, s16, 17'); a('s_lshl_b32 s57, s17, 10'); a('s_add_u32 s56, s56, s57'); a('s_add_u32 s56, s56, s27')
            a('s_add_u32 s57, s56, 0x10000')
            a(f's_add_u32 s58, s56, {L.K[0]}'); a(f's_add_u32 s59, s57, {L.K[0]}')
            a(f's_add_u32 s54, s56, {L.V[0]}')
            a('s_lshl_b32 s55, s12, 8'); a(f's_add_u32 s55, s55, {SCR}')
            a(f'v_add_u32 v76, s55, v{L4}')
            a(f'v_lshrrev_b32 v77, 5, v{LN}'); a('v_lshlrev_b32 v77, 4, v77'); a('v_add_u32 v77, s55, v77')
            a(f'v_bfe_u32 v78, v{LN}, 4, 1'); a('v_lshlrev_b32 v78, 16, v78')
            a(f'v_lshrrev_b32 v79, 5, v{LN}'); a('v_lshl_add_u32 v78, v79, 8, v78')
            a(f'v_and_b32 v79, 15, v{LN}'); a('v_lshl_add_u32 v78, v79, 4, v78')
        else:
            actsz = L.ACT[1] - L.ACT[0]
            a('s_mul_i32 s56, s17, 86'); a('s_mul_i32 s57, s16, 6'); a('s_add_u32 s56, s56, s57')
            a('s_lshl_b32 s56, s56, 10'); a(f's_mul_i32 s57, s26, {actsz}'); a('s_add_u32 s56, s56, s57')
            a(f's_add_u32 s56, s56, {L.ACT[0]}'); a('s_add_u32 s57, s56, 4096')
            a('s_cmp_eq_u32 s16, 14')
            a(f's_cselect_b32 s29, {64*L.MB}, 0')
            a('s_add_u32 s58, s56, s29'); a('s_add_u32 s57, s57, s29')

    def gemmA(qkv):
        tag = 'qkv' if qkv else 'ffn1'
        RS, RQ = 68, 69
        WA = [L16, 70, 71]
        XE = 72
        STV = 16
        WS = [32 + 4*i for i in range(8)]
        ACC = [80 + 16*i for i in range(3)]
        XF = 128
        fa, fb, fc = (1, 2, 0) if qkv else (0, 1, 2)
        nvm = [0]; at = {}
        def xload(i):
            a(f'buffer_load_dwordx4 {v(XF+4*i,4)}, v{L16}, s[4:7], s47 offen offset:{1024*(i%4)} sc1'); nvm[0] += 1
            if i % 4 == 3: a('s_add_u32 s47, s47, 4096')
            at[i] = nvm[0]
        PRE = int(OPT.get('apre', 12))
        for i in range(6): xload(i)
        for i in range(4):
            a(f'buffer_load_dwordx4 {v(STV+4*i,4)}, v{L16}, s[4:7], s48 offen offset:{1024*i} sc1'); nvm[0] += 1
        for i in range(6, PRE): xload(i)
        sv = []
        for stp in (8, 4):
            for i in range(stp): sv.append(f'v_add_f32 v{STV+i}, v{STV+i}, v{STV+i+stp}')
        sv.append(f'ds_write_b128 v64, {v(STV,4)}')
        sv.append(f'ds_read2_b32 {v(STV+4,2)}, v65 offset0:0 offset1:64')
        sv.append(f'ds_read2_b32 {v(STV+6,2)}, v65 offset0:128 offset1:192')
        sv.append('WAITDS')
        sv.append(f'v_add_f32 v{STV+4}, v{STV+4}, v{STV+5}')
        sv.append(f'v_add_f32 v{STV+6}, v{STV+6}, v{STV+7}')
        sv.append(f'v_add_f32 v{STV}, v{STV+4}, v{STV+6}')
        sv.append(f'v_mov_b32 v{STV+1}, v{STV}')
        sv.append(f'v_permlane32_swap_b32 v{STV}, v{STV+1}')
        sv.append(f'v_mul_f32 v{STV}, {f32(-1.0/512)}, v{STV}')
        sv.append(f'v_mul_f32 v{STV+1}, {f32(1.0/512)}, v{STV+1}')
        sv.append(f'v_fma_f32 v{STV+1}, -v{STV}, v{STV}, v{STV+1}')
        sv.append(f'v_max_f32 v{STV+1}, 0, v{STV+1}')
        sv.append(f'v_add_f32 v{STV+1}, {f32(1e-5)}, v{STV+1}')
        sv.append(f'v_rsq_f32 v{RS}, v{STV+1}')
        sv.append(f'v_mul_f32 v{STV+1}, v{STV+1}, v{RS}')
        r = sv.append
        MH, MM, ML, SH, SM, SL, TT = STV+2, STV+3, STV+4, STV+5, STV+6, STV+7, STV+8
        split3(r, STV, MH, MM, ML, TT); split3(r, STV+1, SH, SM, SL, TT)
        pack_hi(r, XE, MH, MM); pack_hi(r, XE+1, ML, SH); pack_hi(r, XE+2, SM, SL)
        sv.append(f'v_lshrrev_b32 v{XE+3}, 16, v{MH}')
        sv.append(f'v_mul_f32 v{RQ}, {f32(L.QSCALE if qkv else 1.4426950408889634)}, v{RS}')
        if qkv:
            sv.append(f'ds_write_b32 v76, v{RS}')
            for j in range(4): sv.append(f'ds_read_b128 {v(STV+4*j,4)}, v77 offset:{32*j}')
        def epi(f, pk):
            A = ACC[f]; out = []
            def mul(d, s0, s1b, n, bcast):
                if pk:
                    for r_ in range(0, n, 2):
                        if bcast:
                            base = s1b & ~1; o = s1b & 1
                            out.append(f'v_pk_mul_f32 {v(d+r_,2)}, {v(s0+r_,2)}, {v(base,2)} op_sel:[0,{o}] op_sel_hi:[1,{o}]')
                        else:
                            out.append(f'v_pk_mul_f32 {v(d+r_,2)}, {v(s0+r_,2)}, {v(s1b+r_,2)}')
                else:
                    for r_ in range(n): out.append(f'v_mul_f32 v{d+r_}, v{s1b if bcast else s1b+r_}, v{s0+r_}')
            for g in range(2):
                B = A + 8*g
                if qkv:
                    if f < 2: mul(B, B, RQ if f == 0 else RS, 8, True)
                    else: mul(B, B, STV + 8*g, 8, False)
                else:
                    U = STV
                    mul(U, B, RQ, 8, True)
                    for r_ in range(8): out.append(f'v_exp_f32 v{U+r_}, v{U+r_}')
                    mul(B, B, RS, 8, True)
                    if pk:
                        for r_ in range(0, 8, 2): out.append(f'v_pk_add_f32 {v(U+8+r_,2)}, {v(U+r_,2)}, 2.0 op_sel_hi:[1,0]')
                        for r_ in range(0, 8, 2): out.append(f'v_pk_fma_f32 {v(U+r_,2)}, {v(U+r_,2)}, {v(U+8+r_,2)}, 2.0 op_sel_hi:[1,1,0]')
                    else:
                        for r_ in range(8): out.append(f'v_add_f32 v{U+8+r_}, 2.0, v{U+r_}')
                        for r_ in range(8): out.append(f'v_fma_f32 v{U+r_}, v{U+r_}, v{U+8+r_}, 2.0')
                    for r_ in range(8): out.append(f'v_rcp_f32 v{U+r_}, v{U+r_}')
                    mul(U, U, B, 8, False)
                    if pk:
                        for r_ in range(0, 8, 2): out.append(f'v_pk_fma_f32 {v(B+r_,2)}, {v(U+r_,2)}, -2.0, {v(B+r_,2)} op_sel_hi:[1,0,1]')
                    else:
                        for r_ in range(8): out.append(f'v_fma_f32 v{B+r_}, v{U+r_}, -2.0, v{B+r_}')
                for r_ in range(4): out.append(f'v_cvt_pk_bf16_f32 v{B+r_}, v{B+2*r_}, v{B+2*r_+1}')
                if qkv:
                    if f < 2: out.append(f'buffer_store_dwordx4 {v(B,4)}, v{L16}, s[4:7], s{56+2*f+g} offen sc1')
                    else: out.append(f'buffer_store_dwordx4 {v(B,4)}, v78, s[4:7], s54 offen offset:{512*g} sc1')
                else:
                    k = 2*f + g
                    sreg = 56 if k < 2 else (58 if k < 4 else 57)
                    out.append(f'buffer_store_dwordx4 {v(B,4)}, v{L16}, s[4:7], s{sreg} offen offset:{1024*(k%4)} sc1')
                    if OPT.get('ds'): out.append(f'buffer_store_dwordx4 {v(B,4)}, v{L16}, s[4:7], s{sreg} offen offset:{1024*(k%4)}')
            return out
        def cost(t):
            return 8 if t.startswith(TRANS) else (16 if t.startswith('buffer') else 4)
        NB = int(OPT.get('nb', 17))
        order = []
        nb = 0
        for s_ in range(33):
            order.append((fa, s_))
            while nb < NB and nb + 1 <= (s_ + 1) * NB / 33.0:
                order.append((fb, nb)); nb += 1
        order += [(fb, k) for k in range(nb, 33)] + [(fc, k) for k in range(33)]
        last = {f: max(i for i, o in enumerate(order) if o[0] == f) for f in range(3)}
        if qkv:
            a(f's_waitcnt vmcnt({nvm[0]})')
            a('s_barrier')
        fst(tag)
        nds = [0]; dsat = {}
        def rd(i):
            f, k = order[i]
            a(f'ds_read_b128 {v(WS[i%8],4)}, v{WA[f]} offset:{k*1024}'); nds[0] += 1; dsat[i] = nds[0]
        AH = 6
        for i in range(AH): rd(i)
        nx = PRE; xw = -1
        q = list(sv); qstart = 8
        ready = {}
        N = len(order)
        for i, (f, k) in enumerate(order):
            w = f'lgkmcnt({min(15, nds[0] - dsat[i])})'
            if k < 32 and k > xw:
                w = f'vmcnt({nvm[0] - at[k]}) ' + w; xw = k
            if k == 32: assert not any(t in q for t in sv), 'stats not finished'
            a(f's_waitcnt {w}')
            if i % 10 == 0: fst(tag)
            xf = v(XF + 4*k, 4) if k < 32 else v(XE, 4)
            wf = v(WS[i % 8], 4)
            cc = '0' if k == 0 else v(ACC[f], 16)
            if qkv and f == 2: a(f'{MFMA} {v(ACC[f],16)}, {xf}, {wf}, {cc}')
            else: a(f'{MFMA} {v(ACC[f],16)}, {wf}, {xf}, {cc}')
            if i + AH < N: rd(i + AH)
            budget = 16
            if f == fa and nx < 32:
                xload(nx); nx += 1; budget = 8
            for ff in (fa, fb):
                if i == last[ff] + 3: q += epi(ff, False)
            if i >= qstart and xw >= 6:
                rem = sum(map(cost, q)) + (sum(map(cost, epi(fb, False))) if i < last[fb] + 3 and i > last[fa] else 0)
                if i > last[fa]:
                    budget = max(16, -(-rem // max(1, N - i)))
                while q and budget >= min(cost(q[0]), 8):
                    if q[0] == 'WAITDS':
                        if 'mark' not in ready: ready['mark'] = nds[0]
                        if dsat[i] < ready['mark']: break
                        q.pop(0); continue
                    t = q.pop(0); budget -= cost(t); a(t)
                    if t.startswith('buffer'): nvm[0] += 1
                    if t.startswith('ds_'): nds[0] += 1
        for t in q: a(t)
        st()
        for t in epi(fc, True): a(t)

    WOA = 0; W2A = 64
    def wB_loads(wo, steps):
        KS = 32 if wo else 86
        base = WOA if wo else W2A
        first = steps[0]
        pre = []
        for i, ft in enumerate((22, 23)):
            pre.append(f's_mul_i32 s{67+i}, s{ft}, {KS}')
            if wo:
                pre.append('s_lshl_b32 s29, s12, 3'); pre.append(f's_add_u32 s{67+i}, s{67+i}, s29')
            else:
                pre.append(f's_add_u32 s{67+i}, s{67+i}, s33')
            pre.append(f's_lshl_b32 s{67+i}, s{67+i}, 10')
            pre.append(f's_add_u32 s{67+i}, s{67+i}, {(L.WOF if wo else L.W2F) + first*1024}')
        groups = [pre]
        for n0 in range(0, len(steps), 4):
            for i in range(2):
                g = [f'buffer_load_dwordx4 {areg(base + 8*stp + 4*i)}, v{L16}, s[4:7], s{67+i} offen offset:{1024*q}' for q, stp in enumerate(steps[n0:n0+4])]
                g.append(f's_add_u32 s{67+i}, s{67+i}, 4096')
                groups.append(g)
        return groups

    def gemmB_pre(wo):
        KS = 32 if wo else 86
        actsz = L.ACT[1] - L.ACT[0]
        for i, t in enumerate((20, 21)):
            a(f's_mul_i32 s{56+i}, s{t}, {KS}')
            if wo:
                a('s_lshl_b32 s29, s12, 3'); a(f's_add_u32 s{56+i}, s{56+i}, s29')
            else:
                a(f's_add_u32 s{56+i}, s{56+i}, s33')
            a(f's_lshl_b32 s{56+i}, s{56+i}, 10')
            if wo:
                a(f's_add_u32 s{56+i}, s{56+i}, s27'); a(f's_add_u32 s{56+i}, s{56+i}, {L.O[0]}')
            else:
                a(f's_mul_i32 s29, s26, {actsz}'); a(f's_add_u32 s{56+i}, s{56+i}, s29'); a(f's_add_u32 s{56+i}, s{56+i}, {L.ACT[0]}')
        xo = 1 if wo else 2
        stsz = L.ST[1] - L.ST[0]
        a('s_lshl_b32 s58, s27, 1'); a('s_add_u32 s58, s58, s32'); a(f's_add_u32 s58, s58, {L.X[xo]}')
        a('s_lshl_b32 s59, s20, 12'); a('s_lshl_b32 s54, s22, 8'); a('s_add_u32 s59, s59, s54')
        a(f's_mul_i32 s54, s26, {2*stsz}'); a('s_add_u32 s59, s59, s54'); a(f's_add_u32 s59, s59, {L.ST[xo]}')
        A0 = 16
        for r_ in range(8):
            a(f'v_lshlrev_b32 v{A0+2*r_}, 16, v{RES+r_}')
            a(f'v_and_b32 v{A0+2*r_+1}, 0xffff0000, v{RES+r_}')
        for k in range(1, 4):
            a(f's_xor_b32 s55, s12, {k}'); a(f's_mul_i32 s55, s55, {3*4096}'); a(f's_add_u32 s55, s55, {RED + (k-1)*4096}')
            a(f'v_add_u32 v{RES+k-1}, s55, v{L16}')
        a(f's_mul_i32 s55, s12, {3*4096}'); a(f's_add_u32 s55, s55, {RED}')
        a(f'v_add_u32 v{RES+3}, s55, v{L16}')

    def gemmB(wo):
        tag = 'wo' if wo else 'ffn2'
        nst = 8 if wo else 22
        wbase = WOA if wo else W2A
        ACC = [[16 + 16*(2*i+j) for j in range(2)] for i in range(2)]
        FB = 80
        nvm = [0]; at = {}
        seq = [(1, k) for k in range(nst)] + [(0, k) for k in range(nst)]
        def load(n):
            i, k = seq[n]
            a(f'buffer_load_dwordx4 {v(FB+8*k+4*i,4)}, v{L16}, s[4:7], s{56+i} offen offset:{1024*(k%4)} sc1'); nvm[0] += 1
            if k % 4 == 3: a(f's_add_u32 s{56+i}, s{56+i}, 4096')
            at[n] = nvm[0]
        WIN = int(OPT.get('bwin', 16))
        issued = min(WIN, len(seq))
        for n in range(issued): load(n)
        LAG = 3
        def wr(k):
            A = ACC[k >> 1][k & 1]
            return [f'ds_write_b128 v{RES+k-1}, {v(A+4*q,4)} offset:{q*1024}' for q in range(4)]
        def mm(i, j, k):
            cc = '0' if (k == 0 and (i, j) != (0, 0)) else v(ACC[i][j],16)
            a(f'{MFMA} {v(ACC[i][j],16)}, {areg(wbase+8*k+4*j)}, {v(FB+8*k+4*i,4)}, {cc}')
        pend = []
        fst(tag)
        for n, (i, k) in enumerate(seq):
            a(f's_waitcnt vmcnt({nvm[0] - at[n]})')
            if n % 6 == 0: fst(tag)
            if k == 0 and not wo:
                sk = a.lab('ffn2_s0')
                a('s_cmp_lt_u32 s12, 2')
                a(f's_cbranch_scc1 {sk}')
                for r_ in range(4): a(f'v_mov_b32 v{FB+4*i+r_}, 0')
                a('s_nop 1')
                a.label(sk)
            mm(i, 1, k)
            if issued < len(seq):
                load(issued); issued += 1
            if i == 0 and k == 2: pend = wr(3) + wr(2)
            if pend: a(pend.pop(0))
            if i == 1 or k < nst - LAG:
                mm(i, 0, k)
                if pend: a(pend.pop(0))
        assert not pend
        mm(0, 0, nst - 3); mm(0, 0, nst - 2); mm(0, 0, nst - 1)
        for t in wr(1): a(t)
        st()
        a('s_waitcnt lgkmcnt(0)')
        fst('wo' if wo else 'ffn2')
        a('s_barrier')
        fst('wo' if wo else 'ffn2')
        RB = FB; A0 = ACC[0][0]
        for k in range(3):
            for q in range(4):
                a(f'ds_read_b128 {v(RB+16*k+4*q,4)}, v{RES+3} offset:{k*4096 + q*1024}')
        for k in range(3):
            a(f's_waitcnt lgkmcnt({8-4*k})')
            for r_ in range(0, 16, 2):
                a(f'v_pk_add_f32 {v(A0+r_,2)}, {v(A0+r_,2)}, {v(RB+16*k+r_,2)}')
        for r_ in range(8):
            a(f'v_cvt_pk_bf16_f32 v{RES+r_}, v{A0+2*r_}, v{A0+2*r_+1}')
        fst('wo' if wo else 'ffn2')
        if not wo:
            a('s_cmp_eq_u32 s26, 1')
            a('s_cbranch_scc1 main_final')
        a(f'buffer_store_dwordx4 {v(RES,4)}, v{L16}, s[4:7], s58 offen sc1')
        a(f'buffer_store_dwordx4 {v(RES+4,4)}, v{L16}, s[4:7], s58 offen offset:1024 sc1')
        if OPT.get('ds'):
            a(f'buffer_store_dwordx4 {v(RES,4)}, v{L16}, s[4:7], s58 offen')
            a(f'buffer_store_dwordx4 {v(RES+4,4)}, v{L16}, s[4:7], s58 offen offset:1024')
        a(f'v_pk_add_f32 {v(RB,2)}, {v(A0,2)}, {v(A0+2,2)}')
        a(f'v_pk_mul_f32 {v(RB+2,2)}, {v(A0,2)}, {v(A0,2)}')
        a(f'v_pk_fma_f32 {v(RB+2,2)}, {v(A0+2,2)}, {v(A0+2,2)}, {v(RB+2,2)}')
        for r_ in range(4, 16, 2):
            a(f'v_pk_add_f32 {v(RB,2)}, {v(RB,2)}, {v(A0+r_,2)}')
            a(f'v_pk_fma_f32 {v(RB+2,2)}, {v(A0+r_,2)}, {v(A0+r_,2)}, {v(RB+2,2)}')
        a(f'v_add_f32 v{T2}, v{RB}, v{RB+1}')
        a(f'v_add_f32 v{T3}, v{RB+2}, v{RB+3}')
        a(f'v_permlane32_swap_b32 v{T2}, v{T3}')
        a(f'v_add_f32 v{T2}, v{T2}, v{T3}')
        a(f'buffer_store_dword v{T2}, v{L4}, s[4:7], s59 offen sc1')
        if OPT.get('ds'): a(f'buffer_store_dword v{T2}, v{L4}, s[4:7], s59 offen')

    SB = [16, 32]; PB = [48, 52]; OA = [56, 72]; QF = [88, 92]; VR = 96
    def kreg(kt): return v(224 + 4*kt, 4) if kt < 8 else areg(224 + 4*(kt-8))
    def vreg(kt, g): return v(VR + 8*kt + 4*g, 4)
    VOFF, PADDR = T2, T3
    def attn_pre():
        a(f'v_and_b32 v{T0}, 27, v{LN}')
        a(f'v_cmp_eq_u32 vcc, 16, v{T0}')
        a(f'v_mov_b32 v{T1}, {ONES}')
        a(f'v_cndmask_b32 v{VR}, 0, v{T1}, vcc')
        a(f'v_cndmask_b32 v{VR+1}, 0, v{T1}, vcc')
        for r_ in range(2, 128, 2): a(f'v_pk_mov_b32 {v(VR+r_,2)}, {v(VR,2)}, {v(VR,2)}')
        a(f'v_and_b32 v{T1}, 15, v{LN}'); a(f'v_lshlrev_b32 v{T1}, 4, v{T1}')
        a(f'v_lshrrev_b32 v{VOFF}, 5, v{LN}'); a(f'v_lshl_add_u32 v{VOFF}, v{VOFF}, 8, v{T1}')
        a('s_lshl_b32 s44, s24, 16'); a('s_add_u32 s44, s44, s27')
        a('s_lshl_b32 s45, s12, 14'); a('s_add_u32 s45, s45, s44')
        a(f's_add_u32 s46, s45, {L.K[0]}'); a(f's_add_u32 s47, s45, {L.V[0]}')
        a('s_lshl_b32 s48, s25, 13'); a('s_add_u32 s48, s48, s44')
        a('s_lshl_b32 s49, s12, 1')
        a('s_add_u32 s53, s49, 2'); a('s_and_b32 s53, s53, 7'); a('s_lshl_b32 s53, s53, 10'); a('s_add_u32 s53, s53, s48')
    def attn(extra_groups):
        nvm = [0]
        atk, atv, atq = {}, {}, {}
        def qaddr(p_):
            return [f's_add_u32 s53, s49, {2 + p_}', 's_and_b32 s53, s53, 7', 's_lshl_b32 s53, s53, 10', 's_add_u32 s53, s53, s48']
        def qload(p_):
            a(f'buffer_load_dwordx4 {v(QF[p_%2],4)}, v{L16}, s[4:7], s53 offen sc1'); nvm[0] += 1
            atq[p_] = nvm[0]
        def kload(kts):
            for kt in kts:
                a(f'buffer_load_dwordx4 {kreg(kt)}, v{L16}, s[4:7], s46 offen offset:{1024*(kt%4)} sc1'); nvm[0] += 1
                if kt % 4 == 3: a('s_add_u32 s46, s46, 4096')
                atk[kt] = nvm[0]
        def vload(kts):
            a('s_mov_b64 exec, s[30:31]')
            for kt in kts:
                for g in range(2):
                    a(f'buffer_load_dwordx4 {vreg(kt,g)}, v{VOFF}, s[4:7], s47 offen offset:{1024*(kt%4)+512*g} sc1'); nvm[0] += 1
                if kt % 4 == 3: a('s_add_u32 s47, s47, 4096')
                atv[kt] = nvm[0]
            a('s_mov_b64 exec, -1')
        qload(0)
        kload([0, 1]); vload([0]); kload([2, 3]); vload([1, 2, 3]); kload([4, 5, 6, 7]); vload([4, 5, 6, 7])
        waited = [0]
        def need_vm(at):
            if at > waited[0]:
                a(f's_waitcnt vmcnt({nvm[0] - at})'); waited[0] = at
        need_vm(atk[0])
        a(f'{MFMA} {v(SB[0],16)}, {kreg(0)}, {v(QF[0],4)}, 0')
        extra = list(extra_groups)
        N = 128
        sal = []
        def hide():
            if sal: a(sal.pop(0))
        for n in range(N):
            p_, kt = divmod(n, 16)
            cur = n % 2; nx = (n + 1) % 2
            S = SB[cur]; O = OA[p_ % 2]
            e = [f'v_exp_f32 v{S+r}, v{S+r}' for r in range(16)]
            c = [f'v_cvt_pk_bf16_f32 v{PB[r//4]+r%4}, v{S+2*r}, v{S+2*r+1}' for r in range(8)]
            if kt == 0 and p_ + 1 < 8: sal += qaddr(p_ + 1)
            if kt == 3 and 1 <= p_ <= 6:
                pp = p_ - 1; slot = 2 - pp // 2
                sal += [f's_add_u32 s53, s49, {2 + pp}', 's_and_b32 s53, s53, 7', f's_mul_i32 s53, s53, {3*2304}', f's_add_u32 s53, s53, {PART + slot*2304}']
            if n + 1 < N:
                p2, kt2 = divmod(n + 1, 16)
                if p_ == 0 and kt2 > 0: need_vm(atk[kt2])
                if kt2 == 0: need_vm(atq[p2])
                a(f'{MFMA} {v(SB[nx],16)}, {kreg(kt2)}, {v(QF[p2%2],4)}, 0')
                hide()
            if p_ == 0 and kt == 1: kload([8, 9, 10, 11]); vload([8, 9, 10, 11])
            if p_ == 0 and kt == 4: kload([12, 13, 14, 15]); vload([12, 13, 14, 15])
            if kt == 2 and p_ + 1 < 8:
                assert not sal
                qload(p_ + 1)
            a(e[0]); a(e[1]); a(e[2]); a(e[3]); a(c[0]); a(c[1]); a(e[4])
            if n > 0:
                pp, pk = divmod(n - 1, 16)
                a(f'{MFMA} {v(OA[pp%2],16)}, {vreg(pk,1)}, {v(PB[1],4)}, {v(OA[pp%2],16)}')
                hide()
            if p_ >= 1 and kt >= 6 and kt % 2 == 0 and extra:
                for t in extra.pop(0):
                    a(t)
                    if t.startswith('buffer'): nvm[0] += 1
            a(e[5]); a(e[6]); a(e[7]); a(c[2]); a(c[3]); a(e[8]); a(e[9]); a(e[10])
            if p_ == 0: need_vm(atv[kt])
            a(f'{MFMA} {v(O,16)}, {vreg(kt,0)}, {v(PB[0],4)}, {"0" if kt == 0 else v(O,16)}')
            hide()
            a(e[11]); a(c[4]); a(c[5]); a(e[12]); a(e[13])
            if kt == 5 and 1 <= p_ <= 6:
                assert not sal
                Op = OA[(p_ - 1) % 2]
                a(f'v_add_u32 v{PADDR}, s53, v{L16}')
                a(f'v_add_u32 v{T0}, s53, v{L4}')
                a(f'ds_write_b128 v{PADDR}, {v(Op,4)}')
                a(f'ds_write_b128 v{PADDR}, {v(Op+4,4)} offset:1024')
                a(f'ds_write_b32 v{T0}, v{Op+8} offset:2048')
            if p_ == 7 and kt == 8:
                a('s_waitcnt vmcnt(0) lgkmcnt(0)')
                a('s_barrier')
                a(f's_mul_i32 s53, s49, {3*2304}'); a(f's_add_u32 s53, s53, {PART}')
                a(f'v_add_u32 v{PADDR}, s53, v{L16}')
                a(f'v_add_u32 v{T0}, s53, v{L4}')
            if p_ == 7 and 9 <= kt <= 14:
                i_ = kt - 9
                b = VR + 12*i_; o = i_*2304
                a(f'ds_read_b128 {v(b,4)}, v{PADDR} offset:{o}')
                a(f'ds_read_b128 {v(b+4,4)}, v{PADDR} offset:{o+1024}')
                a(f'ds_read_b32 v{b+8}, v{T0} offset:{o+2048}')
            a(e[14]); a(e[15]); a(c[6]); a(c[7])
        assert not extra, len(extra)
        a(f'{MFMA} {v(OA[1],16)}, {vreg(15,1)}, {v(PB[1],4)}, {v(OA[1],16)}')
        st()
        RB = VR
        a('s_lshl_b32 s53, s25, 3'); a('s_add_u32 s53, s53, s49')
        a('s_lshl_b32 s54, s53, 15'); a('s_lshl_b32 s55, s24, 10'); a('s_add_u32 s54, s54, s55')
        a('s_add_u32 s54, s54, s27'); a(f's_add_u32 s54, s54, {L.O[0]}')
        a(f's_mov_b32 s56, {f32(2.0**-90)}'); a(f's_mov_b32 s57, {f32(2.0**120)}')
        a('s_waitcnt lgkmcnt(0)')
        U = SB[0]
        for i in range(2):
            Oa = OA[i]
            for sl in range(3):
                b = RB + 12*(3*i + sl)
                for r_ in range(0, 8, 2): a(f'v_pk_add_f32 {v(Oa+r_,2)}, {v(Oa+r_,2)}, {v(b+r_,2)}')
                a(f'v_add_f32 v{Oa+8}, v{Oa+8}, v{b+8}')
            done = a.lab('attn_fin')
            a(f'v_add_f32 v{U}, abs(v{Oa}), abs(v{Oa+1})'); a(f'v_add_f32 v{U+1}, abs(v{Oa+2}), abs(v{Oa+3})')
            a(f'v_add_f32 v{U+2}, abs(v{Oa+4}), abs(v{Oa+5})'); a(f'v_add_f32 v{U+3}, abs(v{Oa+6}), abs(v{Oa+7})')
            a(f'v_add_f32 v{U}, v{U}, v{U+1}'); a(f'v_add_f32 v{U+2}, v{U+2}, v{U+3}'); a(f'v_add_f32 v{U}, v{U}, v{U+2}')
            a(f'v_cmp_gt_f32 s[58:59], s57, v{U}')
            a(f'v_cmp_gt_f32 s[60:61], s57, v{Oa+8}')
            a(f'v_cmp_lt_f32 s[62:63], s56, v{Oa+8}')
            a('s_and_b64 s[58:59], s[58:59], s[60:61]')
            a('s_and_b64 s[58:59], s[58:59], s[62:63]')
            a('s_cmp_eq_u64 s[58:59], -1')
            a(f's_cbranch_scc1 {done}')
            S = SB[0]; M = SB[1]; AL = M + 1; TA = M + 2; TB = M + 3
            KT = 224; V0 = 228; V1 = 232
            a(f'v_and_b32 v{TA}, 27, v{LN}')
            a(f'v_cmp_eq_u32 vcc, 16, v{TA}')
            a(f'v_mov_b32 v{TB}, {ONES}')
            a(f'v_cndmask_b32 v{TA}, 0, v{TB}, vcc')
            for r_ in range(8): a(f'v_mov_b32 v{V0+r_}, v{TA}')
            a(f'v_mov_b32 v{M}, {f32(-3.0e38)}')
            for r_ in range(16): a(f'v_mov_b32 v{Oa+r_}, 0')
            a('s_and_b32 s39, s35, 0xfffffffc')
            for q in range(4):
                a(f's_add_u32 s40, s39, {q}')
                poll(0, [40], 16)
            a(f's_add_u32 s46, s44, {L.K[0]}'); a(f's_add_u32 s47, s44, {L.V[0]}')
            a('s_mov_b32 s55, 64')
            lp = a.lab('attn_slow')
            a.label(lp)
            a(f'buffer_load_dwordx4 {v(KT,4)}, v{L16}, s[4:7], s46 offen sc1')
            a('s_mov_b64 exec, s[30:31]')
            a(f'buffer_load_dwordx4 {v(V0,4)}, v{VOFF}, s[4:7], s47 offen sc1')
            a(f'buffer_load_dwordx4 {v(V1,4)}, v{VOFF}, s[4:7], s47 offen offset:512 sc1')
            a('s_mov_b64 exec, -1')
            a('s_add_u32 s46, s46, 1024'); a('s_add_u32 s47, s47, 1024')
            a('s_waitcnt vmcnt(0)')
            a(f'{MFMA} {v(S,16)}, {v(KT,4)}, {v(QF[i],4)}, 0')
            a(f'v_max3_f32 v{TA}, v{S}, v{S+1}, v{M}')
            for r_ in range(2, 16, 2): a(f'v_max3_f32 v{TA}, v{S+r_}, v{S+r_+1}, v{TA}')
            a(f'v_mov_b32 v{TB}, v{TA}')
            a(f'v_permlane32_swap_b32 v{TA}, v{TB}')
            a(f'v_max_f32 v{TA}, v{TA}, v{TB}')
            a(f'v_sub_f32 v{AL}, v{M}, v{TA}')
            a(f'v_exp_f32 v{AL}, v{AL}')
            a(f'v_mov_b32 v{M}, v{TA}')
            for r_ in range(16):
                a(f'v_sub_f32 v{S+r_}, v{S+r_}, v{M}')
                a(f'v_exp_f32 v{S+r_}, v{S+r_}')
            for r_ in range(16): a(f'v_mul_f32 v{Oa+r_}, v{AL}, v{Oa+r_}')
            for r_ in range(8): a(f'v_cvt_pk_bf16_f32 v{PB[r_//4]+r_%4}, v{S+2*r_}, v{S+2*r_+1}')
            a(f'{MFMA} {v(Oa,16)}, {v(V0,4)}, {v(PB[0],4)}, {v(Oa,16)}')
            a(f'{MFMA} {v(Oa,16)}, {v(V1,4)}, {v(PB[1],4)}, {v(Oa,16)}')
            a('s_sub_u32 s55, s55, 1')
            a('s_cmp_lg_u32 s55, 0')
            a('s_nop 7')
            a(f's_cbranch_scc1 {lp}')
            a('s_nop 7')
            a.label(done)
            a(f'v_rcp_f32 v{U}, v{Oa+8}')
            for r_ in range(0, 8, 2): a(f'v_pk_mul_f32 {v(Oa+r_,2)}, {v(Oa+r_,2)}, {v(U,2)} op_sel:[0,0] op_sel_hi:[1,0]')
            for r_ in range(4): a(f'v_cvt_pk_bf16_f32 v{Oa+12+r_}, v{Oa+2*r_}, v{Oa+2*r_+1}')
            a(f'buffer_store_dwordx4 {v(Oa+12,4)}, v{L16}, s[4:7], s54 offen sc1')
            if i == 0: a(f's_add_u32 s54, s54, {32*1024}')

    def run_groups(gs):
        for g in gs:
            for t in g: a(t)
    def touch_wqkv():
        per = L.FT_QKV * FT // 32
        g = [f's_mul_i32 s60, s14, {per}', f's_mul_i32 s61, s12, {per//4}', 's_add_u32 s60, s60, s61', f's_add_u32 s60, s60, {L.WQKVF}',
             f'v_lshlrev_b32 v{T0}, 7, v{LN}', 's_add_u32 s61, s60, 4480',
             f'buffer_load_dword v{T1}, v{T0}, s[4:7], s60 offen', f'buffer_load_dword v{T1}, v{T0}, s[4:7], s61 offen']
        return [g]

    st()
    run_groups(wtile_dma(True))
    a(f's_add_u32 s55, s32, {L.X[0]}')
    a(f'buffer_load_dwordx4 {v(RES,4)}, v{L16}, s[4:7], s55 offen')
    a(f'buffer_load_dwordx4 {v(RES+4,4)}, v{L16}, s[4:7], s55 offen offset:1024')
    gemmA_pre(True)
    a('s_branch main_qkv')
    a.label('main_layer')
    if STAMP:
        stamps[0] = 0; st()
    gemmA_pre(True)
    poll(4, [17], 16, prev_layer=True)
    a.label('main_qkv')
    if STAMP: stamps[0] = 1
    st()
    gemmA(True)
    signal(0, 34)
    st()
    a('s_barrier')
    attn_pre()
    poll(0, [35, 36], 16)
    st()
    extra = wtile_dma(False) + wB_loads(True, list(range(8))) + wB_loads(False, list(range(20))) + touch_wqkv()
    attn(extra)
    signal(1, 37)
    st()
    a('s_barrier')
    run_groups(wB_loads(False, [20, 21]))
    gemmB_pre(True)
    poll(1, [38], 8)
    st()
    gemmB(True)
    signal(2, 20, (58, 16))
    st()
    a('s_cmp_eq_u32 s16, 15')
    a('s_cbranch_scc1 main_skip_ffn1')
    gemmA_pre(False)
    poll(2, [17], 16)
    st()
    gemmA(False)
    signal(3, 17, (56, 48))
    a.label('main_skip_ffn1')
    if STAMP: stamps[0] = 12
    st()
    a('s_barrier')
    wq = wtile_dma(True)
    a('s_cmp_eq_u32 s26, 1')
    a('s_cbranch_scc1 main_nodma')
    run_groups(wq[:4])
    a.label('main_nodma')
    gemmB_pre(False)
    poll(3, [20, 21], 15)
    st()
    gemmB(False)
    signal(4, 20, (58, 16))
    run_groups(wq[4:])
    st()
    def dump():
        if not STAMP: return
        a('s_lshl_b32 s50, s2, 2'); a('s_add_u32 s50, s50, s12'); a('s_lshl_b32 s50, s50, 1'); a('s_add_u32 s50, s50, s26')
        a('s_lshl_b32 s50, s50, 8'); a(f's_add_u32 s50, s50, {L.FLAGS + 7*L.MB}')
        a(f'buffer_store_dword v0, v{L4}, s[4:7], s50 offen')
        a('s_waitcnt vmcnt(0)')
    dump()
    a('s_mov_b32 s26, 1'); a(f's_mov_b32 s27, {2*L.MB}'); a(f's_add_u32 s28, s28, {5*PHS}')
    a('s_branch main_layer')
    a.label('main_final')
    a(f'v_and_b32 v{T0}, 31, v{LN}'); a(f'v_lshlrev_b32 v{T0}, 10, v{T0}')
    a(f'v_lshrrev_b32 v{T1}, 5, v{LN}'); a(f'v_lshl_add_u32 v{T0}, v{T1}, 4, v{T0}')
    a('s_lshl_b32 s55, s20, 15'); a('s_lshl_b32 s54, s22, 6'); a('s_add_u32 s55, s55, s54')
    for g in range(2):
        a(f'v_permlane32_swap_b32 v{RES+4*g}, v{RES+4*g+2}')
        a(f'v_permlane32_swap_b32 v{RES+4*g+1}, v{RES+4*g+3}')
        a(f'buffer_store_dwordx4 {v(RES+4*g,4)}, v{T0}, s[8:11], s55 offen offset:{32*g}')
    if STAMP:
        a('s_waitcnt vmcnt(0)')
        stamps[0] = 15
        st(); dump()
    a.label('main_end')
    a('s_endpgm')
    return 256, 160*1024

if __name__ == '__main__':
    p = Prog()
    cfg = gen_prep(p, clear=2)
    p.launches.append(('prep_kernel', 215, *cfg))
    cfg = gen_main(p)
    p.launches.append(('main_kernel', 256, *cfg))
    errs = p.a.check_branches()
    for e in errs: print('HAZARD', e, file=sys.stderr)
    open(sys.argv[1], 'w').write(p.text())
    print('pads', p.a.pads, 'instrs', sum(1 for i in p.a.ins if i.states), file=sys.stderr)
```

```python
import re

_REG = re.compile(r'\b([vsa])\[(\d+):(\d+)\]|\b([vsa])(\d+)\b|\b(vcc|exec|m0|scc)\b')

def regs_of(tok):
    out = set()
    for m in _REG.finditer(tok):
        if m.group(1):
            for i in range(int(m.group(2)), int(m.group(3)) + 1):
                out.add((m.group(1), i))
        elif m.group(4):
            out.add((m.group(4), int(m.group(5))))
        else:
            out.add((m.group(6), 0))
    return out

def split_ops(s):
    out, depth, cur = [], 0, ''
    for ch in s:
        if ch in '[(':
            depth += 1
        if ch in '])':
            depth -= 1
        if ch == ',' and depth == 0:
            out.append(cur.strip()); cur = ''
        else:
            cur += ch
    if cur.strip():
        out.append(cur.strip())
    return out

TRANS = ('v_exp_f32', 'v_log_f32', 'v_rcp_f32', 'v_rsq_f32', 'v_sqrt_f32', 'v_sin_f32', 'v_cos_f32', 'v_rcp_iflag_f32')

class Ins:
    __slots__ = ('text', 'mn', 'ops', 'kind', 'wr', 'rd', 'passes', 'srcc', 'srcab', 'label', 'target', 'states', 'sdata', 'comment')
    def __init__(self, text):
        self.text = text
        self.label = None; self.target = None
        self.wr = set(); self.rd = set(); self.kind = 'other'; self.passes = 0
        self.srcc = set(); self.srcab = set(); self.states = 1; self.sdata = set()
        t = text.split(';')[0].strip()
        if not t:
            self.kind = 'none'; self.states = 0; self.mn = ''; self.ops = []; return
        if t.endswith(':'):
            self.kind = 'label'; self.label = t[:-1]; self.states = 0; self.mn = ''; self.ops = []; return
        if t.startswith('.'):
            self.kind = 'none'; self.states = 0; self.mn = t.split()[0]; self.ops = []; return
        parts = t.split(None, 1)
        mn = parts[0]; self.mn = mn
        rest = parts[1] if len(parts) > 1 else ''
        ops = split_ops(rest); self.ops = ops
        R = [regs_of(o) for o in ops]
        allr = lambda idx: set().union(*[R[i] for i in idx]) if idx else set()
        n = len(ops)
        if mn == 's_nop':
            self.kind = 'salu'; self.states = int(ops[0], 0) + 1
        elif mn.startswith('v_mfma'):
            self.kind = 'mfma'
            self.wr = R[0]; self.srcab = R[1] | R[2]; self.srcc = R[3]; self.rd = self.srcab | self.srcc
            if '32x32x16' in mn or '32x32x8' in mn: self.passes = 8
            elif '16x16x32' in mn or '16x16x16' in mn: self.passes = 4
            elif '4x4x4' in mn: self.passes = 2
            else: raise ValueError(mn)
        elif mn.startswith('v_'):
            self.kind = 'valu'
            if mn.startswith('v_cmp'):
                self.wr = R[0]; self.rd = allr(range(1, n))
            elif mn.startswith('v_permlane') and 'swap' in mn:
                self.wr = R[0] | R[1]; self.rd = R[0] | R[1]
            elif mn.startswith(('v_add_co', 'v_sub_co', 'v_addc_co', 'v_subb_co', 'v_subrev_co')):
                self.wr = R[0] | R[1]; self.rd = allr(range(2, n))
            else:
                self.wr = R[0]; self.rd = allr(range(1, n))
                if mn.startswith(('v_fmac', 'v_dot2c', 'v_pk_fmac', 'v_writelane')):
                    self.rd |= R[0]
                if mn.startswith('v_cndmask') and n == 3:
                    self.rd.add(('vcc', 0))
            if mn.startswith('v_nop'):
                self.wr = set(); self.rd = set()
        elif mn.startswith(('buffer_', 'global_', 'flat_')):
            self.kind = 'vmem'
            lds = re.search(r'\blds\b', rest) is not None or 'load_lds' in mn
            if 'load' in mn:
                if lds:
                    self.rd = allr(range(0, n)) | {('m0', 0)}
                    self.kind = 'vmem_lds'
                else:
                    self.wr = R[0]; self.rd = allr(range(1, n))
                    if 'd16' in mn: self.rd |= R[0]
            elif 'store' in mn or 'atomic' in mn:
                self.rd = allr(range(0, n))
                d = R[0] if mn.startswith('buffer_') else R[1]
                if 'x3' in mn or 'x4' in mn:
                    self.sdata = d
                if 'atomic' in mn and 'sc0' in rest:
                    self.wr = R[0]
            else:
                pass
        elif mn.startswith('ds_'):
            self.kind = 'ds'
            if mn.startswith(('ds_read', 'ds_bpermute', 'ds_permute', 'ds_swizzle')):
                self.wr = R[0]; self.rd = allr(range(1, n))
            else:
                self.rd = allr(range(0, n))
        elif mn.startswith('s_'):
            self.kind = 'salu'
            if mn.startswith(('s_cbranch', 's_branch')):
                self.kind = 'branch'; self.target = ops[0]
                if 'vcc' in mn: self.rd = {('vcc', 0)}
                if 'exec' in mn: self.rd = {('exec', 0)}
            elif mn.startswith(('s_load', 's_buffer_load', 's_memtime', 's_memrealtime')):
                self.kind = 'smem'; self.wr = R[0]; self.rd = allr(range(1, n))
            elif mn.startswith(('s_cmp', 's_bitcmp', 's_waitcnt', 's_barrier', 's_endpgm', 's_setprio', 's_sleep', 's_setreg')):
                self.rd = allr(range(0, n))
            else:
                self.wr = R[0] if n else set(); self.rd = allr(range(1, n))
                if 'saveexec' in mn:
                    self.wr = self.wr | {('exec', 0)}
        else:
            raise ValueError('unknown instr ' + text)

def vonly(s):
    return {r for r in s if r[0] in ('v', 'a')}
def sonly(s):
    return {r for r in s if r[0] in ('s', 'vcc')}

XDL_RD = {2: 5, 4: 8, 8: 12, 16: 20}
XDL_OVL = {2: 4, 4: 6, 8: 10, 16: 18}
XDL_WAR = {2: 1, 4: 3, 8: 7, 16: 15}

def need(p, c):
    w = 0
    if p.kind == 'valu':
        pw = vonly(p.wr); ps = sonly(p.wr)
        isdot = p.mn.startswith('v_dot')
        if c.kind == 'mfma' and pw & c.rd:
            w = max(w, 3 if isdot else 2)
        if c.kind == 'valu':
            if p.mn.startswith(TRANS) and not c.mn.startswith(TRANS) and pw & (c.rd):
                w = max(w, 1)
            if c.mn.startswith(('v_readlane', 'v_readfirstlane')) and pw & c.rd:
                w = max(w, 1)
            if (c.mn.startswith('v_permlane') or 'dpp' in c.text or 'row_' in c.text or 'quad_perm' in c.text) and pw & c.rd:
                w = max(w, 2)
            if ps & c.rd:
                w = max(w, 4 if c.mn.startswith(('v_readlane', 'v_writelane')) else 2)
            if isdot and pw & (c.rd | c.wr):
                if c.mn == p.mn:
                    ab = regs_of(c.ops[1]) | regs_of(c.ops[2])
                    if pw & ab: w = max(w, 3)
                else:
                    w = max(w, 3)
            if 'op_sel' in p.text or 'sdwa' in p.text:
                if pw & (c.rd | c.wr): w = max(w, 1)
        if c.kind in ('vmem', 'vmem_lds', 'ds') and isdot and pw & c.rd:
            w = max(w, 3)
        if c.kind in ('vmem', 'vmem_lds') and ps & c.rd:
            w = max(w, 5)
        if c.kind == 'branch' and ('vcc', 0) in ps and ('vcc', 0) in c.rd:
            w = max(w, 5)
    if p.kind == 'mfma':
        d = p.wr
        if c.kind == 'mfma':
            if d & c.srcab:
                w = max(w, XDL_RD[p.passes])
            if d & c.srcc:
                if d == c.srcc and c.passes == p.passes:
                    w = max(w, 2 if p.passes == 2 else 0)
                else:
                    w = max(w, XDL_OVL[p.passes])
            elif d & c.wr:
                w = max(w, XDL_OVL[p.passes])
        elif c.kind in ('valu', 'vmem', 'vmem_lds', 'ds'):
            if d & (c.rd | c.wr):
                w = max(w, XDL_RD[p.passes])
            if c.kind == 'valu' and vonly(p.srcc) & c.wr:
                w = max(w, XDL_WAR[p.passes])
            if c.kind != 'valu' and vonly(p.srcc) & c.wr:
                w = max(w, XDL_WAR[p.passes])
    if p.kind == 'vmem' and p.sdata:
        if p.sdata & c.wr:
            w = max(w, 2 if c.kind in ('valu', 'mfma') else 1)
    if p.kind == 'salu' and ('m0', 0) in p.wr and c.kind == 'vmem_lds':
        w = max(w, 1)
    return w

MAXW = 20

class Asm:
    def __init__(self):
        self.ins = []
        self.nlab = 0
        self.autonop = True
        self.pads = 0
        self.br = {}
    def lab(self, base='L'):
        self.nlab += 1
        return f'{base}_{self.nlab}'
    def __call__(self, text):
        for line in text.split('\n'):
            if line.strip() == '':
                continue
            self._emit(Ins(line.strip()))
    def _scan(self, end, c, dist, seen):
        req = 0
        k = end - 1
        while k >= 0 and dist < MAXW:
            p = self.ins[k]
            if p.kind == 'label':
                for b in self.br.get(p.label, ()):
                    key = (b, dist)
                    if key in seen: continue
                    seen.add(key)
                    req = max(req, self._scan(b + 1, c, dist, seen))
                j = k - 1
                while j >= 0 and self.ins[j].states == 0 and self.ins[j].kind != 'label': j -= 1
                if j >= 0 and self.ins[j].mn in ('s_branch', 's_endpgm'):
                    return req
            elif p.states:
                n = need(p, c)
                if n > dist: req = max(req, n - dist)
                dist += p.states
            k -= 1
        return req
    def _emit(self, c):
        if c.states and self.autonop:
            last = self.ins[-1] if self.ins else None
            req = 0 if (last is not None and last.mn in ('s_branch', 's_endpgm')) else self._scan(len(self.ins), c, 0, set())
            while req > 0:
                k = min(req, 16)
                self.ins.append(Ins(f's_nop {k-1}')); self.pads += k
                req -= k
        if c.kind == 'branch':
            self.br.setdefault(c.target, []).append(len(self.ins))
        self.ins.append(c)
    def label(self, name):
        self.ins.append(Ins(name + ':'))
    def check_branches(self):
        errs = []
        for k, c in enumerate(self.ins):
            if not c.states: continue
            if k and self.ins[k-1].mn in ('s_branch', 's_endpgm'): continue
            r = self._scan(k, c, 0, set())
            if r: errs.append((k, c.text, r))
        return errs
    def text(self):
        out = []
        for i in self.ins:
            out.append(i.text if i.kind in ('label',) or i.text.startswith(('.', ';')) else '  ' + i.text)
        return '\n'.join(out) + '\n'

def v(a, n=1):
    return f'v{a}' if n == 1 else f'v[{a}:{a+n-1}]'
def s(a, n=1):
    return f's{a}' if n == 1 else f's[{a}:{a+n-1}]'
```

```python
import sys, struct
sys.path.insert(0, 'work')
from asmlib import *
import layout as L

def f32(x):
    return '0x%08x' % struct.unpack('<I', struct.pack('<f', x))[0]

class Prog:
    def __init__(self):
        self.a = Asm()
        self.kernels = []
        self.launches = []
    def entry(self, name, nvgpr, accum, nsgpr=102):
        a = self.a
        a(f'.globl {name}')
        a('.p2align 8')
        a(f'.type {name},@function')
        a.label(name)
        self.kernels.append((name, nvgpr, accum, nsgpr))
    def text(self):
        hdr = open('interleave_layers__mha_block__dense_activation_mish__prompt.s.ref').read().split('\n')
        hdr = [l for l in hdr[:11]]
        out = '\n'.join(hdr) + '\n'
        for n, g, b, lds in self.launches:
            out += f'; @launch kernel={n} grid=({g},1,1) block=({b},1,1) lds={lds}\n'
        out += '.amdgcn_target "amdgcn-amd-amdhsa--gfx950"\n.text\n'
        out += self.a.text()
        out += '.section .rodata,"a"\n'
        for n, nv, acc, ns in self.kernels:
            out += f'''.p2align 6
.amdhsa_kernel {n}
  .amdhsa_next_free_vgpr {nv}
  .amdhsa_next_free_sgpr {ns}
  .amdhsa_accum_offset {acc}
  .amdhsa_group_segment_fixed_size 0
  .amdhsa_kernarg_size 80
  .amdhsa_user_sgpr_count 2
  .amdhsa_user_sgpr_kernarg_segment_ptr 1
  .amdhsa_system_sgpr_workgroup_id_x 1
.end_amdhsa_kernel
'''
        return out

def srd(a, d, b, nbytes):
    if d != b:
        a(f's_mov_b32 s{d}, s{b}')
    a(f's_and_b32 s{d+1}, s{b+1}, 0xffff')
    a(f's_mov_b32 s{d+2}, {nbytes}')
    a(f's_mov_b32 s{d+3}, 0x00020000')

import os
STAMP = int(os.environ.get('STAMP', 0))
def stamp(a, idx):
    if not STAMP: return
    r = 70 + 4*idx
    a(f's_memtime s[{r}:{r+1}]')
    a(f's_memrealtime s[{r+2}:{r+3}]')
    a('s_waitcnt lgkmcnt(0)')
def stamp_store(a, n, wave_s, srdreg=4, vt=4, nw=8, base=0):
    if not STAMP: return
    a('s_lshl_b32 s66, s2, 4')
    a(f's_add_u32 s66, s66, s{wave_s}')
    a('s_lshl_b32 s66, s66, 6')
    a(f's_add_u32 s66, s66, {L.FLAGS + 6*L.MB + base}')
    a(f'v_mov_b32 v{vt+2}, 0')
    for i in range(n):
        a(f'v_mov_b32 v{vt}, s{70+4*i}')
        a(f'v_mov_b32 v{vt+1}, s{72+4*i}')
        a(f'buffer_store_dwordx2 v[{vt}:{vt+1}], v{vt+2}, s[{srdreg}:{srdreg+3}], s66 offen offset:{8*i}')
        a('s_waitcnt vmcnt(0)')

MFMA = 'v_mfma_f32_32x32x16_bf16'
ONES = '0x3f803f80'

def gen_attn(p, NW=8, UN=4):
    a = p.a
    NQ = 8 // NW
    nv = 128
    body = 'attn_body'
    p.entry('attn0_kernel', nv, nv)
    a('s_mov_b32 s40, 0')
    a(f's_branch {body}')
    p.entry('attn1_kernel', nv, nv)
    a(f's_mov_b32 s40, {2*L.MB}')
    a.label(body)
    a('s_cmp_ge_u32 s2, 256')
    a('s_cbranch_scc1 attn_end')
    stamp(a, 0)
    a('s_load_dwordx2 s[4:5], s[0:1], 72')
    VL16 = 1
    VVA = 2
    VKA = 3
    T0, T1, T2, T3 = 4, 5, 6, 7
    KB = [8, 12]
    VB = [[16, 20], [24, 28]]
    QF = [32 + 4*i for i in range(NQ)]
    base = 40
    PB = [[base + 8*i, base + 8*i + 4] for i in range(NQ)]; base += 8*NQ
    OA = [base + 16*i for i in range(NQ)]; base += 16*NQ
    SB = [[base + 32*i, base + 32*i + 16] for i in range(NQ)]; base += 32*NQ
    assert base <= 256
    nvu = (base + 7)//8*8
    p.kernels[-1] = (p.kernels[-1][0], nvu, nvu, 102); p.kernels[-2] = (p.kernels[-2][0], nvu, nvu, 102)
    a(f'v_and_b32 v{T0}, 63, v0')
    a(f'v_lshlrev_b32 v{VL16}, 4, v{T0}')
    a(f'v_lshrrev_b32 v{T1}, 6, v0')
    a(f'v_readfirstlane_b32 s41, v{T1}')
    a('s_and_b32 s42, s2, 7')
    a('s_lshl_b32 s42, s42, 2')
    a('s_lshr_b32 s43, s2, 3')
    a('s_and_b32 s44, s43, 3')
    a('s_add_u32 s42, s42, s44')
    a('s_lshr_b32 s43, s2, 5')
    a('s_lshl_b32 s44, s42, 16')
    a('s_add_u32 s44, s44, s40')
    a('s_lshl_b32 s45, s41, 10')
    a('s_add_u32 s46, s44, s45')
    a(f's_add_u32 s47, s46, {L.V[0]}')
    a(f's_add_u32 s46, s46, {L.K[0]}')
    a('s_waitcnt lgkmcnt(0)')
    srd(a, 4, 4, L.WS_BYTES)
    a('s_lshl_b32 s48, s43, 3')
    a(f's_mul_i32 s49, s41, {NQ}')
    a('s_add_u32 s48, s48, s49')
    a('s_lshl_b32 s49, s48, 10')
    a('s_add_u32 s49, s49, s44')
    assert L.Q[0] == 0
    nch = 64 // NW
    a('s_mov_b32 m0, s45')
    a(f'buffer_load_dwordx4 v{VL16}, s[4:7], s46 offen lds')
    a('s_add_u32 m0, s45, 0x10000')
    a(f'buffer_load_dwordx4 v{VL16}, s[4:7], s47 offen lds')
    for i in range(NQ):
        a(f'buffer_load_dwordx4 {v(QF[i],4)}, v{VL16}, s[4:7], s49 offen offset:{1024*i}')
    for c in range(1, nch):
        a(f's_add_u32 s46, s46, {NW*1024}')
        a(f's_add_u32 s47, s47, {NW*1024}')
        a(f's_add_u32 m0, s45, {c*NW*1024}')
        a(f'buffer_load_dwordx4 v{VL16}, s[4:7], s46 offen lds')
        a(f's_add_u32 m0, s45, {0x10000 + c*NW*1024}')
        a(f'buffer_load_dwordx4 v{VL16}, s[4:7], s47 offen lds')
    a(f'v_and_b32 v{T1}, 15, v{T0}')
    a(f'v_lshlrev_b32 v{T1}, 4, v{T1}')
    a(f'v_lshrrev_b32 v{T2}, 5, v{T0}')
    a(f'v_lshlrev_b32 v{T2}, 8, v{T2}')
    a(f'v_add_u32 v{VVA}, v{T1}, v{T2}')
    a(f'v_add_u32 v{VVA}, 0x10000, v{VVA}')
    a(f'v_mov_b32 v{VKA}, v{VL16}')
    for b in range(2):
        for g in range(2):
            for r in range(4):
                a(f'v_mov_b32 v{VB[b][g]+r}, {ONES}')
    for i in range(NQ):
        for r in range(16):
            a(f'v_mov_b32 v{OA[i]+r}, 0')
    for r in range(4):
        a(f'v_mov_b32 v{PB[NQ-1][1]+r}, 0')
    a('s_mov_b32 s50, 0x0000ffff')
    a('s_mov_b32 s51, 0x0000ffff')
    first = UN + 2
    nfirst = (first + NW - 1)//NW
    left = 2*(nch - nfirst)
    a(f's_waitcnt vmcnt({left})')
    a('s_barrier')
    stamp(a, 1)
    a(f'ds_read_b128 {v(KB[0],4)}, v{VKA}')
    a(f'ds_read_b128 {v(KB[1],4)}, v{VKA} offset:1024')
    a('s_mov_b64 exec, s[50:51]')
    a(f'ds_read_b128 {v(VB[0][0],4)}, v{VVA}')
    a(f'ds_read_b128 {v(VB[0][1],4)}, v{VVA} offset:512')
    a('s_mov_b64 exec, -1')
    a('s_waitcnt lgkmcnt(3)')
    for i in range(NQ):
        a(f'{MFMA} {v(SB[i][0],16)}, {v(KB[0],4)}, {v(QF[i],4)}, 0')
    a(f's_mov_b32 s52, {64//UN}')
    a('s_nop 7')
    a('.p2align 6')
    a.label('attn_loop')
    def pv1_of(i, buf):
        return f'{MFMA} {v(OA[i],16)}, {v(VB[buf][1],4)}, {v(PB[i][1],4)}, {v(OA[i],16)}'
    for u in range(UN):
        cur, nxt = u % 2, (u + 1) % 2
        a('s_waitcnt lgkmcnt(0)')
        seq = []
        for i in range(NQ):
            S = SB[i][cur]
            qk = f'{MFMA} {v(SB[i][nxt],16)}, {v(KB[nxt],4)}, {v(QF[i],4)}, 0'
            pv0 = f'{MFMA} {v(OA[i],16)}, {v(VB[cur][0],4)}, {v(PB[i][0],4)}, {v(OA[i],16)}'
            e = [f'v_exp_f32 v{S+r}, v{S+r}' for r in range(16)]
            c = [f'v_cvt_pk_bf16_f32 v{PB[i][r//4]+r%4}, v{S+2*r}, v{S+2*r+1}' for r in range(8)]
            seq.append((qk, pv0, e, c))
        vloads = [
            's_mov_b64 exec, s[50:51]',
            f'ds_read_b128 {v(VB[nxt][0],4)}, v{VVA} offset:{(u+1)*1024}',
            f'ds_read_b128 {v(VB[nxt][1],4)}, v{VVA} offset:{(u+1)*1024+512}',
            's_mov_b64 exec, -1',
        ]
        for i, (qk, pv0, e, c) in enumerate(seq):
            a(qk)
            if i == 0:
                a(f'ds_read_b128 {v(KB[cur],4)}, v{VKA} offset:{(u+2)*1024}')
            a(e[0]); a(e[1]); a(e[2]); a(e[3])
            a(c[0]); a(c[1])
            a(e[4])
            if i == 0:
                a(pv1_of(NQ-1, nxt))
                for l in vloads: a(l)
            else:
                a(pv1_of(i-1, cur))
            a(e[5]); a(e[6]); a(e[7])
            a(c[2]); a(c[3])
            a(e[8]); a(e[9]); a(e[10])
            a(pv0)
            a(e[11])
            a(c[4]); a(c[5])
            a(e[12]); a(e[13]); a(e[14]); a(e[15])
            a(c[6]); a(c[7])
        if u == UN - 1:
            a(f'v_add_u32 v{VKA}, {UN*1024}, v{VKA}')
            a(f'v_add_u32 v{VVA}, {UN*1024}, v{VVA}')
    nit = 64 // UN
    a(f's_cmp_lt_u32 s52, {nit-2}')
    a('s_cbranch_scc1 attn_nosync')
    a(f's_cmp_eq_u32 s52, {nit-1}')
    a('s_cbranch_scc1 attn_nosync')
    a(f's_waitcnt vmcnt({nch})')
    a(f's_cmp_eq_u32 s52, {nit}')
    a('s_cbranch_scc1 attn_half')
    a('s_waitcnt vmcnt(0)')
    a.label('attn_half')
    a('s_barrier')
    a.label('attn_nosync')
    a('s_sub_u32 s52, s52, 1')
    a('s_cmp_lg_u32 s52, 0')
    a('s_cbranch_scc1 attn_loop')
    assert 3*UN + 2 <= 32 and UN % 2 == 0
    a(pv1_of(NQ-1, 1))
    a('s_waitcnt lgkmcnt(0)')
    stamp(a, 2)
    a('s_lshl_b32 s53, s48, 15')
    a('s_lshl_b32 s54, s42, 10')
    a('s_add_u32 s53, s53, s54')
    a('s_add_u32 s53, s53, s40')
    a(f's_add_u32 s53, s53, {L.O[0]}')
    a(f's_mov_b32 s56, {f32(2.0**-90)}')
    a(f's_mov_b32 s57, {f32(2.0**120)}')
    for i in range(NQ):
        Oa = OA[i]
        done = a.lab('attn_fin')
        a(f'v_add_f32 v{T0}, abs(v{Oa}), abs(v{Oa+1})')
        a(f'v_add_f32 v{T1}, abs(v{Oa+2}), abs(v{Oa+3})')
        a(f'v_add_f32 v{T2}, abs(v{Oa+4}), abs(v{Oa+5})')
        a(f'v_add_f32 v{T3}, abs(v{Oa+6}), abs(v{Oa+7})')
        a(f'v_add_f32 v{T0}, v{T0}, v{T1}')
        a(f'v_add_f32 v{T2}, v{T2}, v{T3}')
        a(f'v_add_f32 v{T0}, v{T0}, v{T2}')
        a(f'v_cmp_gt_f32 s[58:59], s57, v{T0}')
        a(f'v_cmp_gt_f32 s[60:61], s57, v{Oa+8}')
        a(f'v_cmp_lt_f32 s[62:63], s56, v{Oa+8}')
        a('s_and_b64 s[58:59], s[58:59], s[60:61]')
        a('s_and_b64 s[58:59], s[58:59], s[62:63]')
        a('s_cmp_eq_u64 s[58:59], -1')
        a(f's_cbranch_scc1 {done}')
        S = SB[i][0]; M = SB[i][1]; AL = M + 1; TA = M + 2; TB = M + 3; KA2 = M + 4; VA2 = M + 5
        a(f'v_mov_b32 v{KA2}, v{VL16}')
        a(f'v_subrev_u32 v{VA2}, 0x10000, v{VVA}')
        a(f'v_mov_b32 v{M}, {f32(-3.0e38)}')
        for r in range(16):
            a(f'v_mov_b32 v{Oa+r}, 0')
        a('s_mov_b32 s55, 64')
        lp = a.lab('attn_slow')
        a.label(lp)
        a(f'ds_read_b128 {v(KB[0],4)}, v{KA2}')
        a('s_mov_b64 exec, s[50:51]')
        a(f'ds_read_b128 {v(VB[0][0],4)}, v{VA2}')
        a(f'ds_read_b128 {v(VB[0][1],4)}, v{VA2} offset:512')
        a('s_mov_b64 exec, -1')
        a('s_waitcnt lgkmcnt(0)')
        a(f'{MFMA} {v(S,16)}, {v(KB[0],4)}, {v(QF[i],4)}, 0')
        a(f'v_add_u32 v{KA2}, 1024, v{KA2}')
        a(f'v_add_u32 v{VA2}, 1024, v{VA2}')
        a(f'v_max3_f32 v{TA}, v{S}, v{S+1}, v{M}')
        for r in range(2, 16, 2):
            a(f'v_max3_f32 v{TA}, v{S+r}, v{S+r+1}, v{TA}')
        a(f'v_mov_b32 v{TB}, v{TA}')
        a(f'v_permlane32_swap_b32 v{TA}, v{TB}')
        a(f'v_max_f32 v{TA}, v{TA}, v{TB}')
        a(f'v_sub_f32 v{AL}, v{M}, v{TA}')
        a(f'v_exp_f32 v{AL}, v{AL}')
        a(f'v_mov_b32 v{M}, v{TA}')
        for r in range(16):
            a(f'v_sub_f32 v{S+r}, v{S+r}, v{M}')
            a(f'v_exp_f32 v{S+r}, v{S+r}')
        for r in range(16):
            a(f'v_mul_f32 v{Oa+r}, v{AL}, v{Oa+r}')
        for r in range(8):
            a(f'v_cvt_pk_bf16_f32 v{PB[i][r//4]+r%4}, v{S+2*r}, v{S+2*r+1}')
        a(f'{MFMA} {v(Oa,16)}, {v(VB[0][0],4)}, {v(PB[i][0],4)}, {v(Oa,16)}')
        a(f'{MFMA} {v(Oa,16)}, {v(VB[0][1],4)}, {v(PB[i][1],4)}, {v(Oa,16)}')
        a('s_sub_u32 s55, s55, 1')
        a('s_cmp_lg_u32 s55, 0')
        a('s_nop 7')
        a(f's_cbranch_scc1 {lp}')
        a('s_nop 7')
        a.label(done)
        a(f'v_rcp_f32 v{T0}, v{Oa+8}')
        for r in range(8):
            a(f'v_mul_f32 v{Oa+r}, v{T0}, v{Oa+r}')
        for r in range(4):
            a(f'v_cvt_pk_bf16_f32 v{PB[i][0]+r}, v{Oa+2*r}, v{Oa+2*r+1}')
        a(f'buffer_store_dwordx4 {v(PB[i][0],4)}, v{VL16}, s[4:7], s53 offen')
        if i + 1 < NQ:
            a(f's_add_u32 s53, s53, {32*1024}')
    a('s_waitcnt vmcnt(0)') if STAMP else None
    stamp(a, 3)
    stamp_store(a, 4, 41)
    a.label('attn_end')
    a('s_endpgm')
    return NW * 64, 128 * 1024 + 4096


def split3(a, x, hi, mid, lo, t):
    a(f'v_and_b32 v{hi}, 0xffff0000, v{x}')
    a(f'v_sub_f32 v{t}, v{x}, v{hi}')
    a(f'v_and_b32 v{mid}, 0xffff0000, v{t}')
    a(f'v_sub_f32 v{t}, v{t}, v{mid}')
    a(f'v_and_b32 v{lo}, 0xffff0000, v{t}')
def pack_hi(a, d, lo, hi):
    a(f'v_lshrrev_b32 v{d}, 16, v{lo}')
    a(f'v_or_b32 v{d}, v{d}, v{hi}')

def gen_prep(p, clear=False, inner=False):
    a = p.a
    nv = 64
    if inner: a.label('prep_body')
    else: p.entry('prep_kernel', nv, nv)
    SC = ' sc1' if inner else ''
    def flag(idx_s, add):
        a('s_load_dwordx2 s[56:57], s[0:1], 64')
        a('v_mov_b32 v14, 0'); a('v_mov_b32 v15, 1')
        a('s_waitcnt vmcnt(0) lgkmcnt(0)')
        srd(a, 56, 56, 256)
        a('s_mov_b64 exec, 1')
        a('buffer_atomic_add v15, v14, s[56:59], 0 offen sc0 sc1')
        a('s_waitcnt vmcnt(0)')
        a('v_readfirstlane_b32 s55, v15')
        a('v_mov_b32 v15, 1')
        a('s_cmp_lg_u32 s55, 111')
        a('s_cbranch_scc1 prep_end')
        a('buffer_store_dword v15, v14, s[56:59], 0 offen offset:128 sc1')
    a(f's_cmp_ge_u32 s2, {(214, 224, 215)[int(clear)]}')
    a('s_cbranch_scc1 prep_exit')
    if inner: stamp(a, 0)
    a('s_load_dwordx4 s[8:11], s[0:1], 0')
    a('s_load_dwordx2 s[12:13], s[0:1], 16')
    a('s_load_dwordx4 s[16:19], s[0:1], 32')
    a('s_load_dwordx2 s[20:21], s[0:1], 48')
    a('s_load_dwordx2 s[4:5], s[0:1], 72')
    LN, L16, T0, T1, T2, T3 = 1, 2, 3, 4, 5, 6
    a(f'v_and_b32 v{LN}, 63, v0')
    a(f'v_lshlrev_b32 v{L16}, 4, v{LN}')
    a(f'v_lshrrev_b32 v{T0}, 6, v0')
    a(f'v_readfirstlane_b32 s41, v{T0}')
    a('s_waitcnt lgkmcnt(0)')
    srd(a, 4, 4, L.WS_BYTES)
    if int(os.environ.get('CPF', 1 if clear == 2 else 0)):
        a('s_getpc_b64 s[60:61]')
        a.label('prep_pc')
        a('s_lshr_b32 s62, s2, 3'); a('s_and_b32 s62, s62, 1'); a('s_lshl_b32 s62, s62, 15')
        a('s_add_u32 s62, s62, main_kernel-prep_pc')
        a('s_add_u32 s60, s60, s62'); a('s_addc_u32 s61, s61, 0')
        a('v_lshlrev_b32 v62, 7, v0')
        a('s_lshr_b32 s63, s2, 3'); a('s_and_b32 s63, s63, 1'); a('s_lshl_b32 s63, s63, 15')
        a('s_sub_u32 s63, main_end-main_kernel, s63')
        a('v_min_u32 v62, s63, v62')
        a('v_mov_b32 v63, s61')
        a('v_add_co_u32 v62, vcc, s60, v62')
        a('v_addc_co_u32 v63, vcc, 0, v63, vcc')
        a('global_load_dword v61, v[62:63], off')
    TLB = int(os.environ.get('TLB', 0))
    if TLB == 1:
        a(f'v_lshlrev_b32 v60, 21, v{LN}')
        a(f'v_min_u32 v60, {L.WS_USED - 4}, v60')
        a('buffer_load_dword v61, v60, s[4:7], 0 offen')
    if TLB == 2:
        a('s_lshr_b32 s42, s2, 3'); a('s_lshl_b32 s42, s42, 21')
        a(f'v_lshlrev_b32 v60, 15, v{LN}')
        a('v_add_u32 v60, s42, v60')
        a(f'v_min_u32 v60, {L.WS_USED - 4}, v60')
        a('buffer_load_dword v61, v60, s[4:7], 0 offen')
    if clear:
        a('s_cmp_lt_u32 s2, 214')
        a('s_cbranch_scc1 prep_noclr')
        if clear == 2:
            CST = int(os.environ.get('CST', 512))
            a(f'v_mul_u32_u24 v{T0}, {CST}, v0')
            a('v_mov_b32 v8, 0'); a('v_mov_b32 v9, 1')
            for i in range(int(os.environ.get('NCLR', 5))):
                a(f's_mov_b32 s42, {L.FLAGS + i*256*CST}')
                a(f'buffer_store_dword v8, v{T0}, s[4:7], s42 offen')
                for fo in (256,):
                    a(f'buffer_store_dword v{9 if (inner and i == 0) else 8}, v{T0}, s[4:7], s42 offen offset:{fo}')
        else:
            a('s_sub_u32 s42, s2, 214'); a('s_lshl_b32 s42, s42, 12'); a(f's_add_u32 s42, s42, {L.FLAGS}')
            a(f'v_lshlrev_b32 v{T0}, 4, v0')
            for r in range(4): a(f'v_mov_b32 v{8+r}, 0')
            a(f'buffer_store_dwordx4 v[8:11], v{T0}, s[4:7], s42 offen')
        a('s_branch prep_end')
        a.label('prep_noclr')
    a('s_cmp_ge_u32 s2, 150')
    a('s_cbranch_scc1 prep_x')
    a('s_mov_b32 s27, 0x00020000')
    lab_w1, lab_wo, lab_w2, lab_go = 'prep_w1', 'prep_wo', 'prep_w2', 'prep_go'
    a('s_cmp_ge_u32 s2, 48')
    a(f's_cbranch_scc1 {lab_w1}')
    a('s_mov_b32 s24, s10'); a('s_and_b32 s25, s11, 0xffff'); a(f's_mov_b32 s26, {512*1536*2}')
    a('s_mov_b32 s30, 3072'); a('s_mov_b32 s31, 1'); a(f's_mov_b32 s33, {L.WQKVF}'); a(f's_mov_b32 s34, {L.KSX}')
    a('s_mov_b32 s37, s2'); a('s_mov_b32 s38, 0'); a('s_mov_b32 s36, 32')
    a(f's_branch {lab_go}')
    a.label(lab_w1)
    a('s_cmp_ge_u32 s2, 91')
    a(f's_cbranch_scc1 {lab_wo}')
    a('s_mov_b32 s24, s16'); a('s_and_b32 s25, s17, 0xffff'); a(f's_mov_b32 s26, {512*1376*2}')
    a('s_mov_b32 s30, 2752'); a('s_mov_b32 s31, 2'); a(f's_mov_b32 s33, {L.W1F}'); a(f's_mov_b32 s34, {L.KSX}')
    a('s_sub_u32 s37, s2, 48'); a('s_mov_b32 s38, 0'); a('s_mov_b32 s36, 32')
    a(f's_branch {lab_go}')
    a.label(lab_wo)
    a('s_cmp_ge_u32 s2, 107')
    a(f's_cbranch_scc1 {lab_w2}')
    a('s_mov_b32 s24, s12'); a('s_and_b32 s25, s13, 0xffff'); a(f's_mov_b32 s26, {512*512*2}')
    a('s_mov_b32 s30, 1024'); a('s_mov_b32 s31, 0'); a(f's_mov_b32 s33, {L.WOF}'); a(f's_mov_b32 s34, 32')
    a('s_sub_u32 s37, s2, 91'); a('s_mov_b32 s38, 0'); a('s_mov_b32 s36, 32')
    a(f's_branch {lab_go}')
    a.label(lab_w2)
    a('s_mov_b32 s24, s20'); a('s_and_b32 s25, s21, 0xffff'); a(f's_mov_b32 s26, {1376*512*2}')
    a('s_mov_b32 s30, 1024'); a('s_mov_b32 s31, 0'); a(f's_mov_b32 s33, {L.W2F}'); a(f's_mov_b32 s34, 86')
    a('s_sub_u32 s35, s2, 107'); a('s_lshl_b32 s35, s35, 5')
    a(f's_mul_hi_u32 s37, s35, {(2**32 + 85)//86}')
    a('s_mul_i32 s38, s37, 86'); a('s_sub_u32 s38, s35, s38')
    a('s_mov_b32 s36, 86')
    a.label(lab_go)
    a('s_lshl_b32 s39, s41, 3')
    a('s_add_u32 s38, s38, s39')
    a('s_cmp_ge_u32 s38, s36')
    a('s_cselect_b32 s39, s36, 0'); a('s_cselect_b32 s42, 1, 0')
    a('s_sub_u32 s38, s38, s39'); a('s_add_u32 s37, s37, s42')
    a(f'v_lshrrev_b32 v{T0}, 2, v{LN}')
    a(f'v_mul_lo_u32 v{T0}, v{T0}, s30')
    a(f'v_and_b32 v{T1}, 3, v{LN}')
    a(f'v_lshl_add_u32 v{T0}, v{T1}, 4, v{T0}')
    a(f'v_lshrrev_b32 v{T1}, 5, v{LN}')
    a(f'v_lshlrev_b32 v{T1}, 2, v{T1}')
    a(f'v_bfe_u32 v{T2}, v{LN}, 2, 2')
    a(f'v_add_u32 v{T1}, v{T1}, v{T2}')
    a(f'v_lshlrev_b32 v{T1}, 6, v{T1}')
    a(f'v_bfe_u32 v{T2}, v{LN}, 4, 1')
    a(f'v_lshl_add_u32 v{T1}, v{T2}, 5, v{T1}')
    a(f'v_and_b32 v{T2}, 3, v{LN}')
    a(f'v_lshl_add_u32 v{T1}, v{T2}, 3, v{T1}')
    a('s_lshl_b32 s43, s41, 13')
    a(f'v_add_u32 v{T1}, s43, v{T1}')
    for i in range(8):
        a('s_lshl_b32 s52, s38, 4')
        a('s_mul_i32 s52, s52, s30')
        a('s_lshl_b32 s53, s37, 6')
        a('s_add_u32 s52, s52, s53')
        a(f's_add_u32 m0, s43, {i*1024}')
        a(f's_mul_i32 s{44+i}, s37, s34')
        a(f'buffer_load_dwordx4 v{T0}, s[24:27], s52 offen lds')
        a(f's_add_u32 s{44+i}, s{44+i}, s38')
        a(f's_lshl_b32 s{44+i}, s{44+i}, 10')
        a(f's_add_u32 s{44+i}, s{44+i}, s33')
        if i < 7:
            a('s_add_u32 s38, s38, 1')
            a('s_cmp_ge_u32 s38, s36')
            a('s_cselect_b32 s39, s36, 0'); a('s_cselect_b32 s42, 1, 0')
            a('s_sub_u32 s38, s38, s39'); a('s_add_u32 s37, s37, s42')
    FR = 16
    CS = 8
    a(f'v_mov_b32 v{CS}, 0')
    a(f'v_mov_b32 v{T3}, {ONES}')
    a('s_waitcnt vmcnt(0)')
    for i in range(8):
        a(f'ds_read_b64_tr_b16 {v(FR+4*i,2)}, v{T1} offset:{i*1024}')
        a(f'ds_read_b64_tr_b16 {v(FR+4*i+2,2)}, v{T1} offset:{i*1024+512}')
    a('s_waitcnt lgkmcnt(0)')
    for i in range(8):
        a(f'buffer_store_dwordx4 {v(FR+4*i,4)}, v{L16}, s[4:7], s{44+i} offen')
    a('s_cmp_eq_u32 s31, 0')
    a('s_cbranch_scc1 prep_end')
    for i in range(32):
        a(f'v_dot2_f32_bf16 v{CS}, v{FR+i}, v{T3}, v{CS}')
    a(f'v_lshlrev_b32 v{T2}, 2, v0')
    a(f'ds_write_b32 v{T2}, v{CS} offset:32768')
    a('s_waitcnt lgkmcnt(0)')
    a('s_barrier')
    a('s_cmp_lg_u32 s41, 0')
    a('s_cbranch_scc1 prep_end')
    a(f'v_and_b32 v{T2}, 31, v{LN}')
    a(f'v_lshlrev_b32 v{T2}, 2, v{T2}')
    for i in range(8):
        a(f'ds_read_b32 v{48+i}, v{T2} offset:{32768+128*i}')
    B = 9
    a(f'v_mov_b32 v{B}, 0')
    a('s_cmp_lg_u32 s31, 2')
    a('s_cbranch_scc1 prep_nobias')
    a('s_mov_b32 s24, s18'); a('s_and_b32 s25, s19, 0xffff'); a(f's_mov_b32 s26, {1376*2}')
    a('s_lshl_b32 s53, s37, 6')
    a(f'v_lshrrev_b32 v{T2}, 1, v{T2}')
    a(f'buffer_load_ushort v{B}, v{T2}, s[24:27], s53 offen')
    a('s_waitcnt vmcnt(0)')
    a(f'v_lshlrev_b32 v{B}, 16, v{B}')
    a.label('prep_nobias')
    a('s_waitcnt lgkmcnt(0)')
    a('v_add_f32 v48, v48, v49'); a('v_add_f32 v50, v50, v51'); a('v_add_f32 v52, v52, v53'); a('v_add_f32 v54, v54, v55')
    a('v_add_f32 v48, v48, v50'); a('v_add_f32 v52, v52, v54'); a('v_add_f32 v48, v48, v52')
    HI, MID, LO = 10, 11, 12
    split3(a, 48, HI, MID, LO, 13)
    pack_hi(a, 56, HI, HI); pack_hi(a, 57, HI, B); pack_hi(a, 58, B, B)
    a(f'v_lshrrev_b32 v59, 16, v{MID}')
    pack_hi(a, 60, LO, MID)
    a(f'v_cmp_gt_u32 vcc, 32, v{LN}')
    a('v_cndmask_b32 v56, v60, v56, vcc')
    a('v_cndmask_b32 v57, 0, v57, vcc')
    a('v_cndmask_b32 v58, 0, v58, vcc')
    a('v_cndmask_b32 v59, 0, v59, vcc')
    a('s_mul_i32 s52, s37, s34')
    a('s_add_u32 s52, s52, 32')
    a('s_lshl_b32 s52, s52, 10')
    a('s_add_u32 s52, s52, s33')
    a(f'buffer_store_dwordx4 v[56:59], v{L16}, s[4:7], s52 offen{SC}')
    if inner:
        a('s_cmp_lg_u32 s31, 1')
        a('s_cbranch_scc1 prep_end')
        flag(37, 0)
    a('s_branch prep_end')
    a.label('prep_x')
    srd(a, 8, 8, 2048*512*2)
    a('s_sub_u32 s42, s2, 150')
    a(f'v_and_b32 v{T0}, 31, v{LN}')
    a(f'v_lshlrev_b32 v{T0}, 10, v{T0}')
    a(f'v_lshrrev_b32 v{T1}, 5, v{LN}')
    a(f'v_lshl_add_u32 v{T0}, v{T1}, 4, v{T0}')
    a('s_lshl_b32 s43, s42, 15')
    a('s_lshl_b32 s44, s41, 8')
    a('s_add_u32 s44, s44, s43')
    for i in range(8):
        a(f'buffer_load_dwordx4 {v(FR+4*i,4)}, v{T0}, s[8:11], s44 offen offset:{32*i}')
    a('s_lshl_b32 s45, s41, 13')
    a('s_add_u32 s45, s45, s43')
    a(f's_add_u32 s45, s45, {L.X[0]}')
    a('s_add_u32 s46, s45, 4096')
    a('s_lshl_b32 s47, s42, 12')
    a('s_lshl_b32 s48, s41, 10')
    a('s_add_u32 s47, s47, s48')
    a(f's_add_u32 s47, s47, {L.ST[0]}')
    a(f'v_mov_b32 v{T3}, {ONES}')
    a(f'v_lshlrev_b32 v{T2}, 2, v{LN}')
    a('s_waitcnt vmcnt(0)')
    for i in range(8):
        a(f'v_permlane32_swap_b32 v{FR+4*i}, v{FR+4*i+2}')
        a(f'v_permlane32_swap_b32 v{FR+4*i+1}, v{FR+4*i+3}')
    for i in range(8):
        a(f'buffer_store_dwordx4 {v(FR+4*i,4)}, v{L16}, s[4:7], s{45 + i//4} offen offset:{1024*(i%4)}')
    for sl in range(4):
        s1, s2 = 48 + 2*sl, 49 + 2*sl
        a(f'v_mov_b32 v{s1}, 0'); a(f'v_mov_b32 v{s2}, 0')
        for r in range(8):
            a(f'v_dot2_f32_bf16 v{s1}, v{FR+8*sl+r}, v{T3}, v{s1}')
        for r in range(8):
            a(f'v_dot2_f32_bf16 v{s2}, v{FR+8*sl+r}, v{FR+8*sl+r}, v{s2}')
    for sl in range(4):
        s1, s2 = 48 + 2*sl, 49 + 2*sl
        a(f'v_permlane32_swap_b32 v{s1}, v{s2}')
        if False:
            a(f'v_add_f32 v{56+sl}, v{s1}, v{s2}')
        else:
            a(f'v_add_f32 v{s1}, v{s1}, v{s2}')
            a(f'buffer_store_dword v{s1}, v{T2}, s[4:7], s47 offen offset:{256*sl}{SC}')

    if inner:
        a('s_waitcnt vmcnt(0)')
        a('s_barrier')
        a('s_cmp_lg_u32 s41, 0')
        a('s_cbranch_scc1 prep_end')
        flag(42, 64)
    a.label('prep_end')
    if inner and STAMP:
        a('s_mov_b64 exec, -1')
        a('s_waitcnt vmcnt(0)')
        stamp(a, 1)
        stamp_store(a, 2, 41, base=256*1024)
    a.label('prep_exit')
    a('s_endpgm')
    return 256, 32768 + 1024

def gen_gemmA(p, kind, DEPTH=3):
    a = p.a
    qkv = kind == 'qkv'
    nm = kind
    nv = 256
    for l in range(2):
        p.entry(f'{nm}{l}_kernel', nv, nv)
        xi = 2*l + (0 if qkv else 1)
        a(f's_mov_b32 s40, {L.X[xi]}')
        a(f's_mov_b32 s39, {L.ST[xi]}')
        a(f's_mov_b32 s38, {2*L.MB*l if qkv else L.ACT[l]}')
        if l == 0:
            a(f's_branch {nm}_body')
    a.label(f'{nm}_body')
    a('s_cmp_ge_u32 s2, 256')
    a(f's_cbranch_scc1 {nm}_end')
    stamp(a, 0)
    a('s_load_dwordx2 s[4:5], s[0:1], 72')
    LN, L16, L4, T0, T1, T2, T3 = 1, 2, 3, 4, 5, 6, 7
    RS, RQ = 8, 9
    XE = 12
    STV = 16
    WB = [32 + 12*i for i in range(3)]
    ACC = [80 + 16*i for i in range(3)]
    XF = 128
    a(f'v_and_b32 v{LN}, 63, v0')
    a(f'v_lshlrev_b32 v{L16}, 4, v{LN}')
    a(f'v_lshlrev_b32 v{L4}, 2, v{LN}')
    a(f'v_lshrrev_b32 v{T0}, 6, v0')
    a(f'v_readfirstlane_b32 s41, v{T0}')
    a('s_and_b32 s42, s2, 7'); a('s_lshr_b32 s43, s2, 3')
    a('s_lshr_b32 s44, s42, 1'); a('s_lshl_b32 s44, s44, 2'); a('s_and_b32 s45, s43, 3'); a('s_add_u32 s44, s44, s45')
    a('s_and_b32 s45, s42, 1'); a('s_lshl_b32 s45, s45, 3'); a('s_lshr_b32 s46, s43, 2'); a('s_add_u32 s45, s45, s46')
    if not qkv:
        a('s_cmp_ge_u32 s45, 15')
        a(f's_cbranch_scc1 {nm}_end')
    a('s_lshl_b32 s46, s44, 2'); a('s_add_u32 s46, s46, s41')
    a('s_lshl_b32 s47, s46, 15'); a('s_add_u32 s47, s47, s40')
    a('s_lshl_b32 s48, s46, 12'); a('s_add_u32 s48, s48, s39')
    ftstride = (16 if qkv else 1) * L.KSX * 1024
    a(f's_mul_i32 s49, s45, {(1 if qkv else 3) * L.KSX * 1024}')
    a(f's_add_u32 s49, s49, {L.WQKVF if qkv else L.W1F}')
    a('s_lshl_b32 s50, s41, 10')
    a('s_add_u32 s51, s49, s50')
    a(f's_add_u32 s52, s51, {ftstride}')
    a(f's_add_u32 s53, s52, {ftstride}')
    a('s_mul_i32 s54, s41, 3072')
    a('s_waitcnt lgkmcnt(0)')
    srd(a, 4, 4, L.WS_BYTES)
    nvm = [0]
    def vm(t):
        a(t); nvm[0] += 1
    for i in range(16):
        vm(f'buffer_load_dword v{STV+i}, v{L4}, s[4:7], s48 offen offset:{256*i}')
    a('s_min_u32 s55, s41, 2')
    a(f's_mul_i32 s56, s55, {ftstride}')
    a('s_add_u32 s56, s56, s49')
    a(f's_add_u32 s56, s56, {32*1024}')
    a('s_lshl_b32 s55, s55, 10')
    a(f's_add_u32 m0, s55, {32*3072}')
    vm(f'buffer_load_dwordx4 v{L16}, s[4:7], s56 offen lds')
    def chunk_ops(c):
        ops = []
        for j in range(3):
            g = [f's_add_u32 m0, s54, {c*4*3072 + j*1024}',
                 f'buffer_load_dwordx4 v{L16}, s[4:7], s{51+j} offen lds',
                 f's_add_u32 s{51+j}, s{51+j}, 4096']
            ops.append(g)
        for j in range(4):
            g = [f'buffer_load_dwordx4 {v(XF+16*c+4*j,4)}, v{L16}, s[4:7], s47 offen offset:{1024*j}']
            if j == 3: g.append('s_add_u32 s47, s47, 4096')
            ops.append(g)
        return ops
    done_at = {}
    def issue(g):
        for t in g:
            if t.startswith('buffer'): vm(t)
            else: a(t)
    for c in range(DEPTH):
        for g in chunk_ops(c): issue(g)
        done_at[c] = nvm[0]
    def sync(c):
        a(f's_waitcnt vmcnt({nvm[0] - done_at[c]})')
        a('s_barrier')
    def rd(s_):
        for j in range(3):
            a(f'ds_read_b128 {v(WB[s_%3]+4*j,4)}, v{L16B if s_ >= 21 else L16} offset:{(s_ - (21 if s_ >= 21 else 0))*3072 + j*1024}')
    L16B = 10
    a(f'v_add_u32 v{L16B}, {21*3072}, v{L16}')
    sv = []
    for st in (8, 4, 2, 1):
        for i in range(st):
            sv.append(f'v_add_f32 v{STV+i}, v{STV+i}, v{STV+i+st}')
    sv.append(f'v_mov_b32 v{STV+1}, v{STV}')
    sv.append(f'v_permlane32_swap_b32 v{STV}, v{STV+1}')
    sv.append(f'v_mul_f32 v{STV}, {f32(-1.0/512)}, v{STV}')
    sv.append(f'v_mul_f32 v{STV+1}, {f32(1.0/512)}, v{STV+1}')
    sv.append(f'v_fma_f32 v{STV+1}, -v{STV}, v{STV}, v{STV+1}')
    sv.append(f'v_max_f32 v{STV+1}, 0, v{STV+1}')
    sv.append(f'v_add_f32 v{STV+1}, {f32(1e-5)}, v{STV+1}')
    sv.append(f'v_rsq_f32 v{RS}, v{STV+1}')
    sv.append(f'v_mul_f32 v{STV+1}, v{STV+1}, v{RS}')
    class Rec:
        def __call__(self, t): sv.append(t)
    r = Rec()
    MH, MM, ML, SH, SM, SL, TT = STV+2, STV+3, STV+4, STV+5, STV+6, STV+7, STV+8
    split3(r, STV, MH, MM, ML, TT)
    split3(r, STV+1, SH, SM, SL, TT)
    pack_hi(r, XE, MH, MM); pack_hi(r, XE+1, ML, SH); pack_hi(r, XE+2, SM, SL)
    sv.append(f'v_lshrrev_b32 v{XE+3}, 16, v{MH}')
    sv.append(f'v_mul_f32 v{RQ}, {f32(L.QSCALE if qkv else 1.4426950408889634)}, v{RS}')
    sync(0)
    stamp(a, 1)
    rd(0); rd(1)
    NS = 33
    pend = []
    for s_ in range(NS):
        c, j = divmod(s_, 4)
        if j == 0 and c + DEPTH < 8:
            pend = chunk_ops(c + DEPTH); pc = c + DEPTH
        nxt = s_ + 2
        if nxt < NS and nxt % 4 == 0 and nxt // 4 < 8:
            sync(nxt // 4)
        a(f's_waitcnt lgkmcnt({3 if s_ + 1 < NS else 0})')
        xf = v(XF + 4*s_, 4) if s_ < 32 else v(XE, 4)
        for f in range(3):
            wf = v(WB[s_ % 3] + 4*f, 4)
            cc = '0' if s_ == 0 else v(ACC[f], 16)
            if qkv and f == 2:
                a(f'{MFMA} {v(ACC[f],16)}, {xf}, {wf}, {cc}')
            else:
                a(f'{MFMA} {v(ACC[f],16)}, {wf}, {xf}, {cc}')
            if f == 0 and nxt < NS:
                rd(nxt)
            if f >= 1 and pend:
                issue(pend.pop(0))
                if not pend: done_at[pc] = nvm[0]
            for _ in range(2):
                if sv and s_ >= 1: a(sv.pop(0))
        if j == 3 and pend:
            while pend: issue(pend.pop(0))
            done_at[pc] = nvm[0]
    assert not sv
    stamp(a, 2)
    if qkv:
        a('s_lshl_b32 s55, s41, 8')
        a(f's_add_u32 s55, s55, {100*1024}')
        a(f'v_add_u32 v{T0}, s55, v{L4}')
        a(f'ds_write_b32 v{T0}, v{RS}')
        a(f'v_lshrrev_b32 v{T1}, 5, v{LN}')
        a(f'v_lshlrev_b32 v{T1}, 4, v{T1}')
        a(f'v_add_u32 v{T1}, s55, v{T1}')
        a('s_waitcnt lgkmcnt(0)')
        for j in range(4):
            a(f'ds_read_b128 {v(STV+4*j,4)}, v{T1} offset:{32*j}')
        a('s_lshl_b32 s56, s45, 17'); a('s_lshl_b32 s57, s46, 10'); a('s_add_u32 s56, s56, s57'); a('s_add_u32 s56, s56, s38')
        a('s_add_u32 s57, s56, 0x10000')
        a(f's_add_u32 s58, s56, {L.K[0]}'); a(f's_add_u32 s59, s57, {L.K[0]}')
        a(f's_add_u32 s60, s56, {L.V[0]}')
        for f in range(2):
            sc = RQ if f == 0 else RS
            for hd in range(2):
                o = WB[0] + 4*(2*f + hd)
                for r_ in range(8):
                    a(f'v_mul_f32 v{ACC[f]+8*hd+r_}, v{sc}, v{ACC[f]+8*hd+r_}')
                for r_ in range(4):
                    a(f'v_cvt_pk_bf16_f32 v{o+r_}, v{ACC[f]+8*hd+2*r_}, v{ACC[f]+8*hd+2*r_+1}')
                a(f'buffer_store_dwordx4 {v(o,4)}, v{L16}, s[4:7], s{56+2*f+hd} offen')
        a(f'v_bfe_u32 v{T0}, v{LN}, 4, 1'); a(f'v_lshlrev_b32 v{T0}, 16, v{T0}')
        a(f'v_lshrrev_b32 v{T1}, 5, v{LN}'); a(f'v_lshl_add_u32 v{T0}, v{T1}, 8, v{T0}')
        a(f'v_and_b32 v{T1}, 15, v{LN}'); a(f'v_lshl_add_u32 v{T0}, v{T1}, 4, v{T0}')
        a('s_waitcnt lgkmcnt(0)')
        for g in range(2):
            o = WB[0] + 16 + 4*g
            for r_ in range(8):
                a(f'v_mul_f32 v{ACC[2]+8*g+r_}, v{STV+8*g+r_}, v{ACC[2]+8*g+r_}')
            for r_ in range(4):
                a(f'v_cvt_pk_bf16_f32 v{o+r_}, v{ACC[2]+8*g+2*r_}, v{ACC[2]+8*g+2*r_+1}')
            a(f'buffer_store_dwordx4 {v(o,4)}, v{T0}, s[4:7], s60 offen offset:{512*g}')
    else:
        a('s_mul_i32 s56, s46, 86'); a('s_mul_i32 s57, s45, 6'); a('s_add_u32 s56, s56, s57')
        a('s_lshl_b32 s56, s56, 10'); a('s_add_u32 s56, s56, s38'); a('s_add_u32 s57, s56, 4096')
        U = XF
        for f in range(3):
            if f == 1:
                a('s_cmp_eq_u32 s45, 14')
                a(f's_cbranch_scc1 {nm}_fin')
            A = ACC[f]; Uf = U + 32*f
            for r_ in range(16):
                a(f'v_mul_f32 v{Uf+r_}, v{RQ}, v{A+r_}')
            for r_ in range(16):
                a(f'v_exp_f32 v{Uf+r_}, v{Uf+r_}')
                a(f'v_mul_f32 v{A+r_}, v{RS}, v{A+r_}')
            for r_ in range(16):
                a(f'v_add_f32 v{Uf+16+r_}, 2.0, v{Uf+r_}')
            for r_ in range(16):
                a(f'v_fma_f32 v{Uf+r_}, v{Uf+r_}, v{Uf+16+r_}, 2.0')
            for r_ in range(16):
                a(f'v_rcp_f32 v{Uf+r_}, v{Uf+r_}')
            for r_ in range(16):
                a(f'v_mul_f32 v{Uf+r_}, v{A+r_}, v{Uf+r_}')
            for r_ in range(16):
                a(f'v_fma_f32 v{A+r_}, v{Uf+r_}, -2.0, v{A+r_}')
            for g in range(2):
                o = Uf + 16 + 4*g
                for r_ in range(4):
                    a(f'v_cvt_pk_bf16_f32 v{o+r_}, v{A+8*g+2*r_}, v{A+8*g+2*r_+1}')
                k = 2*f + g
                a(f'buffer_store_dwordx4 {v(o,4)}, v{L16}, s[4:7], s{56 + k//4} offen offset:{1024*(k%4)}')
        a.label(f'{nm}_fin')
    if STAMP: a('s_waitcnt vmcnt(0)')
    stamp(a, 3)
    stamp_store(a, 4, 41)
    a.label(f'{nm}_end')
    a('s_endpgm')
    return 256, 101*1024

def gen_gemmB(p, kind, WIN=8):
    a = p.a
    wo = kind == 'wo'
    nm = kind
    KS = 32 if wo else 86
    nv = 256
    for l in range(2):
        p.entry(f'{nm}{l}_kernel', nv, nv)
        xi = 2*l + (0 if wo else 1)
        a(f's_mov_b32 s40, {L.O[l] if wo else L.ACT[l]}')
        a(f's_mov_b32 s39, {L.X[xi]}')
        fin = xi == 3
        a(f's_mov_b32 s38, {0 if fin else L.X[xi+1]}')
        a(f's_mov_b32 s37, {0 if fin else L.ST[xi+1]}')
        a(f's_mov_b32 s36, {1 if fin else 0}')
        if l == 0:
            a(f's_branch {nm}_body')
    a.label(f'{nm}_body')
    a('s_cmp_ge_u32 s2, 256')
    a(f's_cbranch_scc1 {nm}_end')
    stamp(a, 0)
    a('s_load_dwordx2 s[4:5], s[0:1], 72')
    a('s_load_dwordx2 s[8:9], s[0:1], 56')
    LN, L16, L4, T0, T1, T2, T3 = 1, 2, 3, 4, 5, 6, 7
    RES = 8
    ACC = [[16 + 16*(2*i+j) for j in range(2)] for i in range(2)]
    FB = 80
    assert FB + 16*WIN <= 256
    a(f'v_and_b32 v{LN}, 63, v0')
    a(f'v_lshlrev_b32 v{L16}, 4, v{LN}')
    a(f'v_lshlrev_b32 v{L4}, 2, v{LN}')
    a(f'v_lshrrev_b32 v{T0}, 6, v0')
    a(f'v_readfirstlane_b32 s41, v{T0}')
    a('s_and_b32 s42, s2, 7'); a('s_lshr_b32 s43, s2, 3')
    a('s_lshl_b32 s44, s42, 2'); a('s_and_b32 s45, s43, 3'); a('s_add_u32 s44, s44, s45')
    a('s_lshr_b32 s45, s43, 2')
    a('s_lshr_b32 s46, s41, 1'); a('s_and_b32 s47, s41, 1')
    a('s_lshl_b32 s48, s44, 1'); a('s_add_u32 s48, s48, s46')
    a('s_xor_b32 s49, s48, 1')
    a('s_lshl_b32 s50, s45, 1'); a('s_add_u32 s50, s50, s47')
    a('s_xor_b32 s51, s50, 1')
    if wo:
        nst = 8
        a('s_lshl_b32 s52, s41, 3')
    else:
        nst = 22
        a('s_mul_i32 s52, s41, 22')
        a('s_mul_i32 s53, s41, 21'); a('s_add_u32 s53, s53, 1')
        a('s_cmp_ge_u32 s41, 2')
        a('s_cselect_b32 s52, s53, s52')
    wbase = L.WOF if wo else L.W2F
    for i, (t, b) in enumerate(((48, 40), (49, 40), (50, None), (51, None))):
        a(f's_mul_i32 s{56+i}, s{t}, {KS}')
        a(f's_add_u32 s{56+i}, s{56+i}, s52')
        a(f's_lshl_b32 s{56+i}, s{56+i}, 10')
        a(f's_add_u32 s{56+i}, s{56+i}, ' + (f's{b}' if b else f'{wbase}'))
    a('s_lshl_b32 s60, s48, 5'); a('s_lshl_b32 s61, s50, 1'); a('s_add_u32 s60, s60, s61'); a('s_lshl_b32 s60, s60, 10')
    a('s_add_u32 s61, s60, s39')
    a('s_waitcnt lgkmcnt(0)')
    srd(a, 4, 4, L.WS_BYTES)
    srd(a, 8, 8, 2*L.MB)
    a(f'buffer_load_dwordx4 {v(RES,4)}, v{L16}, s[4:7], s61 offen')
    a(f'buffer_load_dwordx4 {v(RES+4,4)}, v{L16}, s[4:7], s61 offen offset:1024')
    def loads(st):
        fb = FB + 16*(st % WIN)
        out = []
        for i in (0, 2, 1, 3):
            out.append(f'buffer_load_dwordx4 {v(fb+4*i,4)}, v{L16}, s[4:7], s{56+i} offen offset:{1024*(st%4)}')
        if st % 4 == 3:
            for i in range(4): out.append(f's_add_u32 s{56+i}, s{56+i}, 4096')
        return out
    def mm(st):
        fb = FB + 16*(st % WIN)
        return [f'{MFMA} {v(ACC[i][j],16)}, {v(fb+8+4*j,4)}, {v(fb+4*i,4)}, {v(ACC[i][j],16)}' for (i, j) in ((0,0),(1,0),(0,1),(1,1))]
    if not wo:
        a('s_cmp_ge_u32 s41, 2')
        a(f's_cbranch_scc1 {nm}_skip0')
    for t in loads(0): a(t)
    if not wo:
        a.label(f'{nm}_skip0')
    npre = min(WIN, nst)
    for st in range(1, npre):
        for t in loads(st): a(t)
    for i in range(64):
        a(f'v_mov_b32 v{16+i}, 0')
    stamp(a, 1)
    for st in range(nst):
        issued = min(nst, st + WIN)
        a(f's_waitcnt vmcnt({4*(issued - st - 1)})')
        if st == 0 and not wo:
            a('s_cmp_ge_u32 s41, 2')
            a(f's_cbranch_scc1 {nm}_skip1')
        for t in mm(st): a(t)
        if st == 0 and not wo:
            a.label(f'{nm}_skip1')
        if st + WIN < nst:
            for t in loads(st + WIN): a(t)
    stamp(a, 2)
    for k in range(1, 4):
        a(f's_xor_b32 s62, s41, {k}')
        a(f's_mul_i32 s62, s62, {3*4096}')
        a(f'v_add_u32 v{T0+k-1}, s62, v{L16}')
    for k in range(1, 4):
        A = ACC[k >> 1][k & 1]
        for q in range(4):
            a(f'ds_write_b128 v{T0+k-1}, {v(A+4*q,4)} offset:{(k-1)*4096 + q*1024}')
    a(f's_mul_i32 s62, s41, {3*4096}')
    a(f'v_add_u32 v{T3}, s62, v{L16}')
    for r_ in range(8):
        a(f'v_lshlrev_b32 v{FB+2*r_}, 16, v{RES+r_}')
        a(f'v_and_b32 v{FB+2*r_+1}, 0xffff0000, v{RES+r_}')
    A0 = ACC[0][0]
    for r_ in range(16):
        a(f'v_add_f32 v{A0+r_}, v{A0+r_}, v{FB+r_}')
    a('s_waitcnt lgkmcnt(0)')
    a('s_barrier')
    RB = FB + 16
    for k in range(3):
        for q in range(4):
            a(f'ds_read_b128 {v(RB+16*k+4*q,4)}, v{T3} offset:{k*4096 + q*1024}')
    for k in range(3):
        a(f's_waitcnt lgkmcnt({8-4*k})')
        for r_ in range(16):
            a(f'v_add_f32 v{A0+r_}, v{A0+r_}, v{RB+16*k+r_}')
    for r_ in range(8):
        a(f'v_cvt_pk_bf16_f32 v{RES+r_}, v{A0+2*r_}, v{A0+2*r_+1}')
    if not wo:
        a('s_cmp_eq_u32 s36, 1')
        a(f's_cbranch_scc1 {nm}_final')
    a('s_add_u32 s61, s60, s38')
    a(f'buffer_store_dwordx4 {v(RES,4)}, v{L16}, s[4:7], s61 offen')
    a(f'buffer_store_dwordx4 {v(RES+4,4)}, v{L16}, s[4:7], s61 offen offset:1024')
    a(f'v_add_f32 v{T0}, v{A0}, v{A0+1}')
    a(f'v_mul_f32 v{T1}, v{A0}, v{A0}')
    a(f'v_fmac_f32 v{T1}, v{A0+1}, v{A0+1}')
    for r_ in range(2, 16):
        a(f'v_add_f32 v{T0}, v{T0}, v{A0+r_}')
        a(f'v_fmac_f32 v{T1}, v{A0+r_}, v{A0+r_}')
    a('s_lshl_b32 s62, s48, 12'); a('s_lshl_b32 s63, s50, 8'); a('s_add_u32 s62, s62, s63'); a('s_add_u32 s62, s62, s37')
    a(f'v_permlane32_swap_b32 v{T0}, v{T1}')
    a(f'v_add_f32 v{T0}, v{T0}, v{T1}')
    a(f'buffer_store_dword v{T0}, v{L4}, s[4:7], s62 offen')
    if not wo:
        a(f's_branch {nm}_fin')
        a.label(f'{nm}_final')
        a(f'v_and_b32 v{T0}, 31, v{LN}'); a(f'v_lshlrev_b32 v{T0}, 10, v{T0}')
        a(f'v_lshrrev_b32 v{T1}, 5, v{LN}'); a(f'v_lshl_add_u32 v{T0}, v{T1}, 4, v{T0}')
        a('s_lshl_b32 s62, s48, 15'); a('s_lshl_b32 s63, s50, 6'); a('s_add_u32 s62, s62, s63')
        for g in range(2):
            a(f'v_permlane32_swap_b32 v{RES+4*g}, v{RES+4*g+2}')
            a(f'v_permlane32_swap_b32 v{RES+4*g+1}, v{RES+4*g+3}')
            a(f'buffer_store_dwordx4 {v(RES+4*g,4)}, v{T0}, s[8:11], s62 offen offset:{32*g}')
        a.label(f'{nm}_fin')
    if STAMP: a('s_waitcnt vmcnt(0)')
    stamp(a, 3)
    stamp_store(a, 4, 41)
    a.label(f'{nm}_end')
    a('s_endpgm')
    return 256, 48*1024

def build_all():
    p = Prog()
    NW = int(os.environ.get('NW', 8)); UN = int(os.environ.get('UN', 8))
    cfg = {}
    cfg['prep'] = gen_prep(p)
    cfg['qkv'] = gen_gemmA(p, 'qkv')
    cfg['attn'] = gen_attn(p, NW, UN)
    cfg['wo'] = gen_gemmB(p, 'wo')
    cfg['ffn1'] = gen_gemmA(p, 'ffn1')
    cfg['ffn2'] = gen_gemmB(p, 'ffn2')
    p.launches.append(('prep_kernel', 214, *cfg['prep']))
    for l in range(2):
        for k in ('qkv', 'attn', 'wo', 'ffn1', 'ffn2'):
            p.launches.append((f'{k}{l}_kernel', 256, *cfg[k]))
    return p

if __name__ == '__main__':
    p = build_all()
    errs = p.a.check_branches()
    for e in errs: print('HAZARD', e, file=sys.stderr)
    open(sys.argv[1], 'w').write(p.text())
    print('pads', p.a.pads, 'instrs', sum(1 for i in p.a.ins if i.states), file=sys.stderr)
```

```python
import sys, os
sys.path.insert(0, 'work')
from gen import *

CNT = L.FLAGS
CST = 512
FOFF = 256
CB = [0, 128, 384, 448, 512]
LST = 576 * CST
def areg(a0, n=4): return f'a[{a0}:{a0+n-1}]'
FT = 33 * 1024
WT = 3 * FT
RED = WT; PART = WT; SCR = WT + 56*1024
OPT = dict(bwin='12', apre='16', nb='16', bwin2='12', gs='3'); OPT.update(x.split('=') for x in os.environ.get('OPT', '').split(',') if x)
TARGET = {0: 8, 1: 8, 2: 16, 3: 15, 4: 16}
SPIN = 0x200000
STAMPS = []
K1 = 1
W2KS = 96
NSIDE = 151
WCELL = CNT + 2*LST
KNAME = 'interleave_layers__mha_block__dense_activation_mish__prompt_kernel'


def phase0(a):
    a('s_load_dwordx4 s[8:11], s[0:1], 0')
    a('s_load_dwordx4 s[20:23], s[0:1], 64')
    a('s_getpc_b64 s[60:61]')
    a.label('p0_pc')
    a('s_and_b32 s62, s2, 8'); a('s_lshl_b32 s62, s62, 12')
    a('s_sub_u32 s63, main_end-p0_pc, s62')
    a('s_add_u32 s60, s60, s62'); a('s_addc_u32 s61, s61, 0')
    a('v_lshlrev_b32 v182, 7, v0')
    a('v_min_u32 v182, s63, v182')
    a('v_mov_b32 v183, s61')
    a('v_add_co_u32 v182, vcc, s60, v182')
    a('v_addc_co_u32 v183, vcc, 0, v183, vcc')
    a('global_load_dword v184, v[182:183], off')
    a('s_load_dwordx2 s[84:85], s[0:1], 16')
    a('s_load_dwordx4 s[88:91], s[0:1], 32')
    a('s_load_dwordx2 s[86:87], s[0:1], 48')
    LN, L16, L4, T0, T1, T2, T3 = 1, 2, 3, 4, 5, 6, 7
    a(f'v_and_b32 v{LN}, 63, v0')
    a(f'v_lshrrev_b32 v{T0}, 6, v0')
    a(f'v_readfirstlane_b32 s12, v{T0}')
    a('s_and_b32 s13, s2, 7'); a('s_lshr_b32 s14, s2, 3')
    a('s_lshl_b32 s15, s13, 2'); a('s_and_b32 s33, s14, 3'); a('s_add_u32 s15, s15, s33')
    a('s_lshr_b32 s18, s14, 2')
    a('s_add_u32 s48, s18, s13'); a('s_and_b32 s48, s48, 7')
    WSL = 12288; XB = 8*WSL; XSL = 8192
    DW, DX = 8, 9
    a(f'v_lshrrev_b32 v{T0}, 3, v{LN}')
    a(f'v_and_b32 v{T1}, 7, v{LN}')
    a(f'v_bfe_u32 v{T2}, v{LN}, 4, 1')
    a(f'v_lshlrev_b32 v{T2}, 2, v{T2}')
    a(f'v_xor_b32 v{T2}, v{T1}, v{T2}')
    a(f'v_mul_u32_u24 v{DW}, 3072, v{T0}')
    a(f'v_lshl_add_u32 v{DW}, v{T2}, 4, v{DW}')
    a(f'v_lshrrev_b32 v{T2}, 4, v{LN}')
    a(f'v_xor_b32 v{T2}, v{T1}, v{T2}')
    a(f'v_lshlrev_b32 v{DX}, 10, v{T0}')
    a(f'v_lshl_add_u32 v{DX}, v{T2}, 4, v{DX}')
    a(f'v_xor_b32 v{DX+1}, 64, v{DX}')
    a(f'v_add_u32 v{DX+1}, {8*1024 - 1024}, v{DX+1}')
    a('s_mul_i32 s40, s12, 24576'); a('s_lshl_b32 s33, s18, 7'); a('s_add_u32 s40, s40, s33')
    a('s_lshl_b32 s43, s15, 16'); a('s_lshl_b32 s33, s12, 14'); a('s_add_u32 s43, s43, s33')
    a(f's_mul_i32 s33, s48, {64*3072}'); a('s_add_u32 s40, s40, s33')
    a('s_lshl_b32 s33, s48, 7'); a('s_add_u32 s43, s43, s33')
    a(f's_mov_b32 s49, {64*3072}'); a('s_movk_i32 s51, 128')
    a('s_lshl_b32 s44, s12, 10'); a('s_lshl_b32 s45, s12, 11'); a(f's_add_u32 s45, s45, {XB}')
    a('s_sub_u32 s33, s2, 160'); a('s_lshl_b32 s34, s33, 2'); a('s_add_u32 s34, s34, s12'); a(f's_mul_i32 s34, s34, {37*256}')
    a(f's_add_u32 s34, s34, {CNT}')
    a(f'v_min_u32 v{T0}, 36, v{LN}'); a(f'v_lshlrev_b32 v{T0}, 8, v{T0}')
    a(f'v_mov_b32 v{T1}, 0')
    a('s_waitcnt lgkmcnt(0)')
    srd(a, 4, 22, L.WS_BYTES)
    srd(a, 28, 10, 512*1536*2)
    srd(a, 8, 8, 2*L.MB)
    a('s_cmp_lt_u32 s33, 16'); a('s_cselect_b32 s35, 1, 0')
    a('s_cbranch_scc0 p0_noclr')
    a(f'buffer_store_dword v{T1}, v{T0}, s[4:7], s34 offen sc1')
    a.label('p0_noclr')
    def dma_pair(sl):
        o = []
        o.append([f's_add_u32 m0, s45, {sl*XSL}', f's_add_u32 s46, s40, 1024', f'buffer_load_dwordx4 v{DX}, s[8:11], s43 offen lds'])
        o.append([f'buffer_load_dwordx4 v{DX+1}, s[8:11], s43 offen offset:1024 lds', 's_add_u32 s48, s48, 1', 's_cmp_eq_u32 s48, 8',
                  f's_cselect_b32 s50, {(128 - 1024) & 0xffffffff}, s51', f's_cselect_b32 s52, {((64 - 512)*3072) & 0xffffffff}, s49', 's_add_u32 s43, s43, s50'])
        src = ['s40', 's46', 's47', 's46', 's47', 's46']
        for n in range(6):
            h, u = divmod(n, 3)
            g = [f's_add_u32 m0, s44, {(2*sl + h)*WSL + u*4096}']
            if 0 < n < 5:
                h2, u2 = divmod(n + 1, 3)
                g.append(f's_add_u32 {src[n+1]}, s40, {h2*32*3072 + u2*1024}')
            else:
                g.append('s_nop 0' if n == 0 else 's_add_u32 s40, s40, s52')
            g.append(f'buffer_load_dwordx4 v{DW}, s[28:31], {src[n]} offen lds')
            o.append(g)
        return o
    def run(gs):
        for g in gs:
            for t in g: a(t)
    if int(OPT.get('tch', 1)):
        a('s_lshl_b32 s33, s2, 2'); a('s_add_u32 s33, s33, s12'); a('s_mul_i32 s33, s33, 1536')
        a(f'v_lshlrev_b32 v185, 7, v{LN}')
        a('s_mov_b64 exec, 0xfff')
        a('buffer_load_dword v187, v185, s[28:31], s33 offen')
        a('s_mov_b64 exec, -1')
    run(dma_pair(0))
    srd(a, 20, 20, 256)
    if int(OPT.get('tlb', 0)):
        a(f'v_lshlrev_b32 v185, 21, v{LN}'); a(f'v_min_u32 v185, {CNT}, v185')
        a('buffer_load_dword v186, v185, s[4:7], 0 offen')
        a(f'buffer_load_dword v187, v{T1}, s[20:23], 0 offen offset:192')
    run(dma_pair(1))
    a(f'v_lshlrev_b32 v{L16}, 4, v{LN}')
    a(f'v_lshlrev_b32 v{L4}, 2, v{LN}')
    a('s_lshr_b32 s19, s12, 1'); a('s_and_b32 s24, s12, 1'); a('s_xor_b32 s25, s19, s24')
    RW = 66
    a(f'v_lshrrev_b32 v{T0}, 5, v{LN}'); a(f'v_lshlrev_b32 v{T0}, 3, v{T0}')
    a(f'v_bfe_u32 v{T1}, v{LN}, 2, 2'); a(f'v_add_u32 v{T0}, v{T0}, v{T1}'); a(f'v_lshlrev_b32 v{RW}, 7, v{T0}')
    a(f'v_bfe_u32 v{T1}, v{LN}, 3, 1'); a(f'v_xor_b32 v{T1}, s24, v{T1}'); a(f'v_lshl_add_u32 v{RW}, v{T1}, 6, v{RW}')
    a(f'v_bfe_u32 v{T1}, v{LN}, 4, 1'); a(f'v_lshl_add_u32 v{RW}, v{T1}, 5, v{RW}')
    a(f'v_and_b32 v{T1}, 3, v{LN}'); a(f'v_lshl_add_u32 v{RW}, v{T1}, 3, v{RW}')
    a('s_lshl_b32 s33, s25, 11')
    a(f'v_xor_b32 v{RW}, s33, v{RW}'); a(f'v_xor_b32 v{RW+1}, 2048, v{RW}')
    a(f'v_add_u32 v70, {4*WSL}, v{RW}'); a(f'v_add_u32 v71, {4*WSL}, v{RW+1}')
    RX = 12
    a(f'v_and_b32 v{T0}, 31, v{LN}'); a(f'v_lshlrev_b32 v{T1}, 7, v{T0}')
    a(f'v_bfe_u32 v{T2}, v{LN}, 1, 3'); a(f'v_lshrrev_b32 v{T3}, 5, v{LN}'); a(f'v_xor_b32 v{T2}, v{T2}, v{T3}')
    a(f'v_lshl_add_u32 v{T1}, v{T2}, 4, v{T1}')
    a('s_lshl_b32 s33, s25, 5'); a(f'v_xor_b32 v{T1}, s33, v{T1}')
    a('s_lshl_b32 s33, s19, 12'); a(f's_add_u32 s33, s33, {XB}')
    a(f'v_add_u32 v{RX}, s33, v{T1}')
    for q in range(1, 4): a(f'v_xor_b32 v{RX+q}, {32*q}, v{RX}')
    run(dma_pair(2))
    STV = 16; RS, RQ = 68, 69; XE = 72; WE = 128
    FRG = [192, 128]
    ACC = [80 + 16*i for i in range(3)]
    S1, S2, CS, ONE, AV = 32, 33, 34, 37, 38
    for r_ in range(S1, CS + 3): a(f'v_mov_b32 v{r_}, 0')
    a(f'v_mov_b32 v{ONE}, {ONES}')
    for r_ in range(0, 48, 2): a(f'v_pk_mov_b32 {v(ACC[0]+r_,2)}, {v(S1,2)}, {v(S1,2)}')
    a('s_and_b32 s26, s2, 0xf0'); a('s_lshl_b32 s33, s13, 1'); a('s_add_u32 s26, s26, s33'); a('s_and_b32 s33, s14, 1'); a('s_add_u32 s26, s26, s33')
    a('s_mov_b32 s95, 0x00020000')
    SD, SR = 40, 41
    a('s_lshl_b32 s71, s12, 13'); a(f's_add_u32 s71, s71, {XB + 4*XSL}')
    a(f'v_lshrrev_b32 v{T0}, 5, v{LN}'); a(f'v_lshlrev_b32 v{T0}, 2, v{T0}')
    a(f'v_bfe_u32 v{T2}, v{LN}, 2, 2'); a(f'v_add_u32 v{T0}, v{T0}, v{T2}')
    a(f'v_bfe_u32 v{T2}, v{LN}, 4, 1'); a(f'v_lshlrev_b32 v{T2}, 5, v{T2}')
    a(f'v_and_b32 v{T1}, 3, v{LN}'); a(f'v_lshl_add_u32 v{T2}, v{T1}, 3, v{T2}')
    a('s_cmp_ge_u32 s26, 44'); a('s_cbranch_scc1 p0_rows')
    a('s_mov_b32 s92, s88'); a('s_mov_b32 s93, s89'); a(f's_mov_b32 s94, {512*1376*2}'); a('s_mov_b32 s65, 2')
    a('s_mov_b32 s68, s26')
    a(f's_mul_i32 s70, s68, {FT}'); a(f's_add_u32 s70, s70, {L.W1F}')
    a('s_lshl_b32 s66, s12, 13'); a('s_add_u32 s66, s66, s70'); a('s_movk_i32 s72, 1024')
    a(f's_mov_b32 s73, {16*2752}'); a(f's_mul_i32 s67, s12, {128*2752}'); a('s_lshl_b32 s33, s68, 6'); a('s_add_u32 s67, s67, s33')
    a(f'v_lshrrev_b32 v{SD}, 2, v{LN}'); a(f'v_mul_u32_u24 v{SD}, 2752, v{SD}'); a(f'v_lshl_add_u32 v{SD}, v{T1}, 4, v{SD}')
    a(f'v_lshl_add_u32 v{SR}, v{T0}, 6, v{T2}'); a(f'v_add_u32 v{SR}, s71, v{SR}')
    a('s_branch p0_prm')
    a.label('p0_rows')
    a('s_mov_b32 s65, 0'); a('s_mov_b32 s69, 0')
    a('s_mov_b32 s92, s28'); a('s_mov_b32 s93, s29'); a(f's_mov_b32 s94, {512*1536*2}')
    a('s_sub_u32 s68, s26, 44'); a('s_lshr_b32 s69, s68, 4'); a('s_and_b32 s68, s68, 15')
    a('s_movk_i32 s73, 3072'); a(f's_mov_b32 s72, {L.KSX*1024}'); a(f's_mov_b32 s70, {L.WQKVF}')
    a('s_cmp_lt_u32 s26, 92'); a('s_cbranch_scc1 p0_rows2')
    a('s_mov_b32 s92, s84'); a('s_mov_b32 s93, s85'); a(f's_mov_b32 s94, {512*512*2}'); a('s_mov_b32 s69, 0')
    a('s_movk_i32 s73, 1024'); a(f's_mov_b32 s72, {32*1024}'); a(f's_mov_b32 s70, {L.WOF}')
    a('s_cmp_lt_u32 s26, 108'); a('s_cbranch_scc1 p0_rows2')
    a('s_mov_b32 s92, s86'); a('s_mov_b32 s93, s87'); a(f's_mov_b32 s94, {1376*512*2}')
    a('s_sub_u32 s68, s26, 108'); a(f's_mov_b32 s72, {W2KS*1024}'); a(f's_mov_b32 s70, {L.W2F}')
    a(f's_cmp_ge_u32 s26, {NSIDE}'); a('s_cselect_b32 s94, 0, s94')
    a.label('p0_rows2')
    a('s_lshl_b32 s33, s68, 2'); a('s_add_u32 s33, s33, s12'); a('s_lshl_b32 s33, s33, 3'); a('s_mul_i32 s67, s33, s73')
    a('s_lshl_b32 s33, s69, 10'); a('s_add_u32 s67, s67, s33')
    a('s_lshl_b32 s33, s69, 1'); a('s_add_u32 s33, s33, s24'); a('s_lshl_b32 s33, s33, 3'); a('s_mul_i32 s66, s33, s72')
    a('s_lshl_b32 s33, s68, 1'); a('s_add_u32 s33, s33, s19'); a('s_lshl_b32 s33, s33, 10'); a('s_add_u32 s66, s66, s33'); a('s_add_u32 s66, s66, s70')
    a(f'v_mov_b32 v{SD}, v{L16}')
    a('s_lshl_b32 s33, s19, 14'); a('s_lshl_b32 s34, s24, 9'); a('s_add_u32 s33, s33, s34'); a(f's_add_u32 s33, s33, {XB + 4*XSL}')
    a(f'v_lshl_add_u32 v{SR}, v{T0}, 10, v{T2}'); a(f'v_add_u32 v{SR}, s33, v{SR}')
    a.label('p0_prm')
    a('s_and_b32 s93, s93, 0xffff')
    def side_dma():
        return [[f's_add_u32 m0, s71, {i*1024}', 's_nop 0', f'buffer_load_dwordx4 v{SD}, s[92:95], s67 offen lds', 's_add_u32 s67, s67, s73'] for i in range(8)]
    def reads(sl):
        F = FRG[sl % 2]; o = []
        for j in range(4):
            h, s_ = divmod(j, 2)
            o.append(f'ds_read_b128 {v(F+16*j,4)}, v{RX + j} offset:{sl*XSL}')
            ad = (RW if sl < 2 else 70) + s_
            for u in range(3):
                r = F + 16*j + 4 + 4*u; off = (2*(sl % 2) + h)*WSL + u*4096
                o.append(f'ds_read_b64_tr_b16 {v(r,2)}, v{ad} offset:{off}')
                o.append(f'ds_read_b64_tr_b16 {v(r+2,2)}, v{ad} offset:{off+512}')
        return o
    def mf(f, xf, wf, first):
        cc = '0' if first else v(ACC[f], 16)
        if f == 2: a(f'{MFMA} {v(ACC[f],16)}, {xf}, {wf}, {cc}')
        else: a(f'{MFMA} {v(ACC[f],16)}, {wf}, {xf}, {cc}')
    a('s_mov_b32 s36, 0')
    a(f's_waitcnt vmcnt({16 + 2*int(OPT.get("tlb", 0))})')
    a('s_barrier')
    stp0('p0 first')
    for t in reads(0): a(t)
    run(dma_pair(3))
    a('.p2align 6')
    a.label('p0_loop')
    for sl in range(4):
        a('s_cmp_eq_u32 s36, 1')
        a('s_waitcnt vmcnt(24) lgkmcnt(0)')
        a(f's_cbranch_scc1 p0_ww{sl}')
        a('s_waitcnt vmcnt(16)')
        a.label(f'p0_ww{sl}')
        a('s_barrier')
        q = reads((sl + 1) % 4)
        dp = dma_pair(sl)
        F = FRG[sl % 2]
        for n in range(12):
            j, f = divmod(n, 3)
            mf(f, v(F+16*j, 4), v(F+16*j+4+4*f, 4), False)
            for _ in range(3 if n < 4 else 2):
                if q: a(q.pop(0))
            if n >= 4:
                for t in dp.pop(0): a(t)
            if n == 3 and sl in (0, 3):
                a('s_cmp_eq_u32 s35, 0'); a(f's_cbranch_scc0 p0_clr{sl}')
                a.label(f'p0_back{sl}')
        assert not q and not dp
        for r_ in range(4):
            for j in (0, 2):
                a(f'v_dot2_f32_bf16 v{S1}, v{F+16*j+r_}, v{ONE}, v{S1}')
                a(f'v_dot2_f32_bf16 v{S2}, v{F+16*j+r_}, v{F+16*j+r_}, v{S2}')
                for u in range(3): a(f'v_dot2_f32_bf16 v{CS+u}, v{F+16*(j+1)+4+4*u+r_}, v{ONE}, v{CS+u}')
    a('s_cmp_eq_u32 s36, 1')
    a('s_cbranch_scc1 p0_after')
    a('s_mov_b32 s36, 1'); a('s_mov_b32 s10, 0'); a('s_mov_b32 s30, 0'); a('s_mov_b32 s35, 0')
    stp0('p0 trip0')
    run(side_dma())
    stp0('p0 sdma')
    a('s_branch p0_loop')
    a.label('p0_clr0')
    a('s_cmp_lg_u32 s12, 0'); a('s_cbranch_scc1 p0_back0')
    a('s_mov_b64 exec, 1'); a(f'v_mov_b32 v{AV}, 1')
    a(f'buffer_atomic_add v{AV}, v{L4}, s[20:23], 0 offen sc0 sc1')
    a('s_mov_b64 exec, -1')
    a('s_branch p0_back0')
    a.label('p0_clr3')
    a('s_cmp_lg_u32 s12, 0'); a('s_cbranch_scc1 p0_back3')
    a(f'v_readfirstlane_b32 s33, v{AV}')
    a('s_cmp_lg_u32 s33, 15'); a('s_cbranch_scc1 p0_back3')
    a('s_mov_b64 exec, 1'); a(f'v_mov_b32 v{AV}, 1')
    a(f'buffer_store_dword v{AV}, v{L4}, s[20:23], 0 offen offset:128 sc1')
    a('s_mov_b64 exec, -1')
    a('s_branch p0_back3')
    a.label('p0_after')
    stp0('p0 trip1')
    a(f's_mov_b32 s10, {2*L.MB}')
    a('s_lshl_b32 s17, s15, 1'); a('s_add_u32 s17, s17, s19')
    a('s_lshl_b32 s16, s18, 1'); a('s_add_u32 s16, s16, s24')
    a('s_lshl_b32 s56, s16, 17'); a('s_lshl_b32 s57, s17, 10'); a('s_add_u32 s56, s56, s57')
    a('s_add_u32 s57, s56, 0x10000')
    a(f's_add_u32 s58, s56, {L.K[0]}'); a(f's_add_u32 s59, s57, {L.K[0]}')
    a(f's_add_u32 s54, s56, {L.V[0]}')
    a('s_waitcnt vmcnt(0) lgkmcnt(0)')
    SC0 = 0
    stp0('p0 loop')
    a(f'v_permlane32_swap_b32 v{S1}, v{S2}')
    a(f'v_add_f32 v{S1}, v{S1}, v{S2}')
    a('s_lshl_b32 s33, s12, 10'); a(f's_add_u32 s33, s33, {SC0}')
    a(f'v_add_u32 v{T0}, s33, v{L4}')
    a(f'ds_write_b32 v{T0}, v{S1}')
    for u in range(3): a(f'ds_write_b32 v{T0}, v{CS+u} offset:{256*(u+1)}')
    a(f'v_xor_b32 v{T1}, 1024, v{T0}')
    a(f'v_xor_b32 v{T2}, 2048, v{T0}')
    a(f'v_xor_b32 v{T3}, 128, v{T2}')
    a(f'v_xor_b32 v{T0}, 128, v{T0}')
    a(f'v_bfe_u32 v78, v{LN}, 4, 1'); a('v_lshlrev_b32 v78, 16, v78')
    a(f'v_lshrrev_b32 v79, 5, v{LN}'); a('v_lshl_add_u32 v78, v79, 8, v78')
    a(f'v_and_b32 v79, 15, v{LN}'); a('v_lshl_add_u32 v78, v79, 4, v78')
    a('s_waitcnt lgkmcnt(0)')
    a('s_barrier')
    a(f'ds_read_b32 v{S2}, v{T1}')
    for u in range(3):
        a(f'ds_read_b32 v{48+3*u}, v{T0} offset:{256*(u+1)}')
        a(f'ds_read_b32 v{49+3*u}, v{T2} offset:{256*(u+1)}')
        a(f'ds_read_b32 v{50+3*u}, v{T3} offset:{256*(u+1)}')
    a('s_waitcnt lgkmcnt(9)')
    a(f'v_add_f32 v{STV}, v{S1}, v{S2}')
    a(f'v_mov_b32 v{STV+1}, v{STV}')
    a(f'v_permlane32_swap_b32 v{STV}, v{STV+1}')
    a(f'v_mul_f32 v{STV}, {f32(-1.0/512)}, v{STV}')
    a(f'v_mul_f32 v{STV+1}, {f32(1.0/512)}, v{STV+1}')
    a(f'v_fma_f32 v{STV+1}, -v{STV}, v{STV}, v{STV+1}')
    a(f'v_max_f32 v{STV+1}, 0, v{STV+1}')
    a(f'v_add_f32 v{STV+1}, {f32(1e-5)}, v{STV+1}')
    a(f'v_rsq_f32 v{RS}, v{STV+1}')
    MH, MM, ML, TT = STV+2, STV+3, STV+4, STV+8
    split3(a, STV, MH, MM, ML, TT)
    a('s_lshl_b32 s33, s12, 8'); a(f's_add_u32 s33, s33, {SC0 + 4096}')
    a(f'v_add_u32 v76, s33, v{L4}')
    a(f'ds_write_b32 v76, v{RS}')
    a(f'v_lshrrev_b32 v77, 5, v{LN}'); a('v_lshlrev_b32 v77, 4, v77'); a('v_add_u32 v77, s33, v77')
    pack_hi(a, XE, MH, MM)
    a(f'v_lshrrev_b32 v{XE+1}, 16, v{ML}'); a(f'v_mov_b32 v{XE+2}, 0'); a(f'v_lshrrev_b32 v{XE+3}, 16, v{MH}')
    a(f'v_mul_f32 v{RQ}, {f32(L.QSCALE)}, v{RS}')
    for j in range(4): a(f'ds_read_b128 {v(STV+4*j,4)}, v77 offset:{32*j}')
    a(f'v_cmp_gt_u32 vcc, 32, v{LN}')
    a('s_waitcnt lgkmcnt(5)')
    for u in (1, 2, 0):
        c_ = CS + u; W_ = WE + 4*u; HI, MID, LO, TQ = 44, 45, 46, 47
        a(f'v_add_f32 v{c_}, v{c_}, v{48+3*u}'); a(f'v_add_f32 v{49+3*u}, v{49+3*u}, v{50+3*u}'); a(f'v_add_f32 v{c_}, v{c_}, v{49+3*u}')
        split3(a, c_, HI, MID, LO, TQ)
        a(f'v_lshrrev_b32 v{W_+1}, 16, v{HI}'); a(f'v_or_b32 v{W_}, v{W_+1}, v{HI}')
        a(f'v_lshrrev_b32 v{W_+3}, 16, v{MID}')
        pack_hi(a, TQ, LO, MID)
        a(f'v_cndmask_b32 v{W_}, v{TQ}, v{W_}, vcc')
        a(f'v_cndmask_b32 v{W_+1}, 0, v{W_+1}, vcc')
        a(f'v_mov_b32 v{W_+2}, 0')
        a(f'v_cndmask_b32 v{W_+3}, 0, v{W_+3}, vcc')
        mf(u, v(XE, 4), v(W_, 4), False)
    a('s_cmp_lg_u32 s17, 0'); a('s_cbranch_scc1 p0_nowe')
    a(f's_mul_i32 s33, s16, {FT}'); a(f's_add_u32 s33, s33, {L.WQKVF + 32*1024}')
    for u in range(3):
        a(f'buffer_store_dwordx4 {v(WE+4*u,4)}, v{L16}, s[4:7], s33 offen sc1')
        if u < 2: a(f's_add_u32 s33, s33, {16*FT}')
    a.label('p0_nowe')
    a('s_mov_b64 exec, 1')
    a(f'buffer_load_dword v{AV+1}, v{L4}, s[20:23], 0 offen offset:128 sc1')
    a('s_mov_b64 exec, -1')
    a('s_waitcnt lgkmcnt(0)')
    for f in (1, 2, 0):
        A = ACC[f]
        for g in range(2):
            B = A + 8*g
            for r_ in range(0, 8, 2):
                if f < 2:
                    o = 1 if f == 0 else 0
                    a(f'v_pk_mul_f32 {v(B+r_,2)}, {v(B+r_,2)}, {v(RS,2)} op_sel:[0,{o}] op_sel_hi:[1,{o}]')
                else:
                    a(f'v_pk_mul_f32 {v(B+r_,2)}, {v(B+r_,2)}, {v(STV+8*g+r_,2)}')
            for r_ in range(4): a(f'v_cvt_pk_bf16_f32 v{B+r_}, v{B+2*r_}, v{B+2*r_+1}')
            if f < 2: a(f'buffer_store_dwordx4 {v(B,4)}, v{L16}, s[4:7], s{56+2*f+g} offen sc1')
            else: a(f'buffer_store_dwordx4 {v(B,4)}, v78, s[4:7], s54 offen offset:{512*g} sc1')
    a('s_lshl_b32 s42, s16, 2'); a('s_lshr_b32 s33, s17, 4'); a('s_add_u32 s42, s42, s33'); a('s_lshl_b32 s42, s42, 1')
    a('s_and_b32 s33, s17, 1'); a('s_add_u32 s42, s42, s33'); a(f's_mul_i32 s42, s42, {CST}'); a(f's_add_u32 s42, s42, {CNT}')
    FR = 224
    a('s_cmp_eq_u32 s65, 0'); a('s_cbranch_scc1 p0_rd2')
    for i in range(8):
        a(f'ds_read_b64_tr_b16 {v(FR+4*i,2)}, v{SR} offset:{i*1024}')
        a(f'ds_read_b64_tr_b16 {v(FR+4*i+2,2)}, v{SR} offset:{i*1024+512}')
    a('s_branch p0_rd3')
    a.label('p0_rd2')
    for i in range(8):
        a(f'ds_read_b64_tr_b16 {v(FR+4*i,2)}, v{SR} offset:{i*64}')
        a(f'ds_read_b64_tr_b16 {v(FR+4*i+2,2)}, v{SR} offset:{i*64+8192}')
    a.label('p0_rd3')
    a('s_waitcnt vmcnt(6)')
    a('s_mov_b32 s34, 0')
    a.label('p0_clr_poll')
    a(f'v_readfirstlane_b32 s33, v{AV+1}')
    a('s_cmp_eq_u32 s33, 1'); a('s_cbranch_scc1 p0_clr_ok')
    a('s_sleep 2')
    a('s_mov_b64 exec, 1')
    a(f'buffer_load_dword v{AV+1}, v{L4}, s[20:23], 0 offen offset:128 sc1')
    a('s_mov_b64 exec, -1')
    a('s_add_u32 s34, s34, 1')
    a('s_waitcnt vmcnt(0)')
    a(f's_cmp_lt_u32 s34, {SPIN}'); a('s_cbranch_scc1 p0_clr_poll')
    a.label('p0_clr_ok')
    a('s_waitcnt vmcnt(0)')
    a('s_mov_b64 exec, 1'); a(f'v_mov_b32 v{AV}, 1')
    a(f'buffer_atomic_add v{AV}, v{L4}, s[4:7], s42 offen sc0 sc1')
    a('s_mov_b64 exec, -1')
    stp0('p0 sig')
    a(f's_cmp_ge_u32 s26, {NSIDE}'); a('s_cbranch_scc1 p0_noside')
    a('s_waitcnt lgkmcnt(0)')
    for i in range(8):
        a(f'buffer_store_dwordx4 {v(FR+4*i,4)}, v{L16}, s[4:7], s66 offen sc1')
        a('s_add_u32 s66, s66, s72')
    a.label('p0_noside')
    a('s_cmp_eq_u32 s65, 0'); a('s_cbranch_scc1 p0_nosum')
    a(f'v_mov_b32 v{S1}, 0'); a(f'v_mov_b32 v{S2}, 0')
    for i in range(0, 32, 2):
        a(f'v_dot2_f32_bf16 v{S1}, v{FR+i}, v{ONE}, v{S1}')
        a(f'v_dot2_f32_bf16 v{S2}, v{FR+i+1}, v{ONE}, v{S2}')
    a('s_lshl_b32 s33, s12, 8'); a(f's_add_u32 s33, s33, {SC0 + 8192}')
    a(f'v_add_u32 v{T0}, s33, v{L4}')
    a(f'v_add_f32 v{S1}, v{S1}, v{S2}')
    a(f'ds_write_b32 v{T0}, v{S1}')
    a('s_waitcnt lgkmcnt(0)')
    a('s_barrier')
    a.label('p0_nosum')
    a(f's_cmp_ge_u32 s26, {NSIDE}'); a('s_cbranch_scc1 p0_v0')
    a('s_waitcnt vmcnt(8)')
    a('s_branch p0_v1')
    a.label('p0_v0')
    a('s_waitcnt vmcnt(0)')
    a.label('p0_v1')
    a(f'v_readfirstlane_b32 s33, v{AV}')
    a(f's_cmp_lg_u32 s33, {TARGET[0]-1}'); a('s_cbranch_scc1 p0_notlast')
    a('s_mov_b64 exec, 1'); a(f'v_mov_b32 v{AV}, 1')
    a(f'buffer_store_dword v{AV}, v{L4}, s[4:7], s42 offen offset:{FOFF} sc1')
    a('s_mov_b64 exec, -1')
    a.label('p0_notlast')
    a('s_cmp_lg_u32 s12, 3'); a('s_cbranch_scc1 p0_done')
    a(f's_cmp_ge_u32 s26, {NSIDE}'); a('s_cbranch_scc1 p0_done')
    a('s_cmp_eq_u32 s65, 0'); a('s_cbranch_scc1 p0_wsig')
    a(f'v_and_b32 v{T2}, 31, v{LN}'); a(f'v_lshlrev_b32 v{T2}, 2, v{T2}'); a(f'v_add_u32 v{T1}, {SC0+8192}, v{T2}')
    for i in range(8): a(f'ds_read_b32 v{48+i}, v{T1} offset:{128*i}')
    B = 61
    a(f'v_mov_b32 v{B}, 0')
    a('s_cmp_lg_u32 s65, 2'); a('s_cbranch_scc1 p0_nobias')
    a('s_mov_b32 s92, s90'); a('s_and_b32 s93, s91, 0xffff'); a(f's_mov_b32 s94, {1376*2}')
    a('s_lshl_b32 s33, s68, 6')
    a(f'v_lshrrev_b32 v{T3}, 1, v{T2}')
    a(f'buffer_load_ushort v{B}, v{T3}, s[92:95], s33 offen')
    a('s_waitcnt vmcnt(0)')
    a(f'v_lshlrev_b32 v{B}, 16, v{B}')
    a.label('p0_nobias')
    a('s_waitcnt lgkmcnt(0)')
    a('v_add_f32 v48, v48, v49'); a('v_add_f32 v50, v50, v51'); a('v_add_f32 v52, v52, v53'); a('v_add_f32 v54, v54, v55')
    a('v_add_f32 v48, v48, v50'); a('v_add_f32 v52, v52, v54'); a('v_add_f32 v48, v48, v52')
    HI, MID, LO = 62, 63, 64
    split3(a, 48, HI, MID, LO, 65)
    pack_hi(a, 56, HI, HI); pack_hi(a, 57, HI, B); pack_hi(a, 58, B, B)
    a(f'v_lshrrev_b32 v59, 16, v{MID}')
    pack_hi(a, 60, LO, MID)
    a(f'v_cmp_gt_u32 vcc, 32, v{LN}')
    a('v_cndmask_b32 v56, v60, v56, vcc'); a('v_cndmask_b32 v57, 0, v57, vcc')
    a('v_cndmask_b32 v58, 0, v58, vcc'); a('v_cndmask_b32 v59, 0, v59, vcc')
    a(f's_add_u32 s33, s70, {32*1024}')
    a(f'buffer_store_dwordx4 v[56:59], v{L16}, s[4:7], s33 offen sc1')
    a.label('p0_wsig')
    a('s_mov_b32 s96, 1')
    a('s_branch p0_out')
    a.label('p0_done')
    a('s_mov_b32 s96, 0')
    a.label('p0_out')

def gen_main(p):
    a = p.a
    p.entry(KNAME, 512, 256)
    a('s_cmp_ge_u32 s2, 256')
    a('s_cbranch_scc1 main_end')
    global stp0
    def stp0(name):
        if not STAMP: return
        if name not in STAMPS: STAMPS.append(name)
        i = STAMPS.index(name)
        a('s_memtime s[98:99]'); a('s_memrealtime s[100:101]'); a('s_waitcnt lgkmcnt(0)')
        a(f'v_writelane_b32 v11, s98, {2*i+2}')
        a(f'v_writelane_b32 v11, s100, {2*i+3}')
    stp0('start')
    phase0(a)
    a('s_load_dwordx2 s[88:89], s[0:1], 56')
    LN, L16, L4, T0, T1, T2, T3 = 1, 2, 3, 4, 5, 6, 7
    RES = 8
    if STAMP: a('v_mov_b32 v0, v11')
    a('s_and_b32 s13, s2, 7'); a('s_lshr_b32 s14, s2, 3')
    a('s_lshl_b32 s15, s13, 1'); a('s_and_b32 s29, s14, 1'); a('s_add_u32 s15, s15, s29')
    a('s_lshr_b32 s16, s14, 1')
    a('s_lshl_b32 s17, s15, 2'); a('s_and_b32 s29, s12, 1'); a('s_lshl_b32 s29, s29, 1'); a('s_add_u32 s17, s17, s29')
    a('s_lshr_b32 s29, s12, 1'); a('s_add_u32 s17, s17, s29')
    a('s_lshl_b32 s18, s13, 2'); a('s_and_b32 s29, s14, 3'); a('s_add_u32 s18, s18, s29')
    a('s_lshr_b32 s19, s14, 2')
    a('s_lshl_b32 s21, s18, 1'); a('s_lshr_b32 s29, s12, 1'); a('s_add_u32 s20, s21, s29')
    a('s_lshl_b32 s22, s19, 1'); a('s_and_b32 s29, s12, 1'); a('s_add_u32 s22, s22, s29'); a('s_xor_b32 s23, s22, 1')
    a('s_mov_b32 s24, s18'); a('s_mov_b32 s25, s19')
    a('s_mov_b32 s26, 0'); a('s_mov_b32 s27, 0'); a(f's_mov_b32 s28, {CNT}')
    a('s_mov_b32 s30, 0x0000ffff'); a('s_mov_b32 s31, 0x0000ffff')
    a('s_lshl_b32 s32, s20, 5'); a('s_lshl_b32 s29, s22, 1'); a('s_add_u32 s32, s32, s29'); a('s_lshl_b32 s32, s32, 10')
    a('s_mul_i32 s33, s12, 22'); a('s_mul_i32 s29, s12, 21'); a('s_add_u32 s29, s29, 1')
    a('s_cmp_ge_u32 s12, 2'); a('s_cselect_b32 s33, s29, s33')
    a('s_lshl_b32 s34, s16, 2'); a('s_lshr_b32 s29, s17, 4'); a('s_add_u32 s34, s34, s29'); a('s_lshl_b32 s34, s34, 1')
    a('s_and_b32 s29, s17, 1'); a('s_add_u32 s34, s34, s29')
    a('s_lshr_b32 s29, s24, 1'); a('s_lshl_b32 s29, s29, 2'); a('s_add_u32 s35, s29, s12'); a('s_lshl_b32 s35, s35, 1')
    a('s_lshr_b32 s36, s25, 1'); a('s_add_u32 s36, s36, s29'); a('s_lshl_b32 s36, s36, 1')
    a('s_lshl_b32 s37, s25, 2'); a('s_add_u32 s37, s37, s12'); a('s_lshl_b32 s37, s37, 3'); a('s_lshr_b32 s29, s24, 3'); a('s_add_u32 s37, s37, s29')
    a('s_lshl_b32 s38, s18, 3'); a('s_add_u32 s38, s38, s12')
    a(f'v_and_b32 v{T0}, 31, v{LN}'); a(f'v_lshlrev_b32 v{T0}, 10, v{T0}')
    a(f'v_lshrrev_b32 v{T1}, 5, v{LN}'); a(f'v_lshl_add_u32 v{T0}, v{T1}, 4, v{T0}')
    a('s_lshl_b32 s53, s20, 15'); a('s_lshl_b32 s54, s22, 6'); a('s_add_u32 s53, s53, s54')
    a(f'buffer_load_dwordx4 {v(RES,4)}, v{T0}, s[8:11], s53 offen')
    a(f'buffer_load_dwordx4 {v(RES+4,4)}, v{T0}, s[8:11], s53 offen offset:32')
    a('s_mov_b32 s41, s96'); a(f's_mov_b32 s42, {WCELL}'); a(f's_mov_b32 s69, {NSIDE-1}')
    a('s_waitcnt lgkmcnt(0)')
    srd(a, 8, 88, 2*L.MB)

    def st(name):
        if not STAMP: return
        if name not in STAMPS: STAMPS.append(name)
        i = STAMPS.index(name)
        assert i < 31
        a('s_memtime s[98:99]'); a('s_memrealtime s[100:101]'); a('s_waitcnt lgkmcnt(0)')
        a(f'v_writelane_b32 v0, s98, {2*i+2}')
        a(f'v_writelane_b32 v0, s100, {2*i+3}')

    def run_groups(gs):
        for g in gs:
            for t in g: a(t)

    def wtile_dma(qkv):
        ftstride = (16 if qkv else 1) * FT
        pre = [f's_mul_i32 s60, s16, {(1 if qkv else 3) * FT}',
               f's_add_u32 s60, s60, {L.WQKVF if qkv else L.W1F}',
               's_lshl_b32 s64, s12, 12',
               's_add_u32 s61, s60, s64',
               's_min_u32 s65, s12, 2',
               f's_mul_i32 s66, s65, {ftstride}',
               's_add_u32 s66, s66, s60',
               f's_add_u32 s66, s66, {32*1024}',
               f's_mul_i32 s65, s65, {FT}']
        groups = [pre]
        for half in range(2):
            for j in range(3):
                g = [f's_add_u32 m0, s64, {j*FT + half*16384}',
                     f's_add_u32 s62, s61, {j*ftstride + half*16384}']
                g += [f'buffer_load_dwordx4 v{L16}, s[4:7], s62 offen offset:{1024*q} sc1 lds' for q in range(4)]
                groups.append(g)
        groups.append([f's_add_u32 m0, s65, {32*1024}', 's_nop 0', f'buffer_load_dwordx4 v{L16}, s[4:7], s66 offen sc1 lds'])
        return groups

    def wtile_dma3():
        groups = [[f's_mul_i32 s60, s16, {FT}', f's_mul_i32 s61, s12, {16*FT}', 's_add_u32 s60, s60, s61', f's_add_u32 s60, s60, {L.WQKVF}',
                   f's_mul_i32 s64, s12, {FT}']]
        for c in range(9):
            g = [f's_add_u32 m0, s64, {c*4096}', f's_add_u32 s62, s60, {c*4096}']
            g += [f'buffer_load_dwordx4 v{L16}, s[4:7], s62 offen offset:{1024*q} sc1 lds' for q in range(4 if c < 8 else 1)]
            groups.append(g)
        return groups

    def poll_setup(ph, idxs, add=0, prev_layer=False, out=None):
        e = out.append if out is not None else a
        o = (CB[ph] + add)*CST - (LST if prev_layer else 0)
        e(f's_add_u32 s50, s28, {o & 0xffffffff}')
        e(f's_mul_i32 s52, s{idxs[0]}, {CST}')
        e(f'v_mov_b32 v{T0}, s52')
        if len(idxs) > 1:
            e(f's_mul_i32 s52, s{idxs[1]}, {CST}')
            e(f'v_writelane_b32 v{T0}, s52, 1')
    def poll_load(n):
        a(f's_mov_b64 exec, {(1 << n) - 1}')
        a(f'buffer_load_dword v{T1}, v{T0}, s[4:7], s50 offen offset:{FOFF} sc1')
        a('s_mov_b64 exec, -1')
    def poll_test(n, go):
        a(f's_mov_b64 exec, {(1 << n) - 1}')
        a(f'v_cmp_gt_u32 vcc, 1, v{T1}')
        a('s_mov_b64 exec, -1')
        a('s_cmp_eq_u64 vcc, 0')
        a(f's_cbranch_scc1 {go}')
    def poll_spin(n, go, hook=None):
        lp = a.lab('poll')
        a('s_mov_b32 s51, 0')
        a.label(lp)
        poll_load(n)
        a('s_add_u32 s51, s51, 1')
        a('s_waitcnt vmcnt(0)')
        if hook: hook()
        poll_test(n, go)
        a(f's_cmp_lt_u32 s51, {SPIN}')
        a(f's_cbranch_scc1 {lp}')
        a.label(go)
    def poll(ph, idxs, add=0, prev_layer=False):
        poll_setup(ph, idxs, add, prev_layer)
        poll_spin(len(idxs), a.lab('go'))
    def sig_addr(ph, idx, add=0, out=None):
        e = out.append if out is not None else a
        e(f's_mul_i32 s42, s{idx}, {CST}')
        e('s_add_u32 s42, s42, s28')
        e(f's_add_u32 s42, s42, {(CB[ph] + add)*CST}')
        e(f's_mov_b32 s69, {TARGET[ph]-1}')
    def sig_atomic():
        a('s_mov_b64 exec, 1')
        a('v_mov_b32 v0, 1')
        a(f'buffer_atomic_add v0, v{L4}, s[4:7], s42 offen sc0 sc1')
        a('s_mov_b64 exec, -1')
    def sig_finish(ph=None):
        sk = a.lab('notlast')
        a('v_readfirstlane_b32 s52, v0')
        a('s_cmp_lg_u32 s52, s69')
        a(f's_cbranch_scc1 {sk}')
        a('s_mov_b64 exec, 1')
        a('v_mov_b32 v0, 1')
        a(f'buffer_store_dword v0, v{L4}, s[4:7], s42 offen offset:{FOFF} sc1')
        a('s_mov_b64 exec, -1')
        a.label(sk)
    def signal(ph, idx, add=0):
        sig_addr(ph, idx, add)
        a('s_waitcnt vmcnt(0)')
        sig_atomic()
        a('s_waitcnt vmcnt(0)')
        sig_finish(ph)

    def gemmA_pre(qkv):
        xi0 = 0 if qkv else 1
        stsz = L.ST[1] - L.ST[0]
        a('s_lshl_b32 s47, s17, 15'); a('s_lshl_b32 s29, s27, 1'); a('s_add_u32 s47, s47, s29'); a(f's_add_u32 s47, s47, {L.X[xi0]}')
        a('s_lshl_b32 s48, s17, 12'); a(f's_mul_i32 s29, s26, {2*stsz}'); a('s_add_u32 s48, s48, s29'); a(f's_add_u32 s48, s48, {L.ST[xi0]}')
        a('s_lshl_b32 s55, s12, 10'); a(f's_add_u32 s55, s55, {SCR + 1024}')
        a(f'v_add_u32 v64, s55, v{L16}')
        a(f'v_add_u32 v65, s55, v{L4}')
        a(f'v_add_u32 v70, {FT}, v{L16}')
        a(f'v_add_u32 v71, {2*FT}, v{L16}')
        if qkv:
            a('s_lshl_b32 s56, s16, 17'); a('s_lshl_b32 s57, s17, 10'); a('s_add_u32 s56, s56, s57'); a('s_add_u32 s56, s56, s27')
            a('s_add_u32 s57, s56, 0x10000')
            a(f's_add_u32 s58, s56, {L.K[0]}'); a(f's_add_u32 s59, s57, {L.K[0]}')
            a(f's_add_u32 s54, s56, {L.V[0]}')
            a('s_lshl_b32 s55, s12, 8'); a(f's_add_u32 s55, s55, {SCR}')
            a(f'v_add_u32 v76, s55, v{L4}')
            a(f'v_lshrrev_b32 v77, 5, v{LN}'); a('v_lshlrev_b32 v77, 4, v77'); a('v_add_u32 v77, s55, v77')
            a(f'v_bfe_u32 v78, v{LN}, 4, 1'); a('v_lshlrev_b32 v78, 16, v78')
            a(f'v_lshrrev_b32 v79, 5, v{LN}'); a('v_lshl_add_u32 v78, v79, 8, v78')
            a(f'v_and_b32 v79, 15, v{LN}'); a('v_lshl_add_u32 v78, v79, 4, v78')
        else:
            actsz = L.ACT[1] - L.ACT[0]
            a('s_mul_i32 s56, s17, 86'); a('s_mul_i32 s57, s16, 6'); a('s_add_u32 s56, s56, s57')
            a('s_lshl_b32 s56, s56, 10'); a(f's_mul_i32 s57, s26, {actsz}'); a('s_add_u32 s56, s56, s57')
            a(f's_add_u32 s56, s56, {L.ACT[0]}'); a('s_add_u32 s57, s56, 4096')
            a('s_cmp_eq_u32 s16, 14')
            a(f's_cselect_b32 s29, {64*L.MB}, 0')
            a('s_add_u32 s58, s56, s29'); a('s_add_u32 s57, s57, s29')

    def gemmA(qkv, first_sync=None):
        tag = 'qkv' if qkv else 'ffn1'
        RS, RQ = 68, 69
        WA = [L16, 70, 71]
        XE = 72
        STV = 16
        WS = [32 + 4*i for i in range(8)]
        ACC = [80 + 16*i for i in range(3)]
        XF = 128
        fa, fb, fc = (1, 2, 0) if qkv else (0, 1, 2)
        nvm = [0]; at = {}
        def xload(i):
            a(f'buffer_load_dwordx4 {v(XF+4*i,4)}, v{L16}, s[4:7], s47 offen offset:{1024*(i%4)} sc1'); nvm[0] += 1
            if i % 4 == 3: a('s_add_u32 s47, s47, 4096')
            at[i] = nvm[0]
        PRE = int(OPT['apre'])
        for i in range(6): xload(i)
        for i in range(4):
            a(f'buffer_load_dwordx4 {v(STV+4*i,4)}, v{L16}, s[4:7], s48 offen offset:{1024*i} sc1'); nvm[0] += 1
        for i in range(6, PRE): xload(i)
        if first_sync: first_sync(nvm[0])
        sv = []
        for stp in (8, 4):
            for i in range(stp): sv.append(f'v_add_f32 v{STV+i}, v{STV+i}, v{STV+i+stp}')
        sv.append(f'ds_write_b128 v64, {v(STV,4)}')
        sv.append(f'ds_read2_b32 {v(STV+4,2)}, v65 offset0:0 offset1:64')
        sv.append(f'ds_read2_b32 {v(STV+6,2)}, v65 offset0:128 offset1:192')
        sv.append('WAITDS')
        sv.append(f'v_add_f32 v{STV+4}, v{STV+4}, v{STV+5}')
        sv.append(f'v_add_f32 v{STV+6}, v{STV+6}, v{STV+7}')
        sv.append(f'v_add_f32 v{STV}, v{STV+4}, v{STV+6}')
        sv.append(f'v_mov_b32 v{STV+1}, v{STV}')
        sv.append(f'v_permlane32_swap_b32 v{STV}, v{STV+1}')
        sv.append(f'v_mul_f32 v{STV}, {f32(-1.0/512)}, v{STV}')
        sv.append(f'v_mul_f32 v{STV+1}, {f32(1.0/512)}, v{STV+1}')
        sv.append(f'v_fma_f32 v{STV+1}, -v{STV}, v{STV}, v{STV+1}')
        sv.append(f'v_max_f32 v{STV+1}, 0, v{STV+1}')
        sv.append(f'v_add_f32 v{STV+1}, {f32(1e-5)}, v{STV+1}')
        sv.append(f'v_rsq_f32 v{RS}, v{STV+1}')
        sv.append(f'v_mul_f32 v{STV+1}, v{STV+1}, v{RS}')
        r = sv.append
        MH, MM, ML, SH, SM, SL, TT = STV+2, STV+3, STV+4, STV+5, STV+6, STV+7, STV+8
        split3(r, STV, MH, MM, ML, TT); split3(r, STV+1, SH, SM, SL, TT)
        pack_hi(r, XE, MH, MM); pack_hi(r, XE+1, ML, SH); pack_hi(r, XE+2, SM, SL)
        sv.append(f'v_lshrrev_b32 v{XE+3}, 16, v{MH}')
        sv.append(f'v_mul_f32 v{RQ}, {f32(L.QSCALE if qkv else 1.4426950408889634)}, v{RS}')
        if not qkv: sv.append(f'v_mul_f32 v66, -2.0, v{RS}')
        if qkv:
            sv.append(f'ds_write_b32 v76, v{RS}')
            for j in range(4): sv.append(f'ds_read_b128 {v(STV+4*j,4)}, v77 offset:{32*j}')
        def epi(f, pk):
            A = ACC[f]; out = []
            def mul(d, s0, s1b, n, bcast):
                if pk:
                    for r_ in range(0, n, 2):
                        if bcast:
                            base = s1b & ~1; o = s1b & 1
                            out.append(f'v_pk_mul_f32 {v(d+r_,2)}, {v(s0+r_,2)}, {v(base,2)} op_sel:[0,{o}] op_sel_hi:[1,{o}]')
                        else:
                            out.append(f'v_pk_mul_f32 {v(d+r_,2)}, {v(s0+r_,2)}, {v(s1b+r_,2)}')
                else:
                    for r_ in range(n): out.append(f'v_mul_f32 v{d+r_}, v{s1b if bcast else s1b+r_}, v{s0+r_}')
            for g in range(2):
                B = A + 8*g
                if qkv:
                    if f < 2: mul(B, B, RQ if f == 0 else RS, 8, True)
                    else: mul(B, B, STV + 8*g, 8, False)
                else:
                    U = STV
                    mul(U, B, RQ, 8, True)
                    for r_ in range(8): out.append(f'v_exp_f32 v{U+r_}, v{U+r_}')
                    if pk:
                        for r_ in range(0, 8, 2): out.append(f'v_pk_add_f32 {v(U+8+r_,2)}, {v(U+r_,2)}, 2.0 op_sel_hi:[1,0]')
                        for r_ in range(0, 8, 2): out.append(f'v_pk_fma_f32 {v(U+r_,2)}, {v(U+r_,2)}, {v(U+8+r_,2)}, 2.0 op_sel_hi:[1,1,0]')
                    else:
                        for r_ in range(8): out.append(f'v_add_f32 v{U+8+r_}, 2.0, v{U+r_}')
                        for r_ in range(8): out.append(f'v_fma_f32 v{U+r_}, v{U+r_}, v{U+8+r_}, 2.0')
                    for r_ in range(8): out.append(f'v_rcp_f32 v{U+r_}, v{U+r_}')
                    if pk:
                        for r_ in range(0, 8, 2): out.append(f'v_pk_fma_f32 {v(U+r_,2)}, {v(U+r_,2)}, {v(66,2)}, {v(RS,2)} op_sel_hi:[1,0,0]')
                    else:
                        for r_ in range(8): out.append(f'v_fma_f32 v{U+r_}, v{U+r_}, v66, v{RS}')
                    mul(B, B, U, 8, False)
                for r_ in range(4): out.append(f'v_cvt_pk_bf16_f32 v{B+r_}, v{B+2*r_}, v{B+2*r_+1}')
                if qkv:
                    if f < 2: out.append(f'buffer_store_dwordx4 {v(B,4)}, v{L16}, s[4:7], s{56+2*f+g} offen sc1')
                    else: out.append(f'buffer_store_dwordx4 {v(B,4)}, v78, s[4:7], s54 offen offset:{512*g} sc1')
                else:
                    k = 2*f + g
                    sreg = 56 if k < 2 else (58 if k < 4 else 57)
                    out.append(f'buffer_store_dwordx4 {v(B,4)}, v{L16}, s[4:7], s{sreg} offen offset:{1024*(k%4)} sc1')
            return out
        def cost(t):
            return 8 if t.startswith(TRANS) else (16 if t.startswith('buffer') else 4)
        NB = int(OPT['nb'])
        order = []; nb = 0
        for s_ in range(33):
            order.append((fa, s_))
            while nb < NB and nb + 1 <= (s_ + 1) * NB / 33.0:
                order.append((fb, nb)); nb += 1
        order += [(fb, k) for k in range(nb, 33)] + [(fc, k) for k in range(33)]
        last = {f: max(i for i, o in enumerate(order) if o[0] == f) for f in range(3)}
        nds = [0]; dsat = {}
        def rd(i):
            f, k = order[i]
            a(f'ds_read_b128 {v(WS[i%8],4)}, v{WA[f]} offset:{k*1024}'); nds[0] += 1; dsat[i] = nds[0]
        AH = 6
        for i in range(AH): rd(i)
        nx = PRE; xw = -1
        q = list(sv); ready = {}
        N = len(order)
        for i, (f, k) in enumerate(order):
            w = f'lgkmcnt({min(15, nds[0] - dsat[i])})'
            if k < 32 and k > xw:
                w = f'vmcnt({nvm[0] - at[k]}) ' + w; xw = k
            if k == 32: assert not any(t in q for t in sv), 'stats not finished'
            if i > last[fa] + 1 and (i - last[fa]) % 2 == 0: pass
            elif i > last[fa] and i + 1 < N: a(f's_waitcnt lgkmcnt({min(15, nds[0] - dsat[i+1])})')
            else: a(f's_waitcnt {w}')
            xf = v(XF + 4*k, 4) if k < 32 else v(XE, 4)
            wf = v(WS[i % 8], 4)
            cc = '0' if k == 0 else v(ACC[f], 16)
            if qkv and f == 2: a(f'{MFMA} {v(ACC[f],16)}, {xf}, {wf}, {cc}')
            else: a(f'{MFMA} {v(ACC[f],16)}, {wf}, {xf}, {cc}')
            if i + AH < N: rd(i + AH)
            budget = 16
            if f == fa and nx < 32:
                xload(nx); nx += 1; budget = 8
            for ff in (fa, fb):
                if i == last[ff] + 3: q += epi(ff, False)
            if xw >= 6:
                rem = sum(map(cost, q)) + (sum(map(cost, epi(fb, False))) if last[fa] < i < last[fb] + 3 else 0)
                if i > last[fa]: budget = max(16, -(-rem // max(1, N - i)))
                while q and budget >= min(cost(q[0]), 8):
                    if q[0] == 'WAITDS':
                        if 'mark' not in ready: ready['mark'] = nds[0]
                        if dsat[i] < ready['mark']: break
                        q.pop(0); continue
                    t = q.pop(0); budget -= cost(t); a(t)
                    if t.startswith('buffer'): nvm[0] += 1
                    if t.startswith('ds_'): nds[0] += 1
        for t in q: a(t)
        st(tag + ' loop')
        for t in epi(fc, True): a(t)

    WOA = 0; W2A = 64
    NW2PRE = 18
    def wB_loads(wo, steps):
        KS = 32 if wo else W2KS
        base = WOA if wo else W2A
        first = steps[0]
        pre = []
        for i, ft in enumerate((22, 23)):
            pre.append(f's_mul_i32 s{67+i}, s{ft}, {KS}')
            if wo:
                pre.append('s_lshl_b32 s29, s12, 3'); pre.append(f's_add_u32 s{67+i}, s{67+i}, s29')
            else:
                pre.append(f's_add_u32 s{67+i}, s{67+i}, s33')
            pre.append(f's_lshl_b32 s{67+i}, s{67+i}, 10')
            pre.append(f's_add_u32 s{67+i}, s{67+i}, {(L.WOF if wo else L.W2F) + first*1024}')
        groups = [pre]
        for n0 in range(0, len(steps), 4):
            for i in range(2):
                g = [f'buffer_load_dwordx4 {areg(base + 8*stp + 4*i)}, v{L16}, s[4:7], s{67+i} offen offset:{1024*q} sc1' for q, stp in enumerate(steps[n0:n0+4])]
                g.append(f's_add_u32 s{67+i}, s{67+i}, 4096')
                groups.append(g)
        return groups

    BACC = [[16 + 16*(2*i+j) for j in range(2)] for i in range(2)]
    BAD = 240
    def gemmB_pre(wo):
        KS = 32 if wo else 86
        actsz = L.ACT[1] - L.ACT[0]
        a(f's_mul_i32 s56, s21, {KS}')
        if wo:
            a('s_lshl_b32 s29, s12, 3'); a('s_add_u32 s56, s56, s29')
        else:
            a('s_add_u32 s56, s56, s33')
        a('s_lshl_b32 s56, s56, 10')
        if wo:
            a('s_add_u32 s56, s56, s27'); a(f's_add_u32 s56, s56, {L.O[0]}')
        else:
            a(f's_mul_i32 s29, s26, {actsz}'); a('s_add_u32 s56, s56, s29'); a(f's_add_u32 s56, s56, {L.ACT[0]}')
        a(f's_add_u32 s57, s56, {KS*1024}')
        xo = 1 if wo else 2
        stsz = L.ST[1] - L.ST[0]
        a('s_lshl_b32 s58, s27, 1'); a('s_add_u32 s58, s58, s32'); a(f's_add_u32 s58, s58, {L.X[xo]}')
        a('s_lshl_b32 s59, s20, 12'); a('s_lshl_b32 s54, s22, 8'); a('s_add_u32 s59, s59, s54')
        a(f's_mul_i32 s54, s26, {2*stsz}'); a('s_add_u32 s59, s59, s54'); a(f's_add_u32 s59, s59, {L.ST[xo]}')
        for i in range(2):
            for j in range(2):
                a('s_and_b32 s54, s12, 1')
                if j: a('s_xor_b32 s54, s54, 1')
                a(f's_add_u32 s54, s54, {2*i}')
                a('s_xor_b32 s55, s54, s12')
                a('s_mul_i32 s54, s54, 3'); a('s_add_u32 s54, s54, s55'); a('s_lshl_b32 s54, s54, 12')
                a(f's_add_u32 s54, s54, {RED - 4096}')
                a(f'v_add_u32 v{BAD+2*i+j}, s54, v{L16}')
        a(f's_mul_i32 s55, s12, {3*4096}'); a(f's_add_u32 s55, s55, {RED}')
        a(f'v_add_u32 v{BAD+4}, s55, v{L16}')
        if not wo:
            a(f'v_and_b32 v{BAD+5}, 31, v{LN}'); a(f'v_lshlrev_b32 v{BAD+5}, 10, v{BAD+5}')
            a(f'v_lshrrev_b32 v{BAD+6}, 5, v{LN}'); a(f'v_lshl_add_u32 v{BAD+5}, v{BAD+6}, 4, v{BAD+5}')
            a('s_lshl_b32 s53, s20, 15'); a('s_lshl_b32 s54, s22, 6'); a('s_add_u32 s53, s53, s54')

    def sig_try(state, wait=None):
        e = a.lab('sge')
        a(f's_cmp_lg_u32 s41, {state}')
        a(f's_cbranch_scc1 {e}')
        if wait is not None: a(f's_waitcnt vmcnt({wait})')
        if state == 1:
            sig_atomic(); a('s_mov_b32 s41, 2')
        else:
            sig_finish(); a('s_mov_b32 s41, 0')
        a.label(e)
    def sig_step():
        sig_try(2); sig_try(1)
    def sig_block():
        sig_try(1, 0); sig_try(2, 0)

    def gemmB(wo, tail=()):
        tag = 'wo' if wo else 'ffn2'
        nst = 8 if wo else 22
        wbase = WOA if wo else W2A
        FB = 80
        NSL = 24
        RB = 176
        WIN = min(int(OPT['bwin']), nst)
        LAG = 3
        st(tag + 'A go')
        class St: pass
        z = St(); z.nvm = 0; z.at = {}; z.issued = 0; z.tail = list(tail)
        def xr(n): return FB + 4*(n % NSL)
        def load(z):
            n = z.issued; i, k = divmod(n, nst)
            a(f'buffer_load_dwordx4 {v(xr(n),4)}, v{L16}, s[4:7], s{56+i} offen offset:{1024*(k%4)} sc1'); z.nvm += 1
            if k % 4 == 3: a(f's_add_u32 s{56+i}, s{56+i}, 4096')
            z.at[n] = z.nvm; z.issued += 1
        def mm(i, j, k):
            cc = '0' if k == 0 else v(BACC[i][j],16)
            a(f'{MFMA} {v(BACC[i][j],16)}, {areg(wbase+8*k+4*j)}, {v(xr(i*nst+k),4)}, {cc}')
        def zero0(n):
            if wo: return
            sk = a.lab('ffn2_s0')
            a('s_cmp_lt_u32 s12, 2')
            a(f's_cbranch_scc1 {sk}')
            for r_ in range(4): a(f'v_mov_b32 v{xr(n)+r_}, 0')
            a.label(sk)
        def wr(i, j): return [f'ds_write_b128 v{BAD+2*i+j}, {v(BACC[i][j]+4*q,4)} offset:{q*1024}' for q in range(4)]
        def epilogue(i, pk):
            A0 = BACC[i][0]; o = []
            for k in range(3):
                for q in range(4): o.append(f'ds_read_b128 {v(RB+16*k+4*q,4)}, v{BAD+4} offset:{k*4096 + q*1024}')
            U = RB + 48
            for r_ in range(8):
                o.append(f'v_lshlrev_b32 v{U+2*r_}, 16, v{RES+r_}')
                o.append(f'v_and_b32 v{U+2*r_+1}, 0xffff0000, v{RES+r_}')
            def addv(src):
                if pk:
                    for r_ in range(0, 16, 2): o.append(f'v_pk_add_f32 {v(A0+r_,2)}, {v(A0+r_,2)}, {v(src+r_,2)}')
                else:
                    for r_ in range(16): o.append(f'v_add_f32 v{A0+r_}, v{A0+r_}, v{src+r_}')
            addv(U)
            for k in range(3):
                o.append(f's_waitcnt lgkmcnt({8-4*k})')
                addv(RB + 16*k)
            for r_ in range(8): o.append(f'v_cvt_pk_bf16_f32 v{RES+r_}, v{A0+2*r_}, v{A0+2*r_+1}')
            o.append('STORE')
            if pk:
                o.append(f'v_pk_add_f32 {v(RB,2)}, {v(A0,2)}, {v(A0+2,2)}')
                o.append(f'v_pk_mul_f32 {v(RB+2,2)}, {v(A0,2)}, {v(A0,2)}')
                o.append(f'v_pk_fma_f32 {v(RB+2,2)}, {v(A0+2,2)}, {v(A0+2,2)}, {v(RB+2,2)}')
                for r_ in range(4, 16, 2):
                    o.append(f'v_pk_add_f32 {v(RB,2)}, {v(RB,2)}, {v(A0+r_,2)}')
                    o.append(f'v_pk_fma_f32 {v(RB+2,2)}, {v(A0+r_,2)}, {v(A0+r_,2)}, {v(RB+2,2)}')
                o.append(f'v_add_f32 v{T2}, v{RB}, v{RB+1}')
                o.append(f'v_add_f32 v{T3}, v{RB+2}, v{RB+3}')
            else:
                o.append(f'v_add_f32 v{T2}, v{A0}, v{A0+1}')
                o.append(f'v_mul_f32 v{T3}, v{A0}, v{A0}')
                o.append(f'v_fmac_f32 v{T3}, v{A0+1}, v{A0+1}')
                for r_ in range(2, 16):
                    o.append(f'v_add_f32 v{T2}, v{T2}, v{A0+r_}')
                    o.append(f'v_fmac_f32 v{T3}, v{A0+r_}, v{A0+r_}')
            o.append(f'v_permlane32_swap_b32 v{T2}, v{T3}')
            o.append(f'v_add_f32 v{T2}, v{T2}, v{T3}')
            o.append(f'buffer_store_dword v{T2}, v{L4}, s[4:7], s59 offen sc1')
            o.append('OWED')
            return o
        def emit(t, z):
            if t == 'STORE':
                if not wo:
                    nf = a.lab('notfinal'); dn = a.lab('stored')
                    a('s_cmp_eq_u32 s26, 0')
                    a(f's_cbranch_scc1 {nf}')
                    for g in range(2):
                        a(f'v_permlane32_swap_b32 v{RES+4*g}, v{RES+4*g+2}')
                        a(f'v_permlane32_swap_b32 v{RES+4*g+1}, v{RES+4*g+3}')
                        a(f'buffer_store_dwordx4 {v(RES+4*g,4)}, v{BAD+5}, s[8:11], s53 offen offset:{32*g}')
                    a(f's_branch {dn}')
                    a.label(nf)
                a(f'buffer_store_dwordx4 {v(RES,4)}, v{L16}, s[4:7], s58 offen sc1')
                a(f'buffer_store_dwordx4 {v(RES+4,4)}, v{L16}, s[4:7], s58 offen offset:1024 sc1')
                if not wo: a.label(dn)
                z.nvm += 2
            elif t == 'OWED':
                sig_addr(2 if wo else 4, 20)
                a('s_mov_b32 s41, 1')
                z.owed = z.nvm
            else:
                a(t)
                if t.startswith('buffer'): z.nvm += 1
        def part(i, z, kat=None):
            for k in range(nst):
                n = i*nst + k
                a(f's_waitcnt vmcnt({z.nvm - z.at[n]})')
                if k == 0:
                    if i == 1 and wo: sig_step(); z.mark = z.nvm
                    zero0(n)
                mm(i, 1, k)
                if i == 0 and k == 4: sig_try(2, z.nvm - z.mark)
                W2 = int(OPT.get('bwin2', 22))
                if not wo and i == 1 and W2 >= nst and k == nst - 1: sig_try(1, 0)
                if not wo and i == 1 and W2 < nst and k == W2: sig_try(1)
                if not wo and i == 1 and W2 < nst and k == nst - 1: sig_try(2, 0)
                if z.issued < (i + 1)*nst: load(z)
                elif z.tail:
                    for t in z.tail.pop(0): emit(t, z)
                if k < nst - LAG: mm(i, 0, k)
            assert not z.tail, len(z.tail)
            for k in range(nst - LAG, nst): mm(i, 0, k)
        def writes(i, wt):
            sk = a.lab('b_self')
            for t in wr(i, 1): a(t)
            a('s_lshr_b32 s54, s12, 1')
            a(f's_cmp_eq_u32 s54, {i}')
            a(f's_cbranch_scc1 {sk}')
            for t in wr(i, 0): a(t)
            a.label(sk)
            a(wt)
        def owner_epi(i):
            sk = a.lab('b_notown')
            a('s_lshr_b32 s54, s12, 1')
            a(f's_cmp_lg_u32 s54, {i}')
            a(f's_cbranch_scc1 {sk}')
            y = St(); y.nvm = 0
            for t in epilogue(i, True): emit(t, y)
            if not wo:
                a('s_cmp_eq_u32 s26, 1'); a('s_cselect_b32 s41, 0, s41')
            a.label(sk)
        import copy
        for _ in range(4): load(z)
        sig_try(2, 4); sig_try(1, 4); z.mark = z.nvm
        for _ in range(WIN - 4): load(z)
        if wo:
            z.tail = []
            part(0, z)
            poll_setup(1, [38], add=4)
            writes(0, 's_waitcnt lgkmcnt(0)')
            a('s_barrier')
            owner_epi(0)
            st(tag + 'A end')
            poll_spin(1, a.lab('go'), hook=sig_step)
            st(tag + 'B go')
            for _ in range(WIN): load(z)
            z.tail = list(tail)
            part(1, z)
            sig_try(2, z.nvm - z.mark)
        else:
            nod = a.lab('f2_nodma'); jn = a.lab('f2_join')
            a('s_lshl_b32 s54, s26, 2'); a('s_add_u32 s54, s54, s12')
            a('s_cmp_ge_u32 s54, 3')
            a(f's_cbranch_scc1 {nod}')
            y = copy.deepcopy(z)
            part(0, y)
            a(f's_branch {jn}')
            a.label(nod)
            z.tail = []
            part(0, z)
            a.label(jn)
            writes(0, 's_waitcnt lgkmcnt(0)')
            a('s_cmp_lg_u32 s12, 3')
            a('s_cbranch_scc1 f2_nopoll')
            poll(3, [21], add=1)
            a.label('f2_nopoll')
            st(tag + 'A end')
            a('s_barrier')
            st(tag + 'B go')
            for _ in range(int(OPT.get('bwin2', 22))): load(z)
            owner_epi(0)
            part(1, z)
        poll_setup(2 if wo else 4, [17])
        poll_load(1)
        writes(1, 's_waitcnt lgkmcnt(0)')
        a('s_barrier')
        owner_epi(1)
        st(tag + 'B end')
        sig_block()
        st(tag + ' sig')

    SB = [16, 32]; PB = [48, 52]; OA = [56, 72]; QF = [88, 92]; VR = 96
    TMP = 240
    def kreg(kt): return v(224 + 4*kt, 4) if kt < 4 else areg(208 + 4*(kt-4))
    def vreg(kt, g): return v(VR + 8*kt + 4*g, 4)
    VOFF, PADDR = T2, T3
    PA4 = TMP + 12
    def qaddr(p_, sreg=53):
        return [f's_add_u32 s{sreg}, s12, {1 + p_}', f's_and_b32 s{sreg}, s{sreg}, 3', f's_lshl_b32 s{sreg}, s{sreg}, 11', f's_add_u32 s{sreg}, s{sreg}, s{48 + (p_ >> 2)}']
    def attn_pre():
        a(f'v_and_b32 v{T0}, 27, v{LN}')
        a(f'v_cmp_eq_u32 vcc, 16, v{T0}')
        a(f'v_mov_b32 v{T1}, {ONES}')
        a(f'v_cndmask_b32 v{VR}, 0, v{T1}, vcc')
        a(f'v_cndmask_b32 v{VR+1}, 0, v{T1}, vcc')
        for r_ in range(2, 128, 2): a(f'v_pk_mov_b32 {v(VR+r_,2)}, {v(VR,2)}, {v(VR,2)}')
        a(f'v_and_b32 v{T1}, 15, v{LN}'); a(f'v_lshlrev_b32 v{T1}, 4, v{T1}')
        a(f'v_lshrrev_b32 v{VOFF}, 5, v{LN}'); a(f'v_lshl_add_u32 v{VOFF}, v{VOFF}, 8, v{T1}')
        a('s_lshl_b32 s44, s24, 16'); a('s_add_u32 s44, s44, s27')
        a('s_lshl_b32 s45, s12, 14'); a('s_add_u32 s45, s45, s44')
        a(f's_add_u32 s46, s45, {L.K[0]}'); a(f's_add_u32 s47, s45, {L.V[0]}')
        a('s_lshl_b32 s48, s25, 13'); a('s_add_u32 s48, s48, s44'); a('s_add_u32 s49, s48, 1024')
        for t in qaddr(0, 53) + qaddr(1, 54): a(t)
        a('s_lshl_b32 s39, s25, 2'); a('s_add_u32 s39, s39, s12'); a('s_lshl_b32 s39, s39, 16')
        a('s_lshl_b32 s55, s24, 10'); a('s_add_u32 s39, s39, s55')
        a('s_add_u32 s39, s39, s27'); a(f's_add_u32 s39, s39, {L.O[0]}')
        a(f's_mov_b32 s56, {f32(2.0**-90)}'); a(f's_mov_b32 s57, {f32(2.0**120)}')
        a('s_mov_b32 s40, 0')

    def check_ops(Oa, U):
        return [f'v_add_f32 v{U}, abs(v{Oa}), abs(v{Oa+1})', f'v_add_f32 v{U+1}, abs(v{Oa+2}), abs(v{Oa+3})',
                f'v_add_f32 v{U+2}, abs(v{Oa+4}), abs(v{Oa+5})', f'v_add_f32 v{U+3}, abs(v{Oa+6}), abs(v{Oa+7})',
                f'v_add_f32 v{U}, v{U}, v{U+1}', f'v_add_f32 v{U+2}, v{U+2}, v{U+3}', f'v_add_f32 v{U}, v{U}, v{U+2}',
                f'v_cmp_gt_f32 s[70:71], s57, v{U}', f'v_cmp_gt_f32 s[72:73], s57, v{Oa+8}', f'v_cmp_lt_f32 s[74:75], s56, v{Oa+8}',
                's_and_b64 s[70:71], s[70:71], s[72:73]', 's_and_b64 s[70:71], s[70:71], s[74:75]', 's_cmp_eq_u64 s[70:71], -1']

    def attn(extra_groups):
        nvm = [0]
        atk, atv, atq = {}, {}, {}
        def qload(p_, sreg=53):
            a(f'buffer_load_dwordx4 {v(QF[p_%2],4)}, v{L16}, s[4:7], s{sreg} offen sc1'); nvm[0] += 1
            atq[p_] = nvm[0]
        def kvbase(kt, sreg):
            pass
        def kload(kts):
            for kt in kts:
                a(f'buffer_load_dwordx4 {kreg(kt)}, v{L16}, s[4:7], s{76 + kt//4} offen offset:{1024*(kt%4)} sc1'); nvm[0] += 1
                atk[kt] = nvm[0]
        def vload(kts):
            a('s_mov_b64 exec, s[30:31]')
            for kt in kts:
                for g in range(2):
                    a(f'buffer_load_dwordx4 {vreg(kt,g)}, v{VOFF}, s[4:7], s{80 + kt//4} offen offset:{1024*(kt%4)+512*g} sc1'); nvm[0] += 1
                atv[kt] = nvm[0]
            a('s_mov_b64 exec, -1')
        EV = list(range(0, 16, 2)); OD = list(range(1, 16, 2))
        steps = [(0, k) for k in EV] + [(1, k) for k in EV] + [(0, k) for k in OD] + [(1, k) for k in OD]
        steps += [(p_, k) for p_ in range(2, 8) for k in range(16)]
        N = len(steps)
        firstof = {}; lastof = {}
        for n, (p_, k) in enumerate(steps):
            firstof.setdefault(p_, n); lastof[p_] = n
        qload(0)
        kload([0, 2]); vload([0])
        sig_try(1, nvm[0]); mark0 = nvm[0]
        kload([4]); vload([2]); kload([6]); vload([4])
        waited = [0]
        def need_vm(at):
            if at > waited[0]:
                a(f's_waitcnt vmcnt({nvm[0] - at})'); waited[0] = at
        need_vm(atk[0])
        a(f'{MFMA} {v(SB[0],16)}, {kreg(0)}, {v(QF[0],4)}, 0')
        kload([8]); vload([6])
        extra = list(extra_groups)
        sal = []
        def hide():
            if sal: a(sal.pop(0))
        ev_sal, ev_a, ev_b = {}, {}, {}
        def add(d, n, f): d.setdefault(n, []).append(f)
        for p_ in range(2, 8):
            n0 = lastof[p_ - 2] + 1
            add(ev_sal, n0 - 2, qaddr(p_))
            add(ev_a, n0, lambda p_=p_: qload(p_))
        def pwrite(pp):
            Op = OA[pp % 2]
            a(f'v_add_u32 v{PADDR}, s53, v{L16}')
            a(f'v_add_u32 v{PA4}, s53, v{L4}')
            a(f'ds_write_b128 v{PADDR}, {v(Op,4)}')
            a(f'ds_write_b128 v{PADDR}, {v(Op+4,4)} offset:1024')
            a(f'ds_write_b32 v{PA4}, v{Op+8} offset:2048')
        for pp in (0, 1, 2, 4, 5, 6):
            n0 = lastof[pp] + 2
            slot = 2 - pp % 4
            add(ev_sal, n0, [f's_add_u32 s53, s12, {1 + pp}', 's_and_b32 s53, s53, 3', f's_mul_i32 s53, s53, {6*2304}',
                             f's_add_u32 s53, s53, {PART + (3*(pp >> 2) + slot)*2304}'])
            add(ev_b, n0 + 2, lambda pp=pp: pwrite(pp))
        pb = []
        poll_setup(0, [35, 36], add=1, out=pb)
        def b_issue():
            for t in pb: a(t)
            poll_load(2); nvm[0] += 1; atq['flag'] = nvm[0]
        def b_check():
            go = a.lab('bgo')
            need_vm(atq['flag'])
            poll_test(2, go)
            poll_spin(2, go)
            kload([1, 3]); vload([1])
        add(ev_a, 0, lambda: (kload([10]), vload([8])))
        add(ev_a, 1, lambda: (kload([12]), vload([10])))
        add(ev_a, 2, lambda: (sig_try(2, nvm[0] - mark0), kload([14]), vload([12])))
        add(ev_a, 3, lambda: (qload(1, 54), vload([14])))
        add(ev_a, 6, b_issue)
        add(ev_a, 11, b_check)
        for j_ in range(7):
            add(ev_a, 12 + j_, lambda j_=j_: (kload([5 + 2*j_] if j_ < 6 else []), vload([3 + 2*j_])))
        def own_addr(b):
            a('s_waitcnt lgkmcnt(0)' if b == 0 else 's_waitcnt vmcnt(0) lgkmcnt(0)')
            a('s_barrier')
            a(f's_mul_i32 s53, s12, {6*2304}'); a(f's_add_u32 s53, s53, {PART + 3*b*2304}')
            a(f'v_add_u32 v{PADDR}, s53, v{L16}')
            a(f'v_add_u32 v{PA4}, s53, v{L4}')
        def pread(b_, sl):
            a(f'ds_read_b128 {v(b_,4)}, v{PADDR} offset:{sl*2304}')
            a(f'ds_read_b128 {v(b_+4,4)}, v{PADDR} offset:{sl*2304+1024}')
            a(f'ds_read_b32 v{b_+8}, v{PA4} offset:{sl*2304+2048}')
        n4 = firstof[4]
        Oa = OA[1]
        def padd():
            a('s_waitcnt lgkmcnt(0)')
            for r_ in range(9): a(f'v_add_f32 v{Oa+r_}, v{Oa+r_}, v{TMP+r_}')
        add(ev_b, n4 + 2, lambda: (own_addr(0), pread(TMP, 0)))
        add(ev_b, n4 + 3, lambda: (padd(), pread(TMP, 1)))
        add(ev_b, n4 + 4, lambda: (padd(), pread(TMP, 2)))
        def finA():
            padd()
            for t in check_ops(Oa, TMP): a(t)
            sk = a.lab('a_later')
            a(f's_cbranch_scc0 {sk}')
            a(f'v_rcp_f32 v{TMP}, v{Oa+8}')
            for r_ in range(8): a(f'v_mul_f32 v{Oa+r_}, v{TMP}, v{Oa+r_}')
            for r_ in range(4): a(f'v_cvt_pk_bf16_f32 v{TMP+4+r_}, v{Oa+2*r_}, v{Oa+2*r_+1}')
            a(f'buffer_store_dwordx4 {v(TMP+4,4)}, v{L16}, s[4:7], s39 offen sc1')
            a('s_mov_b32 s40, 1'); a('s_mov_b32 s41, 1')
            a.label(sk)
        add(ev_b, n4 + 5, finA)
        sa = []; sig_addr(1, 37, out=sa)
        add(ev_sal, n4 + 6, sa)
        def sstep():
            a('s_waitcnt vmcnt(0)'); waited[0] = nvm[0]
            sig_step()
        add(ev_b, n4 + 9, sstep)
        add(ev_b, n4 + 15, sstep)
        n7 = firstof[7]
        add(ev_b, n7 + 8, lambda: own_addr(1))
        for sl in range(3):
            add(ev_b, n7 + 9 + sl, lambda sl=sl: pread(VR + 12*sl, sl))
        def wr_issue():
            a(f's_mov_b32 s50, {WCELL}'); a(f'v_mov_b32 v{T0}, 0')
            poll_load(1); nvm[0] += 1; atq['wflag'] = nvm[0]
        def wr_check():
            go = a.lab('wgo')
            need_vm(atq['wflag'])
            poll_test(1, go)
            poll_spin(1, go)
        add(ev_a, 20, wr_issue)
        add(ev_a, 26, wr_check)
        def w_issue():
            poll_setup(1, [38]); poll_load(1); nvm[0] += 1
        add(ev_a, n7 + 10, w_issue)
        GS = int(OPT['gs'])
        if GS < 4:
            ex2 = []
            for g in extra:
                cur = []; nm = 0
                for t in g:
                    if t.startswith('buffer'):
                        if nm == GS: ex2.append(cur); cur = []; nm = 0
                        nm += 1
                    cur.append(t)
                ex2.append(cur)
            extra = ex2
        slots = [n for n in range(28 if GS < 4 else 34, N - 12, 1 if GS < 4 else 2) if n not in ev_a and n not in ev_b and not (n4 - 4 <= n <= n4 + 15)]
        assert len(slots) >= len(extra), (len(slots), len(extra))
        gslot = dict(zip(slots, extra))
        for n, (p_, kt) in enumerate(steps):
            S = SB[n % 2]; O = OA[p_ % 2]
            e = [f'v_exp_f32 v{S+r}, v{S+r}' for r in range(16)]
            c = [f'v_cvt_pk_bf16_f32 v{PB[r//4]+r%4}, v{S+2*r}, v{S+2*r+1}' for r in range(8)]
            if OPT.get('fine') == 'att' and n in (0, 8, 16, 32, 48, 64, 80, 96, 112): st(f'att n{n}')
            for l_ in ev_sal.get(n, []):
                assert not sal, n
                sal += l_
            if n + 1 < N:
                p2, kt2 = steps[n + 1]
                if n < 32: need_vm(atk[kt2])
                if n + 1 == firstof[p2]: need_vm(atq[p2])
                a(f'{MFMA} {v(SB[(n+1)%2],16)}, {kreg(kt2)}, {v(QF[p2%2],4)}, 0')
                hide()
            for f in ev_a.get(n, []):
                assert not sal, n
                f()
            a(e[0]); a(e[1]); a(e[2]); a(e[3]); a(c[0]); a(c[1]); a(e[4])
            if n > 0:
                pp, pk = steps[n - 1]
                a(f'{MFMA} {v(OA[pp%2],16)}, {vreg(pk,1)}, {v(PB[1],4)}, {v(OA[pp%2],16)}')
                hide()
            if n in gslot:
                for t in gslot[n]:
                    a(t)
                    if t.startswith('buffer'): nvm[0] += 1
            a(e[5]); a(e[6]); a(e[7]); a(c[2]); a(c[3]); a(e[8]); a(e[9]); a(e[10])
            if n < 32: need_vm(atv[kt])
            a(f'{MFMA} {v(O,16)}, {vreg(kt,0)}, {v(PB[0],4)}, {"0" if n == firstof[p_] else v(O,16)}')
            hide()
            a(e[11]); a(c[4]); a(c[5]); a(e[12]); a(e[13])
            for f in ev_b.get(n, []):
                assert not sal, n
                f()
            a(e[14]); a(e[15]); a(c[6]); a(c[7])
        a(f'{MFMA} {v(OA[1],16)}, {vreg(15,1)}, {v(PB[1],4)}, {v(OA[1],16)}')
        st('att loop')
        U = SB[0]
        Oa = OA[1]
        a('s_waitcnt lgkmcnt(0)')
        a(f's_add_u32 s55, s39, {32*1024}')
        a('s_mov_b32 s43, 1')
        sig_addr(1, 37, add=4)
        for sl in range(3):
            b = VR + 12*sl
            for r_ in range(0, 8, 2): a(f'v_pk_add_f32 {v(Oa+r_,2)}, {v(Oa+r_,2)}, {v(b+r_,2)}')
            a(f'v_add_f32 v{Oa+8}, v{Oa+8}, v{b+8}')
        for t in check_ops(Oa, U): a(t)
        a('s_cbranch_scc1 attn_fin')
        a.label('attn_slow')
        S = SB[0]; M = SB[1]; AL = M + 1; TA = M + 2; TB = M + 3
        KT = 224; V0 = 228; V1 = 232
        a('s_lshl_b32 s53, s12, 11'); a('s_lshl_b32 s54, s43, 10'); a('s_add_u32 s53, s53, s54'); a('s_add_u32 s53, s53, s48')
        a(f'buffer_load_dwordx4 {v(QF[0],4)}, v{L16}, s[4:7], s53 offen sc1')
        a(f'v_and_b32 v{TA}, 27, v{LN}')
        a(f'v_cmp_eq_u32 vcc, 16, v{TA}')
        a(f'v_mov_b32 v{TB}, {ONES}')
        a(f'v_cndmask_b32 v{TA}, 0, v{TB}, vcc')
        for r_ in range(8): a(f'v_mov_b32 v{V0+r_}, v{TA}')
        a(f'v_mov_b32 v{M}, {f32(-3.0e38)}')
        for r_ in range(16): a(f'v_mov_b32 v{Oa+r_}, 0')
        a(f's_add_u32 s46, s44, {L.K[0]}'); a(f's_add_u32 s47, s44, {L.V[0]}')
        a('s_mov_b32 s54, 64')
        a.label('attn_slow_loop')
        a(f'buffer_load_dwordx4 {v(KT,4)}, v{L16}, s[4:7], s46 offen sc1')
        a('s_mov_b64 exec, s[30:31]')
        a(f'buffer_load_dwordx4 {v(V0,4)}, v{VOFF}, s[4:7], s47 offen sc1')
        a(f'buffer_load_dwordx4 {v(V1,4)}, v{VOFF}, s[4:7], s47 offen offset:512 sc1')
        a('s_mov_b64 exec, -1')
        a('s_add_u32 s46, s46, 1024'); a('s_add_u32 s47, s47, 1024')
        a('s_waitcnt vmcnt(0)')
        a(f'{MFMA} {v(S,16)}, {v(KT,4)}, {v(QF[0],4)}, 0')
        a(f'v_max3_f32 v{TA}, v{S}, v{S+1}, v{M}')
        for r_ in range(2, 16, 2): a(f'v_max3_f32 v{TA}, v{S+r_}, v{S+r_+1}, v{TA}')
        a(f'v_mov_b32 v{TB}, v{TA}')
        a(f'v_permlane32_swap_b32 v{TA}, v{TB}')
        a(f'v_max_f32 v{TA}, v{TA}, v{TB}')
        a(f'v_sub_f32 v{AL}, v{M}, v{TA}')
        a(f'v_exp_f32 v{AL}, v{AL}')
        a(f'v_mov_b32 v{M}, v{TA}')
        for r_ in range(16):
            a(f'v_sub_f32 v{S+r_}, v{S+r_}, v{M}')
            a(f'v_exp_f32 v{S+r_}, v{S+r_}')
        for r_ in range(16): a(f'v_mul_f32 v{Oa+r_}, v{AL}, v{Oa+r_}')
        for r_ in range(8): a(f'v_cvt_pk_bf16_f32 v{PB[r_//4]+r_%4}, v{S+2*r_}, v{S+2*r_+1}')
        a(f'{MFMA} {v(Oa,16)}, {v(V0,4)}, {v(PB[0],4)}, {v(Oa,16)}')
        a(f'{MFMA} {v(Oa,16)}, {v(V1,4)}, {v(PB[1],4)}, {v(Oa,16)}')
        a('s_sub_u32 s54, s54, 1')
        a('s_cmp_lg_u32 s54, 0')
        a('s_nop 7')
        a('s_cbranch_scc1 attn_slow_loop')
        a('s_nop 7')
        a.label('attn_fin')
        a(f'v_rcp_f32 v{U}, v{Oa+8}')
        for r_ in range(0, 8, 2): a(f'v_pk_mul_f32 {v(Oa+r_,2)}, {v(Oa+r_,2)}, {v(U,2)} op_sel:[0,0] op_sel_hi:[1,0]')
        for r_ in range(4): a(f'v_cvt_pk_bf16_f32 v{TMP+8+r_}, v{Oa+2*r_}, v{Oa+2*r_+1}')
        a(f'buffer_store_dwordx4 {v(TMP+8,4)}, v{L16}, s[4:7], s55 offen sc1')
        a('s_mov_b32 s41, 1')
        a('s_cmp_eq_u32 s40, 1')
        a('s_cbranch_scc1 attn_done')
        sig_block()
        a('s_cmp_eq_u32 s43, 0')
        a('s_cbranch_scc1 attn_done')
        a('s_mov_b32 s43, 0'); a('s_mov_b32 s55, s39')
        sig_addr(1, 37)
        a('s_branch attn_slow')
        a.label('attn_done')

    def touch_wqkv():
        per = L.FT_QKV * FT // 32
        g = [f's_mul_i32 s60, s14, {per}', f's_mul_i32 s61, s12, {per//4}', 's_add_u32 s60, s60, s61', f's_add_u32 s60, s60, {L.WQKVF}',
             f'v_lshlrev_b32 v{T0}, 7, v{LN}', 's_add_u32 s61, s60, 4480',
             f'buffer_load_dword v{T1}, v{T0}, s[4:7], s60 offen sc1', f'buffer_load_dword v{T1}, v{T0}, s[4:7], s61 offen sc1']
        return [g]

    def dump():
        if not STAMP: return
        a('s_lshl_b32 s90, s2, 2'); a('s_add_u32 s90, s90, s12'); a('s_lshl_b32 s90, s90, 1'); a('s_add_u32 s90, s90, s26')
        a('s_lshl_b32 s90, s90, 8'); a(f's_add_u32 s90, s90, {L.FLAGS + 7*L.MB}')
        a(f'buffer_store_dword v0, v{L4}, s[4:7], s90 offen')
        a('s_waitcnt vmcnt(0)')

    a('s_branch main_attpre')
    a.label('main_layer')
    st('start')
    gemmA_pre(True)
    a('s_waitcnt vmcnt(0)')
    poll_test(1, 'main_q_go')
    poll_spin(1, 'main_q_go')
    a.label('main_qkv')
    st('qkv go')
    def first_sync(n):
        sk = a.lab('nosync')
        a('s_cmp_eq_u32 s26, 1')
        a(f's_cbranch_scc1 {sk}')
        a(f's_waitcnt vmcnt({n})')
        a('s_barrier')
        a.label(sk)
    gemmA(True, None if K1 else first_sync)
    sig_addr(0, 34)
    a('s_mov_b32 s41, 1')
    a.label('main_attpre')
    attn_pre()
    for i in range(4):
        a(f's_add_u32 s{76+i}, s46, {4096*i}'); a(f's_add_u32 s{80+i}, s47, {4096*i}')
    st('qkv sig')
    a('s_cmp_eq_u32 s26, 1')
    a('s_cbranch_scc1 main_nores')
    a('s_waitcnt vmcnt(0)')
    for g in range(2):
        a(f'v_permlane32_swap_b32 v{RES+4*g}, v{RES+4*g+2}')
        a(f'v_permlane32_swap_b32 v{RES+4*g+1}, v{RES+4*g+3}')
    a.label('main_nores')
    a('s_cmp_ge_u32 s12, 2')
    a('s_cbranch_scc1 main_att_bar')
    sig_block()
    a('s_lshr_b32 s52, s24, 1'); a(f's_mul_i32 s52, s52, {8*CST}'); a('s_add_u32 s50, s28, s52')
    a(f'v_mul_u32_u24 v{T0}, {2*CST}, v{LN}')
    poll_spin(4, a.lab('go'))
    a.label('main_att_bar')
    a('s_barrier')
    a.label('main_att_go')
    st('att go')
    extra = wtile_dma(False) + wB_loads(True, list(range(8))) + wB_loads(False, list(range(NW2PRE))) + touch_wqkv()
    attn(extra)
    st('att sig')
    gemmB_pre(True)
    a('s_waitcnt vmcnt(1)')
    poll_test(1, 'main_wo_go')
    poll_spin(1, 'main_wo_go', hook=sig_step)
    a('s_barrier')
    gemmB(True, tail=wB_loads(False, list(range(NW2PRE, 22))))
    a('s_cmp_eq_u32 s16, 15')
    a('s_cbranch_scc1 main_skip_ffn1')
    gemmA_pre(False)
    a('s_waitcnt vmcnt(0)')
    poll_test(1, 'main_f1_go')
    poll_spin(1, 'main_f1_go')
    st('ffn1 go')
    gemmA(False)
    sig_addr(3, 17)
    a('s_mov_b32 s41, 1')
    a.label('main_skip_ffn1')
    gemmB_pre(False)
    st('ffn1 sig')
    a('s_cmp_ge_u32 s12, 2')
    a('s_cbranch_scc1 main_f2_bar')
    sig_block()
    poll(3, [21])
    a.label('main_f2_bar')
    a('s_barrier')
    gemmB(False, tail=wtile_dma3())
    if STAMP: a('s_waitcnt vmcnt(0)'); st('end')
    dump()
    a('s_cmp_eq_u32 s26, 1')
    a('s_cbranch_scc1 main_end')
    a('s_mov_b32 s26, 1'); a(f's_mov_b32 s27, {2*L.MB}'); a(f's_add_u32 s28, s28, {LST}')
    a('s_branch main_layer')
    a.label('main_end')
    a('s_endpgm')
    return 256, 160*1024


if __name__ == '__main__':
    p = Prog()
    cfg = gen_main(p)
    p.launches.append((KNAME, 256, *cfg))
    errs = p.a.check_branches()
    for e in errs: print('HAZARD', e, file=sys.stderr)
    txt = p.text()
    if os.environ.get('SINGLE'):
        txt = txt.replace(f'; @launch kernel={KNAME} ', '; @launch ')
    open(sys.argv[1], 'w').write(txt)
    if STAMP: open(sys.argv[1] + '.names', 'w').write('\n'.join(STAMPS))
    print('pads', p.a.pads, 'instrs', sum(1 for i in p.a.ins if i.states), file=sys.stderr)
```

```python
import sys, os
sys.path.insert(0, 'work')
from gen import *

CNT = L.FLAGS
CST = 512
FOFF = 256
CB = [0, 128, 384, 448, 512]
LST = 576 * CST
def areg(a0, n=4): return f'a[{a0}:{a0+n-1}]'
FT = 33 * 1024
WT = 3 * FT
RED = WT; PART = WT; SCR = WT + 56*1024
OPT = dict(bwin='12', apre='16', nb='16', bwin2='12', gs='3'); OPT.update(x.split('=') for x in os.environ.get('OPT', '').split(',') if x)
TARGET = {0: 8, 1: 8, 2: 16, 3: 15, 4: 16}
SPIN = 0x200000
STAMPS = []
K1 = 1
W2KS = 96
NSIDE = 151
WCELL = CNT + 2*LST
KNAME = 'interleave_layers__mha_block__dense_activation_mish__prompt_kernel'


def phase0(a):
    a('s_load_dwordx4 s[8:11], s[0:1], 0')
    a('s_load_dwordx4 s[20:23], s[0:1], 64')
    a('s_getpc_b64 s[60:61]')
    a.label('p0_pc')
    a('s_and_b32 s62, s2, 8'); a('s_lshl_b32 s62, s62, 12')
    a('s_sub_u32 s63, main_end-p0_pc, s62')
    a('s_add_u32 s60, s60, s62'); a('s_addc_u32 s61, s61, 0')
    a('v_lshlrev_b32 v182, 7, v0')
    a('v_min_u32 v182, s63, v182')
    a('v_mov_b32 v183, s61')
    a('v_add_co_u32 v182, vcc, s60, v182')
    a('v_addc_co_u32 v183, vcc, 0, v183, vcc')
    a('global_load_dword v184, v[182:183], off')
    a('s_load_dwordx2 s[84:85], s[0:1], 16')
    a('s_load_dwordx4 s[88:91], s[0:1], 32')
    a('s_load_dwordx2 s[86:87], s[0:1], 48')
    LN, L16, L4, T0, T1, T2, T3 = 1, 2, 3, 4, 5, 6, 7
    a(f'v_and_b32 v{LN}, 63, v0')
    a(f'v_lshrrev_b32 v{T0}, 6, v0')
    a(f'v_readfirstlane_b32 s12, v{T0}')
    a('s_and_b32 s13, s2, 7'); a('s_lshr_b32 s14, s2, 3')
    a('s_lshl_b32 s15, s13, 2'); a('s_and_b32 s33, s14, 3'); a('s_add_u32 s15, s15, s33')
    a('s_lshr_b32 s18, s14, 2')
    a('s_add_u32 s48, s18, s13'); a('s_and_b32 s48, s48, 7')
    WSL = 12288; XB = 8*WSL; XSL = 8192
    DW, DX = 8, 9
    a(f'v_lshrrev_b32 v{T0}, 3, v{LN}')
    a(f'v_and_b32 v{T1}, 7, v{LN}')
    a(f'v_bfe_u32 v{T2}, v{LN}, 4, 1')
    a(f'v_lshlrev_b32 v{T2}, 2, v{T2}')
    a(f'v_xor_b32 v{T2}, v{T1}, v{T2}')
    a(f'v_mul_u32_u24 v{DW}, 3072, v{T0}')
    a(f'v_lshl_add_u32 v{DW}, v{T2}, 4, v{DW}')
    a(f'v_lshrrev_b32 v{T2}, 4, v{LN}')
    a(f'v_xor_b32 v{T2}, v{T1}, v{T2}')
    a(f'v_lshlrev_b32 v{DX}, 10, v{T0}')
    a(f'v_lshl_add_u32 v{DX}, v{T2}, 4, v{DX}')
    a(f'v_xor_b32 v{DX+1}, 64, v{DX}')
    a(f'v_add_u32 v{DX+1}, {8*1024 - 1024}, v{DX+1}')
    a('s_mul_i32 s40, s12, 24576'); a('s_lshl_b32 s33, s18, 7'); a('s_add_u32 s40, s40, s33')
    a('s_lshl_b32 s43, s15, 16'); a('s_lshl_b32 s33, s12, 14'); a('s_add_u32 s43, s43, s33')
    a(f's_mul_i32 s33, s48, {64*3072}'); a('s_add_u32 s40, s40, s33')
    a('s_lshl_b32 s33, s48, 7'); a('s_add_u32 s43, s43, s33')
    a(f's_mov_b32 s49, {64*3072}'); a('s_movk_i32 s51, 128')
    MIX = int(OPT.get('mix', 0))
    a(f's_add_u32 s76, s18, {3*MIX}'); a('s_and_b32 s76, s76, 7'); a(f's_add_u32 s77, s18, {6*MIX}'); a('s_and_b32 s77, s77, 7')
    a('s_sub_u32 s74, s76, s18'); a('s_lshl_b32 s74, s74, 7'); a('s_add_u32 s74, s74, 1024')
    a('s_sub_u32 s75, s77, s18'); a('s_lshl_b32 s75, s75, 7'); a('s_add_u32 s75, s75, 2048')
    a(f's_add_u32 s78, s74, {32*3072}'); a(f's_add_u32 s79, s75, {32*3072}')
    a('s_lshl_b32 s44, s12, 10'); a('s_lshl_b32 s45, s12, 11'); a(f's_add_u32 s45, s45, {XB}')
    a('s_sub_u32 s33, s2, 160'); a('s_lshl_b32 s34, s33, 2'); a('s_add_u32 s34, s34, s12'); a(f's_mul_i32 s34, s34, {37*256}')
    a(f's_add_u32 s34, s34, {CNT}')
    a(f'v_min_u32 v{T0}, 36, v{LN}'); a(f'v_lshlrev_b32 v{T0}, 8, v{T0}')
    a(f'v_mov_b32 v{T1}, 0')
    if STAMP:
        a('s_memrealtime s[96:97]')
    a('s_waitcnt lgkmcnt(0)')
    if STAMP:
        STAMPS.append('p0 prek'); i_ = len(STAMPS) - 1
        a(f'v_writelane_b32 v11, s96, {2*i_+2}'); a(f'v_writelane_b32 v11, s96, {2*i_+3}')
    stp0('p0 karg')
    srd(a, 4, 22, L.WS_BYTES)
    srd(a, 28, 10, 512*1536*2)
    srd(a, 8, 8, 2*L.MB)
    a('s_cmp_lt_u32 s33, 16'); a('s_cselect_b32 s35, 1, 0')
    a('s_cbranch_scc0 p0_noclr')
    a(f'buffer_store_dword v{T1}, v{T0}, s[4:7], s34 offen sc1')
    a.label('p0_noclr')
    def dma_pair(sl):
        o = []
        o.append([f's_add_u32 m0, s45, {sl*XSL}', 's_add_u32 s46, s40, s74', f'buffer_load_dwordx4 v{DX}, s[8:11], s43 offen lds'])
        o.append([f'buffer_load_dwordx4 v{DX+1}, s[8:11], s43 offen offset:1024 lds', 's_add_u32 s48, s48, 1', 's_cmp_eq_u32 s48, 8',
                  f's_cselect_b32 s50, {(128 - 1024) & 0xffffffff}, s51', f's_cselect_b32 s52, {((64 - 512)*3072) & 0xffffffff}, s49', 's_add_u32 s43, s43, s50'])
        src = ['s40', 's46', 's47', 's46', 's47', 's46']
        for n in range(6):
            h, u = divmod(n, 3)
            g = [f's_add_u32 m0, s44, {(2*sl + h)*WSL + u*4096}']
            if 0 < n < 5:
                h2, u2 = divmod(n + 1, 3)
                g.append(f's_add_u32 {src[n+1]}, s40, ' + {2: 's75', 3: str(32*3072), 4: 's78', 5: 's79'}[n+1])
            else:
                g.append('s_nop 0' if n == 0 else 's_add_u32 s40, s40, s52')
            g.append(f'buffer_load_dwordx4 v{DW}, s[28:31], {src[n]} offen lds')
            o.append(g)
        return o
    def run(gs):
        for g in gs:
            for t in g: a(t)
    if int(OPT.get('tch', 1)):
        a('s_lshl_b32 s33, s2, 2'); a('s_add_u32 s33, s33, s12'); a('s_mul_i32 s33, s33, 1536')
        a(f'v_lshlrev_b32 v185, 7, v{LN}')
        a('s_mov_b64 exec, 0xfff')
        a('buffer_load_dword v187, v185, s[28:31], s33 offen')
        a('s_mov_b64 exec, -1')
    run(dma_pair(0))
    stp0('p0 dma0')
    srd(a, 20, 20, 256)
    if int(OPT.get('tlb', 0)):
        a(f'v_lshlrev_b32 v185, 21, v{LN}'); a(f'v_min_u32 v185, {CNT}, v185')
        a('buffer_load_dword v186, v185, s[4:7], 0 offen')
        a(f'buffer_load_dword v187, v{T1}, s[20:23], 0 offen offset:192')
    run(dma_pair(1))
    a(f'v_lshlrev_b32 v{L16}, 4, v{LN}')
    a(f'v_lshlrev_b32 v{L4}, 2, v{LN}')
    a('s_lshr_b32 s19, s12, 1'); a('s_and_b32 s24, s12, 1'); a('s_xor_b32 s25, s19, s24')
    RW = 66
    a(f'v_lshrrev_b32 v{T0}, 5, v{LN}'); a(f'v_lshlrev_b32 v{T0}, 3, v{T0}')
    a(f'v_bfe_u32 v{T1}, v{LN}, 2, 2'); a(f'v_add_u32 v{T0}, v{T0}, v{T1}'); a(f'v_lshlrev_b32 v{RW}, 7, v{T0}')
    a(f'v_bfe_u32 v{T1}, v{LN}, 3, 1'); a(f'v_xor_b32 v{T1}, s24, v{T1}'); a(f'v_lshl_add_u32 v{RW}, v{T1}, 6, v{RW}')
    a(f'v_bfe_u32 v{T1}, v{LN}, 4, 1'); a(f'v_lshl_add_u32 v{RW}, v{T1}, 5, v{RW}')
    a(f'v_and_b32 v{T1}, 3, v{LN}'); a(f'v_lshl_add_u32 v{RW}, v{T1}, 3, v{RW}')
    a('s_lshl_b32 s33, s25, 11')
    a(f'v_xor_b32 v{RW}, s33, v{RW}'); a(f'v_xor_b32 v{RW+1}, 2048, v{RW}')
    a(f'v_add_u32 v70, {4*WSL}, v{RW}'); a(f'v_add_u32 v71, {4*WSL}, v{RW+1}')
    RX = 12
    a(f'v_and_b32 v{T0}, 31, v{LN}'); a(f'v_lshlrev_b32 v{T1}, 7, v{T0}')
    a(f'v_bfe_u32 v{T2}, v{LN}, 1, 3'); a(f'v_lshrrev_b32 v{T3}, 5, v{LN}'); a(f'v_xor_b32 v{T2}, v{T2}, v{T3}')
    a(f'v_lshl_add_u32 v{T1}, v{T2}, 4, v{T1}')
    a('s_lshl_b32 s33, s25, 5'); a(f'v_xor_b32 v{T1}, s33, v{T1}')
    a('s_lshl_b32 s33, s19, 12'); a(f's_add_u32 s33, s33, {XB}')
    a(f'v_add_u32 v{RX}, s33, v{T1}')
    for q in range(1, 4): a(f'v_xor_b32 v{RX+q}, {32*q}, v{RX}')
    STV = 16; RS, RQ = 68, 69; XE = 72; WE = 128
    FRG = [192, 128]
    ACC = [80 + 16*i for i in range(3)]
    S1, S2, CS, ONE, AV = 32, 33, 34, 37, 38
    for r_ in range(S1, CS + 3): a(f'v_mov_b32 v{r_}, 0')
    a(f'v_mov_b32 v{ONE}, {ONES}')
    for r_ in range(0, 48, 2): a(f'v_pk_mov_b32 {v(ACC[0]+r_,2)}, {v(S1,2)}, {v(S1,2)}')
    SD, SR = 40, 41
    EARLY = int(OPT.get('early', 1))
    def side_params():
        a('s_and_b32 s26, s2, 0xf0'); a('s_lshl_b32 s33, s13, 1'); a('s_add_u32 s26, s26, s33'); a('s_and_b32 s33, s14, 1'); a('s_add_u32 s26, s26, s33')
        a('s_mov_b32 s95, 0x00020000')
        a('s_lshl_b32 s71, s12, 13'); a(f's_add_u32 s71, s71, {XB + 4*XSL}')
        a(f'v_lshrrev_b32 v{T0}, 5, v{LN}'); a(f'v_lshlrev_b32 v{T0}, 2, v{T0}')
        a(f'v_bfe_u32 v{T2}, v{LN}, 2, 2'); a(f'v_add_u32 v{T0}, v{T0}, v{T2}')
        a(f'v_bfe_u32 v{T2}, v{LN}, 4, 1'); a(f'v_lshlrev_b32 v{T2}, 5, v{T2}')
        a(f'v_and_b32 v{T1}, 3, v{LN}'); a(f'v_lshl_add_u32 v{T2}, v{T1}, 3, v{T2}')
        a('s_cmp_ge_u32 s26, 44'); a('s_cbranch_scc1 p0_rows')
        a('s_mov_b32 s92, s88'); a('s_mov_b32 s93, s89'); a(f's_mov_b32 s94, {512*1376*2}'); a('s_mov_b32 s65, 2')
        a('s_mov_b32 s68, s26')
        a(f's_mul_i32 s70, s68, {FT}'); a(f's_add_u32 s70, s70, {L.W1F}')
        a('s_lshl_b32 s66, s12, 13'); a('s_add_u32 s66, s66, s70'); a('s_movk_i32 s72, 1024')
        a(f's_mov_b32 s73, {16*2752}'); a(f's_mul_i32 s67, s12, {128*2752}'); a('s_lshl_b32 s33, s68, 6'); a('s_add_u32 s67, s67, s33')
        a(f'v_lshrrev_b32 v{SD}, 2, v{LN}'); a(f'v_mul_u32_u24 v{SD}, 2752, v{SD}'); a(f'v_lshl_add_u32 v{SD}, v{T1}, 4, v{SD}')
        a(f'v_lshl_add_u32 v{SR}, v{T0}, 6, v{T2}'); a(f'v_add_u32 v{SR}, s71, v{SR}')
        a('s_branch p0_prm')
        a.label('p0_rows')
        a('s_mov_b32 s65, 0'); a('s_mov_b32 s69, 0')
        a('s_mov_b32 s92, s28'); a('s_mov_b32 s93, s29'); a(f's_mov_b32 s94, {512*1536*2}')
        a('s_sub_u32 s68, s26, 44'); a('s_lshr_b32 s69, s68, 4'); a('s_and_b32 s68, s68, 15')
        a('s_movk_i32 s73, 3072'); a(f's_mov_b32 s72, {L.KSX*1024}'); a(f's_mov_b32 s70, {L.WQKVF}')
        a('s_cmp_lt_u32 s26, 92'); a('s_cbranch_scc1 p0_rows2')
        a('s_mov_b32 s92, s84'); a('s_mov_b32 s93, s85'); a(f's_mov_b32 s94, {512*512*2}'); a('s_mov_b32 s69, 0')
        a('s_movk_i32 s73, 1024'); a(f's_mov_b32 s72, {32*1024}'); a(f's_mov_b32 s70, {L.WOF}')
        a('s_cmp_lt_u32 s26, 108'); a('s_cbranch_scc1 p0_rows2')
        a('s_mov_b32 s92, s86'); a('s_mov_b32 s93, s87'); a(f's_mov_b32 s94, {1376*512*2}')
        a('s_sub_u32 s68, s26, 108'); a(f's_mov_b32 s72, {W2KS*1024}'); a(f's_mov_b32 s70, {L.W2F}')
        a(f's_cmp_ge_u32 s26, {NSIDE}'); a('s_cselect_b32 s94, 0, s94')
        a.label('p0_rows2')
        a('s_lshl_b32 s33, s68, 2'); a('s_add_u32 s33, s33, s12'); a('s_lshl_b32 s33, s33, 3'); a('s_mul_i32 s67, s33, s73')
        a('s_lshl_b32 s33, s69, 10'); a('s_add_u32 s67, s67, s33')
        a('s_lshl_b32 s33, s69, 1'); a('s_add_u32 s33, s33, s24'); a('s_lshl_b32 s33, s33, 3'); a('s_mul_i32 s66, s33, s72')
        a('s_lshl_b32 s33, s68, 1'); a('s_add_u32 s33, s33, s19'); a('s_lshl_b32 s33, s33, 10'); a('s_add_u32 s66, s66, s33'); a('s_add_u32 s66, s66, s70')
        a(f'v_mov_b32 v{SD}, v{L16}')
        a('s_lshl_b32 s33, s19, 14'); a('s_lshl_b32 s34, s24, 9'); a('s_add_u32 s33, s33, s34'); a(f's_add_u32 s33, s33, {XB + 4*XSL}')
        a(f'v_lshl_add_u32 v{SR}, v{T0}, 10, v{T2}'); a(f'v_add_u32 v{SR}, s33, v{SR}')
        a.label('p0_prm')
        a('s_and_b32 s93, s93, 0xffff')
    def side_dma():
        return [[f's_add_u32 m0, s71, {i*1024}', 's_nop 0', f'buffer_load_dwordx4 v{SD}, s[92:95], s67 offen lds', 's_add_u32 s67, s67, s73'] for i in range(8)]
    def reads(sl):
        F = FRG[sl % 2]; o = []
        for j in range(4):
            h, s_ = divmod(j, 2)
            o.append(f'ds_read_b128 {v(F+16*j,4)}, v{RX + j} offset:{sl*XSL}')
            ad = (RW if sl < 2 else 70) + s_
            for u in range(3):
                r = F + 16*j + 4 + 4*u; off = (2*(sl % 2) + h)*WSL + u*4096
                o.append(f'ds_read_b64_tr_b16 {v(r,2)}, v{ad} offset:{off}')
                o.append(f'ds_read_b64_tr_b16 {v(r+2,2)}, v{ad} offset:{off+512}')
        return o
    def mf(f, xf, wf, first):
        cc = '0' if first else v(ACC[f], 16)
        if f == 2: a(f'{MFMA} {v(ACC[f],16)}, {xf}, {wf}, {cc}')
        else: a(f'{MFMA} {v(ACC[f],16)}, {wf}, {xf}, {cc}')
    a('s_mov_b32 s36, 0')
    a('s_mov_b32 s92, s28'); a('s_mov_b32 s93, s29'); a('s_mov_b32 s94, 0'); a('s_mov_b32 s95, 0x00020000')
    stp0('p0 setup')
    a(f's_waitcnt vmcnt({8 + 2*int(OPT.get("tlb", 0))})')
    a('s_barrier')
    stp0('p0 first')
    for t in reads(0): a(t)
    run(dma_pair(2))
    run(dma_pair(3))
    if EARLY:
        side_params(); run(side_dma())
    a('.p2align 6')
    a.label('p0_loop')
    for sl in range(4):
        if EARLY and sl == 3:
            a('s_waitcnt vmcnt(16) lgkmcnt(0)')
        else:
            a(f's_cmp_eq_u32 s36, {0 if EARLY else 1}')
            a('s_waitcnt vmcnt(24) lgkmcnt(0)')
            a(f's_cbranch_scc1 p0_ww{sl}')
            a('s_waitcnt vmcnt(16)')
            a.label(f'p0_ww{sl}')
        a('s_barrier')
        q = reads((sl + 1) % 4)
        dp = dma_pair(sl)
        F = FRG[sl % 2]
        for n in range(12):
            j, f = divmod(n, 3)
            mf(f, v(F+16*j, 4), v(F+16*j+4+4*f, 4), False)
            for _ in range(3 if n < 4 else 2):
                if q: a(q.pop(0))
            if n >= 4:
                for t in dp.pop(0): a(t)
            if n == 3 and sl in (0, 3):
                a('s_cmp_eq_u32 s35, 0'); a(f's_cbranch_scc0 p0_clr{sl}')
                a.label(f'p0_back{sl}')
        assert not q and not dp
        for r_ in range(4):
            for j in (0, 2):
                a(f'v_dot2_f32_bf16 v{S1}, v{F+16*j+r_}, v{ONE}, v{S1}')
                a(f'v_dot2_f32_bf16 v{S2}, v{F+16*j+r_}, v{F+16*j+r_}, v{S2}')
                for u in range(3): a(f'v_dot2_f32_bf16 v{CS+u}, v{F+16*(j+1)+4+4*u+r_}, v{ONE}, v{CS+u}')
    a('s_cmp_eq_u32 s36, 1')
    a('s_cbranch_scc1 p0_after')
    a('s_mov_b32 s36, 1'); a('s_mov_b32 s10, 0'); a('s_mov_b32 s30, 0'); a('s_mov_b32 s35, 0')
    stp0('p0 trip0')
    if not EARLY:
        side_params(); run(side_dma())
    a('s_branch p0_loop')
    a.label('p0_clr0')
    a('s_cmp_lg_u32 s12, 0'); a('s_cbranch_scc1 p0_back0')
    a('s_mov_b64 exec, 1'); a(f'v_mov_b32 v{AV}, 1')
    a(f'buffer_atomic_add v{AV}, v{L4}, s[20:23], 0 offen sc0 sc1')
    a('s_mov_b64 exec, -1')
    a('s_branch p0_back0')
    a.label('p0_clr3')
    a('s_cmp_lg_u32 s12, 0'); a('s_cbranch_scc1 p0_back3')
    a(f'v_readfirstlane_b32 s33, v{AV}')
    a('s_cmp_lg_u32 s33, 15'); a('s_cbranch_scc1 p0_back3')
    a('s_mov_b64 exec, 1'); a(f'v_mov_b32 v{AV}, 1')
    a(f'buffer_store_dword v{AV}, v{L4}, s[20:23], 0 offen offset:128 sc1')
    a('s_mov_b64 exec, -1')
    a('s_branch p0_back3')
    a.label('p0_after')
    a(f's_mov_b32 s10, {2*L.MB}')
    a('s_lshl_b32 s17, s15, 1'); a('s_add_u32 s17, s17, s19')
    a('s_lshl_b32 s16, s18, 1'); a('s_add_u32 s16, s16, s24')
    a('s_lshl_b32 s76, s76, 1'); a('s_add_u32 s76, s76, s24'); a('s_lshl_b32 s77, s77, 1'); a('s_add_u32 s77, s77, s24')
    a('s_lshl_b32 s33, s17, 10')
    a('s_lshl_b32 s56, s16, 17'); a('s_add_u32 s56, s56, s33'); a('s_add_u32 s57, s56, 0x10000')
    a('s_lshl_b32 s58, s76, 17'); a('s_add_u32 s58, s58, s33'); a(f's_add_u32 s58, s58, {L.K[0]}'); a('s_add_u32 s59, s58, 0x10000')
    a('s_lshl_b32 s54, s77, 17'); a('s_add_u32 s54, s54, s33'); a(f's_add_u32 s54, s54, {L.V[0]}')
    a('s_waitcnt vmcnt(0) lgkmcnt(0)')
    SC0 = 0
    stp0('p0 loop')
    a(f'v_permlane32_swap_b32 v{S1}, v{S2}')
    a(f'v_add_f32 v{S1}, v{S1}, v{S2}')
    a('s_lshl_b32 s33, s12, 10'); a(f's_add_u32 s33, s33, {SC0}')
    a(f'v_add_u32 v{T0}, s33, v{L4}')
    a(f'ds_write_b32 v{T0}, v{S1}')
    for u in range(3): a(f'ds_write_b32 v{T0}, v{CS+u} offset:{256*(u+1)}')
    a(f'v_xor_b32 v{T1}, 1024, v{T0}')
    a(f'v_xor_b32 v{T2}, 2048, v{T0}')
    a(f'v_xor_b32 v{T3}, 128, v{T2}')
    a(f'v_xor_b32 v{T0}, 128, v{T0}')
    a(f'v_bfe_u32 v78, v{LN}, 4, 1'); a('v_lshlrev_b32 v78, 16, v78')
    a(f'v_lshrrev_b32 v79, 5, v{LN}'); a('v_lshl_add_u32 v78, v79, 8, v78')
    a(f'v_and_b32 v79, 15, v{LN}'); a('v_lshl_add_u32 v78, v79, 4, v78')
    a('s_waitcnt lgkmcnt(0)')
    a('s_barrier')
    a(f'ds_read_b32 v{S2}, v{T1}')
    for u in range(3):
        a(f'ds_read_b32 v{48+3*u}, v{T0} offset:{256*(u+1)}')
        a(f'ds_read_b32 v{49+3*u}, v{T2} offset:{256*(u+1)}')
        a(f'ds_read_b32 v{50+3*u}, v{T3} offset:{256*(u+1)}')
    a('s_waitcnt lgkmcnt(9)')
    a(f'v_add_f32 v{STV}, v{S1}, v{S2}')
    a(f'v_mov_b32 v{STV+1}, v{STV}')
    a(f'v_permlane32_swap_b32 v{STV}, v{STV+1}')
    a(f'v_mul_f32 v{STV}, {f32(-1.0/512)}, v{STV}')
    a(f'v_mul_f32 v{STV+1}, {f32(1.0/512)}, v{STV+1}')
    a(f'v_fma_f32 v{STV+1}, -v{STV}, v{STV}, v{STV+1}')
    a(f'v_max_f32 v{STV+1}, 0, v{STV+1}')
    a(f'v_add_f32 v{STV+1}, {f32(1e-5)}, v{STV+1}')
    a(f'v_rsq_f32 v{RS}, v{STV+1}')
    MH, MM, ML, TT = STV+2, STV+3, STV+4, STV+8
    split3(a, STV, MH, MM, ML, TT)
    a('s_lshl_b32 s33, s12, 8'); a(f's_add_u32 s33, s33, {SC0 + 4096}')
    a(f'v_add_u32 v76, s33, v{L4}')
    a(f'ds_write_b32 v76, v{RS}')
    a(f'v_lshrrev_b32 v77, 5, v{LN}'); a('v_lshlrev_b32 v77, 4, v77'); a('v_add_u32 v77, s33, v77')
    pack_hi(a, XE, MH, MM)
    a(f'v_lshrrev_b32 v{XE+1}, 16, v{ML}'); a(f'v_mov_b32 v{XE+2}, 0'); a(f'v_lshrrev_b32 v{XE+3}, 16, v{MH}')
    a(f'v_mul_f32 v{RQ}, {f32(L.QSCALE)}, v{RS}')
    for j in range(4): a(f'ds_read_b128 {v(STV+4*j,4)}, v77 offset:{32*j}')
    a(f'v_cmp_gt_u32 vcc, 32, v{LN}')
    a('s_waitcnt lgkmcnt(5)')
    for u in (1, 2, 0):
        c_ = CS + u; W_ = WE + 4*u; HI, MID, LO, TQ = 44, 45, 46, 47
        a(f'v_add_f32 v{c_}, v{c_}, v{48+3*u}'); a(f'v_add_f32 v{49+3*u}, v{49+3*u}, v{50+3*u}'); a(f'v_add_f32 v{c_}, v{c_}, v{49+3*u}')
        split3(a, c_, HI, MID, LO, TQ)
        a(f'v_lshrrev_b32 v{W_+1}, 16, v{HI}'); a(f'v_or_b32 v{W_}, v{W_+1}, v{HI}')
        a(f'v_lshrrev_b32 v{W_+3}, 16, v{MID}')
        pack_hi(a, TQ, LO, MID)
        a(f'v_cndmask_b32 v{W_}, v{TQ}, v{W_}, vcc')
        a(f'v_cndmask_b32 v{W_+1}, 0, v{W_+1}, vcc')
        a(f'v_mov_b32 v{W_+2}, 0')
        a(f'v_cndmask_b32 v{W_+3}, 0, v{W_+3}, vcc')
        mf(u, v(XE, 4), v(W_, 4), False)
    a('s_cmp_lg_u32 s17, 0'); a('s_cbranch_scc1 p0_nowe')
    for u in range(3):
        a(f's_mul_i32 s33, s{(16, 76, 77)[u]}, {FT}'); a(f's_add_u32 s33, s33, {L.WQKVF + 32*1024 + 16*u*FT}')
        a(f'buffer_store_dwordx4 {v(WE+4*u,4)}, v{L16}, s[4:7], s33 offen sc1')
    a.label('p0_nowe')
    a('s_mov_b64 exec, 1')
    a(f'buffer_load_dword v{AV+1}, v{L4}, s[20:23], 0 offen offset:128 sc1')
    a('s_mov_b64 exec, -1')
    a('s_waitcnt lgkmcnt(0)')
    for f in (1, 2, 0):
        A = ACC[f]
        for g in range(2):
            B = A + 8*g
            for r_ in range(0, 8, 2):
                if f < 2:
                    o = 1 if f == 0 else 0
                    a(f'v_pk_mul_f32 {v(B+r_,2)}, {v(B+r_,2)}, {v(RS,2)} op_sel:[0,{o}] op_sel_hi:[1,{o}]')
                else:
                    a(f'v_pk_mul_f32 {v(B+r_,2)}, {v(B+r_,2)}, {v(STV+8*g+r_,2)}')
            for r_ in range(4): a(f'v_cvt_pk_bf16_f32 v{B+r_}, v{B+2*r_}, v{B+2*r_+1}')
            if f < 2: a(f'buffer_store_dwordx4 {v(B,4)}, v{L16}, s[4:7], s{56+2*f+g} offen sc1')
            else: a(f'buffer_store_dwordx4 {v(B,4)}, v78, s[4:7], s54 offen offset:{512*g} sc1')
    a('s_lshr_b32 s42, s17, 4'); a('s_lshl_b32 s42, s42, 1')
    a('s_and_b32 s33, s17, 1'); a('s_add_u32 s42, s42, s33'); a(f's_mul_i32 s42, s42, {CST}'); a(f's_add_u32 s42, s42, {CNT}')
    CA = 42
    a(f's_mul_i32 s33, s16, {8*CST}'); a(f'v_mov_b32 v{CA}, s33')
    a(f's_mul_i32 s33, s76, {8*CST}'); a(f'v_writelane_b32 v{CA}, s33, 1')
    a(f's_mul_i32 s33, s77, {8*CST}'); a(f'v_writelane_b32 v{CA}, s33, 2')
    FR = 224
    a('s_cmp_eq_u32 s65, 0'); a('s_cbranch_scc1 p0_rd2')
    for i in range(8):
        a(f'ds_read_b64_tr_b16 {v(FR+4*i,2)}, v{SR} offset:{i*1024}')
        a(f'ds_read_b64_tr_b16 {v(FR+4*i+2,2)}, v{SR} offset:{i*1024+512}')
    a('s_branch p0_rd3')
    a.label('p0_rd2')
    for i in range(8):
        a(f'ds_read_b64_tr_b16 {v(FR+4*i,2)}, v{SR} offset:{i*64}')
        a(f'ds_read_b64_tr_b16 {v(FR+4*i+2,2)}, v{SR} offset:{i*64+8192}')
    a.label('p0_rd3')
    a('s_waitcnt vmcnt(6)')
    a('s_mov_b32 s34, 0')
    a.label('p0_clr_poll')
    a(f'v_readfirstlane_b32 s33, v{AV+1}')
    a('s_cmp_eq_u32 s33, 1'); a('s_cbranch_scc1 p0_clr_ok')
    a('s_sleep 2')
    a('s_mov_b64 exec, 1')
    a(f'buffer_load_dword v{AV+1}, v{L4}, s[20:23], 0 offen offset:128 sc1')
    a('s_mov_b64 exec, -1')
    a('s_add_u32 s34, s34, 1')
    a('s_waitcnt vmcnt(0)')
    a(f's_cmp_lt_u32 s34, {SPIN}'); a('s_cbranch_scc1 p0_clr_poll')
    a.label('p0_clr_ok')
    a('s_waitcnt vmcnt(0)')
    a('s_mov_b64 exec, 7'); a(f'v_mov_b32 v{AV}, 1')
    a(f'buffer_atomic_add v{AV}, v{CA}, s[4:7], s42 offen sc0 sc1')
    a('s_mov_b64 exec, -1')
    stp0('p0 sig')
    a(f's_cmp_ge_u32 s26, {NSIDE}'); a('s_cbranch_scc1 p0_noside')
    a('s_waitcnt lgkmcnt(0)')
    for i in range(8):
        a(f'buffer_store_dwordx4 {v(FR+4*i,4)}, v{L16}, s[4:7], s66 offen sc1')
        a('s_add_u32 s66, s66, s72')
    a.label('p0_noside')
    a('s_cmp_eq_u32 s65, 0'); a('s_cbranch_scc1 p0_nosum')
    a(f'v_mov_b32 v{S1}, 0'); a(f'v_mov_b32 v{S2}, 0')
    for i in range(0, 32, 2):
        a(f'v_dot2_f32_bf16 v{S1}, v{FR+i}, v{ONE}, v{S1}')
        a(f'v_dot2_f32_bf16 v{S2}, v{FR+i+1}, v{ONE}, v{S2}')
    a('s_lshl_b32 s33, s12, 8'); a(f's_add_u32 s33, s33, {SC0 + 8192}')
    a(f'v_add_u32 v{T0}, s33, v{L4}')
    a(f'v_add_f32 v{S1}, v{S1}, v{S2}')
    a(f'ds_write_b32 v{T0}, v{S1}')
    a('s_waitcnt lgkmcnt(0)')
    a('s_barrier')
    a.label('p0_nosum')
    a(f's_cmp_ge_u32 s26, {NSIDE}'); a('s_cbranch_scc1 p0_v0')
    a('s_waitcnt vmcnt(8)')
    a('s_branch p0_v1')
    a.label('p0_v0')
    a('s_waitcnt vmcnt(0)')
    a.label('p0_v1')
    a(f'v_cmp_eq_u32 vcc, {3*TARGET[0]-1}, v{AV}')
    a('s_and_b64 vcc, vcc, 7'); a('s_cbranch_scc0 p0_notlast')
    a('s_mov_b64 exec, vcc'); a(f'v_mov_b32 v{AV}, 1')
    a(f'buffer_store_dword v{AV}, v{CA}, s[4:7], s42 offen offset:{FOFF} sc1')
    a('s_mov_b64 exec, -1')
    a.label('p0_notlast')
    a('s_cmp_lg_u32 s12, 3'); a('s_cbranch_scc1 p0_done')
    a(f's_cmp_ge_u32 s26, {NSIDE}'); a('s_cbranch_scc1 p0_done')
    a('s_cmp_eq_u32 s65, 0'); a('s_cbranch_scc1 p0_wsig')
    a(f'v_and_b32 v{T2}, 31, v{LN}'); a(f'v_lshlrev_b32 v{T2}, 2, v{T2}'); a(f'v_add_u32 v{T1}, {SC0+8192}, v{T2}')
    for i in range(8): a(f'ds_read_b32 v{48+i}, v{T1} offset:{128*i}')
    B = 61
    a(f'v_mov_b32 v{B}, 0')
    a('s_cmp_lg_u32 s65, 2'); a('s_cbranch_scc1 p0_nobias')
    a('s_mov_b32 s92, s90'); a('s_and_b32 s93, s91, 0xffff'); a(f's_mov_b32 s94, {1376*2}')
    a('s_lshl_b32 s33, s68, 6')
    a(f'v_lshrrev_b32 v{T3}, 1, v{T2}')
    a(f'buffer_load_ushort v{B}, v{T3}, s[92:95], s33 offen')
    a('s_waitcnt vmcnt(0)')
    a(f'v_lshlrev_b32 v{B}, 16, v{B}')
    a.label('p0_nobias')
    a('s_waitcnt lgkmcnt(0)')
    a('v_add_f32 v48, v48, v49'); a('v_add_f32 v50, v50, v51'); a('v_add_f32 v52, v52, v53'); a('v_add_f32 v54, v54, v55')
    a('v_add_f32 v48, v48, v50'); a('v_add_f32 v52, v52, v54'); a('v_add_f32 v48, v48, v52')
    HI, MID, LO = 62, 63, 64
    split3(a, 48, HI, MID, LO, 65)
    pack_hi(a, 56, HI, HI); pack_hi(a, 57, HI, B); pack_hi(a, 58, B, B)
    a(f'v_lshrrev_b32 v59, 16, v{MID}')
    pack_hi(a, 60, LO, MID)
    a(f'v_cmp_gt_u32 vcc, 32, v{LN}')
    a('v_cndmask_b32 v56, v60, v56, vcc'); a('v_cndmask_b32 v57, 0, v57, vcc')
    a('v_cndmask_b32 v58, 0, v58, vcc'); a('v_cndmask_b32 v59, 0, v59, vcc')
    a(f's_add_u32 s33, s70, {32*1024}')
    a(f'buffer_store_dwordx4 v[56:59], v{L16}, s[4:7], s33 offen sc1')
    a.label('p0_wsig')
    a('s_mov_b32 s96, 1')
    a('s_branch p0_out')
    a.label('p0_done')
    a('s_mov_b32 s96, 0')
    a.label('p0_out')

def gen_main(p):
    a = p.a
    p.entry(KNAME, 512, 256)
    a('s_cmp_ge_u32 s2, 256')
    a('s_cbranch_scc1 main_end')
    global stp0
    def stp0(name):
        if not STAMP: return
        if name not in STAMPS: STAMPS.append(name)
        i = STAMPS.index(name)
        a('s_memtime s[98:99]'); a('s_memrealtime s[100:101]'); a('s_waitcnt lgkmcnt(0)')
        a(f'v_writelane_b32 v11, s98, {2*i+2}')
        a(f'v_writelane_b32 v11, s100, {2*i+3}')
    stp0('start')
    phase0(a)
    a('s_load_dwordx2 s[88:89], s[0:1], 56')
    LN, L16, L4, T0, T1, T2, T3 = 1, 2, 3, 4, 5, 6, 7
    RES = 8
    if STAMP: a('v_mov_b32 v0, v11')
    a('s_and_b32 s13, s2, 7'); a('s_lshr_b32 s14, s2, 3')
    a('s_lshl_b32 s15, s13, 1'); a('s_and_b32 s29, s14, 1'); a('s_add_u32 s15, s15, s29')
    a('s_lshr_b32 s16, s14, 1')
    a('s_lshl_b32 s17, s15, 2'); a('s_and_b32 s29, s12, 1'); a('s_lshl_b32 s29, s29, 1'); a('s_add_u32 s17, s17, s29')
    a('s_lshr_b32 s29, s12, 1'); a('s_add_u32 s17, s17, s29')
    a('s_lshl_b32 s18, s13, 2'); a('s_and_b32 s29, s14, 3'); a('s_add_u32 s18, s18, s29')
    a('s_lshr_b32 s19, s14, 2')
    a('s_lshl_b32 s21, s18, 1'); a('s_lshr_b32 s29, s12, 1'); a('s_add_u32 s20, s21, s29')
    a('s_lshl_b32 s22, s19, 1'); a('s_and_b32 s29, s12, 1'); a('s_add_u32 s22, s22, s29'); a('s_xor_b32 s23, s22, 1')
    a('s_mov_b32 s24, s18'); a('s_mov_b32 s25, s19')
    a('s_mov_b32 s26, 0'); a('s_mov_b32 s27, 0'); a(f's_mov_b32 s28, {CNT}')
    a('s_mov_b32 s30, 0x0000ffff'); a('s_mov_b32 s31, 0x0000ffff')
    a('s_lshl_b32 s32, s20, 5'); a('s_lshl_b32 s29, s22, 1'); a('s_add_u32 s32, s32, s29'); a('s_lshl_b32 s32, s32, 10')
    a('s_mul_i32 s33, s12, 22'); a('s_mul_i32 s29, s12, 21'); a('s_add_u32 s29, s29, 1')
    a('s_cmp_ge_u32 s12, 2'); a('s_cselect_b32 s33, s29, s33')
    a('s_lshl_b32 s34, s16, 2'); a('s_lshr_b32 s29, s17, 4'); a('s_add_u32 s34, s34, s29'); a('s_lshl_b32 s34, s34, 1')
    a('s_and_b32 s29, s17, 1'); a('s_add_u32 s34, s34, s29')
    a('s_lshr_b32 s29, s24, 1'); a('s_lshl_b32 s29, s29, 2'); a('s_add_u32 s35, s29, s12'); a('s_lshl_b32 s35, s35, 1')
    a('s_lshr_b32 s36, s25, 1'); a('s_add_u32 s36, s36, s29'); a('s_lshl_b32 s36, s36, 1')
    a('s_lshl_b32 s37, s25, 2'); a('s_add_u32 s37, s37, s12'); a('s_lshl_b32 s37, s37, 3'); a('s_lshr_b32 s29, s24, 3'); a('s_add_u32 s37, s37, s29')
    a('s_lshl_b32 s38, s18, 3'); a('s_add_u32 s38, s38, s12')
    a(f'v_and_b32 v{T0}, 31, v{LN}'); a(f'v_lshlrev_b32 v{T0}, 10, v{T0}')
    a(f'v_lshrrev_b32 v{T1}, 5, v{LN}'); a(f'v_lshl_add_u32 v{T0}, v{T1}, 4, v{T0}')
    a('s_lshl_b32 s53, s20, 15'); a('s_lshl_b32 s54, s22, 6'); a('s_add_u32 s53, s53, s54')
    a(f'buffer_load_dwordx4 {v(RES,4)}, v{T0}, s[8:11], s53 offen')
    a(f'buffer_load_dwordx4 {v(RES+4,4)}, v{T0}, s[8:11], s53 offen offset:32')
    a('s_mov_b32 s41, s96'); a(f's_mov_b32 s42, {WCELL}'); a(f's_mov_b32 s69, {NSIDE-1}'); a('s_mov_b32 s97, 2')
    a('s_waitcnt lgkmcnt(0)')
    srd(a, 8, 88, 2*L.MB)

    def st(name):
        if not STAMP: return
        if name not in STAMPS: STAMPS.append(name)
        i = STAMPS.index(name)
        assert i < 31
        a('s_memtime s[98:99]'); a('s_memrealtime s[100:101]'); a('s_waitcnt lgkmcnt(0)')
        a(f'v_writelane_b32 v0, s98, {2*i+2}')
        a(f'v_writelane_b32 v0, s100, {2*i+3}')

    def run_groups(gs):
        for g in gs:
            for t in g: a(t)

    def wtile_dma(qkv):
        ftstride = (16 if qkv else 1) * FT
        pre = [f's_mul_i32 s60, s16, {(1 if qkv else 3) * FT}',
               f's_add_u32 s60, s60, {L.WQKVF if qkv else L.W1F}',
               's_lshl_b32 s64, s12, 12',
               's_add_u32 s61, s60, s64',
               's_min_u32 s65, s12, 2',
               f's_mul_i32 s66, s65, {ftstride}',
               's_add_u32 s66, s66, s60',
               f's_add_u32 s66, s66, {32*1024}',
               f's_mul_i32 s65, s65, {FT}']
        groups = [pre]
        for half in range(2):
            for j in range(3):
                g = [f's_add_u32 m0, s64, {j*FT + half*16384}',
                     f's_add_u32 s62, s61, {j*ftstride + half*16384}']
                g += [f'buffer_load_dwordx4 v{L16}, s[4:7], s62 offen offset:{1024*q} sc1 lds' for q in range(4)]
                groups.append(g)
        groups.append([f's_add_u32 m0, s65, {32*1024}', 's_nop 0', f'buffer_load_dwordx4 v{L16}, s[4:7], s66 offen sc1 lds'])
        return groups

    def wtile_dma3():
        groups = [[f's_mul_i32 s60, s16, {FT}', f's_mul_i32 s61, s12, {16*FT}', 's_add_u32 s60, s60, s61', f's_add_u32 s60, s60, {L.WQKVF}',
                   f's_mul_i32 s64, s12, {FT}']]
        for c in range(9):
            g = [f's_add_u32 m0, s64, {c*4096}', f's_add_u32 s62, s60, {c*4096}']
            g += [f'buffer_load_dwordx4 v{L16}, s[4:7], s62 offen offset:{1024*q} sc1 lds' for q in range(4 if c < 8 else 1)]
            groups.append(g)
        return groups

    def poll_setup(ph, idxs, add=0, prev_layer=False, out=None):
        e = out.append if out is not None else a
        o = (CB[ph] + add)*CST - (LST if prev_layer else 0)
        e(f's_add_u32 s50, s28, {o & 0xffffffff}')
        e(f's_mul_i32 s52, s{idxs[0]}, {CST}')
        e(f'v_mov_b32 v{T0}, s52')
        if len(idxs) > 1:
            e(f's_mul_i32 s52, s{idxs[1]}, {CST}')
            e(f'v_writelane_b32 v{T0}, s52, 1')
    DIR = OPT.get('dir', 'wf')
    def poll_load(n, d=0):
        a(f's_mov_b64 exec, {(1 << n) - 1}')
        a(f'buffer_load_dword v{T1}, v{T0}, s[4:7], s50 offen offset:{0 if d else FOFF} sc1')
        a('s_mov_b64 exec, -1')
    def poll_test(n, go, d=0):
        a(f's_mov_b64 exec, {(1 << n) - 1}')
        a(f'v_cmp_gt_u32 vcc, {d if d else 1}, v{T1}')
        a('s_mov_b64 exec, -1')
        a('s_cmp_eq_u64 vcc, 0')
        a(f's_cbranch_scc1 {go}')
    def poll_spin(n, go, hook=None, d=0):
        lp = a.lab('poll')
        a('s_mov_b32 s51, 0')
        a.label(lp)
        poll_load(n, d)
        a('s_add_u32 s51, s51, 1')
        a('s_waitcnt vmcnt(0)')
        if hook: hook()
        poll_test(n, go, d)
        a(f's_cmp_lt_u32 s51, {SPIN}')
        a(f's_cbranch_scc1 {lp}')
        a.label(go)
    def dd(tag, ph): return TARGET[ph] if tag in DIR else 0
    def poll(ph, idxs, add=0, prev_layer=False, d=0):
        poll_setup(ph, idxs, add, prev_layer)
        poll_spin(len(idxs), a.lab('go'), d=d)
    def sig_addr(ph, idx, add=0, out=None, la=2):
        e = out.append if out is not None else a
        e(f's_mul_i32 s42, s{idx}, {CST}')
        e('s_add_u32 s42, s42, s28')
        e(f's_add_u32 s42, s42, {(CB[ph] + add)*CST}')
        e(f's_mov_b32 s69, {TARGET[ph]-1}')
        e(f's_mov_b32 s97, {la}')
    def sig_atomic():
        a('s_mov_b64 exec, 1')
        a('v_mov_b32 v0, 1')
        a(f'buffer_atomic_add v0, v{L4}, s[4:7], s42 offen sc0 sc1')
        a('s_mov_b64 exec, -1')
    def sig_finish(ph=None):
        sk = a.lab('notlast')
        a('v_readfirstlane_b32 s52, v0')
        a('s_cmp_lg_u32 s52, s69')
        a(f's_cbranch_scc1 {sk}')
        a('s_mov_b64 exec, 1')
        a('v_mov_b32 v0, 1')
        a(f'buffer_store_dword v0, v{L4}, s[4:7], s42 offen offset:{FOFF} sc1')
        a('s_mov_b64 exec, -1')
        a.label(sk)
    def signal(ph, idx, add=0):
        sig_addr(ph, idx, add)
        a('s_waitcnt vmcnt(0)')
        sig_atomic()
        a('s_waitcnt vmcnt(0)')
        sig_finish(ph)

    def gemmA_pre(qkv):
        xi0 = 0 if qkv else 1
        stsz = L.ST[1] - L.ST[0]
        a('s_lshl_b32 s47, s17, 15'); a('s_lshl_b32 s29, s27, 1'); a('s_add_u32 s47, s47, s29'); a(f's_add_u32 s47, s47, {L.X[xi0]}')
        a('s_lshl_b32 s48, s17, 12'); a(f's_mul_i32 s29, s26, {2*stsz}'); a('s_add_u32 s48, s48, s29'); a(f's_add_u32 s48, s48, {L.ST[xi0]}')
        a('s_lshl_b32 s55, s12, 10'); a(f's_add_u32 s55, s55, {SCR + 1024}')
        a(f'v_add_u32 v64, s55, v{L16}')
        a(f'v_add_u32 v65, s55, v{L4}')
        a(f'v_add_u32 v70, {FT}, v{L16}')
        a(f'v_add_u32 v71, {2*FT}, v{L16}')
        if qkv:
            a('s_lshl_b32 s56, s16, 17'); a('s_lshl_b32 s57, s17, 10'); a('s_add_u32 s56, s56, s57'); a('s_add_u32 s56, s56, s27')
            a('s_add_u32 s57, s56, 0x10000')
            a(f's_add_u32 s58, s56, {L.K[0]}'); a(f's_add_u32 s59, s57, {L.K[0]}')
            a(f's_add_u32 s54, s56, {L.V[0]}')
            a('s_lshl_b32 s55, s12, 8'); a(f's_add_u32 s55, s55, {SCR}')
            a(f'v_add_u32 v76, s55, v{L4}')
            a(f'v_lshrrev_b32 v77, 5, v{LN}'); a('v_lshlrev_b32 v77, 4, v77'); a('v_add_u32 v77, s55, v77')
            a(f'v_bfe_u32 v78, v{LN}, 4, 1'); a('v_lshlrev_b32 v78, 16, v78')
            a(f'v_lshrrev_b32 v79, 5, v{LN}'); a('v_lshl_add_u32 v78, v79, 8, v78')
            a(f'v_and_b32 v79, 15, v{LN}'); a('v_lshl_add_u32 v78, v79, 4, v78')
        else:
            actsz = L.ACT[1] - L.ACT[0]
            a('s_mul_i32 s56, s17, 86'); a('s_mul_i32 s57, s16, 6'); a('s_add_u32 s56, s56, s57')
            a('s_lshl_b32 s56, s56, 10'); a(f's_mul_i32 s57, s26, {actsz}'); a('s_add_u32 s56, s56, s57')
            a(f's_add_u32 s56, s56, {L.ACT[0]}'); a('s_add_u32 s57, s56, 4096')
            a('s_cmp_eq_u32 s16, 14')
            a(f's_cselect_b32 s29, {64*L.MB}, 0')
            a('s_add_u32 s58, s56, s29'); a('s_add_u32 s57, s57, s29')

    def gemmA(qkv, first_sync=None):
        tag = 'qkv' if qkv else 'ffn1'
        RS, RQ = 68, 69
        WA = [L16, 70, 71]
        XE = 72
        STV = 16
        WS = [32 + 4*i for i in range(8)]
        ACC = [80 + 16*i for i in range(3)]
        XF = 128
        fa, fb, fc = (1, 2, 0) if qkv else (0, 1, 2)
        nvm = [0]; at = {}
        def xload(i):
            a(f'buffer_load_dwordx4 {v(XF+4*i,4)}, v{L16}, s[4:7], s47 offen offset:{1024*(i%4)} sc1'); nvm[0] += 1
            if i % 4 == 3: a('s_add_u32 s47, s47, 4096')
            at[i] = nvm[0]
        PRE = int(OPT['apre'])
        for i in range(6): xload(i)
        for i in range(4):
            a(f'buffer_load_dwordx4 {v(STV+4*i,4)}, v{L16}, s[4:7], s48 offen offset:{1024*i} sc1'); nvm[0] += 1
        for i in range(6, PRE): xload(i)
        if first_sync: first_sync(nvm[0])
        sv = []
        for stp in (8, 4):
            for i in range(stp): sv.append(f'v_add_f32 v{STV+i}, v{STV+i}, v{STV+i+stp}')
        sv.append(f'ds_write_b128 v64, {v(STV,4)}')
        sv.append(f'ds_read2_b32 {v(STV+4,2)}, v65 offset0:0 offset1:64')
        sv.append(f'ds_read2_b32 {v(STV+6,2)}, v65 offset0:128 offset1:192')
        sv.append('WAITDS')
        sv.append(f'v_add_f32 v{STV+4}, v{STV+4}, v{STV+5}')
        sv.append(f'v_add_f32 v{STV+6}, v{STV+6}, v{STV+7}')
        sv.append(f'v_add_f32 v{STV}, v{STV+4}, v{STV+6}')
        sv.append(f'v_mov_b32 v{STV+1}, v{STV}')
        sv.append(f'v_permlane32_swap_b32 v{STV}, v{STV+1}')
        sv.append(f'v_mul_f32 v{STV}, {f32(-1.0/512)}, v{STV}')
        sv.append(f'v_mul_f32 v{STV+1}, {f32(1.0/512)}, v{STV+1}')
        sv.append(f'v_fma_f32 v{STV+1}, -v{STV}, v{STV}, v{STV+1}')
        sv.append(f'v_max_f32 v{STV+1}, 0, v{STV+1}')
        sv.append(f'v_add_f32 v{STV+1}, {f32(1e-5)}, v{STV+1}')
        sv.append(f'v_rsq_f32 v{RS}, v{STV+1}')
        sv.append(f'v_mul_f32 v{STV+1}, v{STV+1}, v{RS}')
        r = sv.append
        MH, MM, ML, SH, SM, SL, TT = STV+2, STV+3, STV+4, STV+5, STV+6, STV+7, STV+8
        split3(r, STV, MH, MM, ML, TT); split3(r, STV+1, SH, SM, SL, TT)
        pack_hi(r, XE, MH, MM); pack_hi(r, XE+1, ML, SH); pack_hi(r, XE+2, SM, SL)
        sv.append(f'v_lshrrev_b32 v{XE+3}, 16, v{MH}')
        sv.append(f'v_mul_f32 v{RQ}, {f32(L.QSCALE if qkv else 1.4426950408889634)}, v{RS}')
        if not qkv: sv.append(f'v_mul_f32 v66, -2.0, v{RS}')
        if qkv:
            sv.append(f'ds_write_b32 v76, v{RS}')
            for j in range(4): sv.append(f'ds_read_b128 {v(STV+4*j,4)}, v77 offset:{32*j}')
        def epi(f, pk, gs=(0, 1)):
            A = ACC[f]; out = []
            def mul(d, s0, s1b, n, bcast):
                if pk:
                    for r_ in range(0, n, 2):
                        if bcast:
                            base = s1b & ~1; o = s1b & 1
                            out.append(f'v_pk_mul_f32 {v(d+r_,2)}, {v(s0+r_,2)}, {v(base,2)} op_sel:[0,{o}] op_sel_hi:[1,{o}]')
                        else:
                            out.append(f'v_pk_mul_f32 {v(d+r_,2)}, {v(s0+r_,2)}, {v(s1b+r_,2)}')
                else:
                    for r_ in range(n): out.append(f'v_mul_f32 v{d+r_}, v{s1b if bcast else s1b+r_}, v{s0+r_}')
            for g in gs:
                B = A + 8*g
                if qkv:
                    if f < 2: mul(B, B, RQ if f == 0 else RS, 8, True)
                    else: mul(B, B, STV + 8*g, 8, False)
                else:
                    U = STV
                    mul(U, B, RQ, 8, True)
                    for r_ in range(8): out.append(f'v_exp_f32 v{U+r_}, v{U+r_}')
                    if pk:
                        for r_ in range(0, 8, 2): out.append(f'v_pk_add_f32 {v(U+8+r_,2)}, {v(U+r_,2)}, 2.0 op_sel_hi:[1,0]')
                        for r_ in range(0, 8, 2): out.append(f'v_pk_fma_f32 {v(U+r_,2)}, {v(U+r_,2)}, {v(U+8+r_,2)}, 2.0 op_sel_hi:[1,1,0]')
                    else:
                        for r_ in range(8): out.append(f'v_add_f32 v{U+8+r_}, 2.0, v{U+r_}')
                        for r_ in range(8): out.append(f'v_fma_f32 v{U+r_}, v{U+r_}, v{U+8+r_}, 2.0')
                    for r_ in range(8): out.append(f'v_rcp_f32 v{U+r_}, v{U+r_}')
                    if pk:
                        for r_ in range(0, 8, 2): out.append(f'v_pk_fma_f32 {v(U+r_,2)}, {v(U+r_,2)}, {v(66,2)}, {v(RS,2)} op_sel_hi:[1,0,0]')
                    else:
                        for r_ in range(8): out.append(f'v_fma_f32 v{U+r_}, v{U+r_}, v66, v{RS}')
                    mul(B, B, U, 8, False)
                for r_ in range(4): out.append(f'v_cvt_pk_bf16_f32 v{B+r_}, v{B+2*r_}, v{B+2*r_+1}')
                if qkv:
                    if f < 2: out.append(f'buffer_store_dwordx4 {v(B,4)}, v{L16}, s[4:7], s{56+2*f+g} offen sc1')
                    else: out.append(f'buffer_store_dwordx4 {v(B,4)}, v78, s[4:7], s54 offen offset:{512*g} sc1')
                else:
                    k = 2*f + g
                    sreg = 56 if k < 2 else (58 if k < 4 else 57)
                    out.append(f'buffer_store_dwordx4 {v(B,4)}, v{L16}, s[4:7], s{sreg} offen offset:{1024*(k%4)} sc1')
            return out
        def cost(t):
            return 8 if t.startswith(TRANS) else (16 if t.startswith('buffer') else 4)
        NB = int(OPT['nb'])
        order = []; nb = 0
        for s_ in range(33):
            order.append((fa, s_))
            while nb < NB and nb + 1 <= (s_ + 1) * NB / 33.0:
                order.append((fb, nb)); nb += 1
        order += [(fb, k) for k in range(nb, 33)] + [(fc, k) for k in range(33)]
        last = {f: max(i for i, o in enumerate(order) if o[0] == f) for f in range(3)}
        nds = [0]; dsat = {}
        def rd(i):
            f, k = order[i]
            a(f'ds_read_b128 {v(WS[i%8],4)}, v{WA[f]} offset:{k*1024}'); nds[0] += 1; dsat[i] = nds[0]
        AH = 6
        for i in range(AH): rd(i)
        nx = PRE; xw = -1
        q = list(sv); ready = {}; units = []
        N = len(order)
        for i, (f, k) in enumerate(order):
            w = f'lgkmcnt({min(15, nds[0] - dsat[i])})'
            if k < 32 and k > xw:
                w = f'vmcnt({nvm[0] - at[k]}) ' + w; xw = k
            if k == 32: assert not any(t in q for t in sv), 'stats not finished'
            if i > last[fa] + 1 and (i - last[fa]) % 2 == 0: pass
            elif i > last[fa] and i + 1 < N: a(f's_waitcnt lgkmcnt({min(15, nds[0] - dsat[i+1])})')
            else: a(f's_waitcnt {w}')
            xf = v(XF + 4*k, 4) if k < 32 else v(XE, 4)
            wf = v(WS[i % 8], 4)
            cc = '0' if k == 0 else v(ACC[f], 16)
            if qkv and f == 2: a(f'{MFMA} {v(ACC[f],16)}, {xf}, {wf}, {cc}')
            else: a(f'{MFMA} {v(ACC[f],16)}, {wf}, {xf}, {cc}')
            if i + AH < N: rd(i + AH)
            budget = 16
            if f == fa and nx < 32:
                xload(nx); nx += 1; budget = 8
            CAP = int(OPT.get('cap', 24))
            for ff in (fa, fb):
                if i == last[ff] + 3: units.extend([(ff, 0), (ff, 1)])
            if not q and units and (CAP == 0 or sum(map(cost, epi(units[0][0], False, (0,)))) <= 1.5*CAP*(N - i)):
                u_ = units.pop(0); q += epi(u_[0], False, (u_[1],))
            if xw >= 6:
                if i > last[fa]:
                    if CAP: budget = CAP
                    else:
                        rem = sum(map(cost, q)) + (len(units) + (2 if i < last[fb] + 3 else 0)) * sum(map(cost, epi(fb, False, (0,))))
                        budget = max(16, -(-rem // max(1, N - i)))
                while q and budget >= min(cost(q[0]), 8):
                    if q[0] == 'WAITDS':
                        if 'mark' not in ready: ready['mark'] = nds[0]
                        if dsat[i] < ready['mark']: break
                        q.pop(0); continue
                    t = q.pop(0); budget -= cost(t); a(t)
                    if t.startswith('buffer'): nvm[0] += 1
                    if t.startswith('ds_'): nds[0] += 1
        for t in q: a(t)
        st(tag + ' loop')
        for u_ in units:
            for t in epi(u_[0], True, (u_[1],)): a(t)
        for t in epi(fc, True): a(t)

    WOA = 0; W2A = 64
    NW2PRE = 18
    def wB_loads(wo, steps):
        KS = 32 if wo else W2KS
        base = WOA if wo else W2A
        first = steps[0]
        pre = []
        for i, ft in enumerate((22, 23)):
            pre.append(f's_mul_i32 s{67+i}, s{ft}, {KS}')
            if wo:
                pre.append('s_lshl_b32 s29, s12, 3'); pre.append(f's_add_u32 s{67+i}, s{67+i}, s29')
            else:
                pre.append(f's_add_u32 s{67+i}, s{67+i}, s33')
            pre.append(f's_lshl_b32 s{67+i}, s{67+i}, 10')
            pre.append(f's_add_u32 s{67+i}, s{67+i}, {(L.WOF if wo else L.W2F) + first*1024}')
        groups = [pre]
        for n0 in range(0, len(steps), 4):
            for i in range(2):
                g = [f'buffer_load_dwordx4 {areg(base + 8*stp + 4*i)}, v{L16}, s[4:7], s{67+i} offen offset:{1024*q} sc1' for q, stp in enumerate(steps[n0:n0+4])]
                g.append(f's_add_u32 s{67+i}, s{67+i}, 4096')
                groups.append(g)
        return groups

    BACC = [[16 + 16*(2*i+j) for j in range(2)] for i in range(2)]
    BAD = 240
    def gemmB_pre(wo):
        KS = 32 if wo else 86
        actsz = L.ACT[1] - L.ACT[0]
        a(f's_mul_i32 s56, s21, {KS}')
        if wo:
            a('s_lshl_b32 s29, s12, 3'); a('s_add_u32 s56, s56, s29')
        else:
            a('s_add_u32 s56, s56, s33')
        a('s_lshl_b32 s56, s56, 10')
        if wo:
            a('s_add_u32 s56, s56, s27'); a(f's_add_u32 s56, s56, {L.O[0]}')
        else:
            a(f's_mul_i32 s29, s26, {actsz}'); a('s_add_u32 s56, s56, s29'); a(f's_add_u32 s56, s56, {L.ACT[0]}')
        a(f's_add_u32 s57, s56, {KS*1024}')
        xo = 1 if wo else 2
        stsz = L.ST[1] - L.ST[0]
        a('s_lshl_b32 s58, s27, 1'); a('s_add_u32 s58, s58, s32'); a(f's_add_u32 s58, s58, {L.X[xo]}')
        a('s_lshl_b32 s59, s20, 12'); a('s_lshl_b32 s54, s22, 8'); a('s_add_u32 s59, s59, s54')
        a(f's_mul_i32 s54, s26, {2*stsz}'); a('s_add_u32 s59, s59, s54'); a(f's_add_u32 s59, s59, {L.ST[xo]}')
        for i in range(2):
            for j in range(2):
                a('s_and_b32 s54, s12, 1')
                if j: a('s_xor_b32 s54, s54, 1')
                a(f's_add_u32 s54, s54, {2*i}')
                a('s_xor_b32 s55, s54, s12')
                a('s_mul_i32 s54, s54, 3'); a('s_add_u32 s54, s54, s55'); a('s_lshl_b32 s54, s54, 12')
                a(f's_add_u32 s54, s54, {RED - 4096}')
                a(f'v_add_u32 v{BAD+2*i+j}, s54, v{L16}')
        a(f's_mul_i32 s55, s12, {3*4096}'); a(f's_add_u32 s55, s55, {RED}')
        a(f'v_add_u32 v{BAD+4}, s55, v{L16}')
        if not wo:
            a(f'v_and_b32 v{BAD+5}, 31, v{LN}'); a(f'v_lshlrev_b32 v{BAD+5}, 10, v{BAD+5}')
            a(f'v_lshrrev_b32 v{BAD+6}, 5, v{LN}'); a(f'v_lshl_add_u32 v{BAD+5}, v{BAD+6}, 4, v{BAD+5}')
            a('s_lshl_b32 s53, s20, 15'); a('s_lshl_b32 s54, s22, 6'); a('s_add_u32 s53, s53, s54')

    def sig_try(state, wait=None):
        e = a.lab('sge')
        a(f's_cmp_lg_u32 s41, {state}')
        a(f's_cbranch_scc1 {e}')
        if wait is not None: a(f's_waitcnt vmcnt({wait})')
        if state == 1:
            sig_atomic(); a('s_mov_b32 s41, s97')
        else:
            sig_finish(); a('s_mov_b32 s41, 0')
        a.label(e)
    def sig_slot(wait):
        d = a.lab('sgd'); e = a.lab('sge')
        a('s_cmp_lg_u32 s41, 1')
        a(f's_cbranch_scc1 {d}')
        a(f's_waitcnt vmcnt({wait})')
        sig_atomic(); a('s_mov_b32 s41, s97')
        a(f's_branch {e}')
        a.label(d)
        a('s_mov_b64 exec, 2')
        a(f'buffer_load_dword v0, v{L4}, s[4:7], 0 offen')
        a('s_mov_b64 exec, -1')
        a.label(e)
    def sig_step():
        sig_try(2); sig_try(1)
    def sig_block():
        sig_try(1, 0); sig_try(2, 0)

    def gemmB(wo, tail=()):
        tag = 'wo' if wo else 'ffn2'
        nst = 8 if wo else 22
        wbase = WOA if wo else W2A
        FB = 80
        NSL = 24
        RB = 176
        WIN = min(int(OPT['bwin']), nst)
        LAG = 3
        st(tag + 'A go')
        class St: pass
        z = St(); z.nvm = 0; z.at = {}; z.issued = 0; z.tail = list(tail)
        def xr(n): return FB + 4*(n % NSL)
        def load(z):
            n = z.issued; i, k = divmod(n, nst)
            a(f'buffer_load_dwordx4 {v(xr(n),4)}, v{L16}, s[4:7], s{56+i} offen offset:{1024*(k%4)} sc1'); z.nvm += 1
            if k % 4 == 3: a(f's_add_u32 s{56+i}, s{56+i}, 4096')
            z.at[n] = z.nvm; z.issued += 1
        def mm(i, j, k):
            cc = '0' if k == 0 else v(BACC[i][j],16)
            a(f'{MFMA} {v(BACC[i][j],16)}, {areg(wbase+8*k+4*j)}, {v(xr(i*nst+k),4)}, {cc}')
        def zero0(n):
            if wo: return
            sk = a.lab('ffn2_s0')
            a('s_cmp_lt_u32 s12, 2')
            a(f's_cbranch_scc1 {sk}')
            for r_ in range(4): a(f'v_mov_b32 v{xr(n)+r_}, 0')
            a.label(sk)
        def wr(i, j): return [f'ds_write_b128 v{BAD+2*i+j}, {v(BACC[i][j]+4*q,4)} offset:{q*1024}' for q in range(4)]
        def epilogue(i, pk):
            A0 = BACC[i][0]; o = []
            for k in range(3):
                for q in range(4): o.append(f'ds_read_b128 {v(RB+16*k+4*q,4)}, v{BAD+4} offset:{k*4096 + q*1024}')
            U = RB + 48
            for r_ in range(8):
                o.append(f'v_lshlrev_b32 v{U+2*r_}, 16, v{RES+r_}')
                o.append(f'v_and_b32 v{U+2*r_+1}, 0xffff0000, v{RES+r_}')
            def addv(src):
                if pk:
                    for r_ in range(0, 16, 2): o.append(f'v_pk_add_f32 {v(A0+r_,2)}, {v(A0+r_,2)}, {v(src+r_,2)}')
                else:
                    for r_ in range(16): o.append(f'v_add_f32 v{A0+r_}, v{A0+r_}, v{src+r_}')
            addv(U)
            for k in range(3):
                o.append(f's_waitcnt lgkmcnt({8-4*k})')
                addv(RB + 16*k)
            for r_ in range(8): o.append(f'v_cvt_pk_bf16_f32 v{RES+r_}, v{A0+2*r_}, v{A0+2*r_+1}')
            o.append('STORE')
            if pk:
                o.append(f'v_pk_add_f32 {v(RB,2)}, {v(A0,2)}, {v(A0+2,2)}')
                o.append(f'v_pk_mul_f32 {v(RB+2,2)}, {v(A0,2)}, {v(A0,2)}')
                o.append(f'v_pk_fma_f32 {v(RB+2,2)}, {v(A0+2,2)}, {v(A0+2,2)}, {v(RB+2,2)}')
                for r_ in range(4, 16, 2):
                    o.append(f'v_pk_add_f32 {v(RB,2)}, {v(RB,2)}, {v(A0+r_,2)}')
                    o.append(f'v_pk_fma_f32 {v(RB+2,2)}, {v(A0+r_,2)}, {v(A0+r_,2)}, {v(RB+2,2)}')
                o.append(f'v_add_f32 v{T2}, v{RB}, v{RB+1}')
                o.append(f'v_add_f32 v{T3}, v{RB+2}, v{RB+3}')
            else:
                o.append(f'v_add_f32 v{T2}, v{A0}, v{A0+1}')
                o.append(f'v_mul_f32 v{T3}, v{A0}, v{A0}')
                o.append(f'v_fmac_f32 v{T3}, v{A0+1}, v{A0+1}')
                for r_ in range(2, 16):
                    o.append(f'v_add_f32 v{T2}, v{T2}, v{A0+r_}')
                    o.append(f'v_fmac_f32 v{T3}, v{A0+r_}, v{A0+r_}')
            o.append(f'v_permlane32_swap_b32 v{T2}, v{T3}')
            o.append(f'v_add_f32 v{T2}, v{T2}, v{T3}')
            o.append(f'buffer_store_dword v{T2}, v{L4}, s[4:7], s59 offen sc1')
            o.append('OWED')
            return o
        def emit(t, z):
            if t == 'STORE':
                if not wo:
                    nf = a.lab('notfinal'); dn = a.lab('stored')
                    a('s_cmp_eq_u32 s26, 0')
                    a(f's_cbranch_scc1 {nf}')
                    for g in range(2):
                        a(f'v_permlane32_swap_b32 v{RES+4*g}, v{RES+4*g+2}')
                        a(f'v_permlane32_swap_b32 v{RES+4*g+1}, v{RES+4*g+3}')
                        a(f'buffer_store_dwordx4 {v(RES+4*g,4)}, v{BAD+5}, s[8:11], s53 offen offset:{32*g}')
                    a(f's_branch {dn}')
                    a.label(nf)
                a(f'buffer_store_dwordx4 {v(RES,4)}, v{L16}, s[4:7], s58 offen sc1')
                a(f'buffer_store_dwordx4 {v(RES+4,4)}, v{L16}, s[4:7], s58 offen offset:1024 sc1')
                if not wo: a.label(dn)
                z.nvm += 2
            elif t == 'OWED':
                sig_addr(2 if wo else 4, 20)
                a('s_mov_b32 s41, 1')
                z.owed = z.nvm
            else:
                a(t)
                if t.startswith('buffer'): z.nvm += 1
        def part(i, z, kat=None):
            for k in range(nst):
                n = i*nst + k
                a(f's_waitcnt vmcnt({z.nvm - z.at[n]})')
                if k == 0:
                    if i == 1 and wo: sig_step(); z.mark = z.nvm
                    zero0(n)
                mm(i, 1, k)
                if i == 0 and k == (4 if not (SLOT and (wo or SLOT == 2)) else nst - 1): sig_try(2, z.nvm - z.mark)
                W2 = int(OPT.get('bwin2', 22))
                if not wo and i == 1 and W2 >= nst and k == nst - 1: sig_try(1, 0)
                if not wo and i == 1 and W2 < nst and k == W2: sig_try(1)
                if not wo and i == 1 and W2 < nst and k == nst - 1: sig_try(2, 0)
                if z.issued < (i + 1)*nst: load(z)
                elif z.tail and (wo or k >= 10):
                    for t in z.tail.pop(0): emit(t, z)
                if k < nst - LAG: mm(i, 0, k)
            assert not z.tail, len(z.tail)
            for k in range(nst - LAG, nst): mm(i, 0, k)
        def writes(i, wt):
            sk = a.lab('b_self')
            for t in wr(i, 1): a(t)
            a('s_lshr_b32 s54, s12, 1')
            a(f's_cmp_eq_u32 s54, {i}')
            a(f's_cbranch_scc1 {sk}')
            for t in wr(i, 0): a(t)
            a.label(sk)
            a(wt)
        def owner_epi(i):
            sk = a.lab('b_notown')
            a('s_lshr_b32 s54, s12, 1')
            a(f's_cmp_lg_u32 s54, {i}')
            a(f's_cbranch_scc1 {sk}')
            y = St(); y.nvm = 0
            for t in epilogue(i, True): emit(t, y)
            if not wo:
                a('s_cmp_eq_u32 s26, 1'); a('s_cselect_b32 s41, 0, s41')
            a.label(sk)
        import copy
        SLOT = int(OPT.get('slot', 1))
        if SLOT and (wo or SLOT == 2):
            for _ in range(nst): load(z)
            sig_slot(nst); z.nvm += 1; z.mark = z.nvm
        else:
            for _ in range(4): load(z)
            sig_try(2, 4); sig_try(1, 4); z.mark = z.nvm
            for _ in range(WIN - 4): load(z)
        if wo:
            z.tail = []
            part(0, z)
            poll_setup(1, [38], add=4)
            writes(0, 's_waitcnt lgkmcnt(0)')
            a('s_barrier')
            owner_epi(0)
            st(tag + 'A end')
            poll_spin(1, a.lab('go'), hook=sig_step, d=dd('w', 1))
            st(tag + 'B go')
            for _ in range(WIN): load(z)
            z.tail = list(tail)
            part(1, z)
            sig_try(2, z.nvm - z.mark)
        else:
            nod = a.lab('f2_nodma'); jn = a.lab('f2_join')
            a('s_lshl_b32 s54, s26, 2'); a('s_add_u32 s54, s54, s12')
            a('s_cmp_ge_u32 s54, 3')
            a(f's_cbranch_scc1 {nod}')
            y = copy.deepcopy(z)
            part(0, y)
            a(f's_branch {jn}')
            a.label(nod)
            z.tail = []
            part(0, z)
            a.label(jn)
            writes(0, 's_waitcnt lgkmcnt(0)')
            a('s_cmp_lg_u32 s12, 3')
            a('s_cbranch_scc1 f2_nopoll')
            poll(3, [21], add=1, d=dd('f', 3))
            a.label('f2_nopoll')
            st(tag + 'A end')
            a('s_barrier')
            st(tag + 'B go')
            for _ in range(int(OPT.get('bwin2', 22))): load(z)
            owner_epi(0)
            part(1, z)
        poll_setup(2 if wo else 4, [17])
        poll_load(1)
        writes(1, 's_waitcnt lgkmcnt(0)')
        a('s_barrier')
        owner_epi(1)
        st(tag + 'B end')
        sig_block()
        st(tag + ' sig')

    SB = [16, 32]; PB = [48, 52]; OA = [56, 72]; QF = [88, 92]; VR = 96
    TMP = 240
    def kreg(kt): return v(224 + 4*kt, 4) if kt < 4 else areg(208 + 4*(kt-4))
    def vreg(kt, g): return v(VR + 8*kt + 4*g, 4)
    VOFF, PADDR = T2, T3
    PA4 = TMP + 12
    def qaddr(p_, sreg=53):
        return [f's_add_u32 s{sreg}, s12, {1 + p_}', f's_and_b32 s{sreg}, s{sreg}, 3', f's_lshl_b32 s{sreg}, s{sreg}, 11', f's_add_u32 s{sreg}, s{sreg}, s{48 + (p_ >> 2)}']
    def attn_pre():
        a(f'v_and_b32 v{T0}, 27, v{LN}')
        a(f'v_cmp_eq_u32 vcc, 16, v{T0}')
        a(f'v_mov_b32 v{T1}, {ONES}')
        a(f'v_cndmask_b32 v{VR}, 0, v{T1}, vcc')
        a(f'v_cndmask_b32 v{VR+1}, 0, v{T1}, vcc')
        for r_ in range(2, 128, 2): a(f'v_pk_mov_b32 {v(VR+r_,2)}, {v(VR,2)}, {v(VR,2)}')
        a(f'v_and_b32 v{T1}, 15, v{LN}'); a(f'v_lshlrev_b32 v{T1}, 4, v{T1}')
        a(f'v_lshrrev_b32 v{VOFF}, 5, v{LN}'); a(f'v_lshl_add_u32 v{VOFF}, v{VOFF}, 8, v{T1}')
        a('s_lshl_b32 s44, s24, 16'); a('s_add_u32 s44, s44, s27')
        a('s_lshl_b32 s45, s12, 14'); a('s_add_u32 s45, s45, s44')
        a(f's_add_u32 s46, s45, {L.K[0]}'); a(f's_add_u32 s47, s45, {L.V[0]}')
        a('s_lshl_b32 s48, s25, 13'); a('s_add_u32 s48, s48, s44'); a('s_add_u32 s49, s48, 1024')
        for t in qaddr(0, 53) + qaddr(1, 54): a(t)
        a('s_lshl_b32 s39, s25, 2'); a('s_add_u32 s39, s39, s12'); a('s_lshl_b32 s39, s39, 16')
        a('s_lshl_b32 s55, s24, 10'); a('s_add_u32 s39, s39, s55')
        a('s_add_u32 s39, s39, s27'); a(f's_add_u32 s39, s39, {L.O[0]}')
        a(f's_mov_b32 s56, {f32(2.0**-90)}'); a(f's_mov_b32 s57, {f32(2.0**120)}')
        a('s_mov_b32 s40, 0')

    def check_ops(Oa, U):
        return [f'v_add_f32 v{U}, abs(v{Oa}), abs(v{Oa+1})', f'v_add_f32 v{U+1}, abs(v{Oa+2}), abs(v{Oa+3})',
                f'v_add_f32 v{U+2}, abs(v{Oa+4}), abs(v{Oa+5})', f'v_add_f32 v{U+3}, abs(v{Oa+6}), abs(v{Oa+7})',
                f'v_add_f32 v{U}, v{U}, v{U+1}', f'v_add_f32 v{U+2}, v{U+2}, v{U+3}', f'v_add_f32 v{U}, v{U}, v{U+2}',
                f'v_cmp_gt_f32 s[70:71], s57, v{U}', f'v_cmp_gt_f32 s[72:73], s57, v{Oa+8}', f'v_cmp_lt_f32 s[74:75], s56, v{Oa+8}',
                's_and_b64 s[70:71], s[70:71], s[72:73]', 's_and_b64 s[70:71], s[70:71], s[74:75]', 's_cmp_eq_u64 s[70:71], -1']

    def attn(extra_groups):
        nvm = [0]
        atk, atv, atq = {}, {}, {}
        def qload(p_, sreg=53):
            a(f'buffer_load_dwordx4 {v(QF[p_%2],4)}, v{L16}, s[4:7], s{sreg} offen sc1'); nvm[0] += 1
            atq[p_] = nvm[0]
        def kvbase(kt, sreg):
            pass
        def kload(kts):
            for kt in kts:
                a(f'buffer_load_dwordx4 {kreg(kt)}, v{L16}, s[4:7], s{76 + kt//4} offen offset:{1024*(kt%4)} sc1'); nvm[0] += 1
                atk[kt] = nvm[0]
        def vload(kts):
            a('s_mov_b64 exec, s[30:31]')
            for kt in kts:
                for g in range(2):
                    a(f'buffer_load_dwordx4 {vreg(kt,g)}, v{VOFF}, s[4:7], s{80 + kt//4} offen offset:{1024*(kt%4)+512*g} sc1'); nvm[0] += 1
                atv[kt] = nvm[0]
            a('s_mov_b64 exec, -1')
        EV = list(range(0, 16, 2)); OD = list(range(1, 16, 2))
        steps = [(0, k) for k in EV] + [(1, k) for k in EV] + [(0, k) for k in OD] + [(1, k) for k in OD]
        steps += [(p_, k) for p_ in range(2, 8) for k in range(16)]
        N = len(steps)
        firstof = {}; lastof = {}
        for n, (p_, k) in enumerate(steps):
            firstof.setdefault(p_, n); lastof[p_] = n
        qload(0)
        kload([0, 2]); vload([0])
        sig_try(1, nvm[0]); mark0 = nvm[0]
        kload([4]); vload([2]); kload([6]); vload([4])
        waited = [0]
        def need_vm(at):
            if at > waited[0]:
                a(f's_waitcnt vmcnt({nvm[0] - at})'); waited[0] = at
        need_vm(atk[0])
        a(f'{MFMA} {v(SB[0],16)}, {kreg(0)}, {v(QF[0],4)}, 0')
        kload([8]); vload([6])
        extra = list(extra_groups)
        sal = []
        def hide():
            if sal: a(sal.pop(0))
        ev_sal, ev_a, ev_b = {}, {}, {}
        def add(d, n, f): d.setdefault(n, []).append(f)
        for p_ in range(2, 8):
            n0 = lastof[p_ - 2] + 1
            add(ev_sal, n0 - 2, qaddr(p_))
            add(ev_a, n0, lambda p_=p_: qload(p_))
        def pwrite(pp):
            Op = OA[pp % 2]
            a(f'v_add_u32 v{PADDR}, s53, v{L16}')
            a(f'v_add_u32 v{PA4}, s53, v{L4}')
            a(f'ds_write_b128 v{PADDR}, {v(Op,4)}')
            a(f'ds_write_b128 v{PADDR}, {v(Op+4,4)} offset:1024')
            a(f'ds_write_b32 v{PA4}, v{Op+8} offset:2048')
        for pp in (0, 1, 2, 4, 5, 6):
            n0 = lastof[pp] + 2
            slot = 2 - pp % 4
            add(ev_sal, n0, [f's_add_u32 s53, s12, {1 + pp}', 's_and_b32 s53, s53, 3', f's_mul_i32 s53, s53, {6*2304}',
                             f's_add_u32 s53, s53, {PART + (3*(pp >> 2) + slot)*2304}'])
            add(ev_b, n0 + 2, lambda pp=pp: pwrite(pp))
        pb = []
        poll_setup(0, [35, 36], add=1, out=pb)
        def b_issue():
            for t in pb: a(t)
            poll_load(2); nvm[0] += 1; atq['flag'] = nvm[0]
        def b_check():
            go = a.lab('bgo')
            need_vm(atq['flag'])
            poll_test(2, go)
            poll_spin(2, go)
            kload([1, 3]); vload([1])
        add(ev_a, 0, lambda: (kload([10]), vload([8])))
        add(ev_a, 1, lambda: (kload([12]), vload([10])))
        add(ev_a, 2, lambda: (sig_try(2, nvm[0] - mark0), kload([14]), vload([12])))
        add(ev_a, 3, lambda: (qload(1, 54), vload([14])))
        add(ev_a, 6, b_issue)
        add(ev_a, 11, b_check)
        for j_ in range(7):
            add(ev_a, 12 + j_, lambda j_=j_: (kload([5 + 2*j_] if j_ < 6 else []), vload([3 + 2*j_])))
        def own_addr(b):
            a('s_waitcnt lgkmcnt(0)' if b == 0 else 's_waitcnt vmcnt(0) lgkmcnt(0)')
            a('s_barrier')
            a(f's_mul_i32 s53, s12, {6*2304}'); a(f's_add_u32 s53, s53, {PART + 3*b*2304}')
            a(f'v_add_u32 v{PADDR}, s53, v{L16}')
            a(f'v_add_u32 v{PA4}, s53, v{L4}')
        def pread(b_, sl):
            a(f'ds_read_b128 {v(b_,4)}, v{PADDR} offset:{sl*2304}')
            a(f'ds_read_b128 {v(b_+4,4)}, v{PADDR} offset:{sl*2304+1024}')
            a(f'ds_read_b32 v{b_+8}, v{PA4} offset:{sl*2304+2048}')
        n4 = firstof[4]
        Oa = OA[1]
        def padd():
            a('s_waitcnt lgkmcnt(0)')
            for r_ in range(9): a(f'v_add_f32 v{Oa+r_}, v{Oa+r_}, v{TMP+r_}')
        add(ev_b, n4 + 2, lambda: (own_addr(0), pread(TMP, 0)))
        add(ev_b, n4 + 3, lambda: (padd(), pread(TMP, 1)))
        add(ev_b, n4 + 4, lambda: (padd(), pread(TMP, 2)))
        def finA():
            padd()
            for t in check_ops(Oa, TMP): a(t)
            sk = a.lab('a_later')
            a(f's_cbranch_scc0 {sk}')
            a(f'v_rcp_f32 v{TMP}, v{Oa+8}')
            for r_ in range(8): a(f'v_mul_f32 v{Oa+r_}, v{TMP}, v{Oa+r_}')
            for r_ in range(4): a(f'v_cvt_pk_bf16_f32 v{TMP+4+r_}, v{Oa+2*r_}, v{Oa+2*r_+1}')
            a(f'buffer_store_dwordx4 {v(TMP+4,4)}, v{L16}, s[4:7], s39 offen sc1')
            a('s_mov_b32 s40, 1'); a('s_mov_b32 s41, 1')
            a.label(sk)
        add(ev_b, n4 + 5, finA)
        sa = []; sig_addr(1, 37, out=sa)
        add(ev_sal, n4 + 6, sa)
        def sstep():
            a('s_waitcnt vmcnt(0)'); waited[0] = nvm[0]
            sig_step()
        add(ev_b, n4 + 9, sstep)
        add(ev_b, n4 + 15, sstep)
        n7 = firstof[7]
        add(ev_b, n7 + 8, lambda: own_addr(1))
        for sl in range(3):
            add(ev_b, n7 + 9 + sl, lambda sl=sl: pread(VR + 12*sl, sl))
        def wr_issue():
            a(f's_mov_b32 s50, {WCELL}'); a(f'v_mov_b32 v{T0}, 0')
            poll_load(1); nvm[0] += 1; atq['wflag'] = nvm[0]
        def wr_check():
            go = a.lab('wgo')
            need_vm(atq['wflag'])
            poll_test(1, go)
            poll_spin(1, go)
        add(ev_a, 20, wr_issue)
        add(ev_a, 26, wr_check)
        def w_issue():
            poll_setup(1, [38]); poll_load(1); nvm[0] += 1
        add(ev_a, n7 + 10, w_issue)
        GS = int(OPT['gs'])
        if GS < 4:
            ex2 = []
            for g in extra:
                cur = []; nm = 0
                for t in g:
                    if t.startswith('buffer'):
                        if nm == GS: ex2.append(cur); cur = []; nm = 0
                        nm += 1
                    cur.append(t)
                ex2.append(cur)
            extra = ex2
        slots = [n for n in range(28 if GS < 4 else 34, N - 12, 1 if GS < 4 else 2) if n not in ev_a and n not in ev_b and not (n4 - 4 <= n <= n4 + 15)]
        assert len(slots) >= len(extra), (len(slots), len(extra))
        gslot = dict(zip(slots, extra))
        for n, (p_, kt) in enumerate(steps):
            S = SB[n % 2]; O = OA[p_ % 2]
            e = [f'v_exp_f32 v{S+r}, v{S+r}' for r in range(16)]
            c = [f'v_cvt_pk_bf16_f32 v{PB[r//4]+r%4}, v{S+2*r}, v{S+2*r+1}' for r in range(8)]
            if OPT.get('fine') == 'att' and n in (0, 8, 16, 32, 48, 64, 80, 96, 112): st(f'att n{n}')
            for l_ in ev_sal.get(n, []):
                assert not sal, n
                sal += l_
            if n + 1 < N:
                p2, kt2 = steps[n + 1]
                if n < 32: need_vm(atk[kt2])
                if n + 1 == firstof[p2]: need_vm(atq[p2])
                a(f'{MFMA} {v(SB[(n+1)%2],16)}, {kreg(kt2)}, {v(QF[p2%2],4)}, 0')
                hide()
            for f in ev_a.get(n, []):
                assert not sal, n
                f()
            a(e[0]); a(e[1]); a(e[2]); a(e[3]); a(c[0]); a(c[1]); a(e[4])
            if n > 0:
                pp, pk = steps[n - 1]
                a(f'{MFMA} {v(OA[pp%2],16)}, {vreg(pk,1)}, {v(PB[1],4)}, {v(OA[pp%2],16)}')
                hide()
            if n in gslot:
                for t in gslot[n]:
                    a(t)
                    if t.startswith('buffer'): nvm[0] += 1
            a(e[5]); a(e[6]); a(e[7]); a(c[2]); a(c[3]); a(e[8]); a(e[9]); a(e[10])
            if n < 32: need_vm(atv[kt])
            a(f'{MFMA} {v(O,16)}, {vreg(kt,0)}, {v(PB[0],4)}, {"0" if n == firstof[p_] else v(O,16)}')
            hide()
            a(e[11]); a(c[4]); a(c[5]); a(e[12]); a(e[13])
            for f in ev_b.get(n, []):
                assert not sal, n
                f()
            a(e[14]); a(e[15]); a(c[6]); a(c[7])
        a(f'{MFMA} {v(OA[1],16)}, {vreg(15,1)}, {v(PB[1],4)}, {v(OA[1],16)}')
        st('att loop')
        U = SB[0]
        Oa = OA[1]
        a('s_waitcnt lgkmcnt(0)')
        a(f's_add_u32 s55, s39, {32*1024}')
        a('s_mov_b32 s43, 1')
        sig_addr(1, 37, add=4, la=0 if 'w' in DIR else 2)
        for sl in range(3):
            b = VR + 12*sl
            for r_ in range(0, 8, 2): a(f'v_pk_add_f32 {v(Oa+r_,2)}, {v(Oa+r_,2)}, {v(b+r_,2)}')
            a(f'v_add_f32 v{Oa+8}, v{Oa+8}, v{b+8}')
        for t in check_ops(Oa, U): a(t)
        a('s_cbranch_scc1 attn_fin')
        a.label('attn_slow')
        S = SB[0]; M = SB[1]; AL = M + 1; TA = M + 2; TB = M + 3
        KT = 224; V0 = 228; V1 = 232
        a('s_lshl_b32 s53, s12, 11'); a('s_lshl_b32 s54, s43, 10'); a('s_add_u32 s53, s53, s54'); a('s_add_u32 s53, s53, s48')
        a(f'buffer_load_dwordx4 {v(QF[0],4)}, v{L16}, s[4:7], s53 offen sc1')
        a(f'v_and_b32 v{TA}, 27, v{LN}')
        a(f'v_cmp_eq_u32 vcc, 16, v{TA}')
        a(f'v_mov_b32 v{TB}, {ONES}')
        a(f'v_cndmask_b32 v{TA}, 0, v{TB}, vcc')
        for r_ in range(8): a(f'v_mov_b32 v{V0+r_}, v{TA}')
        a(f'v_mov_b32 v{M}, {f32(-3.0e38)}')
        for r_ in range(16): a(f'v_mov_b32 v{Oa+r_}, 0')
        a(f's_add_u32 s46, s44, {L.K[0]}'); a(f's_add_u32 s47, s44, {L.V[0]}')
        a('s_mov_b32 s54, 64')
        a.label('attn_slow_loop')
        a(f'buffer_load_dwordx4 {v(KT,4)}, v{L16}, s[4:7], s46 offen sc1')
        a('s_mov_b64 exec, s[30:31]')
        a(f'buffer_load_dwordx4 {v(V0,4)}, v{VOFF}, s[4:7], s47 offen sc1')
        a(f'buffer_load_dwordx4 {v(V1,4)}, v{VOFF}, s[4:7], s47 offen offset:512 sc1')
        a('s_mov_b64 exec, -1')
        a('s_add_u32 s46, s46, 1024'); a('s_add_u32 s47, s47, 1024')
        a('s_waitcnt vmcnt(0)')
        a(f'{MFMA} {v(S,16)}, {v(KT,4)}, {v(QF[0],4)}, 0')
        a(f'v_max3_f32 v{TA}, v{S}, v{S+1}, v{M}')
        for r_ in range(2, 16, 2): a(f'v_max3_f32 v{TA}, v{S+r_}, v{S+r_+1}, v{TA}')
        a(f'v_mov_b32 v{TB}, v{TA}')
        a(f'v_permlane32_swap_b32 v{TA}, v{TB}')
        a(f'v_max_f32 v{TA}, v{TA}, v{TB}')
        a(f'v_sub_f32 v{AL}, v{M}, v{TA}')
        a(f'v_exp_f32 v{AL}, v{AL}')
        a(f'v_mov_b32 v{M}, v{TA}')
        for r_ in range(16):
            a(f'v_sub_f32 v{S+r_}, v{S+r_}, v{M}')
            a(f'v_exp_f32 v{S+r_}, v{S+r_}')
        for r_ in range(16): a(f'v_mul_f32 v{Oa+r_}, v{AL}, v{Oa+r_}')
        for r_ in range(8): a(f'v_cvt_pk_bf16_f32 v{PB[r_//4]+r_%4}, v{S+2*r_}, v{S+2*r_+1}')
        a(f'{MFMA} {v(Oa,16)}, {v(V0,4)}, {v(PB[0],4)}, {v(Oa,16)}')
        a(f'{MFMA} {v(Oa,16)}, {v(V1,4)}, {v(PB[1],4)}, {v(Oa,16)}')
        a('s_sub_u32 s54, s54, 1')
        a('s_cmp_lg_u32 s54, 0')
        a('s_nop 7')
        a('s_cbranch_scc1 attn_slow_loop')
        a('s_nop 7')
        a.label('attn_fin')
        a(f'v_rcp_f32 v{U}, v{Oa+8}')
        for r_ in range(0, 8, 2): a(f'v_pk_mul_f32 {v(Oa+r_,2)}, {v(Oa+r_,2)}, {v(U,2)} op_sel:[0,0] op_sel_hi:[1,0]')
        for r_ in range(4): a(f'v_cvt_pk_bf16_f32 v{TMP+8+r_}, v{Oa+2*r_}, v{Oa+2*r_+1}')
        a(f'buffer_store_dwordx4 {v(TMP+8,4)}, v{L16}, s[4:7], s55 offen sc1')
        a('s_mov_b32 s41, 1')
        a('s_cmp_eq_u32 s40, 1')
        a('s_cbranch_scc1 attn_done')
        sig_block()
        a('s_cmp_eq_u32 s43, 0')
        a('s_cbranch_scc1 attn_done')
        a('s_mov_b32 s43, 0'); a('s_mov_b32 s55, s39')
        sig_addr(1, 37)
        a('s_branch attn_slow')
        a.label('attn_done')

    def touch_wqkv():
        per = L.FT_QKV * FT // 32
        g = [f's_mul_i32 s60, s14, {per}', f's_mul_i32 s61, s12, {per//4}', 's_add_u32 s60, s60, s61', f's_add_u32 s60, s60, {L.WQKVF}',
             f'v_lshlrev_b32 v{T0}, 7, v{LN}', 's_add_u32 s61, s60, 4480',
             f'buffer_load_dword v{T1}, v{T0}, s[4:7], s60 offen sc1', f'buffer_load_dword v{T1}, v{T0}, s[4:7], s61 offen sc1']
        return [g]

    def dump():
        if not STAMP: return
        a('s_lshl_b32 s90, s2, 2'); a('s_add_u32 s90, s90, s12'); a('s_lshl_b32 s90, s90, 1'); a('s_add_u32 s90, s90, s26')
        a('s_lshl_b32 s90, s90, 8'); a(f's_add_u32 s90, s90, {L.FLAGS + 7*L.MB}')
        a(f'buffer_store_dword v0, v{L4}, s[4:7], s90 offen')
        a('s_waitcnt vmcnt(0)')

    a('s_branch main_attpre')
    a.label('main_layer')
    st('start')
    gemmA_pre(True)
    a('s_waitcnt vmcnt(0)')
    poll_test(1, 'main_q_go')
    poll_spin(1, 'main_q_go', d=dd('q', 4))
    a.label('main_qkv')
    st('qkv go')
    def first_sync(n):
        sk = a.lab('nosync')
        a('s_cmp_eq_u32 s26, 1')
        a(f's_cbranch_scc1 {sk}')
        a(f's_waitcnt vmcnt({n})')
        a('s_barrier')
        a.label(sk)
    gemmA(True, None if K1 else first_sync)
    sig_addr(0, 34)
    a('s_mov_b32 s41, 1')
    a.label('main_attpre')
    attn_pre()
    for i in range(4):
        a(f's_add_u32 s{76+i}, s46, {4096*i}'); a(f's_add_u32 s{80+i}, s47, {4096*i}')
    st('qkv sig')
    a('s_cmp_eq_u32 s26, 1')
    a('s_cbranch_scc1 main_nores')
    a('s_waitcnt vmcnt(0)')
    for g in range(2):
        a(f'v_permlane32_swap_b32 v{RES+4*g}, v{RES+4*g+2}')
        a(f'v_permlane32_swap_b32 v{RES+4*g+1}, v{RES+4*g+3}')
    a.label('main_nores')
    a('s_cmp_ge_u32 s12, 2')
    a('s_cbranch_scc1 main_att_bar')
    sig_block()
    a('s_lshr_b32 s52, s24, 1'); a(f's_mul_i32 s52, s52, {8*CST}'); a('s_add_u32 s50, s28, s52')
    a(f'v_mul_u32_u24 v{T0}, {2*CST}, v{LN}')
    poll_spin(4, a.lab('go'), d=dd('a', 0))
    a.label('main_att_bar')
    a('s_barrier')
    a.label('main_att_go')
    st('att go')
    extra = wtile_dma(False) + wB_loads(True, list(range(8))) + wB_loads(False, list(range(NW2PRE))) + touch_wqkv()
    attn(extra)
    st('att sig')
    gemmB_pre(True)
    a('s_waitcnt vmcnt(1)')
    poll_test(1, 'main_wo_go')
    poll_spin(1, 'main_wo_go', hook=sig_step)
    a('s_barrier')
    gemmB(True, tail=wB_loads(False, list(range(NW2PRE, 22))))
    a('s_cmp_eq_u32 s16, 15')
    a('s_cbranch_scc1 main_skip_ffn1')
    gemmA_pre(False)
    a('s_waitcnt vmcnt(0)')
    poll_test(1, 'main_f1_go')
    poll_spin(1, 'main_f1_go', d=dd('g', 2))
    st('ffn1 go')
    gemmA(False)
    sig_addr(3, 17)
    if 'f' in DIR:
        a('s_cmp_ge_u32 s12, 2'); a('s_cselect_b32 s97, 0, 2')
    a('s_mov_b32 s41, 1')
    a.label('main_skip_ffn1')
    gemmB_pre(False)
    st('ffn1 sig')
    a('s_cmp_ge_u32 s12, 2')
    a('s_cbranch_scc1 main_f2_bar')
    sig_block()
    poll(3, [21])
    a.label('main_f2_bar')
    a('s_barrier')
    gemmB(False, tail=wtile_dma3())
    if STAMP: a('s_waitcnt vmcnt(0)'); st('end')
    dump()
    a('s_cmp_eq_u32 s26, 1')
    a('s_cbranch_scc1 main_end')
    a('s_mov_b32 s26, 1'); a(f's_mov_b32 s27, {2*L.MB}'); a(f's_add_u32 s28, s28, {LST}')
    a('s_branch main_layer')
    a.label('main_end')
    a('s_endpgm')
    return 256, 160*1024


if __name__ == '__main__':
    p = Prog()
    cfg = gen_main(p)
    p.launches.append((KNAME, 256, *cfg))
    errs = p.a.check_branches()
    for e in errs: print('HAZARD', e, file=sys.stderr)
    txt = p.text()
    if os.environ.get('SINGLE'):
        txt = txt.replace(f'; @launch kernel={KNAME} ', '; @launch ')
    open(sys.argv[1], 'w').write(txt)
    if STAMP: open(sys.argv[1] + '.names', 'w').write('\n'.join(STAMPS))
    print('pads', p.a.pads, 'instrs', sum(1 for i in p.a.ins if i.states), file=sys.stderr)
```

```python
import sys, os
sys.path.insert(0, 'work')
from gen import *

CNT = L.FLAGS
CST = 512
FOFF = 256
CB = [0, 128, 384, 448, 512]
LST = 576 * CST
def areg(a0, n=4): return f'a[{a0}:{a0+n-1}]'
FT = 33 * 1024
WT = 3 * FT
RED = WT; PART = WT; SCR = WT + 56*1024
OPT = dict(bwin='12', apre='16', nb='16', bwin2='12', gs='3'); OPT.update(x.split('=') for x in os.environ.get('OPT', '').split(',') if x)
TARGET = {0: 8, 1: 8, 2: 16, 3: 15, 4: 16}
SPIN = 0x200000
STAMPS = []
K1 = 1
W2KS = 96
NSIDE = 151
WCELL = CNT + 2*LST
KNAME = 'interleave_layers__mha_block__dense_activation_mish__prompt_kernel'


def phase0(a):
    a('s_load_dwordx4 s[8:11], s[0:1], 0')
    a('s_load_dwordx4 s[20:23], s[0:1], 64')
    a('s_getpc_b64 s[60:61]')
    a.label('p0_pc')
    a('s_and_b32 s62, s2, 8'); a('s_lshl_b32 s62, s62, 12')
    a('s_sub_u32 s63, main_end-p0_pc, s62')
    a('s_add_u32 s60, s60, s62'); a('s_addc_u32 s61, s61, 0')
    a('v_lshlrev_b32 v182, 7, v0')
    a('v_min_u32 v182, s63, v182')
    a('v_mov_b32 v183, s61')
    a('v_add_co_u32 v182, vcc, s60, v182')
    a('v_addc_co_u32 v183, vcc, 0, v183, vcc')
    a('global_load_dword v184, v[182:183], off')
    a('s_load_dwordx2 s[84:85], s[0:1], 16')
    a('s_load_dwordx4 s[88:91], s[0:1], 32')
    a('s_load_dwordx2 s[86:87], s[0:1], 48')
    LN, L16, L4, T0, T1, T2, T3 = 1, 2, 3, 4, 5, 6, 7
    a(f'v_and_b32 v{LN}, 63, v0')
    a(f'v_lshrrev_b32 v{T0}, 6, v0')
    a(f'v_readfirstlane_b32 s12, v{T0}')
    a('s_and_b32 s13, s2, 7'); a('s_lshr_b32 s14, s2, 3')
    a('s_lshl_b32 s15, s13, 2'); a('s_and_b32 s33, s14, 3'); a('s_add_u32 s15, s15, s33')
    a('s_lshr_b32 s18, s14, 2')
    a('s_add_u32 s48, s18, s13'); a('s_and_b32 s48, s48, 7')
    WSL = 12288; XB = 8*WSL; XSL = 8192
    DW, DX = 8, 9
    a(f'v_lshrrev_b32 v{T0}, 3, v{LN}')
    a(f'v_and_b32 v{T1}, 7, v{LN}')
    a(f'v_bfe_u32 v{T2}, v{LN}, 4, 1')
    a(f'v_lshlrev_b32 v{T2}, 2, v{T2}')
    a(f'v_xor_b32 v{T2}, v{T1}, v{T2}')
    a(f'v_mul_u32_u24 v{DW}, 3072, v{T0}')
    a(f'v_lshl_add_u32 v{DW}, v{T2}, 4, v{DW}')
    a(f'v_lshrrev_b32 v{T2}, 4, v{LN}')
    a(f'v_xor_b32 v{T2}, v{T1}, v{T2}')
    a(f'v_lshlrev_b32 v{DX}, 10, v{T0}')
    a(f'v_lshl_add_u32 v{DX}, v{T2}, 4, v{DX}')
    a(f'v_xor_b32 v{DX+1}, 64, v{DX}')
    a(f'v_add_u32 v{DX+1}, {8*1024 - 1024}, v{DX+1}')
    a('s_mul_i32 s40, s12, 24576'); a('s_lshl_b32 s33, s18, 7'); a('s_add_u32 s40, s40, s33')
    a('s_lshl_b32 s43, s15, 16'); a('s_lshl_b32 s33, s12, 14'); a('s_add_u32 s43, s43, s33')
    a(f's_mul_i32 s33, s48, {64*3072}'); a('s_add_u32 s40, s40, s33')
    a('s_lshl_b32 s33, s48, 7'); a('s_add_u32 s43, s43, s33')
    a(f's_mov_b32 s49, {64*3072}'); a('s_movk_i32 s51, 128')
    MIX = int(OPT.get('mix', 0))
    a(f's_add_u32 s76, s18, {3*MIX}'); a('s_and_b32 s76, s76, 7'); a(f's_add_u32 s77, s18, {6*MIX}'); a('s_and_b32 s77, s77, 7')
    a('s_sub_u32 s74, s76, s18'); a('s_lshl_b32 s74, s74, 7'); a('s_add_u32 s74, s74, 1024')
    a('s_sub_u32 s75, s77, s18'); a('s_lshl_b32 s75, s75, 7'); a('s_add_u32 s75, s75, 2048')
    a(f's_add_u32 s78, s74, {32*3072}'); a(f's_add_u32 s79, s75, {32*3072}')
    a('s_lshl_b32 s44, s12, 10'); a('s_lshl_b32 s45, s12, 11'); a(f's_add_u32 s45, s45, {XB}')
    a('s_sub_u32 s33, s2, 160'); a('s_lshl_b32 s34, s33, 2'); a('s_add_u32 s34, s34, s12'); a(f's_mul_i32 s34, s34, {37*256}')
    a(f's_add_u32 s34, s34, {CNT}')
    a(f'v_min_u32 v{T0}, 36, v{LN}'); a(f'v_lshlrev_b32 v{T0}, 8, v{T0}')
    a(f'v_mov_b32 v{T1}, 0')
    if STAMP:
        a('s_memrealtime s[96:97]')
    a('s_waitcnt lgkmcnt(0)')
    if STAMP:
        STAMPS.append('p0 prek'); i_ = len(STAMPS) - 1
        a(f'v_writelane_b32 v11, s96, {2*i_+2}'); a(f'v_writelane_b32 v11, s96, {2*i_+3}')
    stp0('p0 karg')
    srd(a, 4, 22, L.WS_BYTES)
    srd(a, 28, 10, 512*1536*2)
    srd(a, 8, 8, 2*L.MB)
    a('s_cmp_lt_u32 s33, 16'); a('s_cselect_b32 s35, 1, 0')
    a('s_cbranch_scc0 p0_noclr')
    a(f'buffer_store_dword v{T1}, v{T0}, s[4:7], s34 offen sc1')
    a.label('p0_noclr')
    def dma_pair(sl):
        o = []
        o.append([f's_add_u32 m0, s45, {sl*XSL}', 's_add_u32 s46, s40, s74', f'buffer_load_dwordx4 v{DX}, s[8:11], s43 offen lds'])
        o.append([f'buffer_load_dwordx4 v{DX+1}, s[8:11], s43 offen offset:1024 lds', 's_add_u32 s48, s48, 1', 's_cmp_eq_u32 s48, 8',
                  f's_cselect_b32 s50, {(128 - 1024) & 0xffffffff}, s51', f's_cselect_b32 s52, {((64 - 512)*3072) & 0xffffffff}, s49', 's_add_u32 s43, s43, s50'])
        src = ['s40', 's46', 's47', 's46', 's47', 's46']
        for n in range(6):
            h, u = divmod(n, 3)
            g = [f's_add_u32 m0, s44, {(2*sl + h)*WSL + u*4096}']
            if 0 < n < 5:
                h2, u2 = divmod(n + 1, 3)
                g.append(f's_add_u32 {src[n+1]}, s40, ' + {2: 's75', 3: str(32*3072), 4: 's78', 5: 's79'}[n+1])
            else:
                g.append('s_nop 0' if n == 0 else 's_add_u32 s40, s40, s52')
            g.append(f'buffer_load_dwordx4 v{DW}, s[28:31], {src[n]} offen lds')
            o.append(g)
        return o
    def run(gs):
        for g in gs:
            for t in g: a(t)
    if int(OPT.get('tch', 1)):
        a('s_lshl_b32 s33, s2, 2'); a('s_add_u32 s33, s33, s12'); a('s_mul_i32 s33, s33, 1536')
        a(f'v_lshlrev_b32 v185, 7, v{LN}')
        a('s_mov_b64 exec, 0xfff')
        a('buffer_load_dword v187, v185, s[28:31], s33 offen')
        a('s_mov_b64 exec, -1')
    run(dma_pair(0))
    stp0('p0 dma0')
    srd(a, 20, 20, 256)
    if int(OPT.get('tlb', 0)):
        a(f'v_lshlrev_b32 v185, 21, v{LN}'); a(f'v_min_u32 v185, {CNT}, v185')
        a('buffer_load_dword v186, v185, s[4:7], 0 offen')
        a(f'buffer_load_dword v187, v{T1}, s[20:23], 0 offen offset:192')
    run(dma_pair(1))
    a(f'v_lshlrev_b32 v{L16}, 4, v{LN}')
    a(f'v_lshlrev_b32 v{L4}, 2, v{LN}')
    a('s_lshr_b32 s19, s12, 1'); a('s_and_b32 s24, s12, 1'); a('s_xor_b32 s25, s19, s24')
    RW = 66
    a(f'v_lshrrev_b32 v{T0}, 5, v{LN}'); a(f'v_lshlrev_b32 v{T0}, 3, v{T0}')
    a(f'v_bfe_u32 v{T1}, v{LN}, 2, 2'); a(f'v_add_u32 v{T0}, v{T0}, v{T1}'); a(f'v_lshlrev_b32 v{RW}, 7, v{T0}')
    a(f'v_bfe_u32 v{T1}, v{LN}, 3, 1'); a(f'v_xor_b32 v{T1}, s24, v{T1}'); a(f'v_lshl_add_u32 v{RW}, v{T1}, 6, v{RW}')
    a(f'v_bfe_u32 v{T1}, v{LN}, 4, 1'); a(f'v_lshl_add_u32 v{RW}, v{T1}, 5, v{RW}')
    a(f'v_and_b32 v{T1}, 3, v{LN}'); a(f'v_lshl_add_u32 v{RW}, v{T1}, 3, v{RW}')
    a('s_lshl_b32 s33, s25, 11')
    a(f'v_xor_b32 v{RW}, s33, v{RW}'); a(f'v_xor_b32 v{RW+1}, 2048, v{RW}')
    a(f'v_add_u32 v70, {4*WSL}, v{RW}'); a(f'v_add_u32 v71, {4*WSL}, v{RW+1}')
    RX = 12
    a(f'v_and_b32 v{T0}, 31, v{LN}'); a(f'v_lshlrev_b32 v{T1}, 7, v{T0}')
    a(f'v_bfe_u32 v{T2}, v{LN}, 1, 3'); a(f'v_lshrrev_b32 v{T3}, 5, v{LN}'); a(f'v_xor_b32 v{T2}, v{T2}, v{T3}')
    a(f'v_lshl_add_u32 v{T1}, v{T2}, 4, v{T1}')
    a('s_lshl_b32 s33, s25, 5'); a(f'v_xor_b32 v{T1}, s33, v{T1}')
    a('s_lshl_b32 s33, s19, 12'); a(f's_add_u32 s33, s33, {XB}')
    a(f'v_add_u32 v{RX}, s33, v{T1}')
    for q in range(1, 4): a(f'v_xor_b32 v{RX+q}, {32*q}, v{RX}')
    STV = 16; RS, RQ = 68, 69; XE = 72; WE = 128
    FRG = [192, 128]
    ACC = [80 + 16*i for i in range(3)]
    S1, S2, CS, ONE, AV = 32, 33, 34, 37, 38
    for r_ in range(S1, CS + 3): a(f'v_mov_b32 v{r_}, 0')
    a(f'v_mov_b32 v{ONE}, {ONES}')
    for r_ in range(0, 48, 2): a(f'v_pk_mov_b32 {v(ACC[0]+r_,2)}, {v(S1,2)}, {v(S1,2)}')
    SD, SR = 40, 41
    EARLY = int(OPT.get('early', 1))
    def side_params():
        a('s_and_b32 s26, s2, 0xf0'); a('s_lshl_b32 s33, s13, 1'); a('s_add_u32 s26, s26, s33'); a('s_and_b32 s33, s14, 1'); a('s_add_u32 s26, s26, s33')
        a('s_mov_b32 s95, 0x00020000')
        a('s_lshl_b32 s71, s12, 13'); a(f's_add_u32 s71, s71, {XB + 4*XSL}')
        a(f'v_lshrrev_b32 v{T0}, 5, v{LN}'); a(f'v_lshlrev_b32 v{T0}, 2, v{T0}')
        a(f'v_bfe_u32 v{T2}, v{LN}, 2, 2'); a(f'v_add_u32 v{T0}, v{T0}, v{T2}')
        a(f'v_bfe_u32 v{T2}, v{LN}, 4, 1'); a(f'v_lshlrev_b32 v{T2}, 5, v{T2}')
        a(f'v_and_b32 v{T1}, 3, v{LN}'); a(f'v_lshl_add_u32 v{T2}, v{T1}, 3, v{T2}')
        a('s_cmp_ge_u32 s26, 44'); a('s_cbranch_scc1 p0_rows')
        a('s_mov_b32 s92, s88'); a('s_mov_b32 s93, s89'); a(f's_mov_b32 s94, {512*1376*2}'); a('s_mov_b32 s65, 2')
        a('s_mov_b32 s68, s26')
        a(f's_mul_i32 s70, s68, {FT}'); a(f's_add_u32 s70, s70, {L.W1F}')
        a('s_lshl_b32 s66, s12, 13'); a('s_add_u32 s66, s66, s70'); a('s_movk_i32 s72, 1024')
        a(f's_mov_b32 s73, {16*2752}'); a(f's_mul_i32 s67, s12, {128*2752}'); a('s_lshl_b32 s33, s68, 6'); a('s_add_u32 s67, s67, s33')
        a(f'v_lshrrev_b32 v{SD}, 2, v{LN}'); a(f'v_mul_u32_u24 v{SD}, 2752, v{SD}'); a(f'v_lshl_add_u32 v{SD}, v{T1}, 4, v{SD}')
        a(f'v_lshl_add_u32 v{SR}, v{T0}, 6, v{T2}'); a(f'v_add_u32 v{SR}, s71, v{SR}')
        a('s_branch p0_prm')
        a.label('p0_rows')
        a('s_mov_b32 s65, 0'); a('s_mov_b32 s69, 0')
        a('s_mov_b32 s92, s28'); a('s_mov_b32 s93, s29'); a(f's_mov_b32 s94, {512*1536*2}')
        a('s_sub_u32 s68, s26, 44'); a('s_lshr_b32 s69, s68, 4'); a('s_and_b32 s68, s68, 15')
        a('s_movk_i32 s73, 3072'); a(f's_mov_b32 s72, {L.KSX*1024}'); a(f's_mov_b32 s70, {L.WQKVF}')
        a('s_cmp_lt_u32 s26, 92'); a('s_cbranch_scc1 p0_rows2')
        a('s_mov_b32 s92, s84'); a('s_mov_b32 s93, s85'); a(f's_mov_b32 s94, {512*512*2}'); a('s_mov_b32 s69, 0')
        a('s_movk_i32 s73, 1024'); a(f's_mov_b32 s72, {32*1024}'); a(f's_mov_b32 s70, {L.WOF}')
        a('s_cmp_lt_u32 s26, 108'); a('s_cbranch_scc1 p0_rows2')
        a('s_mov_b32 s92, s86'); a('s_mov_b32 s93, s87'); a(f's_mov_b32 s94, {1376*512*2}')
        a('s_sub_u32 s68, s26, 108'); a(f's_mov_b32 s72, {W2KS*1024}'); a(f's_mov_b32 s70, {L.W2F}')
        a(f's_cmp_ge_u32 s26, {NSIDE}'); a('s_cselect_b32 s94, 0, s94')
        a.label('p0_rows2')
        a('s_lshl_b32 s33, s68, 2'); a('s_add_u32 s33, s33, s12'); a('s_lshl_b32 s33, s33, 3'); a('s_mul_i32 s67, s33, s73')
        a('s_lshl_b32 s33, s69, 10'); a('s_add_u32 s67, s67, s33')
        a('s_lshl_b32 s33, s69, 1'); a('s_add_u32 s33, s33, s24'); a('s_lshl_b32 s33, s33, 3'); a('s_mul_i32 s66, s33, s72')
        a('s_lshl_b32 s33, s68, 1'); a('s_add_u32 s33, s33, s19'); a('s_lshl_b32 s33, s33, 10'); a('s_add_u32 s66, s66, s33'); a('s_add_u32 s66, s66, s70')
        a(f'v_mov_b32 v{SD}, v{L16}')
        a('s_lshl_b32 s33, s19, 14'); a('s_lshl_b32 s34, s24, 9'); a('s_add_u32 s33, s33, s34'); a(f's_add_u32 s33, s33, {XB + 4*XSL}')
        a(f'v_lshl_add_u32 v{SR}, v{T0}, 10, v{T2}'); a(f'v_add_u32 v{SR}, s33, v{SR}')
        a.label('p0_prm')
        a('s_and_b32 s93, s93, 0xffff')
    def side_dma():
        return [[f's_add_u32 m0, s71, {i*1024}', 's_nop 0', f'buffer_load_dwordx4 v{SD}, s[92:95], s67 offen lds', 's_add_u32 s67, s67, s73'] for i in range(8)]
    def reads(sl):
        F = FRG[sl % 2]; o = []
        for j in range(4):
            h, s_ = divmod(j, 2)
            o.append(f'ds_read_b128 {v(F+16*j,4)}, v{RX + j} offset:{sl*XSL}')
            ad = (RW if sl < 2 else 70) + s_
            for u in range(3):
                r = F + 16*j + 4 + 4*u; off = (2*(sl % 2) + h)*WSL + u*4096
                o.append(f'ds_read_b64_tr_b16 {v(r,2)}, v{ad} offset:{off}')
                o.append(f'ds_read_b64_tr_b16 {v(r+2,2)}, v{ad} offset:{off+512}')
        return o
    def mf(f, xf, wf, first):
        cc = '0' if first else v(ACC[f], 16)
        if f == 2: a(f'{MFMA} {v(ACC[f],16)}, {xf}, {wf}, {cc}')
        else: a(f'{MFMA} {v(ACC[f],16)}, {wf}, {xf}, {cc}')
    a('s_mov_b32 s36, 0')
    a('s_mov_b32 s92, s28'); a('s_mov_b32 s93, s29'); a('s_mov_b32 s94, 0'); a('s_mov_b32 s95, 0x00020000')
    stp0('p0 setup')
    a(f's_waitcnt vmcnt({8 + 2*int(OPT.get("tlb", 0))})')
    a('s_barrier')
    stp0('p0 first')
    for t in reads(0): a(t)
    run(dma_pair(2))
    run(dma_pair(3))
    if EARLY:
        side_params(); run(side_dma())
    a('.p2align 6')
    a.label('p0_loop')
    for sl in range(4):
        if EARLY and sl == 3:
            a('s_waitcnt vmcnt(16) lgkmcnt(0)')
        else:
            a(f's_cmp_eq_u32 s36, {0 if EARLY else 1}')
            a('s_waitcnt vmcnt(24) lgkmcnt(0)')
            a(f's_cbranch_scc1 p0_ww{sl}')
            a('s_waitcnt vmcnt(16)')
            a.label(f'p0_ww{sl}')
        a('s_barrier')
        q = reads((sl + 1) % 4)
        dp = dma_pair(sl)
        F = FRG[sl % 2]
        for n in range(12):
            j, f = divmod(n, 3)
            mf(f, v(F+16*j, 4), v(F+16*j+4+4*f, 4), False)
            for _ in range(3 if n < 4 else 2):
                if q: a(q.pop(0))
            if n >= 4:
                for t in dp.pop(0): a(t)
            if n == 3 and sl in (0, 3):
                a('s_cmp_eq_u32 s35, 0'); a(f's_cbranch_scc0 p0_clr{sl}')
                a.label(f'p0_back{sl}')
        assert not q and not dp
        for r_ in range(4):
            for j in (0, 2):
                a(f'v_dot2_f32_bf16 v{S1}, v{F+16*j+r_}, v{ONE}, v{S1}')
                a(f'v_dot2_f32_bf16 v{S2}, v{F+16*j+r_}, v{F+16*j+r_}, v{S2}')
                for u in range(3): a(f'v_dot2_f32_bf16 v{CS+u}, v{F+16*(j+1)+4+4*u+r_}, v{ONE}, v{CS+u}')
    a('s_cmp_eq_u32 s36, 1')
    a('s_cbranch_scc1 p0_after')
    a('s_mov_b32 s36, 1'); a('s_mov_b32 s10, 0'); a('s_mov_b32 s30, 0'); a('s_mov_b32 s35, 0')
    stp0('p0 trip0')
    if not EARLY:
        side_params(); run(side_dma())
    a('s_branch p0_loop')
    a.label('p0_clr0')
    a('s_cmp_lg_u32 s12, 0'); a('s_cbranch_scc1 p0_back0')
    a('s_mov_b64 exec, 1'); a(f'v_mov_b32 v{AV}, 1')
    a(f'buffer_atomic_add v{AV}, v{L4}, s[20:23], 0 offen sc0 sc1')
    a('s_mov_b64 exec, -1')
    a('s_branch p0_back0')
    a.label('p0_clr3')
    a('s_cmp_lg_u32 s12, 0'); a('s_cbranch_scc1 p0_back3')
    a(f'v_readfirstlane_b32 s33, v{AV}')
    a('s_cmp_lg_u32 s33, 15'); a('s_cbranch_scc1 p0_back3')
    a('s_mov_b64 exec, 1'); a(f'v_mov_b32 v{AV}, 1')
    a(f'buffer_store_dword v{AV}, v{L4}, s[20:23], 0 offen offset:128 sc1')
    a('s_mov_b64 exec, -1')
    a('s_branch p0_back3')
    a.label('p0_after')
    a(f's_mov_b32 s10, {2*L.MB}')
    a('s_lshl_b32 s17, s15, 1'); a('s_add_u32 s17, s17, s19')
    a('s_lshl_b32 s16, s18, 1'); a('s_add_u32 s16, s16, s24')
    a('s_lshl_b32 s76, s76, 1'); a('s_add_u32 s76, s76, s24'); a('s_lshl_b32 s77, s77, 1'); a('s_add_u32 s77, s77, s24')
    a('s_lshl_b32 s33, s17, 10')
    a('s_lshl_b32 s56, s16, 17'); a('s_add_u32 s56, s56, s33'); a('s_add_u32 s57, s56, 0x10000')
    a('s_lshl_b32 s58, s76, 17'); a('s_add_u32 s58, s58, s33'); a(f's_add_u32 s58, s58, {L.K[0]}'); a('s_add_u32 s59, s58, 0x10000')
    a('s_lshl_b32 s54, s77, 17'); a('s_add_u32 s54, s54, s33'); a(f's_add_u32 s54, s54, {L.V[0]}')
    a('s_waitcnt vmcnt(0) lgkmcnt(0)')
    SC0 = 0
    stp0('p0 loop')
    a(f'v_permlane32_swap_b32 v{S1}, v{S2}')
    a(f'v_add_f32 v{S1}, v{S1}, v{S2}')
    a('s_lshl_b32 s33, s12, 10'); a(f's_add_u32 s33, s33, {SC0}')
    a(f'v_add_u32 v{T0}, s33, v{L4}')
    a(f'ds_write_b32 v{T0}, v{S1}')
    for u in range(3): a(f'ds_write_b32 v{T0}, v{CS+u} offset:{256*(u+1)}')
    a(f'v_xor_b32 v{T1}, 1024, v{T0}')
    a(f'v_xor_b32 v{T2}, 2048, v{T0}')
    a(f'v_xor_b32 v{T3}, 128, v{T2}')
    a(f'v_xor_b32 v{T0}, 128, v{T0}')
    a(f'v_bfe_u32 v78, v{LN}, 4, 1'); a('v_lshlrev_b32 v78, 16, v78')
    a(f'v_lshrrev_b32 v79, 5, v{LN}'); a('v_lshl_add_u32 v78, v79, 8, v78')
    a(f'v_and_b32 v79, 15, v{LN}'); a('v_lshl_add_u32 v78, v79, 4, v78')
    a('s_waitcnt lgkmcnt(0)')
    a('s_barrier')
    a(f'ds_read_b32 v{S2}, v{T1}')
    for u in range(3):
        a(f'ds_read_b32 v{48+3*u}, v{T0} offset:{256*(u+1)}')
        a(f'ds_read_b32 v{49+3*u}, v{T2} offset:{256*(u+1)}')
        a(f'ds_read_b32 v{50+3*u}, v{T3} offset:{256*(u+1)}')
    a('s_waitcnt lgkmcnt(9)')
    a(f'v_add_f32 v{STV}, v{S1}, v{S2}')
    a(f'v_mov_b32 v{STV+1}, v{STV}')
    a(f'v_permlane32_swap_b32 v{STV}, v{STV+1}')
    a(f'v_mul_f32 v{STV}, {f32(-1.0/512)}, v{STV}')
    a(f'v_mul_f32 v{STV+1}, {f32(1.0/512)}, v{STV+1}')
    a(f'v_fma_f32 v{STV+1}, -v{STV}, v{STV}, v{STV+1}')
    a(f'v_max_f32 v{STV+1}, 0, v{STV+1}')
    a(f'v_add_f32 v{STV+1}, {f32(1e-5)}, v{STV+1}')
    a(f'v_rsq_f32 v{RS}, v{STV+1}')
    MH, MM, ML, TT = STV+2, STV+3, STV+4, STV+8
    split3(a, STV, MH, MM, ML, TT)
    a('s_lshl_b32 s33, s12, 8'); a(f's_add_u32 s33, s33, {SC0 + 4096}')
    a(f'v_add_u32 v76, s33, v{L4}')
    a(f'ds_write_b32 v76, v{RS}')
    a(f'v_lshrrev_b32 v77, 5, v{LN}'); a('v_lshlrev_b32 v77, 4, v77'); a('v_add_u32 v77, s33, v77')
    pack_hi(a, XE, MH, MM)
    a(f'v_lshrrev_b32 v{XE+1}, 16, v{ML}'); a(f'v_mov_b32 v{XE+2}, 0'); a(f'v_lshrrev_b32 v{XE+3}, 16, v{MH}')
    a(f'v_mul_f32 v{RQ}, {f32(L.QSCALE)}, v{RS}')
    for j in range(4): a(f'ds_read_b128 {v(STV+4*j,4)}, v77 offset:{32*j}')
    a(f'v_cmp_gt_u32 vcc, 32, v{LN}')
    a('s_waitcnt lgkmcnt(5)')
    for u in (1, 2, 0):
        c_ = CS + u; W_ = WE + 4*u; HI, MID, LO, TQ = 44, 45, 46, 47
        a(f'v_add_f32 v{c_}, v{c_}, v{48+3*u}'); a(f'v_add_f32 v{49+3*u}, v{49+3*u}, v{50+3*u}'); a(f'v_add_f32 v{c_}, v{c_}, v{49+3*u}')
        split3(a, c_, HI, MID, LO, TQ)
        a(f'v_lshrrev_b32 v{W_+1}, 16, v{HI}'); a(f'v_or_b32 v{W_}, v{W_+1}, v{HI}')
        a(f'v_lshrrev_b32 v{W_+3}, 16, v{MID}')
        pack_hi(a, TQ, LO, MID)
        a(f'v_cndmask_b32 v{W_}, v{TQ}, v{W_}, vcc')
        a(f'v_cndmask_b32 v{W_+1}, 0, v{W_+1}, vcc')
        a(f'v_mov_b32 v{W_+2}, 0')
        a(f'v_cndmask_b32 v{W_+3}, 0, v{W_+3}, vcc')
        mf(u, v(XE, 4), v(W_, 4), False)
    a('s_cmp_lg_u32 s17, 0'); a('s_cbranch_scc1 p0_nowe')
    for u in range(3):
        a(f's_mul_i32 s33, s{(16, 76, 77)[u]}, {FT}'); a(f's_add_u32 s33, s33, {L.WQKVF + 32*1024 + 16*u*FT}')
        a(f'buffer_store_dwordx4 {v(WE+4*u,4)}, v{L16}, s[4:7], s33 offen sc1')
    a.label('p0_nowe')
    a('s_mov_b64 exec, 1')
    a(f'buffer_load_dword v{AV+1}, v{L4}, s[20:23], 0 offen offset:128 sc1')
    a('s_mov_b64 exec, -1')
    a('s_waitcnt lgkmcnt(0)')
    for f in (1, 2, 0):
        A = ACC[f]
        for g in range(2):
            B = A + 8*g
            for r_ in range(0, 8, 2):
                if f < 2:
                    o = 1 if f == 0 else 0
                    a(f'v_pk_mul_f32 {v(B+r_,2)}, {v(B+r_,2)}, {v(RS,2)} op_sel:[0,{o}] op_sel_hi:[1,{o}]')
                else:
                    a(f'v_pk_mul_f32 {v(B+r_,2)}, {v(B+r_,2)}, {v(STV+8*g+r_,2)}')
            for r_ in range(4): a(f'v_cvt_pk_bf16_f32 v{B+r_}, v{B+2*r_}, v{B+2*r_+1}')
            if f < 2: a(f'buffer_store_dwordx4 {v(B,4)}, v{L16}, s[4:7], s{56+2*f+g} offen sc1')
            else: a(f'buffer_store_dwordx4 {v(B,4)}, v78, s[4:7], s54 offen offset:{512*g} sc1')
    a('s_lshr_b32 s42, s17, 4'); a('s_lshl_b32 s42, s42, 1')
    a('s_and_b32 s33, s17, 1'); a('s_add_u32 s42, s42, s33'); a(f's_mul_i32 s42, s42, {CST}'); a(f's_add_u32 s42, s42, {CNT}')
    CA = 42
    a(f's_mul_i32 s33, s16, {8*CST}'); a(f'v_mov_b32 v{CA}, s33')
    a(f's_mul_i32 s33, s76, {8*CST}'); a(f'v_writelane_b32 v{CA}, s33, 1')
    a(f's_mul_i32 s33, s77, {8*CST}'); a(f'v_writelane_b32 v{CA}, s33, 2')
    FR = 224
    a('s_cmp_eq_u32 s65, 0'); a('s_cbranch_scc1 p0_rd2')
    for i in range(8):
        a(f'ds_read_b64_tr_b16 {v(FR+4*i,2)}, v{SR} offset:{i*1024}')
        a(f'ds_read_b64_tr_b16 {v(FR+4*i+2,2)}, v{SR} offset:{i*1024+512}')
    a('s_branch p0_rd3')
    a.label('p0_rd2')
    for i in range(8):
        a(f'ds_read_b64_tr_b16 {v(FR+4*i,2)}, v{SR} offset:{i*64}')
        a(f'ds_read_b64_tr_b16 {v(FR+4*i+2,2)}, v{SR} offset:{i*64+8192}')
    a.label('p0_rd3')
    a('s_waitcnt vmcnt(6)')
    a('s_mov_b32 s34, 0')
    a.label('p0_clr_poll')
    a(f'v_readfirstlane_b32 s33, v{AV+1}')
    a('s_cmp_eq_u32 s33, 1'); a('s_cbranch_scc1 p0_clr_ok')
    a('s_sleep 2')
    a('s_mov_b64 exec, 1')
    a(f'buffer_load_dword v{AV+1}, v{L4}, s[20:23], 0 offen offset:128 sc1')
    a('s_mov_b64 exec, -1')
    a('s_add_u32 s34, s34, 1')
    a('s_waitcnt vmcnt(0)')
    a(f's_cmp_lt_u32 s34, {SPIN}'); a('s_cbranch_scc1 p0_clr_poll')
    a.label('p0_clr_ok')
    a('s_waitcnt vmcnt(0)')
    a('s_mov_b64 exec, 7'); a(f'v_mov_b32 v{AV}, 1')
    a(f'buffer_atomic_add v{AV}, v{CA}, s[4:7], s42 offen sc0 sc1')
    a('s_mov_b64 exec, -1')
    stp0('p0 sig')
    a(f's_cmp_ge_u32 s26, {NSIDE}'); a('s_cbranch_scc1 p0_noside')
    a('s_waitcnt lgkmcnt(0)')
    for i in range(8):
        a(f'buffer_store_dwordx4 {v(FR+4*i,4)}, v{L16}, s[4:7], s66 offen sc1')
        a('s_add_u32 s66, s66, s72')
    a.label('p0_noside')
    a('s_cmp_eq_u32 s65, 0'); a('s_cbranch_scc1 p0_nosum')
    a(f'v_mov_b32 v{S1}, 0'); a(f'v_mov_b32 v{S2}, 0')
    for i in range(0, 32, 2):
        a(f'v_dot2_f32_bf16 v{S1}, v{FR+i}, v{ONE}, v{S1}')
        a(f'v_dot2_f32_bf16 v{S2}, v{FR+i+1}, v{ONE}, v{S2}')
    a('s_lshl_b32 s33, s12, 8'); a(f's_add_u32 s33, s33, {SC0 + 8192}')
    a(f'v_add_u32 v{T0}, s33, v{L4}')
    a(f'v_add_f32 v{S1}, v{S1}, v{S2}')
    a(f'ds_write_b32 v{T0}, v{S1}')
    a('s_waitcnt lgkmcnt(0)')
    a('s_barrier')
    a.label('p0_nosum')
    a(f's_cmp_ge_u32 s26, {NSIDE}'); a('s_cbranch_scc1 p0_v0')
    a('s_waitcnt vmcnt(8)')
    a('s_branch p0_v1')
    a.label('p0_v0')
    a('s_waitcnt vmcnt(0)')
    a.label('p0_v1')
    a(f'v_cmp_eq_u32 vcc, {3*TARGET[0]-1}, v{AV}')
    a('s_and_b64 vcc, vcc, 7'); a('s_cbranch_scc0 p0_notlast')
    a('s_mov_b64 exec, vcc'); a(f'v_mov_b32 v{AV}, 1')
    a(f'buffer_store_dword v{AV}, v{CA}, s[4:7], s42 offen offset:{FOFF} sc1')
    a('s_mov_b64 exec, -1')
    a.label('p0_notlast')
    a('s_cmp_lg_u32 s12, 3'); a('s_cbranch_scc1 p0_done')
    a(f's_cmp_ge_u32 s26, {NSIDE}'); a('s_cbranch_scc1 p0_done')
    a('s_cmp_eq_u32 s65, 0'); a('s_cbranch_scc1 p0_wsig')
    a(f'v_and_b32 v{T2}, 31, v{LN}'); a(f'v_lshlrev_b32 v{T2}, 2, v{T2}'); a(f'v_add_u32 v{T1}, {SC0+8192}, v{T2}')
    for i in range(8): a(f'ds_read_b32 v{48+i}, v{T1} offset:{128*i}')
    B = 61
    a(f'v_mov_b32 v{B}, 0')
    a('s_cmp_lg_u32 s65, 2'); a('s_cbranch_scc1 p0_nobias')
    a('s_mov_b32 s92, s90'); a('s_and_b32 s93, s91, 0xffff'); a(f's_mov_b32 s94, {1376*2}')
    a('s_lshl_b32 s33, s68, 6')
    a(f'v_lshrrev_b32 v{T3}, 1, v{T2}')
    a(f'buffer_load_ushort v{B}, v{T3}, s[92:95], s33 offen')
    a('s_waitcnt vmcnt(0)')
    a(f'v_lshlrev_b32 v{B}, 16, v{B}')
    a.label('p0_nobias')
    a('s_waitcnt lgkmcnt(0)')
    a('v_add_f32 v48, v48, v49'); a('v_add_f32 v50, v50, v51'); a('v_add_f32 v52, v52, v53'); a('v_add_f32 v54, v54, v55')
    a('v_add_f32 v48, v48, v50'); a('v_add_f32 v52, v52, v54'); a('v_add_f32 v48, v48, v52')
    HI, MID, LO = 62, 63, 64
    split3(a, 48, HI, MID, LO, 65)
    pack_hi(a, 56, HI, HI); pack_hi(a, 57, HI, B); pack_hi(a, 58, B, B)
    a(f'v_lshrrev_b32 v59, 16, v{MID}')
    pack_hi(a, 60, LO, MID)
    a(f'v_cmp_gt_u32 vcc, 32, v{LN}')
    a('v_cndmask_b32 v56, v60, v56, vcc'); a('v_cndmask_b32 v57, 0, v57, vcc')
    a('v_cndmask_b32 v58, 0, v58, vcc'); a('v_cndmask_b32 v59, 0, v59, vcc')
    a(f's_add_u32 s33, s70, {32*1024}')
    a(f'buffer_store_dwordx4 v[56:59], v{L16}, s[4:7], s33 offen sc1')
    a.label('p0_wsig')
    a('s_mov_b32 s96, 1')
    a('s_branch p0_out')
    a.label('p0_done')
    a('s_mov_b32 s96, 0')
    a.label('p0_out')

def gen_main(p):
    a = p.a
    p.entry(KNAME, 512, 256)
    a('s_cmp_ge_u32 s2, 256')
    a('s_cbranch_scc1 main_end')
    global stp0
    def stp0(name):
        if not STAMP: return
        if name not in STAMPS: STAMPS.append(name)
        i = STAMPS.index(name)
        a('s_memtime s[98:99]'); a('s_memrealtime s[100:101]'); a('s_waitcnt lgkmcnt(0)')
        a(f'v_writelane_b32 v11, s98, {2*i+2}')
        a(f'v_writelane_b32 v11, s100, {2*i+3}')
    stp0('start')
    phase0(a)
    a('s_load_dwordx2 s[88:89], s[0:1], 56')
    LN, L16, L4, T0, T1, T2, T3 = 1, 2, 3, 4, 5, 6, 7
    RES = 8
    if STAMP: a('v_mov_b32 v0, v11')
    a('s_and_b32 s13, s2, 7'); a('s_lshr_b32 s14, s2, 3')
    a('s_lshl_b32 s15, s13, 1'); a('s_and_b32 s29, s14, 1'); a('s_add_u32 s15, s15, s29')
    a('s_lshr_b32 s16, s14, 1')
    a('s_lshl_b32 s17, s15, 2'); a('s_and_b32 s29, s12, 1'); a('s_lshl_b32 s29, s29, 1'); a('s_add_u32 s17, s17, s29')
    a('s_lshr_b32 s29, s12, 1'); a('s_add_u32 s17, s17, s29')
    a('s_lshl_b32 s18, s13, 2'); a('s_and_b32 s29, s14, 3'); a('s_add_u32 s18, s18, s29')
    a('s_lshr_b32 s19, s14, 2')
    a('s_lshl_b32 s21, s18, 1'); a('s_lshr_b32 s29, s12, 1'); a('s_add_u32 s20, s21, s29')
    a('s_lshl_b32 s22, s19, 1'); a('s_and_b32 s29, s12, 1'); a('s_add_u32 s22, s22, s29'); a('s_xor_b32 s23, s22, 1')
    a('s_mov_b32 s24, s18'); a('s_mov_b32 s25, s19')
    a('s_mov_b32 s26, 0'); a('s_mov_b32 s27, 0'); a(f's_mov_b32 s28, {CNT}')
    a('s_mov_b32 s30, 0x0000ffff'); a('s_mov_b32 s31, 0x0000ffff')
    a('s_lshl_b32 s32, s20, 5'); a('s_lshl_b32 s29, s22, 1'); a('s_add_u32 s32, s32, s29'); a('s_lshl_b32 s32, s32, 10')
    a('s_mul_i32 s33, s12, 22'); a('s_mul_i32 s29, s12, 21'); a('s_add_u32 s29, s29, 1')
    a('s_cmp_ge_u32 s12, 2'); a('s_cselect_b32 s33, s29, s33')
    a('s_lshl_b32 s34, s16, 2'); a('s_lshr_b32 s29, s17, 4'); a('s_add_u32 s34, s34, s29'); a('s_lshl_b32 s34, s34, 1')
    a('s_and_b32 s29, s17, 1'); a('s_add_u32 s34, s34, s29')
    a('s_lshr_b32 s29, s24, 1'); a('s_lshl_b32 s29, s29, 2'); a('s_add_u32 s35, s29, s12'); a('s_lshl_b32 s35, s35, 1')
    a('s_lshr_b32 s36, s25, 1'); a('s_add_u32 s36, s36, s29'); a('s_lshl_b32 s36, s36, 1')
    a('s_lshl_b32 s37, s25, 2'); a('s_add_u32 s37, s37, s12'); a('s_lshl_b32 s37, s37, 3'); a('s_lshr_b32 s29, s24, 3'); a('s_add_u32 s37, s37, s29')
    a('s_lshl_b32 s38, s18, 3'); a('s_add_u32 s38, s38, s12')
    a(f'v_and_b32 v{T0}, 31, v{LN}'); a(f'v_lshlrev_b32 v{T0}, 10, v{T0}')
    a(f'v_lshrrev_b32 v{T1}, 5, v{LN}'); a(f'v_lshl_add_u32 v{T0}, v{T1}, 4, v{T0}')
    a('s_lshl_b32 s53, s20, 15'); a('s_lshl_b32 s54, s22, 6'); a('s_add_u32 s53, s53, s54')
    a(f'buffer_load_dwordx4 {v(RES,4)}, v{T0}, s[8:11], s53 offen')
    a(f'buffer_load_dwordx4 {v(RES+4,4)}, v{T0}, s[8:11], s53 offen offset:32')
    a('s_mov_b32 s41, s96'); a(f's_mov_b32 s42, {WCELL}'); a(f's_mov_b32 s69, {NSIDE-1}'); a('s_mov_b32 s97, 2')
    a('s_waitcnt lgkmcnt(0)')
    srd(a, 8, 88, 2*L.MB)

    def st(name):
        if not STAMP: return
        if name not in STAMPS: STAMPS.append(name)
        i = STAMPS.index(name)
        assert i < 31
        a('s_memtime s[98:99]'); a('s_memrealtime s[100:101]'); a('s_waitcnt lgkmcnt(0)')
        a(f'v_writelane_b32 v0, s98, {2*i+2}')
        a(f'v_writelane_b32 v0, s100, {2*i+3}')

    def run_groups(gs):
        for g in gs:
            for t in g: a(t)

    def wtile_dma(qkv):
        ftstride = (16 if qkv else 1) * FT
        pre = [f's_mul_i32 s60, s16, {(1 if qkv else 3) * FT}',
               f's_add_u32 s60, s60, {L.WQKVF if qkv else L.W1F}',
               's_lshl_b32 s64, s12, 12',
               's_add_u32 s61, s60, s64',
               's_min_u32 s65, s12, 2',
               f's_mul_i32 s66, s65, {ftstride}',
               's_add_u32 s66, s66, s60',
               f's_add_u32 s66, s66, {32*1024}',
               f's_mul_i32 s65, s65, {FT}']
        groups = [pre]
        for half in range(2):
            for j in range(3):
                g = [f's_add_u32 m0, s64, {j*FT + half*16384}',
                     f's_add_u32 s62, s61, {j*ftstride + half*16384}']
                g += [f'buffer_load_dwordx4 v{L16}, s[4:7], s62 offen offset:{1024*q} sc1 lds' for q in range(4)]
                groups.append(g)
        groups.append([f's_add_u32 m0, s65, {32*1024}', 's_nop 0', f'buffer_load_dwordx4 v{L16}, s[4:7], s66 offen sc1 lds'])
        return groups

    def wtile_dma3():
        groups = [[f's_mul_i32 s60, s16, {FT}', f's_mul_i32 s61, s12, {16*FT}', 's_add_u32 s60, s60, s61', f's_add_u32 s60, s60, {L.WQKVF}',
                   f's_mul_i32 s64, s12, {FT}']]
        for c in range(9):
            g = [f's_add_u32 m0, s64, {c*4096}', f's_add_u32 s62, s60, {c*4096}']
            g += [f'buffer_load_dwordx4 v{L16}, s[4:7], s62 offen offset:{1024*q} sc1 lds' for q in range(4 if c < 8 else 1)]
            groups.append(g)
        return groups

    def poll_setup(ph, idxs, add=0, prev_layer=False, out=None):
        e = out.append if out is not None else a
        o = (CB[ph] + add)*CST - (LST if prev_layer else 0)
        e(f's_add_u32 s50, s28, {o & 0xffffffff}')
        e(f's_mul_i32 s52, s{idxs[0]}, {CST}')
        e(f'v_mov_b32 v{T0}, s52')
        if len(idxs) > 1:
            e(f's_mul_i32 s52, s{idxs[1]}, {CST}')
            e(f'v_writelane_b32 v{T0}, s52, 1')
    DIR = OPT.get('dir', 'wf')
    def poll_load(n, d=0):
        a(f's_mov_b64 exec, {(1 << n) - 1}')
        a(f'buffer_load_dword v{T1}, v{T0}, s[4:7], s50 offen offset:{0 if d else FOFF} sc1')
        a('s_mov_b64 exec, -1')
    def poll_test(n, go, d=0):
        a(f's_mov_b64 exec, {(1 << n) - 1}')
        a(f'v_cmp_gt_u32 vcc, {d if d else 1}, v{T1}')
        a('s_mov_b64 exec, -1')
        a('s_cmp_eq_u64 vcc, 0')
        a(f's_cbranch_scc1 {go}')
    def poll_spin(n, go, hook=None, d=0):
        lp = a.lab('poll')
        a('s_mov_b32 s51, 0')
        a.label(lp)
        poll_load(n, d)
        a('s_add_u32 s51, s51, 1')
        a('s_waitcnt vmcnt(0)')
        if hook: hook()
        poll_test(n, go, d)
        a(f's_cmp_lt_u32 s51, {SPIN}')
        a(f's_cbranch_scc1 {lp}')
        a.label(go)
    def dd(tag, ph): return TARGET[ph] if tag in DIR else 0
    def poll(ph, idxs, add=0, prev_layer=False, d=0):
        poll_setup(ph, idxs, add, prev_layer)
        poll_spin(len(idxs), a.lab('go'), d=d)
    def sig_addr(ph, idx, add=0, out=None, la=2):
        e = out.append if out is not None else a
        e(f's_mul_i32 s42, s{idx}, {CST}')
        e('s_add_u32 s42, s42, s28')
        e(f's_add_u32 s42, s42, {(CB[ph] + add)*CST}')
        e(f's_mov_b32 s69, {TARGET[ph]-1}')
        e(f's_mov_b32 s97, {la}')
    def sig_atomic():
        a('s_mov_b64 exec, 1')
        a('v_mov_b32 v0, 1')
        a(f'buffer_atomic_add v0, v{L4}, s[4:7], s42 offen sc0 sc1')
        a('s_mov_b64 exec, -1')
    def sig_finish(ph=None):
        sk = a.lab('notlast')
        a('v_readfirstlane_b32 s52, v0')
        a('s_cmp_lg_u32 s52, s69')
        a(f's_cbranch_scc1 {sk}')
        a('s_mov_b64 exec, 1')
        a('v_mov_b32 v0, 1')
        a(f'buffer_store_dword v0, v{L4}, s[4:7], s42 offen offset:{FOFF} sc1')
        a('s_mov_b64 exec, -1')
        a.label(sk)
    def signal(ph, idx, add=0):
        sig_addr(ph, idx, add)
        a('s_waitcnt vmcnt(0)')
        sig_atomic()
        a('s_waitcnt vmcnt(0)')
        sig_finish(ph)

    def gemmA_pre(qkv):
        xi0 = 0 if qkv else 1
        stsz = L.ST[1] - L.ST[0]
        a('s_lshl_b32 s47, s17, 15'); a('s_lshl_b32 s29, s27, 1'); a('s_add_u32 s47, s47, s29'); a(f's_add_u32 s47, s47, {L.X[xi0]}')
        a('s_lshl_b32 s48, s17, 12'); a(f's_mul_i32 s29, s26, {2*stsz}'); a('s_add_u32 s48, s48, s29'); a(f's_add_u32 s48, s48, {L.ST[xi0]}')
        a('s_lshl_b32 s55, s12, 10'); a(f's_add_u32 s55, s55, {SCR + 1024}')
        a(f'v_add_u32 v64, s55, v{L16}')
        a(f'v_add_u32 v65, s55, v{L4}')
        a(f'v_add_u32 v70, {FT}, v{L16}')
        a(f'v_add_u32 v71, {2*FT}, v{L16}')
        if qkv:
            a('s_lshl_b32 s56, s16, 17'); a('s_lshl_b32 s57, s17, 10'); a('s_add_u32 s56, s56, s57'); a('s_add_u32 s56, s56, s27')
            a('s_add_u32 s57, s56, 0x10000')
            a(f's_add_u32 s58, s56, {L.K[0]}'); a(f's_add_u32 s59, s57, {L.K[0]}')
            a(f's_add_u32 s54, s56, {L.V[0]}')
            a('s_lshl_b32 s55, s12, 8'); a(f's_add_u32 s55, s55, {SCR}')
            a(f'v_add_u32 v76, s55, v{L4}')
            a(f'v_lshrrev_b32 v77, 5, v{LN}'); a('v_lshlrev_b32 v77, 4, v77'); a('v_add_u32 v77, s55, v77')
            a(f'v_bfe_u32 v78, v{LN}, 4, 1'); a('v_lshlrev_b32 v78, 16, v78')
            a(f'v_lshrrev_b32 v79, 5, v{LN}'); a('v_lshl_add_u32 v78, v79, 8, v78')
            a(f'v_and_b32 v79, 15, v{LN}'); a('v_lshl_add_u32 v78, v79, 4, v78')
        else:
            actsz = L.ACT[1] - L.ACT[0]
            a('s_mul_i32 s56, s17, 86'); a('s_mul_i32 s57, s16, 6'); a('s_add_u32 s56, s56, s57')
            a('s_lshl_b32 s56, s56, 10'); a(f's_mul_i32 s57, s26, {actsz}'); a('s_add_u32 s56, s56, s57')
            a(f's_add_u32 s56, s56, {L.ACT[0]}'); a('s_add_u32 s57, s56, 4096')
            a('s_cmp_eq_u32 s16, 14')
            a(f's_cselect_b32 s29, {64*L.MB}, 0')
            a('s_add_u32 s58, s56, s29'); a('s_add_u32 s57, s57, s29')

    def gemmA(qkv, first_sync=None):
        tag = 'qkv' if qkv else 'ffn1'
        RS, RQ = 68, 69
        WA = [L16, 70, 71]
        XE = 72
        STV = 16
        WS = [32 + 4*i for i in range(8)]
        ACC = [80 + 16*i for i in range(3)]
        XF = 128
        fa, fb, fc = (1, 2, 0) if qkv else (0, 1, 2)
        nvm = [0]; at = {}
        def xload(i):
            a(f'buffer_load_dwordx4 {v(XF+4*i,4)}, v{L16}, s[4:7], s47 offen offset:{1024*(i%4)} sc1'); nvm[0] += 1
            if i % 4 == 3: a('s_add_u32 s47, s47, 4096')
            at[i] = nvm[0]
        PRE = int(OPT['apre'])
        for i in range(6): xload(i)
        for i in range(4):
            a(f'buffer_load_dwordx4 {v(STV+4*i,4)}, v{L16}, s[4:7], s48 offen offset:{1024*i} sc1'); nvm[0] += 1
        for i in range(6, PRE): xload(i)
        if first_sync: first_sync(nvm[0])
        sv = []
        for stp in (8, 4):
            for i in range(stp): sv.append(f'v_add_f32 v{STV+i}, v{STV+i}, v{STV+i+stp}')
        sv.append(f'ds_write_b128 v64, {v(STV,4)}')
        sv.append(f'ds_read2_b32 {v(STV+4,2)}, v65 offset0:0 offset1:64')
        sv.append(f'ds_read2_b32 {v(STV+6,2)}, v65 offset0:128 offset1:192')
        sv.append('WAITDS')
        sv.append(f'v_add_f32 v{STV+4}, v{STV+4}, v{STV+5}')
        sv.append(f'v_add_f32 v{STV+6}, v{STV+6}, v{STV+7}')
        sv.append(f'v_add_f32 v{STV}, v{STV+4}, v{STV+6}')
        sv.append(f'v_mov_b32 v{STV+1}, v{STV}')
        sv.append(f'v_permlane32_swap_b32 v{STV}, v{STV+1}')
        sv.append(f'v_mul_f32 v{STV}, {f32(-1.0/512)}, v{STV}')
        sv.append(f'v_mul_f32 v{STV+1}, {f32(1.0/512)}, v{STV+1}')
        sv.append(f'v_fma_f32 v{STV+1}, -v{STV}, v{STV}, v{STV+1}')
        sv.append(f'v_max_f32 v{STV+1}, 0, v{STV+1}')
        sv.append(f'v_add_f32 v{STV+1}, {f32(1e-5)}, v{STV+1}')
        sv.append(f'v_rsq_f32 v{RS}, v{STV+1}')
        sv.append(f'v_mul_f32 v{STV+1}, v{STV+1}, v{RS}')
        r = sv.append
        MH, MM, ML, SH, SM, SL, TT = STV+2, STV+3, STV+4, STV+5, STV+6, STV+7, STV+8
        split3(r, STV, MH, MM, ML, TT); split3(r, STV+1, SH, SM, SL, TT)
        pack_hi(r, XE, MH, MM); pack_hi(r, XE+1, ML, SH); pack_hi(r, XE+2, SM, SL)
        sv.append(f'v_lshrrev_b32 v{XE+3}, 16, v{MH}')
        sv.append(f'v_mul_f32 v{RQ}, {f32(L.QSCALE if qkv else 1.4426950408889634)}, v{RS}')
        if not qkv: sv.append(f'v_mul_f32 v66, -2.0, v{RS}')
        if qkv:
            sv.append(f'ds_write_b32 v76, v{RS}')
            for j in range(4): sv.append(f'ds_read_b128 {v(STV+4*j,4)}, v77 offset:{32*j}')
        def epi(f, pk, gs=(0, 1)):
            A = ACC[f]; out = []
            def mul(d, s0, s1b, n, bcast):
                if pk:
                    for r_ in range(0, n, 2):
                        if bcast:
                            base = s1b & ~1; o = s1b & 1
                            out.append(f'v_pk_mul_f32 {v(d+r_,2)}, {v(s0+r_,2)}, {v(base,2)} op_sel:[0,{o}] op_sel_hi:[1,{o}]')
                        else:
                            out.append(f'v_pk_mul_f32 {v(d+r_,2)}, {v(s0+r_,2)}, {v(s1b+r_,2)}')
                else:
                    for r_ in range(n): out.append(f'v_mul_f32 v{d+r_}, v{s1b if bcast else s1b+r_}, v{s0+r_}')
            for g in gs:
                B = A + 8*g
                if qkv:
                    if f < 2: mul(B, B, RQ if f == 0 else RS, 8, True)
                    else: mul(B, B, STV + 8*g, 8, False)
                else:
                    U = STV
                    mul(U, B, RQ, 8, True)
                    for r_ in range(8): out.append(f'v_exp_f32 v{U+r_}, v{U+r_}')
                    if pk:
                        for r_ in range(0, 8, 2): out.append(f'v_pk_add_f32 {v(U+8+r_,2)}, {v(U+r_,2)}, 2.0 op_sel_hi:[1,0]')
                        for r_ in range(0, 8, 2): out.append(f'v_pk_fma_f32 {v(U+r_,2)}, {v(U+r_,2)}, {v(U+8+r_,2)}, 2.0 op_sel_hi:[1,1,0]')
                    else:
                        for r_ in range(8): out.append(f'v_add_f32 v{U+8+r_}, 2.0, v{U+r_}')
                        for r_ in range(8): out.append(f'v_fma_f32 v{U+r_}, v{U+r_}, v{U+8+r_}, 2.0')
                    for r_ in range(8): out.append(f'v_rcp_f32 v{U+r_}, v{U+r_}')
                    if pk:
                        for r_ in range(0, 8, 2): out.append(f'v_pk_fma_f32 {v(U+r_,2)}, {v(U+r_,2)}, {v(66,2)}, {v(RS,2)} op_sel_hi:[1,0,0]')
                    else:
                        for r_ in range(8): out.append(f'v_fma_f32 v{U+r_}, v{U+r_}, v66, v{RS}')
                    mul(B, B, U, 8, False)
                for r_ in range(4): out.append(f'v_cvt_pk_bf16_f32 v{B+r_}, v{B+2*r_}, v{B+2*r_+1}')
                if qkv:
                    if f < 2: out.append(f'buffer_store_dwordx4 {v(B,4)}, v{L16}, s[4:7], s{56+2*f+g} offen sc1')
                    else: out.append(f'buffer_store_dwordx4 {v(B,4)}, v78, s[4:7], s54 offen offset:{512*g} sc1')
                else:
                    k = 2*f + g
                    sreg = 56 if k < 2 else (58 if k < 4 else 57)
                    out.append(f'buffer_store_dwordx4 {v(B,4)}, v{L16}, s[4:7], s{sreg} offen offset:{1024*(k%4)} sc1')
            return out
        def cost(t):
            return 8 if t.startswith(TRANS) else (16 if t.startswith('buffer') else 4)
        NB = int(OPT['nb'])
        order = []; nb = 0
        for s_ in range(33):
            order.append((fa, s_))
            while nb < NB and nb + 1 <= (s_ + 1) * NB / 33.0:
                order.append((fb, nb)); nb += 1
        order += [(fb, k) for k in range(nb, 33)] + [(fc, k) for k in range(33)]
        last = {f: max(i for i, o in enumerate(order) if o[0] == f) for f in range(3)}
        nds = [0]; dsat = {}
        def rd(i):
            f, k = order[i]
            a(f'ds_read_b128 {v(WS[i%8],4)}, v{WA[f]} offset:{k*1024}'); nds[0] += 1; dsat[i] = nds[0]
        AH = 6
        for i in range(AH): rd(i)
        nx = PRE; xw = -1
        q = list(sv); ready = {}; units = []
        N = len(order)
        for i, (f, k) in enumerate(order):
            w = f'lgkmcnt({min(15, nds[0] - dsat[i])})'
            if k < 32 and k > xw:
                w = f'vmcnt({nvm[0] - at[k]}) ' + w; xw = k
            if k == 32: assert not any(t in q for t in sv), 'stats not finished'
            if i > last[fa] + 1 and (i - last[fa]) % 2 == 0: pass
            elif i > last[fa] and i + 1 < N: a(f's_waitcnt lgkmcnt({min(15, nds[0] - dsat[i+1])})')
            else: a(f's_waitcnt {w}')
            xf = v(XF + 4*k, 4) if k < 32 else v(XE, 4)
            wf = v(WS[i % 8], 4)
            cc = '0' if k == 0 else v(ACC[f], 16)
            if qkv and f == 2: a(f'{MFMA} {v(ACC[f],16)}, {xf}, {wf}, {cc}')
            else: a(f'{MFMA} {v(ACC[f],16)}, {wf}, {xf}, {cc}')
            if i + AH < N: rd(i + AH)
            budget = 16
            if f == fa and nx < 32:
                xload(nx); nx += 1; budget = 8
            CAP = int(OPT.get('cap', 24))
            for ff in (fa, fb):
                if i == last[ff] + 3: units.extend([(ff, 0), (ff, 1)])
            if not q and units and (CAP == 0 or sum(map(cost, epi(units[0][0], False, (0,)))) <= 1.5*CAP*(N - i)):
                u_ = units.pop(0); q += epi(u_[0], False, (u_[1],))
            if xw >= 6:
                if i > last[fa]:
                    if CAP: budget = CAP
                    else:
                        rem = sum(map(cost, q)) + (len(units) + (2 if i < last[fb] + 3 else 0)) * sum(map(cost, epi(fb, False, (0,))))
                        budget = max(16, -(-rem // max(1, N - i)))
                while q and budget >= min(cost(q[0]), 8):
                    if q[0] == 'WAITDS':
                        if 'mark' not in ready: ready['mark'] = nds[0]
                        if dsat[i] < ready['mark']: break
                        q.pop(0); continue
                    t = q.pop(0); budget -= cost(t); a(t)
                    if t.startswith('buffer'): nvm[0] += 1
                    if t.startswith('ds_'): nds[0] += 1
        for t in q: a(t)
        st(tag + ' loop')
        for u_ in units:
            for t in epi(u_[0], True, (u_[1],)): a(t)
        for t in epi(fc, True): a(t)

    WOA = 0; W2A = 64
    NW2PRE = 18
    def wB_loads(wo, steps):
        KS = 32 if wo else W2KS
        base = WOA if wo else W2A
        first = steps[0]
        pre = []
        for i, ft in enumerate((22, 23)):
            pre.append(f's_mul_i32 s{67+i}, s{ft}, {KS}')
            if wo:
                pre.append('s_lshl_b32 s29, s12, 3'); pre.append(f's_add_u32 s{67+i}, s{67+i}, s29')
            else:
                pre.append(f's_add_u32 s{67+i}, s{67+i}, s33')
            pre.append(f's_lshl_b32 s{67+i}, s{67+i}, 10')
            pre.append(f's_add_u32 s{67+i}, s{67+i}, {(L.WOF if wo else L.W2F) + first*1024}')
        groups = [pre]
        for n0 in range(0, len(steps), 4):
            for i in range(2):
                g = [f'buffer_load_dwordx4 {areg(base + 8*stp + 4*i)}, v{L16}, s[4:7], s{67+i} offen offset:{1024*q} sc1' for q, stp in enumerate(steps[n0:n0+4])]
                g.append(f's_add_u32 s{67+i}, s{67+i}, 4096')
                groups.append(g)
        return groups

    BACC = [[16 + 16*(2*i+j) for j in range(2)] for i in range(2)]
    BAD = 240
    def gemmB_pre(wo):
        KS = 32 if wo else 86
        actsz = L.ACT[1] - L.ACT[0]
        a(f's_mul_i32 s56, s21, {KS}')
        if wo:
            a('s_lshl_b32 s29, s12, 3'); a('s_add_u32 s56, s56, s29')
        else:
            a('s_add_u32 s56, s56, s33')
        a('s_lshl_b32 s56, s56, 10')
        if wo:
            a('s_add_u32 s56, s56, s27'); a(f's_add_u32 s56, s56, {L.O[0]}')
        else:
            a(f's_mul_i32 s29, s26, {actsz}'); a('s_add_u32 s56, s56, s29'); a(f's_add_u32 s56, s56, {L.ACT[0]}')
        a(f's_add_u32 s57, s56, {KS*1024}')
        xo = 1 if wo else 2
        stsz = L.ST[1] - L.ST[0]
        a('s_lshl_b32 s58, s27, 1'); a('s_add_u32 s58, s58, s32'); a(f's_add_u32 s58, s58, {L.X[xo]}')
        a('s_lshl_b32 s59, s20, 12'); a('s_lshl_b32 s54, s22, 8'); a('s_add_u32 s59, s59, s54')
        a(f's_mul_i32 s54, s26, {2*stsz}'); a('s_add_u32 s59, s59, s54'); a(f's_add_u32 s59, s59, {L.ST[xo]}')
        for i in range(2):
            for j in range(2):
                a('s_and_b32 s54, s12, 1')
                if j: a('s_xor_b32 s54, s54, 1')
                a(f's_add_u32 s54, s54, {2*i}')
                a('s_xor_b32 s55, s54, s12')
                a('s_mul_i32 s54, s54, 3'); a('s_add_u32 s54, s54, s55'); a('s_lshl_b32 s54, s54, 12')
                a(f's_add_u32 s54, s54, {RED - 4096}')
                a(f'v_add_u32 v{BAD+2*i+j}, s54, v{L16}')
        a(f's_mul_i32 s55, s12, {3*4096}'); a(f's_add_u32 s55, s55, {RED}')
        a(f'v_add_u32 v{BAD+4}, s55, v{L16}')
        if not wo:
            a(f'v_and_b32 v{BAD+5}, 31, v{LN}'); a(f'v_lshlrev_b32 v{BAD+5}, 10, v{BAD+5}')
            a(f'v_lshrrev_b32 v{BAD+6}, 5, v{LN}'); a(f'v_lshl_add_u32 v{BAD+5}, v{BAD+6}, 4, v{BAD+5}')
            a('s_lshl_b32 s53, s20, 15'); a('s_lshl_b32 s54, s22, 6'); a('s_add_u32 s53, s53, s54')

    def sig_try(state, wait=None):
        e = a.lab('sge')
        a(f's_cmp_lg_u32 s41, {state}')
        a(f's_cbranch_scc1 {e}')
        if wait is not None: a(f's_waitcnt vmcnt({wait})')
        if state == 1:
            sig_atomic(); a('s_mov_b32 s41, s97')
        else:
            sig_finish(); a('s_mov_b32 s41, 0')
        a.label(e)
    def sig_slot(wait):
        d = a.lab('sgd'); e = a.lab('sge')
        a('s_cmp_lg_u32 s41, 1')
        a(f's_cbranch_scc1 {d}')
        a(f's_waitcnt vmcnt({wait})')
        sig_atomic(); a('s_mov_b32 s41, s97')
        a(f's_branch {e}')
        a.label(d)
        a('s_mov_b64 exec, 2')
        a(f'buffer_load_dword v0, v{L4}, s[4:7], 0 offen')
        a('s_mov_b64 exec, -1')
        a.label(e)
    def sig_step():
        sig_try(2); sig_try(1)
    def sig_block():
        sig_try(1, 0); sig_try(2, 0)

    def gemmB(wo, tail=()):
        tag = 'wo' if wo else 'ffn2'
        nst = 8 if wo else 22
        wbase = WOA if wo else W2A
        FB = 80
        NSL = 24
        RB = 176
        WIN = min(int(OPT['bwin']), nst)
        LAG = 3
        st(tag + 'A go')
        class St: pass
        z = St(); z.nvm = 0; z.at = {}; z.issued = 0; z.tail = list(tail)
        def xr(n): return FB + 4*(n % NSL)
        def load(z):
            n = z.issued; i, k = divmod(n, nst)
            a(f'buffer_load_dwordx4 {v(xr(n),4)}, v{L16}, s[4:7], s{56+i} offen offset:{1024*(k%4)} sc1'); z.nvm += 1
            if k % 4 == 3: a(f's_add_u32 s{56+i}, s{56+i}, 4096')
            z.at[n] = z.nvm; z.issued += 1
        def mm(i, j, k):
            cc = '0' if k == 0 else v(BACC[i][j],16)
            a(f'{MFMA} {v(BACC[i][j],16)}, {areg(wbase+8*k+4*j)}, {v(xr(i*nst+k),4)}, {cc}')
        def zero0(n):
            if wo: return
            sk = a.lab('ffn2_s0')
            a('s_cmp_lt_u32 s12, 2')
            a(f's_cbranch_scc1 {sk}')
            for r_ in range(4): a(f'v_mov_b32 v{xr(n)+r_}, 0')
            a.label(sk)
        def wr(i, j): return [f'ds_write_b128 v{BAD+2*i+j}, {v(BACC[i][j]+4*q,4)} offset:{q*1024}' for q in range(4)]
        def epilogue(i, pk):
            A0 = BACC[i][0]; o = []
            for k in range(3):
                for q in range(4): o.append(f'ds_read_b128 {v(RB+16*k+4*q,4)}, v{BAD+4} offset:{k*4096 + q*1024}')
            U = RB + 48
            for r_ in range(8):
                o.append(f'v_lshlrev_b32 v{U+2*r_}, 16, v{RES+r_}')
                o.append(f'v_and_b32 v{U+2*r_+1}, 0xffff0000, v{RES+r_}')
            def addv(src):
                if pk:
                    for r_ in range(0, 16, 2): o.append(f'v_pk_add_f32 {v(A0+r_,2)}, {v(A0+r_,2)}, {v(src+r_,2)}')
                else:
                    for r_ in range(16): o.append(f'v_add_f32 v{A0+r_}, v{A0+r_}, v{src+r_}')
            addv(U)
            for k in range(3):
                o.append(f's_waitcnt lgkmcnt({8-4*k})')
                addv(RB + 16*k)
            for r_ in range(8): o.append(f'v_cvt_pk_bf16_f32 v{RES+r_}, v{A0+2*r_}, v{A0+2*r_+1}')
            o.append('STORE')
            if pk:
                o.append(f'v_pk_add_f32 {v(RB,2)}, {v(A0,2)}, {v(A0+2,2)}')
                o.append(f'v_pk_mul_f32 {v(RB+2,2)}, {v(A0,2)}, {v(A0,2)}')
                o.append(f'v_pk_fma_f32 {v(RB+2,2)}, {v(A0+2,2)}, {v(A0+2,2)}, {v(RB+2,2)}')
                for r_ in range(4, 16, 2):
                    o.append(f'v_pk_add_f32 {v(RB,2)}, {v(RB,2)}, {v(A0+r_,2)}')
                    o.append(f'v_pk_fma_f32 {v(RB+2,2)}, {v(A0+r_,2)}, {v(A0+r_,2)}, {v(RB+2,2)}')
                o.append(f'v_add_f32 v{T2}, v{RB}, v{RB+1}')
                o.append(f'v_add_f32 v{T3}, v{RB+2}, v{RB+3}')
            else:
                o.append(f'v_add_f32 v{T2}, v{A0}, v{A0+1}')
                o.append(f'v_mul_f32 v{T3}, v{A0}, v{A0}')
                o.append(f'v_fmac_f32 v{T3}, v{A0+1}, v{A0+1}')
                for r_ in range(2, 16):
                    o.append(f'v_add_f32 v{T2}, v{T2}, v{A0+r_}')
                    o.append(f'v_fmac_f32 v{T3}, v{A0+r_}, v{A0+r_}')
            o.append(f'v_permlane32_swap_b32 v{T2}, v{T3}')
            o.append(f'v_add_f32 v{T2}, v{T2}, v{T3}')
            o.append(f'buffer_store_dword v{T2}, v{L4}, s[4:7], s59 offen sc1')
            o.append('OWED')
            return o
        def emit(t, z):
            if t == 'STORE':
                if not wo:
                    nf = a.lab('notfinal'); dn = a.lab('stored')
                    a('s_cmp_eq_u32 s26, 0')
                    a(f's_cbranch_scc1 {nf}')
                    for g in range(2):
                        a(f'v_permlane32_swap_b32 v{RES+4*g}, v{RES+4*g+2}')
                        a(f'v_permlane32_swap_b32 v{RES+4*g+1}, v{RES+4*g+3}')
                        a(f'buffer_store_dwordx4 {v(RES+4*g,4)}, v{BAD+5}, s[8:11], s53 offen offset:{32*g}')
                    a(f's_branch {dn}')
                    a.label(nf)
                a(f'buffer_store_dwordx4 {v(RES,4)}, v{L16}, s[4:7], s58 offen sc1')
                a(f'buffer_store_dwordx4 {v(RES+4,4)}, v{L16}, s[4:7], s58 offen offset:1024 sc1')
                if not wo: a.label(dn)
                z.nvm += 2
            elif t == 'OWED':
                sig_addr(2 if wo else 4, 20)
                a('s_mov_b32 s41, 1')
                z.owed = z.nvm
            else:
                a(t)
                if t.startswith('buffer'): z.nvm += 1
        def part(i, z, kat=None):
            for k in range(nst):
                n = i*nst + k
                a(f's_waitcnt vmcnt({z.nvm - z.at[n]})')
                if k == 0:
                    if i == 1 and wo: sig_step(); z.mark = z.nvm
                    zero0(n)
                mm(i, 1, k)
                if i == 0 and k == (4 if not (SLOT and (wo or SLOT == 2)) else nst - 1): sig_try(2, z.nvm - z.mark)
                W2 = int(OPT.get('bwin2', 22))
                if not wo and i == 1 and W2 >= nst and k == nst - 1: sig_try(1, 0)
                if not wo and i == 1 and W2 < nst and k == W2: sig_try(1)
                if not wo and i == 1 and W2 < nst and k == nst - 1: sig_try(2, 0)
                if z.issued < (i + 1)*nst: load(z)
                elif z.tail and (wo or k >= 10):
                    for t in z.tail.pop(0): emit(t, z)
                if k < nst - LAG: mm(i, 0, k)
            assert not z.tail, len(z.tail)
            for k in range(nst - LAG, nst): mm(i, 0, k)
        def writes(i, wt):
            sk = a.lab('b_self')
            for t in wr(i, 1): a(t)
            a('s_lshr_b32 s54, s12, 1')
            a(f's_cmp_eq_u32 s54, {i}')
            a(f's_cbranch_scc1 {sk}')
            for t in wr(i, 0): a(t)
            a.label(sk)
            a(wt)
        def owner_epi(i):
            sk = a.lab('b_notown')
            a('s_lshr_b32 s54, s12, 1')
            a(f's_cmp_lg_u32 s54, {i}')
            a(f's_cbranch_scc1 {sk}')
            y = St(); y.nvm = 0
            for t in epilogue(i, True): emit(t, y)
            if not wo:
                a('s_cmp_eq_u32 s26, 1'); a('s_cselect_b32 s41, 0, s41')
            a.label(sk)
        import copy
        SLOT = int(OPT.get('slot', 1))
        if SLOT and (wo or SLOT == 2):
            for _ in range(nst): load(z)
            sig_slot(nst); z.nvm += 1; z.mark = z.nvm
        else:
            for _ in range(4): load(z)
            sig_try(2, 4); sig_try(1, 4); z.mark = z.nvm
            for _ in range(WIN - 4): load(z)
        if wo:
            z.tail = []
            part(0, z)
            poll_setup(1, [38], add=4)
            writes(0, 's_waitcnt lgkmcnt(0)')
            a('s_barrier')
            owner_epi(0)
            st(tag + 'A end')
            poll_spin(1, a.lab('go'), hook=sig_step, d=dd('w', 1))
            st(tag + 'B go')
            for _ in range(WIN): load(z)
            z.tail = list(tail)
            part(1, z)
            sig_try(2, z.nvm - z.mark)
        else:
            nod = a.lab('f2_nodma'); jn = a.lab('f2_join')
            a('s_lshl_b32 s54, s26, 2'); a('s_add_u32 s54, s54, s12')
            a('s_cmp_ge_u32 s54, 3')
            a(f's_cbranch_scc1 {nod}')
            y = copy.deepcopy(z)
            part(0, y)
            a(f's_branch {jn}')
            a.label(nod)
            z.tail = []
            part(0, z)
            a.label(jn)
            writes(0, 's_waitcnt lgkmcnt(0)')
            a('s_cmp_lg_u32 s12, 3')
            a('s_cbranch_scc1 f2_nopoll')
            poll(3, [21], add=1, d=dd('f', 3))
            a.label('f2_nopoll')
            st(tag + 'A end')
            a('s_barrier')
            st(tag + 'B go')
            for _ in range(int(OPT.get('bwin2', 22))): load(z)
            owner_epi(0)
            part(1, z)
        poll_setup(2 if wo else 4, [17])
        poll_load(1)
        writes(1, 's_waitcnt lgkmcnt(0)')
        a('s_barrier')
        owner_epi(1)
        st(tag + 'B end')
        sig_block()
        st(tag + ' sig')

    SB = [16, 32]; PB = [48, 52]; OA = [56, 72]; QF = [88, 92]; VR = 96
    TMP = 240
    def kreg(kt): return v(224 + 4*kt, 4) if kt < 4 else areg(208 + 4*(kt-4))
    def vreg(kt, g): return v(VR + 8*kt + 4*g, 4)
    VOFF, PADDR = T2, T3
    PA4 = TMP + 12
    def qaddr(p_, sreg=53):
        return [f's_add_u32 s{sreg}, s12, {1 + p_}', f's_and_b32 s{sreg}, s{sreg}, 3', f's_lshl_b32 s{sreg}, s{sreg}, 11', f's_add_u32 s{sreg}, s{sreg}, s{48 + (p_ >> 2)}']
    def attn_pre():
        a(f'v_and_b32 v{T0}, 27, v{LN}')
        a(f'v_cmp_eq_u32 vcc, 16, v{T0}')
        a(f'v_mov_b32 v{T1}, {ONES}')
        a(f'v_cndmask_b32 v{VR}, 0, v{T1}, vcc')
        a(f'v_cndmask_b32 v{VR+1}, 0, v{T1}, vcc')
        for r_ in range(2, 128, 2): a(f'v_pk_mov_b32 {v(VR+r_,2)}, {v(VR,2)}, {v(VR,2)}')
        a(f'v_and_b32 v{T1}, 15, v{LN}'); a(f'v_lshlrev_b32 v{T1}, 4, v{T1}')
        a(f'v_lshrrev_b32 v{VOFF}, 5, v{LN}'); a(f'v_lshl_add_u32 v{VOFF}, v{VOFF}, 8, v{T1}')
        a('s_lshl_b32 s44, s24, 16'); a('s_add_u32 s44, s44, s27')
        a('s_lshl_b32 s45, s12, 14'); a('s_add_u32 s45, s45, s44')
        a(f's_add_u32 s46, s45, {L.K[0]}'); a(f's_add_u32 s47, s45, {L.V[0]}')
        a('s_lshl_b32 s48, s25, 13'); a('s_add_u32 s48, s48, s44'); a('s_add_u32 s49, s48, 1024')
        for t in qaddr(0, 53) + qaddr(1, 54): a(t)
        a('s_lshl_b32 s39, s25, 2'); a('s_add_u32 s39, s39, s12'); a('s_lshl_b32 s39, s39, 16')
        a('s_lshl_b32 s55, s24, 10'); a('s_add_u32 s39, s39, s55')
        a('s_add_u32 s39, s39, s27'); a(f's_add_u32 s39, s39, {L.O[0]}')
        a(f's_mov_b32 s56, {f32(2.0**-90)}'); a(f's_mov_b32 s57, {f32(2.0**120)}')
        a('s_mov_b32 s40, 0')

    def check_ops(Oa, U):
        return [f'v_add_f32 v{U}, abs(v{Oa}), abs(v{Oa+1})', f'v_add_f32 v{U+1}, abs(v{Oa+2}), abs(v{Oa+3})',
                f'v_add_f32 v{U+2}, abs(v{Oa+4}), abs(v{Oa+5})', f'v_add_f32 v{U+3}, abs(v{Oa+6}), abs(v{Oa+7})',
                f'v_add_f32 v{U}, v{U}, v{U+1}', f'v_add_f32 v{U+2}, v{U+2}, v{U+3}', f'v_add_f32 v{U}, v{U}, v{U+2}',
                f'v_cmp_gt_f32 s[70:71], s57, v{U}', f'v_cmp_gt_f32 s[72:73], s57, v{Oa+8}', f'v_cmp_lt_f32 s[74:75], s56, v{Oa+8}',
                's_and_b64 s[70:71], s[70:71], s[72:73]', 's_and_b64 s[70:71], s[70:71], s[74:75]', 's_cmp_eq_u64 s[70:71], -1']

    def attn(extra_groups):
        nvm = [0]
        atk, atv, atq = {}, {}, {}
        def qload(p_, sreg=53):
            a(f'buffer_load_dwordx4 {v(QF[p_%2],4)}, v{L16}, s[4:7], s{sreg} offen sc1'); nvm[0] += 1
            atq[p_] = nvm[0]
        def kvbase(kt, sreg):
            pass
        def kload(kts):
            for kt in kts:
                a(f'buffer_load_dwordx4 {kreg(kt)}, v{L16}, s[4:7], s{76 + kt//4} offen offset:{1024*(kt%4)} sc1'); nvm[0] += 1
                atk[kt] = nvm[0]
        def vload(kts):
            a('s_mov_b64 exec, s[30:31]')
            for kt in kts:
                for g in range(2):
                    a(f'buffer_load_dwordx4 {vreg(kt,g)}, v{VOFF}, s[4:7], s{80 + kt//4} offen offset:{1024*(kt%4)+512*g} sc1'); nvm[0] += 1
                atv[kt] = nvm[0]
            a('s_mov_b64 exec, -1')
        EV = list(range(0, 16, 2)); OD = list(range(1, 16, 2))
        steps = [(0, k) for k in EV] + [(1, k) for k in EV] + [(0, k) for k in OD] + [(1, k) for k in OD]
        steps += [(p_, k) for p_ in range(2, 8) for k in range(16)]
        N = len(steps)
        firstof = {}; lastof = {}
        for n, (p_, k) in enumerate(steps):
            firstof.setdefault(p_, n); lastof[p_] = n
        qload(0)
        kload([0, 2]); vload([0])
        sig_try(1, nvm[0]); mark0 = nvm[0]
        kload([4]); vload([2]); kload([6]); vload([4])
        waited = [0]
        def need_vm(at):
            if at > waited[0]:
                a(f's_waitcnt vmcnt({nvm[0] - at})'); waited[0] = at
        need_vm(atk[0])
        a(f'{MFMA} {v(SB[0],16)}, {kreg(0)}, {v(QF[0],4)}, 0')
        kload([8]); vload([6])
        extra = list(extra_groups)
        sal = []
        def hide():
            if sal: a(sal.pop(0))
        ev_sal, ev_a, ev_b = {}, {}, {}
        def add(d, n, f): d.setdefault(n, []).append(f)
        for p_ in range(2, 8):
            n0 = lastof[p_ - 2] + 1
            add(ev_sal, n0 - 2, qaddr(p_))
            add(ev_a, n0, lambda p_=p_: qload(p_))
        def pwrite(pp):
            Op = OA[pp % 2]
            a(f'v_add_u32 v{PADDR}, s53, v{L16}')
            a(f'v_add_u32 v{PA4}, s53, v{L4}')
            a(f'ds_write_b128 v{PADDR}, {v(Op,4)}')
            a(f'ds_write_b128 v{PADDR}, {v(Op+4,4)} offset:1024')
            a(f'ds_write_b32 v{PA4}, v{Op+8} offset:2048')
        for pp in (0, 1, 2, 4, 5, 6):
            n0 = lastof[pp] + 2
            slot = 2 - pp % 4
            add(ev_sal, n0, [f's_add_u32 s53, s12, {1 + pp}', 's_and_b32 s53, s53, 3', f's_mul_i32 s53, s53, {6*2304}',
                             f's_add_u32 s53, s53, {PART + (3*(pp >> 2) + slot)*2304}'])
            add(ev_b, n0 + 2, lambda pp=pp: pwrite(pp))
        pb = []
        poll_setup(0, [35, 36], add=1, out=pb)
        def b_issue():
            for t in pb: a(t)
            poll_load(2); nvm[0] += 1; atq['flag'] = nvm[0]
        def b_check():
            go = a.lab('bgo')
            need_vm(atq['flag'])
            poll_test(2, go)
            poll_spin(2, go)
            kload([1, 3]); vload([1])
        add(ev_a, 0, lambda: (kload([10]), vload([8])))
        add(ev_a, 1, lambda: (kload([12]), vload([10])))
        add(ev_a, 2, lambda: (sig_try(2, nvm[0] - mark0), kload([14]), vload([12])))
        add(ev_a, 3, lambda: (qload(1, 54), vload([14])))
        add(ev_a, 6, b_issue)
        add(ev_a, 11, b_check)
        for j_ in range(7):
            add(ev_a, 12 + j_, lambda j_=j_: (kload([5 + 2*j_] if j_ < 6 else []), vload([3 + 2*j_])))
        def own_addr(b):
            a('s_waitcnt lgkmcnt(0)' if b == 0 else 's_waitcnt vmcnt(0) lgkmcnt(0)')
            a('s_barrier')
            a(f's_mul_i32 s53, s12, {6*2304}'); a(f's_add_u32 s53, s53, {PART + 3*b*2304}')
            a(f'v_add_u32 v{PADDR}, s53, v{L16}')
            a(f'v_add_u32 v{PA4}, s53, v{L4}')
        def pread(b_, sl):
            a(f'ds_read_b128 {v(b_,4)}, v{PADDR} offset:{sl*2304}')
            a(f'ds_read_b128 {v(b_+4,4)}, v{PADDR} offset:{sl*2304+1024}')
            a(f'ds_read_b32 v{b_+8}, v{PA4} offset:{sl*2304+2048}')
        n4 = firstof[4]
        Oa = OA[1]
        def padd():
            a('s_waitcnt lgkmcnt(0)')
            for r_ in range(9): a(f'v_add_f32 v{Oa+r_}, v{Oa+r_}, v{TMP+r_}')
        add(ev_b, n4 + 2, lambda: (own_addr(0), pread(TMP, 0)))
        add(ev_b, n4 + 3, lambda: (padd(), pread(TMP, 1)))
        add(ev_b, n4 + 4, lambda: (padd(), pread(TMP, 2)))
        def finA():
            padd()
            for t in check_ops(Oa, TMP): a(t)
            sk = a.lab('a_later')
            a(f's_cbranch_scc0 {sk}')
            a(f'v_rcp_f32 v{TMP}, v{Oa+8}')
            for r_ in range(8): a(f'v_mul_f32 v{Oa+r_}, v{TMP}, v{Oa+r_}')
            for r_ in range(4): a(f'v_cvt_pk_bf16_f32 v{TMP+4+r_}, v{Oa+2*r_}, v{Oa+2*r_+1}')
            a(f'buffer_store_dwordx4 {v(TMP+4,4)}, v{L16}, s[4:7], s39 offen sc1')
            a('s_mov_b32 s40, 1'); a('s_mov_b32 s41, 1')
            a.label(sk)
        add(ev_b, n4 + 5, finA)
        sa = []; sig_addr(1, 37, out=sa)
        add(ev_sal, n4 + 6, sa)
        def sstep():
            a('s_waitcnt vmcnt(0)'); waited[0] = nvm[0]
            sig_step()
        add(ev_b, n4 + 9, sstep)
        add(ev_b, n4 + 15, sstep)
        n7 = firstof[7]
        add(ev_b, n7 + 8, lambda: own_addr(1))
        for sl in range(3):
            add(ev_b, n7 + 9 + sl, lambda sl=sl: pread(VR + 12*sl, sl))
        def wr_issue():
            a(f's_mov_b32 s50, {WCELL}'); a(f'v_mov_b32 v{T0}, 0')
            poll_load(1); nvm[0] += 1; atq['wflag'] = nvm[0]
        def wr_check():
            go = a.lab('wgo')
            need_vm(atq['wflag'])
            poll_test(1, go)
            poll_spin(1, go)
        add(ev_a, 20, wr_issue)
        add(ev_a, 26, wr_check)
        def w_issue():
            poll_setup(1, [38]); poll_load(1); nvm[0] += 1
        add(ev_a, n7 + 10, w_issue)
        GS = int(OPT['gs'])
        if GS < 4:
            ex2 = []
            for g in extra:
                cur = []; nm = 0
                for t in g:
                    if t.startswith('buffer'):
                        if nm == GS: ex2.append(cur); cur = []; nm = 0
                        nm += 1
                    cur.append(t)
                ex2.append(cur)
            extra = ex2
        slots = [n for n in range(28 if GS < 4 else 34, N - 12, 1 if GS < 4 else 2) if n not in ev_a and n not in ev_b and not (n4 - 4 <= n <= n4 + 15)]
        assert len(slots) >= len(extra), (len(slots), len(extra))
        gslot = dict(zip(slots, extra))
        for n, (p_, kt) in enumerate(steps):
            S = SB[n % 2]; O = OA[p_ % 2]
            e = [f'v_exp_f32 v{S+r}, v{S+r}' for r in range(16)]
            c = [f'v_cvt_pk_bf16_f32 v{PB[r//4]+r%4}, v{S+2*r}, v{S+2*r+1}' for r in range(8)]
            if OPT.get('fine') == 'att' and n in (0, 8, 16, 32, 48, 64, 80, 96, 112): st(f'att n{n}')
            for l_ in ev_sal.get(n, []):
                assert not sal, n
                sal += l_
            if n + 1 < N:
                p2, kt2 = steps[n + 1]
                if n < 32: need_vm(atk[kt2])
                if n + 1 == firstof[p2]: need_vm(atq[p2])
                a(f'{MFMA} {v(SB[(n+1)%2],16)}, {kreg(kt2)}, {v(QF[p2%2],4)}, 0')
                hide()
            for f in ev_a.get(n, []):
                assert not sal, n
                f()
            a(e[0]); a(e[1]); a(e[2]); a(e[3]); a(c[0]); a(c[1]); a(e[4])
            if n > 0:
                pp, pk = steps[n - 1]
                a(f'{MFMA} {v(OA[pp%2],16)}, {vreg(pk,1)}, {v(PB[1],4)}, {v(OA[pp%2],16)}')
                hide()
            if n in gslot:
                for t in gslot[n]:
                    a(t)
                    if t.startswith('buffer'): nvm[0] += 1
            a(e[5]); a(e[6]); a(e[7]); a(c[2]); a(c[3]); a(e[8]); a(e[9]); a(e[10])
            if n < 32: need_vm(atv[kt])
            a(f'{MFMA} {v(O,16)}, {vreg(kt,0)}, {v(PB[0],4)}, {"0" if n == firstof[p_] else v(O,16)}')
            hide()
            a(e[11]); a(c[4]); a(c[5]); a(e[12]); a(e[13])
            for f in ev_b.get(n, []):
                assert not sal, n
                f()
            a(e[14]); a(e[15]); a(c[6]); a(c[7])
        a(f'{MFMA} {v(OA[1],16)}, {vreg(15,1)}, {v(PB[1],4)}, {v(OA[1],16)}')
        st('att loop')
        U = SB[0]
        Oa = OA[1]
        a('s_waitcnt lgkmcnt(0)')
        a(f's_add_u32 s55, s39, {32*1024}')
        a('s_mov_b32 s43, 1')
        sig_addr(1, 37, add=4, la=0 if 'w' in DIR else 2)
        for sl in range(3):
            b = VR + 12*sl
            for r_ in range(0, 8, 2): a(f'v_pk_add_f32 {v(Oa+r_,2)}, {v(Oa+r_,2)}, {v(b+r_,2)}')
            a(f'v_add_f32 v{Oa+8}, v{Oa+8}, v{b+8}')
        for t in check_ops(Oa, U): a(t)
        a('s_cbranch_scc1 attn_fin')
        a.label('attn_slow')
        S = SB[0]; M = SB[1]; AL = M + 1; TA = M + 2; TB = M + 3
        KT = 224; V0 = 228; V1 = 232
        a('s_lshl_b32 s53, s12, 11'); a('s_lshl_b32 s54, s43, 10'); a('s_add_u32 s53, s53, s54'); a('s_add_u32 s53, s53, s48')
        a(f'buffer_load_dwordx4 {v(QF[0],4)}, v{L16}, s[4:7], s53 offen sc1')
        a(f'v_and_b32 v{TA}, 27, v{LN}')
        a(f'v_cmp_eq_u32 vcc, 16, v{TA}')
        a(f'v_mov_b32 v{TB}, {ONES}')
        a(f'v_cndmask_b32 v{TA}, 0, v{TB}, vcc')
        for r_ in range(8): a(f'v_mov_b32 v{V0+r_}, v{TA}')
        a(f'v_mov_b32 v{M}, {f32(-3.0e38)}')
        for r_ in range(16): a(f'v_mov_b32 v{Oa+r_}, 0')
        a(f's_add_u32 s46, s44, {L.K[0]}'); a(f's_add_u32 s47, s44, {L.V[0]}')
        a('s_mov_b32 s54, 64')
        a.label('attn_slow_loop')
        a(f'buffer_load_dwordx4 {v(KT,4)}, v{L16}, s[4:7], s46 offen sc1')
        a('s_mov_b64 exec, s[30:31]')
        a(f'buffer_load_dwordx4 {v(V0,4)}, v{VOFF}, s[4:7], s47 offen sc1')
        a(f'buffer_load_dwordx4 {v(V1,4)}, v{VOFF}, s[4:7], s47 offen offset:512 sc1')
        a('s_mov_b64 exec, -1')
        a('s_add_u32 s46, s46, 1024'); a('s_add_u32 s47, s47, 1024')
        a('s_waitcnt vmcnt(0)')
        a(f'{MFMA} {v(S,16)}, {v(KT,4)}, {v(QF[0],4)}, 0')
        a(f'v_max3_f32 v{TA}, v{S}, v{S+1}, v{M}')
        for r_ in range(2, 16, 2): a(f'v_max3_f32 v{TA}, v{S+r_}, v{S+r_+1}, v{TA}')
        a(f'v_mov_b32 v{TB}, v{TA}')
        a(f'v_permlane32_swap_b32 v{TA}, v{TB}')
        a(f'v_max_f32 v{TA}, v{TA}, v{TB}')
        a(f'v_sub_f32 v{AL}, v{M}, v{TA}')
        a(f'v_exp_f32 v{AL}, v{AL}')
        a(f'v_mov_b32 v{M}, v{TA}')
        for r_ in range(16):
            a(f'v_sub_f32 v{S+r_}, v{S+r_}, v{M}')
            a(f'v_exp_f32 v{S+r_}, v{S+r_}')
        for r_ in range(16): a(f'v_mul_f32 v{Oa+r_}, v{AL}, v{Oa+r_}')
        for r_ in range(8): a(f'v_cvt_pk_bf16_f32 v{PB[r_//4]+r_%4}, v{S+2*r_}, v{S+2*r_+1}')
        a(f'{MFMA} {v(Oa,16)}, {v(V0,4)}, {v(PB[0],4)}, {v(Oa,16)}')
        a(f'{MFMA} {v(Oa,16)}, {v(V1,4)}, {v(PB[1],4)}, {v(Oa,16)}')
        a('s_sub_u32 s54, s54, 1')
        a('s_cmp_lg_u32 s54, 0')
        a('s_nop 7')
        a('s_cbranch_scc1 attn_slow_loop')
        a('s_nop 7')
        a.label('attn_fin')
        a(f'v_rcp_f32 v{U}, v{Oa+8}')
        for r_ in range(0, 8, 2): a(f'v_pk_mul_f32 {v(Oa+r_,2)}, {v(Oa+r_,2)}, {v(U,2)} op_sel:[0,0] op_sel_hi:[1,0]')
        for r_ in range(4): a(f'v_cvt_pk_bf16_f32 v{TMP+8+r_}, v{Oa+2*r_}, v{Oa+2*r_+1}')
        a(f'buffer_store_dwordx4 {v(TMP+8,4)}, v{L16}, s[4:7], s55 offen sc1')
        a('s_mov_b32 s41, 1')
        a('s_cmp_eq_u32 s40, 1')
        a('s_cbranch_scc1 attn_done')
        sig_block()
        a('s_cmp_eq_u32 s43, 0')
        a('s_cbranch_scc1 attn_done')
        a('s_mov_b32 s43, 0'); a('s_mov_b32 s55, s39')
        sig_addr(1, 37)
        a('s_branch attn_slow')
        a.label('attn_done')

    def touch_wqkv():
        per = L.FT_QKV * FT // 32
        g = [f's_mul_i32 s60, s14, {per}', f's_mul_i32 s61, s12, {per//4}', 's_add_u32 s60, s60, s61', f's_add_u32 s60, s60, {L.WQKVF}',
             f'v_lshlrev_b32 v{T0}, 7, v{LN}', 's_add_u32 s61, s60, 4480',
             f'buffer_load_dword v{T1}, v{T0}, s[4:7], s60 offen sc1', f'buffer_load_dword v{T1}, v{T0}, s[4:7], s61 offen sc1']
        return [g]

    def dump():
        if not STAMP: return
        a('s_lshl_b32 s90, s2, 2'); a('s_add_u32 s90, s90, s12'); a('s_lshl_b32 s90, s90, 1'); a('s_add_u32 s90, s90, s26')
        a('s_lshl_b32 s90, s90, 8'); a(f's_add_u32 s90, s90, {L.FLAGS + 7*L.MB}')
        a(f'buffer_store_dword v0, v{L4}, s[4:7], s90 offen')
        a('s_waitcnt vmcnt(0)')
        if os.environ.get('DBG'):
            sk = a.lab('dbg')
            a('s_lshl_b32 s90, s2, 2'); a('s_add_u32 s90, s90, s12'); a('s_cmp_lg_u32 s90, 2'); a(f's_cbranch_scc1 {sk}')
            a('s_load_dwordx2 s[92:93], s[0:1], 64'); a('s_waitcnt lgkmcnt(0)')
            srd(a, 92, 92, 256)
            a(f'v_readlane_b32 s91, v0, {2*STAMPS.index("p0 prek")+3}')
            names = ['p0 sig', 'att go', 'att loop', 'woB end', 'ffn1 sig', 'end']
            for j, nm in enumerate(names):
                a(f'v_readlane_b32 s90, v0, {2*STAMPS.index(nm)+3}')
                a('s_sub_u32 s90, s90, s91')
                a(f'v_mov_b32 v{T2}, s90')
                a('s_mul_i32 s90, s26, 24'); a(f's_add_u32 s90, s90, {8 + 4*j}')
                a('s_mov_b64 exec, 1')
                a(f'buffer_store_dword v{T2}, v{L4}, s[92:95], s90 offen')
                a('s_mov_b64 exec, -1')
            a('s_waitcnt vmcnt(0)')
            a.label(sk)

    a('s_branch main_attpre')
    a.label('main_layer')
    st('start')
    gemmA_pre(True)
    a('s_waitcnt vmcnt(0)')
    poll_test(1, 'main_q_go')
    poll_spin(1, 'main_q_go', d=dd('q', 4))
    a.label('main_qkv')
    st('qkv go')
    def first_sync(n):
        sk = a.lab('nosync')
        a('s_cmp_eq_u32 s26, 1')
        a(f's_cbranch_scc1 {sk}')
        a(f's_waitcnt vmcnt({n})')
        a('s_barrier')
        a.label(sk)
    gemmA(True, None if K1 else first_sync)
    sig_addr(0, 34)
    a('s_mov_b32 s41, 1')
    a.label('main_attpre')
    attn_pre()
    for i in range(4):
        a(f's_add_u32 s{76+i}, s46, {4096*i}'); a(f's_add_u32 s{80+i}, s47, {4096*i}')
    st('qkv sig')
    a('s_cmp_eq_u32 s26, 1')
    a('s_cbranch_scc1 main_nores')
    a('s_waitcnt vmcnt(0)')
    for g in range(2):
        a(f'v_permlane32_swap_b32 v{RES+4*g}, v{RES+4*g+2}')
        a(f'v_permlane32_swap_b32 v{RES+4*g+1}, v{RES+4*g+3}')
    a.label('main_nores')
    a('s_cmp_ge_u32 s12, 2')
    a('s_cbranch_scc1 main_att_bar')
    sig_block()
    a('s_lshr_b32 s52, s24, 1'); a(f's_mul_i32 s52, s52, {8*CST}'); a('s_add_u32 s50, s28, s52')
    a(f'v_mul_u32_u24 v{T0}, {2*CST}, v{LN}')
    poll_spin(4, a.lab('go'), d=dd('a', 0))
    a.label('main_att_bar')
    a('s_barrier')
    a.label('main_att_go')
    st('att go')
    extra = wtile_dma(False) + wB_loads(True, list(range(8))) + wB_loads(False, list(range(NW2PRE))) + touch_wqkv()
    attn(extra)
    st('att sig')
    gemmB_pre(True)
    a('s_waitcnt vmcnt(1)')
    poll_test(1, 'main_wo_go')
    poll_spin(1, 'main_wo_go', hook=sig_step)
    a('s_barrier')
    gemmB(True, tail=wB_loads(False, list(range(NW2PRE, 22))))
    a('s_cmp_eq_u32 s16, 15')
    a('s_cbranch_scc1 main_skip_ffn1')
    gemmA_pre(False)
    a('s_waitcnt vmcnt(0)')
    poll_test(1, 'main_f1_go')
    poll_spin(1, 'main_f1_go', d=dd('g', 2))
    st('ffn1 go')
    gemmA(False)
    sig_addr(3, 17)
    if 'f' in DIR:
        a('s_cmp_ge_u32 s12, 2'); a('s_cselect_b32 s97, 0, 2')
    a('s_mov_b32 s41, 1')
    a.label('main_skip_ffn1')
    gemmB_pre(False)
    st('ffn1 sig')
    a('s_cmp_ge_u32 s12, 2')
    a('s_cbranch_scc1 main_f2_bar')
    sig_block()
    poll(3, [21])
    a.label('main_f2_bar')
    a('s_barrier')
    gemmB(False, tail=wtile_dma3())
    if STAMP: a('s_waitcnt vmcnt(0)'); st('end')
    dump()
    a('s_cmp_eq_u32 s26, 1')
    a('s_cbranch_scc1 main_end')
    a('s_mov_b32 s26, 1'); a(f's_mov_b32 s27, {2*L.MB}'); a(f's_add_u32 s28, s28, {LST}')
    a('s_branch main_layer')
    a.label('main_end')
    a('s_endpgm')
    return 256, 160*1024


if __name__ == '__main__':
    p = Prog()
    cfg = gen_main(p)
    p.launches.append((KNAME, 256, *cfg))
    errs = p.a.check_branches()
    for e in errs: print('HAZARD', e, file=sys.stderr)
    txt = p.text()
    if os.environ.get('SINGLE'):
        txt = txt.replace(f'; @launch kernel={KNAME} ', '; @launch ')
    open(sys.argv[1], 'w').write(txt)
    if STAMP: open(sys.argv[1] + '.names', 'w').write('\n'.join(STAMPS))
    print('pads', p.a.pads, 'instrs', sum(1 for i in p.a.ins if i.states), file=sys.stderr)
```

```python
import sys, os
sys.path.insert(0, 'work')
from gen import *

CNT = L.FLAGS
CST = 512
FOFF = 256
CB = [0, 128, 384, 448, 512]
LST = 576 * CST
def areg(a0, n=4): return f'a[{a0}:{a0+n-1}]'
FT = 33 * 1024
WT = 3 * FT
RED = WT; PART = WT; SCR = WT + 56*1024
OPT = dict(bwin='12', apre='16', nb='16', bwin2='12', gs='3'); OPT.update(x.split('=') for x in os.environ.get('OPT', '').split(',') if x)
TARGET = {0: 8, 1: 8, 2: 16, 3: 15, 4: 16}
SPIN = 0x200000
STAMPS = []
K1 = 1
W2KS = 96
NSIDE = 151
WCELL = CNT + 2*LST
KNAME = 'interleave_layers__mha_block__dense_activation_mish__prompt_kernel'


def phase0(a):
    a('s_load_dwordx4 s[8:11], s[0:1], 0')
    a('s_load_dwordx4 s[20:23], s[0:1], 64')
    a('s_getpc_b64 s[60:61]')
    a.label('p0_pc')
    a('s_and_b32 s62, s2, 8'); a('s_lshl_b32 s62, s62, 12')
    a('s_sub_u32 s63, main_end-p0_pc, s62')
    a('s_add_u32 s60, s60, s62'); a('s_addc_u32 s61, s61, 0')
    a('v_lshlrev_b32 v182, 7, v0')
    a('v_min_u32 v182, s63, v182')
    a('v_mov_b32 v183, s61')
    a('v_add_co_u32 v182, vcc, s60, v182')
    a('v_addc_co_u32 v183, vcc, 0, v183, vcc')
    a('global_load_dword v184, v[182:183], off')
    a('s_load_dwordx2 s[84:85], s[0:1], 16')
    a('s_load_dwordx4 s[88:91], s[0:1], 32')
    a('s_load_dwordx2 s[86:87], s[0:1], 48')
    LN, L16, L4, T0, T1, T2, T3 = 1, 2, 3, 4, 5, 6, 7
    a(f'v_and_b32 v{LN}, 63, v0')
    a(f'v_lshrrev_b32 v{T0}, 6, v0')
    a(f'v_readfirstlane_b32 s12, v{T0}')
    a('s_and_b32 s13, s2, 7'); a('s_lshr_b32 s14, s2, 3')
    MAP = int(OPT.get('map', 0))
    if MAP == 0:
        a('s_lshl_b32 s15, s13, 2'); a('s_and_b32 s33, s14, 3'); a('s_add_u32 s15, s15, s33')
        a('s_lshr_b32 s18, s14, 2')
        a('s_add_u32 s48, s18, s13')
    else:
        a('s_lshr_b32 s15, s13, 1'); a('s_lshl_b32 s15, s15, 3'); a('s_and_b32 s33, s14, 7'); a('s_add_u32 s15, s15, s33')
        a('s_lshr_b32 s18, s14, 3')
        if MAP == 1:
            a('s_lshl_b32 s18, s18, 1'); a('s_and_b32 s33, s13, 1'); a('s_add_u32 s18, s18, s33')
        else:
            a('s_and_b32 s33, s13, 1'); a('s_lshl_b32 s33, s33, 2'); a('s_add_u32 s18, s18, s33')
        a('s_lshr_b32 s48, s14, 2'); a('s_add_u32 s48, s48, s13')
    a('s_and_b32 s48, s48, 7')
    WSL = 12288; XB = 8*WSL; XSL = 8192
    DW, DX = 8, 9
    a(f'v_lshrrev_b32 v{T0}, 3, v{LN}')
    a(f'v_and_b32 v{T1}, 7, v{LN}')
    a(f'v_bfe_u32 v{T2}, v{LN}, 4, 1')
    a(f'v_lshlrev_b32 v{T2}, 2, v{T2}')
    a(f'v_xor_b32 v{T2}, v{T1}, v{T2}')
    a(f'v_mul_u32_u24 v{DW}, 3072, v{T0}')
    a(f'v_lshl_add_u32 v{DW}, v{T2}, 4, v{DW}')
    a(f'v_lshrrev_b32 v{T2}, 4, v{LN}')
    a(f'v_xor_b32 v{T2}, v{T1}, v{T2}')
    a(f'v_lshlrev_b32 v{DX}, 10, v{T0}')
    a(f'v_lshl_add_u32 v{DX}, v{T2}, 4, v{DX}')
    a(f'v_xor_b32 v{DX+1}, 64, v{DX}')
    a(f'v_add_u32 v{DX+1}, {8*1024 - 1024}, v{DX+1}')
    a('s_mul_i32 s40, s12, 24576'); a('s_lshl_b32 s33, s18, 7'); a('s_add_u32 s40, s40, s33')
    a('s_lshl_b32 s43, s15, 16'); a('s_lshl_b32 s33, s12, 14'); a('s_add_u32 s43, s43, s33')
    a(f's_mul_i32 s33, s48, {64*3072}'); a('s_add_u32 s40, s40, s33')
    a('s_lshl_b32 s33, s48, 7'); a('s_add_u32 s43, s43, s33')
    a(f's_mov_b32 s49, {64*3072}'); a('s_movk_i32 s51, 128')
    a('s_mov_b32 s76, s18'); a('s_mov_b32 s77, s18')
    a('s_mul_i32 s44, s12, 3072'); a('s_lshl_b32 s45, s12, 11'); a(f's_add_u32 s45, s45, {XB}')
    a('s_sub_u32 s33, s2, 160'); a('s_lshl_b32 s34, s33, 2'); a('s_add_u32 s34, s34, s12'); a(f's_mul_i32 s34, s34, {37*256}')
    a(f's_add_u32 s34, s34, {CNT}')
    a(f'v_min_u32 v{T0}, 36, v{LN}'); a(f'v_lshlrev_b32 v{T0}, 8, v{T0}')
    a(f'v_mov_b32 v{T1}, 0')
    if STAMP:
        a('s_memrealtime s[96:97]')
    a('s_waitcnt lgkmcnt(0)')
    if STAMP:
        STAMPS.append('p0 prek'); i_ = len(STAMPS) - 1
        a(f'v_writelane_b32 v11, s96, {2*i_+2}'); a(f'v_writelane_b32 v11, s96, {2*i_+3}')
    stp0('p0 karg')
    srd(a, 4, 22, L.WS_BYTES)
    srd(a, 28, 10, 512*1536*2)
    srd(a, 8, 8, 2*L.MB)
    a('s_cmp_lt_u32 s33, 16'); a('s_cselect_b32 s35, 1, 0')
    a('s_cbranch_scc0 p0_noclr')
    a(f'buffer_store_dword v{T1}, v{T0}, s[4:7], s34 offen sc1')
    a.label('p0_noclr')
    def dma_pair(sl):
        o = []
        o.append([f's_add_u32 m0, s45, {sl*XSL}', f's_add_u32 s46, s40, {32*3072}', f'buffer_load_dwordx4 v{DX}, s[8:11], s43 offen lds',
                  f'buffer_load_dwordx4 v{DX+1}, s[8:11], s43 offen offset:1024 lds'])
        o.append([f's_add_u32 m0, s44, {2*sl*WSL}', 's_add_u32 s48, s48, 1'] +
                 [f'buffer_load_dwordx4 v{DW}, s[28:31], s40 offen offset:{1024*u} lds' for u in range(3)])
        o.append(['s_cmp_eq_u32 s48, 8', f's_cselect_b32 s50, {(128 - 1024) & 0xffffffff}, s51', f's_cselect_b32 s52, {((64 - 512)*3072) & 0xffffffff}, s49'])
        o.append([f's_add_u32 m0, s44, {(2*sl + 1)*WSL}', 's_add_u32 s43, s43, s50'] +
                 [f'buffer_load_dwordx4 v{DW}, s[28:31], s46 offen offset:{1024*u} lds' for u in range(3)] + ['s_add_u32 s40, s40, s52'])
        return o
    def run(gs):
        for g in gs:
            for t in g: a(t)
    TCH = int(OPT.get('tch', 1))
    if TCH == 1:
        a('s_lshl_b32 s33, s2, 2'); a('s_add_u32 s33, s33, s12'); a('s_mul_i32 s33, s33, 1536')
        a(f'v_lshlrev_b32 v185, 7, v{LN}')
        a('s_mov_b64 exec, 0xfff')
        a('buffer_load_dword v187, v185, s[28:31], s33 offen')
        a('s_mov_b64 exec, -1')
    def touch_all():
        a('s_lshl_b32 s33, s14, 2'); a('s_add_u32 s33, s33, s12')
        a('s_lshl_b32 s34, s33, 11'); a('s_lshl_b32 s53, s13, 18'); a('s_add_u32 s34, s34, s53')
        a('s_mul_i32 s33, s33, 12288'); a('s_add_u32 s53, s33, 8192')
        a(f'v_lshlrev_b32 v185, 7, v{LN}')
        a('buffer_load_dword v187, v185, s[28:31], s33 offen')
        a('s_mov_b64 exec, 0xffffffff')
        a('buffer_load_dword v186, v185, s[28:31], s53 offen')
        a('s_mov_b64 exec, 0xffff')
        a('buffer_load_dword v188, v185, s[8:11], s34 offen')
        a('s_mov_b64 exec, -1')
    if TCH == 2: touch_all()
    run(dma_pair(0))
    if TCH == 3: touch_all()
    stp0('p0 dma0')
    srd(a, 20, 20, 256)
    if int(OPT.get('tlb', 0)):
        a(f'v_lshlrev_b32 v185, 21, v{LN}'); a(f'v_min_u32 v185, {CNT}, v185')
        a('buffer_load_dword v186, v185, s[4:7], 0 offen')
        a(f'buffer_load_dword v187, v{T1}, s[20:23], 0 offen offset:192')
    run(dma_pair(1))
    a(f'v_lshlrev_b32 v{L16}, 4, v{LN}')
    a(f'v_lshlrev_b32 v{L4}, 2, v{LN}')
    a('s_lshr_b32 s19, s12, 1'); a('s_and_b32 s24, s12, 1'); a('s_xor_b32 s25, s19, s24')
    RW = 66
    a(f'v_lshrrev_b32 v{T0}, 5, v{LN}'); a(f'v_mul_u32_u24 v{T0}, 3072, v{T0}')
    a(f'v_bfe_u32 v{T1}, v{LN}, 2, 2'); a(f'v_lshl_add_u32 v{RW}, v{T1}, 7, v{T0}')
    a(f'v_bfe_u32 v{T1}, v{LN}, 3, 1'); a(f'v_xor_b32 v{T1}, s24, v{T1}'); a(f'v_lshl_add_u32 v{RW}, v{T1}, 6, v{RW}')
    a(f'v_bfe_u32 v{T1}, v{LN}, 4, 1'); a(f'v_lshl_add_u32 v{RW}, v{T1}, 5, v{RW}')
    a(f'v_and_b32 v{T1}, 3, v{LN}'); a(f'v_lshl_add_u32 v{RW}, v{T1}, 3, v{RW}')
    a('s_mul_i32 s33, s25, 6144'); a('s_sub_u32 s34, 6144, s33')
    a(f'v_add_u32 v{RW+1}, s34, v{RW}'); a(f'v_add_u32 v{RW}, s33, v{RW}')
    a(f'v_add_u32 v70, {4*WSL}, v{RW}'); a(f'v_add_u32 v71, {4*WSL}, v{RW+1}')
    RX = 12
    a(f'v_and_b32 v{T0}, 31, v{LN}'); a(f'v_lshlrev_b32 v{T1}, 7, v{T0}')
    a(f'v_bfe_u32 v{T2}, v{LN}, 1, 3'); a(f'v_lshrrev_b32 v{T3}, 5, v{LN}'); a(f'v_xor_b32 v{T2}, v{T2}, v{T3}')
    a(f'v_lshl_add_u32 v{T1}, v{T2}, 4, v{T1}')
    a('s_lshl_b32 s33, s25, 5'); a(f'v_xor_b32 v{T1}, s33, v{T1}')
    a('s_lshl_b32 s33, s19, 12'); a(f's_add_u32 s33, s33, {XB}')
    a(f'v_add_u32 v{RX}, s33, v{T1}')
    for q in range(1, 4): a(f'v_xor_b32 v{RX+q}, {32*q}, v{RX}')
    STV = 16; RS, RQ = 68, 69; XE = 72; WE = 128
    FRG = [192, 128]
    ACC = [80 + 16*i for i in range(3)]
    S1, S2, CS, ONE, AV = 32, 33, 34, 37, 38
    for r_ in range(S1, CS + 3): a(f'v_mov_b32 v{r_}, 0')
    a(f'v_mov_b32 v{ONE}, {ONES}')
    SUMS = 48; OA_ = 44
    M16 = 'v_mfma_f32_16x16x32_bf16'
    a(f'v_and_b32 v{T0}, 31, v{LN}')
    a(f'v_cmp_eq_u32 vcc, 0, v{T0}'); a(f'v_cmp_eq_u32 s[60:61], 17, v{T0}'); a('s_or_b64 vcc, vcc, s[60:61]')
    for r_ in range(4): a(f'v_cndmask_b32 v{OA_+r_}, 0, v{ONE}, vcc')

    SD, SR = 40, 41
    EARLY = int(OPT.get('early', 1))
    def side_params():
        a('s_and_b32 s26, s2, 0xf0'); a('s_lshl_b32 s33, s13, 1'); a('s_add_u32 s26, s26, s33'); a('s_and_b32 s33, s14, 1'); a('s_add_u32 s26, s26, s33')
        a('s_mov_b32 s95, 0x00020000')
        a('s_lshl_b32 s71, s12, 13'); a(f's_add_u32 s71, s71, {XB + 4*XSL}')
        a(f'v_lshrrev_b32 v{T0}, 5, v{LN}'); a(f'v_lshlrev_b32 v{T0}, 2, v{T0}')
        a(f'v_bfe_u32 v{T2}, v{LN}, 2, 2'); a(f'v_add_u32 v{T0}, v{T0}, v{T2}')
        a(f'v_bfe_u32 v{T2}, v{LN}, 4, 1'); a(f'v_lshlrev_b32 v{T2}, 5, v{T2}')
        a(f'v_and_b32 v{T1}, 3, v{LN}'); a(f'v_lshl_add_u32 v{T2}, v{T1}, 3, v{T2}')
        a('s_cmp_ge_u32 s26, 44'); a('s_cbranch_scc1 p0_rows')
        a('s_mov_b32 s92, s88'); a('s_mov_b32 s93, s89'); a(f's_mov_b32 s94, {512*1376*2}'); a('s_mov_b32 s65, 2')
        a('s_mov_b32 s68, s26')
        a(f's_mul_i32 s70, s68, {FT}'); a(f's_add_u32 s70, s70, {L.W1F}')
        a('s_lshl_b32 s66, s12, 13'); a('s_add_u32 s66, s66, s70'); a('s_movk_i32 s72, 1024')
        a(f's_mov_b32 s73, {16*2752}'); a(f's_mul_i32 s67, s12, {128*2752}'); a('s_lshl_b32 s33, s68, 6'); a('s_add_u32 s67, s67, s33')
        a(f'v_lshrrev_b32 v{SD}, 2, v{LN}'); a(f'v_mul_u32_u24 v{SD}, 2752, v{SD}'); a(f'v_lshl_add_u32 v{SD}, v{T1}, 4, v{SD}')
        a(f'v_lshl_add_u32 v{SR}, v{T0}, 6, v{T2}'); a(f'v_add_u32 v{SR}, s71, v{SR}')
        a('s_branch p0_prm')
        a.label('p0_rows')
        a('s_mov_b32 s65, 0'); a('s_mov_b32 s69, 0')
        a('s_mov_b32 s92, s28'); a('s_mov_b32 s93, s29'); a(f's_mov_b32 s94, {512*1536*2}')
        a('s_sub_u32 s68, s26, 44'); a('s_lshr_b32 s69, s68, 4'); a('s_and_b32 s68, s68, 15')
        a('s_movk_i32 s73, 3072'); a(f's_mov_b32 s72, {L.KSX*1024}'); a(f's_mov_b32 s70, {L.WQKVF}')
        a('s_cmp_lt_u32 s26, 92'); a('s_cbranch_scc1 p0_rows2')
        a('s_mov_b32 s92, s84'); a('s_mov_b32 s93, s85'); a(f's_mov_b32 s94, {512*512*2}'); a('s_mov_b32 s69, 0')
        a('s_movk_i32 s73, 1024'); a(f's_mov_b32 s72, {32*1024}'); a(f's_mov_b32 s70, {L.WOF}')
        a('s_cmp_lt_u32 s26, 108'); a('s_cbranch_scc1 p0_rows2')
        a('s_mov_b32 s92, s86'); a('s_mov_b32 s93, s87'); a(f's_mov_b32 s94, {1376*512*2}')
        a('s_sub_u32 s68, s26, 108'); a(f's_mov_b32 s72, {W2KS*1024}'); a(f's_mov_b32 s70, {L.W2F}')
        a(f's_cmp_ge_u32 s26, {NSIDE}'); a('s_cselect_b32 s94, 0, s94')
        a.label('p0_rows2')
        a('s_lshl_b32 s33, s68, 2'); a('s_add_u32 s33, s33, s12'); a('s_lshl_b32 s33, s33, 3'); a('s_mul_i32 s67, s33, s73')
        a('s_lshl_b32 s33, s69, 10'); a('s_add_u32 s67, s67, s33')
        a('s_lshl_b32 s33, s69, 1'); a('s_add_u32 s33, s33, s24'); a('s_lshl_b32 s33, s33, 3'); a('s_mul_i32 s66, s33, s72')
        a('s_lshl_b32 s33, s68, 1'); a('s_add_u32 s33, s33, s19'); a('s_lshl_b32 s33, s33, 10'); a('s_add_u32 s66, s66, s33'); a('s_add_u32 s66, s66, s70')
        a(f'v_mov_b32 v{SD}, v{L16}')
        a('s_lshl_b32 s33, s19, 14'); a('s_lshl_b32 s34, s24, 9'); a('s_add_u32 s33, s33, s34'); a(f's_add_u32 s33, s33, {XB + 4*XSL}')
        a(f'v_lshl_add_u32 v{SR}, v{T0}, 10, v{T2}'); a(f'v_add_u32 v{SR}, s33, v{SR}')
        a.label('p0_prm')
        a('s_and_b32 s93, s93, 0xffff')
    def side_dma():
        return [[f's_add_u32 m0, s71, {i*1024}', 's_nop 0', f'buffer_load_dwordx4 v{SD}, s[92:95], s67 offen lds', 's_add_u32 s67, s67, s73'] for i in range(8)]
    def reads(sl):
        F = FRG[sl % 2]; o = []
        for j in range(4):
            h, s_ = divmod(j, 2)
            o.append(f'ds_read_b128 {v(F+16*j,4)}, v{RX + j} offset:{sl*XSL}')
            ad = (RW if sl < 2 else 70) + s_
            for u in range(3):
                r = F + 16*j + 4 + 4*u; off = (2*(sl % 2) + h)*WSL + u*1024
                o.append(f'ds_read_b64_tr_b16 {v(r,2)}, v{ad} offset:{off}')
                o.append(f'ds_read_b64_tr_b16 {v(r+2,2)}, v{ad} offset:{off+512}')
        return o
    def mf(f, xf, wf, first):
        cc = '0' if first else v(ACC[f], 16)
        if f == 2: a(f'{MFMA} {v(ACC[f],16)}, {xf}, {wf}, {cc}')
        else: a(f'{MFMA} {v(ACC[f],16)}, {wf}, {xf}, {cc}')
    side_params()
    if int(OPT.get('stch', 0)):
        a(f'v_lshrrev_b32 v185, 3, v{LN}'); a('v_mul_lo_u32 v185, v185, s73'); a(f'v_and_b32 v186, 7, v{LN}'); a('v_lshl_add_u32 v185, v186, 7, v185')
        a(f'v_mul_u32_u24 v186, 2752, v{LN}')
        a('s_cmp_eq_u32 s65, 0'); a('s_cselect_b64 vcc, -1, 0'); a(f's_cselect_b32 s33, 0, {64*2752}'); a('s_add_u32 s33, s33, s67')
        a('v_cndmask_b32 v185, v186, v185, vcc')
        a('buffer_load_dword v188, v185, s[92:95], s67 offen')
        a('buffer_load_dword v189, v185, s[92:95], s33 offen')
    run(dma_pair(2))
    stp0('p0 setup')
    a(f's_waitcnt vmcnt({16 + 2*int(OPT.get("stch", 0))})')
    a('s_barrier')
    stp0('p0 first')
    for t in reads(0): a(t)
    def singles(gs):
        out = []; cur = []
        for g in gs:
            for t in g:
                cur.append(t)
                if t.startswith('buffer'): out.append(cur); cur = []
        out[-1] += cur
        return out
    SPOS = int(OPT.get('spos', 5))
    seq = [('P', j) for j in range(3, 8)]
    seq.insert(SPOS, ('S', 0))
    issued = [('P', 0), ('P', 1), ('P', 2)]
    for it in range(8):
        sl = it % 4
        if it + 1 < 8:
            k = issued.index(('P', it + 1))
            a(f's_waitcnt vmcnt({8*(len(issued) - 1 - k)}) lgkmcnt(0)')
            a('s_barrier')
            q = reads((it + 1) % 4)
        else:
            a('s_waitcnt lgkmcnt(0)')
            q = []
        dp = []
        if seq:
            w = seq.pop(0); issued.append(w)
            assert w[0] == 'S' or w[1] - 4 <= it
            dp = singles(dma_pair(w[1] % 4) if w[0] == 'P' else side_dma())
        F = FRG[sl % 2]
        for n in range(12):
            j, f = divmod(n, 3)
            mf(f, v(F+16*j, 4), v(F+16*j+4+4*f, 4), it == 0 and j == 0)
            for _ in range(3 if n < 4 else 2):
                if q: a(q.pop(0))
            if dp and n not in (0, 3, 6, 9):
                for t in dp.pop(0): a(t)
            z_ = lambda r: '0' if (it == 0 and j < 2) else v(r, 4)
            if j % 2 == 1: a(f'{M16} {v(SUMS+4*f,4)}, {v(OA_,4)}, {v(F+16*j+4+4*f,4)}, {z_(SUMS+4*f)}')
            elif f == 1: a(f'{M16} {v(SUMS+12,4)}, {v(OA_,4)}, {v(F+16*j,4)}, {z_(SUMS+12)}')
            if n == 0 and it in (0, 3):
                a('s_cmp_eq_u32 s35, 0'); a(f's_cbranch_scc0 p0_clr{it}')
                a.label(f'p0_back{it}')
        assert not q and not dp
        for r_ in range(4):
            a(f'v_dot2_f32_bf16 v{S1}, v{F+r_}, v{F+r_}, v{S1}')
            a(f'v_dot2_f32_bf16 v{S2}, v{F+32+r_}, v{F+32+r_}, v{S2}')
        if it == 3: stp0('p0 trip0')
    a('s_branch p0_after')
    a.label('p0_clr0')
    a('s_cmp_lg_u32 s12, 0'); a('s_cbranch_scc1 p0_back0')
    a('s_mov_b64 exec, 1'); a(f'v_mov_b32 v{AV}, 1')
    a(f'buffer_atomic_add v{AV}, v{L4}, s[20:23], 0 offen sc0 sc1')
    a('s_mov_b64 exec, -1')
    a('s_branch p0_back0')
    a.label('p0_clr3')
    a('s_cmp_lg_u32 s12, 0'); a('s_cbranch_scc1 p0_back3')
    a(f'v_readfirstlane_b32 s33, v{AV}')
    a('s_cmp_lg_u32 s33, 15'); a('s_cbranch_scc1 p0_back3')
    a('s_mov_b64 exec, 1'); a(f'v_mov_b32 v{AV}, 1')
    a(f'buffer_store_dword v{AV}, v{L4}, s[20:23], 0 offen offset:128 sc1')
    a('s_mov_b64 exec, -1')
    a('s_branch p0_back3')
    a.label('p0_after')
    a(f's_mov_b32 s10, {2*L.MB}')
    a('s_lshl_b32 s17, s15, 1'); a('s_add_u32 s17, s17, s19')
    a('s_lshl_b32 s16, s18, 1'); a('s_add_u32 s16, s16, s24')
    a('s_lshl_b32 s76, s76, 1'); a('s_add_u32 s76, s76, s24'); a('s_lshl_b32 s77, s77, 1'); a('s_add_u32 s77, s77, s24')
    a('s_lshl_b32 s33, s17, 10')
    a('s_lshl_b32 s56, s16, 17'); a('s_add_u32 s56, s56, s33'); a('s_add_u32 s57, s56, 0x10000')
    a('s_lshl_b32 s58, s76, 17'); a('s_add_u32 s58, s58, s33'); a(f's_add_u32 s58, s58, {L.K[0]}'); a('s_add_u32 s59, s58, 0x10000')
    a('s_lshl_b32 s54, s77, 17'); a('s_add_u32 s54, s54, s33'); a(f's_add_u32 s54, s54, {L.V[0]}')
    SC0 = 8192
    stp0('p0 loop')
    a(f'v_add_f32 v{S1}, v{S1}, v{S2}')
    a(f'v_add_u32 v{T0}, s44, v{L4}')
    a(f'ds_write_b32 v{T0}, v{S1} offset:512')
    a('s_mov_b64 exec, 0xffff')
    for u in range(4): a(f'ds_write2_b32 v{T0}, v{SUMS+4*u}, v{SUMS+4*u+1} offset0:{32*u} offset1:{32*u+16}')
    a('s_mov_b64 exec, -1')
    a(f'v_and_b32 v{T3}, 124, v{L4}')
    a(f'v_add_u32 v{T0}, s44, v{T3}')
    a('s_xor_b32 s33, s12, 1'); a('s_mul_i32 s33, s33, 3072'); a(f'v_add_u32 v{T1}, s33, v{T3}')
    a('s_xor_b32 s33, s12, 2'); a('s_mul_i32 s33, s33, 3072'); a(f'v_add_u32 v{T2}, s33, v{T3}')
    a(f'v_bfe_u32 v78, v{LN}, 4, 1'); a('v_lshlrev_b32 v78, 16, v78')
    a(f'v_lshrrev_b32 v79, 5, v{LN}'); a('v_lshl_add_u32 v78, v79, 8, v78')
    a(f'v_and_b32 v79, 15, v{LN}'); a('v_lshl_add_u32 v78, v79, 4, v78')
    a('s_waitcnt lgkmcnt(0)')
    a('s_barrier')
    a(f'ds_read_b32 v{STV}, v{T0} offset:384'); a(f'ds_read_b32 v{STV+2}, v{T1} offset:384')
    a(f'ds_read2_b32 {v(STV+4,2)}, v{T0} offset0:128 offset1:160'); a(f'ds_read2_b32 {v(STV+6,2)}, v{T1} offset0:128 offset1:160')
    for u in range(3):
        a(f'ds_read_b32 v{CS+u}, v{T0} offset:{128*u}')
        a(f'ds_read_b32 v{48+u}, v{T2} offset:{128*u}')
    a('s_waitcnt lgkmcnt(6)')
    a(f'v_add_f32 v{STV}, v{STV}, v{STV+2}')
    a(f'v_add_f32 v{STV+4}, v{STV+4}, v{STV+5}'); a(f'v_add_f32 v{STV+6}, v{STV+6}, v{STV+7}'); a(f'v_add_f32 v{STV+1}, v{STV+4}, v{STV+6}')
    a(f'v_mul_f32 v{STV}, {f32(-1.0/512)}, v{STV}')
    a(f'v_mul_f32 v{STV+1}, {f32(1.0/512)}, v{STV+1}')
    a(f'v_fma_f32 v{STV+1}, -v{STV}, v{STV}, v{STV+1}')
    a(f'v_max_f32 v{STV+1}, 0, v{STV+1}')
    a(f'v_add_f32 v{STV+1}, {f32(1e-5)}, v{STV+1}')
    a(f'v_rsq_f32 v{RS}, v{STV+1}')
    MH, MM, ML, TT = STV+2, STV+3, STV+4, STV+8
    split3(a, STV, MH, MM, ML, TT)
    a('s_add_u32 s33, s44, 1024')
    a(f'v_add_u32 v76, s33, v{L4}')
    a(f'ds_write_b32 v76, v{RS}')
    a(f'v_lshrrev_b32 v77, 5, v{LN}'); a('v_lshlrev_b32 v77, 4, v77'); a('v_add_u32 v77, s33, v77')
    pack_hi(a, XE, MH, MM)
    a(f'v_lshrrev_b32 v{XE+1}, 16, v{ML}'); a(f'v_mov_b32 v{XE+2}, 0'); a(f'v_lshrrev_b32 v{XE+3}, 16, v{MH}')
    a(f'v_mul_f32 v{RQ}, {f32(L.QSCALE)}, v{RS}')
    for j in range(4): a(f'ds_read_b128 {v(STV+4*j,4)}, v77 offset:{32*j}')
    a(f'v_cmp_gt_u32 vcc, 32, v{LN}')
    a('s_waitcnt lgkmcnt(5)')
    for u in (1, 2, 0):
        c_ = CS + u; W_ = WE + 4*u; HI, MID, LO, TQ = 44, 45, 46, 47
        a(f'v_add_f32 v{c_}, v{c_}, v{48+u}')
        split3(a, c_, HI, MID, LO, TQ)
        a(f'v_lshrrev_b32 v{W_+1}, 16, v{HI}'); a(f'v_or_b32 v{W_}, v{W_+1}, v{HI}')
        a(f'v_lshrrev_b32 v{W_+3}, 16, v{MID}')
        pack_hi(a, TQ, LO, MID)
        a(f'v_cndmask_b32 v{W_}, v{TQ}, v{W_}, vcc')
        a(f'v_cndmask_b32 v{W_+1}, 0, v{W_+1}, vcc')
        a(f'v_mov_b32 v{W_+2}, 0')
        a(f'v_cndmask_b32 v{W_+3}, 0, v{W_+3}, vcc')
        mf(u, v(XE, 4), v(W_, 4), False)
    a('s_cmp_lg_u32 s17, 0'); a('s_cbranch_scc1 p0_nowe')
    for u in range(3):
        a(f's_mul_i32 s33, s{(16, 76, 77)[u]}, {FT}'); a(f's_add_u32 s33, s33, {L.WQKVF + 32*1024 + 16*u*FT}')
        a(f'buffer_store_dwordx4 {v(WE+4*u,4)}, v{L16}, s[4:7], s33 offen sc1')
    a.label('p0_nowe')
    a('s_mov_b64 exec, 1')
    a(f'buffer_load_dword v{AV+1}, v{L4}, s[20:23], 0 offen offset:128 sc1')
    a('s_mov_b64 exec, -1')
    a('s_waitcnt lgkmcnt(0)')
    for f in (1, 2, 0):
        A = ACC[f]
        for g in range(2):
            B = A + 8*g
            for r_ in range(0, 8, 2):
                if f < 2:
                    o = 1 if f == 0 else 0
                    a(f'v_pk_mul_f32 {v(B+r_,2)}, {v(B+r_,2)}, {v(RS,2)} op_sel:[0,{o}] op_sel_hi:[1,{o}]')
                else:
                    a(f'v_pk_mul_f32 {v(B+r_,2)}, {v(B+r_,2)}, {v(STV+8*g+r_,2)}')
            for r_ in range(4): a(f'v_cvt_pk_bf16_f32 v{B+r_}, v{B+2*r_}, v{B+2*r_+1}')
            if f < 2: a(f'buffer_store_dwordx4 {v(B,4)}, v{L16}, s[4:7], s{56+2*f+g} offen sc1')
            else: a(f'buffer_store_dwordx4 {v(B,4)}, v78, s[4:7], s54 offen offset:{512*g} sc1')
    a('s_lshr_b32 s42, s17, 4'); a('s_lshl_b32 s42, s42, 1')
    a('s_and_b32 s33, s17, 1'); a('s_add_u32 s42, s42, s33'); a(f's_mul_i32 s42, s42, {CST}'); a(f's_add_u32 s42, s42, {CNT}')
    CA = 42
    a(f's_mul_i32 s33, s16, {8*CST}'); a(f'v_mov_b32 v{CA}, s33')
    FR = 224
    a('s_waitcnt vmcnt(6)')
    a('s_mov_b32 s34, 0')
    a.label('p0_clr_poll')
    a(f'v_readfirstlane_b32 s33, v{AV+1}')
    a('s_cmp_eq_u32 s33, 1'); a('s_cbranch_scc1 p0_clr_ok')
    a('s_sleep 2')
    a('s_mov_b64 exec, 1')
    a(f'buffer_load_dword v{AV+1}, v{L4}, s[20:23], 0 offen offset:128 sc1')
    a('s_mov_b64 exec, -1')
    a('s_add_u32 s34, s34, 1')
    a('s_waitcnt vmcnt(0)')
    a(f's_cmp_lt_u32 s34, {SPIN}'); a('s_cbranch_scc1 p0_clr_poll')
    a.label('p0_clr_ok')
    a('s_waitcnt vmcnt(0)')
    a('s_mov_b64 exec, 1'); a(f'v_mov_b32 v{AV}, 1')
    a(f'buffer_atomic_add v{AV}, v{CA}, s[4:7], s42 offen sc0 sc1')
    a('s_mov_b64 exec, -1')
    stp0('p0 sig')
    FEARLY = int(OPT.get('fearly', 1))
    a(f's_cmp_ge_u32 s26, {NSIDE}'); a('s_cbranch_scc1 ' + ('p0_rd3' if FEARLY else 'p0_noside'))
    a('s_barrier')
    a('s_cmp_eq_u32 s65, 0'); a('s_cbranch_scc1 p0_rd2')
    for i in range(8):
        a(f'ds_read_b64_tr_b16 {v(FR+4*i,2)}, v{SR} offset:{i*1024}')
        a(f'ds_read_b64_tr_b16 {v(FR+4*i+2,2)}, v{SR} offset:{i*1024+512}')
    a('s_branch p0_rd3')
    a.label('p0_rd2')
    for i in range(8):
        a(f'ds_read_b64_tr_b16 {v(FR+4*i,2)}, v{SR} offset:{i*64}')
        a(f'ds_read_b64_tr_b16 {v(FR+4*i+2,2)}, v{SR} offset:{i*64+8192}')
    a.label('p0_rd3')
    if FEARLY:
        a('s_waitcnt vmcnt(0)')
        a(f'v_cmp_eq_u32 vcc, {TARGET[0]-1}, v{AV}')
        a('s_and_b64 vcc, vcc, 1'); a('s_cbranch_scc0 p0_notlast')
        a('s_mov_b64 exec, vcc'); a(f'v_mov_b32 v{AV}, 1')
        a(f'buffer_store_dword v{AV}, v{CA}, s[4:7], s42 offen offset:{FOFF} sc1')
        a('s_mov_b64 exec, -1')
        a.label('p0_notlast')
        a(f's_cmp_ge_u32 s26, {NSIDE}'); a('s_cbranch_scc1 p0_noside')
    a('s_waitcnt lgkmcnt(0)')
    for i in range(8):
        a(f'buffer_store_dwordx4 {v(FR+4*i,4)}, v{L16}, s[4:7], s66 offen sc1')
        a('s_add_u32 s66, s66, s72')
    a.label('p0_noside')
    a('s_cmp_eq_u32 s65, 0'); a('s_cbranch_scc1 p0_nosum')
    a(f'v_mov_b32 v{S1}, 0'); a(f'v_mov_b32 v{S2}, 0')
    for i in range(0, 32, 2):
        a(f'v_dot2_f32_bf16 v{S1}, v{FR+i}, v{ONE}, v{S1}')
        a(f'v_dot2_f32_bf16 v{S2}, v{FR+i+1}, v{ONE}, v{S2}')
    a('s_lshl_b32 s33, s12, 8'); a(f's_add_u32 s33, s33, {SC0 + 8192}')
    a(f'v_add_u32 v{T0}, s33, v{L4}')
    a(f'v_add_f32 v{S1}, v{S1}, v{S2}')
    a(f'ds_write_b32 v{T0}, v{S1}')
    a('s_waitcnt lgkmcnt(0)')
    a('s_barrier')
    a.label('p0_nosum')
    if not FEARLY:
        a(f's_cmp_ge_u32 s26, {NSIDE}'); a('s_cbranch_scc1 p0_v0')
        a('s_waitcnt vmcnt(8)')
        a('s_branch p0_v1')
        a.label('p0_v0')
        a('s_waitcnt vmcnt(0)')
        a.label('p0_v1')
        a(f'v_cmp_eq_u32 vcc, {TARGET[0]-1}, v{AV}')
        a('s_and_b64 vcc, vcc, 1'); a('s_cbranch_scc0 p0_notlast')
        a('s_mov_b64 exec, vcc'); a(f'v_mov_b32 v{AV}, 1')
        a(f'buffer_store_dword v{AV}, v{CA}, s[4:7], s42 offen offset:{FOFF} sc1')
        a('s_mov_b64 exec, -1')
        a.label('p0_notlast')
    a('s_cmp_lg_u32 s12, 3'); a('s_cbranch_scc1 p0_done')
    a(f's_cmp_ge_u32 s26, {NSIDE}'); a('s_cbranch_scc1 p0_done')
    a('s_cmp_eq_u32 s65, 0'); a('s_cbranch_scc1 p0_wsig')
    a(f'v_and_b32 v{T2}, 31, v{LN}'); a(f'v_lshlrev_b32 v{T2}, 2, v{T2}'); a(f'v_add_u32 v{T1}, {SC0+8192}, v{T2}')
    for i in range(8): a(f'ds_read_b32 v{48+i}, v{T1} offset:{128*i}')
    B = 61
    a(f'v_mov_b32 v{B}, 0')
    a('s_cmp_lg_u32 s65, 2'); a('s_cbranch_scc1 p0_nobias')
    a('s_mov_b32 s92, s90'); a('s_and_b32 s93, s91, 0xffff'); a(f's_mov_b32 s94, {1376*2}')
    a('s_lshl_b32 s33, s68, 6')
    a(f'v_lshrrev_b32 v{T3}, 1, v{T2}')
    a(f'buffer_load_ushort v{B}, v{T3}, s[92:95], s33 offen')
    a('s_waitcnt vmcnt(0)')
    a(f'v_lshlrev_b32 v{B}, 16, v{B}')
    a.label('p0_nobias')
    a('s_waitcnt lgkmcnt(0)')
    a('v_add_f32 v48, v48, v49'); a('v_add_f32 v50, v50, v51'); a('v_add_f32 v52, v52, v53'); a('v_add_f32 v54, v54, v55')
    a('v_add_f32 v48, v48, v50'); a('v_add_f32 v52, v52, v54'); a('v_add_f32 v48, v48, v52')
    HI, MID, LO = 62, 63, 64
    split3(a, 48, HI, MID, LO, 65)
    pack_hi(a, 56, HI, HI); pack_hi(a, 57, HI, B); pack_hi(a, 58, B, B)
    a(f'v_lshrrev_b32 v59, 16, v{MID}')
    pack_hi(a, 60, LO, MID)
    a(f'v_cmp_gt_u32 vcc, 32, v{LN}')
    a('v_cndmask_b32 v56, v60, v56, vcc'); a('v_cndmask_b32 v57, 0, v57, vcc')
    a('v_cndmask_b32 v58, 0, v58, vcc'); a('v_cndmask_b32 v59, 0, v59, vcc')
    a(f's_add_u32 s33, s70, {32*1024}')
    a(f'buffer_store_dwordx4 v[56:59], v{L16}, s[4:7], s33 offen sc1')
    a.label('p0_wsig')
    a('s_mov_b32 s96, 1')
    a('s_branch p0_out')
    a.label('p0_done')
    a('s_mov_b32 s96, 0')
    a.label('p0_out')

def gen_main(p):
    a = p.a
    p.entry(KNAME, 512, 256)
    a('s_cmp_ge_u32 s2, 256')
    a('s_cbranch_scc1 main_end')
    global stp0
    def stp0(name):
        if not STAMP: return
        if name not in STAMPS: STAMPS.append(name)
        i = STAMPS.index(name)
        a('s_memtime s[98:99]'); a('s_memrealtime s[100:101]'); a('s_waitcnt lgkmcnt(0)')
        a(f'v_writelane_b32 v11, s98, {2*i+2}')
        a(f'v_writelane_b32 v11, s100, {2*i+3}')
    stp0('start')
    phase0(a)
    a('s_load_dwordx2 s[88:89], s[0:1], 56')
    LN, L16, L4, T0, T1, T2, T3 = 1, 2, 3, 4, 5, 6, 7
    RES = 8
    if STAMP: a('v_mov_b32 v0, v11')
    a('s_and_b32 s13, s2, 7'); a('s_lshr_b32 s14, s2, 3')
    a('s_lshl_b32 s15, s13, 1'); a('s_and_b32 s29, s14, 1'); a('s_add_u32 s15, s15, s29')
    a('s_lshr_b32 s16, s14, 1')
    a('s_lshl_b32 s17, s15, 2'); a('s_and_b32 s29, s12, 1'); a('s_lshl_b32 s29, s29, 1'); a('s_add_u32 s17, s17, s29')
    a('s_lshr_b32 s29, s12, 1'); a('s_add_u32 s17, s17, s29')
    a('s_lshl_b32 s18, s13, 2'); a('s_and_b32 s29, s14, 3'); a('s_add_u32 s18, s18, s29')
    a('s_lshr_b32 s19, s14, 2')
    a('s_lshl_b32 s21, s18, 1'); a('s_lshr_b32 s29, s12, 1'); a('s_add_u32 s20, s21, s29')
    a('s_lshl_b32 s22, s19, 1'); a('s_and_b32 s29, s12, 1'); a('s_add_u32 s22, s22, s29'); a('s_xor_b32 s23, s22, 1')
    a('s_mov_b32 s24, s18'); a('s_mov_b32 s25, s19')
    a('s_mov_b32 s26, 0'); a('s_mov_b32 s27, 0'); a(f's_mov_b32 s28, {CNT}')
    a('s_mov_b32 s30, 0x0000ffff'); a('s_mov_b32 s31, 0x0000ffff')
    a('s_lshl_b32 s32, s20, 5'); a('s_lshl_b32 s29, s22, 1'); a('s_add_u32 s32, s32, s29'); a('s_lshl_b32 s32, s32, 10')
    a('s_mul_i32 s33, s12, 22'); a('s_mul_i32 s29, s12, 21'); a('s_add_u32 s29, s29, 1')
    a('s_cmp_ge_u32 s12, 2'); a('s_cselect_b32 s33, s29, s33')
    a('s_lshl_b32 s34, s16, 2'); a('s_lshr_b32 s29, s17, 4'); a('s_add_u32 s34, s34, s29'); a('s_lshl_b32 s34, s34, 1')
    a('s_and_b32 s29, s17, 1'); a('s_add_u32 s34, s34, s29')
    a('s_lshr_b32 s29, s24, 1'); a('s_lshl_b32 s29, s29, 2'); a('s_add_u32 s35, s29, s12'); a('s_lshl_b32 s35, s35, 1')
    a('s_lshr_b32 s36, s25, 1'); a('s_add_u32 s36, s36, s29'); a('s_lshl_b32 s36, s36, 1')
    a('s_lshl_b32 s37, s25, 2'); a('s_add_u32 s37, s37, s12'); a('s_lshl_b32 s37, s37, 3'); a('s_lshr_b32 s29, s24, 3'); a('s_add_u32 s37, s37, s29')
    a('s_lshl_b32 s38, s18, 3'); a('s_add_u32 s38, s38, s12')
    a(f'v_and_b32 v{T0}, 31, v{LN}'); a(f'v_lshlrev_b32 v{T0}, 10, v{T0}')
    a(f'v_lshrrev_b32 v{T1}, 5, v{LN}'); a(f'v_lshl_add_u32 v{T0}, v{T1}, 4, v{T0}')
    a('s_lshl_b32 s53, s20, 15'); a('s_lshl_b32 s54, s22, 6'); a('s_add_u32 s53, s53, s54')
    a(f'buffer_load_dwordx4 {v(RES,4)}, v{T0}, s[8:11], s53 offen')
    a(f'buffer_load_dwordx4 {v(RES+4,4)}, v{T0}, s[8:11], s53 offen offset:32')
    a('s_mov_b32 s41, s96'); a(f's_mov_b32 s42, {WCELL}'); a(f's_mov_b32 s69, {NSIDE-1}'); a('s_mov_b32 s97, 2')
    a('s_waitcnt lgkmcnt(0)')
    srd(a, 8, 88, 2*L.MB)

    def st(name):
        if not STAMP: return
        if name not in STAMPS: STAMPS.append(name)
        i = STAMPS.index(name)
        assert i < 31
        a('s_memtime s[98:99]'); a('s_memrealtime s[100:101]'); a('s_waitcnt lgkmcnt(0)')
        a(f'v_writelane_b32 v0, s98, {2*i+2}')
        a(f'v_writelane_b32 v0, s100, {2*i+3}')

    def run_groups(gs):
        for g in gs:
            for t in g: a(t)

    def wtile_dma(qkv):
        ftstride = (16 if qkv else 1) * FT
        pre = [f's_mul_i32 s60, s16, {(1 if qkv else 3) * FT}',
               f's_add_u32 s60, s60, {L.WQKVF if qkv else L.W1F}',
               's_lshl_b32 s64, s12, 12',
               's_add_u32 s61, s60, s64',
               's_min_u32 s65, s12, 2',
               f's_mul_i32 s66, s65, {ftstride}',
               's_add_u32 s66, s66, s60',
               f's_add_u32 s66, s66, {32*1024}',
               f's_mul_i32 s65, s65, {FT}']
        groups = [pre]
        for half in range(2):
            for j in range(3):
                g = [f's_add_u32 m0, s64, {j*FT + half*16384}',
                     f's_add_u32 s62, s61, {j*ftstride + half*16384}']
                g += [f'buffer_load_dwordx4 v{L16}, s[4:7], s62 offen offset:{1024*q} sc1 lds' for q in range(4)]
                groups.append(g)
        groups.append([f's_add_u32 m0, s65, {32*1024}', 's_nop 0', f'buffer_load_dwordx4 v{L16}, s[4:7], s66 offen sc1 lds'])
        return groups

    def wtile_dma3():
        groups = [[f's_mul_i32 s60, s16, {FT}', f's_mul_i32 s61, s12, {16*FT}', 's_add_u32 s60, s60, s61', f's_add_u32 s60, s60, {L.WQKVF}',
                   f's_mul_i32 s64, s12, {FT}']]
        for c in range(9):
            g = [f's_add_u32 m0, s64, {c*4096}', f's_add_u32 s62, s60, {c*4096}']
            g += [f'buffer_load_dwordx4 v{L16}, s[4:7], s62 offen offset:{1024*q} sc1 lds' for q in range(4 if c < 8 else 1)]
            groups.append(g)
        return groups

    def poll_setup(ph, idxs, add=0, prev_layer=False, out=None):
        e = out.append if out is not None else a
        o = (CB[ph] + add)*CST - (LST if prev_layer else 0)
        e(f's_add_u32 s50, s28, {o & 0xffffffff}')
        e(f's_mul_i32 s52, s{idxs[0]}, {CST}')
        e(f'v_mov_b32 v{T0}, s52')
        if len(idxs) > 1:
            e(f's_mul_i32 s52, s{idxs[1]}, {CST}')
            e(f'v_writelane_b32 v{T0}, s52, 1')
    DIR = OPT.get('dir', 'wf')
    def poll_load(n, d=0):
        a(f's_mov_b64 exec, {(1 << n) - 1}')
        a(f'buffer_load_dword v{T1}, v{T0}, s[4:7], s50 offen offset:{0 if d else FOFF} sc1')
        a('s_mov_b64 exec, -1')
    def poll_test(n, go, d=0):
        a(f's_mov_b64 exec, {(1 << n) - 1}')
        a(f'v_cmp_gt_u32 vcc, {d if d else 1}, v{T1}')
        a('s_mov_b64 exec, -1')
        a('s_cmp_eq_u64 vcc, 0')
        a(f's_cbranch_scc1 {go}')
    def poll_spin(n, go, hook=None, d=0):
        lp = a.lab('poll')
        a('s_mov_b32 s51, 0')
        a.label(lp)
        poll_load(n, d)
        a('s_add_u32 s51, s51, 1')
        a('s_waitcnt vmcnt(0)')
        if hook: hook()
        poll_test(n, go, d)
        a(f's_cmp_lt_u32 s51, {SPIN}')
        a(f's_cbranch_scc1 {lp}')
        a.label(go)
    def dd(tag, ph): return TARGET[ph] if tag in DIR else 0
    def poll(ph, idxs, add=0, prev_layer=False, d=0):
        poll_setup(ph, idxs, add, prev_layer)
        poll_spin(len(idxs), a.lab('go'), d=d)
    def sig_addr(ph, idx, add=0, out=None, la=2):
        e = out.append if out is not None else a
        e(f's_mul_i32 s42, s{idx}, {CST}')
        e('s_add_u32 s42, s42, s28')
        e(f's_add_u32 s42, s42, {(CB[ph] + add)*CST}')
        e(f's_mov_b32 s69, {TARGET[ph]-1}')
        e(f's_mov_b32 s97, {la}')
    def sig_atomic():
        a('s_mov_b64 exec, 1')
        a('v_mov_b32 v0, 1')
        a(f'buffer_atomic_add v0, v{L4}, s[4:7], s42 offen sc0 sc1')
        a('s_mov_b64 exec, -1')
    def sig_finish(ph=None):
        sk = a.lab('notlast')
        a('v_readfirstlane_b32 s52, v0')
        a('s_cmp_lg_u32 s52, s69')
        a(f's_cbranch_scc1 {sk}')
        a('s_mov_b64 exec, 1')
        a('v_mov_b32 v0, 1')
        a(f'buffer_store_dword v0, v{L4}, s[4:7], s42 offen offset:{FOFF} sc1')
        a('s_mov_b64 exec, -1')
        a.label(sk)
    def signal(ph, idx, add=0):
        sig_addr(ph, idx, add)
        a('s_waitcnt vmcnt(0)')
        sig_atomic()
        a('s_waitcnt vmcnt(0)')
        sig_finish(ph)

    def gemmA_pre(qkv):
        xi0 = 0 if qkv else 1
        stsz = L.ST[1] - L.ST[0]
        a('s_lshl_b32 s47, s17, 15'); a('s_lshl_b32 s29, s27, 1'); a('s_add_u32 s47, s47, s29'); a(f's_add_u32 s47, s47, {L.X[xi0]}')
        a('s_lshl_b32 s48, s17, 12'); a(f's_mul_i32 s29, s26, {2*stsz}'); a('s_add_u32 s48, s48, s29'); a(f's_add_u32 s48, s48, {L.ST[xi0]}')
        a('s_lshl_b32 s55, s12, 10'); a(f's_add_u32 s55, s55, {SCR + 1024}')
        a(f'v_add_u32 v64, s55, v{L16}')
        a(f'v_add_u32 v65, s55, v{L4}')
        a(f'v_add_u32 v70, {FT}, v{L16}')
        a(f'v_add_u32 v71, {2*FT}, v{L16}')
        if qkv:
            a('s_lshl_b32 s56, s16, 17'); a('s_lshl_b32 s57, s17, 10'); a('s_add_u32 s56, s56, s57'); a('s_add_u32 s56, s56, s27')
            a('s_add_u32 s57, s56, 0x10000')
            a(f's_add_u32 s58, s56, {L.K[0]}'); a(f's_add_u32 s59, s57, {L.K[0]}')
            a(f's_add_u32 s54, s56, {L.V[0]}')
            a('s_lshl_b32 s55, s12, 8'); a(f's_add_u32 s55, s55, {SCR}')
            a(f'v_add_u32 v76, s55, v{L4}')
            a(f'v_lshrrev_b32 v77, 5, v{LN}'); a('v_lshlrev_b32 v77, 4, v77'); a('v_add_u32 v77, s55, v77')
            a(f'v_bfe_u32 v78, v{LN}, 4, 1'); a('v_lshlrev_b32 v78, 16, v78')
            a(f'v_lshrrev_b32 v79, 5, v{LN}'); a('v_lshl_add_u32 v78, v79, 8, v78')
            a(f'v_and_b32 v79, 15, v{LN}'); a('v_lshl_add_u32 v78, v79, 4, v78')
        else:
            actsz = L.ACT[1] - L.ACT[0]
            a('s_mul_i32 s56, s17, 86'); a('s_mul_i32 s57, s16, 6'); a('s_add_u32 s56, s56, s57')
            a('s_lshl_b32 s56, s56, 10'); a(f's_mul_i32 s57, s26, {actsz}'); a('s_add_u32 s56, s56, s57')
            a(f's_add_u32 s56, s56, {L.ACT[0]}'); a('s_add_u32 s57, s56, 4096')
            a('s_cmp_eq_u32 s16, 14')
            a(f's_cselect_b32 s29, {64*L.MB}, 0')
            a('s_add_u32 s58, s56, s29'); a('s_add_u32 s57, s57, s29')

    def gemmA(qkv, first_sync=None):
        tag = 'qkv' if qkv else 'ffn1'
        RS, RQ = 68, 69
        WA = [L16, 70, 71]
        XE = 72
        STV = 16
        WS = [32 + 4*i for i in range(8)]
        ACC = [80 + 16*i for i in range(3)]
        XF = 128
        fa, fb, fc = (1, 2, 0) if qkv else (0, 1, 2)
        nvm = [0]; at = {}
        def xload(i):
            a(f'buffer_load_dwordx4 {v(XF+4*i,4)}, v{L16}, s[4:7], s47 offen offset:{1024*(i%4)} sc1'); nvm[0] += 1
            if i % 4 == 3: a('s_add_u32 s47, s47, 4096')
            at[i] = nvm[0]
        PRE = int(OPT['apre'])
        for i in range(6): xload(i)
        for i in range(4):
            a(f'buffer_load_dwordx4 {v(STV+4*i,4)}, v{L16}, s[4:7], s48 offen offset:{1024*i} sc1'); nvm[0] += 1
        for i in range(6, PRE): xload(i)
        if first_sync: first_sync(nvm[0])
        sv = []
        for stp in (8, 4):
            for i in range(stp): sv.append(f'v_add_f32 v{STV+i}, v{STV+i}, v{STV+i+stp}')
        sv.append(f'ds_write_b128 v64, {v(STV,4)}')
        sv.append(f'ds_read2_b32 {v(STV+4,2)}, v65 offset0:0 offset1:64')
        sv.append(f'ds_read2_b32 {v(STV+6,2)}, v65 offset0:128 offset1:192')
        sv.append('WAITDS')
        sv.append(f'v_add_f32 v{STV+4}, v{STV+4}, v{STV+5}')
        sv.append(f'v_add_f32 v{STV+6}, v{STV+6}, v{STV+7}')
        sv.append(f'v_add_f32 v{STV}, v{STV+4}, v{STV+6}')
        sv.append(f'v_mov_b32 v{STV+1}, v{STV}')
        sv.append(f'v_permlane32_swap_b32 v{STV}, v{STV+1}')
        sv.append(f'v_mul_f32 v{STV}, {f32(-1.0/512)}, v{STV}')
        sv.append(f'v_mul_f32 v{STV+1}, {f32(1.0/512)}, v{STV+1}')
        sv.append(f'v_fma_f32 v{STV+1}, -v{STV}, v{STV}, v{STV+1}')
        sv.append(f'v_max_f32 v{STV+1}, 0, v{STV+1}')
        sv.append(f'v_add_f32 v{STV+1}, {f32(1e-5)}, v{STV+1}')
        sv.append(f'v_rsq_f32 v{RS}, v{STV+1}')
        sv.append(f'v_mul_f32 v{STV+1}, v{STV+1}, v{RS}')
        r = sv.append
        MH, MM, ML, SH, SM, SL, TT = STV+2, STV+3, STV+4, STV+5, STV+6, STV+7, STV+8
        split3(r, STV, MH, MM, ML, TT); split3(r, STV+1, SH, SM, SL, TT)
        pack_hi(r, XE, MH, MM); pack_hi(r, XE+1, ML, SH); pack_hi(r, XE+2, SM, SL)
        sv.append(f'v_lshrrev_b32 v{XE+3}, 16, v{MH}')
        sv.append(f'v_mul_f32 v{RQ}, {f32(L.QSCALE if qkv else 1.4426950408889634)}, v{RS}')
        if not qkv: sv.append(f'v_mul_f32 v66, -2.0, v{RS}')
        if qkv:
            sv.append(f'ds_write_b32 v76, v{RS}')
            for j in range(4): sv.append(f'ds_read_b128 {v(STV+4*j,4)}, v77 offset:{32*j}')
        def epi(f, pk, gs=(0, 1)):
            A = ACC[f]; out = []
            def mul(d, s0, s1b, n, bcast):
                if pk:
                    for r_ in range(0, n, 2):
                        if bcast:
                            base = s1b & ~1; o = s1b & 1
                            out.append(f'v_pk_mul_f32 {v(d+r_,2)}, {v(s0+r_,2)}, {v(base,2)} op_sel:[0,{o}] op_sel_hi:[1,{o}]')
                        else:
                            out.append(f'v_pk_mul_f32 {v(d+r_,2)}, {v(s0+r_,2)}, {v(s1b+r_,2)}')
                else:
                    for r_ in range(n): out.append(f'v_mul_f32 v{d+r_}, v{s1b if bcast else s1b+r_}, v{s0+r_}')
            for g in gs:
                B = A + 8*g
                if qkv:
                    if f < 2: mul(B, B, RQ if f == 0 else RS, 8, True)
                    else: mul(B, B, STV + 8*g, 8, False)
                else:
                    U = STV
                    mul(U, B, RQ, 8, True)
                    for r_ in range(8): out.append(f'v_exp_f32 v{U+r_}, v{U+r_}')
                    if pk:
                        for r_ in range(0, 8, 2): out.append(f'v_pk_add_f32 {v(U+8+r_,2)}, {v(U+r_,2)}, 2.0 op_sel_hi:[1,0]')
                        for r_ in range(0, 8, 2): out.append(f'v_pk_fma_f32 {v(U+r_,2)}, {v(U+r_,2)}, {v(U+8+r_,2)}, 2.0 op_sel_hi:[1,1,0]')
                    else:
                        for r_ in range(8): out.append(f'v_add_f32 v{U+8+r_}, 2.0, v{U+r_}')
                        for r_ in range(8): out.append(f'v_fma_f32 v{U+r_}, v{U+r_}, v{U+8+r_}, 2.0')
                    for r_ in range(8): out.append(f'v_rcp_f32 v{U+r_}, v{U+r_}')
                    if pk:
                        for r_ in range(0, 8, 2): out.append(f'v_pk_fma_f32 {v(U+r_,2)}, {v(U+r_,2)}, {v(66,2)}, {v(RS,2)} op_sel_hi:[1,0,0]')
                    else:
                        for r_ in range(8): out.append(f'v_fma_f32 v{U+r_}, v{U+r_}, v66, v{RS}')
                    mul(B, B, U, 8, False)
                for r_ in range(4): out.append(f'v_cvt_pk_bf16_f32 v{B+r_}, v{B+2*r_}, v{B+2*r_+1}')
                if qkv:
                    if f < 2: out.append(f'buffer_store_dwordx4 {v(B,4)}, v{L16}, s[4:7], s{56+2*f+g} offen sc1')
                    else: out.append(f'buffer_store_dwordx4 {v(B,4)}, v78, s[4:7], s54 offen offset:{512*g} sc1')
                else:
                    k = 2*f + g
                    sreg = 56 if k < 2 else (58 if k < 4 else 57)
                    out.append(f'buffer_store_dwordx4 {v(B,4)}, v{L16}, s[4:7], s{sreg} offen offset:{1024*(k%4)} sc1')
            return out
        def cost(t):
            return 8 if t.startswith(TRANS) else (16 if t.startswith('buffer') else 4)
        NB = int(OPT['nb'])
        order = []; nb = 0
        for s_ in range(33):
            order.append((fa, s_))
            while nb < NB and nb + 1 <= (s_ + 1) * NB / 33.0:
                order.append((fb, nb)); nb += 1
        order += [(fb, k) for k in range(nb, 33)] + [(fc, k) for k in range(33)]
        last = {f: max(i for i, o in enumerate(order) if o[0] == f) for f in range(3)}
        nds = [0]; dsat = {}
        def rd(i):
            f, k = order[i]
            a(f'ds_read_b128 {v(WS[i%8],4)}, v{WA[f]} offset:{k*1024}'); nds[0] += 1; dsat[i] = nds[0]
        AH = 6
        for i in range(AH): rd(i)
        nx = PRE; xw = -1
        q = list(sv); ready = {}; units = []
        N = len(order)
        for i, (f, k) in enumerate(order):
            w = f'lgkmcnt({min(15, nds[0] - dsat[i])})'
            if k < 32 and k > xw:
                w = f'vmcnt({nvm[0] - at[k]}) ' + w; xw = k
            if k == 32: assert not any(t in q for t in sv), 'stats not finished'
            if i > last[fa] + 1 and (i - last[fa]) % 2 == 0: pass
            elif i > last[fa] and i + 1 < N: a(f's_waitcnt lgkmcnt({min(15, nds[0] - dsat[i+1])})')
            else: a(f's_waitcnt {w}')
            xf = v(XF + 4*k, 4) if k < 32 else v(XE, 4)
            wf = v(WS[i % 8], 4)
            cc = '0' if k == 0 else v(ACC[f], 16)
            if qkv and f == 2: a(f'{MFMA} {v(ACC[f],16)}, {xf}, {wf}, {cc}')
            else: a(f'{MFMA} {v(ACC[f],16)}, {wf}, {xf}, {cc}')
            if i + AH < N: rd(i + AH)
            budget = 16
            if f == fa and nx < 32:
                xload(nx); nx += 1; budget = 8
            CAP = int(OPT.get('cap', 24))
            for ff in (fa, fb):
                if i == last[ff] + 3: units.extend([(ff, 0), (ff, 1)])
            if not q and units and (CAP == 0 or sum(map(cost, epi(units[0][0], False, (0,)))) <= 1.5*CAP*(N - i)):
                u_ = units.pop(0); q += epi(u_[0], False, (u_[1],))
            if xw >= 6:
                if i > last[fa]:
                    if CAP: budget = CAP
                    else:
                        rem = sum(map(cost, q)) + (len(units) + (2 if i < last[fb] + 3 else 0)) * sum(map(cost, epi(fb, False, (0,))))
                        budget = max(16, -(-rem // max(1, N - i)))
                while q and budget >= min(cost(q[0]), 8):
                    if q[0] == 'WAITDS':
                        if 'mark' not in ready: ready['mark'] = nds[0]
                        if dsat[i] < ready['mark']: break
                        q.pop(0); continue
                    t = q.pop(0); budget -= cost(t); a(t)
                    if t.startswith('buffer'): nvm[0] += 1
                    if t.startswith('ds_'): nds[0] += 1
        for t in q: a(t)
        st(tag + ' loop')
        for u_ in units:
            for t in epi(u_[0], True, (u_[1],)): a(t)
        for t in epi(fc, True): a(t)

    WOA = 0; W2A = 64
    NW2PRE = 18
    def wB_loads(wo, steps):
        KS = 32 if wo else W2KS
        base = WOA if wo else W2A
        first = steps[0]
        pre = []
        for i, ft in enumerate((22, 23)):
            pre.append(f's_mul_i32 s{67+i}, s{ft}, {KS}')
            if wo:
                pre.append('s_lshl_b32 s29, s12, 3'); pre.append(f's_add_u32 s{67+i}, s{67+i}, s29')
            else:
                pre.append(f's_add_u32 s{67+i}, s{67+i}, s33')
            pre.append(f's_lshl_b32 s{67+i}, s{67+i}, 10')
            pre.append(f's_add_u32 s{67+i}, s{67+i}, {(L.WOF if wo else L.W2F) + first*1024}')
        groups = [pre]
        for n0 in range(0, len(steps), 4):
            for i in range(2):
                g = [f'buffer_load_dwordx4 {areg(base + 8*stp + 4*i)}, v{L16}, s[4:7], s{67+i} offen offset:{1024*q} sc1' for q, stp in enumerate(steps[n0:n0+4])]
                g.append(f's_add_u32 s{67+i}, s{67+i}, 4096')
                groups.append(g)
        return groups

    BACC = [[16 + 16*(2*i+j) for j in range(2)] for i in range(2)]
    BAD = 240
    def gemmB_pre(wo):
        KS = 32 if wo else 86
        actsz = L.ACT[1] - L.ACT[0]
        a(f's_mul_i32 s56, s21, {KS}')
        if wo:
            a('s_lshl_b32 s29, s12, 3'); a('s_add_u32 s56, s56, s29')
        else:
            a('s_add_u32 s56, s56, s33')
        a('s_lshl_b32 s56, s56, 10')
        if wo:
            a('s_add_u32 s56, s56, s27'); a(f's_add_u32 s56, s56, {L.O[0]}')
        else:
            a(f's_mul_i32 s29, s26, {actsz}'); a('s_add_u32 s56, s56, s29'); a(f's_add_u32 s56, s56, {L.ACT[0]}')
        a(f's_add_u32 s57, s56, {KS*1024}')
        xo = 1 if wo else 2
        stsz = L.ST[1] - L.ST[0]
        a('s_lshl_b32 s58, s27, 1'); a('s_add_u32 s58, s58, s32'); a(f's_add_u32 s58, s58, {L.X[xo]}')
        a('s_lshl_b32 s59, s20, 12'); a('s_lshl_b32 s54, s22, 8'); a('s_add_u32 s59, s59, s54')
        a(f's_mul_i32 s54, s26, {2*stsz}'); a('s_add_u32 s59, s59, s54'); a(f's_add_u32 s59, s59, {L.ST[xo]}')
        for i in range(2):
            for j in range(2):
                a('s_and_b32 s54, s12, 1')
                if j: a('s_xor_b32 s54, s54, 1')
                a(f's_add_u32 s54, s54, {2*i}')
                a('s_xor_b32 s55, s54, s12')
                a('s_mul_i32 s54, s54, 3'); a('s_add_u32 s54, s54, s55'); a('s_lshl_b32 s54, s54, 12')
                a(f's_add_u32 s54, s54, {RED - 4096}')
                a(f'v_add_u32 v{BAD+2*i+j}, s54, v{L16}')
        a(f's_mul_i32 s55, s12, {3*4096}'); a(f's_add_u32 s55, s55, {RED}')
        a(f'v_add_u32 v{BAD+4}, s55, v{L16}')
        if not wo:
            a(f'v_and_b32 v{BAD+5}, 31, v{LN}'); a(f'v_lshlrev_b32 v{BAD+5}, 10, v{BAD+5}')
            a(f'v_lshrrev_b32 v{BAD+6}, 5, v{LN}'); a(f'v_lshl_add_u32 v{BAD+5}, v{BAD+6}, 4, v{BAD+5}')
            a('s_lshl_b32 s53, s20, 15'); a('s_lshl_b32 s54, s22, 6'); a('s_add_u32 s53, s53, s54')

    def sig_try(state, wait=None):
        e = a.lab('sge')
        a(f's_cmp_lg_u32 s41, {state}')
        a(f's_cbranch_scc1 {e}')
        if wait is not None: a(f's_waitcnt vmcnt({wait})')
        if state == 1:
            sig_atomic(); a('s_mov_b32 s41, s97')
        else:
            sig_finish(); a('s_mov_b32 s41, 0')
        a.label(e)
    def sig_slot(wait):
        d = a.lab('sgd'); e = a.lab('sge')
        a('s_cmp_lg_u32 s41, 1')
        a(f's_cbranch_scc1 {d}')
        a(f's_waitcnt vmcnt({wait})')
        sig_atomic(); a('s_mov_b32 s41, s97')
        a(f's_branch {e}')
        a.label(d)
        a('s_mov_b64 exec, 2')
        a(f'buffer_load_dword v0, v{L4}, s[4:7], 0 offen')
        a('s_mov_b64 exec, -1')
        a.label(e)
    def sig_step():
        sig_try(2); sig_try(1)
    def sig_block():
        sig_try(1, 0); sig_try(2, 0)

    def gemmB(wo, tail=()):
        tag = 'wo' if wo else 'ffn2'
        nst = 8 if wo else 22
        wbase = WOA if wo else W2A
        FB = 80
        NSL = 24
        RB = 176
        WIN = min(int(OPT['bwin']), nst)
        LAG = 3
        st(tag + 'A go')
        class St: pass
        z = St(); z.nvm = 0; z.at = {}; z.issued = 0; z.tail = list(tail)
        def xr(n): return FB + 4*(n % NSL)
        def load(z):
            n = z.issued; i, k = divmod(n, nst)
            a(f'buffer_load_dwordx4 {v(xr(n),4)}, v{L16}, s[4:7], s{56+i} offen offset:{1024*(k%4)} sc1'); z.nvm += 1
            if k % 4 == 3: a(f's_add_u32 s{56+i}, s{56+i}, 4096')
            z.at[n] = z.nvm; z.issued += 1
        def mm(i, j, k):
            cc = '0' if k == 0 else v(BACC[i][j],16)
            a(f'{MFMA} {v(BACC[i][j],16)}, {areg(wbase+8*k+4*j)}, {v(xr(i*nst+k),4)}, {cc}')
        def zero0(n):
            if wo: return
            sk = a.lab('ffn2_s0')
            a('s_cmp_lt_u32 s12, 2')
            a(f's_cbranch_scc1 {sk}')
            for r_ in range(4): a(f'v_mov_b32 v{xr(n)+r_}, 0')
            a.label(sk)
        def wr(i, j): return [f'ds_write_b128 v{BAD+2*i+j}, {v(BACC[i][j]+4*q,4)} offset:{q*1024}' for q in range(4)]
        def epilogue(i, pk):
            A0 = BACC[i][0]; o = []
            for k in range(3):
                for q in range(4): o.append(f'ds_read_b128 {v(RB+16*k+4*q,4)}, v{BAD+4} offset:{k*4096 + q*1024}')
            U = RB + 48
            for r_ in range(8):
                o.append(f'v_lshlrev_b32 v{U+2*r_}, 16, v{RES+r_}')
                o.append(f'v_and_b32 v{U+2*r_+1}, 0xffff0000, v{RES+r_}')
            def addv(src):
                if pk:
                    for r_ in range(0, 16, 2): o.append(f'v_pk_add_f32 {v(A0+r_,2)}, {v(A0+r_,2)}, {v(src+r_,2)}')
                else:
                    for r_ in range(16): o.append(f'v_add_f32 v{A0+r_}, v{A0+r_}, v{src+r_}')
            addv(U)
            for k in range(3):
                o.append(f's_waitcnt lgkmcnt({8-4*k})')
                addv(RB + 16*k)
            for r_ in range(8): o.append(f'v_cvt_pk_bf16_f32 v{RES+r_}, v{A0+2*r_}, v{A0+2*r_+1}')
            o.append('STORE')
            if pk:
                o.append(f'v_pk_add_f32 {v(RB,2)}, {v(A0,2)}, {v(A0+2,2)}')
                o.append(f'v_pk_mul_f32 {v(RB+2,2)}, {v(A0,2)}, {v(A0,2)}')
                o.append(f'v_pk_fma_f32 {v(RB+2,2)}, {v(A0+2,2)}, {v(A0+2,2)}, {v(RB+2,2)}')
                for r_ in range(4, 16, 2):
                    o.append(f'v_pk_add_f32 {v(RB,2)}, {v(RB,2)}, {v(A0+r_,2)}')
                    o.append(f'v_pk_fma_f32 {v(RB+2,2)}, {v(A0+r_,2)}, {v(A0+r_,2)}, {v(RB+2,2)}')
                o.append(f'v_add_f32 v{T2}, v{RB}, v{RB+1}')
                o.append(f'v_add_f32 v{T3}, v{RB+2}, v{RB+3}')
            else:
                o.append(f'v_add_f32 v{T2}, v{A0}, v{A0+1}')
                o.append(f'v_mul_f32 v{T3}, v{A0}, v{A0}')
                o.append(f'v_fmac_f32 v{T3}, v{A0+1}, v{A0+1}')
                for r_ in range(2, 16):
                    o.append(f'v_add_f32 v{T2}, v{T2}, v{A0+r_}')
                    o.append(f'v_fmac_f32 v{T3}, v{A0+r_}, v{A0+r_}')
            o.append(f'v_permlane32_swap_b32 v{T2}, v{T3}')
            o.append(f'v_add_f32 v{T2}, v{T2}, v{T3}')
            o.append(f'buffer_store_dword v{T2}, v{L4}, s[4:7], s59 offen sc1')
            o.append('OWED')
            return o
        def emit(t, z):
            if t == 'STORE':
                if not wo:
                    nf = a.lab('notfinal'); dn = a.lab('stored')
                    a('s_cmp_eq_u32 s26, 0')
                    a(f's_cbranch_scc1 {nf}')
                    for g in range(2):
                        a(f'v_permlane32_swap_b32 v{RES+4*g}, v{RES+4*g+2}')
                        a(f'v_permlane32_swap_b32 v{RES+4*g+1}, v{RES+4*g+3}')
                        a(f'buffer_store_dwordx4 {v(RES+4*g,4)}, v{BAD+5}, s[8:11], s53 offen offset:{32*g} {OPT.get("of", "").replace("_", " ")}')
                    a(f's_branch {z.fin}')
                    a.label(nf)
                a(f'buffer_store_dwordx4 {v(RES,4)}, v{L16}, s[4:7], s58 offen sc1')
                a(f'buffer_store_dwordx4 {v(RES+4,4)}, v{L16}, s[4:7], s58 offen offset:1024 sc1')
                z.nvm += 2
            elif t == 'OWED':
                sig_addr(2 if wo else 4, 20)
                a('s_mov_b32 s41, 1')
                z.owed = z.nvm
            else:
                a(t)
                if t.startswith('buffer'): z.nvm += 1
        def part(i, z, kat=None):
            for k in range(nst):
                n = i*nst + k
                a(f's_waitcnt vmcnt({z.nvm - z.at[n]})')
                if k == 0:
                    if i == 1 and wo: sig_step(); z.mark = z.nvm
                    zero0(n)
                mm(i, 1, k)
                if i == 0 and k == (4 if not (SLOT and (wo or SLOT == 2)) else nst - 1): sig_try(2, z.nvm - z.mark)
                W2 = int(OPT.get('bwin2', 22))
                if not wo and i == 1 and W2 >= nst and k == nst - 1: sig_try(1, 0)
                if not wo and i == 1 and W2 < nst and k == W2: sig_try(1)
                if not wo and i == 1 and W2 < nst and k == nst - 1: sig_try(2, 0)
                if z.issued < (i + 1)*nst: load(z)
                elif z.tail and (wo or k >= 10):
                    for t in z.tail.pop(0): emit(t, z)
                if k < nst - LAG: mm(i, 0, k)
            assert not z.tail, len(z.tail)
            for k in range(nst - LAG, nst): mm(i, 0, k)
        def writes(i, wt):
            sk = a.lab('b_self')
            for t in wr(i, 1): a(t)
            a('s_lshr_b32 s54, s12, 1')
            a(f's_cmp_eq_u32 s54, {i}')
            a(f's_cbranch_scc1 {sk}')
            for t in wr(i, 0): a(t)
            a.label(sk)
            a(wt)
        def owner_epi(i):
            sk = a.lab('b_notown')
            a('s_lshr_b32 s54, s12, 1')
            a(f's_cmp_lg_u32 s54, {i}')
            a(f's_cbranch_scc1 {sk}')
            y = St(); y.nvm = 0; y.fin = sk
            for t in epilogue(i, True): emit(t, y)
            a.label(sk)
        import copy
        SLOT = int(OPT.get('slot', 1))
        if SLOT and (wo or SLOT == 2):
            for _ in range(nst): load(z)
            sig_slot(nst); z.nvm += 1; z.mark = z.nvm
        else:
            for _ in range(4): load(z)
            sig_try(2, 4); sig_try(1, 4); z.mark = z.nvm
            for _ in range(WIN - 4): load(z)
        if wo:
            z.tail = []
            part(0, z)
            poll_setup(1, [38], add=4)
            writes(0, 's_waitcnt lgkmcnt(0)')
            a('s_barrier')
            owner_epi(0)
            st(tag + 'A end')
            poll_spin(1, a.lab('go'), hook=sig_step, d=dd('w', 1))
            st(tag + 'B go')
            for _ in range(WIN): load(z)
            z.tail = list(tail)
            part(1, z)
            sig_try(2, z.nvm - z.mark)
        else:
            nod = a.lab('f2_nodma'); jn = a.lab('f2_join')
            a('s_lshl_b32 s54, s26, 2'); a('s_add_u32 s54, s54, s12')
            a('s_cmp_ge_u32 s54, 3')
            a(f's_cbranch_scc1 {nod}')
            y = copy.deepcopy(z)
            part(0, y)
            a(f's_branch {jn}')
            a.label(nod)
            z.tail = []
            part(0, z)
            a.label(jn)
            writes(0, 's_waitcnt lgkmcnt(0)')
            a('s_cmp_lg_u32 s12, 3')
            a('s_cbranch_scc1 f2_nopoll')
            poll(3, [21], add=1, d=dd('f', 3))
            a.label('f2_nopoll')
            st(tag + 'A end')
            a('s_barrier')
            st(tag + 'B go')
            for _ in range(int(OPT.get('bwin2', 22))): load(z)
            owner_epi(0)
            part(1, z)
        poll_setup(2 if wo else 4, [17])
        poll_load(1)
        writes(1, 's_waitcnt lgkmcnt(0)')
        a('s_barrier')
        owner_epi(1)
        st(tag + 'B end')
        sig_block()
        st(tag + ' sig')

    SB = [16, 32]; PB = [48, 52]; OA = [56, 72]; QF = [88, 92]; VR = 96
    TMP = 240
    def kreg(kt): return v(224 + 4*kt, 4) if kt < 4 else areg(208 + 4*(kt-4))
    def vreg(kt, g): return v(VR + 8*kt + 4*g, 4)
    VOFF, PADDR = T2, T3
    PA4 = TMP + 12
    def qaddr(p_, sreg=53):
        return [f's_add_u32 s{sreg}, s12, {1 + p_}', f's_and_b32 s{sreg}, s{sreg}, 3', f's_lshl_b32 s{sreg}, s{sreg}, 11', f's_add_u32 s{sreg}, s{sreg}, s{48 + (p_ >> 2)}']
    def attn_pre():
        a(f'v_and_b32 v{T0}, 27, v{LN}')
        a(f'v_cmp_eq_u32 vcc, 16, v{T0}')
        a(f'v_mov_b32 v{T1}, {ONES}')
        a(f'v_cndmask_b32 v{VR}, 0, v{T1}, vcc')
        a(f'v_cndmask_b32 v{VR+1}, 0, v{T1}, vcc')
        for r_ in range(2, 128, 2): a(f'v_pk_mov_b32 {v(VR+r_,2)}, {v(VR,2)}, {v(VR,2)}')
        a(f'v_and_b32 v{T1}, 15, v{LN}'); a(f'v_lshlrev_b32 v{T1}, 4, v{T1}')
        a(f'v_lshrrev_b32 v{VOFF}, 5, v{LN}'); a(f'v_lshl_add_u32 v{VOFF}, v{VOFF}, 8, v{T1}')
        a('s_lshl_b32 s44, s24, 16'); a('s_add_u32 s44, s44, s27')
        a('s_lshl_b32 s45, s12, 14'); a('s_add_u32 s45, s45, s44')
        a(f's_add_u32 s46, s45, {L.K[0]}'); a(f's_add_u32 s47, s45, {L.V[0]}')
        a('s_lshl_b32 s48, s25, 13'); a('s_add_u32 s48, s48, s44'); a('s_add_u32 s49, s48, 1024')
        for t in qaddr(0, 53) + qaddr(1, 54): a(t)
        a('s_lshl_b32 s39, s25, 2'); a('s_add_u32 s39, s39, s12'); a('s_lshl_b32 s39, s39, 16')
        a('s_lshl_b32 s55, s24, 10'); a('s_add_u32 s39, s39, s55')
        a('s_add_u32 s39, s39, s27'); a(f's_add_u32 s39, s39, {L.O[0]}')
        a(f's_mov_b32 s56, {f32(2.0**-90)}'); a(f's_mov_b32 s57, {f32(2.0**120)}')
        a('s_mov_b32 s40, 0')

    def check_ops(Oa, U):
        return [f'v_add_f32 v{U}, abs(v{Oa}), abs(v{Oa+1})', f'v_add_f32 v{U+1}, abs(v{Oa+2}), abs(v{Oa+3})',
                f'v_add_f32 v{U+2}, abs(v{Oa+4}), abs(v{Oa+5})', f'v_add_f32 v{U+3}, abs(v{Oa+6}), abs(v{Oa+7})',
                f'v_add_f32 v{U}, v{U}, v{U+1}', f'v_add_f32 v{U+2}, v{U+2}, v{U+3}', f'v_add_f32 v{U}, v{U}, v{U+2}',
                f'v_cmp_gt_f32 s[70:71], s57, v{U}', f'v_cmp_gt_f32 s[72:73], s57, v{Oa+8}', f'v_cmp_lt_f32 s[74:75], s56, v{Oa+8}',
                's_and_b64 s[70:71], s[70:71], s[72:73]', 's_and_b64 s[70:71], s[70:71], s[74:75]', 's_cmp_eq_u64 s[70:71], -1']

    def attn(extra_groups):
        nvm = [0]
        atk, atv, atq = {}, {}, {}
        def qload(p_, sreg=53):
            a(f'buffer_load_dwordx4 {v(QF[p_%2],4)}, v{L16}, s[4:7], s{sreg} offen sc1'); nvm[0] += 1
            atq[p_] = nvm[0]
        def kvbase(kt, sreg):
            pass
        def kload(kts):
            for kt in kts:
                a(f'buffer_load_dwordx4 {kreg(kt)}, v{L16}, s[4:7], s{76 + kt//4} offen offset:{1024*(kt%4)} sc1'); nvm[0] += 1
                atk[kt] = nvm[0]
        def vload(kts):
            a('s_mov_b64 exec, s[30:31]')
            for kt in kts:
                for g in range(2):
                    a(f'buffer_load_dwordx4 {vreg(kt,g)}, v{VOFF}, s[4:7], s{80 + kt//4} offen offset:{1024*(kt%4)+512*g} sc1'); nvm[0] += 1
                atv[kt] = nvm[0]
            a('s_mov_b64 exec, -1')
        EV = list(range(0, 16, 2)); OD = list(range(1, 16, 2))
        steps = [(0, k) for k in EV] + [(1, k) for k in EV] + [(0, k) for k in OD] + [(1, k) for k in OD]
        steps += [(p_, k) for p_ in range(2, 8) for k in range(16)]
        N = len(steps)
        firstof = {}; lastof = {}
        for n, (p_, k) in enumerate(steps):
            firstof.setdefault(p_, n); lastof[p_] = n
        qload(0)
        kload([0, 2]); vload([0])
        sig_try(1, nvm[0]); mark0 = nvm[0]
        kload([4]); vload([2]); kload([6]); vload([4])
        waited = [0]
        def need_vm(at):
            if at > waited[0]:
                a(f's_waitcnt vmcnt({nvm[0] - at})'); waited[0] = at
        need_vm(atk[0])
        a(f'{MFMA} {v(SB[0],16)}, {kreg(0)}, {v(QF[0],4)}, 0')
        kload([8]); vload([6])
        extra = list(extra_groups)
        sal = []
        def hide():
            if sal: a(sal.pop(0))
        ev_sal, ev_a, ev_b = {}, {}, {}
        def add(d, n, f): d.setdefault(n, []).append(f)
        for p_ in range(2, 8):
            n0 = lastof[p_ - 2] + 1
            add(ev_sal, n0 - 2, qaddr(p_))
            add(ev_a, n0, lambda p_=p_: qload(p_))
        def pwrite(pp):
            Op = OA[pp % 2]
            a(f'v_add_u32 v{PADDR}, s53, v{L16}')
            a(f'v_add_u32 v{PA4}, s53, v{L4}')
            a(f'ds_write_b128 v{PADDR}, {v(Op,4)}')
            a(f'ds_write_b128 v{PADDR}, {v(Op+4,4)} offset:1024')
            a(f'ds_write_b32 v{PA4}, v{Op+8} offset:2048')
        for pp in (0, 1, 2, 4, 5, 6):
            n0 = lastof[pp] + 2
            slot = 2 - pp % 4
            add(ev_sal, n0, [f's_add_u32 s53, s12, {1 + pp}', 's_and_b32 s53, s53, 3', f's_mul_i32 s53, s53, {6*2304}',
                             f's_add_u32 s53, s53, {PART + (3*(pp >> 2) + slot)*2304}'])
            add(ev_b, n0 + 2, lambda pp=pp: pwrite(pp))
        pb = []
        poll_setup(0, [35, 36], add=1, out=pb)
        def b_issue():
            for t in pb: a(t)
            poll_load(2); nvm[0] += 1; atq['flag'] = nvm[0]
        def b_check():
            go = a.lab('bgo')
            need_vm(atq['flag'])
            poll_test(2, go)
            poll_spin(2, go)
            kload([1, 3]); vload([1])
        add(ev_a, 0, lambda: (kload([10]), vload([8])))
        add(ev_a, 1, lambda: (kload([12]), vload([10])))
        add(ev_a, 2, lambda: (sig_try(2, nvm[0] - mark0), kload([14]), vload([12])))
        add(ev_a, 3, lambda: (qload(1, 54), vload([14])))
        add(ev_a, 6, b_issue)
        add(ev_a, 11, b_check)
        for j_ in range(7):
            add(ev_a, 12 + j_, lambda j_=j_: (kload([5 + 2*j_] if j_ < 6 else []), vload([3 + 2*j_])))
        def own_addr(b):
            a('s_waitcnt lgkmcnt(0)' if b == 0 else 's_waitcnt vmcnt(0) lgkmcnt(0)')
            a('s_barrier')
            a(f's_mul_i32 s53, s12, {6*2304}'); a(f's_add_u32 s53, s53, {PART + 3*b*2304}')
            a(f'v_add_u32 v{PADDR}, s53, v{L16}')
            a(f'v_add_u32 v{PA4}, s53, v{L4}')
        def pread(b_, sl):
            a(f'ds_read_b128 {v(b_,4)}, v{PADDR} offset:{sl*2304}')
            a(f'ds_read_b128 {v(b_+4,4)}, v{PADDR} offset:{sl*2304+1024}')
            a(f'ds_read_b32 v{b_+8}, v{PA4} offset:{sl*2304+2048}')
        n4 = firstof[4]
        Oa = OA[1]
        def padd():
            a('s_waitcnt lgkmcnt(0)')
            for r_ in range(9): a(f'v_add_f32 v{Oa+r_}, v{Oa+r_}, v{TMP+r_}')
        add(ev_b, n4 + 2, lambda: (own_addr(0), pread(TMP, 0)))
        add(ev_b, n4 + 3, lambda: (padd(), pread(TMP, 1)))
        add(ev_b, n4 + 4, lambda: (padd(), pread(TMP, 2)))
        def finA():
            padd()
            for t in check_ops(Oa, TMP): a(t)
            sk = a.lab('a_later')
            a(f's_cbranch_scc0 {sk}')
            a(f'v_rcp_f32 v{TMP}, v{Oa+8}')
            for r_ in range(8): a(f'v_mul_f32 v{Oa+r_}, v{TMP}, v{Oa+r_}')
            for r_ in range(4): a(f'v_cvt_pk_bf16_f32 v{TMP+4+r_}, v{Oa+2*r_}, v{Oa+2*r_+1}')
            a(f'buffer_store_dwordx4 {v(TMP+4,4)}, v{L16}, s[4:7], s39 offen sc1')
            a('s_mov_b32 s40, 1'); a('s_mov_b32 s41, 1')
            a.label(sk)
        add(ev_b, n4 + 5, finA)
        sa = []; sig_addr(1, 37, out=sa)
        add(ev_sal, n4 + 6, sa)
        def sstep():
            a('s_waitcnt vmcnt(0)'); waited[0] = nvm[0]
            sig_step()
        add(ev_b, n4 + 9, sstep)
        add(ev_b, n4 + 15, sstep)
        n7 = firstof[7]
        add(ev_b, n7 + 8, lambda: own_addr(1))
        for sl in range(3):
            add(ev_b, n7 + 9 + sl, lambda sl=sl: pread(VR + 12*sl, sl))
        def wr_issue():
            a(f's_mov_b32 s50, {WCELL}'); a(f'v_mov_b32 v{T0}, 0')
            poll_load(1); nvm[0] += 1; atq['wflag'] = nvm[0]
        def wr_check():
            go = a.lab('wgo')
            need_vm(atq['wflag'])
            poll_test(1, go)
            poll_spin(1, go)
        add(ev_a, 20, wr_issue)
        add(ev_a, 26, wr_check)
        def w_issue():
            poll_setup(1, [38]); poll_load(1); nvm[0] += 1
        add(ev_a, n7 + 10, w_issue)
        GS = int(OPT['gs'])
        if GS < 4:
            ex2 = []
            for g in extra:
                cur = []; nm = 0
                for t in g:
                    if t.startswith('buffer'):
                        if nm == GS: ex2.append(cur); cur = []; nm = 0
                        nm += 1
                    cur.append(t)
                ex2.append(cur)
            extra = ex2
        slots = [n for n in range(28 if GS < 4 else 34, N - 12, 1 if GS < 4 else 2) if n not in ev_a and n not in ev_b and not (n4 - 4 <= n <= n4 + 15)]
        assert len(slots) >= len(extra), (len(slots), len(extra))
        gslot = dict(zip(slots, extra))
        for n, (p_, kt) in enumerate(steps):
            S = SB[n % 2]; O = OA[p_ % 2]
            e = [f'v_exp_f32 v{S+r}, v{S+r}' for r in range(16)]
            c = [f'v_cvt_pk_bf16_f32 v{PB[r//4]+r%4}, v{S+2*r}, v{S+2*r+1}' for r in range(8)]
            if OPT.get('fine') == 'att' and n in (0, 8, 16, 32, 48, 64, 80, 96, 112): st(f'att n{n}')
            for l_ in ev_sal.get(n, []):
                assert not sal, n
                sal += l_
            if n + 1 < N:
                p2, kt2 = steps[n + 1]
                if n < 32: need_vm(atk[kt2])
                if n + 1 == firstof[p2]: need_vm(atq[p2])
                a(f'{MFMA} {v(SB[(n+1)%2],16)}, {kreg(kt2)}, {v(QF[p2%2],4)}, 0')
                hide()
            for f in ev_a.get(n, []):
                assert not sal, n
                f()
            a(e[0]); a(e[1]); a(e[2]); a(e[3]); a(c[0]); a(c[1]); a(e[4])
            if n > 0:
                pp, pk = steps[n - 1]
                a(f'{MFMA} {v(OA[pp%2],16)}, {vreg(pk,1)}, {v(PB[1],4)}, {v(OA[pp%2],16)}')
                hide()
            if n in gslot:
                for t in gslot[n]:
                    a(t)
                    if t.startswith('buffer'): nvm[0] += 1
            a(e[5]); a(e[6]); a(e[7]); a(c[2]); a(c[3]); a(e[8]); a(e[9]); a(e[10])
            if n < 32: need_vm(atv[kt])
            a(f'{MFMA} {v(O,16)}, {vreg(kt,0)}, {v(PB[0],4)}, {"0" if n == firstof[p_] else v(O,16)}')
            hide()
            a(e[11]); a(c[4]); a(c[5]); a(e[12]); a(e[13])
            for f in ev_b.get(n, []):
                assert not sal, n
                f()
            a(e[14]); a(e[15]); a(c[6]); a(c[7])
        a(f'{MFMA} {v(OA[1],16)}, {vreg(15,1)}, {v(PB[1],4)}, {v(OA[1],16)}')
        st('att loop')
        U = SB[0]
        Oa = OA[1]
        a('s_waitcnt lgkmcnt(0)')
        a(f's_add_u32 s55, s39, {32*1024}')
        a('s_mov_b32 s43, 1')
        sig_addr(1, 37, add=4, la=0 if 'w' in DIR else 2)
        for sl in range(3):
            b = VR + 12*sl
            for r_ in range(0, 8, 2): a(f'v_pk_add_f32 {v(Oa+r_,2)}, {v(Oa+r_,2)}, {v(b+r_,2)}')
            a(f'v_add_f32 v{Oa+8}, v{Oa+8}, v{b+8}')
        for t in check_ops(Oa, U): a(t)
        a('s_cbranch_scc1 attn_fin')
        a.label('attn_slow')
        S = SB[0]; M = SB[1]; AL = M + 1; TA = M + 2; TB = M + 3
        KT = 224; V0 = 228; V1 = 232
        a('s_lshl_b32 s53, s12, 11'); a('s_lshl_b32 s54, s43, 10'); a('s_add_u32 s53, s53, s54'); a('s_add_u32 s53, s53, s48')
        a(f'buffer_load_dwordx4 {v(QF[0],4)}, v{L16}, s[4:7], s53 offen sc1')
        a(f'v_and_b32 v{TA}, 27, v{LN}')
        a(f'v_cmp_eq_u32 vcc, 16, v{TA}')
        a(f'v_mov_b32 v{TB}, {ONES}')
        a(f'v_cndmask_b32 v{TA}, 0, v{TB}, vcc')
        for r_ in range(8): a(f'v_mov_b32 v{V0+r_}, v{TA}')
        a(f'v_mov_b32 v{M}, {f32(-3.0e38)}')
        for r_ in range(16): a(f'v_mov_b32 v{Oa+r_}, 0')
        a(f's_add_u32 s46, s44, {L.K[0]}'); a(f's_add_u32 s47, s44, {L.V[0]}')
        a('s_mov_b32 s54, 64')
        a.label('attn_slow_loop')
        a(f'buffer_load_dwordx4 {v(KT,4)}, v{L16}, s[4:7], s46 offen sc1')
        a('s_mov_b64 exec, s[30:31]')
        a(f'buffer_load_dwordx4 {v(V0,4)}, v{VOFF}, s[4:7], s47 offen sc1')
        a(f'buffer_load_dwordx4 {v(V1,4)}, v{VOFF}, s[4:7], s47 offen offset:512 sc1')
        a('s_mov_b64 exec, -1')
        a('s_add_u32 s46, s46, 1024'); a('s_add_u32 s47, s47, 1024')
        a('s_waitcnt vmcnt(0)')
        a(f'{MFMA} {v(S,16)}, {v(KT,4)}, {v(QF[0],4)}, 0')
        a(f'v_max3_f32 v{TA}, v{S}, v{S+1}, v{M}')
        for r_ in range(2, 16, 2): a(f'v_max3_f32 v{TA}, v{S+r_}, v{S+r_+1}, v{TA}')
        a(f'v_mov_b32 v{TB}, v{TA}')
        a(f'v_permlane32_swap_b32 v{TA}, v{TB}')
        a(f'v_max_f32 v{TA}, v{TA}, v{TB}')
        a(f'v_sub_f32 v{AL}, v{M}, v{TA}')
        a(f'v_exp_f32 v{AL}, v{AL}')
        a(f'v_mov_b32 v{M}, v{TA}')
        for r_ in range(16):
            a(f'v_sub_f32 v{S+r_}, v{S+r_}, v{M}')
            a(f'v_exp_f32 v{S+r_}, v{S+r_}')
        for r_ in range(16): a(f'v_mul_f32 v{Oa+r_}, v{AL}, v{Oa+r_}')
        for r_ in range(8): a(f'v_cvt_pk_bf16_f32 v{PB[r_//4]+r_%4}, v{S+2*r_}, v{S+2*r_+1}')
        a(f'{MFMA} {v(Oa,16)}, {v(V0,4)}, {v(PB[0],4)}, {v(Oa,16)}')
        a(f'{MFMA} {v(Oa,16)}, {v(V1,4)}, {v(PB[1],4)}, {v(Oa,16)}')
        a('s_sub_u32 s54, s54, 1')
        a('s_cmp_lg_u32 s54, 0')
        a('s_nop 7')
        a('s_cbranch_scc1 attn_slow_loop')
        a('s_nop 7')
        a.label('attn_fin')
        a(f'v_rcp_f32 v{U}, v{Oa+8}')
        for r_ in range(0, 8, 2): a(f'v_pk_mul_f32 {v(Oa+r_,2)}, {v(Oa+r_,2)}, {v(U,2)} op_sel:[0,0] op_sel_hi:[1,0]')
        for r_ in range(4): a(f'v_cvt_pk_bf16_f32 v{TMP+8+r_}, v{Oa+2*r_}, v{Oa+2*r_+1}')
        a(f'buffer_store_dwordx4 {v(TMP+8,4)}, v{L16}, s[4:7], s55 offen sc1')
        a('s_mov_b32 s41, 1')
        a('s_cmp_eq_u32 s40, 1')
        a('s_cbranch_scc1 attn_done')
        sig_block()
        a('s_cmp_eq_u32 s43, 0')
        a('s_cbranch_scc1 attn_done')
        a('s_mov_b32 s43, 0'); a('s_mov_b32 s55, s39')
        sig_addr(1, 37)
        a('s_branch attn_slow')
        a.label('attn_done')

    def touch_wqkv():
        per = L.FT_QKV * FT // 32
        g = [f's_mul_i32 s60, s14, {per}', f's_mul_i32 s61, s12, {per//4}', 's_add_u32 s60, s60, s61', f's_add_u32 s60, s60, {L.WQKVF}',
             f'v_lshlrev_b32 v{T0}, 7, v{LN}', 's_add_u32 s61, s60, 4480',
             f'buffer_load_dword v{T1}, v{T0}, s[4:7], s60 offen sc1', f'buffer_load_dword v{T1}, v{T0}, s[4:7], s61 offen sc1']
        return [g]

    def dump():
        if not STAMP: return
        a('s_lshl_b32 s90, s2, 2'); a('s_add_u32 s90, s90, s12'); a('s_lshl_b32 s90, s90, 1'); a('s_add_u32 s90, s90, s26')
        a('s_lshl_b32 s90, s90, 8'); a(f's_add_u32 s90, s90, {L.FLAGS + 7*L.MB}')
        a(f'buffer_store_dword v0, v{L4}, s[4:7], s90 offen')
        a('s_waitcnt vmcnt(0)')
        if os.environ.get('DBG'):
            sk = a.lab('dbg')
            a('s_lshl_b32 s90, s2, 2'); a('s_add_u32 s90, s90, s12'); a('s_cmp_lg_u32 s90, 2'); a(f's_cbranch_scc1 {sk}')
            a('s_load_dwordx2 s[92:93], s[0:1], 64'); a('s_waitcnt lgkmcnt(0)')
            srd(a, 92, 92, 256)
            a(f'v_readlane_b32 s91, v0, {2*STAMPS.index("p0 prek")+3}')
            names = ['p0 sig', 'att go', 'att loop', 'woB end', 'ffn1 sig', 'end']
            for j, nm in enumerate(names):
                a(f'v_readlane_b32 s90, v0, {2*STAMPS.index(nm)+3}')
                a('s_sub_u32 s90, s90, s91')
                a(f'v_mov_b32 v{T2}, s90')
                a('s_mul_i32 s90, s26, 24'); a(f's_add_u32 s90, s90, {8 + 4*j}')
                a('s_mov_b64 exec, 1')
                a(f'buffer_store_dword v{T2}, v{L4}, s[92:95], s90 offen')
                a('s_mov_b64 exec, -1')
            a('s_waitcnt vmcnt(0)')
            a.label(sk)

    a('s_branch main_attpre')
    a.label('main_layer')
    st('start')
    gemmA_pre(True)
    a('s_waitcnt vmcnt(0)')
    poll_test(1, 'main_q_go')
    poll_spin(1, 'main_q_go', d=dd('q', 4))
    a.label('main_qkv')
    st('qkv go')
    def first_sync(n):
        sk = a.lab('nosync')
        a('s_cmp_eq_u32 s26, 1')
        a(f's_cbranch_scc1 {sk}')
        a(f's_waitcnt vmcnt({n})')
        a('s_barrier')
        a.label(sk)
    gemmA(True, None if K1 else first_sync)
    sig_addr(0, 34)
    a('s_mov_b32 s41, 1')
    a.label('main_attpre')
    attn_pre()
    for i in range(4):
        a(f's_add_u32 s{76+i}, s46, {4096*i}'); a(f's_add_u32 s{80+i}, s47, {4096*i}')
    st('qkv sig')
    a('s_cmp_eq_u32 s26, 1')
    a('s_cbranch_scc1 main_nores')
    a('s_waitcnt vmcnt(0)')
    for g in range(2):
        a(f'v_permlane32_swap_b32 v{RES+4*g}, v{RES+4*g+2}')
        a(f'v_permlane32_swap_b32 v{RES+4*g+1}, v{RES+4*g+3}')
    a.label('main_nores')
    a('s_cmp_ge_u32 s12, 2')
    a('s_cbranch_scc1 main_att_bar')
    sig_block()
    a('s_lshr_b32 s52, s24, 1'); a(f's_mul_i32 s52, s52, {8*CST}'); a('s_add_u32 s50, s28, s52')
    a(f'v_mul_u32_u24 v{T0}, {2*CST}, v{LN}')
    poll_spin(4, a.lab('go'), d=dd('a', 0))
    a.label('main_att_bar')
    a('s_barrier')
    a.label('main_att_go')
    st('att go')
    extra = wtile_dma(False) + wB_loads(True, list(range(8))) + wB_loads(False, list(range(NW2PRE))) + touch_wqkv()
    attn(extra)
    st('att sig')
    gemmB_pre(True)
    a('s_waitcnt vmcnt(1)')
    poll_test(1, 'main_wo_go')
    poll_spin(1, 'main_wo_go', hook=sig_step)
    a('s_barrier')
    gemmB(True, tail=wB_loads(False, list(range(NW2PRE, 22))))
    a('s_cmp_eq_u32 s16, 15')
    a('s_cbranch_scc1 main_skip_ffn1')
    gemmA_pre(False)
    a('s_waitcnt vmcnt(0)')
    poll_test(1, 'main_f1_go')
    poll_spin(1, 'main_f1_go', d=dd('g', 2))
    st('ffn1 go')
    gemmA(False)
    sig_addr(3, 17)
    if 'f' in DIR:
        a('s_cmp_ge_u32 s12, 2'); a('s_cselect_b32 s97, 0, 2')
    a('s_mov_b32 s41, 1')
    a.label('main_skip_ffn1')
    gemmB_pre(False)
    st('ffn1 sig')
    a('s_cmp_ge_u32 s12, 2')
    a('s_cbranch_scc1 main_f2_bar')
    sig_block()
    poll(3, [21])
    a.label('main_f2_bar')
    a('s_barrier')
    gemmB(False, tail=wtile_dma3())
    if STAMP: a('s_waitcnt vmcnt(0)'); st('end')
    dump()
    a('s_cmp_eq_u32 s26, 1')
    a('s_cbranch_scc1 main_end')
    a('s_mov_b32 s26, 1'); a(f's_mov_b32 s27, {2*L.MB}'); a(f's_add_u32 s28, s28, {LST}')
    a('s_branch main_layer')
    a.label('main_end')
    a('s_endpgm')
    return 256, 160*1024


if __name__ == '__main__':
    p = Prog()
    cfg = gen_main(p)
    p.launches.append((KNAME, 256, *cfg))
    errs = p.a.check_branches()
    for e in errs: print('HAZARD', e, file=sys.stderr)
    txt = p.text()
    if os.environ.get('SINGLE'):
        txt = txt.replace(f'; @launch kernel={KNAME} ', '; @launch ')
    open(sys.argv[1], 'w').write(txt)
    if STAMP: open(sys.argv[1] + '.names', 'w').write('\n'.join(STAMPS))
    print('pads', p.a.pads, 'instrs', sum(1 for i in p.a.ins if i.states), file=sys.stderr)
```

```python
import sys, os
sys.path.insert(0, 'work')
from gen import *

CNT = L.FLAGS
CST = 512
FOFF = 256
CB = [0, 128, 384, 448, 512]
LST = 576 * CST
def areg(a0, n=4): return f'a[{a0}:{a0+n-1}]'
FT = 33 * 1024
WT = 3 * FT
RED = WT; PART = WT; SCR = WT + 56*1024; CNTL = WT + 55*1024
OPT = dict(bwin='12', apre='16', nb='16', bwin2='12', gs='3'); OPT.update(x.split('=') for x in os.environ.get('OPT', '').split(',') if x)
TARGET = {0: 8, 1: 8, 2: 16, 3: 15, 4: 16}
SPIN = 0x200000
STAMPS = []
K1 = 1
W2KS = 96
NSIDE = 151
WCELL = CNT + 2*LST
KNAME = 'interleave_layers__mha_block__dense_activation_mish__prompt_kernel'


def phase0(a):
    a('s_load_dwordx4 s[8:11], s[0:1], 0')
    a('s_load_dwordx4 s[20:23], s[0:1], 64')
    a('s_getpc_b64 s[60:61]')
    a.label('p0_pc')
    a('s_and_b32 s62, s2, 8'); a('s_lshl_b32 s62, s62, 12')
    a('s_sub_u32 s63, main_end-p0_pc, s62')
    a('s_add_u32 s60, s60, s62'); a('s_addc_u32 s61, s61, 0')
    a('v_lshlrev_b32 v182, 7, v0')
    a('v_min_u32 v182, s63, v182')
    a('v_mov_b32 v183, s61')
    a('v_add_co_u32 v182, vcc, s60, v182')
    a('v_addc_co_u32 v183, vcc, 0, v183, vcc')
    a('global_load_dword v184, v[182:183], off')
    a('s_load_dwordx2 s[84:85], s[0:1], 16')
    a('s_load_dwordx4 s[88:91], s[0:1], 32')
    a('s_load_dwordx2 s[86:87], s[0:1], 48')
    LN, L16, L4, T0, T1, T2, T3 = 1, 2, 3, 4, 5, 6, 7
    a(f'v_and_b32 v{LN}, 63, v0')
    a(f'v_lshrrev_b32 v{T0}, 6, v0')
    a(f'v_readfirstlane_b32 s12, v{T0}')
    a('s_and_b32 s13, s2, 7'); a('s_lshr_b32 s14, s2, 3')
    MAP = int(OPT.get('map', 0))
    if MAP == 0:
        a('s_lshl_b32 s15, s13, 2'); a('s_and_b32 s33, s14, 3'); a('s_add_u32 s15, s15, s33')
        a('s_lshr_b32 s18, s14, 2')
        a('s_add_u32 s48, s18, s13')
    else:
        a('s_lshr_b32 s15, s13, 1'); a('s_lshl_b32 s15, s15, 3'); a('s_and_b32 s33, s14, 7'); a('s_add_u32 s15, s15, s33')
        a('s_lshr_b32 s18, s14, 3')
        if MAP == 1:
            a('s_lshl_b32 s18, s18, 1'); a('s_and_b32 s33, s13, 1'); a('s_add_u32 s18, s18, s33')
        else:
            a('s_and_b32 s33, s13, 1'); a('s_lshl_b32 s33, s33, 2'); a('s_add_u32 s18, s18, s33')
        a('s_lshr_b32 s48, s14, 2'); a('s_add_u32 s48, s48, s13')
    a('s_and_b32 s48, s48, 7')
    WSL = 12288; XB = 8*WSL; XSL = 8192
    DW, DX = 8, 9
    a(f'v_lshrrev_b32 v{T0}, 3, v{LN}')
    a(f'v_and_b32 v{T1}, 7, v{LN}')
    a(f'v_bfe_u32 v{T2}, v{LN}, 4, 1')
    a(f'v_lshlrev_b32 v{T2}, 2, v{T2}')
    a(f'v_xor_b32 v{T2}, v{T1}, v{T2}')
    a(f'v_mul_u32_u24 v{DW}, 3072, v{T0}')
    a(f'v_lshl_add_u32 v{DW}, v{T2}, 4, v{DW}')
    a(f'v_lshrrev_b32 v{T2}, 4, v{LN}')
    a(f'v_xor_b32 v{T2}, v{T1}, v{T2}')
    a(f'v_lshlrev_b32 v{DX}, 10, v{T0}')
    a(f'v_lshl_add_u32 v{DX}, v{T2}, 4, v{DX}')
    a(f'v_xor_b32 v{DX+1}, 64, v{DX}')
    a(f'v_add_u32 v{DX+1}, {8*1024 - 1024}, v{DX+1}')
    a('s_mul_i32 s40, s12, 24576'); a('s_lshl_b32 s33, s18, 7'); a('s_add_u32 s40, s40, s33')
    a('s_lshl_b32 s43, s15, 16'); a('s_lshl_b32 s33, s12, 14'); a('s_add_u32 s43, s43, s33')
    a(f's_mul_i32 s33, s48, {64*3072}'); a('s_add_u32 s40, s40, s33')
    a('s_lshl_b32 s33, s48, 7'); a('s_add_u32 s43, s43, s33')
    a(f's_mov_b32 s49, {64*3072}'); a('s_movk_i32 s51, 128')
    a('s_mov_b32 s76, s18'); a('s_mov_b32 s77, s18')
    a('s_mul_i32 s44, s12, 3072'); a('s_lshl_b32 s45, s12, 11'); a(f's_add_u32 s45, s45, {XB}')
    a(f's_sub_u32 s33, s2, {int(OPT.get("clr", 64))}'); a('s_lshl_b32 s34, s33, 2'); a('s_add_u32 s34, s34, s12'); a(f's_mul_i32 s34, s34, {37*256}')
    a(f's_add_u32 s34, s34, {CNT}')
    a(f'v_min_u32 v{T0}, 36, v{LN}'); a(f'v_lshlrev_b32 v{T0}, 8, v{T0}')
    a(f'v_mov_b32 v{T1}, 0')
    if STAMP:
        a('s_memrealtime s[96:97]')
    a('s_waitcnt lgkmcnt(0)')
    if STAMP:
        STAMPS.append('p0 prek'); i_ = len(STAMPS) - 1
        a(f'v_writelane_b32 v11, s96, {2*i_+2}'); a(f'v_writelane_b32 v11, s96, {2*i_+3}')
    stp0('p0 karg')
    srd(a, 4, 22, L.WS_BYTES)
    srd(a, 28, 10, 512*1536*2)
    srd(a, 8, 8, 2*L.MB)
    a('s_cmp_lt_u32 s33, 16'); a('s_cselect_b32 s35, 1, 0')
    a('s_cbranch_scc0 p0_noclr')
    a(f'buffer_store_dword v{T1}, v{T0}, s[4:7], s34 offen sc1')
    a.label('p0_noclr')
    def dma_pair(sl):
        o = []
        o.append([f's_add_u32 m0, s45, {sl*XSL}', f's_add_u32 s46, s40, {32*3072}', f'buffer_load_dwordx4 v{DX}, s[8:11], s43 offen lds',
                  f'buffer_load_dwordx4 v{DX+1}, s[8:11], s43 offen offset:1024 lds'])
        o.append([f's_add_u32 m0, s44, {2*sl*WSL}', 's_add_u32 s48, s48, 1'] +
                 [f'buffer_load_dwordx4 v{DW}, s[28:31], s40 offen offset:{1024*u} lds' for u in range(3)])
        o.append(['s_cmp_eq_u32 s48, 8', f's_cselect_b32 s50, {(128 - 1024) & 0xffffffff}, s51', f's_cselect_b32 s52, {((64 - 512)*3072) & 0xffffffff}, s49'])
        o.append([f's_add_u32 m0, s44, {(2*sl + 1)*WSL}', 's_add_u32 s43, s43, s50'] +
                 [f'buffer_load_dwordx4 v{DW}, s[28:31], s46 offen offset:{1024*u} lds' for u in range(3)] + ['s_add_u32 s40, s40, s52'])
        return o
    def run(gs):
        for g in gs:
            for t in g: a(t)
    TCH = int(OPT.get('tch', 1))
    if TCH == 1:
        a('s_lshl_b32 s33, s2, 2'); a('s_add_u32 s33, s33, s12'); a('s_mul_i32 s33, s33, 1536')
        a(f'v_lshlrev_b32 v185, 7, v{LN}')
        a('s_mov_b64 exec, 0xfff')
        a('buffer_load_dword v187, v185, s[28:31], s33 offen')
        a('s_mov_b64 exec, -1')
    def touch_all():
        a('s_lshl_b32 s33, s14, 2'); a('s_add_u32 s33, s33, s12')
        a('s_lshl_b32 s34, s33, 11'); a('s_lshl_b32 s53, s13, 18'); a('s_add_u32 s34, s34, s53')
        a('s_mul_i32 s33, s33, 12288'); a('s_add_u32 s53, s33, 8192')
        a(f'v_lshlrev_b32 v185, 7, v{LN}')
        a('buffer_load_dword v187, v185, s[28:31], s33 offen')
        a('s_mov_b64 exec, 0xffffffff')
        a('buffer_load_dword v186, v185, s[28:31], s53 offen')
        a('s_mov_b64 exec, 0xffff')
        a('buffer_load_dword v188, v185, s[8:11], s34 offen')
        a('s_mov_b64 exec, -1')
    if TCH == 2: touch_all()
    run(dma_pair(0))
    if TCH == 3: touch_all()
    stp0('p0 dma0')
    srd(a, 20, 20, 256)
    if int(OPT.get('tlb', 0)):
        a(f'v_lshlrev_b32 v185, 21, v{LN}'); a(f'v_min_u32 v185, {CNT}, v185')
        a('buffer_load_dword v186, v185, s[4:7], 0 offen')
        a(f'buffer_load_dword v187, v{T1}, s[20:23], 0 offen offset:192')
    run(dma_pair(1))
    a(f'v_lshlrev_b32 v{L16}, 4, v{LN}')
    a(f'v_lshlrev_b32 v{L4}, 2, v{LN}')
    a('s_lshr_b32 s19, s12, 1'); a('s_and_b32 s24, s12, 1'); a('s_xor_b32 s25, s19, s24')
    RW = 66
    a(f'v_lshrrev_b32 v{T0}, 5, v{LN}'); a(f'v_mul_u32_u24 v{T0}, 3072, v{T0}')
    a(f'v_bfe_u32 v{T1}, v{LN}, 2, 2'); a(f'v_lshl_add_u32 v{RW}, v{T1}, 7, v{T0}')
    a(f'v_bfe_u32 v{T1}, v{LN}, 3, 1'); a(f'v_xor_b32 v{T1}, s24, v{T1}'); a(f'v_lshl_add_u32 v{RW}, v{T1}, 6, v{RW}')
    a(f'v_bfe_u32 v{T1}, v{LN}, 4, 1'); a(f'v_lshl_add_u32 v{RW}, v{T1}, 5, v{RW}')
    a(f'v_and_b32 v{T1}, 3, v{LN}'); a(f'v_lshl_add_u32 v{RW}, v{T1}, 3, v{RW}')
    a('s_mul_i32 s33, s25, 6144'); a('s_sub_u32 s34, 6144, s33')
    a(f'v_add_u32 v{RW+1}, s34, v{RW}'); a(f'v_add_u32 v{RW}, s33, v{RW}')
    a(f'v_add_u32 v70, {4*WSL}, v{RW}'); a(f'v_add_u32 v71, {4*WSL}, v{RW+1}')
    RX = 12
    a(f'v_and_b32 v{T0}, 31, v{LN}'); a(f'v_lshlrev_b32 v{T1}, 7, v{T0}')
    a(f'v_bfe_u32 v{T2}, v{LN}, 1, 3'); a(f'v_lshrrev_b32 v{T3}, 5, v{LN}'); a(f'v_xor_b32 v{T2}, v{T2}, v{T3}')
    a(f'v_lshl_add_u32 v{T1}, v{T2}, 4, v{T1}')
    a('s_lshl_b32 s33, s25, 5'); a(f'v_xor_b32 v{T1}, s33, v{T1}')
    a('s_lshl_b32 s33, s19, 12'); a(f's_add_u32 s33, s33, {XB}')
    a(f'v_add_u32 v{RX}, s33, v{T1}')
    for q in range(1, 4): a(f'v_xor_b32 v{RX+q}, {32*q}, v{RX}')
    STV = 16; RS, RQ = 68, 69; XE = 72; WE = 192
    FRG = [192, 128]
    ACC = [80 + 16*i for i in range(3)]
    S1, S2, CS, ONE, AV = 32, 33, 34, 37, 38
    for r_ in range(S1, CS + 3): a(f'v_mov_b32 v{r_}, 0')
    a(f'v_mov_b32 v{ONE}, {ONES}')
    SUMS = 48; OA_ = 44
    M16 = 'v_mfma_f32_16x16x32_bf16'
    a(f'v_and_b32 v{T0}, 31, v{LN}')
    a(f'v_cmp_eq_u32 vcc, 0, v{T0}'); a(f'v_cmp_eq_u32 s[60:61], 17, v{T0}'); a('s_or_b64 vcc, vcc, s[60:61]')
    for r_ in range(4): a(f'v_cndmask_b32 v{OA_+r_}, 0, v{ONE}, vcc')

    SD, SR = 40, 41
    EARLY = int(OPT.get('early', 1))
    def side_params():
        a('s_and_b32 s26, s2, 0xf0'); a('s_lshl_b32 s33, s13, 1'); a('s_add_u32 s26, s26, s33'); a('s_and_b32 s33, s14, 1'); a('s_add_u32 s26, s26, s33')
        SROT = int(OPT.get('srot', 128))
        a(f's_add_u32 s26, s26, {SROT}'); a('s_and_b32 s26, s26, 255')
        a('s_mov_b32 s95, 0x00020000')
        a('s_lshl_b32 s71, s12, 13'); a(f's_add_u32 s71, s71, {XB + 4*XSL}')
        a(f'v_lshrrev_b32 v{T0}, 5, v{LN}'); a(f'v_lshlrev_b32 v{T0}, 2, v{T0}')
        a(f'v_bfe_u32 v{T2}, v{LN}, 2, 2'); a(f'v_add_u32 v{T0}, v{T0}, v{T2}')
        a(f'v_bfe_u32 v{T2}, v{LN}, 4, 1'); a(f'v_lshlrev_b32 v{T2}, 5, v{T2}')
        a(f'v_and_b32 v{T1}, 3, v{LN}'); a(f'v_lshl_add_u32 v{T2}, v{T1}, 3, v{T2}')
        a('s_cmp_ge_u32 s26, 44'); a('s_cbranch_scc1 p0_rows')
        a('s_mov_b32 s92, s88'); a('s_mov_b32 s93, s89'); a(f's_mov_b32 s94, {512*1376*2}'); a('s_mov_b32 s65, 2')
        a('s_mov_b32 s68, s26')
        a(f's_mul_i32 s70, s68, {FT}'); a(f's_add_u32 s70, s70, {L.W1F}')
        a('s_lshl_b32 s66, s12, 13'); a('s_add_u32 s66, s66, s70'); a('s_movk_i32 s72, 1024')
        a(f's_mov_b32 s73, {16*2752}'); a(f's_mul_i32 s67, s12, {128*2752}'); a('s_lshl_b32 s33, s68, 6'); a('s_add_u32 s67, s67, s33')
        a(f'v_lshrrev_b32 v{SD}, 2, v{LN}'); a(f'v_mul_u32_u24 v{SD}, 2752, v{SD}'); a(f'v_lshl_add_u32 v{SD}, v{T1}, 4, v{SD}')
        a(f'v_lshl_add_u32 v{SR}, v{T0}, 6, v{T2}'); a(f'v_add_u32 v{SR}, s71, v{SR}')
        a('s_branch p0_prm')
        a.label('p0_rows')
        a('s_mov_b32 s65, 0'); a('s_mov_b32 s69, 0')
        a('s_mov_b32 s92, s28'); a('s_mov_b32 s93, s29'); a(f's_mov_b32 s94, {512*1536*2}')
        a('s_sub_u32 s68, s26, 44'); a('s_lshr_b32 s69, s68, 4'); a('s_and_b32 s68, s68, 15')
        a('s_movk_i32 s73, 3072'); a(f's_mov_b32 s72, {L.KSX*1024}'); a(f's_mov_b32 s70, {L.WQKVF}')
        a('s_cmp_lt_u32 s26, 92'); a('s_cbranch_scc1 p0_rows2')
        a('s_mov_b32 s92, s84'); a('s_mov_b32 s93, s85'); a(f's_mov_b32 s94, {512*512*2}'); a('s_mov_b32 s69, 0')
        a('s_movk_i32 s73, 1024'); a(f's_mov_b32 s72, {32*1024}'); a(f's_mov_b32 s70, {L.WOF}')
        a('s_cmp_lt_u32 s26, 108'); a('s_cbranch_scc1 p0_rows2')
        a('s_mov_b32 s92, s86'); a('s_mov_b32 s93, s87'); a(f's_mov_b32 s94, {1376*512*2}')
        a('s_sub_u32 s68, s26, 108'); a(f's_mov_b32 s72, {W2KS*1024}'); a(f's_mov_b32 s70, {L.W2F}')
        a(f's_cmp_ge_u32 s26, {NSIDE}'); a('s_cselect_b32 s94, 0, s94')
        a.label('p0_rows2')
        a('s_lshl_b32 s33, s68, 2'); a('s_add_u32 s33, s33, s12'); a('s_lshl_b32 s33, s33, 3'); a('s_mul_i32 s67, s33, s73')
        a('s_lshl_b32 s33, s69, 10'); a('s_add_u32 s67, s67, s33')
        a('s_lshl_b32 s33, s69, 1'); a('s_add_u32 s33, s33, s24'); a('s_lshl_b32 s33, s33, 3'); a('s_mul_i32 s66, s33, s72')
        a('s_lshl_b32 s33, s68, 1'); a('s_add_u32 s33, s33, s19'); a('s_lshl_b32 s33, s33, 10'); a('s_add_u32 s66, s66, s33'); a('s_add_u32 s66, s66, s70')
        a(f'v_mov_b32 v{SD}, v{L16}')
        a('s_lshl_b32 s33, s19, 14'); a('s_lshl_b32 s34, s24, 9'); a('s_add_u32 s33, s33, s34'); a(f's_add_u32 s33, s33, {XB + 4*XSL}')
        a(f'v_lshl_add_u32 v{SR}, v{T0}, 10, v{T2}'); a(f'v_add_u32 v{SR}, s33, v{SR}')
        a.label('p0_prm')
        a('s_and_b32 s93, s93, 0xffff')
    def side_dma():
        return [[f's_add_u32 m0, s71, {i*1024}', 's_nop 0', f'buffer_load_dwordx4 v{SD}, s[92:95], s67 offen lds', 's_add_u32 s67, s67, s73'] for i in range(8)]
    def reads(sl):
        F = FRG[sl % 2]; o = []
        for j in range(4):
            h, s_ = divmod(j, 2)
            o.append(f'ds_read_b128 {v(F+16*j,4)}, v{RX + j} offset:{sl*XSL}')
            ad = (RW if sl < 2 else 70) + s_
            for u in range(3):
                r = F + 16*j + 4 + 4*u; off = (2*(sl % 2) + h)*WSL + u*1024
                o.append(f'ds_read_b64_tr_b16 {v(r,2)}, v{ad} offset:{off}')
                o.append(f'ds_read_b64_tr_b16 {v(r+2,2)}, v{ad} offset:{off+512}')
        return o
    def mf(f, xf, wf, first):
        cc = '0' if first else v(ACC[f], 16)
        if f == 2: a(f'{MFMA} {v(ACC[f],16)}, {xf}, {wf}, {cc}')
        else: a(f'{MFMA} {v(ACC[f],16)}, {wf}, {xf}, {cc}')
    side_params()
    if int(OPT.get('stch', 0)):
        a(f'v_lshrrev_b32 v185, 3, v{LN}'); a('v_mul_lo_u32 v185, v185, s73'); a(f'v_and_b32 v186, 7, v{LN}'); a('v_lshl_add_u32 v185, v186, 7, v185')
        a(f'v_mul_u32_u24 v186, 2752, v{LN}')
        a('s_cmp_eq_u32 s65, 0'); a('s_cselect_b64 vcc, -1, 0'); a(f's_cselect_b32 s33, 0, {64*2752}'); a('s_add_u32 s33, s33, s67')
        a('v_cndmask_b32 v185, v186, v185, vcc')
        a('buffer_load_dword v188, v185, s[92:95], s67 offen')
        a('buffer_load_dword v189, v185, s[92:95], s33 offen')
    run(dma_pair(2))
    stp0('p0 setup')
    a(f's_waitcnt vmcnt({16 + 2*int(OPT.get("stch", 0))})')
    a('s_barrier')
    stp0('p0 first')
    for t in reads(0): a(t)
    SC0 = 8192; CA = 42
    def rec(f):
        o = []
        f(o.append)
        return o
    def tail_pre(a):
        a(f's_mov_b32 s10, {2*L.MB}')
        a('s_lshl_b32 s17, s15, 1'); a('s_add_u32 s17, s17, s19')
        a('s_lshl_b32 s16, s18, 1'); a('s_add_u32 s16, s16, s24')
        a('s_lshl_b32 s76, s76, 1'); a('s_add_u32 s76, s76, s24'); a('s_lshl_b32 s77, s77, 1'); a('s_add_u32 s77, s77, s24')
        a('s_lshl_b32 s33, s17, 10')
        a('s_lshl_b32 s56, s16, 17'); a('s_add_u32 s56, s56, s33'); a('s_add_u32 s57, s56, 0x10000')
        a('s_lshl_b32 s58, s76, 17'); a('s_add_u32 s58, s58, s33'); a(f's_add_u32 s58, s58, {L.K[0]}'); a('s_add_u32 s59, s58, 0x10000')
        a('s_lshl_b32 s54, s77, 17'); a('s_add_u32 s54, s54, s33'); a(f's_add_u32 s54, s54, {L.V[0]}')
        a(f'v_bfe_u32 v78, v{LN}, 4, 1'); a('v_lshlrev_b32 v78, 16, v78')
        a(f'v_lshrrev_b32 v79, 5, v{LN}'); a('v_lshl_add_u32 v78, v79, 8, v78')
        a(f'v_and_b32 v79, 15, v{LN}'); a('v_lshl_add_u32 v78, v79, 4, v78')
        a(f'v_and_b32 v{T3}, 124, v{L4}')
        a('s_xor_b32 s33, s12, 1'); a('s_mul_i32 s33, s33, 3072'); a(f'v_add_u32 v{T1}, s33, v{T3}')
        a('s_xor_b32 s33, s12, 2'); a('s_mul_i32 s33, s33, 3072'); a(f'v_add_u32 v{T2}, s33, v{T3}')
        a(f'v_add_u32 v{T0}, s44, v{L4}')
        a('s_add_u32 s33, s44, 1024')
        a(f'v_add_u32 v76, s33, v{L4}')
        a(f'v_lshrrev_b32 v77, 5, v{LN}'); a('v_lshlrev_b32 v77, 4, v77'); a('v_add_u32 v77, s33, v77')
        a(f'v_cmp_gt_u32 vcc, 32, v{LN}')
        a('s_lshr_b32 s42, s17, 4'); a('s_lshl_b32 s42, s42, 1')
        a('s_and_b32 s33, s17, 1'); a('s_add_u32 s42, s42, s33'); a(f's_mul_i32 s42, s42, {CST}'); a(f's_add_u32 s42, s42, {CNT}')
        a(f's_mul_i32 s33, s16, {8*CST}'); a(f'v_mov_b32 v{CA}, s33')
    def tail_comb(a):
        a(f'v_add_f32 v{S1}, v{S1}, v{S2}')
        a(f'ds_write_b32 v{T0}, v{S1} offset:512')
        a('s_mov_b64 exec, 0xffff')
        for u in range(4): a(f'ds_write2_b32 v{T0}, v{SUMS+4*u}, v{SUMS+4*u+1} offset0:{32*u} offset1:{32*u+16}')
        a('s_mov_b64 exec, -1')
        a(f'v_add_u32 v{T0}, s44, v{T3}')
        a('s_waitcnt lgkmcnt(0)')
        a('s_barrier')
        a(f'ds_read_b32 v{STV}, v{T0} offset:384'); a(f'ds_read_b32 v{STV+2}, v{T1} offset:384')
        a(f'ds_read2_b32 {v(STV+4,2)}, v{T0} offset0:128 offset1:160'); a(f'ds_read2_b32 {v(STV+6,2)}, v{T1} offset0:128 offset1:160')
        for u in range(3):
            a(f'ds_read_b32 v{CS+u}, v{T0} offset:{128*u}')
            a(f'ds_read_b32 v{48+u}, v{T2} offset:{128*u}')
        a('s_waitcnt lgkmcnt(6)')
        a(f'v_add_f32 v{STV}, v{STV}, v{STV+2}')
        a(f'v_add_f32 v{STV+4}, v{STV+4}, v{STV+5}'); a(f'v_add_f32 v{STV+6}, v{STV+6}, v{STV+7}'); a(f'v_add_f32 v{STV+1}, v{STV+4}, v{STV+6}')
        a(f'v_mul_f32 v{STV}, {f32(-1.0/512)}, v{STV}')
        a(f'v_mul_f32 v{STV+1}, {f32(1.0/512)}, v{STV+1}')
        a(f'v_fma_f32 v{STV+1}, -v{STV}, v{STV}, v{STV+1}')
        a(f'v_max_f32 v{STV+1}, 0, v{STV+1}')
        a(f'v_add_f32 v{STV+1}, {f32(1e-5)}, v{STV+1}')
        a(f'v_rsq_f32 v{RS}, v{STV+1}')
        MH, MM, ML, TT = STV+2, STV+3, STV+4, STV+8
        split3(a, STV, MH, MM, ML, TT)
        a(f'ds_write_b32 v76, v{RS}')
        pack_hi(a, XE, MH, MM)
        a(f'v_lshrrev_b32 v{XE+1}, 16, v{ML}'); a(f'v_mov_b32 v{XE+2}, 0'); a(f'v_lshrrev_b32 v{XE+3}, 16, v{MH}')
        a(f'v_mul_f32 v{RQ}, {f32(L.QSCALE)}, v{RS}')
        for j in range(4): a(f'ds_read_b128 {v(STV+4*j,4)}, v77 offset:{32*j}')
        a('s_waitcnt lgkmcnt(5)')
        for u in (1, 2, 0):
            c_ = CS + u; W_ = WE + 4*u; HI, MID, LO, TQ = 44, 45, 46, 47
            a(f'v_add_f32 v{c_}, v{c_}, v{48+u}')
            split3(a, c_, HI, MID, LO, TQ)
            a(f'v_lshrrev_b32 v{W_+1}, 16, v{HI}'); a(f'v_or_b32 v{W_}, v{W_+1}, v{HI}')
            a(f'v_lshrrev_b32 v{W_+3}, 16, v{MID}')
            pack_hi(a, TQ, LO, MID)
            a(f'v_cndmask_b32 v{W_}, v{TQ}, v{W_}, vcc')
            a(f'v_cndmask_b32 v{W_+1}, 0, v{W_+1}, vcc')
            a(f'v_mov_b32 v{W_+2}, 0')
            a(f'v_cndmask_b32 v{W_+3}, 0, v{W_+3}, vcc')
    def singles(gs):
        out = []; cur = []
        for g in gs:
            for t in g:
                cur.append(t)
                if t.startswith('buffer'): out.append(cur); cur = []
        out[-1] += cur
        return out
    S0 = int(OPT.get('s0', 2))
    sd = side_dma()
    nis = 24; endof = {0: 8, 1: 16, 2: 24}
    masked = False
    for it in range(8):
        sl = it % 4
        if it + 1 < 8:
            a(f's_waitcnt vmcnt({nis - endof[it + 1]}) lgkmcnt(0)')
            a('s_barrier')
            q = reads((it + 1) % 4)
        else:
            a('s_waitcnt lgkmcnt(0)')
            q = []
        dp = []
        if it + 3 < 8: dp = singles(dma_pair((it + 3) % 4))
        nis += len(dp); endof[it + 3] = nis
        if it >= S0 and sd:
            ex = [sd.pop(0), sd.pop(0)]
            dp = dp + ex; nis += 2
        F = FRG[sl % 2]
        xq = rec(tail_pre) if it == 6 else []
        if it == 7:
            for r_ in range(4):
                a(f'v_dot2_f32_bf16 v{S1}, v{F+r_}, v{F+r_}, v{S1}')
                a(f'v_dot2_f32_bf16 v{S2}, v{F+32+r_}, v{F+32+r_}, v{S2}')
            for j in range(4):
                if j % 2:
                    for f in range(3): a(f'{M16} {v(SUMS+4*f,4)}, {v(OA_,4)}, {v(F+16*j+4+4*f,4)}, {v(SUMS+4*f,4)}')
                else: a(f'{M16} {v(SUMS+12,4)}, {v(OA_,4)}, {v(F+16*j,4)}, {v(SUMS+12,4)}')
            xq = rec(tail_comb)
            for n in range(12):
                j, f = divmod(n, 3)
                mf(f, v(F+16*j, 4), v(F+16*j+4+4*f, 4), False)
                if n == 0: continue
                cnt = 0
                while xq and (cnt < 8 or masked):
                    t = xq.pop(0); a(t); cnt += 1
                    if 'exec' in t: masked = '-1' not in t
                    if t.startswith(('s_waitcnt', 's_barrier')) and not masked and cnt > 2: break
                    if xq and xq[0].startswith('s_waitcnt') and not masked: break
            for t in xq: a(t)
            continue
        for n in range(12):
            j, f = divmod(n, 3)
            mf(f, v(F+16*j, 4), v(F+16*j+4+4*f, 4), it == 0 and j == 0)
            for _ in range(5):
                if xq: a(xq.pop(0))
            for _ in range(3 if n < 4 else 2):
                if q: a(q.pop(0))
            if dp and n not in ((0, 3, 6, 9) if len(dp) <= 11 - n - (11 - n)//3 else (0,)):
                for t in dp.pop(0): a(t)
            z_ = lambda r: '0' if (it == 0 and j < 2) else v(r, 4)
            if j % 2 == 1: a(f'{M16} {v(SUMS+4*f,4)}, {v(OA_,4)}, {v(F+16*j+4+4*f,4)}, {z_(SUMS+4*f)}')
            elif f == 1: a(f'{M16} {v(SUMS+12,4)}, {v(OA_,4)}, {v(F+16*j,4)}, {z_(SUMS+12)}')
            if n == 0 and it in (0, 3):
                a('s_cmp_eq_u32 s35, 0'); a(f's_cbranch_scc0 p0_clr{it}')
                a.label(f'p0_back{it}')
        assert not q and not dp and not xq
        for r_ in range(4):
            a(f'v_dot2_f32_bf16 v{S1}, v{F+r_}, v{F+r_}, v{S1}')
            a(f'v_dot2_f32_bf16 v{S2}, v{F+32+r_}, v{F+32+r_}, v{S2}')
        if it == 3: stp0('p0 trip0')
    a('s_branch p0_after')
    a.label('p0_clr0')
    a('s_cmp_lg_u32 s12, 0'); a('s_cbranch_scc1 p0_back0')
    a('s_mov_b64 exec, 1'); a(f'v_mov_b32 v{AV}, 1')
    a(f'buffer_atomic_add v{AV}, v{L4}, s[20:23], 0 offen sc0 sc1')
    a('s_mov_b64 exec, -1')
    a('s_branch p0_back0')
    a.label('p0_clr3')
    a('s_cmp_lg_u32 s12, 0'); a('s_cbranch_scc1 p0_back3')
    a(f'v_readfirstlane_b32 s33, v{AV}')
    a('s_cmp_lg_u32 s33, 15'); a('s_cbranch_scc1 p0_back3')
    a('s_mov_b64 exec, 1'); a(f'v_mov_b32 v{AV}, 1')
    a(f'buffer_store_dword v{AV}, v{L4}, s[20:23], 0 offen offset:128 sc1')
    a('s_mov_b64 exec, -1')
    a('s_branch p0_back3')
    a.label('p0_after')
    stp0('p0 loop')
    for u in (1, 2, 0): mf(u, v(XE, 4), v(WE + 4*u, 4), False)
    a('s_cmp_lg_u32 s17, 0'); a('s_cbranch_scc1 p0_nowe')
    for u in range(3):
        a(f's_mul_i32 s33, s{(16, 76, 77)[u]}, {FT}'); a(f's_add_u32 s33, s33, {L.WQKVF + 32*1024 + 16*u*FT}')
        a(f'buffer_store_dwordx4 {v(WE+4*u,4)}, v{L16}, s[4:7], s33 offen sc1')
    a.label('p0_nowe')
    a('s_mov_b64 exec, 1')
    a(f'buffer_load_dword v{AV+1}, v{L4}, s[20:23], 0 offen offset:128 sc1')
    a('s_mov_b64 exec, -1')
    a('s_waitcnt lgkmcnt(0)')
    for f in (1, 2, 0):
        A = ACC[f]
        for g in range(2):
            B = A + 8*g
            for r_ in range(0, 8, 2):
                if f < 2:
                    o = 1 if f == 0 else 0
                    a(f'v_pk_mul_f32 {v(B+r_,2)}, {v(B+r_,2)}, {v(RS,2)} op_sel:[0,{o}] op_sel_hi:[1,{o}]')
                else:
                    a(f'v_pk_mul_f32 {v(B+r_,2)}, {v(B+r_,2)}, {v(STV+8*g+r_,2)}')
            for r_ in range(4): a(f'v_cvt_pk_bf16_f32 v{B+r_}, v{B+2*r_}, v{B+2*r_+1}')
            if f < 2: a(f'buffer_store_dwordx4 {v(B,4)}, v{L16}, s[4:7], s{56+2*f+g} offen sc1')
            else: a(f'buffer_store_dwordx4 {v(B,4)}, v78, s[4:7], s54 offen offset:{512*g} sc1')
    a(f'v_and_b32 v{T0}, 27, v{LN}')
    a(f'v_cmp_eq_u32 vcc, 16, v{T0}')
    a(f'v_cndmask_b32 v96, 0, v{ONE}, vcc'); a(f'v_cndmask_b32 v97, 0, v{ONE}, vcc')
    for r_ in range(2, 128, 2): a(f'v_pk_mov_b32 {v(96+r_,2)}, {v(96,2)}, {v(96,2)}')
    FR = 224
    a('s_waitcnt vmcnt(6)')
    a('s_mov_b32 s34, 0')
    a.label('p0_clr_poll')
    a(f'v_readfirstlane_b32 s33, v{AV+1}')
    a('s_cmp_eq_u32 s33, 1'); a('s_cbranch_scc1 p0_clr_ok')
    a('s_sleep 2')
    a('s_mov_b64 exec, 1')
    a(f'buffer_load_dword v{AV+1}, v{L4}, s[20:23], 0 offen offset:128 sc1')
    a('s_mov_b64 exec, -1')
    a('s_add_u32 s34, s34, 1')
    a('s_waitcnt vmcnt(0)')
    a(f's_cmp_lt_u32 s34, {SPIN}'); a('s_cbranch_scc1 p0_clr_poll')
    a.label('p0_clr_ok')
    a('s_waitcnt vmcnt(0)')
    a('s_mov_b64 exec, 1'); a(f'v_mov_b32 v{AV}, 1')
    a(f'buffer_atomic_add v{AV}, v{CA}, s[4:7], s42 offen sc0 sc1')
    a('s_mov_b64 exec, -1')
    stp0('p0 sig')
    FEARLY = int(OPT.get('fearly', 1))
    a(f's_cmp_ge_u32 s26, {NSIDE}'); a('s_cbranch_scc1 ' + ('p0_rd3' if FEARLY else 'p0_noside'))
    a('s_barrier')
    a('s_cmp_eq_u32 s65, 0'); a('s_cbranch_scc1 p0_rd2')
    for i in range(8):
        a(f'ds_read_b64_tr_b16 {v(FR+4*i,2)}, v{SR} offset:{i*1024}')
        a(f'ds_read_b64_tr_b16 {v(FR+4*i+2,2)}, v{SR} offset:{i*1024+512}')
    a('s_branch p0_rd3')
    a.label('p0_rd2')
    for i in range(8):
        a(f'ds_read_b64_tr_b16 {v(FR+4*i,2)}, v{SR} offset:{i*64}')
        a(f'ds_read_b64_tr_b16 {v(FR+4*i+2,2)}, v{SR} offset:{i*64+8192}')
    a.label('p0_rd3')
    if FEARLY:
        a('s_waitcnt vmcnt(0)')
        a(f'v_cmp_eq_u32 vcc, {TARGET[0]-1}, v{AV}')
        a('s_and_b64 vcc, vcc, 1'); a('s_cbranch_scc0 p0_notlast')
        a('s_mov_b64 exec, vcc'); a(f'v_mov_b32 v{AV}, 1')
        a(f'buffer_store_dword v{AV}, v{CA}, s[4:7], s42 offen offset:{FOFF} sc1')
        a('s_mov_b64 exec, -1')
        a.label('p0_notlast')
        a(f's_cmp_ge_u32 s26, {NSIDE}'); a('s_cbranch_scc1 p0_noside')
    a('s_waitcnt lgkmcnt(0)')
    for i in range(8):
        a(f'buffer_store_dwordx4 {v(FR+4*i,4)}, v{L16}, s[4:7], s66 offen sc1')
        a('s_add_u32 s66, s66, s72')
    a.label('p0_noside')
    a('s_cmp_eq_u32 s65, 0'); a('s_cbranch_scc1 p0_nosum')
    a(f'v_mov_b32 v{S1}, 0'); a(f'v_mov_b32 v{S2}, 0')
    for i in range(0, 32, 2):
        a(f'v_dot2_f32_bf16 v{S1}, v{FR+i}, v{ONE}, v{S1}')
        a(f'v_dot2_f32_bf16 v{S2}, v{FR+i+1}, v{ONE}, v{S2}')
    a('s_lshl_b32 s33, s12, 8'); a(f's_add_u32 s33, s33, {SC0 + 8192}')
    a(f'v_add_u32 v{T0}, s33, v{L4}')
    a(f'v_add_f32 v{S1}, v{S1}, v{S2}')
    a(f'ds_write_b32 v{T0}, v{S1}')
    a('s_waitcnt lgkmcnt(0)')
    a('s_barrier')
    a.label('p0_nosum')
    if not FEARLY:
        a(f's_cmp_ge_u32 s26, {NSIDE}'); a('s_cbranch_scc1 p0_v0')
        a('s_waitcnt vmcnt(8)')
        a('s_branch p0_v1')
        a.label('p0_v0')
        a('s_waitcnt vmcnt(0)')
        a.label('p0_v1')
        a(f'v_cmp_eq_u32 vcc, {TARGET[0]-1}, v{AV}')
        a('s_and_b64 vcc, vcc, 1'); a('s_cbranch_scc0 p0_notlast')
        a('s_mov_b64 exec, vcc'); a(f'v_mov_b32 v{AV}, 1')
        a(f'buffer_store_dword v{AV}, v{CA}, s[4:7], s42 offen offset:{FOFF} sc1')
        a('s_mov_b64 exec, -1')
        a.label('p0_notlast')
    a('s_cmp_lg_u32 s12, 3'); a('s_cbranch_scc1 p0_done')
    a(f's_cmp_ge_u32 s26, {NSIDE}'); a('s_cbranch_scc1 p0_done')
    a('s_cmp_eq_u32 s65, 0'); a('s_cbranch_scc1 p0_wsig')
    a(f'v_and_b32 v{T2}, 31, v{LN}'); a(f'v_lshlrev_b32 v{T2}, 2, v{T2}'); a(f'v_add_u32 v{T1}, {SC0+8192}, v{T2}')
    for i in range(8): a(f'ds_read_b32 v{48+i}, v{T1} offset:{128*i}')
    B = 61
    a(f'v_mov_b32 v{B}, 0')
    a('s_cmp_lg_u32 s65, 2'); a('s_cbranch_scc1 p0_nobias')
    a('s_mov_b32 s92, s90'); a('s_and_b32 s93, s91, 0xffff'); a(f's_mov_b32 s94, {1376*2}')
    a('s_lshl_b32 s33, s68, 6')
    a(f'v_lshrrev_b32 v{T3}, 1, v{T2}')
    a(f'buffer_load_ushort v{B}, v{T3}, s[92:95], s33 offen')
    a('s_waitcnt vmcnt(0)')
    a(f'v_lshlrev_b32 v{B}, 16, v{B}')
    a.label('p0_nobias')
    a('s_waitcnt lgkmcnt(0)')
    a('v_add_f32 v48, v48, v49'); a('v_add_f32 v50, v50, v51'); a('v_add_f32 v52, v52, v53'); a('v_add_f32 v54, v54, v55')
    a('v_add_f32 v48, v48, v50'); a('v_add_f32 v52, v52, v54'); a('v_add_f32 v48, v48, v52')
    HI, MID, LO = 62, 63, 64
    split3(a, 48, HI, MID, LO, 65)
    pack_hi(a, 56, HI, HI); pack_hi(a, 57, HI, B); pack_hi(a, 58, B, B)
    a(f'v_lshrrev_b32 v59, 16, v{MID}')
    pack_hi(a, 60, LO, MID)
    a(f'v_cmp_gt_u32 vcc, 32, v{LN}')
    a('v_cndmask_b32 v56, v60, v56, vcc'); a('v_cndmask_b32 v57, 0, v57, vcc')
    a('v_cndmask_b32 v58, 0, v58, vcc'); a('v_cndmask_b32 v59, 0, v59, vcc')
    a(f's_add_u32 s33, s70, {32*1024}')
    a(f'buffer_store_dwordx4 v[56:59], v{L16}, s[4:7], s33 offen sc1')
    a.label('p0_wsig')
    a('s_mov_b32 s96, 1')
    a('s_branch p0_out')
    a.label('p0_done')
    a('s_mov_b32 s96, 0')
    a.label('p0_out')

def gen_main(p):
    a = p.a
    p.entry(KNAME, 512, 256)
    a('s_cmp_ge_u32 s2, 256')
    a('s_cbranch_scc1 main_end')
    global stp0
    def stp0(name):
        if not STAMP: return
        if name not in STAMPS: STAMPS.append(name)
        i = STAMPS.index(name)
        a('s_memtime s[98:99]'); a('s_memrealtime s[100:101]'); a('s_waitcnt lgkmcnt(0)')
        a(f'v_writelane_b32 v11, s98, {2*i+2}')
        a(f'v_writelane_b32 v11, s100, {2*i+3}')
    stp0('start')
    phase0(a)
    a('s_load_dwordx2 s[88:89], s[0:1], 56')
    LN, L16, L4, T0, T1, T2, T3 = 1, 2, 3, 4, 5, 6, 7
    RES = 8
    if STAMP: a('v_mov_b32 v0, v11')
    a('s_and_b32 s13, s2, 7'); a('s_lshr_b32 s14, s2, 3')
    a('s_lshl_b32 s15, s13, 1'); a('s_and_b32 s29, s14, 1'); a('s_add_u32 s15, s15, s29')
    a('s_lshr_b32 s16, s14, 1')
    a('s_lshl_b32 s17, s15, 2'); a('s_and_b32 s29, s12, 1'); a('s_lshl_b32 s29, s29, 1'); a('s_add_u32 s17, s17, s29')
    a('s_lshr_b32 s29, s12, 1'); a('s_add_u32 s17, s17, s29')
    a('s_lshl_b32 s18, s13, 2'); a('s_and_b32 s29, s14, 3'); a('s_add_u32 s18, s18, s29')
    a('s_lshr_b32 s19, s14, 2')
    a('s_lshl_b32 s21, s18, 1'); a('s_lshr_b32 s29, s12, 1'); a('s_add_u32 s20, s21, s29')
    a('s_lshl_b32 s22, s19, 1'); a('s_and_b32 s29, s12, 1'); a('s_add_u32 s22, s22, s29'); a('s_xor_b32 s23, s22, 1')
    a('s_mov_b32 s24, s18'); a('s_mov_b32 s25, s19')
    a('s_mov_b32 s26, 0'); a('s_mov_b32 s27, 0'); a(f's_mov_b32 s28, {CNT}')
    a('s_mov_b32 s30, 0x0000ffff'); a('s_mov_b32 s31, 0x0000ffff')
    a('s_lshl_b32 s32, s20, 5'); a('s_lshl_b32 s29, s22, 1'); a('s_add_u32 s32, s32, s29'); a('s_lshl_b32 s32, s32, 10')
    a('s_mul_i32 s33, s12, 22'); a('s_mul_i32 s29, s12, 21'); a('s_add_u32 s29, s29, 1')
    a('s_cmp_ge_u32 s12, 2'); a('s_cselect_b32 s33, s29, s33')
    a('s_lshl_b32 s34, s16, 2'); a('s_lshr_b32 s29, s17, 4'); a('s_add_u32 s34, s34, s29'); a('s_lshl_b32 s34, s34, 1')
    a('s_and_b32 s29, s17, 1'); a('s_add_u32 s34, s34, s29')
    a('s_lshr_b32 s29, s24, 1'); a('s_lshl_b32 s29, s29, 2'); a('s_add_u32 s35, s29, s12'); a('s_lshl_b32 s35, s35, 1')
    a('s_lshr_b32 s36, s25, 1'); a('s_add_u32 s36, s36, s29'); a('s_lshl_b32 s36, s36, 1')
    a('s_lshl_b32 s37, s25, 2'); a('s_add_u32 s37, s37, s12'); a('s_lshl_b32 s37, s37, 3'); a('s_lshr_b32 s29, s24, 3'); a('s_add_u32 s37, s37, s29')
    a('s_lshl_b32 s38, s18, 3'); a('s_add_u32 s38, s38, s12')
    a(f'v_and_b32 v{T0}, 31, v{LN}'); a(f'v_lshlrev_b32 v{T0}, 10, v{T0}')
    a(f'v_lshrrev_b32 v{T1}, 5, v{LN}'); a(f'v_lshl_add_u32 v{T0}, v{T1}, 4, v{T0}')
    a('s_lshl_b32 s53, s20, 15'); a('s_lshl_b32 s54, s22, 6'); a('s_add_u32 s53, s53, s54')
    a(f'buffer_load_dwordx4 {v(RES,4)}, v{T0}, s[8:11], s53 offen')
    a(f'buffer_load_dwordx4 {v(RES+4,4)}, v{T0}, s[8:11], s53 offen offset:32')
    a('s_mov_b32 s41, s96'); a(f's_mov_b32 s42, {WCELL}'); a(f's_mov_b32 s69, {NSIDE-1}'); a('s_mov_b32 s97, 2')
    a('s_waitcnt lgkmcnt(0)')
    srd(a, 8, 88, 2*L.MB)

    def st(name):
        if not STAMP: return
        if name not in STAMPS: STAMPS.append(name)
        i = STAMPS.index(name)
        assert i < 31
        a('s_memtime s[98:99]'); a('s_memrealtime s[100:101]'); a('s_waitcnt lgkmcnt(0)')
        a(f'v_writelane_b32 v0, s98, {2*i+2}')
        a(f'v_writelane_b32 v0, s100, {2*i+3}')

    def run_groups(gs):
        for g in gs:
            for t in g: a(t)

    def wtile_dma(qkv):
        ftstride = (16 if qkv else 1) * FT
        pre = [f's_mul_i32 s60, s16, {(1 if qkv else 3) * FT}',
               f's_add_u32 s60, s60, {L.WQKVF if qkv else L.W1F}',
               's_lshl_b32 s64, s12, 12',
               's_add_u32 s61, s60, s64',
               's_min_u32 s65, s12, 2',
               f's_mul_i32 s66, s65, {ftstride}',
               's_add_u32 s66, s66, s60',
               f's_add_u32 s66, s66, {32*1024}',
               f's_mul_i32 s65, s65, {FT}']
        groups = [pre]
        for half in range(2):
            for j in range(3):
                g = [f's_add_u32 m0, s64, {j*FT + half*16384}',
                     f's_add_u32 s62, s61, {j*ftstride + half*16384}']
                g += [f'buffer_load_dwordx4 v{L16}, s[4:7], s62 offen offset:{1024*q} sc1 lds' for q in range(4)]
                groups.append(g)
        groups.append([f's_add_u32 m0, s65, {32*1024}', 's_nop 0', f'buffer_load_dwordx4 v{L16}, s[4:7], s66 offen sc1 lds'])
        return groups

    def wq_third(region, nw):
        ftg = (1, 2, 0)[region]
        per = 32 // nw
        groups = [[f's_mul_i32 s60, s16, {FT}', 's_and_b32 s64, s12, 1', f's_mul_i32 s64, s64, {per*1024}', 's_add_u32 s61, s60, s64',
                   f's_add_u32 s61, s61, {L.WQKVF + 16*ftg*FT}', f's_add_u32 s60, s60, {L.WQKVF + 16*ftg*FT + 32*1024}']]
        for c in range(per // 4):
            g = [f's_add_u32 m0, s64, {region*FT + c*4096}', f's_add_u32 s62, s61, {c*4096}']
            g += [f'buffer_load_dwordx4 v{L16}, s[4:7], s62 offen offset:{1024*q} sc1 lds' for q in range(4)]
            groups.append(g)
        groups.append([f's_mov_b32 m0, {region*FT + 32*1024}', 's_nop 0', f'buffer_load_dwordx4 v{L16}, s[4:7], s60 offen sc1 lds'])
        return groups

    def poll_setup(ph, idxs, add=0, prev_layer=False, out=None):
        e = out.append if out is not None else a
        o = (CB[ph] + add)*CST - (LST if prev_layer else 0)
        e(f's_add_u32 s50, s28, {o & 0xffffffff}')
        e(f's_mul_i32 s52, s{idxs[0]}, {CST}')
        e(f'v_mov_b32 v{T0}, s52')
        if len(idxs) > 1:
            e(f's_mul_i32 s52, s{idxs[1]}, {CST}')
            e(f'v_writelane_b32 v{T0}, s52, 1')
    DIR = OPT.get('dir', 'wfq')
    def poll_load(n, d=0):
        a(f's_mov_b64 exec, {(1 << n) - 1}')
        a(f'buffer_load_dword v{T1}, v{T0}, s[4:7], s50 offen offset:{0 if d else FOFF} sc1')
        a('s_mov_b64 exec, -1')
    def poll_test(n, go, d=0):
        a(f's_mov_b64 exec, {(1 << n) - 1}')
        a(f'v_cmp_gt_u32 vcc, {d if d else 1}, v{T1}')
        a('s_mov_b64 exec, -1')
        a('s_cmp_eq_u64 vcc, 0')
        a(f's_cbranch_scc1 {go}')
    def poll_spin(n, go, hook=None, d=0):
        lp = a.lab('poll')
        a('s_mov_b32 s51, 0')
        a.label(lp)
        poll_load(n, d)
        a('s_add_u32 s51, s51, 1')
        a('s_waitcnt vmcnt(0)')
        if hook: hook()
        poll_test(n, go, d)
        a(f's_cmp_lt_u32 s51, {SPIN}')
        a(f's_cbranch_scc1 {lp}')
        a.label(go)
    def dd(tag, ph): return TARGET[ph] if tag in DIR else 0
    def poll(ph, idxs, add=0, prev_layer=False, d=0):
        poll_setup(ph, idxs, add, prev_layer)
        poll_spin(len(idxs), a.lab('go'), d=d)
    def sig_addr(ph, idx, add=0, out=None, la=2):
        e = out.append if out is not None else a
        e(f's_mul_i32 s42, s{idx}, {CST}')
        e('s_add_u32 s42, s42, s28')
        e(f's_add_u32 s42, s42, {(CB[ph] + add)*CST}')
        e(f's_mov_b32 s69, {TARGET[ph]-1}')
        e(f's_mov_b32 s97, {la}')
    def sig_atomic():
        a('s_mov_b64 exec, 1')
        a('v_mov_b32 v0, 1')
        a(f'buffer_atomic_add v0, v{L4}, s[4:7], s42 offen sc0 sc1')
        a('s_mov_b64 exec, -1')
    def sig_finish(ph=None):
        sk = a.lab('notlast')
        a('v_readfirstlane_b32 s52, v0')
        a('s_cmp_lg_u32 s52, s69')
        a(f's_cbranch_scc1 {sk}')
        a('s_mov_b64 exec, 1')
        a('v_mov_b32 v0, 1')
        a(f'buffer_store_dword v0, v{L4}, s[4:7], s42 offen offset:{FOFF} sc1')
        a('s_mov_b64 exec, -1')
        a.label(sk)
    def signal(ph, idx, add=0):
        sig_addr(ph, idx, add)
        a('s_waitcnt vmcnt(0)')
        sig_atomic()
        a('s_waitcnt vmcnt(0)')
        sig_finish(ph)

    def gemmA_pre(qkv):
        xi0 = 0 if qkv else 1
        stsz = L.ST[1] - L.ST[0]
        a('s_lshl_b32 s47, s17, 15'); a('s_lshl_b32 s29, s27, 1'); a('s_add_u32 s47, s47, s29'); a(f's_add_u32 s47, s47, {L.X[xi0]}')
        a('s_lshl_b32 s48, s17, 12'); a(f's_mul_i32 s29, s26, {2*stsz}'); a('s_add_u32 s48, s48, s29'); a(f's_add_u32 s48, s48, {L.ST[xi0]}')
        a('s_lshl_b32 s55, s12, 10'); a(f's_add_u32 s55, s55, {SCR + 1024}')
        a(f'v_add_u32 v64, s55, v{L16}')
        a(f'v_add_u32 v65, s55, v{L4}')
        a(f'v_add_u32 v70, {FT}, v{L16}')
        a(f'v_add_u32 v71, {2*FT}, v{L16}')
        if qkv:
            a('s_lshl_b32 s56, s16, 17'); a('s_lshl_b32 s57, s17, 10'); a('s_add_u32 s56, s56, s57'); a('s_add_u32 s56, s56, s27')
            a('s_add_u32 s57, s56, 0x10000')
            a(f's_add_u32 s58, s56, {L.K[0]}'); a(f's_add_u32 s59, s57, {L.K[0]}')
            a(f's_add_u32 s54, s56, {L.V[0]}')
            a('s_lshl_b32 s55, s12, 8'); a(f's_add_u32 s55, s55, {SCR}')
            a(f'v_add_u32 v76, s55, v{L4}')
            a(f'v_lshrrev_b32 v77, 5, v{LN}'); a('v_lshlrev_b32 v77, 4, v77'); a('v_add_u32 v77, s55, v77')
            a(f'v_bfe_u32 v78, v{LN}, 4, 1'); a('v_lshlrev_b32 v78, 16, v78')
            a(f'v_lshrrev_b32 v79, 5, v{LN}'); a('v_lshl_add_u32 v78, v79, 8, v78')
            a(f'v_and_b32 v79, 15, v{LN}'); a('v_lshl_add_u32 v78, v79, 4, v78')
        else:
            actsz = L.ACT[1] - L.ACT[0]
            a('s_mul_i32 s56, s17, 86'); a('s_mul_i32 s57, s16, 6'); a('s_add_u32 s56, s56, s57')
            a('s_lshl_b32 s56, s56, 10'); a(f's_mul_i32 s57, s26, {actsz}'); a('s_add_u32 s56, s56, s57')
            a(f's_add_u32 s56, s56, {L.ACT[0]}'); a('s_add_u32 s57, s56, 4096')
            a('s_cmp_eq_u32 s16, 14')
            a(f's_cselect_b32 s29, {64*L.MB}, 0')
            a('s_add_u32 s58, s56, s29'); a('s_add_u32 s57, s57, s29')
            a(f'v_mov_b32 v67, {CNTL}'); a('v_mov_b32 v79, 1')

    def gemmA(qkv, first_sync=None):
        tag = 'qkv' if qkv else 'ffn1'
        RS, RQ = 68, 69
        WA = [71, L16, 70] if qkv else [L16, 70, 71]
        XE = 72
        STV = 16
        WS = [32 + 4*i for i in range(8)]
        ACC = [80 + 16*i for i in range(3)]
        XF = 128
        fa, fb, fc = (1, 2, 0) if qkv else (0, 1, 2)
        nvm = [0]; at = {}
        def xload(i):
            a(f'buffer_load_dwordx4 {v(XF+4*i,4)}, v{L16}, s[4:7], s47 offen offset:{1024*(i%4)} sc1'); nvm[0] += 1
            if i % 4 == 3: a('s_add_u32 s47, s47, 4096')
            at[i] = nvm[0]
        PRE = int(OPT['apre'])
        for i in range(6): xload(i)
        for i in range(4):
            a(f'buffer_load_dwordx4 {v(STV+4*i,4)}, v{L16}, s[4:7], s48 offen offset:{1024*i} sc1'); nvm[0] += 1
        for i in range(6, PRE): xload(i)
        if first_sync: first_sync(nvm[0])
        sv = []
        for stp in (8, 4):
            for i in range(stp): sv.append(f'v_add_f32 v{STV+i}, v{STV+i}, v{STV+i+stp}')
        sv.append(f'ds_write_b128 v64, {v(STV,4)}')
        sv.append(f'ds_read2_b32 {v(STV+4,2)}, v65 offset0:0 offset1:64')
        sv.append(f'ds_read2_b32 {v(STV+6,2)}, v65 offset0:128 offset1:192')
        sv.append('WAITDS')
        sv.append(f'v_add_f32 v{STV+4}, v{STV+4}, v{STV+5}')
        sv.append(f'v_add_f32 v{STV+6}, v{STV+6}, v{STV+7}')
        sv.append(f'v_add_f32 v{STV}, v{STV+4}, v{STV+6}')
        sv.append(f'v_mov_b32 v{STV+1}, v{STV}')
        sv.append(f'v_permlane32_swap_b32 v{STV}, v{STV+1}')
        sv.append(f'v_mul_f32 v{STV}, {f32(-1.0/512)}, v{STV}')
        sv.append(f'v_mul_f32 v{STV+1}, {f32(1.0/512)}, v{STV+1}')
        sv.append(f'v_fma_f32 v{STV+1}, -v{STV}, v{STV}, v{STV+1}')
        sv.append(f'v_max_f32 v{STV+1}, 0, v{STV+1}')
        sv.append(f'v_add_f32 v{STV+1}, {f32(1e-5)}, v{STV+1}')
        sv.append(f'v_rsq_f32 v{RS}, v{STV+1}')
        sv.append(f'v_mul_f32 v{STV+1}, v{STV+1}, v{RS}')
        r = sv.append
        MH, MM, ML, SH, SM, SL, TT = STV+2, STV+3, STV+4, STV+5, STV+6, STV+7, STV+8
        split3(r, STV, MH, MM, ML, TT); split3(r, STV+1, SH, SM, SL, TT)
        pack_hi(r, XE, MH, MM); pack_hi(r, XE+1, ML, SH); pack_hi(r, XE+2, SM, SL)
        sv.append(f'v_lshrrev_b32 v{XE+3}, 16, v{MH}')
        sv.append(f'v_mul_f32 v{RQ}, {f32(L.QSCALE if qkv else 1.4426950408889634)}, v{RS}')
        if not qkv: sv.append(f'v_mul_f32 v66, -2.0, v{RS}')
        if qkv:
            sv.append(f'ds_write_b32 v76, v{RS}')
            for j in range(4): sv.append(f'ds_read_b128 {v(STV+4*j,4)}, v77 offset:{32*j}')
        def epi(f, pk, gs=(0, 1)):
            A = ACC[f]; out = []
            def mul(d, s0, s1b, n, bcast):
                if pk:
                    for r_ in range(0, n, 2):
                        if bcast:
                            base = s1b & ~1; o = s1b & 1
                            out.append(f'v_pk_mul_f32 {v(d+r_,2)}, {v(s0+r_,2)}, {v(base,2)} op_sel:[0,{o}] op_sel_hi:[1,{o}]')
                        else:
                            out.append(f'v_pk_mul_f32 {v(d+r_,2)}, {v(s0+r_,2)}, {v(s1b+r_,2)}')
                else:
                    for r_ in range(n): out.append(f'v_mul_f32 v{d+r_}, v{s1b if bcast else s1b+r_}, v{s0+r_}')
            for g in gs:
                B = A + 8*g
                if qkv:
                    if f < 2: mul(B, B, RQ if f == 0 else RS, 8, True)
                    else: mul(B, B, STV + 8*g, 8, False)
                else:
                    U = STV
                    mul(U, B, RQ, 8, True)
                    for r_ in range(8): out.append(f'v_exp_f32 v{U+r_}, v{U+r_}')
                    if pk:
                        for r_ in range(0, 8, 2): out.append(f'v_pk_add_f32 {v(U+8+r_,2)}, {v(U+r_,2)}, 2.0 op_sel_hi:[1,0]')
                        for r_ in range(0, 8, 2): out.append(f'v_pk_fma_f32 {v(U+r_,2)}, {v(U+r_,2)}, {v(U+8+r_,2)}, 2.0 op_sel_hi:[1,1,0]')
                    else:
                        for r_ in range(8): out.append(f'v_add_f32 v{U+8+r_}, 2.0, v{U+r_}')
                        for r_ in range(8): out.append(f'v_fma_f32 v{U+r_}, v{U+r_}, v{U+8+r_}, 2.0')
                    for r_ in range(8): out.append(f'v_rcp_f32 v{U+r_}, v{U+r_}')
                    if pk:
                        for r_ in range(0, 8, 2): out.append(f'v_pk_fma_f32 {v(U+r_,2)}, {v(U+r_,2)}, {v(66,2)}, {v(RS,2)} op_sel_hi:[1,0,0]')
                    else:
                        for r_ in range(8): out.append(f'v_fma_f32 v{U+r_}, v{U+r_}, v66, v{RS}')
                    mul(B, B, U, 8, False)
                for r_ in range(4): out.append(f'v_cvt_pk_bf16_f32 v{B+r_}, v{B+2*r_}, v{B+2*r_+1}')
                if qkv:
                    if f < 2: out.append(f'buffer_store_dwordx4 {v(B,4)}, v{L16}, s[4:7], s{56+2*f+g} offen sc1')
                    else: out.append(f'buffer_store_dwordx4 {v(B,4)}, v78, s[4:7], s54 offen offset:{512*g} sc1')
                else:
                    k = 2*f + g
                    sreg = 56 if k < 2 else (58 if k < 4 else 57)
                    out.append(f'buffer_store_dwordx4 {v(B,4)}, v{L16}, s[4:7], s{sreg} offen offset:{1024*(k%4)} sc1')
            return out
        def cost(t):
            return 8 if t.startswith(TRANS) else (16 if t.startswith('buffer') else 4)
        NB = int(OPT['nb'])
        order = []; nb = 0
        for s_ in range(33):
            order.append((fa, s_))
            while nb < NB and nb + 1 <= (s_ + 1) * NB / 33.0:
                order.append((fb, nb)); nb += 1
        order += [(fb, k) for k in range(nb, 33)] + [(fc, k) for k in range(33)]
        last = {f: max(i for i, o in enumerate(order) if o[0] == f) for f in range(3)}
        nds = [0]; dsat = {}
        def rd(i):
            f, k = order[i]
            if qkv and f == fc and k == 0 and int(OPT.get('fuse', 1)):
                lp = a.lab('qspin'); ok = a.lab('qok')
                a(f'v_mov_b32 v66, {CNTL}'); a('s_mov_b32 s51, 0')
                a.label(lp)
                a('ds_read_b32 v67, v66 offset:8')
                a('s_add_u32 s51, s51, 1')
                a('s_waitcnt lgkmcnt(0)')
                a('v_readfirstlane_b32 s52, v67')
                a('s_cmp_ge_u32 s52, 2'); a(f's_cbranch_scc1 {ok}')
                a(f's_cmp_lt_u32 s51, {8*SPIN}'); a(f's_cbranch_scc1 {lp}')
                a.label(ok)
            a(f'ds_read_b128 {v(WS[i%8],4)}, v{WA[f]} offset:{k*1024}'); nds[0] += 1; dsat[i] = nds[0]
        AH = 6
        for i in range(AH): rd(i)
        nx = PRE; xw = -1
        q = list(sv); ready = {}; units = []
        N = len(order)
        for i, (f, k) in enumerate(order):
            w = f'lgkmcnt({min(15, nds[0] - dsat[i])})'
            if k < 32 and k > xw:
                w = f'vmcnt({nvm[0] - at[k]}) ' + w; xw = k
            if k == 32: assert not any(t in q for t in sv), 'stats not finished'
            if i > last[fa] + 1 and (i - last[fa]) % 2 == 0: pass
            elif i > last[fa] and i + 1 < N: a(f's_waitcnt lgkmcnt({min(15, nds[0] - dsat[i+1])})')
            else: a(f's_waitcnt {w}')
            xf = v(XF + 4*k, 4) if k < 32 else v(XE, 4)
            wf = v(WS[i % 8], 4)
            cc = '0' if k == 0 else v(ACC[f], 16)
            if qkv and f == 2: a(f'{MFMA} {v(ACC[f],16)}, {xf}, {wf}, {cc}')
            else: a(f'{MFMA} {v(ACC[f],16)}, {wf}, {xf}, {cc}')
            if i + AH < N: rd(i + AH)
            if not qkv and i in (last[fa], last[fb]):
                a('s_mov_b64 exec, 1')
                a(f'ds_add_u32 v67, v79 offset:{0 if i == last[fa] else 4}'); nds[0] += 1
                a('s_mov_b64 exec, -1')
            budget = 16
            if f == fa and nx < 32:
                xload(nx); nx += 1; budget = 8
            CAP = int(OPT.get('cap', 24))
            for ff in (fa, fb):
                if i == last[ff] + 3: units.extend([(ff, 0), (ff, 1)])
            if not q and units and (CAP == 0 or sum(map(cost, epi(units[0][0], False, (0,)))) <= 1.5*CAP*(N - i)):
                u_ = units.pop(0); q += epi(u_[0], False, (u_[1],))
            if xw >= 6:
                if i > last[fa]:
                    if CAP: budget = CAP
                    else:
                        rem = sum(map(cost, q)) + (len(units) + (2 if i < last[fb] + 3 else 0)) * sum(map(cost, epi(fb, False, (0,))))
                        budget = max(16, -(-rem // max(1, N - i)))
                while q and budget >= min(cost(q[0]), 8):
                    if q[0] == 'WAITDS':
                        if 'mark' not in ready: ready['mark'] = nds[0]
                        if dsat[i] < ready['mark']: break
                        q.pop(0); continue
                    t = q.pop(0); budget -= cost(t); a(t)
                    if t.startswith('buffer'): nvm[0] += 1
                    if t.startswith('ds_'): nds[0] += 1
        for t in q: a(t)
        st(tag + ' loop')
        for u_ in units:
            for t in epi(u_[0], True, (u_[1],)): a(t)
        for t in epi(fc, True): a(t)

    WOA = 0; W2A = 64
    NW2PRE = 18
    def wB_loads(wo, steps):
        KS = 32 if wo else W2KS
        base = WOA if wo else W2A
        first = steps[0]
        pre = []
        for i, ft in enumerate((22, 23)):
            pre.append(f's_mul_i32 s{67+i}, s{ft}, {KS}')
            if wo:
                pre.append('s_lshl_b32 s29, s12, 3'); pre.append(f's_add_u32 s{67+i}, s{67+i}, s29')
            else:
                pre.append(f's_add_u32 s{67+i}, s{67+i}, s33')
            pre.append(f's_lshl_b32 s{67+i}, s{67+i}, 10')
            pre.append(f's_add_u32 s{67+i}, s{67+i}, {(L.WOF if wo else L.W2F) + first*1024}')
        groups = [pre]
        for n0 in range(0, len(steps), 4):
            for i in range(2):
                g = [f'buffer_load_dwordx4 {areg(base + 8*stp + 4*i)}, v{L16}, s[4:7], s{67+i} offen offset:{1024*q} sc1' for q, stp in enumerate(steps[n0:n0+4])]
                g.append(f's_add_u32 s{67+i}, s{67+i}, 4096')
                groups.append(g)
        return groups

    BACC = [[16 + 16*(2*i+j) for j in range(2)] for i in range(2)]
    BAD = 240
    def gemmB_pre(wo):
        KS = 32 if wo else 86
        actsz = L.ACT[1] - L.ACT[0]
        a(f's_mul_i32 s56, s21, {KS}')
        if wo:
            a('s_lshl_b32 s29, s12, 3'); a('s_add_u32 s56, s56, s29')
        else:
            a('s_add_u32 s56, s56, s33')
        a('s_lshl_b32 s56, s56, 10')
        if wo:
            a('s_add_u32 s56, s56, s27'); a(f's_add_u32 s56, s56, {L.O[0]}')
        else:
            a(f's_mul_i32 s29, s26, {actsz}'); a('s_add_u32 s56, s56, s29'); a(f's_add_u32 s56, s56, {L.ACT[0]}')
        a(f's_add_u32 s57, s56, {KS*1024}')
        xo = 1 if wo else 2
        stsz = L.ST[1] - L.ST[0]
        a('s_lshl_b32 s58, s27, 1'); a('s_add_u32 s58, s58, s32'); a(f's_add_u32 s58, s58, {L.X[xo]}')
        a('s_lshl_b32 s59, s20, 12'); a('s_lshl_b32 s54, s22, 8'); a('s_add_u32 s59, s59, s54')
        a(f's_mul_i32 s54, s26, {2*stsz}'); a('s_add_u32 s59, s59, s54'); a(f's_add_u32 s59, s59, {L.ST[xo]}')
        for i in range(2):
            for j in range(2):
                a('s_and_b32 s54, s12, 1')
                if j: a('s_xor_b32 s54, s54, 1')
                a(f's_add_u32 s54, s54, {2*i}')
                a('s_xor_b32 s55, s54, s12')
                a('s_mul_i32 s54, s54, 3'); a('s_add_u32 s54, s54, s55'); a('s_lshl_b32 s54, s54, 12')
                a(f's_add_u32 s54, s54, {RED - 4096}')
                a(f'v_add_u32 v{BAD+2*i+j}, s54, v{L16}')
        a(f's_mul_i32 s55, s12, {3*4096}'); a(f's_add_u32 s55, s55, {RED}')
        a(f'v_add_u32 v{BAD+4}, s55, v{L16}')
        if not wo:
            a(f'v_and_b32 v{BAD+5}, 31, v{LN}'); a(f'v_lshlrev_b32 v{BAD+5}, 10, v{BAD+5}')
            a(f'v_lshrrev_b32 v{BAD+6}, 5, v{LN}'); a(f'v_lshl_add_u32 v{BAD+5}, v{BAD+6}, 4, v{BAD+5}')
            a('s_lshl_b32 s53, s20, 15'); a('s_lshl_b32 s54, s22, 6'); a('s_add_u32 s53, s53, s54')

    def sig_try(state, wait=None):
        e = a.lab('sge')
        a(f's_cmp_lg_u32 s41, {state}')
        a(f's_cbranch_scc1 {e}')
        if wait is not None: a(f's_waitcnt vmcnt({wait})')
        if state == 1:
            sig_atomic(); a('s_mov_b32 s41, s97')
        else:
            sig_finish(); a('s_mov_b32 s41, 0')
        a.label(e)
    def sig_slot(wait):
        d = a.lab('sgd'); e = a.lab('sge')
        a('s_cmp_lg_u32 s41, 1')
        a(f's_cbranch_scc1 {d}')
        a(f's_waitcnt vmcnt({wait})')
        sig_atomic(); a('s_mov_b32 s41, s97')
        a(f's_branch {e}')
        a.label(d)
        a('s_mov_b64 exec, 2')
        a(f'buffer_load_dword v0, v{L4}, s[4:7], 0 offen')
        a('s_mov_b64 exec, -1')
        a.label(e)
    def sig_step():
        sig_try(2); sig_try(1)
    def sig_block():
        sig_try(1, 0); sig_try(2, 0)

    def gemmB(wo, tail=()):
        tag = 'wo' if wo else 'ffn2'
        nst = 8 if wo else 22
        wbase = WOA if wo else W2A
        FB = 80
        NSL = 24
        RB = 176
        WIN = min(int(OPT['bwin']), nst)
        LAG = 3
        st(tag + 'A go')
        class St: pass
        z = St(); z.nvm = 0; z.at = {}; z.issued = 0; z.tail = list(tail)
        def xr(n): return FB + 4*(n % NSL)
        def load(z):
            n = z.issued; i, k = divmod(n, nst)
            a(f'buffer_load_dwordx4 {v(xr(n),4)}, v{L16}, s[4:7], s{56+i} offen offset:{1024*(k%4)} sc1'); z.nvm += 1
            if k % 4 == 3: a(f's_add_u32 s{56+i}, s{56+i}, 4096')
            z.at[n] = z.nvm; z.issued += 1
        def mm(i, j, k):
            cc = '0' if k == 0 else v(BACC[i][j],16)
            a(f'{MFMA} {v(BACC[i][j],16)}, {areg(wbase+8*k+4*j)}, {v(xr(i*nst+k),4)}, {cc}')
        def zero0(n):
            if wo: return
            sk = a.lab('ffn2_s0')
            a('s_cmp_lt_u32 s12, 2')
            a(f's_cbranch_scc1 {sk}')
            for r_ in range(4): a(f'v_mov_b32 v{xr(n)+r_}, 0')
            a.label(sk)
        def wr(i, j): return [f'ds_write_b128 v{BAD+2*i+j}, {v(BACC[i][j]+4*q,4)} offset:{q*1024}' for q in range(4)]
        def epilogue(i, pk):
            A0 = BACC[i][0]; o = []
            for k in range(3):
                for q in range(4): o.append(f'ds_read_b128 {v(RB+16*k+4*q,4)}, v{BAD+4} offset:{k*4096 + q*1024}')
            U = RB + 48
            for r_ in range(8):
                o.append(f'v_lshlrev_b32 v{U+2*r_}, 16, v{RES+r_}')
                o.append(f'v_and_b32 v{U+2*r_+1}, 0xffff0000, v{RES+r_}')
            def addv(src):
                if pk:
                    for r_ in range(0, 16, 2): o.append(f'v_pk_add_f32 {v(A0+r_,2)}, {v(A0+r_,2)}, {v(src+r_,2)}')
                else:
                    for r_ in range(16): o.append(f'v_add_f32 v{A0+r_}, v{A0+r_}, v{src+r_}')
            addv(U)
            for k in range(3):
                o.append(f's_waitcnt lgkmcnt({8-4*k})')
                addv(RB + 16*k)
            for r_ in range(8): o.append(f'v_cvt_pk_bf16_f32 v{RES+r_}, v{A0+2*r_}, v{A0+2*r_+1}')
            o.append('STORE')
            if pk:
                o.append(f'v_pk_add_f32 {v(RB,2)}, {v(A0,2)}, {v(A0+2,2)}')
                o.append(f'v_pk_mul_f32 {v(RB+2,2)}, {v(A0,2)}, {v(A0,2)}')
                o.append(f'v_pk_fma_f32 {v(RB+2,2)}, {v(A0+2,2)}, {v(A0+2,2)}, {v(RB+2,2)}')
                for r_ in range(4, 16, 2):
                    o.append(f'v_pk_add_f32 {v(RB,2)}, {v(RB,2)}, {v(A0+r_,2)}')
                    o.append(f'v_pk_fma_f32 {v(RB+2,2)}, {v(A0+r_,2)}, {v(A0+r_,2)}, {v(RB+2,2)}')
                o.append(f'v_add_f32 v{T2}, v{RB}, v{RB+1}')
                o.append(f'v_add_f32 v{T3}, v{RB+2}, v{RB+3}')
            else:
                o.append(f'v_add_f32 v{T2}, v{A0}, v{A0+1}')
                o.append(f'v_mul_f32 v{T3}, v{A0}, v{A0}')
                o.append(f'v_fmac_f32 v{T3}, v{A0+1}, v{A0+1}')
                for r_ in range(2, 16):
                    o.append(f'v_add_f32 v{T2}, v{T2}, v{A0+r_}')
                    o.append(f'v_fmac_f32 v{T3}, v{A0+r_}, v{A0+r_}')
            o.append(f'v_permlane32_swap_b32 v{T2}, v{T3}')
            o.append(f'v_add_f32 v{T2}, v{T2}, v{T3}')
            o.append(f'buffer_store_dword v{T2}, v{L4}, s[4:7], s59 offen sc1')
            o.append('OWED')
            return o
        def emit(t, z):
            if t == 'STORE':
                if not wo:
                    nf = a.lab('notfinal'); dn = a.lab('stored')
                    a('s_cmp_eq_u32 s26, 0')
                    a(f's_cbranch_scc1 {nf}')
                    for g in range(2):
                        a(f'v_permlane32_swap_b32 v{RES+4*g}, v{RES+4*g+2}')
                        a(f'v_permlane32_swap_b32 v{RES+4*g+1}, v{RES+4*g+3}')
                        a(f'buffer_store_dwordx4 {v(RES+4*g,4)}, v{BAD+5}, s[8:11], s53 offen offset:{32*g} {OPT.get("of", "").replace("_", " ")}')
                    a(f's_branch {z.fin}')
                    a.label(nf)
                a(f'buffer_store_dwordx4 {v(RES,4)}, v{L16}, s[4:7], s58 offen sc1')
                a(f'buffer_store_dwordx4 {v(RES+4,4)}, v{L16}, s[4:7], s58 offen offset:1024 sc1')
                z.nvm += 2
            elif t == 'OWED':
                sig_addr(2 if wo else 4, 20)
                a('s_mov_b32 s41, 1')
                z.owed = z.nvm
            else:
                a(t)
                if t.startswith('buffer'): z.nvm += 1
        def part(i, z, kat=None):
            for k in range(nst):
                n = i*nst + k
                a(f's_waitcnt vmcnt({z.nvm - z.at[n]})')
                if k == 0:
                    if i == 1 and wo: sig_step(); z.mark = z.nvm
                    zero0(n)
                mm(i, 1, k)
                if i == 0 and k == (4 if not (SLOT and (wo or SLOT == 2)) else nst - 1): sig_try(2, z.nvm - z.mark)
                W2 = int(OPT.get('bwin2', 22))
                if not wo and i == 1 and W2 >= nst and k == nst - 1: sig_try(1, 0)
                if not wo and i == 1 and W2 < nst and k == W2: sig_try(1)
                if not wo and i == 1 and W2 < nst and k == nst - 1: sig_try(2, 0)
                if z.issued < (i + 1)*nst: load(z)
                elif z.tail and (wo or k >= 10):
                    for t in z.tail.pop(0): emit(t, z)
                if k < nst - LAG: mm(i, 0, k)
            assert not z.tail, len(z.tail)
            for k in range(nst - LAG, nst): mm(i, 0, k)
        def writes(i, wt):
            sk = a.lab('b_self')
            for t in wr(i, 1): a(t)
            a('s_lshr_b32 s54, s12, 1')
            a(f's_cmp_eq_u32 s54, {i}')
            a(f's_cbranch_scc1 {sk}')
            for t in wr(i, 0): a(t)
            a.label(sk)
            a(wt)
        def owner_epi(i):
            sk = a.lab('b_notown')
            a('s_lshr_b32 s54, s12, 1')
            a(f's_cmp_lg_u32 s54, {i}')
            a(f's_cbranch_scc1 {sk}')
            y = St(); y.nvm = 0; y.fin = sk
            for t in epilogue(i, True): emit(t, y)
            a.label(sk)
        import copy
        SLOT = int(OPT.get('slot', 1))
        if SLOT and (wo or SLOT == 2):
            for _ in range(nst): load(z)
            sig_slot(nst); z.nvm += 1; z.mark = z.nvm
        else:
            for _ in range(4): load(z)
            sig_try(2, 4); sig_try(1, 4); z.mark = z.nvm
            for _ in range(WIN - 4): load(z)
        if wo:
            z.tail = wtile_dma(False) if int(OPT.get('w1l', 0)) == 1 else []
            part(0, z)
            poll_setup(1, [38], add=4)
            writes(0, 's_waitcnt lgkmcnt(0)')
            a('s_barrier')
            owner_epi(0)
            if int(OPT.get('w1l', 0)) == 2:
                sig_try(1, 0); run_groups(wtile_dma(False))
            st(tag + 'A end')
            poll_spin(1, a.lab('go'), hook=sig_step, d=dd('w', 1))
            st(tag + 'B go')
            for _ in range(WIN): load(z)
            z.tail = list(tail)
            part(1, z)
            sig_try(2, z.nvm - z.mark)
        elif int(OPT.get('fuse', 1)):
            KC = nst - WIN + int(OPT.get('kc', 0))
            tl = list(z.tail)
            for k in range(nst):
                a(f's_waitcnt vmcnt({z.nvm - z.at[k]})')
                if k == 0: zero0(0)
                mm(0, 1, k)
                if k == 4: sig_try(2, z.nvm - z.mark)
                if k == KC:
                    mm(0, 0, k)
                    a('s_cmp_lg_u32 s12, 3')
                    a('s_cbranch_scc1 f2_nopoll')
                    poll(3, [21], add=1, d=dd('f', 3))
                    a.label('f2_nopoll')
                    a('s_barrier')
                    st(tag + 'B go')
                    for _ in range(KC - (nst - WIN) + 1): load(z)
                    continue
                if z.issued < nst or k > KC: load(z)
                mm(0, 0, k)
            own = a.lab('f2_own'); jn = a.lab('f2_join')
            a('s_cmp_lt_u32 s12, 2')
            a(f's_cbranch_scc1 {own}')
            for variant in (1, 0):
                y = copy.deepcopy(z); y.fin = a.lab('f2_fin')
                if variant == 0: a.label(own)
                q = ['NOP', 'NOP'] + wr(0, 1) + (wr(0, 0) if variant == 1 else ['NOP']*4) + ['NOP', 'NOP', 's_waitcnt lgkmcnt(0)', 's_barrier']
                nsync = len(q)
                if variant == 0: q += epilogue(0, False)
                done_ = 0
                for k in range(nst):
                    n = nst + k
                    a(f's_waitcnt vmcnt({y.nvm - y.at[n]})')
                    if k == 0: zero0(n)
                    for j in (1, 0):
                        if j == 0 and k >= nst - LAG: continue
                        mm(1, j, k)
                        if j == 1 and y.issued < 2*nst: load(y)
                        for _ in range(2 if done_ < nsync else 6):
                            if not q: break
                            t = q.pop(0); done_ += 1
                            if t == 'NOP': continue
                            if t == 'STORE':
                                nf = a.lab('notfinal'); dn = a.lab('stored')
                                a('s_cmp_eq_u32 s26, 0'); a(f's_cbranch_scc1 {nf}')
                                for g in range(2):
                                    a(f'v_permlane32_swap_b32 v{RES+4*g}, v{RES+4*g+2}')
                                    a(f'v_permlane32_swap_b32 v{RES+4*g+1}, v{RES+4*g+3}')
                                    a(f'buffer_store_dwordx4 {v(RES+4*g,4)}, v{BAD+5}, s[8:11], s53 offen offset:{32*g}')
                                a(f's_branch {dn}')
                                a.label(nf)
                                a(f'buffer_store_dwordx4 {v(RES,4)}, v{L16}, s[4:7], s58 offen sc1')
                                a(f'buffer_store_dwordx4 {v(RES+4,4)}, v{L16}, s[4:7], s58 offen offset:1024 sc1')
                                a.label(dn)
                                y.nvm += 2
                            else: emit(t, y)
                assert not q, len(q)
                for k in range(nst - LAG, nst): mm(1, 0, k)
                if variant == 1:
                    a(f's_branch {jn}')
                else:
                    a('s_cmp_eq_u32 s26, 1'); a('s_cselect_b32 s41, 0, s41')
                    sig_try(1, 0)
            a.label(jn)
            FUSED = True
        else:
            nod = a.lab('f2_nodma'); jn = a.lab('f2_join')
            a('s_lshl_b32 s54, s26, 2'); a('s_add_u32 s54, s54, s12')
            a('s_cmp_ge_u32 s54, 2')
            a(f's_cbranch_scc1 {nod}')
            y = copy.deepcopy(z)
            part(0, y)
            a(f's_branch {jn}')
            a.label(nod)
            z.tail = []
            part(0, z)
            a.label(jn)
            writes(0, 's_waitcnt lgkmcnt(0)')
            a('s_cmp_lg_u32 s12, 3')
            a('s_cbranch_scc1 f2_nopoll')
            poll(3, [21], add=1, d=dd('f', 3))
            a.label('f2_nopoll')
            st(tag + 'A end')
            a('s_barrier')
            st(tag + 'B go')
            for _ in range(int(OPT.get('bwin2', 22))): load(z)
            owner_epi(0)
            part(1, z)
        poll_setup(2 if wo else 4, [17])
        poll_load(1)
        writes(1, 's_waitcnt lgkmcnt(0)')
        a('s_barrier')
        owner_epi(1)
        st(tag + 'B end')
        if not wo and int(OPT.get('fuse', 1)):
            sk_ = a.lab('f2_nc')
            sig_try(1, 0)
            a('s_lshr_b32 s54, s12, 1'); a('s_andn2_b32 s54, s54, s26'); a(f's_cbranch_scc0 {sk_}')
            run_groups(tail[:3]); sig_try(2, 8); run_groups(tail[3:])
            a('s_waitcnt vmcnt(0)')
            a(f'v_mov_b32 v{T2}, {CNTL}'); a(f'v_mov_b32 v{T3}, 1')
            a('s_mov_b64 exec, 1'); a(f'ds_add_u32 v{T2}, v{T3} offset:8'); a('s_mov_b64 exec, -1')
            a.label(sk_)
        sig_block()
        st(tag + ' sig')

    SB = [16, 32]; PB = [48, 52]; OA = [56, 72]; QF = [88, 92]; VR = 96
    TMP = 240
    def kreg(kt): return v(224 + 4*kt, 4) if kt < 4 else areg(208 + 4*(kt-4))
    def vreg(kt, g): return v(VR + 8*kt + 4*g, 4)
    VOFF, PADDR = T2, T3
    PA4 = TMP + 12
    def qaddr(p_, sreg=53):
        return [f's_add_u32 s{sreg}, s12, {1 + p_}', f's_and_b32 s{sreg}, s{sreg}, 3', f's_lshl_b32 s{sreg}, s{sreg}, 11', f's_add_u32 s{sreg}, s{sreg}, s{48 + (p_ >> 2)}']
    def attn_pre():
        a(f'v_and_b32 v{T0}, 27, v{LN}')
        a(f'v_cmp_eq_u32 vcc, 16, v{T0}')
        a(f'v_mov_b32 v{T1}, {ONES}')
        a(f'v_cndmask_b32 v{VR}, 0, v{T1}, vcc')
        a(f'v_cndmask_b32 v{VR+1}, 0, v{T1}, vcc')
        for r_ in range(2, 128, 2): a(f'v_pk_mov_b32 {v(VR+r_,2)}, {v(VR,2)}, {v(VR,2)}')
        a.label('main_attpre2')
        a(f'v_and_b32 v{T1}, 15, v{LN}'); a(f'v_lshlrev_b32 v{T1}, 4, v{T1}')
        a(f'v_lshrrev_b32 v{VOFF}, 5, v{LN}'); a(f'v_lshl_add_u32 v{VOFF}, v{VOFF}, 8, v{T1}')
        a('s_lshl_b32 s44, s24, 16'); a('s_add_u32 s44, s44, s27')
        a('s_lshl_b32 s45, s12, 14'); a('s_add_u32 s45, s45, s44')
        a(f's_add_u32 s46, s45, {L.K[0]}'); a(f's_add_u32 s47, s45, {L.V[0]}')
        a('s_lshl_b32 s48, s25, 13'); a('s_add_u32 s48, s48, s44'); a('s_add_u32 s49, s48, 1024')
        for t in qaddr(0, 53) + qaddr(1, 54): a(t)
        a('s_lshl_b32 s39, s25, 2'); a('s_add_u32 s39, s39, s12'); a('s_lshl_b32 s39, s39, 16')
        a('s_lshl_b32 s55, s24, 10'); a('s_add_u32 s39, s39, s55')
        a('s_add_u32 s39, s39, s27'); a(f's_add_u32 s39, s39, {L.O[0]}')
        a(f's_mov_b32 s56, {f32(2.0**-90)}'); a(f's_mov_b32 s57, {f32(2.0**120)}')
        a('s_mov_b32 s40, 0')

    def check_ops(Oa, U):
        return [f'v_add_f32 v{U}, abs(v{Oa}), abs(v{Oa+1})', f'v_add_f32 v{U+1}, abs(v{Oa+2}), abs(v{Oa+3})',
                f'v_add_f32 v{U+2}, abs(v{Oa+4}), abs(v{Oa+5})', f'v_add_f32 v{U+3}, abs(v{Oa+6}), abs(v{Oa+7})',
                f'v_add_f32 v{U}, v{U}, v{U+1}', f'v_add_f32 v{U+2}, v{U+2}, v{U+3}', f'v_add_f32 v{U}, v{U}, v{U+2}',
                f'v_cmp_gt_f32 s[70:71], s57, v{U}', f'v_cmp_gt_f32 s[72:73], s57, v{Oa+8}', f'v_cmp_lt_f32 s[74:75], s56, v{Oa+8}',
                's_and_b64 s[70:71], s[70:71], s[72:73]', 's_and_b64 s[70:71], s[70:71], s[74:75]', 's_cmp_eq_u64 s[70:71], -1']

    def attn(extra_groups):
        nvm = [0]
        atk, atv, atq = {}, {}, {}
        def qload(p_, sreg=53):
            a(f'buffer_load_dwordx4 {v(QF[p_%2],4)}, v{L16}, s[4:7], s{sreg} offen sc1'); nvm[0] += 1
            atq[p_] = nvm[0]
        def kvbase(kt, sreg):
            pass
        def kload(kts):
            for kt in kts:
                a(f'buffer_load_dwordx4 {kreg(kt)}, v{L16}, s[4:7], s{76 + kt//4} offen offset:{1024*(kt%4)} sc1'); nvm[0] += 1
                atk[kt] = nvm[0]
        def vload(kts):
            a('s_mov_b64 exec, s[30:31]')
            for kt in kts:
                for g in range(2):
                    a(f'buffer_load_dwordx4 {vreg(kt,g)}, v{VOFF}, s[4:7], s{80 + kt//4} offen offset:{1024*(kt%4)+512*g} sc1'); nvm[0] += 1
                atv[kt] = nvm[0]
            a('s_mov_b64 exec, -1')
        EV = list(range(0, 16, 2)); OD = list(range(1, 16, 2))
        steps = [(0, k) for k in EV] + [(1, k) for k in EV] + [(0, k) for k in OD] + [(1, k) for k in OD]
        steps += [(p_, k) for p_ in range(2, 8) for k in range(16)]
        N = len(steps)
        firstof = {}; lastof = {}
        for n, (p_, k) in enumerate(steps):
            firstof.setdefault(p_, n); lastof[p_] = n
        qload(0)
        kload([0, 2]); vload([0])
        sig_try(1, nvm[0]); mark0 = nvm[0]
        kload([4]); vload([2]); kload([6]); vload([4])
        waited = [0]
        def need_vm(at):
            if at > waited[0]:
                a(f's_waitcnt vmcnt({nvm[0] - at})'); waited[0] = at
        need_vm(atk[0])
        a(f'{MFMA} {v(SB[0],16)}, {kreg(0)}, {v(QF[0],4)}, 0')
        kload([8]); vload([6])
        extra = list(extra_groups)
        sal = []
        def hide():
            if sal: a(sal.pop(0))
        ev_sal, ev_a, ev_b = {}, {}, {}
        def add(d, n, f): d.setdefault(n, []).append(f)
        for p_ in range(2, 8):
            n0 = lastof[p_ - 2] + 1
            add(ev_sal, n0 - 2, qaddr(p_))
            add(ev_a, n0, lambda p_=p_: qload(p_))
        def pwrite(pp):
            Op = OA[pp % 2]
            a(f'v_add_u32 v{PADDR}, s53, v{L16}')
            a(f'v_add_u32 v{PA4}, s53, v{L4}')
            a(f'ds_write_b128 v{PADDR}, {v(Op,4)}')
            a(f'ds_write_b128 v{PADDR}, {v(Op+4,4)} offset:1024')
            a(f'ds_write_b32 v{PA4}, v{Op+8} offset:2048')
        for pp in (0, 1, 2, 4, 5, 6):
            n0 = lastof[pp] + 2
            slot = 2 - pp % 4
            add(ev_sal, n0, [f's_add_u32 s53, s12, {1 + pp}', 's_and_b32 s53, s53, 3', f's_mul_i32 s53, s53, {6*2304}',
                             f's_add_u32 s53, s53, {PART + (3*(pp >> 2) + slot)*2304}'])
            add(ev_b, n0 + 2, lambda pp=pp: pwrite(pp))
        pb = []
        poll_setup(0, [35, 36], add=1, out=pb)
        def b_issue():
            for t in pb: a(t)
            poll_load(2); nvm[0] += 1; atq['flag'] = nvm[0]
        def b_check():
            go = a.lab('bgo')
            need_vm(atq['flag'])
            poll_test(2, go)
            poll_spin(2, go)
            kload([1, 3]); vload([1])
        add(ev_a, 0, lambda: (kload([10]), vload([8])))
        add(ev_a, 1, lambda: (kload([12]), vload([10])))
        add(ev_a, 2, lambda: (sig_try(2, nvm[0] - mark0), kload([14]), vload([12])))
        add(ev_a, 3, lambda: (qload(1, 54), vload([14])))
        add(ev_a, 6, b_issue)
        add(ev_a, 11, b_check)
        for j_ in range(7):
            add(ev_a, 12 + j_, lambda j_=j_: (kload([5 + 2*j_] if j_ < 6 else []), vload([3 + 2*j_])))
        def own_addr(b):
            if b == 0:
                a(f'v_mov_b32 v{TMP}, {CNTL}'); a(f'v_mov_b32 v{TMP+2}, 0'); a(f'v_mov_b32 v{TMP+3}, 0')
                a(f'ds_write_b64 v{TMP}, {v(TMP+2,2)}'); a(f'ds_write_b32 v{TMP}, v{TMP+2} offset:8')
            a('s_waitcnt lgkmcnt(0)' if b == 0 else 's_waitcnt vmcnt(0) lgkmcnt(0)')
            a('s_barrier')
            a(f's_mul_i32 s53, s12, {6*2304}'); a(f's_add_u32 s53, s53, {PART + 3*b*2304}')
            a(f'v_add_u32 v{PADDR}, s53, v{L16}')
            a(f'v_add_u32 v{PA4}, s53, v{L4}')
        def pread(b_, sl):
            a(f'ds_read_b128 {v(b_,4)}, v{PADDR} offset:{sl*2304}')
            a(f'ds_read_b128 {v(b_+4,4)}, v{PADDR} offset:{sl*2304+1024}')
            a(f'ds_read_b32 v{b_+8}, v{PA4} offset:{sl*2304+2048}')
        n4 = firstof[4]
        Oa = OA[1]
        def padd():
            a('s_waitcnt lgkmcnt(0)')
            for r_ in range(9): a(f'v_add_f32 v{Oa+r_}, v{Oa+r_}, v{TMP+r_}')
        add(ev_b, n4 + 2, lambda: (own_addr(0), pread(TMP, 0)))
        add(ev_b, n4 + 3, lambda: (padd(), pread(TMP, 1)))
        add(ev_b, n4 + 4, lambda: (padd(), pread(TMP, 2)))
        def finA():
            padd()
            for t in check_ops(Oa, TMP): a(t)
            sk = a.lab('a_later')
            a(f's_cbranch_scc0 {sk}')
            a(f'v_rcp_f32 v{TMP}, v{Oa+8}')
            for r_ in range(8): a(f'v_mul_f32 v{Oa+r_}, v{TMP}, v{Oa+r_}')
            for r_ in range(4): a(f'v_cvt_pk_bf16_f32 v{TMP+4+r_}, v{Oa+2*r_}, v{Oa+2*r_+1}')
            a(f'buffer_store_dwordx4 {v(TMP+4,4)}, v{L16}, s[4:7], s39 offen sc1')
            a('s_mov_b32 s40, 1'); a('s_mov_b32 s41, 1')
            a.label(sk)
        add(ev_b, n4 + 5, finA)
        sa = []; sig_addr(1, 37, out=sa)
        add(ev_sal, n4 + 6, sa)
        def sstep():
            a('s_waitcnt vmcnt(0)'); waited[0] = nvm[0]
            sig_step()
        add(ev_b, n4 + 9, sstep)
        add(ev_b, n4 + 15, sstep)
        n7 = firstof[7]
        add(ev_b, n7 + 8, lambda: own_addr(1))
        for sl in range(3):
            add(ev_b, n7 + 9 + sl, lambda sl=sl: pread(VR + 12*sl, sl))
        def wr_issue():
            a(f's_mov_b32 s50, {WCELL}'); a(f'v_mov_b32 v{T0}, 0')
            poll_load(1); nvm[0] += 1; atq['wflag'] = nvm[0]
        def wr_check():
            go = a.lab('wgo')
            need_vm(atq['wflag'])
            poll_test(1, go)
            poll_spin(1, go)
        add(ev_a, 20, wr_issue)
        add(ev_a, 26, wr_check)
        def w_issue():
            poll_setup(1, [38]); poll_load(1); nvm[0] += 1
        add(ev_a, n7 + 10, w_issue)
        GS = int(OPT['gs'])
        if GS < 4:
            ex2 = []
            for g in extra:
                cur = []; nm = 0
                for t in g:
                    if t.startswith('buffer'):
                        if nm == GS: ex2.append(cur); cur = []; nm = 0
                        nm += 1
                    cur.append(t)
                ex2.append(cur)
            extra = ex2
        slots = [n for n in range(28 if GS < 4 else 34, N - 12, 1 if GS < 4 else 2) if n not in ev_a and n not in ev_b and not (n4 - 4 <= n <= n4 + 15)]
        assert len(slots) >= len(extra), (len(slots), len(extra))
        gslot = dict(zip(slots, extra))
        for n, (p_, kt) in enumerate(steps):
            S = SB[n % 2]; O = OA[p_ % 2]
            e = [f'v_exp_f32 v{S+r}, v{S+r}' for r in range(16)]
            c = [f'v_cvt_pk_bf16_f32 v{PB[r//4]+r%4}, v{S+2*r}, v{S+2*r+1}' for r in range(8)]
            if OPT.get('fine') == 'att' and n in (0, 8, 16, 32, 48, 64, 80, 96, 112): st(f'att n{n}')
            for l_ in ev_sal.get(n, []):
                assert not sal, n
                sal += l_
            if n + 1 < N:
                p2, kt2 = steps[n + 1]
                if n < 32: need_vm(atk[kt2])
                if n + 1 == firstof[p2]: need_vm(atq[p2])
                a(f'{MFMA} {v(SB[(n+1)%2],16)}, {kreg(kt2)}, {v(QF[p2%2],4)}, 0')
                hide()
            for f in ev_a.get(n, []):
                assert not sal, n
                f()
            a(e[0]); a(e[1]); a(e[2]); a(e[3]); a(c[0]); a(c[1]); a(e[4])
            if n > 0:
                pp, pk = steps[n - 1]
                a(f'{MFMA} {v(OA[pp%2],16)}, {vreg(pk,1)}, {v(PB[1],4)}, {v(OA[pp%2],16)}')
                hide()
            if n in gslot:
                for t in gslot[n]:
                    a(t)
                    if t.startswith('buffer'): nvm[0] += 1
            a(e[5]); a(e[6]); a(e[7]); a(c[2]); a(c[3]); a(e[8]); a(e[9]); a(e[10])
            if n < 32: need_vm(atv[kt])
            a(f'{MFMA} {v(O,16)}, {vreg(kt,0)}, {v(PB[0],4)}, {"0" if n == firstof[p_] else v(O,16)}')
            hide()
            a(e[11]); a(c[4]); a(c[5]); a(e[12]); a(e[13])
            for f in ev_b.get(n, []):
                assert not sal, n
                f()
            a(e[14]); a(e[15]); a(c[6]); a(c[7])
        a(f'{MFMA} {v(OA[1],16)}, {vreg(15,1)}, {v(PB[1],4)}, {v(OA[1],16)}')
        st('att loop')
        U = SB[0]
        Oa = OA[1]
        a('s_waitcnt lgkmcnt(0)')
        a(f's_add_u32 s55, s39, {32*1024}')
        a('s_mov_b32 s43, 1')
        sig_addr(1, 37, add=4, la=0 if 'w' in DIR else 2)
        for sl in range(3):
            b = VR + 12*sl
            for r_ in range(0, 8, 2): a(f'v_pk_add_f32 {v(Oa+r_,2)}, {v(Oa+r_,2)}, {v(b+r_,2)}')
            a(f'v_add_f32 v{Oa+8}, v{Oa+8}, v{b+8}')
        for t in check_ops(Oa, U): a(t)
        a('s_cbranch_scc1 attn_fin')
        a.label('attn_slow')
        S = SB[0]; M = SB[1]; AL = M + 1; TA = M + 2; TB = M + 3
        KT = 224; V0 = 228; V1 = 232
        a('s_lshl_b32 s53, s12, 11'); a('s_lshl_b32 s54, s43, 10'); a('s_add_u32 s53, s53, s54'); a('s_add_u32 s53, s53, s48')
        a(f'buffer_load_dwordx4 {v(QF[0],4)}, v{L16}, s[4:7], s53 offen sc1')
        a(f'v_and_b32 v{TA}, 27, v{LN}')
        a(f'v_cmp_eq_u32 vcc, 16, v{TA}')
        a(f'v_mov_b32 v{TB}, {ONES}')
        a(f'v_cndmask_b32 v{TA}, 0, v{TB}, vcc')
        for r_ in range(8): a(f'v_mov_b32 v{V0+r_}, v{TA}')
        a(f'v_mov_b32 v{M}, {f32(-3.0e38)}')
        for r_ in range(16): a(f'v_mov_b32 v{Oa+r_}, 0')
        a(f's_add_u32 s46, s44, {L.K[0]}'); a(f's_add_u32 s47, s44, {L.V[0]}')
        a('s_mov_b32 s54, 64')
        a.label('attn_slow_loop')
        a(f'buffer_load_dwordx4 {v(KT,4)}, v{L16}, s[4:7], s46 offen sc1')
        a('s_mov_b64 exec, s[30:31]')
        a(f'buffer_load_dwordx4 {v(V0,4)}, v{VOFF}, s[4:7], s47 offen sc1')
        a(f'buffer_load_dwordx4 {v(V1,4)}, v{VOFF}, s[4:7], s47 offen offset:512 sc1')
        a('s_mov_b64 exec, -1')
        a('s_add_u32 s46, s46, 1024'); a('s_add_u32 s47, s47, 1024')
        a('s_waitcnt vmcnt(0)')
        a(f'{MFMA} {v(S,16)}, {v(KT,4)}, {v(QF[0],4)}, 0')
        a(f'v_max3_f32 v{TA}, v{S}, v{S+1}, v{M}')
        for r_ in range(2, 16, 2): a(f'v_max3_f32 v{TA}, v{S+r_}, v{S+r_+1}, v{TA}')
        a(f'v_mov_b32 v{TB}, v{TA}')
        a(f'v_permlane32_swap_b32 v{TA}, v{TB}')
        a(f'v_max_f32 v{TA}, v{TA}, v{TB}')
        a(f'v_sub_f32 v{AL}, v{M}, v{TA}')
        a(f'v_exp_f32 v{AL}, v{AL}')
        a(f'v_mov_b32 v{M}, v{TA}')
        for r_ in range(16):
            a(f'v_sub_f32 v{S+r_}, v{S+r_}, v{M}')
            a(f'v_exp_f32 v{S+r_}, v{S+r_}')
        for r_ in range(16): a(f'v_mul_f32 v{Oa+r_}, v{AL}, v{Oa+r_}')
        for r_ in range(8): a(f'v_cvt_pk_bf16_f32 v{PB[r_//4]+r_%4}, v{S+2*r_}, v{S+2*r_+1}')
        a(f'{MFMA} {v(Oa,16)}, {v(V0,4)}, {v(PB[0],4)}, {v(Oa,16)}')
        a(f'{MFMA} {v(Oa,16)}, {v(V1,4)}, {v(PB[1],4)}, {v(Oa,16)}')
        a('s_sub_u32 s54, s54, 1')
        a('s_cmp_lg_u32 s54, 0')
        a('s_nop 7')
        a('s_cbranch_scc1 attn_slow_loop')
        a('s_nop 7')
        a.label('attn_fin')
        a(f'v_rcp_f32 v{U}, v{Oa+8}')
        for r_ in range(0, 8, 2): a(f'v_pk_mul_f32 {v(Oa+r_,2)}, {v(Oa+r_,2)}, {v(U,2)} op_sel:[0,0] op_sel_hi:[1,0]')
        for r_ in range(4): a(f'v_cvt_pk_bf16_f32 v{TMP+8+r_}, v{Oa+2*r_}, v{Oa+2*r_+1}')
        a(f'buffer_store_dwordx4 {v(TMP+8,4)}, v{L16}, s[4:7], s55 offen sc1')
        a('s_mov_b32 s41, 1')
        a('s_cmp_eq_u32 s40, 1')
        a('s_cbranch_scc1 attn_done')
        sig_block()
        a('s_cmp_eq_u32 s43, 0')
        a('s_cbranch_scc1 attn_done')
        a('s_mov_b32 s43, 0'); a('s_mov_b32 s55, s39')
        sig_addr(1, 37)
        a('s_branch attn_slow')
        a.label('attn_done')

    def touch_wqkv():
        per = L.FT_QKV * FT // 32
        g = [f's_mul_i32 s60, s14, {per}', f's_mul_i32 s61, s12, {per//4}', 's_add_u32 s60, s60, s61', f's_add_u32 s60, s60, {L.WQKVF}',
             f'v_lshlrev_b32 v{T0}, 7, v{LN}', 's_add_u32 s61, s60, 4480',
             f'buffer_load_dword v{T1}, v{T0}, s[4:7], s60 offen sc1', f'buffer_load_dword v{T1}, v{T0}, s[4:7], s61 offen sc1']
        return [g]

    def touch_w1():
        per = 44 * FT // 32
        g = [f's_mul_i32 s60, s14, {per}', f's_mul_i32 s61, s12, {per//4}', 's_add_u32 s60, s60, s61', f's_add_u32 s60, s60, {L.W1F}',
             f'v_lshlrev_b32 v{T0}, 7, v{LN}', 's_add_u32 s61, s60, 3584',
             f'buffer_load_dword v{T1}, v{T0}, s[4:7], s60 offen sc1', f'buffer_load_dword v{T1}, v{T0}, s[4:7], s61 offen sc1']
        return [g]

    def dump():
        if not STAMP: return
        a('s_lshl_b32 s90, s2, 2'); a('s_add_u32 s90, s90, s12'); a('s_lshl_b32 s90, s90, 1'); a('s_add_u32 s90, s90, s26')
        a('s_lshl_b32 s90, s90, 8'); a(f's_add_u32 s90, s90, {L.FLAGS + 7*L.MB}')
        a(f'buffer_store_dword v0, v{L4}, s[4:7], s90 offen')
        a('s_waitcnt vmcnt(0)')
        if os.environ.get('DBG'):
            sk = a.lab('dbg')
            a('s_lshl_b32 s90, s2, 2'); a('s_add_u32 s90, s90, s12'); a('s_cmp_lg_u32 s90, 2'); a(f's_cbranch_scc1 {sk}')
            a('s_load_dwordx2 s[92:93], s[0:1], 64'); a('s_waitcnt lgkmcnt(0)')
            srd(a, 92, 92, 256)
            a(f'v_readlane_b32 s91, v0, {2*STAMPS.index("p0 prek")+3}')
            names = ['p0 sig', 'att go', 'att loop', 'woB end', 'ffn1 sig', 'end']
            for j, nm in enumerate(names):
                a(f'v_readlane_b32 s90, v0, {2*STAMPS.index(nm)+3}')
                a('s_sub_u32 s90, s90, s91')
                a(f'v_mov_b32 v{T2}, s90')
                a('s_mul_i32 s90, s26, 24'); a(f's_add_u32 s90, s90, {8 + 4*j}')
                a('s_mov_b64 exec, 1')
                a(f'buffer_store_dword v{T2}, v{L4}, s[92:95], s90 offen')
                a('s_mov_b64 exec, -1')
            a('s_waitcnt vmcnt(0)')
            a.label(sk)

    a('s_branch main_attpre2')
    a.label('main_layer')
    st('start')
    gemmA_pre(True)
    a('s_waitcnt vmcnt(0)')
    poll_test(1, 'main_q_go')
    poll_spin(1, 'main_q_go', d=dd('q', 4))
    a.label('main_qkv')
    st('qkv go')
    def first_sync(n):
        sk = a.lab('nosync')
        a('s_cmp_eq_u32 s26, 1')
        a(f's_cbranch_scc1 {sk}')
        a(f's_waitcnt vmcnt({n})')
        a('s_barrier')
        a.label(sk)
    gemmA(True, None if K1 else first_sync)
    sig_addr(0, 34)
    a('s_mov_b32 s41, 1')
    a.label('main_attpre')
    attn_pre()
    for i in range(4):
        a(f's_add_u32 s{76+i}, s46, {4096*i}'); a(f's_add_u32 s{80+i}, s47, {4096*i}')
    st('qkv sig')
    a('s_cmp_eq_u32 s26, 1')
    a('s_cbranch_scc1 main_nores')
    a('s_waitcnt vmcnt(0)')
    for g in range(2):
        a(f'v_permlane32_swap_b32 v{RES+4*g}, v{RES+4*g+2}')
        a(f'v_permlane32_swap_b32 v{RES+4*g+1}, v{RES+4*g+3}')
    a.label('main_nores')
    a('s_cmp_ge_u32 s12, 2')
    a('s_cbranch_scc1 main_att_bar')
    sig_block()
    a('s_lshr_b32 s52, s24, 1'); a(f's_mul_i32 s52, s52, {8*CST}'); a('s_add_u32 s50, s28, s52')
    a(f'v_mul_u32_u24 v{T0}, {2*CST}, v{LN}')
    poll_spin(4, a.lab('go'), d=dd('a', 0))
    a.label('main_att_bar')
    if 'a' in OPT.get('es', ''):
        a('s_cmp_eq_u32 s26, 0'); a('s_cbranch_scc1 main_noes')
        sig_try(1, 0)
        a.label('main_noes')
    a('s_barrier')
    a.label('main_att_go')
    st('att go')
    W1L = int(OPT.get('w1l', 0))
    extra = (touch_w1() if W1L else wtile_dma(False)) + wB_loads(True, list(range(8))) + wB_loads(False, list(range(NW2PRE))) + touch_wqkv()
    attn(extra)
    st('att sig')
    gemmB_pre(True)
    a('s_waitcnt vmcnt(1)')
    poll_test(1, 'main_wo_go')
    poll_spin(1, 'main_wo_go', hook=sig_step)
    if 'w' in OPT.get('es', ''): sig_try(1, 0)
    a('s_barrier')
    gemmB(True, tail=wB_loads(False, list(range(NW2PRE, 22))))
    a('s_cmp_eq_u32 s16, 15')
    a('s_cbranch_scc1 main_skip_ffn1')
    gemmA_pre(False)
    a('s_waitcnt vmcnt(0)')
    poll_test(1, 'main_f1_go')
    poll_spin(1, 'main_f1_go', d=dd('g', 2))
    st('ffn1 go')
    gemmA(False)
    sig_addr(3, 17)
    if 'f' in DIR:
        a('s_cmp_ge_u32 s12, 2'); a('s_cselect_b32 s97, 0, 2')
    a('s_mov_b32 s41, 1')
    a.label('main_skip_ffn1')
    gemmB_pre(False)
    st('ffn1 sig')
    a('s_cmp_ge_u32 s12, 2')
    a('s_cbranch_scc1 main_f2_bar')
    sig_try(1, 0)
    a('s_cmp_eq_u32 s26, 1'); a('s_cbranch_scc1 main_noq')
    a('s_cmp_eq_u32 s16, 15'); a('s_cselect_b32 s63, 0, 4')
    a(f'v_mov_b32 v{T0}, {CNTL}')
    for region in range(2):
        lp = a.lab('lspin'); ok = a.lab('lok')
        a('s_mov_b32 s51, 0')
        a.label(lp)
        a(f'ds_read_b32 v{T1}, v{T0} offset:{4*region}')
        a('s_add_u32 s51, s51, 1')
        a('s_waitcnt lgkmcnt(0)')
        a(f'v_readfirstlane_b32 s52, v{T1}')
        a('s_cmp_ge_u32 s52, s63'); a(f's_cbranch_scc1 {ok}')
        a('s_sleep 1')
        a(f's_cmp_lt_u32 s51, {8*SPIN}'); a(f's_cbranch_scc1 {lp}')
        a.label(ok)
        gs_ = wq_third(region, 2)
        if region == 0:
            run_groups(gs_[:3]); sig_try(2, 8); run_groups(gs_[3:])
        else: run_groups(gs_)
    a.label('main_noq')
    sig_try(2, 0)
    poll(3, [21])
    a.label('main_f2_bar')
    if 'f' in OPT.get('es', ''): sig_try(1, 0)
    a('s_barrier')
    gemmB(False, tail=wq_third(2, 2))
    if STAMP: a('s_waitcnt vmcnt(0)'); st('end')
    dump()
    a('s_cmp_eq_u32 s26, 1')
    a('s_cbranch_scc1 main_end')
    a('s_mov_b32 s26, 1'); a(f's_mov_b32 s27, {2*L.MB}'); a(f's_add_u32 s28, s28, {LST}')
    a('s_branch main_layer')
    a.label('main_end')
    a('s_endpgm')
    return 256, 160*1024


if __name__ == '__main__':
    p = Prog()
    cfg = gen_main(p)
    p.launches.append((KNAME, 256, *cfg))
    errs = p.a.check_branches()
    for e in errs: print('HAZARD', e, file=sys.stderr)
    txt = p.text()
    if os.environ.get('SINGLE'):
        txt = txt.replace(f'; @launch kernel={KNAME} ', '; @launch ')
    open(sys.argv[1], 'w').write(txt)
    if STAMP: open(sys.argv[1] + '.names', 'w').write('\n'.join(STAMPS))
    print('pads', p.a.pads, 'instrs', sum(1 for i in p.a.ins if i.states), file=sys.stderr)
```

```python
import sys, os
sys.path.insert(0, 'work')
from gen import *

CNT = L.FLAGS
CST = 512
FOFF = 256
CB = [0, 128, 384, 448, 512]
LST = 576 * CST
def areg(a0, n=4): return f'a[{a0}:{a0+n-1}]'
FT = 33 * 1024
WT = 3 * FT
RED = WT; PART = WT; SCR = WT + 56*1024; CNTL = WT + 55*1024
OPT = dict(bwin='12', apre='16', nb='16', bwin2='12', gs='3'); OPT.update(x.split('=') for x in os.environ.get('OPT', '').split(',') if x)
TARGET = {0: 8, 1: 8, 2: 16, 3: 15, 4: 16}
SPIN = 0x200000
STAMPS = []
K1 = 1
W2KS = 96
NSIDE = 206
WCELL = CNT + 2*LST
KNAME = 'interleave_layers__mha_block__dense_activation_mish__prompt_kernel'


def phase0(a):
    a('s_load_dwordx4 s[8:11], s[0:1], 0')
    a('s_load_dwordx4 s[20:23], s[0:1], 64')
    a('s_getpc_b64 s[60:61]')
    a.label('p0_pc')
    a('s_and_b32 s62, s2, 8'); a('s_lshl_b32 s62, s62, 12')
    a('s_sub_u32 s63, main_end-p0_pc, s62')
    a('s_add_u32 s60, s60, s62'); a('s_addc_u32 s61, s61, 0')
    a('v_lshlrev_b32 v182, 7, v0')
    a('v_min_u32 v182, s63, v182')
    a('v_mov_b32 v183, s61')
    a('v_add_co_u32 v182, vcc, s60, v182')
    a('v_addc_co_u32 v183, vcc, 0, v183, vcc')
    a('global_load_dword v184, v[182:183], off')
    a('s_load_dwordx2 s[84:85], s[0:1], 16')
    a('s_load_dwordx4 s[88:91], s[0:1], 32')
    a('s_load_dwordx2 s[86:87], s[0:1], 48')
    LN, L16, L4, T0, T1, T2, T3 = 1, 2, 3, 4, 5, 6, 7
    a(f'v_and_b32 v{LN}, 63, v0')
    a(f'v_lshrrev_b32 v{T0}, 6, v0')
    a(f'v_readfirstlane_b32 s12, v{T0}')
    a('s_and_b32 s13, s2, 7'); a('s_lshr_b32 s14, s2, 3')
    MAP = int(OPT.get('map', 0))
    if MAP == 0:
        a('s_lshl_b32 s15, s13, 2'); a('s_and_b32 s33, s14, 3'); a('s_add_u32 s15, s15, s33')
        a('s_lshr_b32 s18, s14, 2')
        a('s_add_u32 s48, s18, s13')
    else:
        a('s_lshr_b32 s15, s13, 1'); a('s_lshl_b32 s15, s15, 3'); a('s_and_b32 s33, s14, 7'); a('s_add_u32 s15, s15, s33')
        a('s_lshr_b32 s18, s14, 3')
        if MAP == 1:
            a('s_lshl_b32 s18, s18, 1'); a('s_and_b32 s33, s13, 1'); a('s_add_u32 s18, s18, s33')
        else:
            a('s_and_b32 s33, s13, 1'); a('s_lshl_b32 s33, s33, 2'); a('s_add_u32 s18, s18, s33')
        a('s_lshr_b32 s48, s14, 2'); a('s_add_u32 s48, s48, s13')
    a('s_and_b32 s48, s48, 7')
    WSL = 12288; XB = 8*WSL; XSL = 8192
    DW, DX = 8, 9
    a(f'v_lshrrev_b32 v{T0}, 3, v{LN}')
    a(f'v_and_b32 v{T1}, 7, v{LN}')
    a(f'v_bfe_u32 v{T2}, v{LN}, 4, 1')
    a(f'v_lshlrev_b32 v{T2}, 2, v{T2}')
    a(f'v_xor_b32 v{T2}, v{T1}, v{T2}')
    a(f'v_mul_u32_u24 v{DW}, 3072, v{T0}')
    a(f'v_lshl_add_u32 v{DW}, v{T2}, 4, v{DW}')
    a(f'v_lshrrev_b32 v{T2}, 4, v{LN}')
    a(f'v_xor_b32 v{T2}, v{T1}, v{T2}')
    a(f'v_lshlrev_b32 v{DX}, 10, v{T0}')
    a(f'v_lshl_add_u32 v{DX}, v{T2}, 4, v{DX}')
    a(f'v_xor_b32 v{DX+1}, 64, v{DX}')
    a(f'v_add_u32 v{DX+1}, {8*1024 - 1024}, v{DX+1}')
    a('s_mul_i32 s40, s12, 24576'); a('s_lshl_b32 s33, s18, 7'); a('s_add_u32 s40, s40, s33')
    a('s_lshl_b32 s43, s15, 16'); a('s_lshl_b32 s33, s12, 14'); a('s_add_u32 s43, s43, s33')
    a(f's_mul_i32 s33, s48, {64*3072}'); a('s_add_u32 s40, s40, s33')
    a('s_lshl_b32 s33, s48, 7'); a('s_add_u32 s43, s43, s33')
    a(f's_mov_b32 s49, {64*3072}'); a('s_movk_i32 s51, 128')
    a('s_mov_b32 s76, s18'); a('s_mov_b32 s77, s18')
    a('s_mul_i32 s44, s12, 3072'); a('s_lshl_b32 s45, s12, 11'); a(f's_add_u32 s45, s45, {XB}')
    a(f's_sub_u32 s33, s2, {int(OPT.get("clr", 64))}'); a('s_lshl_b32 s34, s33, 2'); a('s_add_u32 s34, s34, s12'); a(f's_mul_i32 s34, s34, {37*256}')
    a(f's_add_u32 s34, s34, {CNT}')
    a(f'v_min_u32 v{T0}, 36, v{LN}'); a(f'v_lshlrev_b32 v{T0}, 8, v{T0}')
    a(f'v_mov_b32 v{T1}, 0')
    if STAMP:
        a('s_memrealtime s[96:97]')
    a('s_waitcnt lgkmcnt(0)')
    if STAMP:
        STAMPS.append('p0 prek'); i_ = len(STAMPS) - 1
        a(f'v_writelane_b32 v11, s96, {2*i_+2}'); a(f'v_writelane_b32 v11, s96, {2*i_+3}')
    stp0('p0 karg')
    srd(a, 4, 22, L.WS_BYTES)
    srd(a, 28, 10, 512*1536*2)
    srd(a, 8, 8, 2*L.MB)
    a('s_cmp_lt_u32 s33, 16'); a('s_cselect_b32 s35, 1, 0')
    a('s_cbranch_scc0 p0_noclr')
    a(f'buffer_store_dword v{T1}, v{T0}, s[4:7], s34 offen sc1')
    a.label('p0_noclr')
    def dma_pair(sl):
        o = []
        o.append([f's_add_u32 m0, s45, {sl*XSL}', f's_add_u32 s46, s40, {32*3072}', f'buffer_load_dwordx4 v{DX}, s[8:11], s43 offen lds',
                  f'buffer_load_dwordx4 v{DX+1}, s[8:11], s43 offen offset:1024 lds'])
        o.append([f's_add_u32 m0, s44, {2*sl*WSL}', 's_add_u32 s48, s48, 1'] +
                 [f'buffer_load_dwordx4 v{DW}, s[28:31], s40 offen offset:{1024*u} lds' for u in range(3)])
        o.append(['s_cmp_eq_u32 s48, 8', f's_cselect_b32 s50, {(128 - 1024) & 0xffffffff}, s51', f's_cselect_b32 s52, {((64 - 512)*3072) & 0xffffffff}, s49'])
        o.append([f's_add_u32 m0, s44, {(2*sl + 1)*WSL}', 's_add_u32 s43, s43, s50'] +
                 [f'buffer_load_dwordx4 v{DW}, s[28:31], s46 offen offset:{1024*u} lds' for u in range(3)] + ['s_add_u32 s40, s40, s52'])
        return o
    def run(gs):
        for g in gs:
            for t in g: a(t)
    TCH = int(OPT.get('tch', 1))
    if TCH == 1:
        a('s_lshl_b32 s33, s2, 2'); a('s_add_u32 s33, s33, s12'); a('s_mul_i32 s33, s33, 1536')
        a(f'v_lshlrev_b32 v185, 7, v{LN}')
        a('s_mov_b64 exec, 0xfff')
        a('buffer_load_dword v187, v185, s[28:31], s33 offen')
        a('s_mov_b64 exec, -1')
    def touch_all():
        a('s_lshl_b32 s33, s14, 2'); a('s_add_u32 s33, s33, s12')
        a('s_lshl_b32 s34, s33, 11'); a('s_lshl_b32 s53, s13, 18'); a('s_add_u32 s34, s34, s53')
        a('s_mul_i32 s33, s33, 12288'); a('s_add_u32 s53, s33, 8192')
        a(f'v_lshlrev_b32 v185, 7, v{LN}')
        a('buffer_load_dword v187, v185, s[28:31], s33 offen')
        a('s_mov_b64 exec, 0xffffffff')
        a('buffer_load_dword v186, v185, s[28:31], s53 offen')
        a('s_mov_b64 exec, 0xffff')
        a('buffer_load_dword v188, v185, s[8:11], s34 offen')
        a('s_mov_b64 exec, -1')
    if TCH == 2: touch_all()
    run(dma_pair(0))
    if TCH == 3: touch_all()
    stp0('p0 dma0')
    srd(a, 20, 20, 256)
    if int(OPT.get('tlb', 0)):
        a(f'v_lshlrev_b32 v185, 21, v{LN}'); a(f'v_min_u32 v185, {CNT}, v185')
        a('buffer_load_dword v186, v185, s[4:7], 0 offen')
        a(f'buffer_load_dword v187, v{T1}, s[20:23], 0 offen offset:192')
    run(dma_pair(1))
    a(f'v_lshlrev_b32 v{L16}, 4, v{LN}')
    a(f'v_lshlrev_b32 v{L4}, 2, v{LN}')
    a('s_lshr_b32 s19, s12, 1'); a('s_and_b32 s24, s12, 1'); a('s_xor_b32 s25, s19, s24')
    RW = 66
    a(f'v_lshrrev_b32 v{T0}, 5, v{LN}'); a(f'v_mul_u32_u24 v{T0}, 3072, v{T0}')
    a(f'v_bfe_u32 v{T1}, v{LN}, 2, 2'); a(f'v_lshl_add_u32 v{RW}, v{T1}, 7, v{T0}')
    a(f'v_bfe_u32 v{T1}, v{LN}, 3, 1'); a(f'v_xor_b32 v{T1}, s24, v{T1}'); a(f'v_lshl_add_u32 v{RW}, v{T1}, 6, v{RW}')
    a(f'v_bfe_u32 v{T1}, v{LN}, 4, 1'); a(f'v_lshl_add_u32 v{RW}, v{T1}, 5, v{RW}')
    a(f'v_and_b32 v{T1}, 3, v{LN}'); a(f'v_lshl_add_u32 v{RW}, v{T1}, 3, v{RW}')
    a('s_mul_i32 s33, s25, 6144'); a('s_sub_u32 s34, 6144, s33')
    a(f'v_add_u32 v{RW+1}, s34, v{RW}'); a(f'v_add_u32 v{RW}, s33, v{RW}')
    a(f'v_add_u32 v70, {4*WSL}, v{RW}'); a(f'v_add_u32 v71, {4*WSL}, v{RW+1}')
    RX = 12
    a(f'v_and_b32 v{T0}, 31, v{LN}'); a(f'v_lshlrev_b32 v{T1}, 7, v{T0}')
    a(f'v_bfe_u32 v{T2}, v{LN}, 1, 3'); a(f'v_lshrrev_b32 v{T3}, 5, v{LN}'); a(f'v_xor_b32 v{T2}, v{T2}, v{T3}')
    a(f'v_lshl_add_u32 v{T1}, v{T2}, 4, v{T1}')
    a('s_lshl_b32 s33, s25, 5'); a(f'v_xor_b32 v{T1}, s33, v{T1}')
    a('s_lshl_b32 s33, s19, 12'); a(f's_add_u32 s33, s33, {XB}')
    a(f'v_add_u32 v{RX}, s33, v{T1}')
    for q in range(1, 4): a(f'v_xor_b32 v{RX+q}, {32*q}, v{RX}')
    STV = 16; RS, RQ = 68, 69; XE = 72; WE = 192
    FRG = [192, 128]
    ACC = [80 + 16*i for i in range(3)]
    S1, S2, CS, ONE, AV = 32, 33, 34, 37, 38
    for r_ in range(S1, CS + 3): a(f'v_mov_b32 v{r_}, 0')
    a(f'v_mov_b32 v{ONE}, {ONES}')
    SUMS = 48; OA_ = 44
    M16 = 'v_mfma_f32_16x16x32_bf16'
    a(f'v_and_b32 v{T0}, 31, v{LN}')
    a(f'v_cmp_eq_u32 vcc, 0, v{T0}'); a(f'v_cmp_eq_u32 s[60:61], 17, v{T0}'); a('s_or_b64 vcc, vcc, s[60:61]')
    for r_ in range(4): a(f'v_cndmask_b32 v{OA_+r_}, 0, v{ONE}, vcc')

    SD, SR = 40, 41
    EARLY = int(OPT.get('early', 1))
    def side_params():
        a('s_and_b32 s26, s2, 0xf0'); a('s_lshl_b32 s33, s13, 1'); a('s_add_u32 s26, s26, s33'); a('s_and_b32 s33, s14, 1'); a('s_add_u32 s26, s26, s33')
        SROT = int(OPT.get('srot', 128))
        a(f's_add_u32 s26, s26, {SROT}'); a('s_and_b32 s26, s26, 255')
        a('s_mov_b32 s95, 0x00020000')
        a('s_lshl_b32 s71, s12, 12'); a(f's_add_u32 s71, s71, {XB + 4*XSL}')
        a(f'v_lshrrev_b32 v{T0}, 5, v{LN}'); a(f'v_lshlrev_b32 v{T0}, 2, v{T0}')
        a(f'v_bfe_u32 v{T2}, v{LN}, 2, 2'); a(f'v_add_u32 v{T0}, v{T0}, v{T2}')
        a(f'v_bfe_u32 v{T2}, v{LN}, 4, 1'); a(f'v_lshlrev_b32 v{T2}, 5, v{T2}')
        a(f'v_and_b32 v{T1}, 3, v{LN}'); a(f'v_lshl_add_u32 v{T2}, v{T1}, 3, v{T2}')
        a('s_cmp_ge_u32 s26, 88'); a('s_cbranch_scc1 p0_rows')
        a('s_mov_b32 s92, s88'); a('s_mov_b32 s93, s89'); a(f's_mov_b32 s94, {512*1376*2}'); a('s_mov_b32 s65, 2')
        a('s_cmp_ge_u32 s26, 44'); a('s_cselect_b32 s69, 1, 0'); a('s_mul_i32 s33, s69, 44'); a('s_sub_u32 s68, s26, s33')
        a(f's_mul_i32 s70, s68, {FT}'); a(f's_add_u32 s70, s70, {L.W1F}')
        a('s_lshl_b32 s33, s69, 2'); a('s_add_u32 s33, s33, s12')
        a('s_lshl_b32 s66, s33, 12'); a('s_add_u32 s66, s66, s70'); a('s_movk_i32 s72, 1024')
        a(f's_mov_b32 s73, {16*2752}'); a(f's_mul_i32 s67, s33, {64*2752}'); a('s_lshl_b32 s33, s68, 6'); a('s_add_u32 s67, s67, s33')
        a(f'v_lshrrev_b32 v{SD}, 2, v{LN}'); a(f'v_mul_u32_u24 v{SD}, 2752, v{SD}'); a(f'v_lshl_add_u32 v{SD}, v{T1}, 4, v{SD}')
        a(f'v_lshl_add_u32 v{SR}, v{T0}, 6, v{T2}'); a(f'v_add_u32 v{SR}, s71, v{SR}')
        a('s_branch p0_prm')
        a.label('p0_rows')
        a('s_mov_b32 s65, 0'); a('s_movk_i32 s73, 1024')
        a('s_mov_b32 s92, s84'); a('s_mov_b32 s93, s85'); a(f's_mov_b32 s94, {512*512*2}')
        a('s_sub_u32 s68, s26, 88'); a(f's_mov_b32 s72, {32*1024}'); a(f's_mov_b32 s70, {L.WOF}')
        a('s_cmp_lt_u32 s26, 120'); a('s_cbranch_scc1 p0_rows2')
        a('s_mov_b32 s92, s86'); a('s_mov_b32 s93, s87'); a(f's_mov_b32 s94, {1376*512*2}')
        a('s_sub_u32 s68, s26, 120'); a(f's_mov_b32 s72, {W2KS*1024}'); a(f's_mov_b32 s70, {L.W2F}')
        a(f's_cmp_ge_u32 s26, {NSIDE}'); a('s_cselect_b32 s94, 0, s94')
        a.label('p0_rows2')
        a('s_lshl_b32 s67, s68, 14'); a('s_lshl_b32 s33, s12, 12'); a('s_add_u32 s67, s67, s33')
        a('s_lshl_b32 s33, s12, 2'); a('s_mul_i32 s66, s33, s72'); a('s_lshl_b32 s33, s68, 10'); a('s_add_u32 s66, s66, s33'); a('s_add_u32 s66, s66, s70')
        a(f'v_mov_b32 v{SD}, v{L16}')
        a('s_lshl_b32 s33, s12, 8'); a(f's_add_u32 s33, s33, {XB + 4*XSL}')
        a(f'v_lshl_add_u32 v{SR}, v{T0}, 10, v{T2}'); a(f'v_add_u32 v{SR}, s33, v{SR}')
        a.label('p0_prm')
        a('s_and_b32 s93, s93, 0xffff')
    def side_dma():
        return [[f's_add_u32 m0, s71, {i*1024}', 's_nop 0', f'buffer_load_dwordx4 v{SD}, s[92:95], s67 offen lds', 's_add_u32 s67, s67, s73'] for i in range(4)]
    def reads(sl):
        F = FRG[sl % 2]; o = []
        for j in range(4):
            h, s_ = divmod(j, 2)
            o.append(f'ds_read_b128 {v(F+16*j,4)}, v{RX + j} offset:{sl*XSL}')
            ad = (RW if sl < 2 else 70) + s_
            for u in range(3):
                r = F + 16*j + 4 + 4*u; off = (2*(sl % 2) + h)*WSL + u*1024
                o.append(f'ds_read_b64_tr_b16 {v(r,2)}, v{ad} offset:{off}')
                o.append(f'ds_read_b64_tr_b16 {v(r+2,2)}, v{ad} offset:{off+512}')
        return o
    def mf(f, xf, wf, first):
        cc = '0' if first else v(ACC[f], 16)
        if f == 2: a(f'{MFMA} {v(ACC[f],16)}, {xf}, {wf}, {cc}')
        else: a(f'{MFMA} {v(ACC[f],16)}, {wf}, {xf}, {cc}')
    side_params()
    if int(OPT.get('stch', 0)):
        a(f'v_lshrrev_b32 v185, 3, v{LN}'); a('v_mul_lo_u32 v185, v185, s73'); a(f'v_and_b32 v186, 7, v{LN}'); a('v_lshl_add_u32 v185, v186, 7, v185')
        a(f'v_mul_u32_u24 v186, 2752, v{LN}')
        a('s_cmp_eq_u32 s65, 0'); a('s_cselect_b64 vcc, -1, 0'); a(f's_cselect_b32 s33, 0, {64*2752}'); a('s_add_u32 s33, s33, s67')
        a('v_cndmask_b32 v185, v186, v185, vcc')
        a('buffer_load_dword v188, v185, s[92:95], s67 offen')
        a('buffer_load_dword v189, v185, s[92:95], s33 offen')
    run(dma_pair(2))
    stp0('p0 setup')
    a(f's_waitcnt vmcnt({16 + 2*int(OPT.get("stch", 0))})')
    a('s_barrier')
    stp0('p0 first')
    for t in reads(0): a(t)
    SC0 = 8192; CA = 42
    def rec(f):
        o = []
        f(o.append)
        return o
    def tail_pre(a):
        a(f's_mov_b32 s10, {2*L.MB}')
        a('s_lshl_b32 s17, s15, 1'); a('s_add_u32 s17, s17, s19')
        a('s_lshl_b32 s16, s18, 1'); a('s_add_u32 s16, s16, s24')
        a('s_lshl_b32 s76, s76, 1'); a('s_add_u32 s76, s76, s24'); a('s_lshl_b32 s77, s77, 1'); a('s_add_u32 s77, s77, s24')
        a('s_lshl_b32 s33, s17, 10')
        a('s_lshl_b32 s56, s16, 17'); a('s_add_u32 s56, s56, s33'); a('s_add_u32 s57, s56, 0x10000')
        a('s_lshl_b32 s58, s76, 17'); a('s_add_u32 s58, s58, s33'); a(f's_add_u32 s58, s58, {L.K[0]}'); a('s_add_u32 s59, s58, 0x10000')
        a('s_lshl_b32 s54, s77, 17'); a('s_add_u32 s54, s54, s33'); a(f's_add_u32 s54, s54, {L.V[0]}')
        a(f'v_bfe_u32 v78, v{LN}, 4, 1'); a('v_lshlrev_b32 v78, 16, v78')
        a(f'v_lshrrev_b32 v79, 5, v{LN}'); a('v_lshl_add_u32 v78, v79, 8, v78')
        a(f'v_and_b32 v79, 15, v{LN}'); a('v_lshl_add_u32 v78, v79, 4, v78')
        a(f'v_and_b32 v{T3}, 124, v{L4}')
        a('s_xor_b32 s33, s12, 1'); a('s_mul_i32 s33, s33, 3072'); a(f'v_add_u32 v{T1}, s33, v{T3}')
        a('s_xor_b32 s33, s12, 2'); a('s_mul_i32 s33, s33, 3072'); a(f'v_add_u32 v{T2}, s33, v{T3}')
        a(f'v_add_u32 v{T0}, s44, v{L4}')
        a('s_add_u32 s33, s44, 1024')
        a(f'v_add_u32 v76, s33, v{L4}')
        a(f'v_lshrrev_b32 v77, 5, v{LN}'); a('v_lshlrev_b32 v77, 4, v77'); a('v_add_u32 v77, s33, v77')
        a(f'v_cmp_gt_u32 vcc, 32, v{LN}')
        a('s_lshr_b32 s42, s17, 4'); a('s_lshl_b32 s42, s42, 1')
        a('s_and_b32 s33, s17, 1'); a('s_add_u32 s42, s42, s33'); a(f's_mul_i32 s42, s42, {CST}'); a(f's_add_u32 s42, s42, {CNT}')
        a(f's_mul_i32 s33, s16, {8*CST}'); a(f'v_mov_b32 v{CA}, s33')
        a('s_and_b32 s33, s15, 3'); a('s_mul_i32 s34, s33, 6144'); a(f's_add_u32 s34, s34, {6*WSL}')
        a(f'v_lshrrev_b32 v43, 5, v{LN}'); a('v_mul_u32_u24 v64, 2560, v43')
        a('s_mul_i32 s53, s25, 6144'); a('s_sub_u32 s34, s34, s53')
        a(f'v_sub_u32 v43, v{RW}, v64'); a('v_add_u32 v43, s34, v43')
        a('s_add_u32 s53, s48, 7'); a('s_and_b32 s53, s53, 7'); a('s_lshl_b32 s53, s53, 2'); a('s_add_u32 s53, s53, s33'); a('s_lshl_b32 s53, s53, 10')
        a(f's_mul_i32 s33, s16, {FT}'); a('s_add_u32 s53, s53, s33'); a(f's_add_u32 s53, s53, {L.WQKVF}')
    def tail_comb(a):
        for u in range(3):
            a(f'ds_read_b64_tr_b16 {v(204+4*u,2)}, v43 offset:{u*1024}')
            a(f'ds_read_b64_tr_b16 {v(206+4*u,2)}, v43 offset:{u*1024+3072}')
        a(f'v_add_f32 v{S1}, v{S1}, v{S2}')
        a(f'ds_write_b32 v{T0}, v{S1} offset:512')
        a('s_mov_b64 exec, 0xffff')
        for u in range(4): a(f'ds_write2_b32 v{T0}, v{SUMS+4*u}, v{SUMS+4*u+1} offset0:{32*u} offset1:{32*u+16}')
        a('s_mov_b64 exec, -1')
        a(f'v_add_u32 v{T0}, s44, v{T3}')
        a('s_waitcnt lgkmcnt(0)')
        a('s_barrier')
        a(f'ds_read_b32 v{STV}, v{T0} offset:384'); a(f'ds_read_b32 v{STV+2}, v{T1} offset:384')
        a(f'ds_read2_b32 {v(STV+4,2)}, v{T0} offset0:128 offset1:160'); a(f'ds_read2_b32 {v(STV+6,2)}, v{T1} offset0:128 offset1:160')
        for u in range(3):
            a(f'ds_read_b32 v{CS+u}, v{T0} offset:{128*u}')
            a(f'ds_read_b32 v{48+u}, v{T2} offset:{128*u}')
        a('s_waitcnt lgkmcnt(6)')
        a(f'v_add_f32 v{STV}, v{STV}, v{STV+2}')
        a(f'v_add_f32 v{STV+4}, v{STV+4}, v{STV+5}'); a(f'v_add_f32 v{STV+6}, v{STV+6}, v{STV+7}'); a(f'v_add_f32 v{STV+1}, v{STV+4}, v{STV+6}')
        a(f'v_mul_f32 v{STV}, {f32(-1.0/512)}, v{STV}')
        a(f'v_mul_f32 v{STV+1}, {f32(1.0/512)}, v{STV+1}')
        a(f'v_fma_f32 v{STV+1}, -v{STV}, v{STV}, v{STV+1}')
        a(f'v_max_f32 v{STV+1}, 0, v{STV+1}')
        a(f'v_add_f32 v{STV+1}, {f32(1e-5)}, v{STV+1}')
        a(f'v_rsq_f32 v{RS}, v{STV+1}')
        MH, MM, ML, TT = STV+2, STV+3, STV+4, STV+8
        split3(a, STV, MH, MM, ML, TT)
        a(f'ds_write_b32 v76, v{RS}')
        pack_hi(a, XE, MH, MM)
        a(f'v_lshrrev_b32 v{XE+1}, 16, v{ML}'); a(f'v_mov_b32 v{XE+2}, 0'); a(f'v_lshrrev_b32 v{XE+3}, 16, v{MH}')
        a(f'v_mul_f32 v{RQ}, {f32(L.QSCALE)}, v{RS}')
        for j in range(4): a(f'ds_read_b128 {v(STV+4*j,4)}, v77 offset:{32*j}')
        a('s_waitcnt lgkmcnt(5)')
        for u in (1, 2, 0):
            c_ = CS + u; W_ = WE + 4*u; HI, MID, LO, TQ = 44, 45, 46, 47
            a(f'v_add_f32 v{c_}, v{c_}, v{48+u}')
            split3(a, c_, HI, MID, LO, TQ)
            a(f'v_lshrrev_b32 v{W_+1}, 16, v{HI}'); a(f'v_or_b32 v{W_}, v{W_+1}, v{HI}')
            a(f'v_lshrrev_b32 v{W_+3}, 16, v{MID}')
            pack_hi(a, TQ, LO, MID)
            a(f'v_cndmask_b32 v{W_}, v{TQ}, v{W_}, vcc')
            a(f'v_cndmask_b32 v{W_+1}, 0, v{W_+1}, vcc')
            a(f'v_mov_b32 v{W_+2}, 0')
            a(f'v_cndmask_b32 v{W_+3}, 0, v{W_+3}, vcc')
    def singles(gs):
        out = []; cur = []
        for g in gs:
            for t in g:
                cur.append(t)
                if t.startswith('buffer'): out.append(cur); cur = []
        out[-1] += cur
        return out
    S0 = int(OPT.get('s0', 2))
    sd = side_dma()
    nis = 24; endof = {0: 8, 1: 16, 2: 24}
    masked = False
    for it in range(8):
        sl = it % 4
        if it + 1 < 8:
            a(f's_waitcnt vmcnt({nis - endof[it + 1]}) lgkmcnt(0)')
            a('s_barrier')
            q = reads((it + 1) % 4)
        else:
            a('s_waitcnt lgkmcnt(0)')
            q = []
        dp = []
        if it + 3 < 8: dp = singles(dma_pair((it + 3) % 4))
        nis += len(dp); endof[it + 3] = nis
        if it >= S0 and sd:
            ex = [sd.pop(0), sd.pop(0)]
            dp = dp + ex; nis += 2
        F = FRG[sl % 2]
        xq = rec(tail_pre) if it == 6 else []
        if it == 7:
            for r_ in range(4):
                a(f'v_dot2_f32_bf16 v{S1}, v{F+r_}, v{F+r_}, v{S1}')
                a(f'v_dot2_f32_bf16 v{S2}, v{F+32+r_}, v{F+32+r_}, v{S2}')
            for j in range(4):
                if j % 2:
                    for f in range(3): a(f'{M16} {v(SUMS+4*f,4)}, {v(OA_,4)}, {v(F+16*j+4+4*f,4)}, {v(SUMS+4*f,4)}')
                else: a(f'{M16} {v(SUMS+12,4)}, {v(OA_,4)}, {v(F+16*j,4)}, {v(SUMS+12,4)}')
            xq = rec(tail_comb)
            for n in range(12):
                j, f = divmod(n, 3)
                mf(f, v(F+16*j, 4), v(F+16*j+4+4*f, 4), False)
                if n == 0: continue
                cnt = 0
                while xq and (cnt < 8 or masked):
                    t = xq.pop(0); a(t); cnt += 1
                    if 'exec' in t: masked = '-1' not in t
                    if t.startswith(('s_waitcnt', 's_barrier')) and not masked and cnt > 2: break
                    if xq and xq[0].startswith('s_waitcnt') and not masked: break
            for t in xq: a(t)
            continue
        for n in range(12):
            j, f = divmod(n, 3)
            mf(f, v(F+16*j, 4), v(F+16*j+4+4*f, 4), it == 0 and j == 0)
            for _ in range(6):
                if xq: a(xq.pop(0))
            for _ in range(3 if n < 4 else 2):
                if q: a(q.pop(0))
            if dp and n not in ((0, 3, 6, 9) if len(dp) <= 11 - n - (11 - n)//3 else (0,)):
                for t in dp.pop(0): a(t)
            z_ = lambda r: '0' if (it == 0 and j < 2) else v(r, 4)
            if j % 2 == 1: a(f'{M16} {v(SUMS+4*f,4)}, {v(OA_,4)}, {v(F+16*j+4+4*f,4)}, {z_(SUMS+4*f)}')
            elif f == 1: a(f'{M16} {v(SUMS+12,4)}, {v(OA_,4)}, {v(F+16*j,4)}, {z_(SUMS+12)}')
            if n == 0 and it in (0, 3):
                a('s_cmp_eq_u32 s35, 0'); a(f's_cbranch_scc0 p0_clr{it}')
                a.label(f'p0_back{it}')
        assert not q and not dp and not xq
        for r_ in range(4):
            a(f'v_dot2_f32_bf16 v{S1}, v{F+r_}, v{F+r_}, v{S1}')
            a(f'v_dot2_f32_bf16 v{S2}, v{F+32+r_}, v{F+32+r_}, v{S2}')
        if it == 3: stp0('p0 trip0')
    a('s_branch p0_after')
    a.label('p0_clr0')
    a('s_cmp_lg_u32 s12, 0'); a('s_cbranch_scc1 p0_back0')
    a('s_mov_b64 exec, 1'); a(f'v_mov_b32 v{AV}, 1')
    a(f'buffer_atomic_add v{AV}, v{L4}, s[20:23], 0 offen sc0 sc1')
    a('s_mov_b64 exec, -1')
    a('s_branch p0_back0')
    a.label('p0_clr3')
    a('s_cmp_lg_u32 s12, 0'); a('s_cbranch_scc1 p0_back3')
    a(f'v_readfirstlane_b32 s33, v{AV}')
    a('s_cmp_lg_u32 s33, 15'); a('s_cbranch_scc1 p0_back3')
    a('s_mov_b64 exec, 1'); a(f'v_mov_b32 v{AV}, 1')
    a(f'buffer_store_dword v{AV}, v{L4}, s[20:23], 0 offen offset:128 sc1')
    a('s_mov_b64 exec, -1')
    a('s_branch p0_back3')
    a.label('p0_after')
    stp0('p0 loop')
    for u in (1, 2, 0): mf(u, v(XE, 4), v(WE + 4*u, 4), False)
    a('s_cmp_lg_u32 s19, 0'); a('s_cbranch_scc1 p0_nowe')
    for u in range(3):
        a(f'buffer_store_dwordx4 {v(204+4*u,4)}, v{L16}, s[4:7], s53 offen sc1')
        if u < 2: a(f's_add_u32 s53, s53, {16*FT}')
    a('s_cmp_lg_u32 s17, 0'); a('s_cbranch_scc1 p0_nowe')
    for u in range(3):
        a(f's_mul_i32 s33, s{(16, 76, 77)[u]}, {FT}'); a(f's_add_u32 s33, s33, {L.WQKVF + 32*1024 + 16*u*FT}')
        a(f'buffer_store_dwordx4 {v(WE+4*u,4)}, v{L16}, s[4:7], s33 offen sc1')
    a.label('p0_nowe')
    a('s_mov_b64 exec, 1')
    a(f'buffer_load_dword v{AV+1}, v{L4}, s[20:23], 0 offen offset:128 sc1')
    a('s_mov_b64 exec, -1')
    a('s_waitcnt lgkmcnt(0)')
    for f in (1, 2, 0):
        A = ACC[f]
        for g in range(2):
            B = A + 8*g
            for r_ in range(0, 8, 2):
                if f < 2:
                    o = 1 if f == 0 else 0
                    a(f'v_pk_mul_f32 {v(B+r_,2)}, {v(B+r_,2)}, {v(RS,2)} op_sel:[0,{o}] op_sel_hi:[1,{o}]')
                else:
                    a(f'v_pk_mul_f32 {v(B+r_,2)}, {v(B+r_,2)}, {v(STV+8*g+r_,2)}')
            for r_ in range(4): a(f'v_cvt_pk_bf16_f32 v{B+r_}, v{B+2*r_}, v{B+2*r_+1}')
            if f < 2: a(f'buffer_store_dwordx4 {v(B,4)}, v{L16}, s[4:7], s{56+2*f+g} offen sc1')
            else: a(f'buffer_store_dwordx4 {v(B,4)}, v78, s[4:7], s54 offen offset:{512*g} sc1')
    a(f'v_and_b32 v{T0}, 27, v{LN}')
    a(f'v_cmp_eq_u32 vcc, 16, v{T0}')
    a(f'v_cndmask_b32 v96, 0, v{ONE}, vcc'); a(f'v_cndmask_b32 v97, 0, v{ONE}, vcc')
    for r_ in range(2, 128, 2): a(f'v_pk_mov_b32 {v(96+r_,2)}, {v(96,2)}, {v(96,2)}')
    FR = 224
    a('s_waitcnt vmcnt(6)')
    a('s_mov_b32 s34, 0')
    a.label('p0_clr_poll')
    a(f'v_readfirstlane_b32 s33, v{AV+1}')
    a('s_cmp_eq_u32 s33, 1'); a('s_cbranch_scc1 p0_clr_ok')
    a('s_sleep 2')
    a('s_mov_b64 exec, 1')
    a(f'buffer_load_dword v{AV+1}, v{L4}, s[20:23], 0 offen offset:128 sc1')
    a('s_mov_b64 exec, -1')
    a('s_add_u32 s34, s34, 1')
    a('s_waitcnt vmcnt(0)')
    a(f's_cmp_lt_u32 s34, {SPIN}'); a('s_cbranch_scc1 p0_clr_poll')
    a.label('p0_clr_ok')
    a('s_waitcnt vmcnt(0)')
    a('s_mov_b64 exec, 1'); a(f'v_mov_b32 v{AV}, 1')
    a(f'buffer_atomic_add v{AV}, v{CA}, s[4:7], s42 offen sc0 sc1')
    a('s_mov_b64 exec, -1')
    stp0('p0 sig')
    FEARLY = int(OPT.get('fearly', 1))
    a(f's_cmp_ge_u32 s26, {NSIDE}'); a('s_cbranch_scc1 ' + ('p0_rd3' if FEARLY else 'p0_noside'))
    a('s_barrier')
    a('s_cmp_eq_u32 s65, 0'); a('s_cbranch_scc1 p0_rd2')
    for i in range(4):
        a(f'ds_read_b64_tr_b16 {v(FR+4*i,2)}, v{SR} offset:{i*1024}')
        a(f'ds_read_b64_tr_b16 {v(FR+4*i+2,2)}, v{SR} offset:{i*1024+512}')
    a('s_branch p0_rd3')
    a.label('p0_rd2')
    for i in range(4):
        a(f'ds_read_b64_tr_b16 {v(FR+4*i,2)}, v{SR} offset:{i*64}')
        a(f'ds_read_b64_tr_b16 {v(FR+4*i+2,2)}, v{SR} offset:{i*64+8192}')
    a.label('p0_rd3')
    if FEARLY:
        a('s_waitcnt vmcnt(0)')
        a(f'v_cmp_eq_u32 vcc, {TARGET[0]-1}, v{AV}')
        a('s_and_b64 vcc, vcc, 1'); a('s_cbranch_scc0 p0_notlast')
        a('s_mov_b64 exec, vcc'); a(f'v_mov_b32 v{AV}, 1')
        a(f'buffer_store_dword v{AV}, v{CA}, s[4:7], s42 offen offset:{FOFF} sc1')
        a('s_mov_b64 exec, -1')
        a.label('p0_notlast')
        a(f's_cmp_ge_u32 s26, {NSIDE}'); a('s_cbranch_scc1 p0_noside')
    a('s_waitcnt lgkmcnt(0)')
    for i in range(4):
        a(f'buffer_store_dwordx4 {v(FR+4*i,4)}, v{L16}, s[4:7], s66 offen sc1')
        a('s_add_u32 s66, s66, s72')
    a.label('p0_noside')
    a('s_cmp_eq_u32 s65, 0'); a('s_cbranch_scc1 p0_nosum')
    a(f'v_mov_b32 v{S1}, 0'); a(f'v_mov_b32 v{S2}, 0')
    for i in range(0, 16, 2):
        a(f'v_dot2_f32_bf16 v{S1}, v{FR+i}, v{ONE}, v{S1}')
        a(f'v_dot2_f32_bf16 v{S2}, v{FR+i+1}, v{ONE}, v{S2}')
    a('s_lshl_b32 s33, s12, 8'); a(f's_add_u32 s33, s33, {SC0 + 8192}')
    a(f'v_add_u32 v{T0}, s33, v{L4}')
    a(f'v_add_f32 v{S1}, v{S1}, v{S2}')
    a(f'ds_write_b32 v{T0}, v{S1}')
    a('s_waitcnt lgkmcnt(0)')
    a('s_barrier')
    a.label('p0_nosum')
    if not FEARLY:
        a(f's_cmp_ge_u32 s26, {NSIDE}'); a('s_cbranch_scc1 p0_v0')
        a('s_waitcnt vmcnt(8)')
        a('s_branch p0_v1')
        a.label('p0_v0')
        a('s_waitcnt vmcnt(0)')
        a.label('p0_v1')
        a(f'v_cmp_eq_u32 vcc, {TARGET[0]-1}, v{AV}')
        a('s_and_b64 vcc, vcc, 1'); a('s_cbranch_scc0 p0_notlast')
        a('s_mov_b64 exec, vcc'); a(f'v_mov_b32 v{AV}, 1')
        a(f'buffer_store_dword v{AV}, v{CA}, s[4:7], s42 offen offset:{FOFF} sc1')
        a('s_mov_b64 exec, -1')
        a.label('p0_notlast')
    a('s_cmp_lg_u32 s12, 3'); a('s_cbranch_scc1 p0_done')
    a(f's_cmp_ge_u32 s26, {NSIDE}'); a('s_cbranch_scc1 p0_done')
    a('s_cmp_eq_u32 s65, 0'); a('s_cbranch_scc1 p0_wsig')
    a(f'v_and_b32 v{T2}, 31, v{LN}'); a(f'v_lshlrev_b32 v{T2}, 2, v{T2}'); a(f'v_add_u32 v{T1}, {SC0+8192}, v{T2}')
    for i in range(8): a(f'ds_read_b32 v{48+i}, v{T1} offset:{128*i}')
    B = 61
    a(f'v_mov_b32 v{B}, 0')
    a('s_cmp_lg_u32 s69, 0'); a('s_cbranch_scc1 p0_nobias')
    a('s_mov_b32 s92, s90'); a('s_and_b32 s93, s91, 0xffff'); a(f's_mov_b32 s94, {1376*2}')
    a('s_lshl_b32 s33, s68, 6')
    a(f'v_lshrrev_b32 v{T3}, 1, v{T2}')
    a(f'buffer_load_ushort v{B}, v{T3}, s[92:95], s33 offen')
    a('s_waitcnt vmcnt(0)')
    a(f'v_lshlrev_b32 v{B}, 16, v{B}')
    a.label('p0_nobias')
    a('s_waitcnt lgkmcnt(0)')
    a('v_add_f32 v48, v48, v49'); a('v_add_f32 v50, v50, v51'); a('v_add_f32 v52, v52, v53'); a('v_add_f32 v54, v54, v55')
    a('v_add_f32 v48, v48, v50'); a('v_add_f32 v52, v52, v54'); a('v_add_f32 v48, v48, v52')
    HI, MID, LO = 62, 63, 64
    split3(a, 48, HI, MID, LO, 65)
    pack_hi(a, 56, HI, HI); pack_hi(a, 57, HI, B); pack_hi(a, 58, B, B)
    pack_hi(a, 59, MID, LO)
    a('s_lshl_b32 s33, s69, 9'); a('s_add_u32 s33, s33, s70'); a(f's_add_u32 s33, s33, {32*1024}')
    a('s_mov_b32 exec_hi, 0')
    a(f'buffer_store_dwordx4 v[56:59], v{L16}, s[4:7], s33 offen sc1')
    a('s_mov_b64 exec, -1')
    a.label('p0_wsig')
    a('s_mov_b32 s96, 1')
    a('s_branch p0_out')
    a.label('p0_done')
    a('s_mov_b32 s96, 0')
    a.label('p0_out')
    a('s_and_b32 s33, s26, 7'); a(f's_mul_i32 s42, s33, {CST}'); a(f's_add_u32 s42, s42, {WCELL}')
    a(f's_cmp_lt_u32 s33, {NSIDE % 8}'); a(f's_cselect_b32 s69, {NSIDE//8}, {NSIDE//8 - 1}')

def gen_main(p):
    a = p.a
    p.entry(KNAME, 512, 256)
    a('s_cmp_ge_u32 s2, 256')
    a('s_cbranch_scc1 main_end')
    global stp0
    def stp0(name):
        if not STAMP: return
        if name not in STAMPS: STAMPS.append(name)
        i = STAMPS.index(name)
        a('s_memtime s[98:99]'); a('s_memrealtime s[100:101]'); a('s_waitcnt lgkmcnt(0)')
        a(f'v_writelane_b32 v11, s98, {2*i+2}')
        a(f'v_writelane_b32 v11, s100, {2*i+3}')
    stp0('start')
    phase0(a)
    a('s_load_dwordx2 s[88:89], s[0:1], 56')
    LN, L16, L4, T0, T1, T2, T3 = 1, 2, 3, 4, 5, 6, 7
    RES = 8
    if STAMP: a('v_mov_b32 v0, v11')
    a('s_and_b32 s13, s2, 7'); a('s_lshr_b32 s14, s2, 3')
    a('s_lshl_b32 s15, s13, 1'); a('s_and_b32 s29, s14, 1'); a('s_add_u32 s15, s15, s29')
    a('s_lshr_b32 s16, s14, 1')
    a('s_lshl_b32 s17, s15, 2'); a('s_and_b32 s29, s12, 1'); a('s_lshl_b32 s29, s29, 1'); a('s_add_u32 s17, s17, s29')
    a('s_lshr_b32 s29, s12, 1'); a('s_add_u32 s17, s17, s29')
    a('s_lshl_b32 s18, s13, 2'); a('s_and_b32 s29, s14, 3'); a('s_add_u32 s18, s18, s29')
    a('s_lshr_b32 s19, s14, 2')
    a('s_lshl_b32 s21, s18, 1'); a('s_lshr_b32 s29, s12, 1'); a('s_add_u32 s20, s21, s29')
    a('s_lshl_b32 s22, s19, 1'); a('s_and_b32 s29, s12, 1'); a('s_add_u32 s22, s22, s29'); a('s_xor_b32 s23, s22, 1')
    a('s_mov_b32 s24, s18'); a('s_mov_b32 s25, s19')
    a('s_mov_b32 s26, 0'); a('s_mov_b32 s27, 0'); a(f's_mov_b32 s28, {CNT}')
    a('s_mov_b32 s30, 0x0000ffff'); a('s_mov_b32 s31, 0x0000ffff')
    a('s_lshl_b32 s32, s20, 5'); a('s_lshl_b32 s29, s22, 1'); a('s_add_u32 s32, s32, s29'); a('s_lshl_b32 s32, s32, 10')
    a('s_mul_i32 s33, s12, 22'); a('s_mul_i32 s29, s12, 21'); a('s_add_u32 s29, s29, 1')
    a('s_cmp_ge_u32 s12, 2'); a('s_cselect_b32 s33, s29, s33')
    a('s_lshl_b32 s34, s16, 2'); a('s_lshr_b32 s29, s17, 4'); a('s_add_u32 s34, s34, s29'); a('s_lshl_b32 s34, s34, 1')
    a('s_and_b32 s29, s17, 1'); a('s_add_u32 s34, s34, s29')
    a('s_lshr_b32 s29, s24, 1'); a('s_lshl_b32 s29, s29, 2'); a('s_add_u32 s35, s29, s12'); a('s_lshl_b32 s35, s35, 1')
    a('s_lshr_b32 s36, s25, 1'); a('s_add_u32 s36, s36, s29'); a('s_lshl_b32 s36, s36, 1')
    a('s_lshl_b32 s37, s25, 2'); a('s_add_u32 s37, s37, s12'); a('s_lshl_b32 s37, s37, 3'); a('s_lshr_b32 s29, s24, 3'); a('s_add_u32 s37, s37, s29')
    a('s_lshl_b32 s38, s18, 3'); a('s_add_u32 s38, s38, s12')
    a(f'v_and_b32 v{T0}, 31, v{LN}'); a(f'v_lshlrev_b32 v{T0}, 10, v{T0}')
    a(f'v_lshrrev_b32 v{T1}, 5, v{LN}'); a(f'v_lshl_add_u32 v{T0}, v{T1}, 4, v{T0}')
    a('s_lshl_b32 s53, s20, 15'); a('s_lshl_b32 s54, s22, 6'); a('s_add_u32 s53, s53, s54')
    a(f'buffer_load_dwordx4 {v(RES,4)}, v{T0}, s[8:11], s53 offen')
    a(f'buffer_load_dwordx4 {v(RES+4,4)}, v{T0}, s[8:11], s53 offen offset:32')
    a('s_mov_b32 s41, s96'); a('s_mov_b32 s97, 2')
    a('s_waitcnt lgkmcnt(0)')
    srd(a, 8, 88, 2*L.MB)

    def st(name):
        if not STAMP: return
        if name not in STAMPS: STAMPS.append(name)
        i = STAMPS.index(name)
        assert i < 31
        a('s_memtime s[98:99]'); a('s_memrealtime s[100:101]'); a('s_waitcnt lgkmcnt(0)')
        a(f'v_writelane_b32 v0, s98, {2*i+2}')
        a(f'v_writelane_b32 v0, s100, {2*i+3}')

    def run_groups(gs):
        for g in gs:
            for t in g: a(t)

    def wtile_dma(qkv):
        ftstride = (16 if qkv else 1) * FT
        pre = [f's_mul_i32 s60, s16, {(1 if qkv else 3) * FT}',
               f's_add_u32 s60, s60, {L.WQKVF if qkv else L.W1F}',
               's_lshl_b32 s64, s12, 12',
               's_add_u32 s61, s60, s64',
               's_min_u32 s65, s12, 2',
               f's_mul_i32 s66, s65, {ftstride}',
               's_add_u32 s66, s66, s60',
               f's_add_u32 s66, s66, {32*1024}',
               f's_mul_i32 s65, s65, {FT}']
        groups = [pre]
        for half in range(2):
            for j in range(3):
                g = [f's_add_u32 m0, s64, {j*FT + half*16384}',
                     f's_add_u32 s62, s61, {j*ftstride + half*16384}']
                g += [f'buffer_load_dwordx4 v{L16}, s[4:7], s62 offen offset:{1024*q} sc1 lds' for q in range(4)]
                groups.append(g)
        groups.append([f's_add_u32 m0, s65, {32*1024}', 's_nop 0', f'buffer_load_dwordx4 v{L16}, s[4:7], s66 offen sc1 lds'])
        return groups

    def wq_third(region, nw):
        ftg = (1, 2, 0)[region]
        per = 32 // nw
        groups = [[f's_mul_i32 s60, s16, {FT}', 's_and_b32 s64, s12, 1', f's_mul_i32 s64, s64, {per*1024}', 's_add_u32 s61, s60, s64',
                   f's_add_u32 s61, s61, {L.WQKVF + 16*ftg*FT}', f's_add_u32 s60, s60, {L.WQKVF + 16*ftg*FT + 32*1024}']]
        for c in range(per // 4):
            g = [f's_add_u32 m0, s64, {region*FT + c*4096}', f's_add_u32 s62, s61, {c*4096}']
            g += [f'buffer_load_dwordx4 v{L16}, s[4:7], s62 offen offset:{1024*q} sc1 lds' for q in range(4)]
            groups.append(g)
        groups.append([f's_mov_b32 m0, {region*FT + 32*1024}', 's_nop 0', f'buffer_load_dwordx4 v{L16}, s[4:7], s60 offen sc1 lds'])
        return groups

    def poll_setup(ph, idxs, add=0, prev_layer=False, out=None):
        e = out.append if out is not None else a
        o = (CB[ph] + add)*CST - (LST if prev_layer else 0)
        e(f's_add_u32 s50, s28, {o & 0xffffffff}')
        e(f's_mul_i32 s52, s{idxs[0]}, {CST}')
        e(f'v_mov_b32 v{T0}, s52')
        if len(idxs) > 1:
            e(f's_mul_i32 s52, s{idxs[1]}, {CST}')
            e(f'v_writelane_b32 v{T0}, s52, 1')
    DIR = OPT.get('dir', 'wfq')
    def poll_load(n, d=0):
        a(f's_mov_b64 exec, {(1 << n) - 1}')
        a(f'buffer_load_dword v{T1}, v{T0}, s[4:7], s50 offen offset:{0 if d else FOFF} sc1')
        a('s_mov_b64 exec, -1')
    def poll_test(n, go, d=0):
        a(f's_mov_b64 exec, {(1 << n) - 1}')
        a(f'v_cmp_gt_u32 vcc, {d if d else 1}, v{T1}')
        a('s_mov_b64 exec, -1')
        a('s_cmp_eq_u64 vcc, 0')
        a(f's_cbranch_scc1 {go}')
    def poll_spin(n, go, hook=None, d=0):
        lp = a.lab('poll')
        a('s_mov_b32 s51, 0')
        a.label(lp)
        poll_load(n, d)
        a('s_add_u32 s51, s51, 1')
        a('s_waitcnt vmcnt(0)')
        if hook: hook()
        poll_test(n, go, d)
        a(f's_cmp_lt_u32 s51, {SPIN}')
        a(f's_cbranch_scc1 {lp}')
        a.label(go)
    def dd(tag, ph): return TARGET[ph] if tag in DIR else 0
    def poll(ph, idxs, add=0, prev_layer=False, d=0):
        poll_setup(ph, idxs, add, prev_layer)
        poll_spin(len(idxs), a.lab('go'), d=d)
    def sig_addr(ph, idx, add=0, out=None, la=2):
        e = out.append if out is not None else a
        e(f's_mul_i32 s42, s{idx}, {CST}')
        e('s_add_u32 s42, s42, s28')
        e(f's_add_u32 s42, s42, {(CB[ph] + add)*CST}')
        e(f's_mov_b32 s69, {TARGET[ph]-1}')
        e(f's_mov_b32 s97, {la}')
    def sig_atomic():
        a('s_mov_b64 exec, 1')
        a('v_mov_b32 v0, 1')
        a(f'buffer_atomic_add v0, v{L4}, s[4:7], s42 offen sc0 sc1')
        a('s_mov_b64 exec, -1')
    def sig_finish(ph=None):
        sk = a.lab('notlast')
        a('v_readfirstlane_b32 s52, v0')
        a('s_cmp_lg_u32 s52, s69')
        a(f's_cbranch_scc1 {sk}')
        a('s_mov_b64 exec, 1')
        a('v_mov_b32 v0, 1')
        a(f'buffer_store_dword v0, v{L4}, s[4:7], s42 offen offset:{FOFF} sc1')
        a('s_mov_b64 exec, -1')
        a.label(sk)
    def signal(ph, idx, add=0):
        sig_addr(ph, idx, add)
        a('s_waitcnt vmcnt(0)')
        sig_atomic()
        a('s_waitcnt vmcnt(0)')
        sig_finish(ph)

    def gemmA_pre(qkv):
        xi0 = 0 if qkv else 1
        stsz = L.ST[1] - L.ST[0]
        a('s_lshl_b32 s47, s17, 15'); a('s_lshl_b32 s29, s27, 1'); a('s_add_u32 s47, s47, s29'); a(f's_add_u32 s47, s47, {L.X[xi0]}')
        a('s_lshl_b32 s48, s17, 12'); a(f's_mul_i32 s29, s26, {2*stsz}'); a('s_add_u32 s48, s48, s29'); a(f's_add_u32 s48, s48, {L.ST[xi0]}')
        a('s_lshl_b32 s55, s12, 10'); a(f's_add_u32 s55, s55, {SCR + 1024}')
        a(f'v_add_u32 v64, s55, v{L16}')
        a(f'v_add_u32 v65, s55, v{L4}')
        a(f'v_add_u32 v70, {FT}, v{L16}')
        a(f'v_add_u32 v71, {2*FT}, v{L16}')
        if qkv:
            a('s_lshl_b32 s56, s16, 17'); a('s_lshl_b32 s57, s17, 10'); a('s_add_u32 s56, s56, s57'); a('s_add_u32 s56, s56, s27')
            a('s_add_u32 s57, s56, 0x10000')
            a(f's_add_u32 s58, s56, {L.K[0]}'); a(f's_add_u32 s59, s57, {L.K[0]}')
            a(f's_add_u32 s54, s56, {L.V[0]}')
            a('s_lshl_b32 s55, s12, 8'); a(f's_add_u32 s55, s55, {SCR}')
            a(f'v_add_u32 v76, s55, v{L4}')
            a(f'v_lshrrev_b32 v77, 5, v{LN}'); a('v_lshlrev_b32 v77, 4, v77'); a('v_add_u32 v77, s55, v77')
            a(f'v_bfe_u32 v78, v{LN}, 4, 1'); a('v_lshlrev_b32 v78, 16, v78')
            a(f'v_lshrrev_b32 v79, 5, v{LN}'); a('v_lshl_add_u32 v78, v79, 8, v78')
            a(f'v_and_b32 v79, 15, v{LN}'); a('v_lshl_add_u32 v78, v79, 4, v78')
        else:
            actsz = L.ACT[1] - L.ACT[0]
            a('s_mul_i32 s56, s17, 86'); a('s_mul_i32 s57, s16, 6'); a('s_add_u32 s56, s56, s57')
            a('s_lshl_b32 s56, s56, 10'); a(f's_mul_i32 s57, s26, {actsz}'); a('s_add_u32 s56, s56, s57')
            a(f's_add_u32 s56, s56, {L.ACT[0]}'); a('s_add_u32 s57, s56, 4096')
            a('s_cmp_eq_u32 s16, 14')
            a(f's_cselect_b32 s29, {64*L.MB}, 0')
            a('s_add_u32 s58, s56, s29'); a('s_add_u32 s57, s57, s29')
            a(f'v_mov_b32 v67, {CNTL}'); a('v_mov_b32 v79, 1')

    def gemmA(qkv, first_sync=None):
        tag = 'qkv' if qkv else 'ffn1'
        RS, RQ = 68, 69
        WA = [71, L16, 70] if qkv else [L16, 70, 71]
        XE = 72
        STV = 16
        WS = [32 + 4*i for i in range(8)]
        ACC = [80 + 16*i for i in range(3)]
        XF = 128
        fa, fb, fc = (1, 2, 0) if qkv else (0, 1, 2)
        nvm = [0]; at = {}
        def xload(i):
            a(f'buffer_load_dwordx4 {v(XF+4*i,4)}, v{L16}, s[4:7], s47 offen offset:{1024*(i%4)} sc1'); nvm[0] += 1
            if i % 4 == 3: a('s_add_u32 s47, s47, 4096')
            at[i] = nvm[0]
        PRE = int(OPT['apre'])
        for i in range(6): xload(i)
        for i in range(4):
            a(f'buffer_load_dwordx4 {v(STV+4*i,4)}, v{L16}, s[4:7], s48 offen offset:{1024*i} sc1'); nvm[0] += 1
        for i in range(6, PRE): xload(i)
        if first_sync: first_sync(nvm[0])
        sv = []
        for stp in (8, 4):
            for i in range(stp): sv.append(f'v_add_f32 v{STV+i}, v{STV+i}, v{STV+i+stp}')
        sv.append(f'ds_write_b128 v64, {v(STV,4)}')
        sv.append(f'ds_read2_b32 {v(STV+4,2)}, v65 offset0:0 offset1:64')
        sv.append(f'ds_read2_b32 {v(STV+6,2)}, v65 offset0:128 offset1:192')
        sv.append('WAITDS')
        sv.append(f'v_add_f32 v{STV+4}, v{STV+4}, v{STV+5}')
        sv.append(f'v_add_f32 v{STV+6}, v{STV+6}, v{STV+7}')
        sv.append(f'v_add_f32 v{STV}, v{STV+4}, v{STV+6}')
        sv.append(f'v_mov_b32 v{STV+1}, v{STV}')
        sv.append(f'v_permlane32_swap_b32 v{STV}, v{STV+1}')
        sv.append(f'v_mul_f32 v{STV}, {f32(-1.0/512)}, v{STV}')
        sv.append(f'v_mul_f32 v{STV+1}, {f32(1.0/512)}, v{STV+1}')
        sv.append(f'v_fma_f32 v{STV+1}, -v{STV}, v{STV}, v{STV+1}')
        sv.append(f'v_max_f32 v{STV+1}, 0, v{STV+1}')
        sv.append(f'v_add_f32 v{STV+1}, {f32(1e-5)}, v{STV+1}')
        sv.append(f'v_rsq_f32 v{RS}, v{STV+1}')
        sv.append(f'v_mul_f32 v{STV+1}, v{STV+1}, v{RS}')
        r = sv.append
        MH, MM, ML, SH, SM, SL, TT = STV+2, STV+3, STV+4, STV+5, STV+6, STV+7, STV+8
        split3(r, STV, MH, MM, ML, TT); split3(r, STV+1, SH, SM, SL, TT)
        pack_hi(r, XE, MH, MM); pack_hi(r, XE+1, ML, SH); pack_hi(r, XE+2, SM, SL)
        pack_hi(r, XE+3, MH, MH)
        sv.append(f'v_mul_f32 v{RQ}, {f32(L.QSCALE if qkv else 1.4426950408889634)}, v{RS}')
        if not qkv: sv.append(f'v_mul_f32 v66, -2.0, v{RS}')
        if qkv:
            sv.append(f'ds_write_b32 v76, v{RS}')
            for j in range(4): sv.append(f'ds_read_b128 {v(STV+4*j,4)}, v77 offset:{32*j}')
        def epi(f, pk, gs=(0, 1)):
            A = ACC[f]; out = []
            def mul(d, s0, s1b, n, bcast):
                if pk:
                    for r_ in range(0, n, 2):
                        if bcast:
                            base = s1b & ~1; o = s1b & 1
                            out.append(f'v_pk_mul_f32 {v(d+r_,2)}, {v(s0+r_,2)}, {v(base,2)} op_sel:[0,{o}] op_sel_hi:[1,{o}]')
                        else:
                            out.append(f'v_pk_mul_f32 {v(d+r_,2)}, {v(s0+r_,2)}, {v(s1b+r_,2)}')
                else:
                    for r_ in range(n): out.append(f'v_mul_f32 v{d+r_}, v{s1b if bcast else s1b+r_}, v{s0+r_}')
            for g in gs:
                B = A + 8*g
                if qkv:
                    if f < 2: mul(B, B, RQ if f == 0 else RS, 8, True)
                    else: mul(B, B, STV + 8*g, 8, False)
                else:
                    U = STV
                    mul(U, B, RQ, 8, True)
                    for r_ in range(8): out.append(f'v_exp_f32 v{U+r_}, v{U+r_}')
                    if pk:
                        for r_ in range(0, 8, 2): out.append(f'v_pk_add_f32 {v(U+8+r_,2)}, {v(U+r_,2)}, 2.0 op_sel_hi:[1,0]')
                        for r_ in range(0, 8, 2): out.append(f'v_pk_fma_f32 {v(U+r_,2)}, {v(U+r_,2)}, {v(U+8+r_,2)}, 2.0 op_sel_hi:[1,1,0]')
                    else:
                        for r_ in range(8): out.append(f'v_add_f32 v{U+8+r_}, 2.0, v{U+r_}')
                        for r_ in range(8): out.append(f'v_fma_f32 v{U+r_}, v{U+r_}, v{U+8+r_}, 2.0')
                    for r_ in range(8): out.append(f'v_rcp_f32 v{U+r_}, v{U+r_}')
                    if pk:
                        for r_ in range(0, 8, 2): out.append(f'v_pk_fma_f32 {v(U+r_,2)}, {v(U+r_,2)}, {v(66,2)}, {v(RS,2)} op_sel_hi:[1,0,0]')
                    else:
                        for r_ in range(8): out.append(f'v_fma_f32 v{U+r_}, v{U+r_}, v66, v{RS}')
                    mul(B, B, U, 8, False)
                for r_ in range(4): out.append(f'v_cvt_pk_bf16_f32 v{B+r_}, v{B+2*r_}, v{B+2*r_+1}')
                if qkv:
                    if f < 2: out.append(f'buffer_store_dwordx4 {v(B,4)}, v{L16}, s[4:7], s{56+2*f+g} offen sc1')
                    else: out.append(f'buffer_store_dwordx4 {v(B,4)}, v78, s[4:7], s54 offen offset:{512*g} sc1')
                else:
                    k = 2*f + g
                    sreg = 56 if k < 2 else (58 if k < 4 else 57)
                    out.append(f'buffer_store_dwordx4 {v(B,4)}, v{L16}, s[4:7], s{sreg} offen offset:{1024*(k%4)} sc1')
            return out
        def cost(t):
            return 8 if t.startswith(TRANS) else (16 if t.startswith('buffer') else 4)
        NB = int(OPT['nb'])
        order = []; nb = 0
        for s_ in range(33):
            order.append((fa, s_))
            while nb < NB and nb + 1 <= (s_ + 1) * NB / 33.0:
                order.append((fb, nb)); nb += 1
        order += [(fb, k) for k in range(nb, 33)] + [(fc, k) for k in range(33)]
        last = {f: max(i for i, o in enumerate(order) if o[0] == f) for f in range(3)}
        nds = [0]; dsat = {}
        def rd(i):
            f, k = order[i]
            if qkv and f == fc and k == 0 and int(OPT.get('fuse', 1)):
                lp = a.lab('qspin'); ok = a.lab('qok')
                a(f'v_mov_b32 v66, {CNTL}'); a('s_mov_b32 s51, 0')
                a.label(lp)
                a('ds_read_b32 v67, v66 offset:8')
                a('s_add_u32 s51, s51, 1')
                a('s_waitcnt lgkmcnt(0)')
                a('v_readfirstlane_b32 s52, v67')
                a('s_cmp_ge_u32 s52, 2'); a(f's_cbranch_scc1 {ok}')
                a(f's_cmp_lt_u32 s51, {8*SPIN}'); a(f's_cbranch_scc1 {lp}')
                a.label(ok)
            a(f'ds_read_b128 {v(WS[i%8],4)}, v{WA[f]} offset:{k*1024}'); nds[0] += 1; dsat[i] = nds[0]
        AH = 6
        for i in range(AH): rd(i)
        nx = PRE; xw = -1
        q = list(sv); ready = {}; units = []
        N = len(order)
        for i, (f, k) in enumerate(order):
            w = f'lgkmcnt({min(15, nds[0] - dsat[i])})'
            if k < 32 and k > xw:
                w = f'vmcnt({nvm[0] - at[k]}) ' + w; xw = k
            if k == 32: assert not any(t in q for t in sv), 'stats not finished'
            if i > last[fa] + 1 and (i - last[fa]) % 2 == 0: pass
            elif i > last[fa] and i + 1 < N: a(f's_waitcnt lgkmcnt({min(15, nds[0] - dsat[i+1])})')
            else: a(f's_waitcnt {w}')
            xf = v(XF + 4*k, 4) if k < 32 else v(XE, 4)
            wf = v(WS[i % 8], 4)
            cc = '0' if k == 0 else v(ACC[f], 16)
            if qkv and f == 2: a(f'{MFMA} {v(ACC[f],16)}, {xf}, {wf}, {cc}')
            else: a(f'{MFMA} {v(ACC[f],16)}, {wf}, {xf}, {cc}')
            if i + AH < N: rd(i + AH)
            if not qkv and i in (last[fa], last[fb]):
                a('s_mov_b64 exec, 1')
                a(f'ds_add_u32 v67, v79 offset:{0 if i == last[fa] else 4}'); nds[0] += 1
                a('s_mov_b64 exec, -1')
            budget = 16
            if f == fa and nx < 32:
                xload(nx); nx += 1; budget = 8
            CAP = int(OPT.get('cap', 24))
            for ff in (fa, fb):
                if i == last[ff] + 3: units.extend([(ff, 0), (ff, 1)])
            if not q and units and (CAP == 0 or sum(map(cost, epi(units[0][0], False, (0,)))) <= 1.5*CAP*(N - i)):
                u_ = units.pop(0); q += epi(u_[0], False, (u_[1],))
            if xw >= 6:
                if i > last[fa]:
                    if CAP: budget = CAP
                    else:
                        rem = sum(map(cost, q)) + (len(units) + (2 if i < last[fb] + 3 else 0)) * sum(map(cost, epi(fb, False, (0,))))
                        budget = max(16, -(-rem // max(1, N - i)))
                while q and budget >= min(cost(q[0]), 8):
                    if q[0] == 'WAITDS':
                        if 'mark' not in ready: ready['mark'] = nds[0]
                        if dsat[i] < ready['mark']: break
                        q.pop(0); continue
                    t = q.pop(0); budget -= cost(t); a(t)
                    if t.startswith('buffer'): nvm[0] += 1
                    if t.startswith('ds_'): nds[0] += 1
        for t in q: a(t)
        st(tag + ' loop')
        for u_ in units:
            for t in epi(u_[0], True, (u_[1],)): a(t)
        for t in epi(fc, True): a(t)

    WOA = 0; W2A = 64
    NW2PRE = 18
    def wB_loads(wo, steps):
        KS = 32 if wo else W2KS
        base = WOA if wo else W2A
        first = steps[0]
        pre = []
        for i, ft in enumerate((22, 23)):
            pre.append(f's_mul_i32 s{67+i}, s{ft}, {KS}')
            if wo:
                pre.append('s_lshl_b32 s29, s12, 3'); pre.append(f's_add_u32 s{67+i}, s{67+i}, s29')
            else:
                pre.append(f's_add_u32 s{67+i}, s{67+i}, s33')
            pre.append(f's_lshl_b32 s{67+i}, s{67+i}, 10')
            pre.append(f's_add_u32 s{67+i}, s{67+i}, {(L.WOF if wo else L.W2F) + first*1024}')
        groups = [pre]
        for n0 in range(0, len(steps), 4):
            for i in range(2):
                g = [f'buffer_load_dwordx4 {areg(base + 8*stp + 4*i)}, v{L16}, s[4:7], s{67+i} offen offset:{1024*q} sc1' for q, stp in enumerate(steps[n0:n0+4])]
                g.append(f's_add_u32 s{67+i}, s{67+i}, 4096')
                groups.append(g)
        return groups

    BACC = [[16 + 16*(2*i+j) for j in range(2)] for i in range(2)]
    BAD = 240
    def gemmB_pre(wo):
        KS = 32 if wo else 86
        actsz = L.ACT[1] - L.ACT[0]
        a(f's_mul_i32 s56, s21, {KS}')
        if wo:
            a('s_lshl_b32 s29, s12, 3'); a('s_add_u32 s56, s56, s29')
        else:
            a('s_add_u32 s56, s56, s33')
        a('s_lshl_b32 s56, s56, 10')
        if wo:
            a('s_add_u32 s56, s56, s27'); a(f's_add_u32 s56, s56, {L.O[0]}')
        else:
            a(f's_mul_i32 s29, s26, {actsz}'); a('s_add_u32 s56, s56, s29'); a(f's_add_u32 s56, s56, {L.ACT[0]}')
        a(f's_add_u32 s57, s56, {KS*1024}')
        xo = 1 if wo else 2
        stsz = L.ST[1] - L.ST[0]
        a('s_lshl_b32 s58, s27, 1'); a('s_add_u32 s58, s58, s32'); a(f's_add_u32 s58, s58, {L.X[xo]}')
        a('s_lshl_b32 s59, s20, 12'); a('s_lshl_b32 s54, s22, 8'); a('s_add_u32 s59, s59, s54')
        a(f's_mul_i32 s54, s26, {2*stsz}'); a('s_add_u32 s59, s59, s54'); a(f's_add_u32 s59, s59, {L.ST[xo]}')
        for i in range(2):
            for j in range(2):
                a('s_and_b32 s54, s12, 1')
                if j: a('s_xor_b32 s54, s54, 1')
                a(f's_add_u32 s54, s54, {2*i}')
                a('s_xor_b32 s55, s54, s12')
                a('s_mul_i32 s54, s54, 3'); a('s_add_u32 s54, s54, s55'); a('s_lshl_b32 s54, s54, 12')
                a(f's_add_u32 s54, s54, {RED - 4096}')
                a(f'v_add_u32 v{BAD+2*i+j}, s54, v{L16}')
        a(f's_mul_i32 s55, s12, {3*4096}'); a(f's_add_u32 s55, s55, {RED}')
        a(f'v_add_u32 v{BAD+4}, s55, v{L16}')
        if not wo:
            a(f'v_and_b32 v{BAD+5}, 31, v{LN}'); a(f'v_lshlrev_b32 v{BAD+5}, 10, v{BAD+5}')
            a(f'v_lshrrev_b32 v{BAD+6}, 5, v{LN}'); a(f'v_lshl_add_u32 v{BAD+5}, v{BAD+6}, 4, v{BAD+5}')
            a('s_lshl_b32 s53, s20, 15'); a('s_lshl_b32 s54, s22, 6'); a('s_add_u32 s53, s53, s54')

    def sig_try(state, wait=None):
        e = a.lab('sge')
        a(f's_cmp_lg_u32 s41, {state}')
        a(f's_cbranch_scc1 {e}')
        if wait is not None: a(f's_waitcnt vmcnt({wait})')
        if state == 1:
            sig_atomic(); a('s_mov_b32 s41, s97')
        else:
            sig_finish(); a('s_mov_b32 s41, 0')
        a.label(e)
    def sig_slot(wait):
        d = a.lab('sgd'); e = a.lab('sge')
        a('s_cmp_lg_u32 s41, 1')
        a(f's_cbranch_scc1 {d}')
        a(f's_waitcnt vmcnt({wait})')
        sig_atomic(); a('s_mov_b32 s41, s97')
        a(f's_branch {e}')
        a.label(d)
        a('s_mov_b64 exec, 2')
        a(f'buffer_load_dword v0, v{L4}, s[4:7], 0 offen')
        a('s_mov_b64 exec, -1')
        a.label(e)
    def sig_step():
        sig_try(2); sig_try(1)
    def sig_block():
        sig_try(1, 0); sig_try(2, 0)

    def gemmB(wo, tail=()):
        tag = 'wo' if wo else 'ffn2'
        nst = 8 if wo else 22
        wbase = WOA if wo else W2A
        FB = 80
        NSL = 24
        RB = 176
        WIN = min(int(OPT['bwin']), nst)
        LAG = 3
        st(tag + 'A go')
        class St: pass
        z = St(); z.nvm = 0; z.at = {}; z.issued = 0; z.tail = list(tail)
        def xr(n): return FB + 4*(n % NSL)
        def load(z):
            n = z.issued; i, k = divmod(n, nst)
            a(f'buffer_load_dwordx4 {v(xr(n),4)}, v{L16}, s[4:7], s{56+i} offen offset:{1024*(k%4)} sc1'); z.nvm += 1
            if k % 4 == 3: a(f's_add_u32 s{56+i}, s{56+i}, 4096')
            z.at[n] = z.nvm; z.issued += 1
        def mm(i, j, k):
            cc = '0' if k == 0 else v(BACC[i][j],16)
            a(f'{MFMA} {v(BACC[i][j],16)}, {areg(wbase+8*k+4*j)}, {v(xr(i*nst+k),4)}, {cc}')
        def zero0(n):
            if wo: return
            sk = a.lab('ffn2_s0')
            a('s_cmp_lt_u32 s12, 2')
            a(f's_cbranch_scc1 {sk}')
            for r_ in range(4): a(f'v_mov_b32 v{xr(n)+r_}, 0')
            a.label(sk)
        def wr(i, j): return [f'ds_write_b128 v{BAD+2*i+j}, {v(BACC[i][j]+4*q,4)} offset:{q*1024}' for q in range(4)]
        def epilogue(i, pk):
            A0 = BACC[i][0]; o = []
            for k in range(3):
                for q in range(4): o.append(f'ds_read_b128 {v(RB+16*k+4*q,4)}, v{BAD+4} offset:{k*4096 + q*1024}')
            U = RB + 48
            for r_ in range(8):
                o.append(f'v_lshlrev_b32 v{U+2*r_}, 16, v{RES+r_}')
                o.append(f'v_and_b32 v{U+2*r_+1}, 0xffff0000, v{RES+r_}')
            def addv(src):
                if pk:
                    for r_ in range(0, 16, 2): o.append(f'v_pk_add_f32 {v(A0+r_,2)}, {v(A0+r_,2)}, {v(src+r_,2)}')
                else:
                    for r_ in range(16): o.append(f'v_add_f32 v{A0+r_}, v{A0+r_}, v{src+r_}')
            addv(U)
            for k in range(3):
                o.append(f's_waitcnt lgkmcnt({8-4*k})')
                addv(RB + 16*k)
            for r_ in range(8): o.append(f'v_cvt_pk_bf16_f32 v{RES+r_}, v{A0+2*r_}, v{A0+2*r_+1}')
            o.append('STORE')
            if pk:
                o.append(f'v_pk_add_f32 {v(RB,2)}, {v(A0,2)}, {v(A0+2,2)}')
                o.append(f'v_pk_mul_f32 {v(RB+2,2)}, {v(A0,2)}, {v(A0,2)}')
                o.append(f'v_pk_fma_f32 {v(RB+2,2)}, {v(A0+2,2)}, {v(A0+2,2)}, {v(RB+2,2)}')
                for r_ in range(4, 16, 2):
                    o.append(f'v_pk_add_f32 {v(RB,2)}, {v(RB,2)}, {v(A0+r_,2)}')
                    o.append(f'v_pk_fma_f32 {v(RB+2,2)}, {v(A0+r_,2)}, {v(A0+r_,2)}, {v(RB+2,2)}')
                o.append(f'v_add_f32 v{T2}, v{RB}, v{RB+1}')
                o.append(f'v_add_f32 v{T3}, v{RB+2}, v{RB+3}')
            else:
                o.append(f'v_add_f32 v{T2}, v{A0}, v{A0+1}')
                o.append(f'v_mul_f32 v{T3}, v{A0}, v{A0}')
                o.append(f'v_fmac_f32 v{T3}, v{A0+1}, v{A0+1}')
                for r_ in range(2, 16):
                    o.append(f'v_add_f32 v{T2}, v{T2}, v{A0+r_}')
                    o.append(f'v_fmac_f32 v{T3}, v{A0+r_}, v{A0+r_}')
            o.append(f'v_permlane32_swap_b32 v{T2}, v{T3}')
            o.append(f'v_add_f32 v{T2}, v{T2}, v{T3}')
            o.append(f'buffer_store_dword v{T2}, v{L4}, s[4:7], s59 offen sc1')
            o.append('OWED')
            return o
        def emit(t, z):
            if t == 'STORE':
                if not wo:
                    nf = a.lab('notfinal'); dn = a.lab('stored')
                    a('s_cmp_eq_u32 s26, 0')
                    a(f's_cbranch_scc1 {nf}')
                    for g in range(2):
                        a(f'v_permlane32_swap_b32 v{RES+4*g}, v{RES+4*g+2}')
                        a(f'v_permlane32_swap_b32 v{RES+4*g+1}, v{RES+4*g+3}')
                        a(f'buffer_store_dwordx4 {v(RES+4*g,4)}, v{BAD+5}, s[8:11], s53 offen offset:{32*g} {OPT.get("of", "").replace("_", " ")}')
                    a(f's_branch {z.fin}')
                    a.label(nf)
                a(f'buffer_store_dwordx4 {v(RES,4)}, v{L16}, s[4:7], s58 offen sc1')
                a(f'buffer_store_dwordx4 {v(RES+4,4)}, v{L16}, s[4:7], s58 offen offset:1024 sc1')
                z.nvm += 2
            elif t == 'OWED':
                sig_addr(2 if wo else 4, 20)
                a('s_mov_b32 s41, 1')
                z.owed = z.nvm
            else:
                a(t)
                if t.startswith('buffer'): z.nvm += 1
        def part(i, z, kat=None):
            for k in range(nst):
                n = i*nst + k
                a(f's_waitcnt vmcnt({z.nvm - z.at[n]})')
                if k == 0:
                    if i == 1 and wo: sig_step(); z.mark = z.nvm
                    zero0(n)
                mm(i, 1, k)
                if i == 0 and k == (4 if not (SLOT and (wo or SLOT == 2)) else nst - 1): sig_try(2, z.nvm - z.mark)
                W2 = int(OPT.get('bwin2', 22))
                if not wo and i == 1 and W2 >= nst and k == nst - 1: sig_try(1, 0)
                if not wo and i == 1 and W2 < nst and k == W2: sig_try(1)
                if not wo and i == 1 and W2 < nst and k == nst - 1: sig_try(2, 0)
                if z.issued < (i + 1)*nst: load(z)
                elif z.tail and (wo or k >= 10):
                    for t in z.tail.pop(0): emit(t, z)
                if k < nst - LAG: mm(i, 0, k)
            assert not z.tail, len(z.tail)
            for k in range(nst - LAG, nst): mm(i, 0, k)
        def writes(i, wt):
            sk = a.lab('b_self')
            for t in wr(i, 1): a(t)
            a('s_lshr_b32 s54, s12, 1')
            a(f's_cmp_eq_u32 s54, {i}')
            a(f's_cbranch_scc1 {sk}')
            for t in wr(i, 0): a(t)
            a.label(sk)
            a(wt)
        def owner_epi(i):
            sk = a.lab('b_notown')
            a('s_lshr_b32 s54, s12, 1')
            a(f's_cmp_lg_u32 s54, {i}')
            a(f's_cbranch_scc1 {sk}')
            y = St(); y.nvm = 0; y.fin = sk
            for t in epilogue(i, True): emit(t, y)
            a.label(sk)
        import copy
        SLOT = int(OPT.get('slot', 1))
        if SLOT and (wo or SLOT == 2):
            for _ in range(nst): load(z)
            sig_slot(nst); z.nvm += 1; z.mark = z.nvm
        else:
            for _ in range(4): load(z)
            sig_try(2, 4); sig_try(1, 4); z.mark = z.nvm
            for _ in range(WIN - 4): load(z)
        if wo:
            z.tail = wtile_dma(False) if int(OPT.get('w1l', 0)) == 1 else []
            part(0, z)
            poll_setup(1, [38], add=4)
            writes(0, 's_waitcnt lgkmcnt(0)')
            a('s_barrier')
            owner_epi(0)
            if int(OPT.get('w1l', 0)) == 2:
                sig_try(1, 0); run_groups(wtile_dma(False))
            st(tag + 'A end')
            poll_spin(1, a.lab('go'), hook=sig_step, d=dd('w', 1))
            st(tag + 'B go')
            for _ in range(WIN): load(z)
            z.tail = list(tail)
            part(1, z)
            sig_try(2, z.nvm - z.mark)
        elif int(OPT.get('fuse', 1)):
            KC = nst - WIN + int(OPT.get('kc', 0))
            tl = list(z.tail)
            for k in range(nst):
                a(f's_waitcnt vmcnt({z.nvm - z.at[k]})')
                if k == 0: zero0(0)
                mm(0, 1, k)
                if k == 4: sig_try(2, z.nvm - z.mark)
                if k == KC:
                    mm(0, 0, k)
                    a('s_cmp_lg_u32 s12, 3')
                    a('s_cbranch_scc1 f2_nopoll')
                    poll(3, [21], add=1, d=dd('f', 3))
                    a.label('f2_nopoll')
                    a('s_barrier')
                    st(tag + 'B go')
                    for _ in range(KC - (nst - WIN) + 1): load(z)
                    continue
                if z.issued < nst or k > KC: load(z)
                mm(0, 0, k)
            own = a.lab('f2_own'); jn = a.lab('f2_join')
            a('s_cmp_lt_u32 s12, 2')
            a(f's_cbranch_scc1 {own}')
            for variant in (1, 0):
                y = copy.deepcopy(z); y.fin = a.lab('f2_fin')
                if variant == 0: a.label(own)
                q = ['NOP', 'NOP'] + wr(0, 1) + (wr(0, 0) if variant == 1 else ['NOP']*4) + ['NOP', 'NOP', 's_waitcnt lgkmcnt(0)', 's_barrier']
                nsync = len(q)
                if variant == 0: q += epilogue(0, False)
                done_ = 0
                for k in range(nst):
                    n = nst + k
                    a(f's_waitcnt vmcnt({y.nvm - y.at[n]})')
                    if k == 0: zero0(n)
                    for j in (1, 0):
                        if j == 0 and k >= nst - LAG: continue
                        mm(1, j, k)
                        if j == 1 and y.issued < 2*nst: load(y)
                        for _ in range(2 if done_ < nsync else 6):
                            if not q: break
                            t = q.pop(0); done_ += 1
                            if t == 'NOP': continue
                            if t == 'STORE':
                                nf = a.lab('notfinal'); dn = a.lab('stored')
                                a('s_cmp_eq_u32 s26, 0'); a(f's_cbranch_scc1 {nf}')
                                for g in range(2):
                                    a(f'v_permlane32_swap_b32 v{RES+4*g}, v{RES+4*g+2}')
                                    a(f'v_permlane32_swap_b32 v{RES+4*g+1}, v{RES+4*g+3}')
                                    a(f'buffer_store_dwordx4 {v(RES+4*g,4)}, v{BAD+5}, s[8:11], s53 offen offset:{32*g}')
                                a(f's_branch {dn}')
                                a.label(nf)
                                a(f'buffer_store_dwordx4 {v(RES,4)}, v{L16}, s[4:7], s58 offen sc1')
                                a(f'buffer_store_dwordx4 {v(RES+4,4)}, v{L16}, s[4:7], s58 offen offset:1024 sc1')
                                a.label(dn)
                                y.nvm += 2
                            else: emit(t, y)
                assert not q, len(q)
                for k in range(nst - LAG, nst): mm(1, 0, k)
                if variant == 1:
                    a(f's_branch {jn}')
                else:
                    a('s_cmp_eq_u32 s26, 1'); a('s_cselect_b32 s41, 0, s41')
                    sig_try(1, 0)
            a.label(jn)
            FUSED = True
        else:
            nod = a.lab('f2_nodma'); jn = a.lab('f2_join')
            a('s_lshl_b32 s54, s26, 2'); a('s_add_u32 s54, s54, s12')
            a('s_cmp_ge_u32 s54, 2')
            a(f's_cbranch_scc1 {nod}')
            y = copy.deepcopy(z)
            part(0, y)
            a(f's_branch {jn}')
            a.label(nod)
            z.tail = []
            part(0, z)
            a.label(jn)
            writes(0, 's_waitcnt lgkmcnt(0)')
            a('s_cmp_lg_u32 s12, 3')
            a('s_cbranch_scc1 f2_nopoll')
            poll(3, [21], add=1, d=dd('f', 3))
            a.label('f2_nopoll')
            st(tag + 'A end')
            a('s_barrier')
            st(tag + 'B go')
            for _ in range(int(OPT.get('bwin2', 22))): load(z)
            owner_epi(0)
            part(1, z)
        poll_setup(2 if wo else 4, [17])
        poll_load(1)
        writes(1, 's_waitcnt lgkmcnt(0)')
        a('s_barrier')
        owner_epi(1)
        st(tag + 'B end')
        if not wo and int(OPT.get('fuse', 1)):
            sk_ = a.lab('f2_nc')
            sig_try(1, 0)
            a('s_lshr_b32 s54, s12, 1'); a('s_andn2_b32 s54, s54, s26'); a(f's_cbranch_scc0 {sk_}')
            run_groups(tail[:3]); sig_try(2, 8); run_groups(tail[3:])
            a('s_waitcnt vmcnt(0)')
            a(f'v_mov_b32 v{T2}, {CNTL}'); a(f'v_mov_b32 v{T3}, 1')
            a('s_mov_b64 exec, 1'); a(f'ds_add_u32 v{T2}, v{T3} offset:8'); a('s_mov_b64 exec, -1')
            a.label(sk_)
        sig_block()
        st(tag + ' sig')

    SB = [16, 32]; PB = [48, 52]; OA = [56, 72]; QF = [88, 92]; VR = 96
    TMP = 240
    def kreg(kt): return v(224 + 4*kt, 4) if kt < 4 else areg(208 + 4*(kt-4))
    def vreg(kt, g): return v(VR + 8*kt + 4*g, 4)
    VOFF, PADDR = T2, T3
    PA4 = TMP + 12
    def qaddr(p_, sreg=53):
        return [f's_add_u32 s{sreg}, s12, {1 + p_}', f's_and_b32 s{sreg}, s{sreg}, 3', f's_lshl_b32 s{sreg}, s{sreg}, 11', f's_add_u32 s{sreg}, s{sreg}, s{48 + (p_ >> 2)}']
    def attn_pre():
        a(f'v_and_b32 v{T0}, 27, v{LN}')
        a(f'v_cmp_eq_u32 vcc, 16, v{T0}')
        a(f'v_mov_b32 v{T1}, {ONES}')
        a(f'v_cndmask_b32 v{VR}, 0, v{T1}, vcc')
        a(f'v_cndmask_b32 v{VR+1}, 0, v{T1}, vcc')
        for r_ in range(2, 128, 2): a(f'v_pk_mov_b32 {v(VR+r_,2)}, {v(VR,2)}, {v(VR,2)}')
        a.label('main_attpre2')
        a(f'v_and_b32 v{T1}, 15, v{LN}'); a(f'v_lshlrev_b32 v{T1}, 4, v{T1}')
        a(f'v_lshrrev_b32 v{VOFF}, 5, v{LN}'); a(f'v_lshl_add_u32 v{VOFF}, v{VOFF}, 8, v{T1}')
        a('s_lshl_b32 s44, s24, 16'); a('s_add_u32 s44, s44, s27')
        a('s_lshl_b32 s45, s12, 14'); a('s_add_u32 s45, s45, s44')
        a(f's_add_u32 s46, s45, {L.K[0]}'); a(f's_add_u32 s47, s45, {L.V[0]}')
        a('s_lshl_b32 s48, s25, 13'); a('s_add_u32 s48, s48, s44'); a('s_add_u32 s49, s48, 1024')
        for t in qaddr(0, 53) + qaddr(1, 54): a(t)
        a('s_lshl_b32 s39, s25, 2'); a('s_add_u32 s39, s39, s12'); a('s_lshl_b32 s39, s39, 16')
        a('s_lshl_b32 s55, s24, 10'); a('s_add_u32 s39, s39, s55')
        a('s_add_u32 s39, s39, s27'); a(f's_add_u32 s39, s39, {L.O[0]}')
        a(f's_mov_b32 s56, {f32(2.0**-90)}'); a(f's_mov_b32 s57, {f32(2.0**120)}')
        a('s_mov_b32 s40, 0')

    def check_ops(Oa, U):
        return [f'v_add_f32 v{U}, abs(v{Oa}), abs(v{Oa+1})', f'v_add_f32 v{U+1}, abs(v{Oa+2}), abs(v{Oa+3})',
                f'v_add_f32 v{U+2}, abs(v{Oa+4}), abs(v{Oa+5})', f'v_add_f32 v{U+3}, abs(v{Oa+6}), abs(v{Oa+7})',
                f'v_add_f32 v{U}, v{U}, v{U+1}', f'v_add_f32 v{U+2}, v{U+2}, v{U+3}', f'v_add_f32 v{U}, v{U}, v{U+2}',
                f'v_cmp_gt_f32 s[70:71], s57, v{U}', f'v_cmp_gt_f32 s[72:73], s57, v{Oa+8}', f'v_cmp_lt_f32 s[74:75], s56, v{Oa+8}',
                's_and_b64 s[70:71], s[70:71], s[72:73]', 's_and_b64 s[70:71], s[70:71], s[74:75]', 's_cmp_eq_u64 s[70:71], -1']

    def attn(extra_groups):
        nvm = [0]
        atk, atv, atq = {}, {}, {}
        def qload(p_, sreg=53):
            a(f'buffer_load_dwordx4 {v(QF[p_%2],4)}, v{L16}, s[4:7], s{sreg} offen sc1'); nvm[0] += 1
            atq[p_] = nvm[0]
        def kvbase(kt, sreg):
            pass
        def kload(kts):
            for kt in kts:
                a(f'buffer_load_dwordx4 {kreg(kt)}, v{L16}, s[4:7], s{76 + kt//4} offen offset:{1024*(kt%4)} sc1'); nvm[0] += 1
                atk[kt] = nvm[0]
        def vload(kts):
            a('s_mov_b64 exec, s[30:31]')
            for kt in kts:
                for g in range(2):
                    a(f'buffer_load_dwordx4 {vreg(kt,g)}, v{VOFF}, s[4:7], s{80 + kt//4} offen offset:{1024*(kt%4)+512*g} sc1'); nvm[0] += 1
                atv[kt] = nvm[0]
            a('s_mov_b64 exec, -1')
        EV = list(range(0, 16, 2)); OD = list(range(1, 16, 2))
        steps = [(0, k) for k in EV] + [(1, k) for k in EV] + [(0, k) for k in OD] + [(1, k) for k in OD]
        steps += [(p_, k) for p_ in range(2, 8) for k in range(16)]
        N = len(steps)
        firstof = {}; lastof = {}
        for n, (p_, k) in enumerate(steps):
            firstof.setdefault(p_, n); lastof[p_] = n
        qload(0)
        kload([0, 2]); vload([0])
        sig_try(1, nvm[0]); mark0 = nvm[0]
        kload([4]); vload([2]); kload([6]); vload([4])
        waited = [0]
        def need_vm(at):
            if at > waited[0]:
                a(f's_waitcnt vmcnt({nvm[0] - at})'); waited[0] = at
        need_vm(atk[0])
        a(f'{MFMA} {v(SB[0],16)}, {kreg(0)}, {v(QF[0],4)}, 0')
        kload([8]); vload([6])
        extra = list(extra_groups)
        sal = []
        def hide():
            if sal: a(sal.pop(0))
        ev_sal, ev_a, ev_b = {}, {}, {}
        def add(d, n, f): d.setdefault(n, []).append(f)
        for p_ in range(2, 8):
            n0 = lastof[p_ - 2] + 1
            add(ev_sal, n0 - 2, qaddr(p_))
            add(ev_a, n0, lambda p_=p_: qload(p_))
        def pwrite(pp):
            Op = OA[pp % 2]
            a(f'v_add_u32 v{PADDR}, s53, v{L16}')
            a(f'v_add_u32 v{PA4}, s53, v{L4}')
            a(f'ds_write_b128 v{PADDR}, {v(Op,4)}')
            a(f'ds_write_b128 v{PADDR}, {v(Op+4,4)} offset:1024')
            a(f'ds_write_b32 v{PA4}, v{Op+8} offset:2048')
        for pp in (0, 1, 2, 4, 5, 6):
            n0 = lastof[pp] + 2
            slot = 2 - pp % 4
            add(ev_sal, n0, [f's_add_u32 s53, s12, {1 + pp}', 's_and_b32 s53, s53, 3', f's_mul_i32 s53, s53, {6*2304}',
                             f's_add_u32 s53, s53, {PART + (3*(pp >> 2) + slot)*2304}'])
            add(ev_b, n0 + 2, lambda pp=pp: pwrite(pp))
        pb = []
        poll_setup(0, [35, 36], add=1, out=pb)
        def b_issue():
            for t in pb: a(t)
            poll_load(2); nvm[0] += 1; atq['flag'] = nvm[0]
        def b_check():
            go = a.lab('bgo')
            need_vm(atq['flag'])
            poll_test(2, go)
            poll_spin(2, go)
            kload([1, 3]); vload([1])
        add(ev_a, 0, lambda: (kload([10]), vload([8])))
        add(ev_a, 1, lambda: (kload([12]), vload([10])))
        add(ev_a, 2, lambda: (sig_try(2, nvm[0] - mark0), kload([14]), vload([12])))
        add(ev_a, 3, lambda: (qload(1, 54), vload([14])))
        add(ev_a, 6, b_issue)
        add(ev_a, 11, b_check)
        for j_ in range(7):
            add(ev_a, 12 + j_, lambda j_=j_: (kload([5 + 2*j_] if j_ < 6 else []), vload([3 + 2*j_])))
        def own_addr(b):
            if b == 0:
                a(f'v_mov_b32 v{TMP}, {CNTL}'); a(f'v_mov_b32 v{TMP+2}, 0'); a(f'v_mov_b32 v{TMP+3}, 0')
                a(f'ds_write_b64 v{TMP}, {v(TMP+2,2)}'); a(f'ds_write_b32 v{TMP}, v{TMP+2} offset:8')
            a('s_waitcnt lgkmcnt(0)' if b == 0 else 's_waitcnt vmcnt(0) lgkmcnt(0)')
            a('s_barrier')
            a(f's_mul_i32 s53, s12, {6*2304}'); a(f's_add_u32 s53, s53, {PART + 3*b*2304}')
            a(f'v_add_u32 v{PADDR}, s53, v{L16}')
            a(f'v_add_u32 v{PA4}, s53, v{L4}')
        def pread(b_, sl):
            a(f'ds_read_b128 {v(b_,4)}, v{PADDR} offset:{sl*2304}')
            a(f'ds_read_b128 {v(b_+4,4)}, v{PADDR} offset:{sl*2304+1024}')
            a(f'ds_read_b32 v{b_+8}, v{PA4} offset:{sl*2304+2048}')
        n4 = firstof[4]
        Oa = OA[1]
        def padd():
            a('s_waitcnt lgkmcnt(0)')
            for r_ in range(9): a(f'v_add_f32 v{Oa+r_}, v{Oa+r_}, v{TMP+r_}')
        add(ev_b, n4 + 2, lambda: (own_addr(0), pread(TMP, 0)))
        add(ev_b, n4 + 3, lambda: (padd(), pread(TMP, 1)))
        add(ev_b, n4 + 4, lambda: (padd(), pread(TMP, 2)))
        def finA():
            padd()
            for t in check_ops(Oa, TMP): a(t)
            sk = a.lab('a_later')
            a(f's_cbranch_scc0 {sk}')
            a(f'v_rcp_f32 v{TMP}, v{Oa+8}')
            for r_ in range(8): a(f'v_mul_f32 v{Oa+r_}, v{TMP}, v{Oa+r_}')
            for r_ in range(4): a(f'v_cvt_pk_bf16_f32 v{TMP+4+r_}, v{Oa+2*r_}, v{Oa+2*r_+1}')
            a(f'buffer_store_dwordx4 {v(TMP+4,4)}, v{L16}, s[4:7], s39 offen sc1')
            a('s_mov_b32 s40, 1'); a('s_mov_b32 s41, 1')
            a.label(sk)
        add(ev_b, n4 + 5, finA)
        sa = []; sig_addr(1, 37, out=sa)
        add(ev_sal, n4 + 6, sa)
        def sstep():
            a('s_waitcnt vmcnt(0)'); waited[0] = nvm[0]
            sig_step()
        add(ev_b, n4 + 9, sstep)
        add(ev_b, n4 + 15, sstep)
        n7 = firstof[7]
        add(ev_b, n7 + 8, lambda: own_addr(1))
        for sl in range(3):
            add(ev_b, n7 + 9 + sl, lambda sl=sl: pread(VR + 12*sl, sl))
        def wr_issue():
            a(f's_mov_b32 s50, {WCELL}'); a(f'v_mul_u32_u24 v{T0}, {CST}, v{LN}')
            poll_load(8); nvm[0] += 1; atq['wflag'] = nvm[0]
        def wr_check():
            go = a.lab('wgo')
            need_vm(atq['wflag'])
            poll_test(8, go)
            poll_spin(8, go)
        add(ev_a, 20, wr_issue)
        add(ev_a, 26, wr_check)
        def w_issue():
            poll_setup(1, [38]); poll_load(1); nvm[0] += 1
        add(ev_a, n7 + 10, w_issue)
        GS = int(OPT['gs'])
        if GS < 4:
            ex2 = []
            for g in extra:
                cur = []; nm = 0
                for t in g:
                    if t.startswith('buffer'):
                        if nm == GS: ex2.append(cur); cur = []; nm = 0
                        nm += 1
                    cur.append(t)
                ex2.append(cur)
            extra = ex2
        slots = [n for n in range(28 if GS < 4 else 34, N - 12, 1 if GS < 4 else 2) if n not in ev_a and n not in ev_b and not (n4 - 4 <= n <= n4 + 15)]
        assert len(slots) >= len(extra), (len(slots), len(extra))
        gslot = dict(zip(slots, extra))
        for n, (p_, kt) in enumerate(steps):
            S = SB[n % 2]; O = OA[p_ % 2]
            e = [f'v_exp_f32 v{S+r}, v{S+r}' for r in range(16)]
            c = [f'v_cvt_pk_bf16_f32 v{PB[r//4]+r%4}, v{S+2*r}, v{S+2*r+1}' for r in range(8)]
            if OPT.get('fine') == 'att' and n in (0, 8, 16, 32, 48, 64, 80, 96, 112): st(f'att n{n}')
            for l_ in ev_sal.get(n, []):
                assert not sal, n
                sal += l_
            if n + 1 < N:
                p2, kt2 = steps[n + 1]
                if n < 32: need_vm(atk[kt2])
                if n + 1 == firstof[p2]: need_vm(atq[p2])
                a(f'{MFMA} {v(SB[(n+1)%2],16)}, {kreg(kt2)}, {v(QF[p2%2],4)}, 0')
                hide()
            for f in ev_a.get(n, []):
                assert not sal, n
                f()
            a(e[0]); a(e[1]); a(e[2]); a(e[3]); a(c[0]); a(c[1]); a(e[4])
            if n > 0:
                pp, pk = steps[n - 1]
                a(f'{MFMA} {v(OA[pp%2],16)}, {vreg(pk,1)}, {v(PB[1],4)}, {v(OA[pp%2],16)}')
                hide()
            if n in gslot:
                for t in gslot[n]:
                    a(t)
                    if t.startswith('buffer'): nvm[0] += 1
            a(e[5]); a(e[6]); a(e[7]); a(c[2]); a(c[3]); a(e[8]); a(e[9]); a(e[10])
            if n < 32: need_vm(atv[kt])
            a(f'{MFMA} {v(O,16)}, {vreg(kt,0)}, {v(PB[0],4)}, {"0" if n == firstof[p_] else v(O,16)}')
            hide()
            a(e[11]); a(c[4]); a(c[5]); a(e[12]); a(e[13])
            for f in ev_b.get(n, []):
                assert not sal, n
                f()
            a(e[14]); a(e[15]); a(c[6]); a(c[7])
        a(f'{MFMA} {v(OA[1],16)}, {vreg(15,1)}, {v(PB[1],4)}, {v(OA[1],16)}')
        st('att loop')
        U = SB[0]
        Oa = OA[1]
        a('s_waitcnt lgkmcnt(0)')
        a(f's_add_u32 s55, s39, {32*1024}')
        a('s_mov_b32 s43, 1')
        sig_addr(1, 37, add=4, la=0 if 'w' in DIR else 2)
        for sl in range(3):
            b = VR + 12*sl
            for r_ in range(0, 8, 2): a(f'v_pk_add_f32 {v(Oa+r_,2)}, {v(Oa+r_,2)}, {v(b+r_,2)}')
            a(f'v_add_f32 v{Oa+8}, v{Oa+8}, v{b+8}')
        for t in check_ops(Oa, U): a(t)
        a('s_cbranch_scc1 attn_fin')
        a.label('attn_slow')
        S = SB[0]; M = SB[1]; AL = M + 1; TA = M + 2; TB = M + 3
        KT = 224; V0 = 228; V1 = 232
        a('s_lshl_b32 s53, s12, 11'); a('s_lshl_b32 s54, s43, 10'); a('s_add_u32 s53, s53, s54'); a('s_add_u32 s53, s53, s48')
        a(f'buffer_load_dwordx4 {v(QF[0],4)}, v{L16}, s[4:7], s53 offen sc1')
        a(f'v_and_b32 v{TA}, 27, v{LN}')
        a(f'v_cmp_eq_u32 vcc, 16, v{TA}')
        a(f'v_mov_b32 v{TB}, {ONES}')
        a(f'v_cndmask_b32 v{TA}, 0, v{TB}, vcc')
        for r_ in range(8): a(f'v_mov_b32 v{V0+r_}, v{TA}')
        a(f'v_mov_b32 v{M}, {f32(-3.0e38)}')
        for r_ in range(16): a(f'v_mov_b32 v{Oa+r_}, 0')
        a(f's_add_u32 s46, s44, {L.K[0]}'); a(f's_add_u32 s47, s44, {L.V[0]}')
        a('s_mov_b32 s54, 64')
        a.label('attn_slow_loop')
        a(f'buffer_load_dwordx4 {v(KT,4)}, v{L16}, s[4:7], s46 offen sc1')
        a('s_mov_b64 exec, s[30:31]')
        a(f'buffer_load_dwordx4 {v(V0,4)}, v{VOFF}, s[4:7], s47 offen sc1')
        a(f'buffer_load_dwordx4 {v(V1,4)}, v{VOFF}, s[4:7], s47 offen offset:512 sc1')
        a('s_mov_b64 exec, -1')
        a('s_add_u32 s46, s46, 1024'); a('s_add_u32 s47, s47, 1024')
        a('s_waitcnt vmcnt(0)')
        a(f'{MFMA} {v(S,16)}, {v(KT,4)}, {v(QF[0],4)}, 0')
        a(f'v_max3_f32 v{TA}, v{S}, v{S+1}, v{M}')
        for r_ in range(2, 16, 2): a(f'v_max3_f32 v{TA}, v{S+r_}, v{S+r_+1}, v{TA}')
        a(f'v_mov_b32 v{TB}, v{TA}')
        a(f'v_permlane32_swap_b32 v{TA}, v{TB}')
        a(f'v_max_f32 v{TA}, v{TA}, v{TB}')
        a(f'v_sub_f32 v{AL}, v{M}, v{TA}')
        a(f'v_exp_f32 v{AL}, v{AL}')
        a(f'v_mov_b32 v{M}, v{TA}')
        for r_ in range(16):
            a(f'v_sub_f32 v{S+r_}, v{S+r_}, v{M}')
            a(f'v_exp_f32 v{S+r_}, v{S+r_}')
        for r_ in range(16): a(f'v_mul_f32 v{Oa+r_}, v{AL}, v{Oa+r_}')
        for r_ in range(8): a(f'v_cvt_pk_bf16_f32 v{PB[r_//4]+r_%4}, v{S+2*r_}, v{S+2*r_+1}')
        a(f'{MFMA} {v(Oa,16)}, {v(V0,4)}, {v(PB[0],4)}, {v(Oa,16)}')
        a(f'{MFMA} {v(Oa,16)}, {v(V1,4)}, {v(PB[1],4)}, {v(Oa,16)}')
        a('s_sub_u32 s54, s54, 1')
        a('s_cmp_lg_u32 s54, 0')
        a('s_nop 7')
        a('s_cbranch_scc1 attn_slow_loop')
        a('s_nop 7')
        a.label('attn_fin')
        a(f'v_rcp_f32 v{U}, v{Oa+8}')
        for r_ in range(0, 8, 2): a(f'v_pk_mul_f32 {v(Oa+r_,2)}, {v(Oa+r_,2)}, {v(U,2)} op_sel:[0,0] op_sel_hi:[1,0]')
        for r_ in range(4): a(f'v_cvt_pk_bf16_f32 v{TMP+8+r_}, v{Oa+2*r_}, v{Oa+2*r_+1}')
        a(f'buffer_store_dwordx4 {v(TMP+8,4)}, v{L16}, s[4:7], s55 offen sc1')
        a('s_mov_b32 s41, 1')
        a('s_cmp_eq_u32 s40, 1')
        a('s_cbranch_scc1 attn_done')
        sig_block()
        a('s_cmp_eq_u32 s43, 0')
        a('s_cbranch_scc1 attn_done')
        a('s_mov_b32 s43, 0'); a('s_mov_b32 s55, s39')
        sig_addr(1, 37)
        a('s_branch attn_slow')
        a.label('attn_done')

    def touch_wqkv():
        per = L.FT_QKV * FT // 32
        g = [f's_mul_i32 s60, s14, {per}', f's_mul_i32 s61, s12, {per//4}', 's_add_u32 s60, s60, s61', f's_add_u32 s60, s60, {L.WQKVF}',
             f'v_lshlrev_b32 v{T0}, 7, v{LN}', 's_add_u32 s61, s60, 4480',
             f'buffer_load_dword v{T1}, v{T0}, s[4:7], s60 offen sc1', f'buffer_load_dword v{T1}, v{T0}, s[4:7], s61 offen sc1']
        return [g]

    def touch_w1():
        per = 44 * FT // 32
        g = [f's_mul_i32 s60, s14, {per}', f's_mul_i32 s61, s12, {per//4}', 's_add_u32 s60, s60, s61', f's_add_u32 s60, s60, {L.W1F}',
             f'v_lshlrev_b32 v{T0}, 7, v{LN}', 's_add_u32 s61, s60, 3584',
             f'buffer_load_dword v{T1}, v{T0}, s[4:7], s60 offen sc1', f'buffer_load_dword v{T1}, v{T0}, s[4:7], s61 offen sc1']
        return [g]

    def dump():
        if not STAMP: return
        a('s_lshl_b32 s90, s2, 2'); a('s_add_u32 s90, s90, s12'); a('s_lshl_b32 s90, s90, 1'); a('s_add_u32 s90, s90, s26')
        a('s_lshl_b32 s90, s90, 8'); a(f's_add_u32 s90, s90, {L.FLAGS + 7*L.MB}')
        a(f'buffer_store_dword v0, v{L4}, s[4:7], s90 offen')
        a('s_waitcnt vmcnt(0)')
        if os.environ.get('DBG'):
            sk = a.lab('dbg')
            a('s_lshl_b32 s90, s2, 2'); a('s_add_u32 s90, s90, s12'); a('s_cmp_lg_u32 s90, 2'); a(f's_cbranch_scc1 {sk}')
            a('s_load_dwordx2 s[92:93], s[0:1], 64'); a('s_waitcnt lgkmcnt(0)')
            srd(a, 92, 92, 256)
            a(f'v_readlane_b32 s91, v0, {2*STAMPS.index("p0 prek")+3}')
            names = ['p0 sig', 'att go', 'att loop', 'woB end', 'ffn1 sig', 'end']
            for j, nm in enumerate(names):
                a(f'v_readlane_b32 s90, v0, {2*STAMPS.index(nm)+3}')
                a('s_sub_u32 s90, s90, s91')
                a(f'v_mov_b32 v{T2}, s90')
                a('s_mul_i32 s90, s26, 24'); a(f's_add_u32 s90, s90, {8 + 4*j}')
                a('s_mov_b64 exec, 1')
                a(f'buffer_store_dword v{T2}, v{L4}, s[92:95], s90 offen')
                a('s_mov_b64 exec, -1')
            a('s_waitcnt vmcnt(0)')
            a.label(sk)

    a('s_branch main_attpre2')
    a.label('main_layer')
    st('start')
    gemmA_pre(True)
    a('s_waitcnt vmcnt(0)')
    poll_test(1, 'main_q_go')
    poll_spin(1, 'main_q_go', d=dd('q', 4))
    a.label('main_qkv')
    st('qkv go')
    def first_sync(n):
        sk = a.lab('nosync')
        a('s_cmp_eq_u32 s26, 1')
        a(f's_cbranch_scc1 {sk}')
        a(f's_waitcnt vmcnt({n})')
        a('s_barrier')
        a.label(sk)
    gemmA(True, None if K1 else first_sync)
    sig_addr(0, 34)
    a('s_mov_b32 s41, 1')
    a.label('main_attpre')
    attn_pre()
    for i in range(4):
        a(f's_add_u32 s{76+i}, s46, {4096*i}'); a(f's_add_u32 s{80+i}, s47, {4096*i}')
    st('qkv sig')
    a('s_cmp_eq_u32 s26, 1')
    a('s_cbranch_scc1 main_nores')
    a('s_waitcnt vmcnt(0)')
    for g in range(2):
        a(f'v_permlane32_swap_b32 v{RES+4*g}, v{RES+4*g+2}')
        a(f'v_permlane32_swap_b32 v{RES+4*g+1}, v{RES+4*g+3}')
    a.label('main_nores')
    a('s_cmp_ge_u32 s12, 2')
    a('s_cbranch_scc1 main_att_bar')
    sig_block()
    a('s_lshr_b32 s52, s24, 1'); a(f's_mul_i32 s52, s52, {8*CST}'); a('s_add_u32 s50, s28, s52')
    a(f'v_mul_u32_u24 v{T0}, {2*CST}, v{LN}')
    poll_spin(4, a.lab('go'), d=dd('a', 0))
    a.label('main_att_bar')
    if 'a' in OPT.get('es', ''):
        a('s_cmp_eq_u32 s26, 0'); a('s_cbranch_scc1 main_noes')
        sig_try(1, 0)
        a.label('main_noes')
    a('s_barrier')
    a.label('main_att_go')
    st('att go')
    W1L = int(OPT.get('w1l', 0))
    extra = (touch_w1() if W1L else wtile_dma(False)) + wB_loads(True, list(range(8))) + wB_loads(False, list(range(NW2PRE))) + touch_wqkv()
    attn(extra)
    st('att sig')
    gemmB_pre(True)
    a('s_waitcnt vmcnt(1)')
    poll_test(1, 'main_wo_go')
    poll_spin(1, 'main_wo_go', hook=sig_step)
    if 'w' in OPT.get('es', ''): sig_try(1, 0)
    a('s_barrier')
    gemmB(True, tail=wB_loads(False, list(range(NW2PRE, 22))))
    a('s_cmp_eq_u32 s16, 15')
    a('s_cbranch_scc1 main_skip_ffn1')
    gemmA_pre(False)
    a('s_waitcnt vmcnt(0)')
    poll_test(1, 'main_f1_go')
    poll_spin(1, 'main_f1_go', d=dd('g', 2))
    st('ffn1 go')
    gemmA(False)
    sig_addr(3, 17)
    if 'f' in DIR:
        a('s_cmp_ge_u32 s12, 2'); a('s_cselect_b32 s97, 0, 2')
    a('s_mov_b32 s41, 1')
    a.label('main_skip_ffn1')
    gemmB_pre(False)
    st('ffn1 sig')
    a('s_cmp_ge_u32 s12, 2')
    a('s_cbranch_scc1 main_f2_bar')
    sig_try(1, 0)
    a('s_cmp_eq_u32 s26, 1'); a('s_cbranch_scc1 main_noq')
    a('s_cmp_eq_u32 s16, 15'); a('s_cselect_b32 s63, 0, 4')
    a(f'v_mov_b32 v{T0}, {CNTL}')
    for region in range(2):
        lp = a.lab('lspin'); ok = a.lab('lok')
        a('s_mov_b32 s51, 0')
        a.label(lp)
        a(f'ds_read_b32 v{T1}, v{T0} offset:{4*region}')
        a('s_add_u32 s51, s51, 1')
        a('s_waitcnt lgkmcnt(0)')
        a(f'v_readfirstlane_b32 s52, v{T1}')
        a('s_cmp_ge_u32 s52, s63'); a(f's_cbranch_scc1 {ok}')
        a('s_sleep 1')
        a(f's_cmp_lt_u32 s51, {8*SPIN}'); a(f's_cbranch_scc1 {lp}')
        a.label(ok)
        gs_ = wq_third(region, 2)
        if region == 0:
            run_groups(gs_[:3]); sig_try(2, 8); run_groups(gs_[3:])
        else: run_groups(gs_)
    a.label('main_noq')
    sig_try(2, 0)
    poll(3, [21])
    a.label('main_f2_bar')
    if 'f' in OPT.get('es', ''): sig_try(1, 0)
    a('s_barrier')
    gemmB(False, tail=wq_third(2, 2))
    if STAMP: a('s_waitcnt vmcnt(0)'); st('end')
    dump()
    a('s_cmp_eq_u32 s26, 1')
    a('s_cbranch_scc1 main_end')
    a('s_mov_b32 s26, 1'); a(f's_mov_b32 s27, {2*L.MB}'); a(f's_add_u32 s28, s28, {LST}')
    a('s_branch main_layer')
    a.label('main_end')
    a('s_endpgm')
    return 256, 160*1024


if __name__ == '__main__':
    p = Prog()
    cfg = gen_main(p)
    p.launches.append((KNAME, 256, *cfg))
    errs = p.a.check_branches()
    for e in errs: print('HAZARD', e, file=sys.stderr)
    txt = p.text()
    if os.environ.get('SINGLE'):
        txt = txt.replace(f'; @launch kernel={KNAME} ', '; @launch ')
    open(sys.argv[1], 'w').write(txt)
    if STAMP: open(sys.argv[1] + '.names', 'w').write('\n'.join(STAMPS))
    print('pads', p.a.pads, 'instrs', sum(1 for i in p.a.ins if i.states), file=sys.stderr)
```

```python
import sys, os
sys.path.insert(0, 'work')
from gen import *

CNT = L.FLAGS
CST = 512
FOFF = 256
CB = [0, 128, 384, 448, 512]
LST = 576 * CST
def areg(a0, n=4): return f'a[{a0}:{a0+n-1}]'
FT = 33 * 1024
WT = 3 * FT
RED = WT; PART = WT; SCR = WT + 56*1024; CNTL = WT + 55*1024
OPT = dict(bwin='12', apre='16', nb='16', bwin2='12', gs='3'); OPT.update(x.split('=') for x in os.environ.get('OPT', '').split(',') if x)
TARGET = {0: 8, 1: 8, 2: 16, 3: 15, 4: 16}
SPIN = 0x200000
STAMPS = []
K1 = 1
W2KS = 96
NSIDE = 206
WCELL = CNT + 2*LST
KNAME = 'interleave_layers__mha_block__dense_activation_mish__prompt_kernel'


def phase0(a):
    a('s_load_dwordx4 s[8:11], s[0:1], 0')
    a('s_load_dwordx4 s[20:23], s[0:1], 64')
    a('s_getpc_b64 s[60:61]')
    a.label('p0_pc')
    a('s_and_b32 s62, s2, 8'); a('s_lshl_b32 s62, s62, 12')
    a('s_sub_u32 s63, main_end-p0_pc, s62')
    a('s_add_u32 s60, s60, s62'); a('s_addc_u32 s61, s61, 0')
    a('v_lshlrev_b32 v182, 7, v0')
    a('v_min_u32 v182, s63, v182')
    a('v_mov_b32 v183, s61')
    a('v_add_co_u32 v182, vcc, s60, v182')
    a('v_addc_co_u32 v183, vcc, 0, v183, vcc')
    a('global_load_dword v184, v[182:183], off')
    a('s_load_dwordx2 s[84:85], s[0:1], 16')
    a('s_load_dwordx4 s[88:91], s[0:1], 32')
    a('s_load_dwordx2 s[86:87], s[0:1], 48')
    LN, L16, L4, T0, T1, T2, T3 = 1, 2, 3, 4, 5, 6, 7
    a(f'v_and_b32 v{LN}, 63, v0')
    a(f'v_lshrrev_b32 v{T0}, 6, v0')
    a(f'v_readfirstlane_b32 s12, v{T0}')
    a('s_and_b32 s13, s2, 7'); a('s_lshr_b32 s14, s2, 3')
    MAP = int(OPT.get('map', 0))
    if MAP == 0:
        a('s_lshl_b32 s15, s13, 2'); a('s_and_b32 s33, s14, 3'); a('s_add_u32 s15, s15, s33')
        a('s_lshr_b32 s18, s14, 2')
        a('s_add_u32 s48, s18, s13')
    else:
        a('s_lshr_b32 s15, s13, 1'); a('s_lshl_b32 s15, s15, 3'); a('s_and_b32 s33, s14, 7'); a('s_add_u32 s15, s15, s33')
        a('s_lshr_b32 s18, s14, 3')
        if MAP == 1:
            a('s_lshl_b32 s18, s18, 1'); a('s_and_b32 s33, s13, 1'); a('s_add_u32 s18, s18, s33')
        else:
            a('s_and_b32 s33, s13, 1'); a('s_lshl_b32 s33, s33, 2'); a('s_add_u32 s18, s18, s33')
        a('s_lshr_b32 s48, s14, 2'); a('s_add_u32 s48, s48, s13')
    a('s_and_b32 s48, s48, 7')
    WSL = 12288; XB = 8*WSL; XSL = 8192
    DW, DX = 8, 9
    a(f'v_lshrrev_b32 v{T0}, 3, v{LN}')
    a(f'v_and_b32 v{T1}, 7, v{LN}')
    a(f'v_bfe_u32 v{T2}, v{LN}, 4, 1')
    a(f'v_lshlrev_b32 v{T2}, 2, v{T2}')
    a(f'v_xor_b32 v{T2}, v{T1}, v{T2}')
    a(f'v_mul_u32_u24 v{DW}, 3072, v{T0}')
    a(f'v_lshl_add_u32 v{DW}, v{T2}, 4, v{DW}')
    a(f'v_lshrrev_b32 v{T2}, 4, v{LN}')
    a(f'v_xor_b32 v{T2}, v{T1}, v{T2}')
    a(f'v_lshlrev_b32 v{DX}, 10, v{T0}')
    a(f'v_lshl_add_u32 v{DX}, v{T2}, 4, v{DX}')
    a(f'v_xor_b32 v{DX+1}, 64, v{DX}')
    a(f'v_add_u32 v{DX+1}, {8*1024 - 1024}, v{DX+1}')
    a('s_mul_i32 s40, s12, 24576'); a('s_lshl_b32 s33, s18, 7'); a('s_add_u32 s40, s40, s33')
    a('s_lshl_b32 s43, s15, 16'); a('s_lshl_b32 s33, s12, 14'); a('s_add_u32 s43, s43, s33')
    a(f's_mul_i32 s33, s48, {64*3072}'); a('s_add_u32 s40, s40, s33')
    a('s_lshl_b32 s33, s48, 7'); a('s_add_u32 s43, s43, s33')
    a(f's_mov_b32 s49, {64*3072}'); a('s_movk_i32 s51, 128')
    a('s_mov_b32 s76, s18'); a('s_mov_b32 s77, s18')
    a('s_mul_i32 s44, s12, 3072'); a('s_lshl_b32 s45, s12, 11'); a(f's_add_u32 s45, s45, {XB}')
    a(f's_sub_u32 s33, s2, {int(OPT.get("clr", 64))}'); a('s_lshl_b32 s34, s33, 2'); a('s_add_u32 s34, s34, s12'); a(f's_mul_i32 s34, s34, {37*256}')
    a(f's_add_u32 s34, s34, {CNT}')
    a(f'v_min_u32 v{T0}, 36, v{LN}'); a(f'v_lshlrev_b32 v{T0}, 8, v{T0}')
    a(f'v_mov_b32 v{T1}, 0')
    if STAMP:
        a('s_memrealtime s[96:97]')
    a('s_waitcnt lgkmcnt(0)')
    if STAMP:
        STAMPS.append('p0 prek'); i_ = len(STAMPS) - 1
        a(f'v_writelane_b32 v11, s96, {2*i_+2}'); a(f'v_writelane_b32 v11, s96, {2*i_+3}')
    stp0('p0 karg')
    srd(a, 4, 22, L.WS_BYTES)
    srd(a, 28, 10, 512*1536*2)
    srd(a, 8, 8, 2*L.MB)
    a('s_cmp_lt_u32 s33, 16'); a('s_cselect_b32 s35, 1, 0')
    a('s_cbranch_scc0 p0_noclr')
    a(f'buffer_store_dword v{T1}, v{T0}, s[4:7], s34 offen sc1')
    a.label('p0_noclr')
    def dma_pair(sl):
        o = []
        o.append([f's_add_u32 m0, s45, {sl*XSL}', f's_add_u32 s46, s40, {32*3072}', f'buffer_load_dwordx4 v{DX}, s[8:11], s43 offen lds',
                  f'buffer_load_dwordx4 v{DX+1}, s[8:11], s43 offen offset:1024 lds'])
        o.append([f's_add_u32 m0, s44, {2*sl*WSL}', 's_add_u32 s48, s48, 1'] +
                 [f'buffer_load_dwordx4 v{DW}, s[28:31], s40 offen offset:{1024*u} lds' for u in range(3)])
        o.append(['s_cmp_eq_u32 s48, 8', f's_cselect_b32 s50, {(128 - 1024) & 0xffffffff}, s51', f's_cselect_b32 s52, {((64 - 512)*3072) & 0xffffffff}, s49'])
        o.append([f's_add_u32 m0, s44, {(2*sl + 1)*WSL}', 's_add_u32 s43, s43, s50'] +
                 [f'buffer_load_dwordx4 v{DW}, s[28:31], s46 offen offset:{1024*u} lds' for u in range(3)] + ['s_add_u32 s40, s40, s52'])
        return o
    def run(gs):
        for g in gs:
            for t in g: a(t)
    TCH = int(OPT.get('tch', 1))
    if TCH == 1:
        a('s_lshl_b32 s33, s2, 2'); a('s_add_u32 s33, s33, s12'); a('s_mul_i32 s33, s33, 1536')
        a(f'v_lshlrev_b32 v185, 7, v{LN}')
        a('s_mov_b64 exec, 0xfff')
        a('buffer_load_dword v187, v185, s[28:31], s33 offen')
        a('s_mov_b64 exec, -1')
    def touch_all():
        a('s_lshl_b32 s33, s14, 2'); a('s_add_u32 s33, s33, s12')
        a('s_lshl_b32 s34, s33, 11'); a('s_lshl_b32 s53, s13, 18'); a('s_add_u32 s34, s34, s53')
        a('s_mul_i32 s33, s33, 12288'); a('s_add_u32 s53, s33, 8192')
        a(f'v_lshlrev_b32 v185, 7, v{LN}')
        a('buffer_load_dword v187, v185, s[28:31], s33 offen')
        a('s_mov_b64 exec, 0xffffffff')
        a('buffer_load_dword v186, v185, s[28:31], s53 offen')
        a('s_mov_b64 exec, 0xffff')
        a('buffer_load_dword v188, v185, s[8:11], s34 offen')
        a('s_mov_b64 exec, -1')
    if TCH == 2: touch_all()
    run(dma_pair(0))
    if TCH == 3: touch_all()
    stp0('p0 dma0')
    srd(a, 20, 20, 256)
    if int(OPT.get('tlb', 0)):
        a(f'v_lshlrev_b32 v181, 21, v{LN}'); a(f'v_min_u32 v181, {CNT}, v181')
        a('buffer_load_dword v186, v181, s[4:7], 0 offen')
        a(f'buffer_load_dword v188, v{T1}, s[20:23], 0 offen offset:192')
        a('s_load_dwordx2 s[62:63], s[0:1], 56')
        a('v_mov_b32 v180, 0')
        a('global_load_dword v189, v180, s[84:85]'); a('global_load_dword v189, v180, s[86:87]')
        a('global_load_dword v189, v180, s[88:89]'); a('global_load_dword v189, v180, s[90:91]')
        a('s_waitcnt lgkmcnt(0)')
        a('global_load_dword v189, v180, s[62:63]')
    run(dma_pair(1))
    a(f'v_lshlrev_b32 v{L16}, 4, v{LN}')
    a(f'v_lshlrev_b32 v{L4}, 2, v{LN}')
    a('s_lshr_b32 s19, s12, 1'); a('s_and_b32 s24, s12, 1'); a('s_xor_b32 s25, s19, s24')
    RW = 66
    a(f'v_lshrrev_b32 v{T0}, 5, v{LN}'); a(f'v_mul_u32_u24 v{T0}, 3072, v{T0}')
    a(f'v_bfe_u32 v{T1}, v{LN}, 2, 2'); a(f'v_lshl_add_u32 v{RW}, v{T1}, 7, v{T0}')
    a(f'v_bfe_u32 v{T1}, v{LN}, 3, 1'); a(f'v_xor_b32 v{T1}, s24, v{T1}'); a(f'v_lshl_add_u32 v{RW}, v{T1}, 6, v{RW}')
    a(f'v_bfe_u32 v{T1}, v{LN}, 4, 1'); a(f'v_lshl_add_u32 v{RW}, v{T1}, 5, v{RW}')
    a(f'v_and_b32 v{T1}, 3, v{LN}'); a(f'v_lshl_add_u32 v{RW}, v{T1}, 3, v{RW}')
    a('s_mul_i32 s33, s25, 6144'); a('s_sub_u32 s34, 6144, s33')
    a(f'v_add_u32 v{RW+1}, s34, v{RW}'); a(f'v_add_u32 v{RW}, s33, v{RW}')
    a(f'v_add_u32 v70, {4*WSL}, v{RW}'); a(f'v_add_u32 v71, {4*WSL}, v{RW+1}')
    RX = 12
    a(f'v_and_b32 v{T0}, 31, v{LN}'); a(f'v_lshlrev_b32 v{T1}, 7, v{T0}')
    a(f'v_bfe_u32 v{T2}, v{LN}, 1, 3'); a(f'v_lshrrev_b32 v{T3}, 5, v{LN}'); a(f'v_xor_b32 v{T2}, v{T2}, v{T3}')
    a(f'v_lshl_add_u32 v{T1}, v{T2}, 4, v{T1}')
    a('s_lshl_b32 s33, s25, 5'); a(f'v_xor_b32 v{T1}, s33, v{T1}')
    a('s_lshl_b32 s33, s19, 12'); a(f's_add_u32 s33, s33, {XB}')
    a(f'v_add_u32 v{RX}, s33, v{T1}')
    for q in range(1, 4): a(f'v_xor_b32 v{RX+q}, {32*q}, v{RX}')
    STV = 16; RS, RQ = 68, 69; XE = 72; WE = 192
    FRG = [192, 128]
    ACC = [80 + 16*i for i in range(3)]
    S1, S2, CS, ONE, AV = 32, 33, 34, 37, 38
    for r_ in range(S1, CS + 3): a(f'v_mov_b32 v{r_}, 0')
    a(f'v_mov_b32 v{ONE}, {ONES}')
    SUMS = 48; OA_ = 44
    M16 = 'v_mfma_f32_16x16x32_bf16'
    a(f'v_and_b32 v{T0}, 31, v{LN}')
    a(f'v_cmp_eq_u32 vcc, 0, v{T0}'); a(f'v_cmp_eq_u32 s[60:61], 17, v{T0}'); a('s_or_b64 vcc, vcc, s[60:61]')
    for r_ in range(4): a(f'v_cndmask_b32 v{OA_+r_}, 0, v{ONE}, vcc')

    SD, SR = 40, 41
    EARLY = int(OPT.get('early', 1))
    def side_params():
        a('s_and_b32 s26, s2, 0xf0'); a('s_lshl_b32 s33, s13, 1'); a('s_add_u32 s26, s26, s33'); a('s_and_b32 s33, s14, 1'); a('s_add_u32 s26, s26, s33')
        SROT = int(OPT.get('srot', 128))
        a(f's_add_u32 s26, s26, {SROT}'); a('s_and_b32 s26, s26, 255')
        a('s_mov_b32 s95, 0x00020000')
        a('s_lshl_b32 s71, s12, 12'); a(f's_add_u32 s71, s71, {XB + 4*XSL}')
        a(f'v_lshrrev_b32 v{T0}, 5, v{LN}'); a(f'v_lshlrev_b32 v{T0}, 2, v{T0}')
        a(f'v_bfe_u32 v{T2}, v{LN}, 2, 2'); a(f'v_add_u32 v{T0}, v{T0}, v{T2}')
        a(f'v_bfe_u32 v{T2}, v{LN}, 4, 1'); a(f'v_lshlrev_b32 v{T2}, 5, v{T2}')
        a(f'v_and_b32 v{T1}, 3, v{LN}'); a(f'v_lshl_add_u32 v{T2}, v{T1}, 3, v{T2}')
        a('s_cmp_ge_u32 s26, 88'); a('s_cbranch_scc1 p0_rows')
        a('s_mov_b32 s92, s88'); a('s_mov_b32 s93, s89'); a(f's_mov_b32 s94, {512*1376*2}'); a('s_mov_b32 s65, 2')
        a('s_cmp_ge_u32 s26, 44'); a('s_cselect_b32 s69, 1, 0'); a('s_mul_i32 s33, s69, 44'); a('s_sub_u32 s68, s26, s33')
        a(f's_mul_i32 s70, s68, {FT}'); a(f's_add_u32 s70, s70, {L.W1F}')
        a('s_lshl_b32 s33, s69, 2'); a('s_add_u32 s33, s33, s12')
        a('s_lshl_b32 s66, s33, 12'); a('s_add_u32 s66, s66, s70'); a('s_movk_i32 s72, 1024')
        a(f's_mov_b32 s73, {16*2752}'); a(f's_mul_i32 s67, s33, {64*2752}'); a('s_lshl_b32 s33, s68, 6'); a('s_add_u32 s67, s67, s33')
        a(f'v_lshrrev_b32 v{SD}, 2, v{LN}'); a(f'v_mul_u32_u24 v{SD}, 2752, v{SD}'); a(f'v_lshl_add_u32 v{SD}, v{T1}, 4, v{SD}')
        a(f'v_lshl_add_u32 v{SR}, v{T0}, 6, v{T2}'); a(f'v_add_u32 v{SR}, s71, v{SR}')
        a('s_branch p0_prm')
        a.label('p0_rows')
        a('s_mov_b32 s65, 0'); a('s_movk_i32 s73, 1024')
        a('s_mov_b32 s92, s84'); a('s_mov_b32 s93, s85'); a(f's_mov_b32 s94, {512*512*2}')
        a('s_sub_u32 s68, s26, 88'); a(f's_mov_b32 s72, {32*1024}'); a(f's_mov_b32 s70, {L.WOF}')
        a('s_cmp_lt_u32 s26, 120'); a('s_cbranch_scc1 p0_rows2')
        a('s_mov_b32 s92, s86'); a('s_mov_b32 s93, s87'); a(f's_mov_b32 s94, {1376*512*2}')
        a('s_sub_u32 s68, s26, 120'); a(f's_mov_b32 s72, {W2KS*1024}'); a(f's_mov_b32 s70, {L.W2F}')
        a(f's_cmp_ge_u32 s26, {NSIDE}'); a('s_cselect_b32 s94, 0, s94')
        a.label('p0_rows2')
        a('s_lshl_b32 s67, s68, 14'); a('s_lshl_b32 s33, s12, 12'); a('s_add_u32 s67, s67, s33')
        a('s_lshl_b32 s33, s12, 2'); a('s_mul_i32 s66, s33, s72'); a('s_lshl_b32 s33, s68, 10'); a('s_add_u32 s66, s66, s33'); a('s_add_u32 s66, s66, s70')
        a(f'v_mov_b32 v{SD}, v{L16}')
        a('s_lshl_b32 s33, s12, 8'); a(f's_add_u32 s33, s33, {XB + 4*XSL}')
        a(f'v_lshl_add_u32 v{SR}, v{T0}, 10, v{T2}'); a(f'v_add_u32 v{SR}, s33, v{SR}')
        a.label('p0_prm')
        a('s_and_b32 s93, s93, 0xffff')
    def side_dma():
        return [[f's_add_u32 m0, s71, {i*1024}', 's_nop 0', f'buffer_load_dwordx4 v{SD}, s[92:95], s67 offen lds', 's_add_u32 s67, s67, s73'] for i in range(4)]
    def reads(sl):
        F = FRG[sl % 2]; o = []
        for j in range(4):
            h, s_ = divmod(j, 2)
            o.append(f'ds_read_b128 {v(F+16*j,4)}, v{RX + j} offset:{sl*XSL}')
            ad = (RW if sl < 2 else 70) + s_
            for u in range(3):
                r = F + 16*j + 4 + 4*u; off = (2*(sl % 2) + h)*WSL + u*1024
                o.append(f'ds_read_b64_tr_b16 {v(r,2)}, v{ad} offset:{off}')
                o.append(f'ds_read_b64_tr_b16 {v(r+2,2)}, v{ad} offset:{off+512}')
        return o
    def mf(f, xf, wf, first):
        cc = '0' if first else v(ACC[f], 16)
        if f == 2: a(f'{MFMA} {v(ACC[f],16)}, {xf}, {wf}, {cc}')
        else: a(f'{MFMA} {v(ACC[f],16)}, {wf}, {xf}, {cc}')
    side_params()
    if int(OPT.get('stch', 0)):
        a(f'v_lshrrev_b32 v185, 3, v{LN}'); a('v_mul_lo_u32 v185, v185, s73'); a(f'v_and_b32 v186, 7, v{LN}'); a('v_lshl_add_u32 v185, v186, 7, v185')
        a(f'v_mul_u32_u24 v186, 2752, v{LN}')
        a('s_cmp_eq_u32 s65, 0'); a('s_cselect_b64 vcc, -1, 0'); a(f's_cselect_b32 s33, 0, {64*2752}'); a('s_add_u32 s33, s33, s67')
        a('v_cndmask_b32 v185, v186, v185, vcc')
        a('buffer_load_dword v188, v185, s[92:95], s67 offen')
        a('buffer_load_dword v189, v185, s[92:95], s33 offen')
    run(dma_pair(2))
    stp0('p0 setup')
    a(f's_waitcnt vmcnt({16 + 2*int(OPT.get("stch", 0))})')
    a('s_barrier')
    stp0('p0 first')
    for t in reads(0): a(t)
    SC0 = 8192; CA = 42
    def rec(f):
        o = []
        f(o.append)
        return o
    def tail_pre(a):
        a(f's_mov_b32 s10, {2*L.MB}')
        a('s_lshl_b32 s17, s15, 1'); a('s_add_u32 s17, s17, s19')
        a('s_lshl_b32 s16, s18, 1'); a('s_add_u32 s16, s16, s24')
        a('s_lshl_b32 s76, s76, 1'); a('s_add_u32 s76, s76, s24'); a('s_lshl_b32 s77, s77, 1'); a('s_add_u32 s77, s77, s24')
        a('s_lshl_b32 s33, s17, 10')
        a('s_lshl_b32 s56, s16, 17'); a('s_add_u32 s56, s56, s33'); a('s_add_u32 s57, s56, 0x10000')
        a('s_lshl_b32 s58, s76, 17'); a('s_add_u32 s58, s58, s33'); a(f's_add_u32 s58, s58, {L.K[0]}'); a('s_add_u32 s59, s58, 0x10000')
        a('s_lshl_b32 s54, s77, 17'); a('s_add_u32 s54, s54, s33'); a(f's_add_u32 s54, s54, {L.V[0]}')
        a(f'v_bfe_u32 v78, v{LN}, 4, 1'); a('v_lshlrev_b32 v78, 16, v78')
        a(f'v_lshrrev_b32 v79, 5, v{LN}'); a('v_lshl_add_u32 v78, v79, 8, v78')
        a(f'v_and_b32 v79, 15, v{LN}'); a('v_lshl_add_u32 v78, v79, 4, v78')
        a(f'v_and_b32 v{T3}, 124, v{L4}')
        a('s_xor_b32 s33, s12, 1'); a('s_mul_i32 s33, s33, 3072'); a(f'v_add_u32 v{T1}, s33, v{T3}')
        a('s_xor_b32 s33, s12, 2'); a('s_mul_i32 s33, s33, 3072'); a(f'v_add_u32 v{T2}, s33, v{T3}')
        a(f'v_add_u32 v{T0}, s44, v{L4}')
        a('s_add_u32 s33, s44, 1024')
        a(f'v_add_u32 v76, s33, v{L4}')
        a(f'v_lshrrev_b32 v77, 5, v{LN}'); a('v_lshlrev_b32 v77, 4, v77'); a('v_add_u32 v77, s33, v77')
        a(f'v_cmp_gt_u32 vcc, 32, v{LN}')
        a('s_lshr_b32 s42, s17, 4'); a('s_lshl_b32 s42, s42, 1')
        a('s_and_b32 s33, s17, 1'); a('s_add_u32 s42, s42, s33'); a(f's_mul_i32 s42, s42, {CST}'); a(f's_add_u32 s42, s42, {CNT}')
        a(f's_mul_i32 s33, s16, {8*CST}'); a(f'v_mov_b32 v{CA}, s33')
        a('s_and_b32 s33, s15, 3'); a('s_mul_i32 s34, s33, 6144'); a(f's_add_u32 s34, s34, {6*WSL}')
        a(f'v_lshrrev_b32 v43, 5, v{LN}'); a('v_mul_u32_u24 v64, 2560, v43')
        a('s_mul_i32 s53, s25, 6144'); a('s_sub_u32 s34, s34, s53')
        a(f'v_sub_u32 v43, v{RW}, v64'); a('v_add_u32 v43, s34, v43')
        a('s_add_u32 s53, s48, 7'); a('s_and_b32 s53, s53, 7'); a('s_lshl_b32 s53, s53, 2'); a('s_add_u32 s53, s53, s33'); a('s_lshl_b32 s53, s53, 10')
        a(f's_mul_i32 s33, s16, {FT}'); a('s_add_u32 s53, s53, s33'); a(f's_add_u32 s53, s53, {L.WQKVF}')
    def tail_comb(a):
        for u in range(3):
            a(f'ds_read_b64_tr_b16 {v(204+4*u,2)}, v43 offset:{u*1024}')
            a(f'ds_read_b64_tr_b16 {v(206+4*u,2)}, v43 offset:{u*1024+3072}')
        a(f'v_add_f32 v{S1}, v{S1}, v{S2}')
        a(f'ds_write_b32 v{T0}, v{S1} offset:512')
        a('s_mov_b64 exec, 0xffff')
        for u in range(4): a(f'ds_write2_b32 v{T0}, v{SUMS+4*u}, v{SUMS+4*u+1} offset0:{32*u} offset1:{32*u+16}')
        a('s_mov_b64 exec, -1')
        a(f'v_add_u32 v{T0}, s44, v{T3}')
        a('s_waitcnt lgkmcnt(0)')
        a('s_barrier')
        a(f'ds_read_b32 v{STV}, v{T0} offset:384'); a(f'ds_read_b32 v{STV+2}, v{T1} offset:384')
        a(f'ds_read2_b32 {v(STV+4,2)}, v{T0} offset0:128 offset1:160'); a(f'ds_read2_b32 {v(STV+6,2)}, v{T1} offset0:128 offset1:160')
        for u in range(3):
            a(f'ds_read_b32 v{CS+u}, v{T0} offset:{128*u}')
            a(f'ds_read_b32 v{48+u}, v{T2} offset:{128*u}')
        a('s_waitcnt lgkmcnt(6)')
        a(f'v_add_f32 v{STV}, v{STV}, v{STV+2}')
        a(f'v_add_f32 v{STV+4}, v{STV+4}, v{STV+5}'); a(f'v_add_f32 v{STV+6}, v{STV+6}, v{STV+7}'); a(f'v_add_f32 v{STV+1}, v{STV+4}, v{STV+6}')
        a(f'v_mul_f32 v{STV}, {f32(-1.0/512)}, v{STV}')
        a(f'v_mul_f32 v{STV+1}, {f32(1.0/512)}, v{STV+1}')
        a(f'v_fma_f32 v{STV+1}, -v{STV}, v{STV}, v{STV+1}')
        a(f'v_max_f32 v{STV+1}, 0, v{STV+1}')
        a(f'v_add_f32 v{STV+1}, {f32(1e-5)}, v{STV+1}')
        a(f'v_rsq_f32 v{RS}, v{STV+1}')
        MH, MM, ML, TT = STV+2, STV+3, STV+4, STV+8
        split3(a, STV, MH, MM, ML, TT)
        a(f'ds_write_b32 v76, v{RS}')
        pack_hi(a, XE, MH, MM)
        a(f'v_lshrrev_b32 v{XE+1}, 16, v{ML}'); a(f'v_mov_b32 v{XE+2}, 0'); a(f'v_lshrrev_b32 v{XE+3}, 16, v{MH}')
        a(f'v_mul_f32 v{RQ}, {f32(L.QSCALE)}, v{RS}')
        for j in range(4): a(f'ds_read_b128 {v(STV+4*j,4)}, v77 offset:{32*j}')
        a('s_waitcnt lgkmcnt(5)')
        for u in (1, 2, 0):
            c_ = CS + u; W_ = WE + 4*u; HI, MID, LO, TQ = 44, 45, 46, 47
            a(f'v_add_f32 v{c_}, v{c_}, v{48+u}')
            split3(a, c_, HI, MID, LO, TQ)
            a(f'v_lshrrev_b32 v{W_+1}, 16, v{HI}'); a(f'v_or_b32 v{W_}, v{W_+1}, v{HI}')
            a(f'v_lshrrev_b32 v{W_+3}, 16, v{MID}')
            pack_hi(a, TQ, LO, MID)
            a(f'v_cndmask_b32 v{W_}, v{TQ}, v{W_}, vcc')
            a(f'v_cndmask_b32 v{W_+1}, 0, v{W_+1}, vcc')
            a(f'v_mov_b32 v{W_+2}, 0')
            a(f'v_cndmask_b32 v{W_+3}, 0, v{W_+3}, vcc')
    def singles(gs):
        out = []; cur = []
        for g in gs:
            for t in g:
                cur.append(t)
                if t.startswith('buffer'): out.append(cur); cur = []
        out[-1] += cur
        return out
    S0 = int(OPT.get('s0', 2))
    sd = side_dma()
    nis = 24; endof = {0: 8, 1: 16, 2: 24}
    masked = False
    for it in range(8):
        sl = it % 4
        if it + 1 < 8:
            a(f's_waitcnt vmcnt({nis - endof[it + 1]}) lgkmcnt(0)')
            a('s_barrier')
            q = reads((it + 1) % 4)
        else:
            a('s_waitcnt lgkmcnt(0)')
            q = []
        dp = []
        if it + 3 < 8: dp = singles(dma_pair((it + 3) % 4))
        nis += len(dp); endof[it + 3] = nis
        if it >= S0 and sd:
            ex = [sd.pop(0), sd.pop(0)]
            dp = dp + ex; nis += 2
        F = FRG[sl % 2]
        xq = rec(tail_pre) if it == 6 else []
        if it == 7:
            for r_ in range(4):
                a(f'v_dot2_f32_bf16 v{S1}, v{F+r_}, v{F+r_}, v{S1}')
                a(f'v_dot2_f32_bf16 v{S2}, v{F+32+r_}, v{F+32+r_}, v{S2}')
            for j in range(4):
                if j % 2:
                    for f in range(3): a(f'{M16} {v(SUMS+4*f,4)}, {v(OA_,4)}, {v(F+16*j+4+4*f,4)}, {v(SUMS+4*f,4)}')
                else: a(f'{M16} {v(SUMS+12,4)}, {v(OA_,4)}, {v(F+16*j,4)}, {v(SUMS+12,4)}')
            xq = rec(tail_comb)
            for n in range(12):
                j, f = divmod(n, 3)
                mf(f, v(F+16*j, 4), v(F+16*j+4+4*f, 4), False)
                if n == 0: continue
                cnt = 0
                while xq and (cnt < 8 or masked):
                    t = xq.pop(0); a(t); cnt += 1
                    if 'exec' in t: masked = '-1' not in t
                    if t.startswith(('s_waitcnt', 's_barrier')) and not masked and cnt > 2: break
                    if xq and xq[0].startswith('s_waitcnt') and not masked: break
            for t in xq: a(t)
            continue
        for n in range(12):
            j, f = divmod(n, 3)
            mf(f, v(F+16*j, 4), v(F+16*j+4+4*f, 4), it == 0 and j == 0)
            for _ in range(6):
                if xq: a(xq.pop(0))
            for _ in range(3 if n < 4 else 2):
                if q: a(q.pop(0))
            if dp and n not in ((0, 3, 6, 9) if len(dp) <= 11 - n - (11 - n)//3 else (0,)):
                for t in dp.pop(0): a(t)
            z_ = lambda r: '0' if (it == 0 and j < 2) else v(r, 4)
            if j % 2 == 1: a(f'{M16} {v(SUMS+4*f,4)}, {v(OA_,4)}, {v(F+16*j+4+4*f,4)}, {z_(SUMS+4*f)}')
            elif f == 1: a(f'{M16} {v(SUMS+12,4)}, {v(OA_,4)}, {v(F+16*j,4)}, {z_(SUMS+12)}')
            if n == 0 and it in (0, 3):
                a('s_cmp_eq_u32 s35, 0'); a(f's_cbranch_scc0 p0_clr{it}')
                a.label(f'p0_back{it}')
        assert not q and not dp and not xq
        for r_ in range(4):
            a(f'v_dot2_f32_bf16 v{S1}, v{F+r_}, v{F+r_}, v{S1}')
            a(f'v_dot2_f32_bf16 v{S2}, v{F+32+r_}, v{F+32+r_}, v{S2}')
        if it == 3: stp0('p0 trip0')
    a('s_branch p0_after')
    a.label('p0_clr0')
    a('s_cmp_lg_u32 s12, 0'); a('s_cbranch_scc1 p0_back0')
    a('s_mov_b64 exec, 1'); a(f'v_mov_b32 v{AV}, 1')
    a(f'buffer_atomic_add v{AV}, v{L4}, s[20:23], 0 offen sc0 sc1')
    a('s_mov_b64 exec, -1')
    a('s_branch p0_back0')
    a.label('p0_clr3')
    a('s_cmp_lg_u32 s12, 0'); a('s_cbranch_scc1 p0_back3')
    a(f'v_readfirstlane_b32 s33, v{AV}')
    a('s_cmp_lg_u32 s33, 15'); a('s_cbranch_scc1 p0_back3')
    a('s_mov_b64 exec, 1'); a(f'v_mov_b32 v{AV}, 1')
    a(f'buffer_store_dword v{AV}, v{L4}, s[20:23], 0 offen offset:128 sc1')
    a('s_mov_b64 exec, -1')
    a('s_branch p0_back3')
    a.label('p0_after')
    stp0('p0 loop')
    for u in (1, 2, 0): mf(u, v(XE, 4), v(WE + 4*u, 4), False)
    a('s_cmp_lg_u32 s19, 0'); a('s_cbranch_scc1 p0_nowe')
    for u in range(3):
        a(f'buffer_store_dwordx4 {v(204+4*u,4)}, v{L16}, s[4:7], s53 offen sc1')
        if u < 2: a(f's_add_u32 s53, s53, {16*FT}')
    a('s_cmp_lg_u32 s17, 0'); a('s_cbranch_scc1 p0_nowe')
    for u in range(3):
        a(f's_mul_i32 s33, s{(16, 76, 77)[u]}, {FT}'); a(f's_add_u32 s33, s33, {L.WQKVF + 32*1024 + 16*u*FT}')
        a(f'buffer_store_dwordx4 {v(WE+4*u,4)}, v{L16}, s[4:7], s33 offen sc1')
    a.label('p0_nowe')
    a('s_mov_b64 exec, 1')
    a(f'buffer_load_dword v{AV+1}, v{L4}, s[20:23], 0 offen offset:128 sc1')
    a('s_mov_b64 exec, -1')
    a('s_waitcnt lgkmcnt(0)')
    for f in (1, 2, 0):
        A = ACC[f]
        for g in range(2):
            B = A + 8*g
            for r_ in range(0, 8, 2):
                if f < 2:
                    o = 1 if f == 0 else 0
                    a(f'v_pk_mul_f32 {v(B+r_,2)}, {v(B+r_,2)}, {v(RS,2)} op_sel:[0,{o}] op_sel_hi:[1,{o}]')
                else:
                    a(f'v_pk_mul_f32 {v(B+r_,2)}, {v(B+r_,2)}, {v(STV+8*g+r_,2)}')
            for r_ in range(4): a(f'v_cvt_pk_bf16_f32 v{B+r_}, v{B+2*r_}, v{B+2*r_+1}')
            if f < 2: a(f'buffer_store_dwordx4 {v(B,4)}, v{L16}, s[4:7], s{56+2*f+g} offen sc1')
            else: a(f'buffer_store_dwordx4 {v(B,4)}, v78, s[4:7], s54 offen offset:{512*g} sc1')
    a(f'v_and_b32 v{T0}, 27, v{LN}')
    a(f'v_cmp_eq_u32 vcc, 16, v{T0}')
    a(f'v_cndmask_b32 v96, 0, v{ONE}, vcc'); a(f'v_cndmask_b32 v97, 0, v{ONE}, vcc')
    for r_ in range(2, 128, 2): a(f'v_pk_mov_b32 {v(96+r_,2)}, {v(96,2)}, {v(96,2)}')
    FR = 224
    a('s_waitcnt vmcnt(6)')
    a('s_mov_b32 s34, 0')
    a.label('p0_clr_poll')
    a(f'v_readfirstlane_b32 s33, v{AV+1}')
    a('s_cmp_eq_u32 s33, 1'); a('s_cbranch_scc1 p0_clr_ok')
    a('s_sleep 2')
    a('s_mov_b64 exec, 1')
    a(f'buffer_load_dword v{AV+1}, v{L4}, s[20:23], 0 offen offset:128 sc1')
    a('s_mov_b64 exec, -1')
    a('s_add_u32 s34, s34, 1')
    a('s_waitcnt vmcnt(0)')
    a(f's_cmp_lt_u32 s34, {SPIN}'); a('s_cbranch_scc1 p0_clr_poll')
    a.label('p0_clr_ok')
    a('s_waitcnt vmcnt(0)')
    a('s_mov_b64 exec, 1'); a(f'v_mov_b32 v{AV}, 1')
    a(f'buffer_atomic_add v{AV}, v{CA}, s[4:7], s42 offen sc0 sc1')
    a('s_mov_b64 exec, -1')
    stp0('p0 sig')
    FEARLY = int(OPT.get('fearly', 1))
    a(f's_cmp_ge_u32 s26, {NSIDE}'); a('s_cbranch_scc1 ' + ('p0_rd3' if FEARLY else 'p0_noside'))
    a('s_barrier')
    a('s_cmp_eq_u32 s65, 0'); a('s_cbranch_scc1 p0_rd2')
    for i in range(4):
        a(f'ds_read_b64_tr_b16 {v(FR+4*i,2)}, v{SR} offset:{i*1024}')
        a(f'ds_read_b64_tr_b16 {v(FR+4*i+2,2)}, v{SR} offset:{i*1024+512}')
    a('s_branch p0_rd3')
    a.label('p0_rd2')
    for i in range(4):
        a(f'ds_read_b64_tr_b16 {v(FR+4*i,2)}, v{SR} offset:{i*64}')
        a(f'ds_read_b64_tr_b16 {v(FR+4*i+2,2)}, v{SR} offset:{i*64+8192}')
    a.label('p0_rd3')
    if FEARLY:
        a('s_waitcnt vmcnt(0)')
        a(f'v_cmp_eq_u32 vcc, {TARGET[0]-1}, v{AV}')
        a('s_and_b64 vcc, vcc, 1'); a('s_cbranch_scc0 p0_notlast')
        a('s_mov_b64 exec, vcc'); a(f'v_mov_b32 v{AV}, 1')
        a(f'buffer_store_dword v{AV}, v{CA}, s[4:7], s42 offen offset:{FOFF} sc1')
        a('s_mov_b64 exec, -1')
        a.label('p0_notlast')
        a(f's_cmp_ge_u32 s26, {NSIDE}'); a('s_cbranch_scc1 p0_noside')
    a('s_waitcnt lgkmcnt(0)')
    for i in range(4):
        a(f'buffer_store_dwordx4 {v(FR+4*i,4)}, v{L16}, s[4:7], s66 offen sc1')
        a('s_add_u32 s66, s66, s72')
    a.label('p0_noside')
    a('s_cmp_eq_u32 s65, 0'); a('s_cbranch_scc1 p0_nosum')
    a(f'v_mov_b32 v{S1}, 0'); a(f'v_mov_b32 v{S2}, 0')
    for i in range(0, 16, 2):
        a(f'v_dot2_f32_bf16 v{S1}, v{FR+i}, v{ONE}, v{S1}')
        a(f'v_dot2_f32_bf16 v{S2}, v{FR+i+1}, v{ONE}, v{S2}')
    a('s_lshl_b32 s33, s12, 8'); a(f's_add_u32 s33, s33, {SC0 + 8192}')
    a(f'v_add_u32 v{T0}, s33, v{L4}')
    a(f'v_add_f32 v{S1}, v{S1}, v{S2}')
    a(f'ds_write_b32 v{T0}, v{S1}')
    a('s_waitcnt lgkmcnt(0)')
    a('s_barrier')
    a.label('p0_nosum')
    if not FEARLY:
        a(f's_cmp_ge_u32 s26, {NSIDE}'); a('s_cbranch_scc1 p0_v0')
        a('s_waitcnt vmcnt(8)')
        a('s_branch p0_v1')
        a.label('p0_v0')
        a('s_waitcnt vmcnt(0)')
        a.label('p0_v1')
        a(f'v_cmp_eq_u32 vcc, {TARGET[0]-1}, v{AV}')
        a('s_and_b64 vcc, vcc, 1'); a('s_cbranch_scc0 p0_notlast')
        a('s_mov_b64 exec, vcc'); a(f'v_mov_b32 v{AV}, 1')
        a(f'buffer_store_dword v{AV}, v{CA}, s[4:7], s42 offen offset:{FOFF} sc1')
        a('s_mov_b64 exec, -1')
        a.label('p0_notlast')
    a('s_cmp_lg_u32 s12, 3'); a('s_cbranch_scc1 p0_done')
    a(f's_cmp_ge_u32 s26, {NSIDE}'); a('s_cbranch_scc1 p0_done')
    a('s_cmp_eq_u32 s65, 0'); a('s_cbranch_scc1 p0_wsig')
    a(f'v_and_b32 v{T2}, 31, v{LN}'); a(f'v_lshlrev_b32 v{T2}, 2, v{T2}'); a(f'v_add_u32 v{T1}, {SC0+8192}, v{T2}')
    for i in range(8): a(f'ds_read_b32 v{48+i}, v{T1} offset:{128*i}')
    B = 61
    a(f'v_mov_b32 v{B}, 0')
    a('s_cmp_lg_u32 s69, 0'); a('s_cbranch_scc1 p0_nobias')
    a('s_mov_b32 s92, s90'); a('s_and_b32 s93, s91, 0xffff'); a(f's_mov_b32 s94, {1376*2}')
    a('s_lshl_b32 s33, s68, 6')
    a(f'v_lshrrev_b32 v{T3}, 1, v{T2}')
    a(f'buffer_load_ushort v{B}, v{T3}, s[92:95], s33 offen')
    a('s_waitcnt vmcnt(0)')
    a(f'v_lshlrev_b32 v{B}, 16, v{B}')
    a.label('p0_nobias')
    a('s_waitcnt lgkmcnt(0)')
    a('v_add_f32 v48, v48, v49'); a('v_add_f32 v50, v50, v51'); a('v_add_f32 v52, v52, v53'); a('v_add_f32 v54, v54, v55')
    a('v_add_f32 v48, v48, v50'); a('v_add_f32 v52, v52, v54'); a('v_add_f32 v48, v48, v52')
    HI, MID, LO = 62, 63, 64
    split3(a, 48, HI, MID, LO, 65)
    pack_hi(a, 56, HI, HI); pack_hi(a, 57, HI, B); pack_hi(a, 58, B, B)
    pack_hi(a, 59, MID, LO)
    a('s_lshl_b32 s33, s69, 9'); a('s_add_u32 s33, s33, s70'); a(f's_add_u32 s33, s33, {32*1024}')
    a('s_mov_b32 exec_hi, 0')
    a(f'buffer_store_dwordx4 v[56:59], v{L16}, s[4:7], s33 offen sc1')
    a('s_mov_b64 exec, -1')
    a.label('p0_wsig')
    a('s_mov_b32 s96, 1')
    a('s_branch p0_out')
    a.label('p0_done')
    a('s_mov_b32 s96, 0')
    a.label('p0_out')
    a('s_and_b32 s33, s26, 7'); a(f's_mul_i32 s42, s33, {CST}'); a(f's_add_u32 s42, s42, {WCELL}')
    a(f's_cmp_lt_u32 s33, {NSIDE % 8}'); a(f's_cselect_b32 s69, {NSIDE//8}, {NSIDE//8 - 1}')

def gen_main(p):
    a = p.a
    p.entry(KNAME, 512, 256)
    a('s_cmp_ge_u32 s2, 256')
    a('s_cbranch_scc1 main_end')
    global stp0
    def stp0(name):
        if not STAMP: return
        if name not in STAMPS: STAMPS.append(name)
        i = STAMPS.index(name)
        a('s_memtime s[98:99]'); a('s_memrealtime s[100:101]'); a('s_waitcnt lgkmcnt(0)')
        a(f'v_writelane_b32 v11, s98, {2*i+2}')
        a(f'v_writelane_b32 v11, s100, {2*i+3}')
    stp0('start')
    phase0(a)
    a('s_load_dwordx2 s[88:89], s[0:1], 56')
    LN, L16, L4, T0, T1, T2, T3 = 1, 2, 3, 4, 5, 6, 7
    RES = 8
    if STAMP: a('v_mov_b32 v0, v11')
    a('s_and_b32 s13, s2, 7'); a('s_lshr_b32 s14, s2, 3')
    a('s_lshl_b32 s15, s13, 1'); a('s_and_b32 s29, s14, 1'); a('s_add_u32 s15, s15, s29')
    a('s_lshr_b32 s16, s14, 1')
    a('s_lshl_b32 s17, s15, 2'); a('s_and_b32 s29, s12, 1'); a('s_lshl_b32 s29, s29, 1'); a('s_add_u32 s17, s17, s29')
    a('s_lshr_b32 s29, s12, 1'); a('s_add_u32 s17, s17, s29')
    a('s_lshl_b32 s18, s13, 2'); a('s_and_b32 s29, s14, 3'); a('s_add_u32 s18, s18, s29')
    a('s_lshr_b32 s19, s14, 2')
    a('s_lshl_b32 s21, s18, 1'); a('s_lshr_b32 s29, s12, 1'); a('s_add_u32 s20, s21, s29')
    a('s_lshl_b32 s22, s19, 1'); a('s_and_b32 s29, s12, 1'); a('s_add_u32 s22, s22, s29'); a('s_xor_b32 s23, s22, 1')
    a('s_mov_b32 s24, s18'); a('s_mov_b32 s25, s19')
    a('s_mov_b32 s26, 0'); a('s_mov_b32 s27, 0'); a(f's_mov_b32 s28, {CNT}')
    a('s_mov_b32 s30, 0x0000ffff'); a('s_mov_b32 s31, 0x0000ffff')
    a('s_lshl_b32 s32, s20, 5'); a('s_lshl_b32 s29, s22, 1'); a('s_add_u32 s32, s32, s29'); a('s_lshl_b32 s32, s32, 10')
    a('s_mul_i32 s33, s12, 22'); a('s_mul_i32 s29, s12, 21'); a('s_add_u32 s29, s29, 1')
    a('s_cmp_ge_u32 s12, 2'); a('s_cselect_b32 s33, s29, s33')
    a('s_lshl_b32 s34, s16, 2'); a('s_lshr_b32 s29, s17, 4'); a('s_add_u32 s34, s34, s29'); a('s_lshl_b32 s34, s34, 1')
    a('s_and_b32 s29, s17, 1'); a('s_add_u32 s34, s34, s29')
    a('s_lshr_b32 s29, s24, 1'); a('s_lshl_b32 s29, s29, 2'); a('s_add_u32 s35, s29, s12'); a('s_lshl_b32 s35, s35, 1')
    a('s_lshr_b32 s36, s25, 1'); a('s_add_u32 s36, s36, s29'); a('s_lshl_b32 s36, s36, 1')
    a('s_lshl_b32 s37, s25, 2'); a('s_add_u32 s37, s37, s12'); a('s_lshl_b32 s37, s37, 3'); a('s_lshr_b32 s29, s24, 3'); a('s_add_u32 s37, s37, s29')
    a('s_lshl_b32 s38, s18, 3'); a('s_add_u32 s38, s38, s12')
    a(f'v_and_b32 v{T0}, 31, v{LN}'); a(f'v_lshlrev_b32 v{T0}, 10, v{T0}')
    a(f'v_lshrrev_b32 v{T1}, 5, v{LN}'); a(f'v_lshl_add_u32 v{T0}, v{T1}, 4, v{T0}')
    a('s_lshl_b32 s53, s20, 15'); a('s_lshl_b32 s54, s22, 6'); a('s_add_u32 s53, s53, s54')
    a(f'buffer_load_dwordx4 {v(RES,4)}, v{T0}, s[8:11], s53 offen')
    a(f'buffer_load_dwordx4 {v(RES+4,4)}, v{T0}, s[8:11], s53 offen offset:32')
    a('s_mov_b32 s41, s96'); a('s_mov_b32 s97, 2')
    a('s_waitcnt lgkmcnt(0)')
    srd(a, 8, 88, 2*L.MB)

    def st(name):
        if not STAMP: return
        if name not in STAMPS: STAMPS.append(name)
        i = STAMPS.index(name)
        assert i < 31
        a('s_memtime s[98:99]'); a('s_memrealtime s[100:101]'); a('s_waitcnt lgkmcnt(0)')
        a(f'v_writelane_b32 v0, s98, {2*i+2}')
        a(f'v_writelane_b32 v0, s100, {2*i+3}')

    def run_groups(gs):
        for g in gs:
            for t in g: a(t)

    def wtile_dma(qkv):
        ftstride = (16 if qkv else 1) * FT
        pre = [f's_mul_i32 s60, s16, {(1 if qkv else 3) * FT}',
               f's_add_u32 s60, s60, {L.WQKVF if qkv else L.W1F}',
               's_lshl_b32 s64, s12, 12',
               's_add_u32 s61, s60, s64',
               's_min_u32 s65, s12, 2',
               f's_mul_i32 s66, s65, {ftstride}',
               's_add_u32 s66, s66, s60',
               f's_add_u32 s66, s66, {32*1024}',
               f's_mul_i32 s65, s65, {FT}']
        groups = [pre]
        for half in range(2):
            for j in range(3):
                g = [f's_add_u32 m0, s64, {j*FT + half*16384}',
                     f's_add_u32 s62, s61, {j*ftstride + half*16384}']
                g += [f'buffer_load_dwordx4 v{L16}, s[4:7], s62 offen offset:{1024*q} sc1 lds' for q in range(4)]
                groups.append(g)
        groups.append([f's_add_u32 m0, s65, {32*1024}', 's_nop 0', f'buffer_load_dwordx4 v{L16}, s[4:7], s66 offen sc1 lds'])
        return groups

    def wq_third(region, nw):
        ftg = (1, 2, 0)[region]
        per = 32 // nw
        groups = [[f's_mul_i32 s60, s16, {FT}', 's_and_b32 s64, s12, 1', f's_mul_i32 s64, s64, {per*1024}', 's_add_u32 s61, s60, s64',
                   f's_add_u32 s61, s61, {L.WQKVF + 16*ftg*FT}', f's_add_u32 s60, s60, {L.WQKVF + 16*ftg*FT + 32*1024}']]
        for c in range(per // 4):
            g = [f's_add_u32 m0, s64, {region*FT + c*4096}', f's_add_u32 s62, s61, {c*4096}']
            g += [f'buffer_load_dwordx4 v{L16}, s[4:7], s62 offen offset:{1024*q} sc1 lds' for q in range(4)]
            groups.append(g)
        groups.append([f's_mov_b32 m0, {region*FT + 32*1024}', 's_nop 0', f'buffer_load_dwordx4 v{L16}, s[4:7], s60 offen sc1 lds'])
        return groups

    def poll_setup(ph, idxs, add=0, prev_layer=False, out=None):
        e = out.append if out is not None else a
        o = (CB[ph] + add)*CST - (LST if prev_layer else 0)
        e(f's_add_u32 s50, s28, {o & 0xffffffff}')
        e(f's_mul_i32 s52, s{idxs[0]}, {CST}')
        e(f'v_mov_b32 v{T0}, s52')
        if len(idxs) > 1:
            e(f's_mul_i32 s52, s{idxs[1]}, {CST}')
            e(f'v_writelane_b32 v{T0}, s52, 1')
    DIR = OPT.get('dir', 'wfq')
    def poll_load(n, d=0):
        a(f's_mov_b64 exec, {(1 << n) - 1}')
        a(f'buffer_load_dword v{T1}, v{T0}, s[4:7], s50 offen offset:{0 if d else FOFF} sc1')
        a('s_mov_b64 exec, -1')
    def poll_test(n, go, d=0):
        a(f's_mov_b64 exec, {(1 << n) - 1}')
        a(f'v_cmp_gt_u32 vcc, {d if d else 1}, v{T1}')
        a('s_mov_b64 exec, -1')
        a('s_cmp_eq_u64 vcc, 0')
        a(f's_cbranch_scc1 {go}')
    def poll_spin(n, go, hook=None, d=0):
        lp = a.lab('poll')
        a('s_mov_b32 s51, 0')
        a.label(lp)
        poll_load(n, d)
        a('s_add_u32 s51, s51, 1')
        a('s_waitcnt vmcnt(0)')
        if hook: hook()
        poll_test(n, go, d)
        a(f's_cmp_lt_u32 s51, {SPIN}')
        a(f's_cbranch_scc1 {lp}')
        a.label(go)
    def dd(tag, ph): return TARGET[ph] if tag in DIR else 0
    def poll(ph, idxs, add=0, prev_layer=False, d=0):
        poll_setup(ph, idxs, add, prev_layer)
        poll_spin(len(idxs), a.lab('go'), d=d)
    def sig_addr(ph, idx, add=0, out=None, la=2):
        e = out.append if out is not None else a
        e(f's_mul_i32 s42, s{idx}, {CST}')
        e('s_add_u32 s42, s42, s28')
        e(f's_add_u32 s42, s42, {(CB[ph] + add)*CST}')
        e(f's_mov_b32 s69, {TARGET[ph]-1}')
        e(f's_mov_b32 s97, {la}')
    def sig_atomic():
        a('s_mov_b64 exec, 1')
        a('v_mov_b32 v0, 1')
        a(f'buffer_atomic_add v0, v{L4}, s[4:7], s42 offen sc0 sc1')
        a('s_mov_b64 exec, -1')
    def sig_finish(ph=None):
        sk = a.lab('notlast')
        a('v_readfirstlane_b32 s52, v0')
        a('s_cmp_lg_u32 s52, s69')
        a(f's_cbranch_scc1 {sk}')
        a('s_mov_b64 exec, 1')
        a('v_mov_b32 v0, 1')
        a(f'buffer_store_dword v0, v{L4}, s[4:7], s42 offen offset:{FOFF} sc1')
        a('s_mov_b64 exec, -1')
        a.label(sk)
    def signal(ph, idx, add=0):
        sig_addr(ph, idx, add)
        a('s_waitcnt vmcnt(0)')
        sig_atomic()
        a('s_waitcnt vmcnt(0)')
        sig_finish(ph)

    def gemmA_pre(qkv):
        xi0 = 0 if qkv else 1
        stsz = L.ST[1] - L.ST[0]
        a('s_lshl_b32 s47, s17, 15'); a('s_lshl_b32 s29, s27, 1'); a('s_add_u32 s47, s47, s29'); a(f's_add_u32 s47, s47, {L.X[xi0]}')
        a('s_lshl_b32 s48, s17, 12'); a(f's_mul_i32 s29, s26, {2*stsz}'); a('s_add_u32 s48, s48, s29'); a(f's_add_u32 s48, s48, {L.ST[xi0]}')
        a('s_lshl_b32 s55, s12, 10'); a(f's_add_u32 s55, s55, {SCR + 1024}')
        a(f'v_add_u32 v64, s55, v{L16}')
        a(f'v_add_u32 v65, s55, v{L4}')
        a(f'v_add_u32 v70, {FT}, v{L16}')
        a(f'v_add_u32 v71, {2*FT}, v{L16}')
        if qkv:
            a('s_lshl_b32 s56, s16, 17'); a('s_lshl_b32 s57, s17, 10'); a('s_add_u32 s56, s56, s57'); a('s_add_u32 s56, s56, s27')
            a('s_add_u32 s57, s56, 0x10000')
            a(f's_add_u32 s58, s56, {L.K[0]}'); a(f's_add_u32 s59, s57, {L.K[0]}')
            a(f's_add_u32 s54, s56, {L.V[0]}')
            a('s_lshl_b32 s55, s12, 8'); a(f's_add_u32 s55, s55, {SCR}')
            a(f'v_add_u32 v76, s55, v{L4}')
            a(f'v_lshrrev_b32 v77, 5, v{LN}'); a('v_lshlrev_b32 v77, 4, v77'); a('v_add_u32 v77, s55, v77')
            a(f'v_bfe_u32 v78, v{LN}, 4, 1'); a('v_lshlrev_b32 v78, 16, v78')
            a(f'v_lshrrev_b32 v79, 5, v{LN}'); a('v_lshl_add_u32 v78, v79, 8, v78')
            a(f'v_and_b32 v79, 15, v{LN}'); a('v_lshl_add_u32 v78, v79, 4, v78')
        else:
            actsz = L.ACT[1] - L.ACT[0]
            a('s_mul_i32 s56, s17, 86'); a('s_mul_i32 s57, s16, 6'); a('s_add_u32 s56, s56, s57')
            a('s_lshl_b32 s56, s56, 10'); a(f's_mul_i32 s57, s26, {actsz}'); a('s_add_u32 s56, s56, s57')
            a(f's_add_u32 s56, s56, {L.ACT[0]}'); a('s_add_u32 s57, s56, 4096')
            a('s_cmp_eq_u32 s16, 14')
            a(f's_cselect_b32 s29, {64*L.MB}, 0')
            a('s_add_u32 s58, s56, s29'); a('s_add_u32 s57, s57, s29')
            a(f'v_mov_b32 v67, {CNTL}'); a('v_mov_b32 v79, 1')

    def gemmA(qkv, first_sync=None):
        tag = 'qkv' if qkv else 'ffn1'
        RS, RQ = 68, 69
        WA = [71, L16, 70] if qkv else [L16, 70, 71]
        XE = 72
        STV = 16
        WS = [32 + 4*i for i in range(8)]
        ACC = [80 + 16*i for i in range(3)]
        XF = 128
        fa, fb, fc = (1, 2, 0) if qkv else (0, 1, 2)
        nvm = [0]; at = {}
        def xload(i):
            a(f'buffer_load_dwordx4 {v(XF+4*i,4)}, v{L16}, s[4:7], s47 offen offset:{1024*(i%4)} sc1'); nvm[0] += 1
            if i % 4 == 3: a('s_add_u32 s47, s47, 4096')
            at[i] = nvm[0]
        PRE = int(OPT['apre'])
        for i in range(6): xload(i)
        for i in range(4):
            a(f'buffer_load_dwordx4 {v(STV+4*i,4)}, v{L16}, s[4:7], s48 offen offset:{1024*i} sc1'); nvm[0] += 1
        for i in range(6, PRE): xload(i)
        if first_sync: first_sync(nvm[0])
        sv = []
        for stp in (8, 4):
            for i in range(stp): sv.append(f'v_add_f32 v{STV+i}, v{STV+i}, v{STV+i+stp}')
        sv.append(f'ds_write_b128 v64, {v(STV,4)}')
        sv.append(f'ds_read2_b32 {v(STV+4,2)}, v65 offset0:0 offset1:64')
        sv.append(f'ds_read2_b32 {v(STV+6,2)}, v65 offset0:128 offset1:192')
        sv.append('WAITDS')
        sv.append(f'v_add_f32 v{STV+4}, v{STV+4}, v{STV+5}')
        sv.append(f'v_add_f32 v{STV+6}, v{STV+6}, v{STV+7}')
        sv.append(f'v_add_f32 v{STV}, v{STV+4}, v{STV+6}')
        sv.append(f'v_mov_b32 v{STV+1}, v{STV}')
        sv.append(f'v_permlane32_swap_b32 v{STV}, v{STV+1}')
        sv.append(f'v_mul_f32 v{STV}, {f32(-1.0/512)}, v{STV}')
        sv.append(f'v_mul_f32 v{STV+1}, {f32(1.0/512)}, v{STV+1}')
        sv.append(f'v_fma_f32 v{STV+1}, -v{STV}, v{STV}, v{STV+1}')
        sv.append(f'v_max_f32 v{STV+1}, 0, v{STV+1}')
        sv.append(f'v_add_f32 v{STV+1}, {f32(1e-5)}, v{STV+1}')
        sv.append(f'v_rsq_f32 v{RS}, v{STV+1}')
        sv.append(f'v_mul_f32 v{STV+1}, v{STV+1}, v{RS}')
        r = sv.append
        MH, MM, ML, SH, SM, SL, TT = STV+2, STV+3, STV+4, STV+5, STV+6, STV+7, STV+8
        split3(r, STV, MH, MM, ML, TT); split3(r, STV+1, SH, SM, SL, TT)
        pack_hi(r, XE, MH, MM); pack_hi(r, XE+1, ML, SH); pack_hi(r, XE+2, SM, SL)
        pack_hi(r, XE+3, MH, MH)
        sv.append(f'v_mul_f32 v{RQ}, {f32(L.QSCALE if qkv else 1.4426950408889634)}, v{RS}')
        if not qkv: sv.append(f'v_mul_f32 v66, -2.0, v{RS}')
        if qkv:
            sv.append(f'ds_write_b32 v76, v{RS}')
            for j in range(4): sv.append(f'ds_read_b128 {v(STV+4*j,4)}, v77 offset:{32*j}')
        def epi(f, pk, gs=(0, 1)):
            A = ACC[f]; out = []
            def mul(d, s0, s1b, n, bcast):
                if pk:
                    for r_ in range(0, n, 2):
                        if bcast:
                            base = s1b & ~1; o = s1b & 1
                            out.append(f'v_pk_mul_f32 {v(d+r_,2)}, {v(s0+r_,2)}, {v(base,2)} op_sel:[0,{o}] op_sel_hi:[1,{o}]')
                        else:
                            out.append(f'v_pk_mul_f32 {v(d+r_,2)}, {v(s0+r_,2)}, {v(s1b+r_,2)}')
                else:
                    for r_ in range(n): out.append(f'v_mul_f32 v{d+r_}, v{s1b if bcast else s1b+r_}, v{s0+r_}')
            for g in gs:
                B = A + 8*g
                if qkv:
                    if f < 2: mul(B, B, RQ if f == 0 else RS, 8, True)
                    else: mul(B, B, STV + 8*g, 8, False)
                else:
                    U = STV
                    mul(U, B, RQ, 8, True)
                    for r_ in range(8): out.append(f'v_exp_f32 v{U+r_}, v{U+r_}')
                    if pk:
                        for r_ in range(0, 8, 2): out.append(f'v_pk_add_f32 {v(U+8+r_,2)}, {v(U+r_,2)}, 2.0 op_sel_hi:[1,0]')
                        for r_ in range(0, 8, 2): out.append(f'v_pk_fma_f32 {v(U+r_,2)}, {v(U+r_,2)}, {v(U+8+r_,2)}, 2.0 op_sel_hi:[1,1,0]')
                    else:
                        for r_ in range(8): out.append(f'v_add_f32 v{U+8+r_}, 2.0, v{U+r_}')
                        for r_ in range(8): out.append(f'v_fma_f32 v{U+r_}, v{U+r_}, v{U+8+r_}, 2.0')
                    for r_ in range(8): out.append(f'v_rcp_f32 v{U+r_}, v{U+r_}')
                    if pk:
                        for r_ in range(0, 8, 2): out.append(f'v_pk_fma_f32 {v(U+r_,2)}, {v(U+r_,2)}, {v(66,2)}, {v(RS,2)} op_sel_hi:[1,0,0]')
                    else:
                        for r_ in range(8): out.append(f'v_fma_f32 v{U+r_}, v{U+r_}, v66, v{RS}')
                    mul(B, B, U, 8, False)
                for r_ in range(4): out.append(f'v_cvt_pk_bf16_f32 v{B+r_}, v{B+2*r_}, v{B+2*r_+1}')
                if qkv:
                    if f < 2: out.append(f'buffer_store_dwordx4 {v(B,4)}, v{L16}, s[4:7], s{56+2*f+g} offen sc1')
                    else: out.append(f'buffer_store_dwordx4 {v(B,4)}, v78, s[4:7], s54 offen offset:{512*g} sc1')
                else:
                    k = 2*f + g
                    sreg = 56 if k < 2 else (58 if k < 4 else 57)
                    out.append(f'buffer_store_dwordx4 {v(B,4)}, v{L16}, s[4:7], s{sreg} offen offset:{1024*(k%4)} sc1')
            return out
        def cost(t):
            return 8 if t.startswith(TRANS) else (16 if t.startswith('buffer') else 4)
        NB = int(OPT['nb'])
        order = []; nb = 0
        for s_ in range(33):
            order.append((fa, s_))
            while nb < NB and nb + 1 <= (s_ + 1) * NB / 33.0:
                order.append((fb, nb)); nb += 1
        order += [(fb, k) for k in range(nb, 33)] + [(fc, k) for k in range(33)]
        last = {f: max(i for i, o in enumerate(order) if o[0] == f) for f in range(3)}
        nds = [0]; dsat = {}
        def rd(i):
            f, k = order[i]
            if qkv and f == fc and k == 0 and int(OPT.get('fuse', 1)):
                lp = a.lab('qspin'); ok = a.lab('qok')
                a(f'v_mov_b32 v66, {CNTL}'); a('s_mov_b32 s51, 0')
                a.label(lp)
                a('ds_read_b32 v67, v66 offset:8')
                a('s_add_u32 s51, s51, 1')
                a('s_waitcnt lgkmcnt(0)')
                a('v_readfirstlane_b32 s52, v67')
                a('s_cmp_ge_u32 s52, 2'); a(f's_cbranch_scc1 {ok}')
                a(f's_cmp_lt_u32 s51, {8*SPIN}'); a(f's_cbranch_scc1 {lp}')
                a.label(ok)
            a(f'ds_read_b128 {v(WS[i%8],4)}, v{WA[f]} offset:{k*1024}'); nds[0] += 1; dsat[i] = nds[0]
        AH = 6
        for i in range(AH): rd(i)
        nx = PRE; xw = -1
        q = list(sv); ready = {}; units = []
        N = len(order)
        for i, (f, k) in enumerate(order):
            w = f'lgkmcnt({min(15, nds[0] - dsat[i])})'
            if k < 32 and k > xw:
                w = f'vmcnt({nvm[0] - at[k]}) ' + w; xw = k
            if k == 32: assert not any(t in q for t in sv), 'stats not finished'
            if i > last[fa] + 1 and (i - last[fa]) % 2 == 0: pass
            elif i > last[fa] and i + 1 < N: a(f's_waitcnt lgkmcnt({min(15, nds[0] - dsat[i+1])})')
            else: a(f's_waitcnt {w}')
            xf = v(XF + 4*k, 4) if k < 32 else v(XE, 4)
            wf = v(WS[i % 8], 4)
            cc = '0' if k == 0 else v(ACC[f], 16)
            if qkv and f == 2: a(f'{MFMA} {v(ACC[f],16)}, {xf}, {wf}, {cc}')
            else: a(f'{MFMA} {v(ACC[f],16)}, {wf}, {xf}, {cc}')
            if i + AH < N: rd(i + AH)
            if not qkv and i in (last[fa], last[fb]):
                a('s_mov_b64 exec, 1')
                a(f'ds_add_u32 v67, v79 offset:{0 if i == last[fa] else 4}'); nds[0] += 1
                a('s_mov_b64 exec, -1')
            budget = 16
            if f == fa and nx < 32:
                xload(nx); nx += 1; budget = 8
            CAP = int(OPT.get('cap', 24))
            for ff in (fa, fb):
                if i == last[ff] + 3: units.extend([(ff, 0), (ff, 1)])
            if not q and units and (CAP == 0 or sum(map(cost, epi(units[0][0], False, (0,)))) <= 1.5*CAP*(N - i)):
                u_ = units.pop(0); q += epi(u_[0], False, (u_[1],))
            if xw >= 6:
                if i > last[fa]:
                    if CAP: budget = CAP
                    else:
                        rem = sum(map(cost, q)) + (len(units) + (2 if i < last[fb] + 3 else 0)) * sum(map(cost, epi(fb, False, (0,))))
                        budget = max(16, -(-rem // max(1, N - i)))
                while q and budget >= min(cost(q[0]), 8):
                    if q[0] == 'WAITDS':
                        if 'mark' not in ready: ready['mark'] = nds[0]
                        if dsat[i] < ready['mark']: break
                        q.pop(0); continue
                    t = q.pop(0); budget -= cost(t); a(t)
                    if t.startswith('buffer'): nvm[0] += 1
                    if t.startswith('ds_'): nds[0] += 1
        for t in q: a(t)
        st(tag + ' loop')
        for u_ in units:
            for t in epi(u_[0], True, (u_[1],)): a(t)
        for t in epi(fc, True): a(t)

    WOA = 0; W2A = 64
    NW2PRE = 18
    def wB_loads(wo, steps):
        KS = 32 if wo else W2KS
        base = WOA if wo else W2A
        first = steps[0]
        pre = []
        for i, ft in enumerate((22, 23)):
            pre.append(f's_mul_i32 s{67+i}, s{ft}, {KS}')
            if wo:
                pre.append('s_lshl_b32 s29, s12, 3'); pre.append(f's_add_u32 s{67+i}, s{67+i}, s29')
            else:
                pre.append(f's_add_u32 s{67+i}, s{67+i}, s33')
            pre.append(f's_lshl_b32 s{67+i}, s{67+i}, 10')
            pre.append(f's_add_u32 s{67+i}, s{67+i}, {(L.WOF if wo else L.W2F) + first*1024}')
        groups = [pre]
        for n0 in range(0, len(steps), 4):
            for i in range(2):
                g = [f'buffer_load_dwordx4 {areg(base + 8*stp + 4*i)}, v{L16}, s[4:7], s{67+i} offen offset:{1024*q} sc1' for q, stp in enumerate(steps[n0:n0+4])]
                g.append(f's_add_u32 s{67+i}, s{67+i}, 4096')
                groups.append(g)
        return groups

    BACC = [[16 + 16*(2*i+j) for j in range(2)] for i in range(2)]
    BAD = 240
    def gemmB_pre(wo):
        KS = 32 if wo else 86
        actsz = L.ACT[1] - L.ACT[0]
        a(f's_mul_i32 s56, s21, {KS}')
        if wo:
            a('s_lshl_b32 s29, s12, 3'); a('s_add_u32 s56, s56, s29')
        else:
            a('s_add_u32 s56, s56, s33')
        a('s_lshl_b32 s56, s56, 10')
        if wo:
            a('s_add_u32 s56, s56, s27'); a(f's_add_u32 s56, s56, {L.O[0]}')
        else:
            a(f's_mul_i32 s29, s26, {actsz}'); a('s_add_u32 s56, s56, s29'); a(f's_add_u32 s56, s56, {L.ACT[0]}')
        a(f's_add_u32 s57, s56, {KS*1024}')
        xo = 1 if wo else 2
        stsz = L.ST[1] - L.ST[0]
        a('s_lshl_b32 s58, s27, 1'); a('s_add_u32 s58, s58, s32'); a(f's_add_u32 s58, s58, {L.X[xo]}')
        a('s_lshl_b32 s59, s20, 12'); a('s_lshl_b32 s54, s22, 8'); a('s_add_u32 s59, s59, s54')
        a(f's_mul_i32 s54, s26, {2*stsz}'); a('s_add_u32 s59, s59, s54'); a(f's_add_u32 s59, s59, {L.ST[xo]}')
        for i in range(2):
            for j in range(2):
                a('s_and_b32 s54, s12, 1')
                if j: a('s_xor_b32 s54, s54, 1')
                a(f's_add_u32 s54, s54, {2*i}')
                a('s_xor_b32 s55, s54, s12')
                a('s_mul_i32 s54, s54, 3'); a('s_add_u32 s54, s54, s55'); a('s_lshl_b32 s54, s54, 12')
                a(f's_add_u32 s54, s54, {RED - 4096}')
                a(f'v_add_u32 v{BAD+2*i+j}, s54, v{L16}')
        a(f's_mul_i32 s55, s12, {3*4096}'); a(f's_add_u32 s55, s55, {RED}')
        a(f'v_add_u32 v{BAD+4}, s55, v{L16}')
        if not wo:
            a(f'v_and_b32 v{BAD+5}, 31, v{LN}'); a(f'v_lshlrev_b32 v{BAD+5}, 10, v{BAD+5}')
            a(f'v_lshrrev_b32 v{BAD+6}, 5, v{LN}'); a(f'v_lshl_add_u32 v{BAD+5}, v{BAD+6}, 4, v{BAD+5}')
            a('s_lshl_b32 s53, s20, 15'); a('s_lshl_b32 s54, s22, 6'); a('s_add_u32 s53, s53, s54')

    def sig_try(state, wait=None):
        e = a.lab('sge')
        a(f's_cmp_lg_u32 s41, {state}')
        a(f's_cbranch_scc1 {e}')
        if wait is not None: a(f's_waitcnt vmcnt({wait})')
        if state == 1:
            sig_atomic(); a('s_mov_b32 s41, s97')
        else:
            sig_finish(); a('s_mov_b32 s41, 0')
        a.label(e)
    def sig_slot(wait):
        d = a.lab('sgd'); e = a.lab('sge')
        a('s_cmp_lg_u32 s41, 1')
        a(f's_cbranch_scc1 {d}')
        a(f's_waitcnt vmcnt({wait})')
        sig_atomic(); a('s_mov_b32 s41, s97')
        a(f's_branch {e}')
        a.label(d)
        a('s_mov_b64 exec, 2')
        a(f'buffer_load_dword v0, v{L4}, s[4:7], 0 offen')
        a('s_mov_b64 exec, -1')
        a.label(e)
    def sig_step():
        sig_try(2); sig_try(1)
    def sig_block():
        sig_try(1, 0); sig_try(2, 0)

    def gemmB(wo, tail=()):
        tag = 'wo' if wo else 'ffn2'
        nst = 8 if wo else 22
        wbase = WOA if wo else W2A
        FB = 80
        NSL = 24
        RB = 176
        WIN = min(int(OPT['bwin']), nst)
        LAG = 3
        st(tag + 'A go')
        class St: pass
        z = St(); z.nvm = 0; z.at = {}; z.issued = 0; z.tail = list(tail)
        def xr(n): return FB + 4*(n % NSL)
        def load(z):
            n = z.issued; i, k = divmod(n, nst)
            a(f'buffer_load_dwordx4 {v(xr(n),4)}, v{L16}, s[4:7], s{56+i} offen offset:{1024*(k%4)} sc1'); z.nvm += 1
            if k % 4 == 3: a(f's_add_u32 s{56+i}, s{56+i}, 4096')
            z.at[n] = z.nvm; z.issued += 1
        def mm(i, j, k):
            cc = '0' if k == 0 else v(BACC[i][j],16)
            a(f'{MFMA} {v(BACC[i][j],16)}, {areg(wbase+8*k+4*j)}, {v(xr(i*nst+k),4)}, {cc}')
        def zero0(n):
            if wo: return
            sk = a.lab('ffn2_s0')
            a('s_cmp_lt_u32 s12, 2')
            a(f's_cbranch_scc1 {sk}')
            for r_ in range(4): a(f'v_mov_b32 v{xr(n)+r_}, 0')
            a.label(sk)
        def wr(i, j): return [f'ds_write_b128 v{BAD+2*i+j}, {v(BACC[i][j]+4*q,4)} offset:{q*1024}' for q in range(4)]
        def epilogue(i, pk):
            A0 = BACC[i][0]; o = []
            for k in range(3):
                for q in range(4): o.append(f'ds_read_b128 {v(RB+16*k+4*q,4)}, v{BAD+4} offset:{k*4096 + q*1024}')
            U = RB + 48
            for r_ in range(8):
                o.append(f'v_lshlrev_b32 v{U+2*r_}, 16, v{RES+r_}')
                o.append(f'v_and_b32 v{U+2*r_+1}, 0xffff0000, v{RES+r_}')
            def addv(src):
                if pk:
                    for r_ in range(0, 16, 2): o.append(f'v_pk_add_f32 {v(A0+r_,2)}, {v(A0+r_,2)}, {v(src+r_,2)}')
                else:
                    for r_ in range(16): o.append(f'v_add_f32 v{A0+r_}, v{A0+r_}, v{src+r_}')
            addv(U)
            for k in range(3):
                o.append(f's_waitcnt lgkmcnt({8-4*k})')
                addv(RB + 16*k)
            for r_ in range(8): o.append(f'v_cvt_pk_bf16_f32 v{RES+r_}, v{A0+2*r_}, v{A0+2*r_+1}')
            o.append('STORE')
            if pk:
                o.append(f'v_pk_add_f32 {v(RB,2)}, {v(A0,2)}, {v(A0+2,2)}')
                o.append(f'v_pk_mul_f32 {v(RB+2,2)}, {v(A0,2)}, {v(A0,2)}')
                o.append(f'v_pk_fma_f32 {v(RB+2,2)}, {v(A0+2,2)}, {v(A0+2,2)}, {v(RB+2,2)}')
                for r_ in range(4, 16, 2):
                    o.append(f'v_pk_add_f32 {v(RB,2)}, {v(RB,2)}, {v(A0+r_,2)}')
                    o.append(f'v_pk_fma_f32 {v(RB+2,2)}, {v(A0+r_,2)}, {v(A0+r_,2)}, {v(RB+2,2)}')
                o.append(f'v_add_f32 v{T2}, v{RB}, v{RB+1}')
                o.append(f'v_add_f32 v{T3}, v{RB+2}, v{RB+3}')
            else:
                o.append(f'v_add_f32 v{T2}, v{A0}, v{A0+1}')
                o.append(f'v_mul_f32 v{T3}, v{A0}, v{A0}')
                o.append(f'v_fmac_f32 v{T3}, v{A0+1}, v{A0+1}')
                for r_ in range(2, 16):
                    o.append(f'v_add_f32 v{T2}, v{T2}, v{A0+r_}')
                    o.append(f'v_fmac_f32 v{T3}, v{A0+r_}, v{A0+r_}')
            o.append(f'v_permlane32_swap_b32 v{T2}, v{T3}')
            o.append(f'v_add_f32 v{T2}, v{T2}, v{T3}')
            o.append(f'buffer_store_dword v{T2}, v{L4}, s[4:7], s59 offen sc1')
            o.append('OWED')
            return o
        def emit(t, z):
            if t == 'STORE':
                if not wo:
                    nf = a.lab('notfinal'); dn = a.lab('stored')
                    a('s_cmp_eq_u32 s26, 0')
                    a(f's_cbranch_scc1 {nf}')
                    for g in range(2):
                        a(f'v_permlane32_swap_b32 v{RES+4*g}, v{RES+4*g+2}')
                        a(f'v_permlane32_swap_b32 v{RES+4*g+1}, v{RES+4*g+3}')
                        a(f'buffer_store_dwordx4 {v(RES+4*g,4)}, v{BAD+5}, s[8:11], s53 offen offset:{32*g} {OPT.get("of", "").replace("_", " ")}')
                    a(f's_branch {z.fin}')
                    a.label(nf)
                a(f'buffer_store_dwordx4 {v(RES,4)}, v{L16}, s[4:7], s58 offen sc1')
                a(f'buffer_store_dwordx4 {v(RES+4,4)}, v{L16}, s[4:7], s58 offen offset:1024 sc1')
                z.nvm += 2
            elif t == 'OWED':
                sig_addr(2 if wo else 4, 20)
                a('s_mov_b32 s41, 1')
                z.owed = z.nvm
            else:
                a(t)
                if t.startswith('buffer'): z.nvm += 1
        def part(i, z, kat=None):
            for k in range(nst):
                n = i*nst + k
                a(f's_waitcnt vmcnt({z.nvm - z.at[n]})')
                if k == 0:
                    if i == 1 and wo: sig_step(); z.mark = z.nvm
                    zero0(n)
                mm(i, 1, k)
                if i == 0 and k == (4 if not (SLOT and (wo or SLOT == 2)) else nst - 1): sig_try(2, z.nvm - z.mark)
                W2 = int(OPT.get('bwin2', 22))
                if not wo and i == 1 and W2 >= nst and k == nst - 1: sig_try(1, 0)
                if not wo and i == 1 and W2 < nst and k == W2: sig_try(1)
                if not wo and i == 1 and W2 < nst and k == nst - 1: sig_try(2, 0)
                if z.issued < (i + 1)*nst: load(z)
                elif z.tail and (wo or k >= 10):
                    for t in z.tail.pop(0): emit(t, z)
                if k < nst - LAG: mm(i, 0, k)
            assert not z.tail, len(z.tail)
            for k in range(nst - LAG, nst): mm(i, 0, k)
        def writes(i, wt):
            sk = a.lab('b_self')
            for t in wr(i, 1): a(t)
            a('s_lshr_b32 s54, s12, 1')
            a(f's_cmp_eq_u32 s54, {i}')
            a(f's_cbranch_scc1 {sk}')
            for t in wr(i, 0): a(t)
            a.label(sk)
            a(wt)
        def owner_epi(i):
            sk = a.lab('b_notown')
            a('s_lshr_b32 s54, s12, 1')
            a(f's_cmp_lg_u32 s54, {i}')
            a(f's_cbranch_scc1 {sk}')
            y = St(); y.nvm = 0; y.fin = sk
            for t in epilogue(i, True): emit(t, y)
            a.label(sk)
        import copy
        SLOT = int(OPT.get('slot', 1))
        if SLOT and (wo or SLOT == 2):
            for _ in range(nst): load(z)
            sig_slot(nst); z.nvm += 1; z.mark = z.nvm
        else:
            for _ in range(4): load(z)
            sig_try(2, 4); sig_try(1, 4); z.mark = z.nvm
            for _ in range(WIN - 4): load(z)
        if wo:
            TA = int(OPT.get('ta', 1))
            z.tail = list(tail) if TA else []
            part(0, z)
            poll_setup(1, [38], add=4)
            writes(0, 's_waitcnt lgkmcnt(0)')
            a('s_barrier')
            owner_epi(0)
            if int(OPT.get('w1l', 0)) == 2:
                sig_try(1, 0); run_groups(wtile_dma(False))
            st(tag + 'A end')
            poll_spin(1, a.lab('go'), hook=sig_step, d=dd('w', 1))
            st(tag + 'B go')
            for _ in range(WIN): load(z)
            z.tail = [] if TA else list(tail)
            part(1, z)
            sig_try(2, z.nvm - z.mark)
        elif int(OPT.get('fuse', 1)):
            KC = nst - WIN + int(OPT.get('kc', 0))
            tl = list(z.tail)
            for k in range(nst):
                a(f's_waitcnt vmcnt({z.nvm - z.at[k]})')
                if k == 0: zero0(0)
                mm(0, 1, k)
                if k == 4: sig_try(2, z.nvm - z.mark)
                if k == KC:
                    mm(0, 0, k)
                    a('s_cmp_lg_u32 s12, 3')
                    a('s_cbranch_scc1 f2_nopoll')
                    poll(3, [21], add=1, d=dd('f', 3))
                    a.label('f2_nopoll')
                    a('s_barrier')
                    st(tag + 'B go')
                    for _ in range(KC - (nst - WIN) + 1): load(z)
                    continue
                if z.issued < nst or k > KC: load(z)
                mm(0, 0, k)
            own = a.lab('f2_own'); jn = a.lab('f2_join')
            a('s_cmp_lt_u32 s12, 2')
            a(f's_cbranch_scc1 {own}')
            for variant in (1, 0):
                y = copy.deepcopy(z); y.fin = a.lab('f2_fin')
                if variant == 0: a.label(own)
                q = ['NOP', 'NOP'] + wr(0, 1) + (wr(0, 0) if variant == 1 else ['NOP']*4) + ['NOP', 'NOP', 's_waitcnt lgkmcnt(0)', 's_barrier']
                nsync = len(q)
                if variant == 0: q += epilogue(0, False)
                done_ = 0
                for k in range(nst):
                    n = nst + k
                    a(f's_waitcnt vmcnt({y.nvm - y.at[n]})')
                    if k == 0: zero0(n)
                    for j in (1, 0):
                        if j == 0 and k >= nst - LAG: continue
                        mm(1, j, k)
                        if j == 1 and y.issued < 2*nst: load(y)
                        for _ in range(2 if done_ < nsync else 6):
                            if not q: break
                            t = q.pop(0); done_ += 1
                            if t == 'NOP': continue
                            if t == 'STORE':
                                nf = a.lab('notfinal'); dn = a.lab('stored')
                                a('s_cmp_eq_u32 s26, 0'); a(f's_cbranch_scc1 {nf}')
                                for g in range(2):
                                    a(f'v_permlane32_swap_b32 v{RES+4*g}, v{RES+4*g+2}')
                                    a(f'v_permlane32_swap_b32 v{RES+4*g+1}, v{RES+4*g+3}')
                                    a(f'buffer_store_dwordx4 {v(RES+4*g,4)}, v{BAD+5}, s[8:11], s53 offen offset:{32*g}')
                                a(f's_branch {dn}')
                                a.label(nf)
                                a(f'buffer_store_dwordx4 {v(RES,4)}, v{L16}, s[4:7], s58 offen sc1')
                                a(f'buffer_store_dwordx4 {v(RES+4,4)}, v{L16}, s[4:7], s58 offen offset:1024 sc1')
                                a.label(dn)
                                y.nvm += 2
                            else: emit(t, y)
                assert not q, len(q)
                for k in range(nst - LAG, nst): mm(1, 0, k)
                if variant == 1:
                    a(f's_branch {jn}')
                else:
                    a('s_cmp_eq_u32 s26, 1'); a('s_cselect_b32 s41, 0, s41')
                    sig_try(1, 0)
            a.label(jn)
            FUSED = True
        else:
            nod = a.lab('f2_nodma'); jn = a.lab('f2_join')
            a('s_lshl_b32 s54, s26, 2'); a('s_add_u32 s54, s54, s12')
            a('s_cmp_ge_u32 s54, 2')
            a(f's_cbranch_scc1 {nod}')
            y = copy.deepcopy(z)
            part(0, y)
            a(f's_branch {jn}')
            a.label(nod)
            z.tail = []
            part(0, z)
            a.label(jn)
            writes(0, 's_waitcnt lgkmcnt(0)')
            a('s_cmp_lg_u32 s12, 3')
            a('s_cbranch_scc1 f2_nopoll')
            poll(3, [21], add=1, d=dd('f', 3))
            a.label('f2_nopoll')
            st(tag + 'A end')
            a('s_barrier')
            st(tag + 'B go')
            for _ in range(int(OPT.get('bwin2', 22))): load(z)
            owner_epi(0)
            part(1, z)
        if int(OPT.get('lk', 0)):
            writes(1, 's_nop 0')
            poll_setup(2 if wo else 4, [17])
            poll_load(1)
            a('s_waitcnt lgkmcnt(0)')
        else:
            poll_setup(2 if wo else 4, [17])
            poll_load(1)
            writes(1, 's_waitcnt lgkmcnt(0)')
        a('s_barrier')
        owner_epi(1)
        st(tag + 'B end')
        if not wo and int(OPT.get('fuse', 1)):
            sk_ = a.lab('f2_nc')
            sig_try(1, 0)
            a('s_lshr_b32 s54, s12, 1'); a('s_andn2_b32 s54, s54, s26'); a(f's_cbranch_scc0 {sk_}')
            run_groups(tail[:3]); sig_try(2, 8); run_groups(tail[3:])
            a('s_waitcnt vmcnt(0)')
            a(f'v_mov_b32 v{T2}, {CNTL}'); a(f'v_mov_b32 v{T3}, 1')
            a('s_mov_b64 exec, 1'); a(f'ds_add_u32 v{T2}, v{T3} offset:8'); a('s_mov_b64 exec, -1')
            a.label(sk_)
        sig_block()
        st(tag + ' sig')

    SB = [16, 32]; PB = [48, 52]; OA = [56, 72]; QF = [88, 92]; VR = 96
    TMP = 240
    def kreg(kt): return v(224 + 4*kt, 4) if kt < 4 else areg(208 + 4*(kt-4))
    def vreg(kt, g): return v(VR + 8*kt + 4*g, 4)
    VOFF, PADDR = T2, T3
    PA4 = TMP + 12
    def qaddr(p_, sreg=53):
        return [f's_add_u32 s{sreg}, s12, {1 + p_}', f's_and_b32 s{sreg}, s{sreg}, 3', f's_lshl_b32 s{sreg}, s{sreg}, 11', f's_add_u32 s{sreg}, s{sreg}, s{48 + (p_ >> 2)}']
    def attn_pre():
        a(f'v_and_b32 v{T0}, 27, v{LN}')
        a(f'v_cmp_eq_u32 vcc, 16, v{T0}')
        a(f'v_mov_b32 v{T1}, {ONES}')
        a(f'v_cndmask_b32 v{VR}, 0, v{T1}, vcc')
        a(f'v_cndmask_b32 v{VR+1}, 0, v{T1}, vcc')
        for r_ in range(2, 128, 2): a(f'v_pk_mov_b32 {v(VR+r_,2)}, {v(VR,2)}, {v(VR,2)}')
        a.label('main_attpre2')
        a(f'v_and_b32 v{T1}, 15, v{LN}'); a(f'v_lshlrev_b32 v{T1}, 4, v{T1}')
        a(f'v_lshrrev_b32 v{VOFF}, 5, v{LN}'); a(f'v_lshl_add_u32 v{VOFF}, v{VOFF}, 8, v{T1}')
        a('s_lshl_b32 s44, s24, 16'); a('s_add_u32 s44, s44, s27')
        a('s_lshl_b32 s45, s12, 14'); a('s_add_u32 s45, s45, s44')
        a(f's_add_u32 s46, s45, {L.K[0]}'); a(f's_add_u32 s47, s45, {L.V[0]}')
        a('s_lshl_b32 s48, s25, 13'); a('s_add_u32 s48, s48, s44'); a('s_add_u32 s49, s48, 1024')
        for t in qaddr(0, 53) + qaddr(1, 54): a(t)
        a('s_lshl_b32 s39, s25, 2'); a('s_add_u32 s39, s39, s12'); a('s_lshl_b32 s39, s39, 16')
        a('s_lshl_b32 s55, s24, 10'); a('s_add_u32 s39, s39, s55')
        a('s_add_u32 s39, s39, s27'); a(f's_add_u32 s39, s39, {L.O[0]}')
        a(f's_mov_b32 s56, {f32(2.0**-90)}'); a(f's_mov_b32 s57, {f32(2.0**120)}')
        a('s_mov_b32 s40, 0')

    def check_ops(Oa, U):
        return [f'v_add_f32 v{U}, abs(v{Oa}), abs(v{Oa+1})', f'v_add_f32 v{U+1}, abs(v{Oa+2}), abs(v{Oa+3})',
                f'v_add_f32 v{U+2}, abs(v{Oa+4}), abs(v{Oa+5})', f'v_add_f32 v{U+3}, abs(v{Oa+6}), abs(v{Oa+7})',
                f'v_add_f32 v{U}, v{U}, v{U+1}', f'v_add_f32 v{U+2}, v{U+2}, v{U+3}', f'v_add_f32 v{U}, v{U}, v{U+2}',
                f'v_cmp_gt_f32 s[70:71], s57, v{U}', f'v_cmp_gt_f32 s[72:73], s57, v{Oa+8}', f'v_cmp_lt_f32 s[74:75], s56, v{Oa+8}',
                's_and_b64 s[70:71], s[70:71], s[72:73]', 's_and_b64 s[70:71], s[70:71], s[74:75]', 's_cmp_eq_u64 s[70:71], -1']

    def attn(extra_groups):
        nvm = [0]
        atk, atv, atq = {}, {}, {}
        def qload(p_, sreg=53):
            a(f'buffer_load_dwordx4 {v(QF[p_%2],4)}, v{L16}, s[4:7], s{sreg} offen sc1'); nvm[0] += 1
            atq[p_] = nvm[0]
        def kvbase(kt, sreg):
            pass
        def kload(kts):
            for kt in kts:
                a(f'buffer_load_dwordx4 {kreg(kt)}, v{L16}, s[4:7], s{76 + kt//4} offen offset:{1024*(kt%4)} sc1'); nvm[0] += 1
                atk[kt] = nvm[0]
        def vload(kts):
            a('s_mov_b64 exec, s[30:31]')
            for kt in kts:
                for g in range(2):
                    a(f'buffer_load_dwordx4 {vreg(kt,g)}, v{VOFF}, s[4:7], s{80 + kt//4} offen offset:{1024*(kt%4)+512*g} sc1'); nvm[0] += 1
                atv[kt] = nvm[0]
            a('s_mov_b64 exec, -1')
        EV = list(range(0, 16, 2)); OD = list(range(1, 16, 2))
        steps = [(0, k) for k in EV] + [(1, k) for k in EV] + [(0, k) for k in OD] + [(1, k) for k in OD]
        steps += [(p_, k) for p_ in range(2, 8) for k in range(16)]
        N = len(steps)
        firstof = {}; lastof = {}
        for n, (p_, k) in enumerate(steps):
            firstof.setdefault(p_, n); lastof[p_] = n
        qload(0)
        kload([0, 2]); vload([0])
        sig_try(1, nvm[0]); mark0 = nvm[0]
        kload([4]); vload([2]); kload([6]); vload([4])
        waited = [0]
        def need_vm(at):
            if at > waited[0]:
                a(f's_waitcnt vmcnt({nvm[0] - at})'); waited[0] = at
        need_vm(atk[0])
        a(f'{MFMA} {v(SB[0],16)}, {kreg(0)}, {v(QF[0],4)}, 0')
        kload([8]); vload([6])
        extra = list(extra_groups)
        sal = []
        def hide():
            if sal: a(sal.pop(0))
        ev_sal, ev_a, ev_b = {}, {}, {}
        def add(d, n, f): d.setdefault(n, []).append(f)
        for p_ in range(2, 8):
            n0 = lastof[p_ - 2] + 1
            add(ev_sal, n0 - 2, qaddr(p_))
            add(ev_a, n0, lambda p_=p_: qload(p_))
        def pwrite(pp):
            Op = OA[pp % 2]
            a(f'v_add_u32 v{PADDR}, s53, v{L16}')
            a(f'v_add_u32 v{PA4}, s53, v{L4}')
            a(f'ds_write_b128 v{PADDR}, {v(Op,4)}')
            a(f'ds_write_b128 v{PADDR}, {v(Op+4,4)} offset:1024')
            a(f'ds_write_b32 v{PA4}, v{Op+8} offset:2048')
        for pp in (0, 1, 2, 4, 5, 6):
            n0 = lastof[pp] + 2
            slot = 2 - pp % 4
            add(ev_sal, n0, [f's_add_u32 s53, s12, {1 + pp}', 's_and_b32 s53, s53, 3', f's_mul_i32 s53, s53, {6*2304}',
                             f's_add_u32 s53, s53, {PART + (3*(pp >> 2) + slot)*2304}'])
            add(ev_b, n0 + 2, lambda pp=pp: pwrite(pp))
        pb = []
        poll_setup(0, [35, 36], add=1, out=pb)
        def b_issue():
            for t in pb: a(t)
            poll_load(2); nvm[0] += 1; atq['flag'] = nvm[0]
        def b_check():
            go = a.lab('bgo')
            need_vm(atq['flag'])
            poll_test(2, go)
            poll_spin(2, go)
            kload([1, 3]); vload([1])
        add(ev_a, 0, lambda: (kload([10]), vload([8])))
        add(ev_a, 1, lambda: (kload([12]), vload([10])))
        add(ev_a, 2, lambda: (sig_try(2, nvm[0] - mark0), kload([14]), vload([12])))
        add(ev_a, 3, lambda: (qload(1, 54), vload([14])))
        add(ev_a, 6, b_issue)
        add(ev_a, 11, b_check)
        for j_ in range(7):
            add(ev_a, 12 + j_, lambda j_=j_: (kload([5 + 2*j_] if j_ < 6 else []), vload([3 + 2*j_])))
        def own_addr(b):
            if b == 0:
                a(f'v_mov_b32 v{TMP}, {CNTL}'); a(f'v_mov_b32 v{TMP+2}, 0'); a(f'v_mov_b32 v{TMP+3}, 0')
                a(f'ds_write_b64 v{TMP}, {v(TMP+2,2)}'); a(f'ds_write_b32 v{TMP}, v{TMP+2} offset:8')
            a('s_waitcnt lgkmcnt(0)' if b == 0 else 's_waitcnt vmcnt(0) lgkmcnt(0)')
            a('s_barrier')
            a(f's_mul_i32 s53, s12, {6*2304}'); a(f's_add_u32 s53, s53, {PART + 3*b*2304}')
            a(f'v_add_u32 v{PADDR}, s53, v{L16}')
            a(f'v_add_u32 v{PA4}, s53, v{L4}')
        def pread(b_, sl):
            a(f'ds_read_b128 {v(b_,4)}, v{PADDR} offset:{sl*2304}')
            a(f'ds_read_b128 {v(b_+4,4)}, v{PADDR} offset:{sl*2304+1024}')
            a(f'ds_read_b32 v{b_+8}, v{PA4} offset:{sl*2304+2048}')
        n4 = firstof[4]
        Oa = OA[1]
        def padd():
            a('s_waitcnt lgkmcnt(0)')
            for r_ in range(9): a(f'v_add_f32 v{Oa+r_}, v{Oa+r_}, v{TMP+r_}')
        add(ev_b, n4 + 2, lambda: (own_addr(0), pread(TMP, 0)))
        add(ev_b, n4 + 3, lambda: (padd(), pread(TMP, 1)))
        add(ev_b, n4 + 4, lambda: (padd(), pread(TMP, 2)))
        def finA():
            padd()
            for t in check_ops(Oa, TMP): a(t)
            sk = a.lab('a_later')
            a(f's_cbranch_scc0 {sk}')
            a(f'v_rcp_f32 v{TMP}, v{Oa+8}')
            for r_ in range(8): a(f'v_mul_f32 v{Oa+r_}, v{TMP}, v{Oa+r_}')
            for r_ in range(4): a(f'v_cvt_pk_bf16_f32 v{TMP+4+r_}, v{Oa+2*r_}, v{Oa+2*r_+1}')
            a(f'buffer_store_dwordx4 {v(TMP+4,4)}, v{L16}, s[4:7], s39 offen sc1')
            a('s_mov_b32 s40, 1'); a('s_mov_b32 s41, 1')
            a.label(sk)
        add(ev_b, n4 + 5, finA)
        sa = []; sig_addr(1, 37, out=sa)
        add(ev_sal, n4 + 6, sa)
        def sstep():
            a('s_waitcnt vmcnt(0)'); waited[0] = nvm[0]
            sig_step()
        add(ev_b, n4 + 9, sstep)
        add(ev_b, n4 + 15, sstep)
        n7 = firstof[7]
        add(ev_b, n7 + 8, lambda: own_addr(1))
        for sl in range(3):
            add(ev_b, n7 + 9 + sl, lambda sl=sl: pread(VR + 12*sl, sl))
        def wr_issue():
            a(f's_mov_b32 s50, {WCELL}'); a(f'v_mul_u32_u24 v{T0}, {CST}, v{LN}')
            poll_load(8); nvm[0] += 1; atq['wflag'] = nvm[0]
        def wr_check():
            go = a.lab('wgo')
            need_vm(atq['wflag'])
            poll_test(8, go)
            poll_spin(8, go)
        add(ev_a, 20, wr_issue)
        add(ev_a, 26, wr_check)
        def w_issue():
            poll_setup(1, [38]); poll_load(1); nvm[0] += 1
        add(ev_a, n7 + 10, w_issue)
        GS = int(OPT['gs'])
        if GS < 4:
            ex2 = []
            for g in extra:
                cur = []; nm = 0
                for t in g:
                    if t.startswith('buffer'):
                        if nm == GS: ex2.append(cur); cur = []; nm = 0
                        nm += 1
                    cur.append(t)
                ex2.append(cur)
            extra = ex2
        slots = [n for n in range(28 if GS < 4 else 34, N - 12, 1 if GS < 4 else 2) if n not in ev_a and n not in ev_b and not (n4 - 4 <= n <= n4 + 15)]
        assert len(slots) >= len(extra), (len(slots), len(extra))
        gslot = dict(zip(slots, extra))
        for n, (p_, kt) in enumerate(steps):
            S = SB[n % 2]; O = OA[p_ % 2]
            e = [f'v_exp_f32 v{S+r}, v{S+r}' for r in range(16)]
            c = [f'v_cvt_pk_bf16_f32 v{PB[r//4]+r%4}, v{S+2*r}, v{S+2*r+1}' for r in range(8)]
            if OPT.get('fine') == 'att' and n in (0, 8, 16, 32, 48, 64, 80, 96, 112): st(f'att n{n}')
            for l_ in ev_sal.get(n, []):
                assert not sal, n
                sal += l_
            if n + 1 < N:
                p2, kt2 = steps[n + 1]
                if n < 32: need_vm(atk[kt2])
                if n + 1 == firstof[p2]: need_vm(atq[p2])
                a(f'{MFMA} {v(SB[(n+1)%2],16)}, {kreg(kt2)}, {v(QF[p2%2],4)}, 0')
                hide()
            for f in ev_a.get(n, []):
                assert not sal, n
                f()
            a(e[0]); a(e[1]); a(e[2]); a(e[3]); a(c[0]); a(c[1]); a(e[4])
            if n > 0:
                pp, pk = steps[n - 1]
                a(f'{MFMA} {v(OA[pp%2],16)}, {vreg(pk,1)}, {v(PB[1],4)}, {v(OA[pp%2],16)}')
                hide()
            if n in gslot:
                for t in gslot[n]:
                    a(t)
                    if t.startswith('buffer'): nvm[0] += 1
            a(e[5]); a(e[6]); a(e[7]); a(c[2]); a(c[3]); a(e[8]); a(e[9]); a(e[10])
            if n < 32: need_vm(atv[kt])
            a(f'{MFMA} {v(O,16)}, {vreg(kt,0)}, {v(PB[0],4)}, {"0" if n == firstof[p_] else v(O,16)}')
            hide()
            a(e[11]); a(c[4]); a(c[5]); a(e[12]); a(e[13])
            for f in ev_b.get(n, []):
                assert not sal, n
                f()
            a(e[14]); a(e[15]); a(c[6]); a(c[7])
        a(f'{MFMA} {v(OA[1],16)}, {vreg(15,1)}, {v(PB[1],4)}, {v(OA[1],16)}')
        st('att loop')
        U = SB[0]
        Oa = OA[1]
        a('s_waitcnt lgkmcnt(0)')
        a(f's_add_u32 s55, s39, {32*1024}')
        a('s_mov_b32 s43, 1')
        sig_addr(1, 37, add=4, la=0 if 'w' in DIR else 2)
        for sl in range(3):
            b = VR + 12*sl
            for r_ in range(0, 8, 2): a(f'v_pk_add_f32 {v(Oa+r_,2)}, {v(Oa+r_,2)}, {v(b+r_,2)}')
            a(f'v_add_f32 v{Oa+8}, v{Oa+8}, v{b+8}')
        for t in check_ops(Oa, U): a(t)
        a('s_cbranch_scc1 attn_fin')
        a.label('attn_slow')
        S = SB[0]; M = SB[1]; AL = M + 1; TA = M + 2; TB = M + 3
        KT = 224; V0 = 228; V1 = 232
        a('s_lshl_b32 s53, s12, 11'); a('s_lshl_b32 s54, s43, 10'); a('s_add_u32 s53, s53, s54'); a('s_add_u32 s53, s53, s48')
        a(f'buffer_load_dwordx4 {v(QF[0],4)}, v{L16}, s[4:7], s53 offen sc1')
        a(f'v_and_b32 v{TA}, 27, v{LN}')
        a(f'v_cmp_eq_u32 vcc, 16, v{TA}')
        a(f'v_mov_b32 v{TB}, {ONES}')
        a(f'v_cndmask_b32 v{TA}, 0, v{TB}, vcc')
        for r_ in range(8): a(f'v_mov_b32 v{V0+r_}, v{TA}')
        a(f'v_mov_b32 v{M}, {f32(-3.0e38)}')
        for r_ in range(16): a(f'v_mov_b32 v{Oa+r_}, 0')
        a(f's_add_u32 s46, s44, {L.K[0]}'); a(f's_add_u32 s47, s44, {L.V[0]}')
        a('s_mov_b32 s54, 64')
        a.label('attn_slow_loop')
        a(f'buffer_load_dwordx4 {v(KT,4)}, v{L16}, s[4:7], s46 offen sc1')
        a('s_mov_b64 exec, s[30:31]')
        a(f'buffer_load_dwordx4 {v(V0,4)}, v{VOFF}, s[4:7], s47 offen sc1')
        a(f'buffer_load_dwordx4 {v(V1,4)}, v{VOFF}, s[4:7], s47 offen offset:512 sc1')
        a('s_mov_b64 exec, -1')
        a('s_add_u32 s46, s46, 1024'); a('s_add_u32 s47, s47, 1024')
        a('s_waitcnt vmcnt(0)')
        a(f'{MFMA} {v(S,16)}, {v(KT,4)}, {v(QF[0],4)}, 0')
        a(f'v_max3_f32 v{TA}, v{S}, v{S+1}, v{M}')
        for r_ in range(2, 16, 2): a(f'v_max3_f32 v{TA}, v{S+r_}, v{S+r_+1}, v{TA}')
        a(f'v_mov_b32 v{TB}, v{TA}')
        a(f'v_permlane32_swap_b32 v{TA}, v{TB}')
        a(f'v_max_f32 v{TA}, v{TA}, v{TB}')
        a(f'v_sub_f32 v{AL}, v{M}, v{TA}')
        a(f'v_exp_f32 v{AL}, v{AL}')
        a(f'v_mov_b32 v{M}, v{TA}')
        for r_ in range(16):
            a(f'v_sub_f32 v{S+r_}, v{S+r_}, v{M}')
            a(f'v_exp_f32 v{S+r_}, v{S+r_}')
        for r_ in range(16): a(f'v_mul_f32 v{Oa+r_}, v{AL}, v{Oa+r_}')
        for r_ in range(8): a(f'v_cvt_pk_bf16_f32 v{PB[r_//4]+r_%4}, v{S+2*r_}, v{S+2*r_+1}')
        a(f'{MFMA} {v(Oa,16)}, {v(V0,4)}, {v(PB[0],4)}, {v(Oa,16)}')
        a(f'{MFMA} {v(Oa,16)}, {v(V1,4)}, {v(PB[1],4)}, {v(Oa,16)}')
        a('s_sub_u32 s54, s54, 1')
        a('s_cmp_lg_u32 s54, 0')
        a('s_nop 7')
        a('s_cbranch_scc1 attn_slow_loop')
        a('s_nop 7')
        a.label('attn_fin')
        a(f'v_rcp_f32 v{U}, v{Oa+8}')
        for r_ in range(0, 8, 2): a(f'v_pk_mul_f32 {v(Oa+r_,2)}, {v(Oa+r_,2)}, {v(U,2)} op_sel:[0,0] op_sel_hi:[1,0]')
        for r_ in range(4): a(f'v_cvt_pk_bf16_f32 v{TMP+8+r_}, v{Oa+2*r_}, v{Oa+2*r_+1}')
        a(f'buffer_store_dwordx4 {v(TMP+8,4)}, v{L16}, s[4:7], s55 offen sc1')
        a('s_mov_b32 s41, 1')
        a('s_cmp_eq_u32 s40, 1')
        a('s_cbranch_scc1 attn_done')
        sig_block()
        a('s_cmp_eq_u32 s43, 0')
        a('s_cbranch_scc1 attn_done')
        a('s_mov_b32 s43, 0'); a('s_mov_b32 s55, s39')
        sig_addr(1, 37)
        a('s_branch attn_slow')
        a.label('attn_done')

    def touch_wqkv():
        per = L.FT_QKV * FT // 32
        g = [f's_mul_i32 s60, s14, {per}', f's_mul_i32 s61, s12, {per//4}', 's_add_u32 s60, s60, s61', f's_add_u32 s60, s60, {L.WQKVF}',
             f'v_lshlrev_b32 v{T0}, 7, v{LN}', 's_add_u32 s61, s60, 4480',
             f'buffer_load_dword v{T1}, v{T0}, s[4:7], s60 offen sc1', f'buffer_load_dword v{T1}, v{T0}, s[4:7], s61 offen sc1']
        return [g]

    def touch_w1():
        per = 44 * FT // 32
        g = [f's_mul_i32 s60, s14, {per}', f's_mul_i32 s61, s12, {per//4}', 's_add_u32 s60, s60, s61', f's_add_u32 s60, s60, {L.W1F}',
             f'v_lshlrev_b32 v{T0}, 7, v{LN}', 's_add_u32 s61, s60, 3584',
             f'buffer_load_dword v{T1}, v{T0}, s[4:7], s60 offen sc1', f'buffer_load_dword v{T1}, v{T0}, s[4:7], s61 offen sc1']
        return [g]

    def dump():
        if not STAMP: return
        a('s_lshl_b32 s90, s2, 2'); a('s_add_u32 s90, s90, s12'); a('s_lshl_b32 s90, s90, 1'); a('s_add_u32 s90, s90, s26')
        a('s_lshl_b32 s90, s90, 8'); a(f's_add_u32 s90, s90, {L.FLAGS + 7*L.MB}')
        a(f'buffer_store_dword v0, v{L4}, s[4:7], s90 offen')
        a('s_waitcnt vmcnt(0)')
        if os.environ.get('DBG'):
            sk = a.lab('dbg')
            a('s_lshl_b32 s90, s2, 2'); a('s_add_u32 s90, s90, s12'); a('s_cmp_lg_u32 s90, 2'); a(f's_cbranch_scc1 {sk}')
            a('s_load_dwordx2 s[92:93], s[0:1], 64'); a('s_waitcnt lgkmcnt(0)')
            srd(a, 92, 92, 256)
            a(f'v_readlane_b32 s91, v0, {2*STAMPS.index("p0 prek")+3}')
            names = ['p0 sig', 'att go', 'att loop', 'woB end', 'ffn1 sig', 'end']
            for j, nm in enumerate(names):
                a(f'v_readlane_b32 s90, v0, {2*STAMPS.index(nm)+3}')
                a('s_sub_u32 s90, s90, s91')
                a(f'v_mov_b32 v{T2}, s90')
                a('s_mul_i32 s90, s26, 24'); a(f's_add_u32 s90, s90, {8 + 4*j}')
                a('s_mov_b64 exec, 1')
                a(f'buffer_store_dword v{T2}, v{L4}, s[92:95], s90 offen')
                a('s_mov_b64 exec, -1')
            a('s_waitcnt vmcnt(0)')
            a.label(sk)

    a('s_branch main_attpre2')
    a.label('main_layer')
    st('start')
    gemmA_pre(True)
    a('s_waitcnt vmcnt(0)')
    poll_test(1, 'main_q_go')
    poll_spin(1, 'main_q_go', d=dd('q', 4))
    a.label('main_qkv')
    st('qkv go')
    def first_sync(n):
        sk = a.lab('nosync')
        a('s_cmp_eq_u32 s26, 1')
        a(f's_cbranch_scc1 {sk}')
        a(f's_waitcnt vmcnt({n})')
        a('s_barrier')
        a.label(sk)
    gemmA(True, None if K1 else first_sync)
    sig_addr(0, 34)
    a('s_mov_b32 s41, 1')
    a.label('main_attpre')
    attn_pre()
    for i in range(4):
        a(f's_add_u32 s{76+i}, s46, {4096*i}'); a(f's_add_u32 s{80+i}, s47, {4096*i}')
    st('qkv sig')
    a('s_cmp_eq_u32 s26, 1')
    a('s_cbranch_scc1 main_nores')
    a('s_waitcnt vmcnt(0)')
    for g in range(2):
        a(f'v_permlane32_swap_b32 v{RES+4*g}, v{RES+4*g+2}')
        a(f'v_permlane32_swap_b32 v{RES+4*g+1}, v{RES+4*g+3}')
    a.label('main_nores')
    a('s_cmp_ge_u32 s12, 2')
    a('s_cbranch_scc1 main_att_bar')
    sig_block()
    a('s_lshr_b32 s52, s24, 1'); a(f's_mul_i32 s52, s52, {8*CST}'); a('s_add_u32 s50, s28, s52')
    a(f'v_mul_u32_u24 v{T0}, {2*CST}, v{LN}')
    poll_spin(4, a.lab('go'), d=dd('a', 0))
    a.label('main_att_bar')
    if 'a' in OPT.get('es', ''):
        a('s_cmp_eq_u32 s26, 0'); a('s_cbranch_scc1 main_noes')
        sig_try(1, 0)
        a.label('main_noes')
    a('s_barrier')
    a.label('main_att_go')
    st('att go')
    W1L = int(OPT.get('w1l', 0))
    extra = (touch_w1() if W1L else wtile_dma(False)) + wB_loads(True, list(range(8))) + wB_loads(False, list(range(NW2PRE))) + touch_wqkv()
    attn(extra)
    st('att sig')
    gemmB_pre(True)
    a('s_waitcnt vmcnt(1)')
    poll_test(1, 'main_wo_go')
    poll_spin(1, 'main_wo_go', hook=sig_step)
    if 'w' in OPT.get('es', ''): sig_try(1, 0)
    a('s_barrier')
    gemmB(True, tail=wB_loads(False, list(range(NW2PRE, 22))))
    a('s_cmp_eq_u32 s16, 15')
    a('s_cbranch_scc1 main_skip_ffn1')
    gemmA_pre(False)
    a('s_waitcnt vmcnt(0)')
    poll_test(1, 'main_f1_go')
    poll_spin(1, 'main_f1_go', d=dd('g', 2))
    st('ffn1 go')
    gemmA(False)
    sig_addr(3, 17)
    if 'f' in DIR:
        a('s_cmp_ge_u32 s12, 2'); a('s_cselect_b32 s97, 0, 2')
    a('s_mov_b32 s41, 1')
    a.label('main_skip_ffn1')
    gemmB_pre(False)
    st('ffn1 sig')
    a('s_cmp_ge_u32 s12, 2')
    a('s_cbranch_scc1 main_f2_bar')
    sig_try(1, 0)
    a('s_cmp_eq_u32 s26, 1'); a('s_cbranch_scc1 main_noq')
    a('s_cmp_eq_u32 s16, 15'); a('s_cselect_b32 s63, 0, 4')
    a(f'v_mov_b32 v{T0}, {CNTL}')
    for region in range(2):
        lp = a.lab('lspin'); ok = a.lab('lok')
        a('s_mov_b32 s51, 0')
        a.label(lp)
        a(f'ds_read_b32 v{T1}, v{T0} offset:{4*region}')
        a('s_add_u32 s51, s51, 1')
        a('s_waitcnt lgkmcnt(0)')
        a(f'v_readfirstlane_b32 s52, v{T1}')
        a('s_cmp_ge_u32 s52, s63'); a(f's_cbranch_scc1 {ok}')
        a('s_sleep 1')
        a(f's_cmp_lt_u32 s51, {8*SPIN}'); a(f's_cbranch_scc1 {lp}')
        a.label(ok)
        gs_ = wq_third(region, 2)
        if region == 0:
            run_groups(gs_[:3]); sig_try(2, 8); run_groups(gs_[3:])
        else: run_groups(gs_)
    a.label('main_noq')
    sig_try(2, 0)
    poll(3, [21])
    a.label('main_f2_bar')
    if 'f' in OPT.get('es', ''): sig_try(1, 0)
    a('s_barrier')
    gemmB(False, tail=wq_third(2, 2))
    if STAMP: a('s_waitcnt vmcnt(0)'); st('end')
    dump()
    a('s_cmp_eq_u32 s26, 1')
    a('s_cbranch_scc1 main_end')
    a('s_mov_b32 s26, 1'); a(f's_mov_b32 s27, {2*L.MB}'); a(f's_add_u32 s28, s28, {LST}')
    a('s_branch main_layer')
    a.label('main_end')
    a('s_endpgm')
    return 256, 160*1024


if __name__ == '__main__':
    p = Prog()
    cfg = gen_main(p)
    p.launches.append((KNAME, 256, *cfg))
    errs = p.a.check_branches()
    for e in errs: print('HAZARD', e, file=sys.stderr)
    txt = p.text()
    if os.environ.get('SINGLE'):
        txt = txt.replace(f'; @launch kernel={KNAME} ', '; @launch ')
    open(sys.argv[1], 'w').write(txt)
    if STAMP: open(sys.argv[1] + '.names', 'w').write('\n'.join(STAMPS))
    print('pads', p.a.pads, 'instrs', sum(1 for i in p.a.ins if i.states), file=sys.stderr)
```

```python
import sys, os
sys.path.insert(0, 'work')
from gen import *

CNT = L.FLAGS
CST = 512
FOFF = 256
FS = 256
FB_ = [0, 1024, 3072, 4096, 5120]
LST = 6144 * FS
NP = {0: 32, 1: 8, 2: 16, 3: 15, 4: 16}
def areg(a0, n=4): return f'a[{a0}:{a0+n-1}]'
FT = 33 * 1024
WT = 3 * FT
RED = WT; PART = WT; SCR = WT + 56*1024; CNTL = WT + 55*1024
OPT = dict(bwin='12', apre='16', nb='16', bwin2='12', gs='3'); OPT.update(x.split('=') for x in os.environ.get('OPT', '').split(',') if x)
TARGET = {0: 8, 1: 8, 2: 16, 3: 15, 4: 16}
SPIN = 0x200000
STAMPS = []
K1 = 1
W2KS = 96
NSIDE = 206
WCELL = CNT + 11264*FS
KNAME = 'interleave_layers__mha_block__dense_activation_mish__prompt_kernel'


def phase0(a):
    a('s_load_dwordx4 s[8:11], s[0:1], 0')
    a('s_load_dwordx4 s[20:23], s[0:1], 64')
    a('s_getpc_b64 s[60:61]')
    a.label('p0_pc')
    a('s_and_b32 s62, s2, 8'); a('s_lshl_b32 s62, s62, 12')
    a('s_sub_u32 s63, main_end-p0_pc, s62')
    a('s_add_u32 s60, s60, s62'); a('s_addc_u32 s61, s61, 0')
    a('v_lshlrev_b32 v182, 7, v0')
    a('v_min_u32 v182, s63, v182')
    a('v_mov_b32 v183, s61')
    a('v_add_co_u32 v182, vcc, s60, v182')
    a('v_addc_co_u32 v183, vcc, 0, v183, vcc')
    a('global_load_dword v184, v[182:183], off')
    a('s_load_dwordx2 s[84:85], s[0:1], 16')
    a('s_load_dwordx4 s[88:91], s[0:1], 32')
    a('s_load_dwordx2 s[86:87], s[0:1], 48')
    LN, L16, L4, T0, T1, T2, T3 = 1, 2, 3, 4, 5, 6, 7
    a(f'v_and_b32 v{LN}, 63, v0')
    a(f'v_lshrrev_b32 v{T0}, 6, v0')
    a(f'v_readfirstlane_b32 s12, v{T0}')
    a('s_and_b32 s13, s2, 7'); a('s_lshr_b32 s14, s2, 3')
    MAP = int(OPT.get('map', 0))
    if MAP == 0:
        a('s_lshl_b32 s15, s13, 2'); a('s_and_b32 s33, s14, 3'); a('s_add_u32 s15, s15, s33')
        a('s_lshr_b32 s18, s14, 2')
        a('s_add_u32 s48, s18, s13')
    else:
        a('s_lshr_b32 s15, s13, 1'); a('s_lshl_b32 s15, s15, 3'); a('s_and_b32 s33, s14, 7'); a('s_add_u32 s15, s15, s33')
        a('s_lshr_b32 s18, s14, 3')
        if MAP == 1:
            a('s_lshl_b32 s18, s18, 1'); a('s_and_b32 s33, s13, 1'); a('s_add_u32 s18, s18, s33')
        else:
            a('s_and_b32 s33, s13, 1'); a('s_lshl_b32 s33, s33, 2'); a('s_add_u32 s18, s18, s33')
        a('s_lshr_b32 s48, s14, 2'); a('s_add_u32 s48, s48, s13')
    a('s_and_b32 s48, s48, 7')
    WSL = 12288; XB = 8*WSL; XSL = 8192
    DW, DX = 8, 9
    a(f'v_lshrrev_b32 v{T0}, 3, v{LN}')
    a(f'v_and_b32 v{T1}, 7, v{LN}')
    a(f'v_bfe_u32 v{T2}, v{LN}, 4, 1')
    a(f'v_lshlrev_b32 v{T2}, 2, v{T2}')
    a(f'v_xor_b32 v{T2}, v{T1}, v{T2}')
    a(f'v_mul_u32_u24 v{DW}, 3072, v{T0}')
    a(f'v_lshl_add_u32 v{DW}, v{T2}, 4, v{DW}')
    a(f'v_lshrrev_b32 v{T2}, 4, v{LN}')
    a(f'v_xor_b32 v{T2}, v{T1}, v{T2}')
    a(f'v_lshlrev_b32 v{DX}, 10, v{T0}')
    a(f'v_lshl_add_u32 v{DX}, v{T2}, 4, v{DX}')
    a(f'v_xor_b32 v{DX+1}, 64, v{DX}')
    a(f'v_add_u32 v{DX+1}, {8*1024 - 1024}, v{DX+1}')
    a('s_mul_i32 s40, s12, 24576'); a('s_lshl_b32 s33, s18, 7'); a('s_add_u32 s40, s40, s33')
    a('s_lshl_b32 s43, s15, 16'); a('s_lshl_b32 s33, s12, 14'); a('s_add_u32 s43, s43, s33')
    a(f's_mul_i32 s33, s48, {64*3072}'); a('s_add_u32 s40, s40, s33')
    a('s_lshl_b32 s33, s48, 7'); a('s_add_u32 s43, s43, s33')
    a(f's_mov_b32 s49, {64*3072}'); a('s_movk_i32 s51, 128')
    a('s_mov_b32 s76, s18'); a('s_mov_b32 s77, s18')
    a('s_mul_i32 s44, s12, 3072'); a('s_lshl_b32 s45, s12, 11'); a(f's_add_u32 s45, s45, {XB}')
    a(f's_sub_u32 s33, s2, {int(OPT.get("clr", 64))}'); a('s_lshl_b32 s34, s33, 2'); a('s_add_u32 s34, s34, s12'); a(f's_mul_i32 s34, s34, {90*256}')
    a(f's_add_u32 s34, s34, {CNT}'); a(f's_add_u32 s53, s34, {45*256}')
    a(f'v_min_u32 v{T0}, 44, v{LN}'); a(f'v_lshlrev_b32 v{T0}, 8, v{T0}')
    a(f'v_mov_b32 v{T1}, 0')
    if STAMP:
        a('s_memrealtime s[96:97]')
    a('s_waitcnt lgkmcnt(0)')
    if STAMP:
        STAMPS.append('p0 prek'); i_ = len(STAMPS) - 1
        a(f'v_writelane_b32 v11, s96, {2*i_+2}'); a(f'v_writelane_b32 v11, s96, {2*i_+3}')
    stp0('p0 karg')
    srd(a, 4, 22, L.WS_BYTES)
    srd(a, 28, 10, 512*1536*2)
    srd(a, 8, 8, 2*L.MB)
    a('s_cmp_lt_u32 s33, 32'); a('s_cselect_b32 s35, 1, 0')
    a('s_cbranch_scc0 p0_noclr')
    a(f'buffer_store_dword v{T1}, v{T0}, s[4:7], s34 offen sc1')
    a(f'buffer_store_dword v{T1}, v{T0}, s[4:7], s53 offen sc1')
    a.label('p0_noclr')
    def dma_pair(sl):
        o = []
        o.append([f's_add_u32 m0, s45, {sl*XSL}', f's_add_u32 s46, s40, {32*3072}', f'buffer_load_dwordx4 v{DX}, s[8:11], s43 offen lds',
                  f'buffer_load_dwordx4 v{DX+1}, s[8:11], s43 offen offset:1024 lds'])
        o.append([f's_add_u32 m0, s44, {2*sl*WSL}', 's_add_u32 s48, s48, 1'] +
                 [f'buffer_load_dwordx4 v{DW}, s[28:31], s40 offen offset:{1024*u} lds' for u in range(3)])
        o.append(['s_cmp_eq_u32 s48, 8', f's_cselect_b32 s50, {(128 - 1024) & 0xffffffff}, s51', f's_cselect_b32 s52, {((64 - 512)*3072) & 0xffffffff}, s49'])
        o.append([f's_add_u32 m0, s44, {(2*sl + 1)*WSL}', 's_add_u32 s43, s43, s50'] +
                 [f'buffer_load_dwordx4 v{DW}, s[28:31], s46 offen offset:{1024*u} lds' for u in range(3)] + ['s_add_u32 s40, s40, s52'])
        return o
    def run(gs):
        for g in gs:
            for t in g: a(t)
    TCH = int(OPT.get('tch', 1))
    if TCH == 1:
        a('s_lshl_b32 s33, s2, 2'); a('s_add_u32 s33, s33, s12'); a('s_mul_i32 s33, s33, 1536')
        a(f'v_lshlrev_b32 v185, 7, v{LN}')
        a('s_mov_b64 exec, 0xfff')
        a('buffer_load_dword v187, v185, s[28:31], s33 offen')
        a('s_mov_b64 exec, -1')
    def touch_all():
        a('s_lshl_b32 s33, s14, 2'); a('s_add_u32 s33, s33, s12')
        a('s_lshl_b32 s34, s33, 11'); a('s_lshl_b32 s53, s13, 18'); a('s_add_u32 s34, s34, s53')
        a('s_mul_i32 s33, s33, 12288'); a('s_add_u32 s53, s33, 8192')
        a(f'v_lshlrev_b32 v185, 7, v{LN}')
        a('buffer_load_dword v187, v185, s[28:31], s33 offen')
        a('s_mov_b64 exec, 0xffffffff')
        a('buffer_load_dword v186, v185, s[28:31], s53 offen')
        a('s_mov_b64 exec, 0xffff')
        a('buffer_load_dword v188, v185, s[8:11], s34 offen')
        a('s_mov_b64 exec, -1')
    if TCH == 2: touch_all()
    run(dma_pair(0))
    if TCH == 3: touch_all()
    stp0('p0 dma0')
    srd(a, 20, 20, 256)
    if int(OPT.get('tlb', 0)):
        a(f'v_lshlrev_b32 v181, 21, v{LN}'); a(f'v_min_u32 v181, {CNT}, v181')
        a('buffer_load_dword v186, v181, s[4:7], 0 offen')
        a(f'buffer_load_dword v188, v{T1}, s[20:23], 0 offen offset:192')
        a('s_load_dwordx2 s[62:63], s[0:1], 56')
        a('v_mov_b32 v180, 0')
        a('global_load_dword v189, v180, s[84:85]'); a('global_load_dword v189, v180, s[86:87]')
        a('global_load_dword v189, v180, s[88:89]'); a('global_load_dword v189, v180, s[90:91]')
        a('s_waitcnt lgkmcnt(0)')
        a('global_load_dword v189, v180, s[62:63]')
    run(dma_pair(1))
    a(f'v_lshlrev_b32 v{L16}, 4, v{LN}')
    a(f'v_lshlrev_b32 v{L4}, 2, v{LN}')
    a('s_lshr_b32 s19, s12, 1'); a('s_and_b32 s24, s12, 1'); a('s_xor_b32 s25, s19, s24')
    RW = 66
    a(f'v_lshrrev_b32 v{T0}, 5, v{LN}'); a(f'v_mul_u32_u24 v{T0}, 3072, v{T0}')
    a(f'v_bfe_u32 v{T1}, v{LN}, 2, 2'); a(f'v_lshl_add_u32 v{RW}, v{T1}, 7, v{T0}')
    a(f'v_bfe_u32 v{T1}, v{LN}, 3, 1'); a(f'v_xor_b32 v{T1}, s24, v{T1}'); a(f'v_lshl_add_u32 v{RW}, v{T1}, 6, v{RW}')
    a(f'v_bfe_u32 v{T1}, v{LN}, 4, 1'); a(f'v_lshl_add_u32 v{RW}, v{T1}, 5, v{RW}')
    a(f'v_and_b32 v{T1}, 3, v{LN}'); a(f'v_lshl_add_u32 v{RW}, v{T1}, 3, v{RW}')
    a('s_mul_i32 s33, s25, 6144'); a('s_sub_u32 s34, 6144, s33')
    a(f'v_add_u32 v{RW+1}, s34, v{RW}'); a(f'v_add_u32 v{RW}, s33, v{RW}')
    a(f'v_add_u32 v70, {4*WSL}, v{RW}'); a(f'v_add_u32 v71, {4*WSL}, v{RW+1}')
    RX = 12
    a(f'v_and_b32 v{T0}, 31, v{LN}'); a(f'v_lshlrev_b32 v{T1}, 7, v{T0}')
    a(f'v_bfe_u32 v{T2}, v{LN}, 1, 3'); a(f'v_lshrrev_b32 v{T3}, 5, v{LN}'); a(f'v_xor_b32 v{T2}, v{T2}, v{T3}')
    a(f'v_lshl_add_u32 v{T1}, v{T2}, 4, v{T1}')
    a('s_lshl_b32 s33, s25, 5'); a(f'v_xor_b32 v{T1}, s33, v{T1}')
    a('s_lshl_b32 s33, s19, 12'); a(f's_add_u32 s33, s33, {XB}')
    a(f'v_add_u32 v{RX}, s33, v{T1}')
    for q in range(1, 4): a(f'v_xor_b32 v{RX+q}, {32*q}, v{RX}')
    STV = 16; RS, RQ = 68, 69; XE = 72; WE = 192
    FRG = [192, 128]
    ACC = [80 + 16*i for i in range(3)]
    S1, S2, CS, ONE, AV = 32, 33, 34, 37, 38
    for r_ in range(S1, CS + 3): a(f'v_mov_b32 v{r_}, 0')
    a(f'v_mov_b32 v{ONE}, {ONES}')
    SUMS = 48; OA_ = 44
    M16 = 'v_mfma_f32_16x16x32_bf16'
    a(f'v_and_b32 v{T0}, 31, v{LN}')
    a(f'v_cmp_eq_u32 vcc, 0, v{T0}'); a(f'v_cmp_eq_u32 s[60:61], 17, v{T0}'); a('s_or_b64 vcc, vcc, s[60:61]')
    for r_ in range(4): a(f'v_cndmask_b32 v{OA_+r_}, 0, v{ONE}, vcc')

    SD, SR = 40, 41
    EARLY = int(OPT.get('early', 1))
    def side_params():
        a('s_and_b32 s26, s2, 0xf0'); a('s_lshl_b32 s33, s13, 1'); a('s_add_u32 s26, s26, s33'); a('s_and_b32 s33, s14, 1'); a('s_add_u32 s26, s26, s33')
        SROT = int(OPT.get('srot', 128))
        a(f's_add_u32 s26, s26, {SROT}'); a('s_and_b32 s26, s26, 255')
        a('s_mov_b32 s95, 0x00020000')
        a('s_lshl_b32 s71, s12, 12'); a(f's_add_u32 s71, s71, {XB + 4*XSL}')
        a(f'v_lshrrev_b32 v{T0}, 5, v{LN}'); a(f'v_lshlrev_b32 v{T0}, 2, v{T0}')
        a(f'v_bfe_u32 v{T2}, v{LN}, 2, 2'); a(f'v_add_u32 v{T0}, v{T0}, v{T2}')
        a(f'v_bfe_u32 v{T2}, v{LN}, 4, 1'); a(f'v_lshlrev_b32 v{T2}, 5, v{T2}')
        a(f'v_and_b32 v{T1}, 3, v{LN}'); a(f'v_lshl_add_u32 v{T2}, v{T1}, 3, v{T2}')
        a('s_cmp_ge_u32 s26, 88'); a('s_cbranch_scc1 p0_rows')
        a('s_mov_b32 s92, s88'); a('s_mov_b32 s93, s89'); a(f's_mov_b32 s94, {512*1376*2}'); a('s_mov_b32 s65, 2')
        a('s_cmp_ge_u32 s26, 44'); a('s_cselect_b32 s69, 1, 0'); a('s_mul_i32 s33, s69, 44'); a('s_sub_u32 s68, s26, s33')
        a(f's_mul_i32 s70, s68, {FT}'); a(f's_add_u32 s70, s70, {L.W1F}')
        a('s_lshl_b32 s33, s69, 2'); a('s_add_u32 s33, s33, s12')
        a('s_lshl_b32 s66, s33, 12'); a('s_add_u32 s66, s66, s70'); a('s_movk_i32 s72, 1024')
        a(f's_mov_b32 s73, {16*2752}'); a(f's_mul_i32 s67, s33, {64*2752}'); a('s_lshl_b32 s33, s68, 6'); a('s_add_u32 s67, s67, s33')
        a(f'v_lshrrev_b32 v{SD}, 2, v{LN}'); a(f'v_mul_u32_u24 v{SD}, 2752, v{SD}'); a(f'v_lshl_add_u32 v{SD}, v{T1}, 4, v{SD}')
        a(f'v_lshl_add_u32 v{SR}, v{T0}, 6, v{T2}'); a(f'v_add_u32 v{SR}, s71, v{SR}')
        a('s_branch p0_prm')
        a.label('p0_rows')
        a('s_mov_b32 s65, 0'); a('s_movk_i32 s73, 1024')
        a('s_mov_b32 s92, s84'); a('s_mov_b32 s93, s85'); a(f's_mov_b32 s94, {512*512*2}')
        a('s_sub_u32 s68, s26, 88'); a(f's_mov_b32 s72, {32*1024}'); a(f's_mov_b32 s70, {L.WOF}')
        a('s_cmp_lt_u32 s26, 120'); a('s_cbranch_scc1 p0_rows2')
        a('s_mov_b32 s92, s86'); a('s_mov_b32 s93, s87'); a(f's_mov_b32 s94, {1376*512*2}')
        a('s_sub_u32 s68, s26, 120'); a(f's_mov_b32 s72, {W2KS*1024}'); a(f's_mov_b32 s70, {L.W2F}')
        a(f's_cmp_ge_u32 s26, {NSIDE}'); a('s_cselect_b32 s94, 0, s94')
        a.label('p0_rows2')
        a('s_lshl_b32 s67, s68, 14'); a('s_lshl_b32 s33, s12, 12'); a('s_add_u32 s67, s67, s33')
        a('s_lshl_b32 s33, s12, 2'); a('s_mul_i32 s66, s33, s72'); a('s_lshl_b32 s33, s68, 10'); a('s_add_u32 s66, s66, s33'); a('s_add_u32 s66, s66, s70')
        a(f'v_mov_b32 v{SD}, v{L16}')
        a('s_lshl_b32 s33, s12, 8'); a(f's_add_u32 s33, s33, {XB + 4*XSL}')
        a(f'v_lshl_add_u32 v{SR}, v{T0}, 10, v{T2}'); a(f'v_add_u32 v{SR}, s33, v{SR}')
        a.label('p0_prm')
        a('s_and_b32 s93, s93, 0xffff')
    def side_dma():
        return [[f's_add_u32 m0, s71, {i*1024}', 's_nop 0', f'buffer_load_dwordx4 v{SD}, s[92:95], s67 offen lds', 's_add_u32 s67, s67, s73'] for i in range(4)]
    def reads(sl):
        F = FRG[sl % 2]; o = []
        for j in range(4):
            h, s_ = divmod(j, 2)
            o.append(f'ds_read_b128 {v(F+16*j,4)}, v{RX + j} offset:{sl*XSL}')
            ad = (RW if sl < 2 else 70) + s_
            for u in range(3):
                r = F + 16*j + 4 + 4*u; off = (2*(sl % 2) + h)*WSL + u*1024
                o.append(f'ds_read_b64_tr_b16 {v(r,2)}, v{ad} offset:{off}')
                o.append(f'ds_read_b64_tr_b16 {v(r+2,2)}, v{ad} offset:{off+512}')
        return o
    def mf(f, xf, wf, first):
        cc = '0' if first else v(ACC[f], 16)
        if f == 2: a(f'{MFMA} {v(ACC[f],16)}, {xf}, {wf}, {cc}')
        else: a(f'{MFMA} {v(ACC[f],16)}, {wf}, {xf}, {cc}')
    side_params()
    if int(OPT.get('stch', 0)):
        a(f'v_lshrrev_b32 v185, 3, v{LN}'); a('v_mul_lo_u32 v185, v185, s73'); a(f'v_and_b32 v186, 7, v{LN}'); a('v_lshl_add_u32 v185, v186, 7, v185')
        a(f'v_mul_u32_u24 v186, 2752, v{LN}')
        a('s_cmp_eq_u32 s65, 0'); a('s_cselect_b64 vcc, -1, 0'); a(f's_cselect_b32 s33, 0, {64*2752}'); a('s_add_u32 s33, s33, s67')
        a('v_cndmask_b32 v185, v186, v185, vcc')
        a('buffer_load_dword v188, v185, s[92:95], s67 offen')
        a('buffer_load_dword v189, v185, s[92:95], s33 offen')
    run(dma_pair(2))
    stp0('p0 setup')
    a(f's_waitcnt vmcnt({16 + 2*int(OPT.get("stch", 0))})')
    a('s_barrier')
    stp0('p0 first')
    for t in reads(0): a(t)
    SC0 = 8192; CA = 42
    def rec(f):
        o = []
        f(o.append)
        return o
    def tail_pre(a):
        a(f's_mov_b32 s10, {2*L.MB}')
        a('s_lshl_b32 s17, s15, 1'); a('s_add_u32 s17, s17, s19')
        a('s_lshl_b32 s16, s18, 1'); a('s_add_u32 s16, s16, s24')
        a('s_lshl_b32 s76, s76, 1'); a('s_add_u32 s76, s76, s24'); a('s_lshl_b32 s77, s77, 1'); a('s_add_u32 s77, s77, s24')
        a('s_lshl_b32 s33, s17, 10')
        a('s_lshl_b32 s56, s16, 17'); a('s_add_u32 s56, s56, s33'); a('s_add_u32 s57, s56, 0x10000')
        a('s_lshl_b32 s58, s76, 17'); a('s_add_u32 s58, s58, s33'); a(f's_add_u32 s58, s58, {L.K[0]}'); a('s_add_u32 s59, s58, 0x10000')
        a('s_lshl_b32 s54, s77, 17'); a('s_add_u32 s54, s54, s33'); a(f's_add_u32 s54, s54, {L.V[0]}')
        a(f'v_bfe_u32 v78, v{LN}, 4, 1'); a('v_lshlrev_b32 v78, 16, v78')
        a(f'v_lshrrev_b32 v79, 5, v{LN}'); a('v_lshl_add_u32 v78, v79, 8, v78')
        a(f'v_and_b32 v79, 15, v{LN}'); a('v_lshl_add_u32 v78, v79, 4, v78')
        a(f'v_and_b32 v{T3}, 124, v{L4}')
        a('s_xor_b32 s33, s12, 1'); a('s_mul_i32 s33, s33, 3072'); a(f'v_add_u32 v{T1}, s33, v{T3}')
        a('s_xor_b32 s33, s12, 2'); a('s_mul_i32 s33, s33, 3072'); a(f'v_add_u32 v{T2}, s33, v{T3}')
        a(f'v_add_u32 v{T0}, s44, v{L4}')
        a('s_add_u32 s33, s44, 1024')
        a(f'v_add_u32 v76, s33, v{L4}')
        a(f'v_lshrrev_b32 v77, 5, v{LN}'); a('v_lshlrev_b32 v77, 4, v77'); a('v_add_u32 v77, s33, v77')
        a(f'v_cmp_gt_u32 vcc, 32, v{LN}')
        a('s_lshl_b32 s42, s16, 6'); a('s_add_u32 s42, s42, s17'); a('s_lshl_b32 s42, s42, 8'); a(f's_add_u32 s42, s42, {CNT}')
        a('s_and_b32 s33, s15, 3'); a('s_mul_i32 s34, s33, 6144'); a(f's_add_u32 s34, s34, {6*WSL}')
        a(f'v_lshrrev_b32 v43, 5, v{LN}'); a('v_mul_u32_u24 v64, 2560, v43')
        a('s_mul_i32 s53, s25, 6144'); a('s_sub_u32 s34, s34, s53')
        a(f'v_sub_u32 v43, v{RW}, v64'); a('v_add_u32 v43, s34, v43')
        a('s_add_u32 s53, s48, 7'); a('s_and_b32 s53, s53, 7'); a('s_lshl_b32 s53, s53, 2'); a('s_add_u32 s53, s53, s33'); a('s_lshl_b32 s53, s53, 10')
        a(f's_mul_i32 s33, s16, {FT}'); a('s_add_u32 s53, s53, s33'); a(f's_add_u32 s53, s53, {L.WQKVF}')
    def tail_comb(a):
        for u in range(3):
            a(f'ds_read_b64_tr_b16 {v(204+4*u,2)}, v43 offset:{u*1024}')
            a(f'ds_read_b64_tr_b16 {v(206+4*u,2)}, v43 offset:{u*1024+3072}')
        a(f'v_add_f32 v{S1}, v{S1}, v{S2}')
        a(f'ds_write_b32 v{T0}, v{S1} offset:512')
        a('s_mov_b64 exec, 0xffff')
        for u in range(4): a(f'ds_write2_b32 v{T0}, v{SUMS+4*u}, v{SUMS+4*u+1} offset0:{32*u} offset1:{32*u+16}')
        a('s_mov_b64 exec, -1')
        a(f'v_add_u32 v{T0}, s44, v{T3}')
        a('s_waitcnt lgkmcnt(0)')
        a('s_barrier')
        a(f'ds_read_b32 v{STV}, v{T0} offset:384'); a(f'ds_read_b32 v{STV+2}, v{T1} offset:384')
        a(f'ds_read2_b32 {v(STV+4,2)}, v{T0} offset0:128 offset1:160'); a(f'ds_read2_b32 {v(STV+6,2)}, v{T1} offset0:128 offset1:160')
        for u in range(3):
            a(f'ds_read_b32 v{CS+u}, v{T0} offset:{128*u}')
            a(f'ds_read_b32 v{48+u}, v{T2} offset:{128*u}')
        a('s_waitcnt lgkmcnt(6)')
        a(f'v_add_f32 v{STV}, v{STV}, v{STV+2}')
        a(f'v_add_f32 v{STV+4}, v{STV+4}, v{STV+5}'); a(f'v_add_f32 v{STV+6}, v{STV+6}, v{STV+7}'); a(f'v_add_f32 v{STV+1}, v{STV+4}, v{STV+6}')
        a(f'v_mul_f32 v{STV}, {f32(-1.0/512)}, v{STV}')
        a(f'v_mul_f32 v{STV+1}, {f32(1.0/512)}, v{STV+1}')
        a(f'v_fma_f32 v{STV+1}, -v{STV}, v{STV}, v{STV+1}')
        a(f'v_max_f32 v{STV+1}, 0, v{STV+1}')
        a(f'v_add_f32 v{STV+1}, {f32(1e-5)}, v{STV+1}')
        a(f'v_rsq_f32 v{RS}, v{STV+1}')
        MH, MM, ML, TT = STV+2, STV+3, STV+4, STV+8
        split3(a, STV, MH, MM, ML, TT)
        a(f'ds_write_b32 v76, v{RS}')
        pack_hi(a, XE, MH, MM)
        a(f'v_lshrrev_b32 v{XE+1}, 16, v{ML}'); a(f'v_mov_b32 v{XE+2}, 0'); a(f'v_lshrrev_b32 v{XE+3}, 16, v{MH}')
        a(f'v_mul_f32 v{RQ}, {f32(L.QSCALE)}, v{RS}')
        for j in range(4): a(f'ds_read_b128 {v(STV+4*j,4)}, v77 offset:{32*j}')
        a('s_waitcnt lgkmcnt(5)')
        for u in (1, 2, 0):
            c_ = CS + u; W_ = WE + 4*u; HI, MID, LO, TQ = 44, 45, 46, 47
            a(f'v_add_f32 v{c_}, v{c_}, v{48+u}')
            split3(a, c_, HI, MID, LO, TQ)
            a(f'v_lshrrev_b32 v{W_+1}, 16, v{HI}'); a(f'v_or_b32 v{W_}, v{W_+1}, v{HI}')
            a(f'v_lshrrev_b32 v{W_+3}, 16, v{MID}')
            pack_hi(a, TQ, LO, MID)
            a(f'v_cndmask_b32 v{W_}, v{TQ}, v{W_}, vcc')
            a(f'v_cndmask_b32 v{W_+1}, 0, v{W_+1}, vcc')
            a(f'v_mov_b32 v{W_+2}, 0')
            a(f'v_cndmask_b32 v{W_+3}, 0, v{W_+3}, vcc')
    def singles(gs):
        out = []; cur = []
        for g in gs:
            for t in g:
                cur.append(t)
                if t.startswith('buffer'): out.append(cur); cur = []
        out[-1] += cur
        return out
    S0 = int(OPT.get('s0', 2))
    sd = side_dma()
    nis = 24; endof = {0: 8, 1: 16, 2: 24}
    masked = False
    for it in range(8):
        sl = it % 4
        if it + 1 < 8:
            a(f's_waitcnt vmcnt({nis - endof[it + 1]}) lgkmcnt(0)')
            a('s_barrier')
            q = reads((it + 1) % 4)
        else:
            a('s_waitcnt lgkmcnt(0)')
            q = []
        dp = []
        if it + 3 < 8: dp = singles(dma_pair((it + 3) % 4))
        nis += len(dp); endof[it + 3] = nis
        if it >= S0 and sd:
            ex = [sd.pop(0), sd.pop(0)]
            dp = dp + ex; nis += 2
        F = FRG[sl % 2]
        xq = rec(tail_pre) if it == 6 else []
        if it == 7:
            for r_ in range(4):
                a(f'v_dot2_f32_bf16 v{S1}, v{F+r_}, v{F+r_}, v{S1}')
                a(f'v_dot2_f32_bf16 v{S2}, v{F+32+r_}, v{F+32+r_}, v{S2}')
            for j in range(4):
                if j % 2:
                    for f in range(3): a(f'{M16} {v(SUMS+4*f,4)}, {v(OA_,4)}, {v(F+16*j+4+4*f,4)}, {v(SUMS+4*f,4)}')
                else: a(f'{M16} {v(SUMS+12,4)}, {v(OA_,4)}, {v(F+16*j,4)}, {v(SUMS+12,4)}')
            xq = rec(tail_comb)
            for n in range(12):
                j, f = divmod(n, 3)
                mf(f, v(F+16*j, 4), v(F+16*j+4+4*f, 4), False)
                if n == 0: continue
                cnt = 0
                while xq and (cnt < 8 or masked):
                    t = xq.pop(0); a(t); cnt += 1
                    if 'exec' in t: masked = '-1' not in t
                    if t.startswith(('s_waitcnt', 's_barrier')) and not masked and cnt > 2: break
                    if xq and xq[0].startswith('s_waitcnt') and not masked: break
            for t in xq: a(t)
            continue
        for n in range(12):
            j, f = divmod(n, 3)
            mf(f, v(F+16*j, 4), v(F+16*j+4+4*f, 4), it == 0 and j == 0)
            for _ in range(6):
                if xq: a(xq.pop(0))
            for _ in range(3 if n < 4 else 2):
                if q: a(q.pop(0))
            if dp and n not in ((0, 3, 6, 9) if len(dp) <= 11 - n - (11 - n)//3 else (0,)):
                for t in dp.pop(0): a(t)
            z_ = lambda r: '0' if (it == 0 and j < 2) else v(r, 4)
            if j % 2 == 1: a(f'{M16} {v(SUMS+4*f,4)}, {v(OA_,4)}, {v(F+16*j+4+4*f,4)}, {z_(SUMS+4*f)}')
            elif f == 1: a(f'{M16} {v(SUMS+12,4)}, {v(OA_,4)}, {v(F+16*j,4)}, {z_(SUMS+12)}')
            if n == 0 and it in (0, 3):
                a('s_cmp_eq_u32 s35, 0'); a(f's_cbranch_scc0 p0_clr{it}')
                a.label(f'p0_back{it}')
        assert not q and not dp and not xq
        for r_ in range(4):
            a(f'v_dot2_f32_bf16 v{S1}, v{F+r_}, v{F+r_}, v{S1}')
            a(f'v_dot2_f32_bf16 v{S2}, v{F+32+r_}, v{F+32+r_}, v{S2}')
        if it == 3: stp0('p0 trip0')
    a('s_branch p0_after')
    a.label('p0_clr0')
    a('s_cmp_lg_u32 s12, 0'); a('s_cbranch_scc1 p0_back0')
    a('s_mov_b64 exec, 1'); a(f'v_mov_b32 v{AV}, 1')
    a(f'buffer_atomic_add v{AV}, v{L4}, s[20:23], 0 offen sc0 sc1')
    a('s_mov_b64 exec, -1')
    a('s_branch p0_back0')
    a.label('p0_clr3')
    a('s_cmp_lg_u32 s12, 0'); a('s_cbranch_scc1 p0_back3')
    a(f'v_readfirstlane_b32 s33, v{AV}')
    a('s_cmp_lg_u32 s33, 31'); a('s_cbranch_scc1 p0_back3')
    a('s_mov_b64 exec, 1'); a(f'v_mov_b32 v{AV}, 1')
    a(f'buffer_store_dword v{AV}, v{L4}, s[20:23], 0 offen offset:128 sc1')
    a('s_mov_b64 exec, -1')
    a('s_branch p0_back3')
    a.label('p0_after')
    stp0('p0 loop')
    for u in (1, 2, 0): mf(u, v(XE, 4), v(WE + 4*u, 4), False)
    a('s_cmp_lg_u32 s19, 0'); a('s_cbranch_scc1 p0_nowe')
    for u in range(3):
        a(f'buffer_store_dwordx4 {v(204+4*u,4)}, v{L16}, s[4:7], s53 offen sc1')
        if u < 2: a(f's_add_u32 s53, s53, {16*FT}')
    a('s_cmp_lg_u32 s17, 0'); a('s_cbranch_scc1 p0_nowe')
    for u in range(3):
        a(f's_mul_i32 s33, s{(16, 76, 77)[u]}, {FT}'); a(f's_add_u32 s33, s33, {L.WQKVF + 32*1024 + 16*u*FT}')
        a(f'buffer_store_dwordx4 {v(WE+4*u,4)}, v{L16}, s[4:7], s33 offen sc1')
    a.label('p0_nowe')
    a('s_mov_b64 exec, 1')
    a(f'buffer_load_dword v{AV+1}, v{L4}, s[20:23], 0 offen offset:128 sc1')
    a('s_mov_b64 exec, -1')
    a('s_waitcnt lgkmcnt(0)')
    for f in (1, 2, 0):
        A = ACC[f]
        for g in range(2):
            B = A + 8*g
            for r_ in range(0, 8, 2):
                if f < 2:
                    o = 1 if f == 0 else 0
                    a(f'v_pk_mul_f32 {v(B+r_,2)}, {v(B+r_,2)}, {v(RS,2)} op_sel:[0,{o}] op_sel_hi:[1,{o}]')
                else:
                    a(f'v_pk_mul_f32 {v(B+r_,2)}, {v(B+r_,2)}, {v(STV+8*g+r_,2)}')
            for r_ in range(4): a(f'v_cvt_pk_bf16_f32 v{B+r_}, v{B+2*r_}, v{B+2*r_+1}')
            if f < 2: a(f'buffer_store_dwordx4 {v(B,4)}, v{L16}, s[4:7], s{56+2*f+g} offen sc1')
            else: a(f'buffer_store_dwordx4 {v(B,4)}, v78, s[4:7], s54 offen offset:{512*g} sc1')
    a(f'v_and_b32 v{T0}, 27, v{LN}')
    a(f'v_cmp_eq_u32 vcc, 16, v{T0}')
    a(f'v_cndmask_b32 v96, 0, v{ONE}, vcc'); a(f'v_cndmask_b32 v97, 0, v{ONE}, vcc')
    for r_ in range(2, 128, 2): a(f'v_pk_mov_b32 {v(96+r_,2)}, {v(96,2)}, {v(96,2)}')
    FR = 224
    a('s_waitcnt vmcnt(6)')
    a('s_mov_b32 s34, 0')
    a.label('p0_clr_poll')
    a(f'v_readfirstlane_b32 s33, v{AV+1}')
    a('s_cmp_eq_u32 s33, 1'); a('s_cbranch_scc1 p0_clr_ok')
    a('s_mov_b64 exec, 1')
    a(f'buffer_load_dword v{AV+1}, v{L4}, s[20:23], 0 offen offset:128 sc1')
    a('s_mov_b64 exec, -1')
    a('s_add_u32 s34, s34, 1')
    a('s_waitcnt vmcnt(0)')
    a(f's_cmp_lt_u32 s34, {SPIN}'); a('s_cbranch_scc1 p0_clr_poll')
    a.label('p0_clr_ok')
    a('s_waitcnt vmcnt(0)')
    if int(OPT.get('fl', 1)): a('s_mov_b32 exec_hi, 0')
    else: a('s_mov_b64 exec, 1')
    a(f'v_mov_b32 v{AV}, 1')
    a(f'buffer_store_dword v{AV}, v{L4}, s[4:7], s42 offen sc1')
    a('s_mov_b64 exec, -1')
    stp0('p0 sig')
    FEARLY = int(OPT.get('fearly', 1))
    a(f's_cmp_ge_u32 s26, {NSIDE}'); a('s_cbranch_scc1 ' + ('p0_rd3' if FEARLY else 'p0_noside'))
    a('s_barrier')
    a('s_cmp_eq_u32 s65, 0'); a('s_cbranch_scc1 p0_rd2')
    for i in range(4):
        a(f'ds_read_b64_tr_b16 {v(FR+4*i,2)}, v{SR} offset:{i*1024}')
        a(f'ds_read_b64_tr_b16 {v(FR+4*i+2,2)}, v{SR} offset:{i*1024+512}')
    a('s_branch p0_rd3')
    a.label('p0_rd2')
    for i in range(4):
        a(f'ds_read_b64_tr_b16 {v(FR+4*i,2)}, v{SR} offset:{i*64}')
        a(f'ds_read_b64_tr_b16 {v(FR+4*i+2,2)}, v{SR} offset:{i*64+8192}')
    a.label('p0_rd3')
    if FEARLY:
        a(f's_cmp_ge_u32 s26, {NSIDE}'); a('s_cbranch_scc1 p0_noside')
    a('s_waitcnt lgkmcnt(0)')
    for i in range(4):
        a(f'buffer_store_dwordx4 {v(FR+4*i,4)}, v{L16}, s[4:7], s66 offen sc1')
        a('s_add_u32 s66, s66, s72')
    a.label('p0_noside')
    a('s_cmp_eq_u32 s65, 0'); a('s_cbranch_scc1 p0_nosum')
    a(f'v_mov_b32 v{S1}, 0'); a(f'v_mov_b32 v{S2}, 0')
    for i in range(0, 16, 2):
        a(f'v_dot2_f32_bf16 v{S1}, v{FR+i}, v{ONE}, v{S1}')
        a(f'v_dot2_f32_bf16 v{S2}, v{FR+i+1}, v{ONE}, v{S2}')
    a('s_lshl_b32 s33, s12, 8'); a(f's_add_u32 s33, s33, {SC0 + 8192}')
    a(f'v_add_u32 v{T0}, s33, v{L4}')
    a(f'v_add_f32 v{S1}, v{S1}, v{S2}')
    a(f'ds_write_b32 v{T0}, v{S1}')
    a('s_waitcnt lgkmcnt(0)')
    a('s_barrier')
    a.label('p0_nosum')
    a('s_cmp_lg_u32 s12, 3'); a('s_cbranch_scc1 p0_done')
    a(f's_cmp_ge_u32 s26, {NSIDE}'); a('s_cbranch_scc1 p0_done')
    a('s_cmp_eq_u32 s65, 0'); a('s_cbranch_scc1 p0_wsig')
    a(f'v_and_b32 v{T2}, 31, v{LN}'); a(f'v_lshlrev_b32 v{T2}, 2, v{T2}'); a(f'v_add_u32 v{T1}, {SC0+8192}, v{T2}')
    for i in range(8): a(f'ds_read_b32 v{48+i}, v{T1} offset:{128*i}')
    B = 61
    a(f'v_mov_b32 v{B}, 0')
    a('s_cmp_lg_u32 s69, 0'); a('s_cbranch_scc1 p0_nobias')
    a('s_mov_b32 s92, s90'); a('s_and_b32 s93, s91, 0xffff'); a(f's_mov_b32 s94, {1376*2}')
    a('s_lshl_b32 s33, s68, 6')
    a(f'v_lshrrev_b32 v{T3}, 1, v{T2}')
    a(f'buffer_load_ushort v{B}, v{T3}, s[92:95], s33 offen')
    a('s_waitcnt vmcnt(0)')
    a(f'v_lshlrev_b32 v{B}, 16, v{B}')
    a.label('p0_nobias')
    a('s_waitcnt lgkmcnt(0)')
    a('v_add_f32 v48, v48, v49'); a('v_add_f32 v50, v50, v51'); a('v_add_f32 v52, v52, v53'); a('v_add_f32 v54, v54, v55')
    a('v_add_f32 v48, v48, v50'); a('v_add_f32 v52, v52, v54'); a('v_add_f32 v48, v48, v52')
    HI, MID, LO = 62, 63, 64
    split3(a, 48, HI, MID, LO, 65)
    pack_hi(a, 56, HI, HI); pack_hi(a, 57, HI, B); pack_hi(a, 58, B, B)
    pack_hi(a, 59, MID, LO)
    a('s_lshl_b32 s33, s69, 9'); a('s_add_u32 s33, s33, s70'); a(f's_add_u32 s33, s33, {32*1024}')
    a('s_mov_b32 exec_hi, 0')
    a(f'buffer_store_dwordx4 v[56:59], v{L16}, s[4:7], s33 offen sc1')
    a('s_mov_b64 exec, -1')
    a.label('p0_wsig')
    a('s_mov_b32 s96, 1')
    a('s_branch p0_out')
    a.label('p0_done')
    a('s_mov_b32 s96, 0')
    a.label('p0_out')
    a('s_and_b32 s33, s26, 7'); a(f's_mul_i32 s42, s33, {CST}'); a(f's_add_u32 s42, s42, {WCELL}')
    a(f's_cmp_lt_u32 s33, {NSIDE % 8}'); a(f's_cselect_b32 s69, {NSIDE//8}, {NSIDE//8 - 1}')

def gen_main(p):
    a = p.a
    p.entry(KNAME, 512, 256)
    a('s_cmp_ge_u32 s2, 256')
    a('s_cbranch_scc1 main_end')
    global stp0
    def stp0(name):
        if not STAMP: return
        if name not in STAMPS: STAMPS.append(name)
        i = STAMPS.index(name)
        a('s_memtime s[98:99]'); a('s_memrealtime s[100:101]'); a('s_waitcnt lgkmcnt(0)')
        a(f'v_writelane_b32 v11, s98, {2*i+2}')
        a(f'v_writelane_b32 v11, s100, {2*i+3}')
    stp0('start')
    phase0(a)
    a('s_load_dwordx2 s[88:89], s[0:1], 56')
    LN, L16, L4, T0, T1, T2, T3 = 1, 2, 3, 4, 5, 6, 7
    RES = 8
    if STAMP: a('v_mov_b32 v0, v11')
    a('s_and_b32 s13, s2, 7'); a('s_lshr_b32 s14, s2, 3')
    a('s_lshl_b32 s15, s13, 1'); a('s_and_b32 s29, s14, 1'); a('s_add_u32 s15, s15, s29')
    a('s_lshr_b32 s16, s14, 1')
    a('s_lshl_b32 s17, s15, 2'); a('s_and_b32 s29, s12, 1'); a('s_lshl_b32 s29, s29, 1'); a('s_add_u32 s17, s17, s29')
    a('s_lshr_b32 s29, s12, 1'); a('s_add_u32 s17, s17, s29')
    a('s_lshl_b32 s18, s13, 2'); a('s_and_b32 s29, s14, 3'); a('s_add_u32 s18, s18, s29')
    a('s_lshr_b32 s19, s14, 2')
    a('s_lshl_b32 s21, s18, 1'); a('s_lshr_b32 s29, s12, 1'); a('s_add_u32 s20, s21, s29')
    a('s_lshl_b32 s22, s19, 1'); a('s_and_b32 s29, s12, 1'); a('s_add_u32 s22, s22, s29'); a('s_xor_b32 s23, s22, 1')
    a('s_mov_b32 s24, s18'); a('s_mov_b32 s25, s19')
    a('s_mov_b32 s26, 0'); a('s_mov_b32 s27, 0'); a(f's_mov_b32 s28, {CNT}')
    a('s_mov_b32 s30, 0x0000ffff'); a('s_mov_b32 s31, 0x0000ffff')
    a('s_lshl_b32 s32, s20, 5'); a('s_lshl_b32 s29, s22, 1'); a('s_add_u32 s32, s32, s29'); a('s_lshl_b32 s32, s32, 10')
    a('s_mul_i32 s33, s12, 22'); a('s_mul_i32 s29, s12, 21'); a('s_add_u32 s29, s29, 1')
    a('s_cmp_ge_u32 s12, 2'); a('s_cselect_b32 s33, s29, s33')
    a('s_lshl_b32 s34, s16, 6'); a('s_add_u32 s34, s34, s17')
    a('s_lshr_b32 s35, s24, 1'); a('s_lshl_b32 s35, s35, 6')
    a('s_lshl_b32 s85, s17, 4'); a('s_add_u32 s36, s85, s16')
    a('s_lshl_b32 s37, s25, 2'); a('s_add_u32 s37, s37, s12'); a('s_lshl_b32 s37, s37, 6'); a('s_add_u32 s37, s37, s24')
    a('s_lshl_b32 s38, s18, 3'); a('s_add_u32 s38, s38, s12'); a('s_lshl_b32 s38, s38, 3')
    a('s_lshl_b32 s84, s20, 4'); a('s_add_u32 s84, s84, s22')
    a('s_lshl_b32 s86, s21, 4')
    a('s_mov_b32 s94, -1'); a('s_mov_b32 s95, 0')
    a(f'v_and_b32 v{T0}, 31, v{LN}'); a(f'v_lshlrev_b32 v{T0}, 10, v{T0}')
    a(f'v_lshrrev_b32 v{T1}, 5, v{LN}'); a(f'v_lshl_add_u32 v{T0}, v{T1}, 4, v{T0}')
    a('s_lshl_b32 s53, s20, 15'); a('s_lshl_b32 s54, s22, 6'); a('s_add_u32 s53, s53, s54')
    a(f'buffer_load_dwordx4 {v(RES,4)}, v{T0}, s[8:11], s53 offen')
    a(f'buffer_load_dwordx4 {v(RES+4,4)}, v{T0}, s[8:11], s53 offen offset:32')
    a('s_mov_b32 s41, s96'); a('s_mov_b32 s97, 2')
    a('s_waitcnt lgkmcnt(0)')
    srd(a, 8, 88, 2*L.MB)

    def st(name):
        if not STAMP: return
        if name not in STAMPS: STAMPS.append(name)
        i = STAMPS.index(name)
        assert i < 31
        a('s_memtime s[98:99]'); a('s_memrealtime s[100:101]'); a('s_waitcnt lgkmcnt(0)')
        a(f'v_writelane_b32 v0, s98, {2*i+2}')
        a(f'v_writelane_b32 v0, s100, {2*i+3}')

    def run_groups(gs):
        for g in gs:
            for t in g: a(t)

    def wtile_dma(qkv):
        ftstride = (16 if qkv else 1) * FT
        pre = [f's_mul_i32 s60, s16, {(1 if qkv else 3) * FT}',
               f's_add_u32 s60, s60, {L.WQKVF if qkv else L.W1F}',
               's_lshl_b32 s64, s12, 12',
               's_add_u32 s61, s60, s64',
               's_min_u32 s65, s12, 2',
               f's_mul_i32 s66, s65, {ftstride}',
               's_add_u32 s66, s66, s60',
               f's_add_u32 s66, s66, {32*1024}',
               f's_mul_i32 s65, s65, {FT}']
        groups = [pre]
        for half in range(2):
            for j in range(3):
                g = [f's_add_u32 m0, s64, {j*FT + half*16384}',
                     f's_add_u32 s62, s61, {j*ftstride + half*16384}']
                g += [f'buffer_load_dwordx4 v{L16}, s[4:7], s62 offen offset:{1024*q} sc1 lds' for q in range(4)]
                groups.append(g)
        groups.append([f's_add_u32 m0, s65, {32*1024}', 's_nop 0', f'buffer_load_dwordx4 v{L16}, s[4:7], s66 offen sc1 lds'])
        return groups

    def wq_third(region, nw):
        ftg = (1, 2, 0)[region]
        per = 32 // nw
        groups = [[f's_mul_i32 s60, s16, {FT}', 's_and_b32 s64, s12, 1', f's_mul_i32 s64, s64, {per*1024}', 's_add_u32 s61, s60, s64',
                   f's_add_u32 s61, s61, {L.WQKVF + 16*ftg*FT}', f's_add_u32 s60, s60, {L.WQKVF + 16*ftg*FT + 32*1024}']]
        for c in range(per // 4):
            g = [f's_add_u32 m0, s64, {region*FT + c*4096}', f's_add_u32 s62, s61, {c*4096}']
            g += [f'buffer_load_dwordx4 v{L16}, s[4:7], s62 offen offset:{1024*q} sc1 lds' for q in range(4)]
            groups.append(g)
        groups.append([f's_mov_b32 m0, {region*FT + 32*1024}', 's_nop 0', f'buffer_load_dwordx4 v{L16}, s[4:7], s60 offen sc1 lds'])
        return groups

    def poll_setup(ph, idx, add=0, out=None):
        e = out.append if out is not None else a
        e(f's_lshl_b32 s50, s{idx}, 8')
        e('s_add_u32 s50, s50, s28')
        e(f's_add_u32 s50, s50, {(FB_[ph] + add)*FS}')
        e(f'v_lshlrev_b32 v{T0}, {9 if ph == 0 else 8}, v{LN}')
    def setx(n): a('s_mov_b64 exec, ' + ('s[94:95]' if n == 32 else str((1 << n) - 1)))
    def poll_load(n, off=0):
        setx(n)
        a(f'buffer_load_dword v{T1}, v{T0}, s[4:7], s50 offen offset:{off} sc1')
        a('s_mov_b64 exec, -1')
    def poll_test(n, go):
        setx(n)
        a(f'v_cmp_ne_u32 vcc, 1, v{T1}')
        a('s_mov_b64 exec, -1')
        a('s_cmp_eq_u64 vcc, 0')
        a(f's_cbranch_scc1 {go}')
    def poll_spin(n, go, hook=None, off=0):
        lp = a.lab('poll')
        a('s_mov_b32 s51, 0')
        a.label(lp)
        poll_load(n, off)
        a('s_add_u32 s51, s51, 1')
        a('s_waitcnt vmcnt(0)')
        if hook: hook()
        poll_test(n, go)
        a(f's_cmp_lt_u32 s51, {SPIN}')
        a(f's_cbranch_scc1 {lp}')
        a.label(go)
    def poll(ph, idx, add=0):
        poll_setup(ph, idx, add)
        poll_spin(NP[ph], a.lab('go'))
    def sig_addr(ph, idx, add=0, out=None):
        e = out.append if out is not None else a
        e(f's_lshl_b32 s42, s{idx}, 8')
        e('s_add_u32 s42, s42, s28')
        e(f's_add_u32 s42, s42, {(FB_[ph] + add)*FS}')
        e('s_mov_b32 s69, -1')
        e('s_mov_b32 s97, 0')
    def sig_atomic():
        a('s_mov_b64 exec, 1')
        a('v_mov_b32 v0, 1')
        if True:
            l1 = a.lab('sa'); l2 = a.lab('sb')
            a('s_cmp_eq_u32 s69, -1'); a(f's_cbranch_scc0 {l1}')
            if int(OPT.get('fl', 1)) and not STAMP:
                a('s_mov_b64 exec, s[94:95]'); a('v_mov_b32 v0, 1')
            a(f'buffer_store_dword v0, v{L4}, s[4:7], s42 offen sc1')
            a(f's_branch {l2}')
            a.label(l1)
        a(f'buffer_atomic_add v0, v{L4}, s[4:7], s42 offen sc0 sc1')
        a.label(l2)
        a('s_mov_b64 exec, -1')
    def sig_finish(ph=None):
        sk = a.lab('notlast')
        a('v_readfirstlane_b32 s52, v0')
        a('s_cmp_lg_u32 s52, s69')
        a(f's_cbranch_scc1 {sk}')
        a('s_mov_b64 exec, 1')
        a('v_mov_b32 v0, 1')
        a(f'buffer_store_dword v0, v{L4}, s[4:7], s42 offen offset:{FOFF} sc1')
        a('s_mov_b64 exec, -1')
        a.label(sk)
    def signal(ph, idx, add=0):
        sig_addr(ph, idx, add)
        a('s_waitcnt vmcnt(0)')
        sig_atomic()
        a('s_waitcnt vmcnt(0)')
        sig_finish(ph)

    def gemmA_pre(qkv):
        xi0 = 0 if qkv else 1
        stsz = L.ST[1] - L.ST[0]
        a('s_lshl_b32 s47, s17, 15'); a('s_lshl_b32 s29, s27, 1'); a('s_add_u32 s47, s47, s29'); a(f's_add_u32 s47, s47, {L.X[xi0]}')
        a('s_lshl_b32 s48, s17, 12'); a(f's_mul_i32 s29, s26, {2*stsz}'); a('s_add_u32 s48, s48, s29'); a(f's_add_u32 s48, s48, {L.ST[xi0]}')
        a('s_lshl_b32 s55, s12, 10'); a(f's_add_u32 s55, s55, {SCR + 1024}')
        a(f'v_add_u32 v64, s55, v{L16}')
        a(f'v_add_u32 v65, s55, v{L4}')
        a(f'v_add_u32 v70, {FT}, v{L16}')
        a(f'v_add_u32 v71, {2*FT}, v{L16}')
        if qkv:
            a('s_lshl_b32 s56, s16, 17'); a('s_lshl_b32 s57, s17, 10'); a('s_add_u32 s56, s56, s57'); a('s_add_u32 s56, s56, s27')
            a('s_add_u32 s57, s56, 0x10000')
            a(f's_add_u32 s58, s56, {L.K[0]}'); a(f's_add_u32 s59, s57, {L.K[0]}')
            a(f's_add_u32 s54, s56, {L.V[0]}')
            a('s_lshl_b32 s55, s12, 8'); a(f's_add_u32 s55, s55, {SCR}')
            a(f'v_add_u32 v76, s55, v{L4}')
            a(f'v_lshrrev_b32 v77, 5, v{LN}'); a('v_lshlrev_b32 v77, 4, v77'); a('v_add_u32 v77, s55, v77')
            a(f'v_bfe_u32 v78, v{LN}, 4, 1'); a('v_lshlrev_b32 v78, 16, v78')
            a(f'v_lshrrev_b32 v79, 5, v{LN}'); a('v_lshl_add_u32 v78, v79, 8, v78')
            a(f'v_and_b32 v79, 15, v{LN}'); a('v_lshl_add_u32 v78, v79, 4, v78')
        else:
            actsz = L.ACT[1] - L.ACT[0]
            a('s_mul_i32 s56, s17, 86'); a('s_mul_i32 s57, s16, 6'); a('s_add_u32 s56, s56, s57')
            a('s_lshl_b32 s56, s56, 10'); a(f's_mul_i32 s57, s26, {actsz}'); a('s_add_u32 s56, s56, s57')
            a(f's_add_u32 s56, s56, {L.ACT[0]}'); a('s_add_u32 s57, s56, 4096')
            a('s_cmp_eq_u32 s16, 14')
            a(f's_cselect_b32 s29, {64*L.MB}, 0')
            a('s_add_u32 s58, s56, s29'); a('s_add_u32 s57, s57, s29')
            a(f'v_mov_b32 v67, {CNTL}'); a('v_mov_b32 v79, 1')

    def gemmA(qkv, first_sync=None):
        tag = 'qkv' if qkv else 'ffn1'
        RS, RQ = 68, 69
        WA = [71, L16, 70] if qkv else [L16, 70, 71]
        XE = 72
        STV = 16
        WS = [32 + 4*i for i in range(8)]
        ACC = [80 + 16*i for i in range(3)]
        XF = 128
        fa, fb, fc = (1, 2, 0) if qkv else (0, 1, 2)
        nvm = [0]; at = {}
        def xload(i):
            a(f'buffer_load_dwordx4 {v(XF+4*i,4)}, v{L16}, s[4:7], s47 offen offset:{1024*(i%4)} sc1'); nvm[0] += 1
            if i % 4 == 3: a('s_add_u32 s47, s47, 4096')
            at[i] = nvm[0]
        PRE = int(OPT['apre'])
        for i in range(6): xload(i)
        for i in range(4):
            a(f'buffer_load_dwordx4 {v(STV+4*i,4)}, v{L16}, s[4:7], s48 offen offset:{1024*i} sc1'); nvm[0] += 1
        for i in range(6, PRE): xload(i)
        if first_sync: first_sync(nvm[0])
        sv = []
        for stp in (8, 4):
            for i in range(stp): sv.append(f'v_add_f32 v{STV+i}, v{STV+i}, v{STV+i+stp}')
        sv.append(f'ds_write_b128 v64, {v(STV,4)}')
        sv.append(f'ds_read2_b32 {v(STV+4,2)}, v65 offset0:0 offset1:64')
        sv.append(f'ds_read2_b32 {v(STV+6,2)}, v65 offset0:128 offset1:192')
        sv.append('WAITDS')
        sv.append(f'v_add_f32 v{STV+4}, v{STV+4}, v{STV+5}')
        sv.append(f'v_add_f32 v{STV+6}, v{STV+6}, v{STV+7}')
        sv.append(f'v_add_f32 v{STV}, v{STV+4}, v{STV+6}')
        sv.append(f'v_mov_b32 v{STV+1}, v{STV}')
        sv.append(f'v_permlane32_swap_b32 v{STV}, v{STV+1}')
        sv.append(f'v_mul_f32 v{STV}, {f32(-1.0/512)}, v{STV}')
        sv.append(f'v_mul_f32 v{STV+1}, {f32(1.0/512)}, v{STV+1}')
        sv.append(f'v_fma_f32 v{STV+1}, -v{STV}, v{STV}, v{STV+1}')
        sv.append(f'v_max_f32 v{STV+1}, 0, v{STV+1}')
        sv.append(f'v_add_f32 v{STV+1}, {f32(1e-5)}, v{STV+1}')
        sv.append(f'v_rsq_f32 v{RS}, v{STV+1}')
        sv.append(f'v_mul_f32 v{STV+1}, v{STV+1}, v{RS}')
        r = sv.append
        MH, MM, ML, SH, SM, SL, TT = STV+2, STV+3, STV+4, STV+5, STV+6, STV+7, STV+8
        split3(r, STV, MH, MM, ML, TT); split3(r, STV+1, SH, SM, SL, TT)
        pack_hi(r, XE, MH, MM); pack_hi(r, XE+1, ML, SH); pack_hi(r, XE+2, SM, SL)
        pack_hi(r, XE+3, MH, MH)
        sv.append(f'v_mul_f32 v{RQ}, {f32(L.QSCALE if qkv else 1.4426950408889634)}, v{RS}')
        if not qkv: sv.append(f'v_mul_f32 v66, -2.0, v{RS}')
        if qkv:
            sv.append(f'ds_write_b32 v76, v{RS}')
            for j in range(4): sv.append(f'ds_read_b128 {v(STV+4*j,4)}, v77 offset:{32*j}')
        def epi(f, pk, gs=(0, 1)):
            A = ACC[f]; out = []
            def mul(d, s0, s1b, n, bcast):
                if pk:
                    for r_ in range(0, n, 2):
                        if bcast:
                            base = s1b & ~1; o = s1b & 1
                            out.append(f'v_pk_mul_f32 {v(d+r_,2)}, {v(s0+r_,2)}, {v(base,2)} op_sel:[0,{o}] op_sel_hi:[1,{o}]')
                        else:
                            out.append(f'v_pk_mul_f32 {v(d+r_,2)}, {v(s0+r_,2)}, {v(s1b+r_,2)}')
                else:
                    for r_ in range(n): out.append(f'v_mul_f32 v{d+r_}, v{s1b if bcast else s1b+r_}, v{s0+r_}')
            for g in gs:
                B = A + 8*g
                if qkv:
                    if f < 2: mul(B, B, RQ if f == 0 else RS, 8, True)
                    else: mul(B, B, STV + 8*g, 8, False)
                else:
                    U = STV
                    mul(U, B, RQ, 8, True)
                    for r_ in range(8): out.append(f'v_exp_f32 v{U+r_}, v{U+r_}')
                    if pk:
                        for r_ in range(0, 8, 2): out.append(f'v_pk_add_f32 {v(U+8+r_,2)}, {v(U+r_,2)}, 2.0 op_sel_hi:[1,0]')
                        for r_ in range(0, 8, 2): out.append(f'v_pk_fma_f32 {v(U+r_,2)}, {v(U+r_,2)}, {v(U+8+r_,2)}, 2.0 op_sel_hi:[1,1,0]')
                    else:
                        for r_ in range(8): out.append(f'v_add_f32 v{U+8+r_}, 2.0, v{U+r_}')
                        for r_ in range(8): out.append(f'v_fma_f32 v{U+r_}, v{U+r_}, v{U+8+r_}, 2.0')
                    for r_ in range(8): out.append(f'v_rcp_f32 v{U+r_}, v{U+r_}')
                    if pk:
                        for r_ in range(0, 8, 2): out.append(f'v_pk_fma_f32 {v(U+r_,2)}, {v(U+r_,2)}, {v(66,2)}, {v(RS,2)} op_sel_hi:[1,0,0]')
                    else:
                        for r_ in range(8): out.append(f'v_fma_f32 v{U+r_}, v{U+r_}, v66, v{RS}')
                    mul(B, B, U, 8, False)
                for r_ in range(4): out.append(f'v_cvt_pk_bf16_f32 v{B+r_}, v{B+2*r_}, v{B+2*r_+1}')
                if qkv:
                    if f < 2: out.append(f'buffer_store_dwordx4 {v(B,4)}, v{L16}, s[4:7], s{56+2*f+g} offen sc1')
                    else: out.append(f'buffer_store_dwordx4 {v(B,4)}, v78, s[4:7], s54 offen offset:{512*g} sc1')
                else:
                    k = 2*f + g
                    sreg = 56 if k < 2 else (58 if k < 4 else 57)
                    out.append(f'buffer_store_dwordx4 {v(B,4)}, v{L16}, s[4:7], s{sreg} offen offset:{1024*(k%4)} sc1')
            return out
        def cost(t):
            return 8 if t.startswith(TRANS) else (16 if t.startswith('buffer') else 4)
        NB = int(OPT['nb'])
        order = []; nb = 0
        for s_ in range(33):
            order.append((fa, s_))
            while nb < NB and nb + 1 <= (s_ + 1) * NB / 33.0:
                order.append((fb, nb)); nb += 1
        order += [(fb, k) for k in range(nb, 33)] + [(fc, k) for k in range(33)]
        last = {f: max(i for i, o in enumerate(order) if o[0] == f) for f in range(3)}
        nds = [0]; dsat = {}
        def rd(i):
            f, k = order[i]
            if qkv and f == fc and k == 0 and int(OPT.get('fuse', 1)):
                lp = a.lab('qspin'); ok = a.lab('qok')
                a(f'v_mov_b32 v66, {CNTL}'); a('s_mov_b32 s51, 0')
                a.label(lp)
                a('ds_read_b32 v67, v66 offset:8')
                a('s_add_u32 s51, s51, 1')
                a('s_waitcnt lgkmcnt(0)')
                a('v_readfirstlane_b32 s52, v67')
                a('s_cmp_ge_u32 s52, 2'); a(f's_cbranch_scc1 {ok}')
                a(f's_cmp_lt_u32 s51, {8*SPIN}'); a(f's_cbranch_scc1 {lp}')
                a.label(ok)
            a(f'ds_read_b128 {v(WS[i%8],4)}, v{WA[f]} offset:{k*1024}'); nds[0] += 1; dsat[i] = nds[0]
        AH = 6
        for i in range(AH): rd(i)
        nx = PRE; xw = -1
        q = list(sv); ready = {}; units = []
        N = len(order)
        for i, (f, k) in enumerate(order):
            w = f'lgkmcnt({min(15, nds[0] - dsat[i])})'
            if k < 32 and k > xw:
                w = f'vmcnt({nvm[0] - at[k]}) ' + w; xw = k
            if k == 32: assert not any(t in q for t in sv), 'stats not finished'
            if i > last[fa] + 1 and (i - last[fa]) % 2 == 0: pass
            elif i > last[fa] and i + 1 < N: a(f's_waitcnt lgkmcnt({min(15, nds[0] - dsat[i+1])})')
            else: a(f's_waitcnt {w}')
            xf = v(XF + 4*k, 4) if k < 32 else v(XE, 4)
            wf = v(WS[i % 8], 4)
            cc = '0' if k == 0 else v(ACC[f], 16)
            if qkv and f == 2: a(f'{MFMA} {v(ACC[f],16)}, {xf}, {wf}, {cc}')
            else: a(f'{MFMA} {v(ACC[f],16)}, {wf}, {xf}, {cc}')
            if i + AH < N: rd(i + AH)
            if not qkv and i in (last[fa], last[fb]):
                a('s_mov_b64 exec, 1')
                a(f'ds_add_u32 v67, v79 offset:{0 if i == last[fa] else 4}'); nds[0] += 1
                a('s_mov_b64 exec, -1')
            budget = 16
            if f == fa and nx < 32:
                xload(nx); nx += 1; budget = 8
            CAP = int(OPT.get('cap', 24))
            for ff in (fa, fb):
                if i == last[ff] + 3: units.extend([(ff, 0), (ff, 1)])
            if not q and units and (CAP == 0 or sum(map(cost, epi(units[0][0], False, (0,)))) <= 1.5*CAP*(N - i)):
                u_ = units.pop(0); q += epi(u_[0], False, (u_[1],))
            if xw >= 6:
                if i > last[fa]:
                    if CAP: budget = CAP
                    else:
                        rem = sum(map(cost, q)) + (len(units) + (2 if i < last[fb] + 3 else 0)) * sum(map(cost, epi(fb, False, (0,))))
                        budget = max(16, -(-rem // max(1, N - i)))
                while q and budget >= min(cost(q[0]), 8):
                    if q[0] == 'WAITDS':
                        if 'mark' not in ready: ready['mark'] = nds[0]
                        if dsat[i] < ready['mark']: break
                        q.pop(0); continue
                    t = q.pop(0); budget -= cost(t); a(t)
                    if t.startswith('buffer'): nvm[0] += 1
                    if t.startswith('ds_'): nds[0] += 1
        for t in q: a(t)
        st(tag + ' loop')
        for u_ in units:
            for t in epi(u_[0], True, (u_[1],)): a(t)
        for t in epi(fc, True): a(t)

    WOA = 0; W2A = 64
    NW2PRE = 18
    def wB_loads(wo, steps):
        KS = 32 if wo else W2KS
        base = WOA if wo else W2A
        first = steps[0]
        pre = []
        for i, ft in enumerate((22, 23)):
            pre.append(f's_mul_i32 s{67+i}, s{ft}, {KS}')
            if wo:
                pre.append('s_lshl_b32 s29, s12, 3'); pre.append(f's_add_u32 s{67+i}, s{67+i}, s29')
            else:
                pre.append(f's_add_u32 s{67+i}, s{67+i}, s33')
            pre.append(f's_lshl_b32 s{67+i}, s{67+i}, 10')
            pre.append(f's_add_u32 s{67+i}, s{67+i}, {(L.WOF if wo else L.W2F) + first*1024}')
        groups = [pre]
        for n0 in range(0, len(steps), 4):
            for i in range(2):
                g = [f'buffer_load_dwordx4 {areg(base + 8*stp + 4*i)}, v{L16}, s[4:7], s{67+i} offen offset:{1024*q} sc1' for q, stp in enumerate(steps[n0:n0+4])]
                g.append(f's_add_u32 s{67+i}, s{67+i}, 4096')
                groups.append(g)
        return groups

    BACC = [[16 + 16*(2*i+j) for j in range(2)] for i in range(2)]
    BAD = 240
    def gemmB_pre(wo):
        KS = 32 if wo else 86
        actsz = L.ACT[1] - L.ACT[0]
        a(f's_mul_i32 s56, s21, {KS}')
        if wo:
            a('s_lshl_b32 s29, s12, 3'); a('s_add_u32 s56, s56, s29')
        else:
            a('s_add_u32 s56, s56, s33')
        a('s_lshl_b32 s56, s56, 10')
        if wo:
            a('s_add_u32 s56, s56, s27'); a(f's_add_u32 s56, s56, {L.O[0]}')
        else:
            a(f's_mul_i32 s29, s26, {actsz}'); a('s_add_u32 s56, s56, s29'); a(f's_add_u32 s56, s56, {L.ACT[0]}')
        a(f's_add_u32 s57, s56, {KS*1024}')
        xo = 1 if wo else 2
        stsz = L.ST[1] - L.ST[0]
        a('s_lshl_b32 s58, s27, 1'); a('s_add_u32 s58, s58, s32'); a(f's_add_u32 s58, s58, {L.X[xo]}')
        a('s_lshl_b32 s59, s20, 12'); a('s_lshl_b32 s54, s22, 8'); a('s_add_u32 s59, s59, s54')
        a(f's_mul_i32 s54, s26, {2*stsz}'); a('s_add_u32 s59, s59, s54'); a(f's_add_u32 s59, s59, {L.ST[xo]}')
        for i in range(2):
            for j in range(2):
                a('s_and_b32 s54, s12, 1')
                if j: a('s_xor_b32 s54, s54, 1')
                a(f's_add_u32 s54, s54, {2*i}')
                a('s_xor_b32 s55, s54, s12')
                a('s_mul_i32 s54, s54, 3'); a('s_add_u32 s54, s54, s55'); a('s_lshl_b32 s54, s54, 12')
                a(f's_add_u32 s54, s54, {RED - 4096}')
                a(f'v_add_u32 v{BAD+2*i+j}, s54, v{L16}')
        a(f's_mul_i32 s55, s12, {3*4096}'); a(f's_add_u32 s55, s55, {RED}')
        a(f'v_add_u32 v{BAD+4}, s55, v{L16}')
        if not wo:
            a(f'v_and_b32 v{BAD+5}, 31, v{LN}'); a(f'v_lshlrev_b32 v{BAD+5}, 10, v{BAD+5}')
            a(f'v_lshrrev_b32 v{BAD+6}, 5, v{LN}'); a(f'v_lshl_add_u32 v{BAD+5}, v{BAD+6}, 4, v{BAD+5}')
            a('s_lshl_b32 s53, s20, 15'); a('s_lshl_b32 s54, s22, 6'); a('s_add_u32 s53, s53, s54')

    def sig_try(state, wait=None):
        e = a.lab('sge')
        a(f's_cmp_lg_u32 s41, {state}')
        a(f's_cbranch_scc1 {e}')
        if wait is not None: a(f's_waitcnt vmcnt({wait})')
        if state == 1:
            sig_atomic(); a('s_mov_b32 s41, s97')
        else:
            sig_finish(); a('s_mov_b32 s41, 0')
        a.label(e)
    def sig_slot(wait):
        d = a.lab('sgd'); e = a.lab('sge')
        a('s_cmp_lg_u32 s41, 1')
        a(f's_cbranch_scc1 {d}')
        a(f's_waitcnt vmcnt({wait})')
        sig_atomic(); a('s_mov_b32 s41, s97')
        a(f's_branch {e}')
        a.label(d)
        a('s_mov_b64 exec, 2')
        a(f'buffer_load_dword v0, v{L4}, s[4:7], 0 offen')
        a('s_mov_b64 exec, -1')
        a.label(e)
    def sig_step():
        sig_try(2); sig_try(1)
    def sig_block():
        sig_try(1, 0); sig_try(2, 0)

    def gemmB(wo, tail=()):
        tag = 'wo' if wo else 'ffn2'
        nst = 8 if wo else 22
        wbase = WOA if wo else W2A
        FB = 80
        NSL = 24
        RB = 176
        WIN = min(int(OPT['bwin']), nst)
        LAG = 3
        st(tag + 'A go')
        class St: pass
        z = St(); z.nvm = 0; z.at = {}; z.issued = 0; z.tail = list(tail)
        def xr(n): return FB + 4*(n % NSL)
        def load(z):
            n = z.issued; i, k = divmod(n, nst)
            a(f'buffer_load_dwordx4 {v(xr(n),4)}, v{L16}, s[4:7], s{56+i} offen offset:{1024*(k%4)} sc1'); z.nvm += 1
            if k % 4 == 3: a(f's_add_u32 s{56+i}, s{56+i}, 4096')
            z.at[n] = z.nvm; z.issued += 1
        def mm(i, j, k):
            cc = '0' if k == 0 else v(BACC[i][j],16)
            a(f'{MFMA} {v(BACC[i][j],16)}, {areg(wbase+8*k+4*j)}, {v(xr(i*nst+k),4)}, {cc}')
        def zero0(n):
            if wo: return
            sk = a.lab('ffn2_s0')
            a('s_cmp_lt_u32 s12, 2')
            a(f's_cbranch_scc1 {sk}')
            for r_ in range(4): a(f'v_mov_b32 v{xr(n)+r_}, 0')
            a.label(sk)
        def wr(i, j): return [f'ds_write_b128 v{BAD+2*i+j}, {v(BACC[i][j]+4*q,4)} offset:{q*1024}' for q in range(4)]
        def epilogue(i, pk):
            A0 = BACC[i][0]; o = []
            for k in range(3):
                for q in range(4): o.append(f'ds_read_b128 {v(RB+16*k+4*q,4)}, v{BAD+4} offset:{k*4096 + q*1024}')
            U = RB + 48
            for r_ in range(8):
                o.append(f'v_lshlrev_b32 v{U+2*r_}, 16, v{RES+r_}')
                o.append(f'v_and_b32 v{U+2*r_+1}, 0xffff0000, v{RES+r_}')
            def addv(src):
                if pk:
                    for r_ in range(0, 16, 2): o.append(f'v_pk_add_f32 {v(A0+r_,2)}, {v(A0+r_,2)}, {v(src+r_,2)}')
                else:
                    for r_ in range(16): o.append(f'v_add_f32 v{A0+r_}, v{A0+r_}, v{src+r_}')
            addv(U)
            for k in range(3):
                o.append(f's_waitcnt lgkmcnt({8-4*k})')
                addv(RB + 16*k)
            for r_ in range(8): o.append(f'v_cvt_pk_bf16_f32 v{RES+r_}, v{A0+2*r_}, v{A0+2*r_+1}')
            o.append('STORE')
            if pk:
                o.append(f'v_pk_add_f32 {v(RB,2)}, {v(A0,2)}, {v(A0+2,2)}')
                o.append(f'v_pk_mul_f32 {v(RB+2,2)}, {v(A0,2)}, {v(A0,2)}')
                o.append(f'v_pk_fma_f32 {v(RB+2,2)}, {v(A0+2,2)}, {v(A0+2,2)}, {v(RB+2,2)}')
                for r_ in range(4, 16, 2):
                    o.append(f'v_pk_add_f32 {v(RB,2)}, {v(RB,2)}, {v(A0+r_,2)}')
                    o.append(f'v_pk_fma_f32 {v(RB+2,2)}, {v(A0+r_,2)}, {v(A0+r_,2)}, {v(RB+2,2)}')
                o.append(f'v_add_f32 v{T2}, v{RB}, v{RB+1}')
                o.append(f'v_add_f32 v{T3}, v{RB+2}, v{RB+3}')
            else:
                o.append(f'v_add_f32 v{T2}, v{A0}, v{A0+1}')
                o.append(f'v_mul_f32 v{T3}, v{A0}, v{A0}')
                o.append(f'v_fmac_f32 v{T3}, v{A0+1}, v{A0+1}')
                for r_ in range(2, 16):
                    o.append(f'v_add_f32 v{T2}, v{T2}, v{A0+r_}')
                    o.append(f'v_fmac_f32 v{T3}, v{A0+r_}, v{A0+r_}')
            o.append(f'v_permlane32_swap_b32 v{T2}, v{T3}')
            o.append(f'v_add_f32 v{T2}, v{T2}, v{T3}')
            o.append(f'buffer_store_dword v{T2}, v{L4}, s[4:7], s59 offen sc1')
            o.append('OWED')
            return o
        def emit(t, z):
            if t == 'STORE':
                if not wo:
                    nf = a.lab('notfinal'); dn = a.lab('stored')
                    a('s_cmp_eq_u32 s26, 0')
                    a(f's_cbranch_scc1 {nf}')
                    for g in range(2):
                        a(f'v_permlane32_swap_b32 v{RES+4*g}, v{RES+4*g+2}')
                        a(f'v_permlane32_swap_b32 v{RES+4*g+1}, v{RES+4*g+3}')
                        a(f'buffer_store_dwordx4 {v(RES+4*g,4)}, v{BAD+5}, s[8:11], s53 offen offset:{32*g} {OPT.get("of", "").replace("_", " ")}')
                    a(f's_branch {z.fin}')
                    a.label(nf)
                a(f'buffer_store_dwordx4 {v(RES,4)}, v{L16}, s[4:7], s58 offen sc1')
                a(f'buffer_store_dwordx4 {v(RES+4,4)}, v{L16}, s[4:7], s58 offen offset:1024 sc1')
                z.nvm += 2
            elif t == 'OWED':
                sig_addr(2 if wo else 4, 84)
                a('s_mov_b32 s41, 1')
                z.owed = z.nvm
            else:
                a(t)
                if t.startswith('buffer'): z.nvm += 1
        def part(i, z, kat=None):
            for k in range(nst):
                n = i*nst + k
                a(f's_waitcnt vmcnt({z.nvm - z.at[n]})')
                if k == 0:
                    if i == 1 and wo: sig_step(); z.mark = z.nvm
                    zero0(n)
                mm(i, 1, k)
                if i == 0 and k == (4 if not (SLOT and (wo or SLOT == 2)) else nst - 1): sig_try(2, z.nvm - z.mark)
                W2 = int(OPT.get('bwin2', 22))
                if not wo and i == 1 and W2 >= nst and k == nst - 1: sig_try(1, 0)
                if not wo and i == 1 and W2 < nst and k == W2: sig_try(1)
                if not wo and i == 1 and W2 < nst and k == nst - 1: sig_try(2, 0)
                if z.issued < (i + 1)*nst: load(z)
                elif z.tail and (wo or k >= 10):
                    for t in z.tail.pop(0): emit(t, z)
                if k < nst - LAG: mm(i, 0, k)
            assert not z.tail, len(z.tail)
            for k in range(nst - LAG, nst): mm(i, 0, k)
        def writes(i, wt):
            sk = a.lab('b_self')
            for t in wr(i, 1): a(t)
            a('s_lshr_b32 s54, s12, 1')
            a(f's_cmp_eq_u32 s54, {i}')
            a(f's_cbranch_scc1 {sk}')
            for t in wr(i, 0): a(t)
            a.label(sk)
            a(wt)
        def owner_epi(i):
            sk = a.lab('b_notown')
            a('s_lshr_b32 s54, s12, 1')
            a(f's_cmp_lg_u32 s54, {i}')
            a(f's_cbranch_scc1 {sk}')
            y = St(); y.nvm = 0; y.fin = sk
            for t in epilogue(i, True): emit(t, y)
            a.label(sk)
        import copy
        SLOT = int(OPT.get('slot', 1))
        if SLOT and (wo or SLOT == 2):
            for _ in range(nst): load(z)
            sig_slot(nst); z.nvm += 1; z.mark = z.nvm
        else:
            for _ in range(4): load(z)
            sig_try(2, 4); sig_try(1, 4); z.mark = z.nvm
            for _ in range(WIN - 4): load(z)
        if wo:
            TA = int(OPT.get('ta', 1))
            z.tail = list(tail) if TA else []
            part(0, z)
            poll_setup(1, 38, add=32)
            writes(0, 's_waitcnt lgkmcnt(0)')
            a('s_barrier')
            owner_epi(0)
            if int(OPT.get('w1l', 0)) == 2:
                sig_try(1, 0); run_groups(wtile_dma(False))
            st(tag + 'A end')
            poll_spin(8, a.lab('go'), hook=sig_step)
            st(tag + 'B go')
            for _ in range(WIN): load(z)
            z.tail = [] if TA else list(tail)
            part(1, z)
            sig_try(2, z.nvm - z.mark)
        elif int(OPT.get('fuse', 1)):
            KC = nst - WIN + int(OPT.get('kc', 0))
            tl = list(z.tail)
            for k in range(nst):
                a(f's_waitcnt vmcnt({z.nvm - z.at[k]})')
                if k == 0: zero0(0)
                mm(0, 1, k)
                if k == 4: sig_try(2, z.nvm - z.mark)
                if k == KC:
                    mm(0, 0, k)
                    a('s_cmp_lg_u32 s12, 3')
                    a('s_cbranch_scc1 f2_nopoll')
                    poll(3, 86, add=16)
                    a.label('f2_nopoll')
                    a('s_barrier')
                    st(tag + 'B go')
                    for _ in range(KC - (nst - WIN) + 1): load(z)
                    continue
                if z.issued < nst or k > KC: load(z)
                mm(0, 0, k)
            own = a.lab('f2_own'); jn = a.lab('f2_join')
            a('s_cmp_lt_u32 s12, 2')
            a(f's_cbranch_scc1 {own}')
            for variant in (1, 0):
                y = copy.deepcopy(z); y.fin = a.lab('f2_fin')
                if variant == 0: a.label(own)
                q = ['NOP', 'NOP'] + wr(0, 1) + (wr(0, 0) if variant == 1 else ['NOP']*4) + ['NOP', 'NOP', 's_waitcnt lgkmcnt(0)', 's_barrier']
                nsync = len(q)
                if variant == 0: q += epilogue(0, False)
                done_ = 0
                for k in range(nst):
                    n = nst + k
                    a(f's_waitcnt vmcnt({y.nvm - y.at[n]})')
                    if k == 0: zero0(n)
                    for j in (1, 0):
                        if j == 0 and k >= nst - LAG: continue
                        mm(1, j, k)
                        if j == 1 and y.issued < 2*nst: load(y)
                        for _ in range(2 if done_ < nsync else 6):
                            if not q: break
                            t = q.pop(0); done_ += 1
                            if t == 'NOP': continue
                            if t == 'STORE':
                                nf = a.lab('notfinal'); dn = a.lab('stored')
                                a('s_cmp_eq_u32 s26, 0'); a(f's_cbranch_scc1 {nf}')
                                for g in range(2):
                                    a(f'v_permlane32_swap_b32 v{RES+4*g}, v{RES+4*g+2}')
                                    a(f'v_permlane32_swap_b32 v{RES+4*g+1}, v{RES+4*g+3}')
                                    a(f'buffer_store_dwordx4 {v(RES+4*g,4)}, v{BAD+5}, s[8:11], s53 offen offset:{32*g}')
                                a(f's_branch {dn}')
                                a.label(nf)
                                a(f'buffer_store_dwordx4 {v(RES,4)}, v{L16}, s[4:7], s58 offen sc1')
                                a(f'buffer_store_dwordx4 {v(RES+4,4)}, v{L16}, s[4:7], s58 offen offset:1024 sc1')
                                a.label(dn)
                                y.nvm += 2
                            else: emit(t, y)
                assert not q, len(q)
                for k in range(nst - LAG, nst): mm(1, 0, k)
                if variant == 1:
                    a(f's_branch {jn}')
                else:
                    a('s_cmp_eq_u32 s26, 1'); a('s_cselect_b32 s41, 0, s41')
                    sig_try(1, 0)
            a.label(jn)
            FUSED = True
        else:
            nod = a.lab('f2_nodma'); jn = a.lab('f2_join')
            a('s_lshl_b32 s54, s26, 2'); a('s_add_u32 s54, s54, s12')
            a('s_cmp_ge_u32 s54, 2')
            a(f's_cbranch_scc1 {nod}')
            y = copy.deepcopy(z)
            part(0, y)
            a(f's_branch {jn}')
            a.label(nod)
            z.tail = []
            part(0, z)
            a.label(jn)
            writes(0, 's_waitcnt lgkmcnt(0)')
            a('s_cmp_lg_u32 s12, 3')
            a('s_cbranch_scc1 f2_nopoll')
            poll(3, 86, add=16)
            a.label('f2_nopoll')
            st(tag + 'A end')
            a('s_barrier')
            st(tag + 'B go')
            for _ in range(int(OPT.get('bwin2', 22))): load(z)
            owner_epi(0)
            part(1, z)
        poll_setup(2 if wo else 4, 85)
        poll_load(16)
        writes(1, 's_waitcnt lgkmcnt(0)')
        a('s_barrier')
        owner_epi(1)
        st(tag + 'B end')
        if not wo and int(OPT.get('fuse', 1)):
            sk_ = a.lab('f2_nc')
            sig_try(1, 0)
            a('s_lshr_b32 s54, s12, 1'); a('s_andn2_b32 s54, s54, s26'); a(f's_cbranch_scc0 {sk_}')
            run_groups(tail[:3]); sig_try(2, 8); run_groups(tail[3:])
            a('s_waitcnt vmcnt(0)')
            a(f'v_mov_b32 v{T2}, {CNTL}'); a(f'v_mov_b32 v{T3}, 1')
            a('s_mov_b64 exec, 1'); a(f'ds_add_u32 v{T2}, v{T3} offset:8'); a('s_mov_b64 exec, -1')
            a.label(sk_)
        sig_block()
        st(tag + ' sig')

    SB = [16, 32]; PB = [48, 52]; OA = [56, 72]; QF = [88, 92]; VR = 96
    TMP = 240
    def kreg(kt): return v(224 + 4*kt, 4) if kt < 4 else areg(208 + 4*(kt-4))
    def vreg(kt, g): return v(VR + 8*kt + 4*g, 4)
    VOFF, PADDR = T2, T3
    PA4 = TMP + 12
    def qaddr(p_, sreg=53):
        return [f's_add_u32 s{sreg}, s12, {1 + p_}', f's_and_b32 s{sreg}, s{sreg}, 3', f's_lshl_b32 s{sreg}, s{sreg}, 11', f's_add_u32 s{sreg}, s{sreg}, s{48 + (p_ >> 2)}']
    def attn_pre():
        a(f'v_and_b32 v{T0}, 27, v{LN}')
        a(f'v_cmp_eq_u32 vcc, 16, v{T0}')
        a(f'v_mov_b32 v{T1}, {ONES}')
        a(f'v_cndmask_b32 v{VR}, 0, v{T1}, vcc')
        a(f'v_cndmask_b32 v{VR+1}, 0, v{T1}, vcc')
        for r_ in range(2, 128, 2): a(f'v_pk_mov_b32 {v(VR+r_,2)}, {v(VR,2)}, {v(VR,2)}')
        a.label('main_attpre2')
        a(f'v_and_b32 v{T1}, 15, v{LN}'); a(f'v_lshlrev_b32 v{T1}, 4, v{T1}')
        a(f'v_lshrrev_b32 v{VOFF}, 5, v{LN}'); a(f'v_lshl_add_u32 v{VOFF}, v{VOFF}, 8, v{T1}')
        a('s_lshl_b32 s44, s24, 16'); a('s_add_u32 s44, s44, s27')
        a('s_lshl_b32 s45, s12, 14'); a('s_add_u32 s45, s45, s44')
        a(f's_add_u32 s46, s45, {L.K[0]}'); a(f's_add_u32 s47, s45, {L.V[0]}')
        a('s_lshl_b32 s48, s25, 13'); a('s_add_u32 s48, s48, s44'); a('s_add_u32 s49, s48, 1024')
        for t in qaddr(0, 53) + qaddr(1, 54): a(t)
        a('s_lshl_b32 s39, s25, 2'); a('s_add_u32 s39, s39, s12'); a('s_lshl_b32 s39, s39, 16')
        a('s_lshl_b32 s55, s24, 10'); a('s_add_u32 s39, s39, s55')
        a('s_add_u32 s39, s39, s27'); a(f's_add_u32 s39, s39, {L.O[0]}')
        a(f's_mov_b32 s56, {f32(2.0**-90)}'); a(f's_mov_b32 s57, {f32(2.0**120)}')
        a('s_mov_b32 s40, 0')

    def check_ops(Oa, U):
        return [f'v_add_f32 v{U}, abs(v{Oa}), abs(v{Oa+1})', f'v_add_f32 v{U+1}, abs(v{Oa+2}), abs(v{Oa+3})',
                f'v_add_f32 v{U+2}, abs(v{Oa+4}), abs(v{Oa+5})', f'v_add_f32 v{U+3}, abs(v{Oa+6}), abs(v{Oa+7})',
                f'v_add_f32 v{U}, v{U}, v{U+1}', f'v_add_f32 v{U+2}, v{U+2}, v{U+3}', f'v_add_f32 v{U}, v{U}, v{U+2}',
                f'v_cmp_gt_f32 s[70:71], s57, v{U}', f'v_cmp_gt_f32 s[72:73], s57, v{Oa+8}', f'v_cmp_lt_f32 s[74:75], s56, v{Oa+8}',
                's_and_b64 s[70:71], s[70:71], s[72:73]', 's_and_b64 s[70:71], s[70:71], s[74:75]', 's_cmp_eq_u64 s[70:71], -1']

    def attn(extra_groups):
        nvm = [0]
        atk, atv, atq = {}, {}, {}
        def qload(p_, sreg=53):
            a(f'buffer_load_dwordx4 {v(QF[p_%2],4)}, v{L16}, s[4:7], s{sreg} offen sc1'); nvm[0] += 1
            atq[p_] = nvm[0]
        def kvbase(kt, sreg):
            pass
        def kload(kts):
            for kt in kts:
                a(f'buffer_load_dwordx4 {kreg(kt)}, v{L16}, s[4:7], s{76 + kt//4} offen offset:{1024*(kt%4)} sc1'); nvm[0] += 1
                atk[kt] = nvm[0]
        def vload(kts):
            a('s_mov_b64 exec, s[30:31]')
            for kt in kts:
                for g in range(2):
                    a(f'buffer_load_dwordx4 {vreg(kt,g)}, v{VOFF}, s[4:7], s{80 + kt//4} offen offset:{1024*(kt%4)+512*g} sc1'); nvm[0] += 1
                atv[kt] = nvm[0]
            a('s_mov_b64 exec, -1')
        EV = list(range(0, 16, 2)); OD = list(range(1, 16, 2))
        steps = [(0, k) for k in EV] + [(1, k) for k in EV] + [(0, k) for k in OD] + [(1, k) for k in OD]
        steps += [(p_, k) for p_ in range(2, 8) for k in range(16)]
        N = len(steps)
        firstof = {}; lastof = {}
        for n, (p_, k) in enumerate(steps):
            firstof.setdefault(p_, n); lastof[p_] = n
        qload(0)
        kload([0, 2]); vload([0])
        sig_try(1, nvm[0]); mark0 = nvm[0]
        kload([4]); vload([2]); kload([6]); vload([4])
        waited = [0]
        def need_vm(at):
            if at > waited[0]:
                a(f's_waitcnt vmcnt({nvm[0] - at})'); waited[0] = at
        need_vm(atk[0])
        a(f'{MFMA} {v(SB[0],16)}, {kreg(0)}, {v(QF[0],4)}, 0')
        kload([8]); vload([6])
        extra = list(extra_groups)
        sal = []
        def hide():
            if sal: a(sal.pop(0))
        ev_sal, ev_a, ev_b = {}, {}, {}
        def add(d, n, f): d.setdefault(n, []).append(f)
        for p_ in range(2, 8):
            n0 = lastof[p_ - 2] + 1
            add(ev_sal, n0 - 2, qaddr(p_))
            add(ev_a, n0, lambda p_=p_: qload(p_))
        def pwrite(pp):
            Op = OA[pp % 2]
            a(f'v_add_u32 v{PADDR}, s53, v{L16}')
            a(f'v_add_u32 v{PA4}, s53, v{L4}')
            a(f'ds_write_b128 v{PADDR}, {v(Op,4)}')
            a(f'ds_write_b128 v{PADDR}, {v(Op+4,4)} offset:1024')
            a(f'ds_write_b32 v{PA4}, v{Op+8} offset:2048')
        for pp in (0, 1, 2, 4, 5, 6):
            n0 = lastof[pp] + 2
            slot = 2 - pp % 4
            add(ev_sal, n0, [f's_add_u32 s53, s12, {1 + pp}', 's_and_b32 s53, s53, 3', f's_mul_i32 s53, s53, {6*2304}',
                             f's_add_u32 s53, s53, {PART + (3*(pp >> 2) + slot)*2304}'])
            add(ev_b, n0 + 2, lambda pp=pp: pwrite(pp))
        pb = []
        poll_setup(0, 35, add=1, out=pb)
        def b_issue():
            for t in pb: a(t)
            poll_load(32); nvm[0] += 1; atq['flag'] = nvm[0]
        def b_check():
            go = a.lab('bgo')
            need_vm(atq['flag'])
            poll_test(32, go)
            poll_spin(32, go)
            kload([1, 3]); vload([1])
        add(ev_a, 0, lambda: (kload([10]), vload([8])))
        add(ev_a, 1, lambda: (kload([12]), vload([10])))
        add(ev_a, 2, lambda: (sig_try(2, nvm[0] - mark0), kload([14]), vload([12])))
        add(ev_a, 3, lambda: (qload(1, 54), vload([14])))
        add(ev_a, 6, b_issue)
        add(ev_a, 11, b_check)
        for j_ in range(7):
            add(ev_a, 12 + j_, lambda j_=j_: (kload([5 + 2*j_] if j_ < 6 else []), vload([3 + 2*j_])))
        def own_addr(b):
            if b == 0:
                a(f'v_mov_b32 v{TMP}, {CNTL}'); a(f'v_mov_b32 v{TMP+2}, 0'); a(f'v_mov_b32 v{TMP+3}, 0')
                a(f'ds_write_b64 v{TMP}, {v(TMP+2,2)}'); a(f'ds_write_b32 v{TMP}, v{TMP+2} offset:8')
            a('s_waitcnt lgkmcnt(0)' if b == 0 else 's_waitcnt vmcnt(0) lgkmcnt(0)')
            a('s_barrier')
            a(f's_mul_i32 s53, s12, {6*2304}'); a(f's_add_u32 s53, s53, {PART + 3*b*2304}')
            a(f'v_add_u32 v{PADDR}, s53, v{L16}')
            a(f'v_add_u32 v{PA4}, s53, v{L4}')
        def pread(b_, sl):
            a(f'ds_read_b128 {v(b_,4)}, v{PADDR} offset:{sl*2304}')
            a(f'ds_read_b128 {v(b_+4,4)}, v{PADDR} offset:{sl*2304+1024}')
            a(f'ds_read_b32 v{b_+8}, v{PA4} offset:{sl*2304+2048}')
        n4 = firstof[4]
        Oa = OA[1]
        def padd():
            a('s_waitcnt lgkmcnt(0)')
            for r_ in range(9): a(f'v_add_f32 v{Oa+r_}, v{Oa+r_}, v{TMP+r_}')
        add(ev_b, n4 + 2, lambda: (own_addr(0), pread(TMP, 0)))
        add(ev_b, n4 + 3, lambda: (padd(), pread(TMP, 1)))
        add(ev_b, n4 + 4, lambda: (padd(), pread(TMP, 2)))
        def finA():
            padd()
            for t in check_ops(Oa, TMP): a(t)
            sk = a.lab('a_later')
            a(f's_cbranch_scc0 {sk}')
            a(f'v_rcp_f32 v{TMP}, v{Oa+8}')
            for r_ in range(8): a(f'v_mul_f32 v{Oa+r_}, v{TMP}, v{Oa+r_}')
            for r_ in range(4): a(f'v_cvt_pk_bf16_f32 v{TMP+4+r_}, v{Oa+2*r_}, v{Oa+2*r_+1}')
            a(f'buffer_store_dwordx4 {v(TMP+4,4)}, v{L16}, s[4:7], s39 offen sc1')
            a('s_mov_b32 s40, 1'); a('s_mov_b32 s41, 1')
            a.label(sk)
        add(ev_b, n4 + 5, finA)
        sa = []; sig_addr(1, 37, out=sa)
        add(ev_sal, n4 + 6, sa)
        def sstep():
            a('s_waitcnt vmcnt(0)'); waited[0] = nvm[0]
            sig_step()
        add(ev_b, n4 + 9, sstep)
        n7 = firstof[7]
        add(ev_b, n7 + 8, lambda: own_addr(1))
        for sl in range(3):
            add(ev_b, n7 + 9 + sl, lambda sl=sl: pread(VR + 12*sl, sl))
        def wr_issue():
            a(f's_mov_b32 s50, {WCELL}'); a(f'v_mul_u32_u24 v{T0}, {CST}, v{LN}')
            poll_load(8, FOFF); nvm[0] += 1; atq['wflag'] = nvm[0]
        def wr_check():
            go = a.lab('wgo')
            need_vm(atq['wflag'])
            poll_test(8, go)
            poll_spin(8, go, off=FOFF)
        add(ev_a, 20, wr_issue)
        add(ev_a, 26, wr_check)
        def w_issue():
            poll_setup(1, 38); poll_load(8); nvm[0] += 1
        add(ev_a, n7 + 10, w_issue)
        GS = int(OPT['gs'])
        if GS < 4:
            ex2 = []
            for g in extra:
                cur = []; nm = 0
                for t in g:
                    if t.startswith('buffer'):
                        if nm == GS: ex2.append(cur); cur = []; nm = 0
                        nm += 1
                    cur.append(t)
                ex2.append(cur)
            extra = ex2
        slots = [n for n in range(28 if GS < 4 else 34, N - 12, 1 if GS < 4 else 2) if n not in ev_a and n not in ev_b and not (n4 - 4 <= n <= n4 + 9)]
        assert len(slots) >= len(extra), (len(slots), len(extra))
        gslot = dict(zip(slots, extra))
        for n, (p_, kt) in enumerate(steps):
            S = SB[n % 2]; O = OA[p_ % 2]
            e = [f'v_exp_f32 v{S+r}, v{S+r}' for r in range(16)]
            c = [f'v_cvt_pk_bf16_f32 v{PB[r//4]+r%4}, v{S+2*r}, v{S+2*r+1}' for r in range(8)]
            if OPT.get('fine') == 'att' and n in (0, 8, 16, 32, 48, 64, 80, 96, 112): st(f'att n{n}')
            for l_ in ev_sal.get(n, []):
                assert not sal, n
                sal += l_
            if n + 1 < N:
                p2, kt2 = steps[n + 1]
                if n < 32: need_vm(atk[kt2])
                if n + 1 == firstof[p2]: need_vm(atq[p2])
                a(f'{MFMA} {v(SB[(n+1)%2],16)}, {kreg(kt2)}, {v(QF[p2%2],4)}, 0')
                hide()
            for f in ev_a.get(n, []):
                assert not sal, n
                f()
            a(e[0]); a(e[1]); a(e[2]); a(e[3]); a(c[0]); a(c[1]); a(e[4])
            if n > 0:
                pp, pk = steps[n - 1]
                a(f'{MFMA} {v(OA[pp%2],16)}, {vreg(pk,1)}, {v(PB[1],4)}, {v(OA[pp%2],16)}')
                hide()
            if n in gslot:
                for t in gslot[n]:
                    a(t)
                    if t.startswith('buffer'): nvm[0] += 1
            a(e[5]); a(e[6]); a(e[7]); a(c[2]); a(c[3]); a(e[8]); a(e[9]); a(e[10])
            if n < 32: need_vm(atv[kt])
            a(f'{MFMA} {v(O,16)}, {vreg(kt,0)}, {v(PB[0],4)}, {"0" if n == firstof[p_] else v(O,16)}')
            hide()
            a(e[11]); a(c[4]); a(c[5]); a(e[12]); a(e[13])
            for f in ev_b.get(n, []):
                assert not sal, n
                f()
            a(e[14]); a(e[15]); a(c[6]); a(c[7])
        a(f'{MFMA} {v(OA[1],16)}, {vreg(15,1)}, {v(PB[1],4)}, {v(OA[1],16)}')
        st('att loop')
        U = SB[0]
        Oa = OA[1]
        a('s_waitcnt lgkmcnt(0)')
        a(f's_add_u32 s55, s39, {32*1024}')
        a('s_mov_b32 s43, 1')
        sig_addr(1, 37, add=32)
        for sl in range(3):
            b = VR + 12*sl
            for r_ in range(0, 8, 2): a(f'v_pk_add_f32 {v(Oa+r_,2)}, {v(Oa+r_,2)}, {v(b+r_,2)}')
            a(f'v_add_f32 v{Oa+8}, v{Oa+8}, v{b+8}')
        for t in check_ops(Oa, U): a(t)
        a('s_cbranch_scc1 attn_fin')
        a.label('attn_slow')
        S = SB[0]; M = SB[1]; AL = M + 1; TA = M + 2; TB = M + 3
        KT = 224; V0 = 228; V1 = 232
        a('s_lshl_b32 s53, s12, 11'); a('s_lshl_b32 s54, s43, 10'); a('s_add_u32 s53, s53, s54'); a('s_add_u32 s53, s53, s48')
        a(f'buffer_load_dwordx4 {v(QF[0],4)}, v{L16}, s[4:7], s53 offen sc1')
        a(f'v_and_b32 v{TA}, 27, v{LN}')
        a(f'v_cmp_eq_u32 vcc, 16, v{TA}')
        a(f'v_mov_b32 v{TB}, {ONES}')
        a(f'v_cndmask_b32 v{TA}, 0, v{TB}, vcc')
        for r_ in range(8): a(f'v_mov_b32 v{V0+r_}, v{TA}')
        a(f'v_mov_b32 v{M}, {f32(-3.0e38)}')
        for r_ in range(16): a(f'v_mov_b32 v{Oa+r_}, 0')
        a(f's_add_u32 s46, s44, {L.K[0]}'); a(f's_add_u32 s47, s44, {L.V[0]}')
        a('s_mov_b32 s54, 64')
        a.label('attn_slow_loop')
        a(f'buffer_load_dwordx4 {v(KT,4)}, v{L16}, s[4:7], s46 offen sc1')
        a('s_mov_b64 exec, s[30:31]')
        a(f'buffer_load_dwordx4 {v(V0,4)}, v{VOFF}, s[4:7], s47 offen sc1')
        a(f'buffer_load_dwordx4 {v(V1,4)}, v{VOFF}, s[4:7], s47 offen offset:512 sc1')
        a('s_mov_b64 exec, -1')
        a('s_add_u32 s46, s46, 1024'); a('s_add_u32 s47, s47, 1024')
        a('s_waitcnt vmcnt(0)')
        a(f'{MFMA} {v(S,16)}, {v(KT,4)}, {v(QF[0],4)}, 0')
        a(f'v_max3_f32 v{TA}, v{S}, v{S+1}, v{M}')
        for r_ in range(2, 16, 2): a(f'v_max3_f32 v{TA}, v{S+r_}, v{S+r_+1}, v{TA}')
        a(f'v_mov_b32 v{TB}, v{TA}')
        a(f'v_permlane32_swap_b32 v{TA}, v{TB}')
        a(f'v_max_f32 v{TA}, v{TA}, v{TB}')
        a(f'v_sub_f32 v{AL}, v{M}, v{TA}')
        a(f'v_exp_f32 v{AL}, v{AL}')
        a(f'v_mov_b32 v{M}, v{TA}')
        for r_ in range(16):
            a(f'v_sub_f32 v{S+r_}, v{S+r_}, v{M}')
            a(f'v_exp_f32 v{S+r_}, v{S+r_}')
        for r_ in range(16): a(f'v_mul_f32 v{Oa+r_}, v{AL}, v{Oa+r_}')
        for r_ in range(8): a(f'v_cvt_pk_bf16_f32 v{PB[r_//4]+r_%4}, v{S+2*r_}, v{S+2*r_+1}')
        a(f'{MFMA} {v(Oa,16)}, {v(V0,4)}, {v(PB[0],4)}, {v(Oa,16)}')
        a(f'{MFMA} {v(Oa,16)}, {v(V1,4)}, {v(PB[1],4)}, {v(Oa,16)}')
        a('s_sub_u32 s54, s54, 1')
        a('s_cmp_lg_u32 s54, 0')
        a('s_nop 7')
        a('s_cbranch_scc1 attn_slow_loop')
        a('s_nop 7')
        a.label('attn_fin')
        a(f'v_rcp_f32 v{U}, v{Oa+8}')
        for r_ in range(0, 8, 2): a(f'v_pk_mul_f32 {v(Oa+r_,2)}, {v(Oa+r_,2)}, {v(U,2)} op_sel:[0,0] op_sel_hi:[1,0]')
        for r_ in range(4): a(f'v_cvt_pk_bf16_f32 v{TMP+8+r_}, v{Oa+2*r_}, v{Oa+2*r_+1}')
        a(f'buffer_store_dwordx4 {v(TMP+8,4)}, v{L16}, s[4:7], s55 offen sc1')
        a('s_mov_b32 s41, 1')
        a('s_cmp_eq_u32 s40, 1')
        a('s_cbranch_scc1 attn_done')
        sig_block()
        a('s_cmp_eq_u32 s43, 0')
        a('s_cbranch_scc1 attn_done')
        a('s_mov_b32 s43, 0'); a('s_mov_b32 s55, s39')
        sig_addr(1, 37)
        a('s_branch attn_slow')
        a.label('attn_done')

    def touch_wqkv():
        per = L.FT_QKV * FT // 32
        g = [f's_mul_i32 s60, s14, {per}', f's_mul_i32 s61, s12, {per//4}', 's_add_u32 s60, s60, s61', f's_add_u32 s60, s60, {L.WQKVF}',
             f'v_lshlrev_b32 v{T0}, 7, v{LN}', 's_add_u32 s61, s60, 4480',
             f'buffer_load_dword v{T1}, v{T0}, s[4:7], s60 offen sc1', f'buffer_load_dword v{T1}, v{T0}, s[4:7], s61 offen sc1']
        return [g]

    def touch_w1():
        per = 44 * FT // 32
        g = [f's_mul_i32 s60, s14, {per}', f's_mul_i32 s61, s12, {per//4}', 's_add_u32 s60, s60, s61', f's_add_u32 s60, s60, {L.W1F}',
             f'v_lshlrev_b32 v{T0}, 7, v{LN}', 's_add_u32 s61, s60, 3584',
             f'buffer_load_dword v{T1}, v{T0}, s[4:7], s60 offen sc1', f'buffer_load_dword v{T1}, v{T0}, s[4:7], s61 offen sc1']
        return [g]

    def touch_flags():
        return [['s_lshl_b32 s60, s2, 2', 's_add_u32 s60, s60, s12', f's_mul_i32 s60, s60, {11*256}', f's_add_u32 s60, s60, {CNT}',
                 f'v_lshlrev_b32 v{T0}, 8, v{LN}', 's_mov_b64 exec, 0x7ff', f'buffer_load_dword v{T1}, v{T0}, s[4:7], s60 offen sc1', 's_mov_b64 exec, -1']]

    def dump():
        if not STAMP: return
        a('s_lshl_b32 s90, s2, 2'); a('s_add_u32 s90, s90, s12'); a('s_lshl_b32 s90, s90, 1'); a('s_add_u32 s90, s90, s26')
        a('s_lshl_b32 s90, s90, 8'); a(f's_add_u32 s90, s90, {L.FLAGS + 7*L.MB}')
        a(f'buffer_store_dword v0, v{L4}, s[4:7], s90 offen')
        a('s_waitcnt vmcnt(0)')
        if os.environ.get('DBG'):
            sk = a.lab('dbg')
            a('s_lshl_b32 s90, s2, 2'); a('s_add_u32 s90, s90, s12'); a('s_cmp_lg_u32 s90, 2'); a(f's_cbranch_scc1 {sk}')
            a('s_load_dwordx2 s[92:93], s[0:1], 64'); a('s_waitcnt lgkmcnt(0)')
            srd(a, 92, 92, 256)
            a(f'v_readlane_b32 s91, v0, {2*STAMPS.index("p0 prek")+3}')
            names = ['p0 sig', 'att go', 'att loop', 'woB end', 'ffn1 sig', 'end']
            for j, nm in enumerate(names):
                a(f'v_readlane_b32 s90, v0, {2*STAMPS.index(nm)+3}')
                a('s_sub_u32 s90, s90, s91')
                a(f'v_mov_b32 v{T2}, s90')
                a('s_mul_i32 s90, s26, 24'); a(f's_add_u32 s90, s90, {8 + 4*j}')
                a('s_mov_b64 exec, 1')
                a(f'buffer_store_dword v{T2}, v{L4}, s[92:95], s90 offen')
                a('s_mov_b64 exec, -1')
            a('s_waitcnt vmcnt(0)')
            a.label(sk)

    a('s_branch main_attpre2')
    a.label('main_layer')
    st('start')
    gemmA_pre(True)
    a('s_waitcnt vmcnt(0)')
    poll_test(16, 'main_q_go'); poll_spin(16, 'main_q_go')
    a.label('main_qkv')
    st('qkv go')
    def first_sync(n):
        sk = a.lab('nosync')
        a('s_cmp_eq_u32 s26, 1')
        a(f's_cbranch_scc1 {sk}')
        a(f's_waitcnt vmcnt({n})')
        a('s_barrier')
        a.label(sk)
    gemmA(True, None if K1 else first_sync)
    sig_addr(0, 34)
    a('s_mov_b32 s41, 1')
    a.label('main_attpre')
    attn_pre()
    for i in range(4):
        a(f's_add_u32 s{76+i}, s46, {4096*i}'); a(f's_add_u32 s{80+i}, s47, {4096*i}')
    st('qkv sig')
    a('s_cmp_eq_u32 s26, 1')
    a('s_cbranch_scc1 main_nores')
    a('s_waitcnt vmcnt(0)')
    for g in range(2):
        a(f'v_permlane32_swap_b32 v{RES+4*g}, v{RES+4*g+2}')
        a(f'v_permlane32_swap_b32 v{RES+4*g+1}, v{RES+4*g+3}')
    a.label('main_nores')
    a('s_cmp_ge_u32 s12, 2')
    a('s_cbranch_scc1 main_att_bar')
    sig_block()
    poll(0, 35)
    a.label('main_att_bar')
    if 'a' in OPT.get('es', 'f'):
        a('s_cmp_eq_u32 s26, 0'); a('s_cbranch_scc1 main_noes')
        sig_try(1, 0)
        a.label('main_noes')
    a('s_barrier')
    a.label('main_att_go')
    st('att go')
    W1L = int(OPT.get('w1l', 0))
    extra = (touch_flags() if int(OPT.get('tf', 1)) else []) + (touch_w1() if W1L else wtile_dma(False)) + wB_loads(True, list(range(8))) + wB_loads(False, list(range(NW2PRE))) + touch_wqkv()
    attn(extra)
    st('att sig')
    gemmB_pre(True)
    a('s_waitcnt vmcnt(1)')
    poll_test(8, 'main_wo_go')
    poll_spin(8, 'main_wo_go', hook=sig_step)
    if 'w' in OPT.get('es', 'f'): sig_try(1, 0)
    a('s_barrier')
    gemmB(True, tail=wB_loads(False, list(range(NW2PRE, 22))))
    a('s_cmp_eq_u32 s16, 15')
    a('s_cbranch_scc1 main_skip_ffn1')
    gemmA_pre(False)
    a('s_waitcnt vmcnt(0)')
    poll_test(16, 'main_f1_go'); poll_spin(16, 'main_f1_go')
    st('ffn1 go')
    gemmA(False)
    sig_addr(3, 36)
    a('s_mov_b32 s41, 1')
    a.label('main_skip_ffn1')
    gemmB_pre(False)
    st('ffn1 sig')
    a('s_cmp_ge_u32 s12, 2')
    a('s_cbranch_scc1 main_f2_bar')
    sig_try(1, 0)
    a('s_cmp_eq_u32 s26, 1'); a('s_cbranch_scc1 main_noq')
    a('s_cmp_eq_u32 s16, 15'); a('s_cselect_b32 s63, 0, 4')
    a(f'v_mov_b32 v{T0}, {CNTL}')
    for region in range(2):
        lp = a.lab('lspin'); ok = a.lab('lok')
        a('s_mov_b32 s51, 0')
        a.label(lp)
        a(f'ds_read_b32 v{T1}, v{T0} offset:{4*region}')
        a('s_add_u32 s51, s51, 1')
        a('s_waitcnt lgkmcnt(0)')
        a(f'v_readfirstlane_b32 s52, v{T1}')
        a('s_cmp_ge_u32 s52, s63'); a(f's_cbranch_scc1 {ok}')
        a(f's_cmp_lt_u32 s51, {8*SPIN}'); a(f's_cbranch_scc1 {lp}')
        a.label(ok)
        gs_ = wq_third(region, 2)
        if region == 0:
            run_groups(gs_[:3]); sig_try(2, 8); run_groups(gs_[3:])
        else: run_groups(gs_)
    a.label('main_noq')
    sig_try(2, 0)
    poll(3, 86)
    a.label('main_f2_bar')
    if 'f' in OPT.get('es', 'f'): sig_try(1, 0)
    a('s_barrier')
    gemmB(False, tail=wq_third(2, 2))
    if STAMP: a('s_waitcnt vmcnt(0)'); st('end')
    dump()
    a('s_cmp_eq_u32 s26, 1')
    a('s_cbranch_scc1 main_end')
    a('s_mov_b32 s26, 1'); a(f's_mov_b32 s27, {2*L.MB}'); a(f's_add_u32 s28, s28, {LST}')
    a('s_branch main_layer')
    a.label('main_end')
    a('s_endpgm')
    return 256, 160*1024


if __name__ == '__main__':
    p = Prog()
    cfg = gen_main(p)
    p.launches.append((KNAME, 256, *cfg))
    errs = p.a.check_branches()
    for e in errs: print('HAZARD', e, file=sys.stderr)
    txt = p.text()
    if os.environ.get('SINGLE'):
        txt = txt.replace(f'; @launch kernel={KNAME} ', '; @launch ')
    open(sys.argv[1], 'w').write(txt)
    if STAMP: open(sys.argv[1] + '.names', 'w').write('\n'.join(STAMPS))
    print('pads', p.a.pads, 'instrs', sum(1 for i in p.a.ins if i.states), file=sys.stderr)
```

```python
import sys, os
sys.path.insert(0, 'work')
from gen import *

CNT = L.FLAGS
CST = 512
FOFF = 256
FS = 256
FB_ = [0, 1024, 3072, 4096, 5120]
LST = 6144 * FS
NP = {0: 32, 1: 8, 2: 16, 3: 15, 4: 16}
def areg(a0, n=4): return f'a[{a0}:{a0+n-1}]'
FT = 33 * 1024
WT = 3 * FT
RED = WT; PART = WT; SCR = WT + 56*1024; CNTL = WT + 55*1024
OPT = dict(bwin='12', apre='16', nb='16', bwin2='12', gs='3'); OPT.update(x.split('=') for x in os.environ.get('OPT', '').split(',') if x)
TARGET = {0: 8, 1: 8, 2: 16, 3: 15, 4: 16}
SPIN = 0x200000
STAMPS = []
K1 = 1
W2KS = 96
NSIDE = 206
WCELL = CNT + 11264*FS
KNAME = 'interleave_layers__mha_block__dense_activation_mish__prompt_kernel'


def phase0(a):
    a('s_load_dwordx4 s[8:11], s[0:1], 0')
    a('s_load_dwordx4 s[20:23], s[0:1], 64')
    a('s_getpc_b64 s[60:61]')
    a.label('p0_pc')
    a('s_and_b32 s62, s2, 8'); a('s_lshl_b32 s62, s62, 12')
    a('s_sub_u32 s63, main_end-p0_pc, s62')
    a('s_add_u32 s60, s60, s62'); a('s_addc_u32 s61, s61, 0')
    a('v_lshlrev_b32 v182, 7, v0')
    a('v_min_u32 v182, s63, v182')
    a('v_mov_b32 v183, s61')
    a('v_add_co_u32 v182, vcc, s60, v182')
    a('v_addc_co_u32 v183, vcc, 0, v183, vcc')
    a('global_load_dword v184, v[182:183], off')
    a('s_load_dwordx2 s[84:85], s[0:1], 16')
    a('s_load_dwordx4 s[88:91], s[0:1], 32')
    a('s_load_dwordx2 s[86:87], s[0:1], 48')
    LN, L16, L4, T0, T1, T2, T3 = 1, 2, 3, 4, 5, 6, 7
    a(f'v_and_b32 v{LN}, 63, v0')
    a(f'v_lshrrev_b32 v{T0}, 6, v0')
    a(f'v_readfirstlane_b32 s12, v{T0}')
    a('s_and_b32 s13, s2, 7'); a('s_lshr_b32 s14, s2, 3')
    MAP = int(OPT.get('map', 0))
    if MAP == 0:
        a('s_lshl_b32 s15, s13, 2'); a('s_and_b32 s33, s14, 3'); a('s_add_u32 s15, s15, s33')
        a('s_lshr_b32 s18, s14, 2')
        a('s_add_u32 s48, s18, s13')
    else:
        a('s_lshr_b32 s15, s13, 1'); a('s_lshl_b32 s15, s15, 3'); a('s_and_b32 s33, s14, 7'); a('s_add_u32 s15, s15, s33')
        a('s_lshr_b32 s18, s14, 3')
        if MAP == 1:
            a('s_lshl_b32 s18, s18, 1'); a('s_and_b32 s33, s13, 1'); a('s_add_u32 s18, s18, s33')
        else:
            a('s_and_b32 s33, s13, 1'); a('s_lshl_b32 s33, s33, 2'); a('s_add_u32 s18, s18, s33')
        a('s_lshr_b32 s48, s14, 2'); a('s_add_u32 s48, s48, s13')
    a('s_and_b32 s48, s48, 7')
    WSL = 12288; XB = 8*WSL; XSL = 8192
    DW, DX = 8, 9
    a(f'v_lshrrev_b32 v{T0}, 3, v{LN}')
    a(f'v_and_b32 v{T1}, 7, v{LN}')
    a(f'v_bfe_u32 v{T2}, v{LN}, 4, 1')
    a(f'v_lshlrev_b32 v{T2}, 2, v{T2}')
    a(f'v_xor_b32 v{T2}, v{T1}, v{T2}')
    a(f'v_mul_u32_u24 v{DW}, 3072, v{T0}')
    a(f'v_lshl_add_u32 v{DW}, v{T2}, 4, v{DW}')
    a(f'v_lshrrev_b32 v{T2}, 4, v{LN}')
    a(f'v_xor_b32 v{T2}, v{T1}, v{T2}')
    a(f'v_lshlrev_b32 v{DX}, 10, v{T0}')
    a(f'v_lshl_add_u32 v{DX}, v{T2}, 4, v{DX}')
    a(f'v_xor_b32 v{DX+1}, 64, v{DX}')
    a(f'v_add_u32 v{DX+1}, {8*1024 - 1024}, v{DX+1}')
    a('s_mul_i32 s40, s12, 24576'); a('s_lshl_b32 s33, s18, 7'); a('s_add_u32 s40, s40, s33')
    a('s_lshl_b32 s43, s15, 16'); a('s_lshl_b32 s33, s12, 14'); a('s_add_u32 s43, s43, s33')
    a(f's_mul_i32 s33, s48, {64*3072}'); a('s_add_u32 s40, s40, s33')
    a('s_lshl_b32 s33, s48, 7'); a('s_add_u32 s43, s43, s33')
    a(f's_mov_b32 s49, {64*3072}'); a('s_movk_i32 s51, 128')
    a('s_mov_b32 s76, s18'); a('s_mov_b32 s77, s18')
    a('s_mul_i32 s44, s12, 3072'); a('s_lshl_b32 s45, s12, 11'); a(f's_add_u32 s45, s45, {XB}')
    a(f's_sub_u32 s33, s2, {int(OPT.get("clr", 64))}'); a('s_lshl_b32 s34, s33, 2'); a('s_add_u32 s34, s34, s12')
    a('s_and_b32 s53, s34, 1'); a('s_lshl_b32 s53, s53, 11'); a(f's_add_u32 s53, s53, {WCELL}')
    a('s_lshl_b32 s34, s34, 11'); a(f's_add_u32 s34, s34, {CNT}')
    a(f'v_lshlrev_b32 v65, 8, v{T0}'); a(f'v_lshl_add_u32 v65, v{T1}, 4, v65')
    for r_ in range(4): a(f'v_mov_b32 v{28+r_}, 0')
    a(f'v_mov_b32 v{T1}, 0')
    if STAMP:
        a('s_memrealtime s[96:97]')
    a('s_waitcnt lgkmcnt(0)')
    if STAMP:
        STAMPS.append('p0 prek'); i_ = len(STAMPS) - 1
        a(f'v_writelane_b32 v11, s96, {2*i_+2}'); a(f'v_writelane_b32 v11, s96, {2*i_+3}')
    stp0('p0 karg')
    srd(a, 4, 22, L.WS_BYTES)
    srd(a, 28, 10, 512*1536*2)
    srd(a, 8, 8, 2*L.MB)
    a('s_cmp_lt_u32 s33, 32'); a('s_cselect_b32 s35, 1, 0')
    a('s_cbranch_scc0 p0_noclr')
    a('buffer_store_dwordx4 v[28:31], v65, s[4:7], s34 offen sc1')
    a('s_cmp_lg_u32 s33, 0'); a('s_cbranch_scc1 p0_noclr')
    a('buffer_store_dwordx4 v[28:31], v65, s[4:7], s53 offen sc1')
    a.label('p0_noclr')
    def dma_pair(sl):
        o = []
        o.append([f's_add_u32 m0, s45, {sl*XSL}', f's_add_u32 s46, s40, {32*3072}', f'buffer_load_dwordx4 v{DX}, s[8:11], s43 offen lds',
                  f'buffer_load_dwordx4 v{DX+1}, s[8:11], s43 offen offset:1024 lds'])
        o.append([f's_add_u32 m0, s44, {2*sl*WSL}', 's_add_u32 s48, s48, 1'] +
                 [f'buffer_load_dwordx4 v{DW}, s[28:31], s40 offen offset:{1024*u} lds' for u in range(3)])
        o.append(['s_cmp_eq_u32 s48, 8', f's_cselect_b32 s50, {(128 - 1024) & 0xffffffff}, s51', f's_cselect_b32 s52, {((64 - 512)*3072) & 0xffffffff}, s49'])
        o.append([f's_add_u32 m0, s44, {(2*sl + 1)*WSL}', 's_add_u32 s43, s43, s50'] +
                 [f'buffer_load_dwordx4 v{DW}, s[28:31], s46 offen offset:{1024*u} lds' for u in range(3)] + ['s_add_u32 s40, s40, s52'])
        return o
    def run(gs):
        for g in gs:
            for t in g: a(t)
    TCH = int(OPT.get('tch', 1))
    if TCH == 1:
        a('s_lshl_b32 s33, s2, 2'); a('s_add_u32 s33, s33, s12'); a('s_mul_i32 s33, s33, 1536')
        a(f'v_lshlrev_b32 v185, 7, v{LN}')
        a('s_mov_b64 exec, 0xfff')
        a('buffer_load_dword v187, v185, s[28:31], s33 offen')
        a('s_mov_b64 exec, -1')
    def touch_all():
        a('s_lshl_b32 s33, s14, 2'); a('s_add_u32 s33, s33, s12')
        a('s_lshl_b32 s34, s33, 11'); a('s_lshl_b32 s53, s13, 18'); a('s_add_u32 s34, s34, s53')
        a('s_mul_i32 s33, s33, 12288'); a('s_add_u32 s53, s33, 8192')
        a(f'v_lshlrev_b32 v185, 7, v{LN}')
        a('buffer_load_dword v187, v185, s[28:31], s33 offen')
        a('s_mov_b64 exec, 0xffffffff')
        a('buffer_load_dword v186, v185, s[28:31], s53 offen')
        a('s_mov_b64 exec, 0xffff')
        a('buffer_load_dword v188, v185, s[8:11], s34 offen')
        a('s_mov_b64 exec, -1')
    if TCH == 2: touch_all()
    run(dma_pair(0))
    if TCH == 3: touch_all()
    stp0('p0 dma0')
    srd(a, 20, 20, 256)
    if int(OPT.get('tlb', 0)):
        a(f'v_lshlrev_b32 v181, 21, v{LN}'); a(f'v_min_u32 v181, {CNT}, v181')
        a('buffer_load_dword v186, v181, s[4:7], 0 offen')
        a(f'buffer_load_dword v188, v{T1}, s[20:23], 0 offen offset:192')
        a('s_load_dwordx2 s[62:63], s[0:1], 56')
        a('v_mov_b32 v180, 0')
        a('global_load_dword v189, v180, s[84:85]'); a('global_load_dword v189, v180, s[86:87]')
        a('global_load_dword v189, v180, s[88:89]'); a('global_load_dword v189, v180, s[90:91]')
        a('s_waitcnt lgkmcnt(0)')
        a('global_load_dword v189, v180, s[62:63]')
    run(dma_pair(1))
    a(f'v_lshlrev_b32 v{L16}, 4, v{LN}')
    a(f'v_lshlrev_b32 v{L4}, 2, v{LN}')
    a('s_lshr_b32 s19, s12, 1'); a('s_and_b32 s24, s12, 1'); a('s_xor_b32 s25, s19, s24')
    RW = 66
    a(f'v_lshrrev_b32 v{T0}, 5, v{LN}'); a(f'v_mul_u32_u24 v{T0}, 3072, v{T0}')
    a(f'v_bfe_u32 v{T1}, v{LN}, 2, 2'); a(f'v_lshl_add_u32 v{RW}, v{T1}, 7, v{T0}')
    a(f'v_bfe_u32 v{T1}, v{LN}, 3, 1'); a(f'v_xor_b32 v{T1}, s24, v{T1}'); a(f'v_lshl_add_u32 v{RW}, v{T1}, 6, v{RW}')
    a(f'v_bfe_u32 v{T1}, v{LN}, 4, 1'); a(f'v_lshl_add_u32 v{RW}, v{T1}, 5, v{RW}')
    a(f'v_and_b32 v{T1}, 3, v{LN}'); a(f'v_lshl_add_u32 v{RW}, v{T1}, 3, v{RW}')
    a('s_mul_i32 s33, s25, 6144'); a('s_sub_u32 s34, 6144, s33')
    a(f'v_add_u32 v{RW+1}, s34, v{RW}'); a(f'v_add_u32 v{RW}, s33, v{RW}')
    a(f'v_add_u32 v70, {4*WSL}, v{RW}'); a(f'v_add_u32 v71, {4*WSL}, v{RW+1}')
    RX = 12
    a(f'v_and_b32 v{T0}, 31, v{LN}'); a(f'v_lshlrev_b32 v{T1}, 7, v{T0}')
    a(f'v_bfe_u32 v{T2}, v{LN}, 1, 3'); a(f'v_lshrrev_b32 v{T3}, 5, v{LN}'); a(f'v_xor_b32 v{T2}, v{T2}, v{T3}')
    a(f'v_lshl_add_u32 v{T1}, v{T2}, 4, v{T1}')
    a('s_lshl_b32 s33, s25, 5'); a(f'v_xor_b32 v{T1}, s33, v{T1}')
    a('s_lshl_b32 s33, s19, 12'); a(f's_add_u32 s33, s33, {XB}')
    a(f'v_add_u32 v{RX}, s33, v{T1}')
    for q in range(1, 4): a(f'v_xor_b32 v{RX+q}, {32*q}, v{RX}')
    STV = 16; RS, RQ = 68, 69; XE = 72; WE = 192
    FRG = [192, 128]
    ACC = [80 + 16*i for i in range(3)]
    S1, S2, CS, ONE, AV = 32, 33, 34, 37, 38
    for r_ in range(S1, CS + 3): a(f'v_mov_b32 v{r_}, 0')
    a(f'v_mov_b32 v{ONE}, {ONES}')
    SUMS = 48; OA_ = 44
    M16 = 'v_mfma_f32_16x16x32_bf16'
    a(f'v_and_b32 v{T0}, 31, v{LN}')
    a(f'v_cmp_eq_u32 vcc, 0, v{T0}'); a(f'v_cmp_eq_u32 s[60:61], 17, v{T0}'); a('s_or_b64 vcc, vcc, s[60:61]')
    for r_ in range(4): a(f'v_cndmask_b32 v{OA_+r_}, 0, v{ONE}, vcc')

    SD, SR = 40, 41
    EARLY = int(OPT.get('early', 1))
    def side_params():
        a('s_and_b32 s26, s2, 0xf0'); a('s_lshl_b32 s33, s13, 1'); a('s_add_u32 s26, s26, s33'); a('s_and_b32 s33, s14, 1'); a('s_add_u32 s26, s26, s33')
        SROT = int(OPT.get('srot', 128))
        a(f's_add_u32 s26, s26, {SROT}'); a('s_and_b32 s26, s26, 255')
        a('s_mov_b32 s95, 0x00020000')
        a('s_lshl_b32 s71, s12, 12'); a(f's_add_u32 s71, s71, {XB + 4*XSL}')
        a(f'v_lshrrev_b32 v{T0}, 5, v{LN}'); a(f'v_lshlrev_b32 v{T0}, 2, v{T0}')
        a(f'v_bfe_u32 v{T2}, v{LN}, 2, 2'); a(f'v_add_u32 v{T0}, v{T0}, v{T2}')
        a(f'v_bfe_u32 v{T2}, v{LN}, 4, 1'); a(f'v_lshlrev_b32 v{T2}, 5, v{T2}')
        a(f'v_and_b32 v{T1}, 3, v{LN}'); a(f'v_lshl_add_u32 v{T2}, v{T1}, 3, v{T2}')
        a('s_cmp_ge_u32 s26, 88'); a('s_cbranch_scc1 p0_rows')
        a('s_mov_b32 s92, s88'); a('s_mov_b32 s93, s89'); a(f's_mov_b32 s94, {512*1376*2}'); a('s_mov_b32 s65, 2')
        a('s_cmp_ge_u32 s26, 44'); a('s_cselect_b32 s69, 1, 0'); a('s_mul_i32 s33, s69, 44'); a('s_sub_u32 s68, s26, s33')
        a(f's_mul_i32 s70, s68, {FT}'); a(f's_add_u32 s70, s70, {L.W1F}')
        a('s_lshl_b32 s33, s69, 2'); a('s_add_u32 s33, s33, s12')
        a('s_lshl_b32 s66, s33, 12'); a('s_add_u32 s66, s66, s70'); a('s_movk_i32 s72, 1024')
        a(f's_mov_b32 s73, {16*2752}'); a(f's_mul_i32 s67, s33, {64*2752}'); a('s_lshl_b32 s33, s68, 6'); a('s_add_u32 s67, s67, s33')
        a(f'v_lshrrev_b32 v{SD}, 2, v{LN}'); a(f'v_mul_u32_u24 v{SD}, 2752, v{SD}'); a(f'v_lshl_add_u32 v{SD}, v{T1}, 4, v{SD}')
        a(f'v_lshl_add_u32 v{SR}, v{T0}, 6, v{T2}'); a(f'v_add_u32 v{SR}, s71, v{SR}')
        a('s_branch p0_prm')
        a.label('p0_rows')
        a('s_mov_b32 s65, 0'); a('s_movk_i32 s73, 1024')
        a('s_mov_b32 s92, s84'); a('s_mov_b32 s93, s85'); a(f's_mov_b32 s94, {512*512*2}')
        a('s_sub_u32 s68, s26, 88'); a(f's_mov_b32 s72, {32*1024}'); a(f's_mov_b32 s70, {L.WOF}')
        a('s_cmp_lt_u32 s26, 120'); a('s_cbranch_scc1 p0_rows2')
        a('s_mov_b32 s92, s86'); a('s_mov_b32 s93, s87'); a(f's_mov_b32 s94, {1376*512*2}')
        a('s_sub_u32 s68, s26, 120'); a(f's_mov_b32 s72, {W2KS*1024}'); a(f's_mov_b32 s70, {L.W2F}')
        a(f's_cmp_ge_u32 s26, {NSIDE}'); a('s_cselect_b32 s94, 0, s94')
        a.label('p0_rows2')
        a('s_lshl_b32 s67, s68, 14'); a('s_lshl_b32 s33, s12, 12'); a('s_add_u32 s67, s67, s33')
        a('s_lshl_b32 s33, s12, 2'); a('s_mul_i32 s66, s33, s72'); a('s_lshl_b32 s33, s68, 10'); a('s_add_u32 s66, s66, s33'); a('s_add_u32 s66, s66, s70')
        a(f'v_mov_b32 v{SD}, v{L16}')
        a('s_lshl_b32 s33, s12, 8'); a(f's_add_u32 s33, s33, {XB + 4*XSL}')
        a(f'v_lshl_add_u32 v{SR}, v{T0}, 10, v{T2}'); a(f'v_add_u32 v{SR}, s33, v{SR}')
        a.label('p0_prm')
        a('s_and_b32 s93, s93, 0xffff')
    def side_dma():
        return [[f's_add_u32 m0, s71, {i*1024}', 's_nop 0', f'buffer_load_dwordx4 v{SD}, s[92:95], s67 offen lds', 's_add_u32 s67, s67, s73'] for i in range(4)]
    def reads(sl):
        F = FRG[sl % 2]; o = []
        for j in range(4):
            h, s_ = divmod(j, 2)
            o.append(f'ds_read_b128 {v(F+16*j,4)}, v{RX + j} offset:{sl*XSL}')
            ad = (RW if sl < 2 else 70) + s_
            for u in range(3):
                r = F + 16*j + 4 + 4*u; off = (2*(sl % 2) + h)*WSL + u*1024
                o.append(f'ds_read_b64_tr_b16 {v(r,2)}, v{ad} offset:{off}')
                o.append(f'ds_read_b64_tr_b16 {v(r+2,2)}, v{ad} offset:{off+512}')
        return o
    def mf(f, xf, wf, first):
        cc = '0' if first else v(ACC[f], 16)
        if f == 2: a(f'{MFMA} {v(ACC[f],16)}, {xf}, {wf}, {cc}')
        else: a(f'{MFMA} {v(ACC[f],16)}, {wf}, {xf}, {cc}')
    side_params()
    if int(OPT.get('stch', 0)):
        a(f'v_lshrrev_b32 v185, 3, v{LN}'); a('v_mul_lo_u32 v185, v185, s73'); a(f'v_and_b32 v186, 7, v{LN}'); a('v_lshl_add_u32 v185, v186, 7, v185')
        a(f'v_mul_u32_u24 v186, 2752, v{LN}')
        a('s_cmp_eq_u32 s65, 0'); a('s_cselect_b64 vcc, -1, 0'); a(f's_cselect_b32 s33, 0, {64*2752}'); a('s_add_u32 s33, s33, s67')
        a('v_cndmask_b32 v185, v186, v185, vcc')
        a('buffer_load_dword v188, v185, s[92:95], s67 offen')
        a('buffer_load_dword v189, v185, s[92:95], s33 offen')
    run(dma_pair(2))
    stp0('p0 setup')
    a(f's_waitcnt vmcnt({16 + 2*int(OPT.get("stch", 0))})')
    a('s_barrier')
    stp0('p0 first')
    for t in reads(0): a(t)
    SC0 = 8192; CA = 42
    def rec(f):
        o = []
        f(o.append)
        return o
    def tail_pre(a):
        a(f's_mov_b32 s10, {2*L.MB}')
        a('s_lshl_b32 s17, s15, 1'); a('s_add_u32 s17, s17, s19')
        a('s_lshl_b32 s16, s18, 1'); a('s_add_u32 s16, s16, s24')
        a('s_lshl_b32 s76, s76, 1'); a('s_add_u32 s76, s76, s24'); a('s_lshl_b32 s77, s77, 1'); a('s_add_u32 s77, s77, s24')
        a('s_lshl_b32 s33, s17, 10')
        a('s_lshl_b32 s56, s16, 17'); a('s_add_u32 s56, s56, s33'); a('s_add_u32 s57, s56, 0x10000')
        a('s_lshl_b32 s58, s76, 17'); a('s_add_u32 s58, s58, s33'); a(f's_add_u32 s58, s58, {L.K[0]}'); a('s_add_u32 s59, s58, 0x10000')
        a('s_lshl_b32 s54, s77, 17'); a('s_add_u32 s54, s54, s33'); a(f's_add_u32 s54, s54, {L.V[0]}')
        a(f'v_bfe_u32 v78, v{LN}, 4, 1'); a('v_lshlrev_b32 v78, 16, v78')
        a(f'v_lshrrev_b32 v79, 5, v{LN}'); a('v_lshl_add_u32 v78, v79, 8, v78')
        a(f'v_and_b32 v79, 15, v{LN}'); a('v_lshl_add_u32 v78, v79, 4, v78')
        a(f'v_and_b32 v{T3}, 124, v{L4}')
        a('s_xor_b32 s33, s12, 1'); a('s_mul_i32 s33, s33, 3072'); a(f'v_add_u32 v{T1}, s33, v{T3}')
        a('s_xor_b32 s33, s12, 2'); a('s_mul_i32 s33, s33, 3072'); a(f'v_add_u32 v{T2}, s33, v{T3}')
        a(f'v_add_u32 v{T0}, s44, v{L4}')
        a('s_add_u32 s33, s44, 1024')
        a(f'v_add_u32 v76, s33, v{L4}')
        a(f'v_lshrrev_b32 v77, 5, v{LN}'); a('v_lshlrev_b32 v77, 4, v77'); a('v_add_u32 v77, s33, v77')
        a(f'v_cmp_gt_u32 vcc, 32, v{LN}')
        a('s_lshl_b32 s42, s16, 6'); a('s_add_u32 s42, s42, s17'); a('s_lshl_b32 s42, s42, 8'); a(f's_add_u32 s42, s42, {CNT}')
        a('s_and_b32 s33, s15, 3'); a('s_mul_i32 s34, s33, 6144'); a(f's_add_u32 s34, s34, {6*WSL}')
        a(f'v_lshrrev_b32 v43, 5, v{LN}'); a('v_mul_u32_u24 v64, 2560, v43')
        a('s_mul_i32 s53, s25, 6144'); a('s_sub_u32 s34, s34, s53')
        a(f'v_sub_u32 v43, v{RW}, v64'); a('v_add_u32 v43, s34, v43')
        a('s_add_u32 s53, s48, 7'); a('s_and_b32 s53, s53, 7'); a('s_lshl_b32 s53, s53, 2'); a('s_add_u32 s53, s53, s33'); a('s_lshl_b32 s53, s53, 10')
        a(f's_mul_i32 s33, s16, {FT}'); a('s_add_u32 s53, s53, s33'); a(f's_add_u32 s53, s53, {L.WQKVF}')
    def tail_comb(a):
        for u in range(3):
            a(f'ds_read_b64_tr_b16 {v(204+4*u,2)}, v43 offset:{u*1024}')
            a(f'ds_read_b64_tr_b16 {v(206+4*u,2)}, v43 offset:{u*1024+3072}')
        a(f'v_add_f32 v{S1}, v{S1}, v{S2}')
        a(f'ds_write_b32 v{T0}, v{S1} offset:512')
        a('s_mov_b64 exec, 0xffff')
        for u in range(4): a(f'ds_write2_b32 v{T0}, v{SUMS+4*u}, v{SUMS+4*u+1} offset0:{32*u} offset1:{32*u+16}')
        a('s_mov_b64 exec, -1')
        a(f'v_add_u32 v{T0}, s44, v{T3}')
        a('s_waitcnt lgkmcnt(0)')
        a('s_barrier')
        a(f'ds_read_b32 v{STV}, v{T0} offset:384'); a(f'ds_read_b32 v{STV+2}, v{T1} offset:384')
        a(f'ds_read2_b32 {v(STV+4,2)}, v{T0} offset0:128 offset1:160'); a(f'ds_read2_b32 {v(STV+6,2)}, v{T1} offset0:128 offset1:160')
        for u in range(3):
            a(f'ds_read_b32 v{CS+u}, v{T0} offset:{128*u}')
            a(f'ds_read_b32 v{48+u}, v{T2} offset:{128*u}')
        a('s_waitcnt lgkmcnt(6)')
        a(f'v_add_f32 v{STV}, v{STV}, v{STV+2}')
        a(f'v_add_f32 v{STV+4}, v{STV+4}, v{STV+5}'); a(f'v_add_f32 v{STV+6}, v{STV+6}, v{STV+7}'); a(f'v_add_f32 v{STV+1}, v{STV+4}, v{STV+6}')
        a(f'v_mul_f32 v{STV}, {f32(-1.0/512)}, v{STV}')
        a(f'v_mul_f32 v{STV+1}, {f32(1.0/512)}, v{STV+1}')
        a(f'v_fma_f32 v{STV+1}, -v{STV}, v{STV}, v{STV+1}')
        a(f'v_max_f32 v{STV+1}, 0, v{STV+1}')
        a(f'v_add_f32 v{STV+1}, {f32(1e-5)}, v{STV+1}')
        a(f'v_rsq_f32 v{RS}, v{STV+1}')
        MH, MM, ML, TT = STV+2, STV+3, STV+4, STV+8
        split3(a, STV, MH, MM, ML, TT)
        a(f'ds_write_b32 v76, v{RS}')
        pack_hi(a, XE, MH, MM)
        a(f'v_lshrrev_b32 v{XE+1}, 16, v{ML}'); a(f'v_mov_b32 v{XE+2}, 0'); a(f'v_lshrrev_b32 v{XE+3}, 16, v{MH}')
        a(f'v_mul_f32 v{RQ}, {f32(L.QSCALE)}, v{RS}')
        for j in range(4): a(f'ds_read_b128 {v(STV+4*j,4)}, v77 offset:{32*j}')
        a('s_waitcnt lgkmcnt(5)')
        for u in (1, 2, 0):
            c_ = CS + u; W_ = WE + 4*u; HI, MID, LO, TQ = 44, 45, 46, 47
            a(f'v_add_f32 v{c_}, v{c_}, v{48+u}')
            split3(a, c_, HI, MID, LO, TQ)
            a(f'v_lshrrev_b32 v{W_+1}, 16, v{HI}'); a(f'v_or_b32 v{W_}, v{W_+1}, v{HI}')
            a(f'v_lshrrev_b32 v{W_+3}, 16, v{MID}')
            pack_hi(a, TQ, LO, MID)
            a(f'v_cndmask_b32 v{W_}, v{TQ}, v{W_}, vcc')
            a(f'v_cndmask_b32 v{W_+1}, 0, v{W_+1}, vcc')
            a(f'v_mov_b32 v{W_+2}, 0')
            a(f'v_cndmask_b32 v{W_+3}, 0, v{W_+3}, vcc')
    def singles(gs):
        out = []; cur = []
        for g in gs:
            for t in g:
                cur.append(t)
                if t.startswith('buffer'): out.append(cur); cur = []
        out[-1] += cur
        return out
    S0 = int(OPT.get('s0', 2))
    sd = side_dma()
    nis = 24; endof = {0: 8, 1: 16, 2: 24}
    masked = False
    for it in range(8):
        sl = it % 4
        if it + 1 < 8:
            a(f's_waitcnt vmcnt({nis - endof[it + 1]}) lgkmcnt(0)')
            a('s_barrier')
            q = reads((it + 1) % 4)
        else:
            a('s_waitcnt lgkmcnt(0)')
            q = []
        dp = []
        if it + 3 < 8: dp = singles(dma_pair((it + 3) % 4))
        nis += len(dp); endof[it + 3] = nis
        if it >= S0 and sd:
            ex = [sd.pop(0), sd.pop(0)]
            dp = dp + ex; nis += 2
        F = FRG[sl % 2]
        xq = rec(tail_pre) if it == 6 else []
        if it == 7:
            for r_ in range(4):
                a(f'v_dot2_f32_bf16 v{S1}, v{F+r_}, v{F+r_}, v{S1}')
                a(f'v_dot2_f32_bf16 v{S2}, v{F+32+r_}, v{F+32+r_}, v{S2}')
            for j in range(4):
                if j % 2:
                    for f in range(3): a(f'{M16} {v(SUMS+4*f,4)}, {v(OA_,4)}, {v(F+16*j+4+4*f,4)}, {v(SUMS+4*f,4)}')
                else: a(f'{M16} {v(SUMS+12,4)}, {v(OA_,4)}, {v(F+16*j,4)}, {v(SUMS+12,4)}')
            xq = rec(tail_comb)
            for n in range(12):
                j, f = divmod(n, 3)
                mf(f, v(F+16*j, 4), v(F+16*j+4+4*f, 4), False)
                if n == 0: continue
                cnt = 0
                while xq and (cnt < 8 or masked):
                    t = xq.pop(0); a(t); cnt += 1
                    if 'exec' in t: masked = '-1' not in t
                    if t.startswith(('s_waitcnt', 's_barrier')) and not masked and cnt > 2: break
                    if xq and xq[0].startswith('s_waitcnt') and not masked: break
            for t in xq: a(t)
            continue
        for n in range(12):
            j, f = divmod(n, 3)
            mf(f, v(F+16*j, 4), v(F+16*j+4+4*f, 4), it == 0 and j == 0)
            for _ in range(6):
                if xq: a(xq.pop(0))
            for _ in range(3 if n < 4 else 2):
                if q: a(q.pop(0))
            if dp and n not in ((0, 3, 6, 9) if len(dp) <= 11 - n - (11 - n)//3 else (0,)):
                for t in dp.pop(0): a(t)
            z_ = lambda r: '0' if (it == 0 and j < 2) else v(r, 4)
            if j % 2 == 1: a(f'{M16} {v(SUMS+4*f,4)}, {v(OA_,4)}, {v(F+16*j+4+4*f,4)}, {z_(SUMS+4*f)}')
            elif f == 1: a(f'{M16} {v(SUMS+12,4)}, {v(OA_,4)}, {v(F+16*j,4)}, {z_(SUMS+12)}')
            if n == 0 and it in (0, 3):
                a('s_cmp_eq_u32 s35, 0'); a(f's_cbranch_scc0 p0_clr{it}')
                a.label(f'p0_back{it}')
        assert not q and not dp and not xq
        for r_ in range(4):
            a(f'v_dot2_f32_bf16 v{S1}, v{F+r_}, v{F+r_}, v{S1}')
            a(f'v_dot2_f32_bf16 v{S2}, v{F+32+r_}, v{F+32+r_}, v{S2}')
        if it == 3: stp0('p0 trip0')
    a('s_branch p0_after')
    a.label('p0_clr0')
    a('s_cmp_lg_u32 s12, 0'); a('s_cbranch_scc1 p0_back0')
    a('s_mov_b64 exec, 1'); a(f'v_mov_b32 v{AV}, 1')
    a(f'buffer_atomic_add v{AV}, v{L4}, s[20:23], 0 offen sc0 sc1')
    a('s_mov_b64 exec, -1')
    a('s_branch p0_back0')
    a.label('p0_clr3')
    a('s_cmp_lg_u32 s12, 0'); a('s_cbranch_scc1 p0_back3')
    a(f'v_readfirstlane_b32 s33, v{AV}')
    a('s_cmp_lg_u32 s33, 31'); a('s_cbranch_scc1 p0_back3')
    a('s_mov_b64 exec, 1'); a(f'v_mov_b32 v{AV}, 1')
    a(f'buffer_store_dword v{AV}, v{L4}, s[20:23], 0 offen offset:128 sc1')
    a('s_mov_b64 exec, -1')
    a('s_branch p0_back3')
    a.label('p0_after')
    stp0('p0 loop')
    for u in (1, 2, 0): mf(u, v(XE, 4), v(WE + 4*u, 4), False)
    a('s_cmp_lg_u32 s19, 0'); a('s_cbranch_scc1 p0_nowe')
    for u in range(3):
        a(f'buffer_store_dwordx4 {v(204+4*u,4)}, v{L16}, s[4:7], s53 offen sc1')
        if u < 2: a(f's_add_u32 s53, s53, {16*FT}')
    a('s_cmp_lg_u32 s17, 0'); a('s_cbranch_scc1 p0_nowe')
    for u in range(3):
        a(f's_mul_i32 s33, s{(16, 76, 77)[u]}, {FT}'); a(f's_add_u32 s33, s33, {L.WQKVF + 32*1024 + 16*u*FT}')
        a(f'buffer_store_dwordx4 {v(WE+4*u,4)}, v{L16}, s[4:7], s33 offen sc1')
    a.label('p0_nowe')
    a('s_mov_b64 exec, 1')
    a(f'buffer_load_dword v{AV+1}, v{L4}, s[20:23], 0 offen offset:128 sc1')
    a('s_mov_b64 exec, -1')
    a('s_waitcnt lgkmcnt(0)')
    for f in (1, 2, 0):
        A = ACC[f]
        for g in range(2):
            B = A + 8*g
            for r_ in range(0, 8, 2):
                if f < 2:
                    o = 1 if f == 0 else 0
                    a(f'v_pk_mul_f32 {v(B+r_,2)}, {v(B+r_,2)}, {v(RS,2)} op_sel:[0,{o}] op_sel_hi:[1,{o}]')
                else:
                    a(f'v_pk_mul_f32 {v(B+r_,2)}, {v(B+r_,2)}, {v(STV+8*g+r_,2)}')
            for r_ in range(4): a(f'v_cvt_pk_bf16_f32 v{B+r_}, v{B+2*r_}, v{B+2*r_+1}')
            if f < 2: a(f'buffer_store_dwordx4 {v(B,4)}, v{L16}, s[4:7], s{56+2*f+g} offen sc1')
            else: a(f'buffer_store_dwordx4 {v(B,4)}, v78, s[4:7], s54 offen offset:{512*g} sc1')
    a(f'v_and_b32 v{T0}, 27, v{LN}')
    a(f'v_cmp_eq_u32 vcc, 16, v{T0}')
    a(f'v_cndmask_b32 v96, 0, v{ONE}, vcc'); a(f'v_cndmask_b32 v97, 0, v{ONE}, vcc')
    for r_ in range(2, 128, 2): a(f'v_pk_mov_b32 {v(96+r_,2)}, {v(96,2)}, {v(96,2)}')
    FR = 224
    a('s_waitcnt vmcnt(6)')
    a('s_mov_b32 s34, 0')
    a.label('p0_clr_poll')
    a(f'v_readfirstlane_b32 s33, v{AV+1}')
    a('s_cmp_eq_u32 s33, 1'); a('s_cbranch_scc1 p0_clr_ok')
    a('s_mov_b64 exec, 1')
    a(f'buffer_load_dword v{AV+1}, v{L4}, s[20:23], 0 offen offset:128 sc1')
    a('s_mov_b64 exec, -1')
    a('s_add_u32 s34, s34, 1')
    a('s_waitcnt vmcnt(0)')
    a(f's_cmp_lt_u32 s34, {SPIN}'); a('s_cbranch_scc1 p0_clr_poll')
    a.label('p0_clr_ok')
    a('s_waitcnt vmcnt(0)')
    if int(OPT.get('fl', 1)): a('s_mov_b32 exec_hi, 0')
    else: a('s_mov_b64 exec, 1')
    a(f'v_mov_b32 v{AV}, 1')
    a(f'buffer_store_dword v{AV}, v{L4}, s[4:7], s42 offen sc1')
    a('s_mov_b64 exec, -1')
    a('s_lshl_b32 s33, s2, 2'); a('s_add_u32 s33, s33, s12'); a(f's_mul_i32 s33, s33, {10*FS}'); a(f's_add_u32 s33, s33, {CNT + 1024*FS}')
    for r_ in range(4): a(f'v_mov_b32 v{28+r_}, 0')
    a('buffer_store_dwordx4 v[28:31], v65, s[4:7], s33 offen sc1')
    a('s_mov_b64 exec, 0xffff')
    a('buffer_store_dwordx4 v[28:31], v65, s[4:7], s33 offen offset:2048 sc1')
    a('s_mov_b64 exec, -1')
    stp0('p0 sig')
    FEARLY = int(OPT.get('fearly', 1))
    a(f's_cmp_ge_u32 s26, {NSIDE}'); a('s_cbranch_scc1 ' + ('p0_rd3' if FEARLY else 'p0_noside'))
    a('s_barrier')
    a('s_cmp_eq_u32 s65, 0'); a('s_cbranch_scc1 p0_rd2')
    for i in range(4):
        a(f'ds_read_b64_tr_b16 {v(FR+4*i,2)}, v{SR} offset:{i*1024}')
        a(f'ds_read_b64_tr_b16 {v(FR+4*i+2,2)}, v{SR} offset:{i*1024+512}')
    a('s_branch p0_rd3')
    a.label('p0_rd2')
    for i in range(4):
        a(f'ds_read_b64_tr_b16 {v(FR+4*i,2)}, v{SR} offset:{i*64}')
        a(f'ds_read_b64_tr_b16 {v(FR+4*i+2,2)}, v{SR} offset:{i*64+8192}')
    a.label('p0_rd3')
    if FEARLY:
        a(f's_cmp_ge_u32 s26, {NSIDE}'); a('s_cbranch_scc1 p0_noside')
    a('s_waitcnt lgkmcnt(0)')
    for i in range(4):
        a(f'buffer_store_dwordx4 {v(FR+4*i,4)}, v{L16}, s[4:7], s66 offen sc1')
        a('s_add_u32 s66, s66, s72')
    a.label('p0_noside')
    a('s_cmp_eq_u32 s65, 0'); a('s_cbranch_scc1 p0_nosum')
    a(f'v_mov_b32 v{S1}, 0'); a(f'v_mov_b32 v{S2}, 0')
    for i in range(0, 16, 2):
        a(f'v_dot2_f32_bf16 v{S1}, v{FR+i}, v{ONE}, v{S1}')
        a(f'v_dot2_f32_bf16 v{S2}, v{FR+i+1}, v{ONE}, v{S2}')
    a('s_lshl_b32 s33, s12, 8'); a(f's_add_u32 s33, s33, {SC0 + 8192}')
    a(f'v_add_u32 v{T0}, s33, v{L4}')
    a(f'v_add_f32 v{S1}, v{S1}, v{S2}')
    a(f'ds_write_b32 v{T0}, v{S1}')
    a('s_waitcnt lgkmcnt(0)')
    a('s_barrier')
    a.label('p0_nosum')
    a('s_cmp_lg_u32 s12, 3'); a('s_cbranch_scc1 p0_done')
    a('s_cmp_eq_u32 s65, 0'); a('s_cbranch_scc1 p0_wsig')
    a(f'v_and_b32 v{T2}, 31, v{LN}'); a(f'v_lshlrev_b32 v{T2}, 2, v{T2}'); a(f'v_add_u32 v{T1}, {SC0+8192}, v{T2}')
    for i in range(8): a(f'ds_read_b32 v{48+i}, v{T1} offset:{128*i}')
    B = 61
    a(f'v_mov_b32 v{B}, 0')
    a('s_cmp_lg_u32 s69, 0'); a('s_cbranch_scc1 p0_nobias')
    a('s_mov_b32 s92, s90'); a('s_and_b32 s93, s91, 0xffff'); a(f's_mov_b32 s94, {1376*2}')
    a('s_lshl_b32 s33, s68, 6')
    a(f'v_lshrrev_b32 v{T3}, 1, v{T2}')
    a(f'buffer_load_ushort v{B}, v{T3}, s[92:95], s33 offen')
    a('s_waitcnt vmcnt(0)')
    a(f'v_lshlrev_b32 v{B}, 16, v{B}')
    a.label('p0_nobias')
    a('s_waitcnt lgkmcnt(0)')
    a('v_add_f32 v48, v48, v49'); a('v_add_f32 v50, v50, v51'); a('v_add_f32 v52, v52, v53'); a('v_add_f32 v54, v54, v55')
    a('v_add_f32 v48, v48, v50'); a('v_add_f32 v52, v52, v54'); a('v_add_f32 v48, v48, v52')
    HI, MID, LO = 62, 63, 64
    split3(a, 48, HI, MID, LO, 60)
    pack_hi(a, 56, HI, HI); pack_hi(a, 57, HI, B); pack_hi(a, 58, B, B)
    pack_hi(a, 59, MID, LO)
    a('s_lshl_b32 s33, s69, 9'); a('s_add_u32 s33, s33, s70'); a(f's_add_u32 s33, s33, {32*1024}')
    a('s_mov_b32 exec_hi, 0')
    a(f'buffer_store_dwordx4 v[56:59], v{L16}, s[4:7], s33 offen sc1')
    a('s_mov_b64 exec, -1')
    a.label('p0_wsig')
    a('s_mov_b32 s96, 1')
    a('s_branch p0_out')
    a.label('p0_done')
    a('s_mov_b32 s96, 0')
    a.label('p0_out')
    a('s_and_b32 s33, s26, 7'); a(f's_mul_i32 s42, s33, {CST}'); a(f's_add_u32 s42, s42, {WCELL}')
    a('s_mov_b32 s69, 31')

def gen_main(p):
    a = p.a
    p.entry(KNAME, 512, 256)
    a('s_cmp_ge_u32 s2, 256')
    a('s_cbranch_scc1 main_end')
    global stp0
    def stp0(name):
        if not STAMP: return
        if name not in STAMPS: STAMPS.append(name)
        i = STAMPS.index(name)
        a('s_memtime s[98:99]'); a('s_memrealtime s[100:101]'); a('s_waitcnt lgkmcnt(0)')
        a(f'v_writelane_b32 v11, s98, {2*i+2}')
        a(f'v_writelane_b32 v11, s100, {2*i+3}')
    stp0('start')
    phase0(a)
    a('s_load_dwordx2 s[88:89], s[0:1], 56')
    LN, L16, L4, T0, T1, T2, T3 = 1, 2, 3, 4, 5, 6, 7
    RES = 8
    if STAMP: a('v_mov_b32 v0, v11')
    a('s_and_b32 s13, s2, 7'); a('s_lshr_b32 s14, s2, 3')
    a('s_lshl_b32 s15, s13, 1'); a('s_and_b32 s29, s14, 1'); a('s_add_u32 s15, s15, s29')
    a('s_lshr_b32 s16, s14, 1')
    a('s_lshl_b32 s17, s15, 2'); a('s_and_b32 s29, s12, 1'); a('s_lshl_b32 s29, s29, 1'); a('s_add_u32 s17, s17, s29')
    a('s_lshr_b32 s29, s12, 1'); a('s_add_u32 s17, s17, s29')
    a('s_lshl_b32 s18, s13, 2'); a('s_and_b32 s29, s14, 3'); a('s_add_u32 s18, s18, s29')
    a('s_lshr_b32 s19, s14, 2')
    a('s_lshl_b32 s21, s18, 1'); a('s_lshr_b32 s29, s12, 1'); a('s_add_u32 s20, s21, s29')
    a('s_lshl_b32 s22, s19, 1'); a('s_and_b32 s29, s12, 1'); a('s_add_u32 s22, s22, s29'); a('s_xor_b32 s23, s22, 1')
    a('s_mov_b32 s24, s18'); a('s_mov_b32 s25, s19')
    a('s_mov_b32 s26, 0'); a('s_mov_b32 s27, 0'); a(f's_mov_b32 s28, {CNT}')
    a('s_mov_b32 s30, 0x0000ffff'); a('s_mov_b32 s31, 0x0000ffff')
    a('s_lshl_b32 s32, s20, 5'); a('s_lshl_b32 s29, s22, 1'); a('s_add_u32 s32, s32, s29'); a('s_lshl_b32 s32, s32, 10')
    a('s_mul_i32 s33, s12, 22'); a('s_mul_i32 s29, s12, 21'); a('s_add_u32 s29, s29, 1')
    a('s_cmp_ge_u32 s12, 2'); a('s_cselect_b32 s33, s29, s33')
    a('s_lshl_b32 s34, s16, 6'); a('s_add_u32 s34, s34, s17')
    a('s_lshr_b32 s35, s24, 1'); a('s_lshl_b32 s35, s35, 6')
    a('s_lshl_b32 s85, s17, 4'); a('s_add_u32 s36, s85, s16')
    a('s_lshl_b32 s37, s25, 2'); a('s_add_u32 s37, s37, s12'); a('s_lshl_b32 s37, s37, 6'); a('s_add_u32 s37, s37, s24')
    a('s_lshl_b32 s38, s18, 3'); a('s_add_u32 s38, s38, s12'); a('s_lshl_b32 s38, s38, 3')
    a('s_lshl_b32 s84, s20, 4'); a('s_add_u32 s84, s84, s22')
    a('s_lshl_b32 s86, s21, 4')
    a('s_mov_b32 s94, -1'); a('s_mov_b32 s95, 0')
    a(f'v_and_b32 v{T0}, 31, v{LN}'); a(f'v_lshlrev_b32 v{T0}, 10, v{T0}')
    a(f'v_lshrrev_b32 v{T1}, 5, v{LN}'); a(f'v_lshl_add_u32 v{T0}, v{T1}, 4, v{T0}')
    a('s_lshl_b32 s53, s20, 15'); a('s_lshl_b32 s54, s22, 6'); a('s_add_u32 s53, s53, s54')
    a(f'buffer_load_dwordx4 {v(RES,4)}, v{T0}, s[8:11], s53 offen')
    a(f'buffer_load_dwordx4 {v(RES+4,4)}, v{T0}, s[8:11], s53 offen offset:32')
    a('s_mov_b32 s41, s96'); a('s_mov_b32 s97, 2')
    a('s_waitcnt lgkmcnt(0)')
    srd(a, 8, 88, 2*L.MB)

    def st(name):
        if not STAMP: return
        if name not in STAMPS: STAMPS.append(name)
        i = STAMPS.index(name)
        assert i < 31
        a('s_memtime s[98:99]'); a('s_memrealtime s[100:101]'); a('s_waitcnt lgkmcnt(0)')
        a(f'v_writelane_b32 v0, s98, {2*i+2}')
        a(f'v_writelane_b32 v0, s100, {2*i+3}')

    def run_groups(gs):
        for g in gs:
            for t in g: a(t)

    def wtile_dma(qkv):
        ftstride = (16 if qkv else 1) * FT
        pre = [f's_mul_i32 s60, s16, {(1 if qkv else 3) * FT}',
               f's_add_u32 s60, s60, {L.WQKVF if qkv else L.W1F}',
               's_lshl_b32 s64, s12, 12',
               's_add_u32 s61, s60, s64',
               's_min_u32 s65, s12, 2',
               f's_mul_i32 s66, s65, {ftstride}',
               's_add_u32 s66, s66, s60',
               f's_add_u32 s66, s66, {32*1024}',
               f's_mul_i32 s65, s65, {FT}']
        groups = [pre]
        for half in range(2):
            for j in range(3):
                g = [f's_add_u32 m0, s64, {j*FT + half*16384}',
                     f's_add_u32 s62, s61, {j*ftstride + half*16384}']
                g += [f'buffer_load_dwordx4 v{L16}, s[4:7], s62 offen offset:{1024*q} sc1 lds' for q in range(4)]
                groups.append(g)
        groups.append([f's_add_u32 m0, s65, {32*1024}', 's_nop 0', f'buffer_load_dwordx4 v{L16}, s[4:7], s66 offen sc1 lds'])
        return groups

    def wq_third(region, nw):
        ftg = (1, 2, 0)[region]
        per = 32 // nw
        groups = [[f's_mul_i32 s60, s16, {FT}', 's_and_b32 s64, s12, 1', f's_mul_i32 s64, s64, {per*1024}', 's_add_u32 s61, s60, s64',
                   f's_add_u32 s61, s61, {L.WQKVF + 16*ftg*FT}', f's_add_u32 s60, s60, {L.WQKVF + 16*ftg*FT + 32*1024}']]
        for c in range(per // 4):
            g = [f's_add_u32 m0, s64, {region*FT + c*4096}', f's_add_u32 s62, s61, {c*4096}']
            g += [f'buffer_load_dwordx4 v{L16}, s[4:7], s62 offen offset:{1024*q} sc1 lds' for q in range(4)]
            groups.append(g)
        groups.append([f's_mov_b32 m0, {region*FT + 32*1024}', 's_nop 0', f'buffer_load_dwordx4 v{L16}, s[4:7], s60 offen sc1 lds'])
        return groups

    def poll_setup(ph, idx, add=0, out=None):
        e = out.append if out is not None else a
        e(f's_lshl_b32 s50, s{idx}, 8')
        e('s_add_u32 s50, s50, s28')
        e(f's_add_u32 s50, s50, {(FB_[ph] + add)*FS}')
        e(f'v_lshlrev_b32 v{T0}, {9 if ph == 0 else 8}, v{LN}')
    def setx(n): a('s_mov_b64 exec, ' + ('s[94:95]' if n == 32 else str((1 << n) - 1)))
    def poll_load(n, off=0):
        setx(n)
        a(f'buffer_load_dword v{T1}, v{T0}, s[4:7], s50 offen offset:{off} sc1')
        a('s_mov_b64 exec, -1')
    def poll_test(n, go):
        setx(n)
        a(f'v_cmp_ne_u32 vcc, 1, v{T1}')
        a('s_mov_b64 exec, -1')
        a('s_cmp_eq_u64 vcc, 0')
        a(f's_cbranch_scc1 {go}')
    def poll_spin(n, go, hook=None, off=0):
        lp = a.lab('poll')
        a('s_mov_b32 s51, 0')
        a.label(lp)
        poll_load(n, off)
        a('s_add_u32 s51, s51, 1')
        a('s_waitcnt vmcnt(0)')
        if hook: hook()
        poll_test(n, go)
        a(f's_cmp_lt_u32 s51, {SPIN}')
        a(f's_cbranch_scc1 {lp}')
        a.label(go)
    def poll(ph, idx, add=0):
        poll_setup(ph, idx, add)
        poll_spin(NP[ph], a.lab('go'))
    def sig_addr(ph, idx, add=0, out=None):
        e = out.append if out is not None else a
        e(f's_lshl_b32 s42, s{idx}, 8')
        e('s_add_u32 s42, s42, s28')
        e(f's_add_u32 s42, s42, {(FB_[ph] + add)*FS}')
        e('s_mov_b32 s69, -1')
        e('s_mov_b32 s97, 0')
    def sig_atomic():
        a('s_mov_b64 exec, 1')
        a('v_mov_b32 v0, 1')
        if True:
            l1 = a.lab('sa'); l2 = a.lab('sb')
            a('s_cmp_eq_u32 s69, -1'); a(f's_cbranch_scc0 {l1}')
            if int(OPT.get('fl', 1)) and not STAMP:
                a('s_mov_b64 exec, s[94:95]'); a('v_mov_b32 v0, 1')
            a(f'buffer_store_dword v0, v{L4}, s[4:7], s42 offen sc1')
            a(f's_branch {l2}')
            a.label(l1)
        a(f'buffer_atomic_add v0, v{L4}, s[4:7], s42 offen sc0 sc1')
        a.label(l2)
        a('s_mov_b64 exec, -1')
    def sig_finish(ph=None):
        sk = a.lab('notlast')
        a('v_readfirstlane_b32 s52, v0')
        a('s_cmp_lg_u32 s52, s69')
        a(f's_cbranch_scc1 {sk}')
        a('s_mov_b64 exec, 1')
        a('v_mov_b32 v0, 1')
        a(f'buffer_store_dword v0, v{L4}, s[4:7], s42 offen offset:{FOFF} sc1')
        a('s_mov_b64 exec, -1')
        a.label(sk)
    def signal(ph, idx, add=0):
        sig_addr(ph, idx, add)
        a('s_waitcnt vmcnt(0)')
        sig_atomic()
        a('s_waitcnt vmcnt(0)')
        sig_finish(ph)

    def gemmA_pre(qkv):
        xi0 = 0 if qkv else 1
        stsz = L.ST[1] - L.ST[0]
        a('s_lshl_b32 s47, s17, 15'); a('s_lshl_b32 s29, s27, 1'); a('s_add_u32 s47, s47, s29'); a(f's_add_u32 s47, s47, {L.X[xi0]}')
        a('s_lshl_b32 s48, s17, 12'); a(f's_mul_i32 s29, s26, {2*stsz}'); a('s_add_u32 s48, s48, s29'); a(f's_add_u32 s48, s48, {L.ST[xi0]}')
        a('s_lshl_b32 s55, s12, 10'); a(f's_add_u32 s55, s55, {SCR + 1024}')
        a(f'v_add_u32 v64, s55, v{L16}')
        a(f'v_add_u32 v65, s55, v{L4}')
        a(f'v_add_u32 v70, {FT}, v{L16}')
        a(f'v_add_u32 v71, {2*FT}, v{L16}')
        if qkv:
            a('s_lshl_b32 s56, s16, 17'); a('s_lshl_b32 s57, s17, 10'); a('s_add_u32 s56, s56, s57'); a('s_add_u32 s56, s56, s27')
            a('s_add_u32 s57, s56, 0x10000')
            a(f's_add_u32 s58, s56, {L.K[0]}'); a(f's_add_u32 s59, s57, {L.K[0]}')
            a(f's_add_u32 s54, s56, {L.V[0]}')
            a('s_lshl_b32 s55, s12, 8'); a(f's_add_u32 s55, s55, {SCR}')
            a(f'v_add_u32 v76, s55, v{L4}')
            a(f'v_lshrrev_b32 v77, 5, v{LN}'); a('v_lshlrev_b32 v77, 4, v77'); a('v_add_u32 v77, s55, v77')
            a(f'v_bfe_u32 v78, v{LN}, 4, 1'); a('v_lshlrev_b32 v78, 16, v78')
            a(f'v_lshrrev_b32 v79, 5, v{LN}'); a('v_lshl_add_u32 v78, v79, 8, v78')
            a(f'v_and_b32 v79, 15, v{LN}'); a('v_lshl_add_u32 v78, v79, 4, v78')
        else:
            actsz = L.ACT[1] - L.ACT[0]
            a('s_mul_i32 s56, s17, 86'); a('s_mul_i32 s57, s16, 6'); a('s_add_u32 s56, s56, s57')
            a('s_lshl_b32 s56, s56, 10'); a(f's_mul_i32 s57, s26, {actsz}'); a('s_add_u32 s56, s56, s57')
            a(f's_add_u32 s56, s56, {L.ACT[0]}'); a('s_add_u32 s57, s56, 4096')
            a('s_cmp_eq_u32 s16, 14')
            a(f's_cselect_b32 s29, {64*L.MB}, 0')
            a('s_add_u32 s58, s56, s29'); a('s_add_u32 s57, s57, s29')
            a(f'v_mov_b32 v67, {CNTL}'); a('v_mov_b32 v79, 1')

    def gemmA(qkv, first_sync=None):
        tag = 'qkv' if qkv else 'ffn1'
        RS, RQ = 68, 69
        WA = [71, L16, 70] if qkv else [L16, 70, 71]
        XE = 72
        STV = 16
        WS = [32 + 4*i for i in range(8)]
        ACC = [80 + 16*i for i in range(3)]
        XF = 128
        fa, fb, fc = (1, 2, 0) if qkv else (0, 1, 2)
        nvm = [0]; at = {}
        def xload(i):
            a(f'buffer_load_dwordx4 {v(XF+4*i,4)}, v{L16}, s[4:7], s47 offen offset:{1024*(i%4)} sc1'); nvm[0] += 1
            if i % 4 == 3: a('s_add_u32 s47, s47, 4096')
            at[i] = nvm[0]
        PRE = int(OPT['apre'])
        for i in range(6): xload(i)
        for i in range(4):
            a(f'buffer_load_dwordx4 {v(STV+4*i,4)}, v{L16}, s[4:7], s48 offen offset:{1024*i} sc1'); nvm[0] += 1
        for i in range(6, PRE): xload(i)
        if first_sync: first_sync(nvm[0])
        sv = []
        for stp in (8, 4):
            for i in range(stp): sv.append(f'v_add_f32 v{STV+i}, v{STV+i}, v{STV+i+stp}')
        sv.append(f'ds_write_b128 v64, {v(STV,4)}')
        sv.append(f'ds_read2_b32 {v(STV+4,2)}, v65 offset0:0 offset1:64')
        sv.append(f'ds_read2_b32 {v(STV+6,2)}, v65 offset0:128 offset1:192')
        sv.append('WAITDS')
        sv.append(f'v_add_f32 v{STV+4}, v{STV+4}, v{STV+5}')
        sv.append(f'v_add_f32 v{STV+6}, v{STV+6}, v{STV+7}')
        sv.append(f'v_add_f32 v{STV}, v{STV+4}, v{STV+6}')
        sv.append(f'v_mov_b32 v{STV+1}, v{STV}')
        sv.append(f'v_permlane32_swap_b32 v{STV}, v{STV+1}')
        sv.append(f'v_mul_f32 v{STV}, {f32(-1.0/512)}, v{STV}')
        sv.append(f'v_mul_f32 v{STV+1}, {f32(1.0/512)}, v{STV+1}')
        sv.append(f'v_fma_f32 v{STV+1}, -v{STV}, v{STV}, v{STV+1}')
        sv.append(f'v_max_f32 v{STV+1}, 0, v{STV+1}')
        sv.append(f'v_add_f32 v{STV+1}, {f32(1e-5)}, v{STV+1}')
        sv.append(f'v_rsq_f32 v{RS}, v{STV+1}')
        sv.append(f'v_mul_f32 v{STV+1}, v{STV+1}, v{RS}')
        r = sv.append
        MH, MM, ML, SH, SM, SL, TT = STV+2, STV+3, STV+4, STV+5, STV+6, STV+7, STV+8
        split3(r, STV, MH, MM, ML, TT); split3(r, STV+1, SH, SM, SL, TT)
        pack_hi(r, XE, MH, MM); pack_hi(r, XE+1, ML, SH); pack_hi(r, XE+2, SM, SL)
        pack_hi(r, XE+3, MH, MH)
        sv.append(f'v_mul_f32 v{RQ}, {f32(L.QSCALE if qkv else 1.4426950408889634)}, v{RS}')
        if not qkv: sv.append(f'v_mul_f32 v66, -2.0, v{RS}')
        if qkv:
            sv.append(f'ds_write_b32 v76, v{RS}')
            for j in range(4): sv.append(f'ds_read_b128 {v(STV+4*j,4)}, v77 offset:{32*j}')
        def epi(f, pk, gs=(0, 1)):
            A = ACC[f]; out = []
            def mul(d, s0, s1b, n, bcast):
                if pk:
                    for r_ in range(0, n, 2):
                        if bcast:
                            base = s1b & ~1; o = s1b & 1
                            out.append(f'v_pk_mul_f32 {v(d+r_,2)}, {v(s0+r_,2)}, {v(base,2)} op_sel:[0,{o}] op_sel_hi:[1,{o}]')
                        else:
                            out.append(f'v_pk_mul_f32 {v(d+r_,2)}, {v(s0+r_,2)}, {v(s1b+r_,2)}')
                else:
                    for r_ in range(n): out.append(f'v_mul_f32 v{d+r_}, v{s1b if bcast else s1b+r_}, v{s0+r_}')
            for g in gs:
                B = A + 8*g
                if qkv:
                    if f < 2: mul(B, B, RQ if f == 0 else RS, 8, True)
                    else: mul(B, B, STV + 8*g, 8, False)
                else:
                    U = STV
                    mul(U, B, RQ, 8, True)
                    for r_ in range(8): out.append(f'v_exp_f32 v{U+r_}, v{U+r_}')
                    if pk:
                        for r_ in range(0, 8, 2): out.append(f'v_pk_add_f32 {v(U+8+r_,2)}, {v(U+r_,2)}, 2.0 op_sel_hi:[1,0]')
                        for r_ in range(0, 8, 2): out.append(f'v_pk_fma_f32 {v(U+r_,2)}, {v(U+r_,2)}, {v(U+8+r_,2)}, 2.0 op_sel_hi:[1,1,0]')
                    else:
                        for r_ in range(8): out.append(f'v_add_f32 v{U+8+r_}, 2.0, v{U+r_}')
                        for r_ in range(8): out.append(f'v_fma_f32 v{U+r_}, v{U+r_}, v{U+8+r_}, 2.0')
                    for r_ in range(8): out.append(f'v_rcp_f32 v{U+r_}, v{U+r_}')
                    if pk:
                        for r_ in range(0, 8, 2): out.append(f'v_pk_fma_f32 {v(U+r_,2)}, {v(U+r_,2)}, {v(66,2)}, {v(RS,2)} op_sel_hi:[1,0,0]')
                    else:
                        for r_ in range(8): out.append(f'v_fma_f32 v{U+r_}, v{U+r_}, v66, v{RS}')
                    mul(B, B, U, 8, False)
                for r_ in range(4): out.append(f'v_cvt_pk_bf16_f32 v{B+r_}, v{B+2*r_}, v{B+2*r_+1}')
                if qkv:
                    if f < 2: out.append(f'buffer_store_dwordx4 {v(B,4)}, v{L16}, s[4:7], s{56+2*f+g} offen sc1')
                    else: out.append(f'buffer_store_dwordx4 {v(B,4)}, v78, s[4:7], s54 offen offset:{512*g} sc1')
                else:
                    k = 2*f + g
                    sreg = 56 if k < 2 else (58 if k < 4 else 57)
                    out.append(f'buffer_store_dwordx4 {v(B,4)}, v{L16}, s[4:7], s{sreg} offen offset:{1024*(k%4)} sc1')
            return out
        def cost(t):
            return 8 if t.startswith(TRANS) else (16 if t.startswith('buffer') else 4)
        NB = int(OPT['nb'])
        order = []; nb = 0
        for s_ in range(33):
            order.append((fa, s_))
            while nb < NB and nb + 1 <= (s_ + 1) * NB / 33.0:
                order.append((fb, nb)); nb += 1
        order += [(fb, k) for k in range(nb, 33)] + [(fc, k) for k in range(33)]
        last = {f: max(i for i, o in enumerate(order) if o[0] == f) for f in range(3)}
        nds = [0]; dsat = {}
        def rd(i):
            f, k = order[i]
            if qkv and f == fc and k == 0 and int(OPT.get('fuse', 1)):
                lp = a.lab('qspin'); ok = a.lab('qok')
                a(f'v_mov_b32 v66, {CNTL}'); a('s_mov_b32 s51, 0')
                a.label(lp)
                a('ds_read_b32 v67, v66 offset:8')
                a('s_add_u32 s51, s51, 1')
                a('s_waitcnt lgkmcnt(0)')
                a('v_readfirstlane_b32 s52, v67')
                a('s_cmp_ge_u32 s52, 2'); a(f's_cbranch_scc1 {ok}')
                a(f's_cmp_lt_u32 s51, {8*SPIN}'); a(f's_cbranch_scc1 {lp}')
                a.label(ok)
            a(f'ds_read_b128 {v(WS[i%8],4)}, v{WA[f]} offset:{k*1024}'); nds[0] += 1; dsat[i] = nds[0]
        AH = 6
        for i in range(AH): rd(i)
        nx = PRE; xw = -1
        q = list(sv); ready = {}; units = []
        N = len(order)
        for i, (f, k) in enumerate(order):
            w = f'lgkmcnt({min(15, nds[0] - dsat[i])})'
            if k < 32 and k > xw:
                w = f'vmcnt({nvm[0] - at[k]}) ' + w; xw = k
            if k == 32: assert not any(t in q for t in sv), 'stats not finished'
            if i > last[fa] + 1 and (i - last[fa]) % 2 == 0: pass
            elif i > last[fa] and i + 1 < N: a(f's_waitcnt lgkmcnt({min(15, nds[0] - dsat[i+1])})')
            else: a(f's_waitcnt {w}')
            xf = v(XF + 4*k, 4) if k < 32 else v(XE, 4)
            wf = v(WS[i % 8], 4)
            cc = '0' if k == 0 else v(ACC[f], 16)
            if qkv and f == 2: a(f'{MFMA} {v(ACC[f],16)}, {xf}, {wf}, {cc}')
            else: a(f'{MFMA} {v(ACC[f],16)}, {wf}, {xf}, {cc}')
            if i + AH < N: rd(i + AH)
            if not qkv and i in (last[fa], last[fb]):
                a('s_mov_b64 exec, 1')
                a(f'ds_add_u32 v67, v79 offset:{0 if i == last[fa] else 4}'); nds[0] += 1
                a('s_mov_b64 exec, -1')
            budget = 16
            if f == fa and nx < 32:
                xload(nx); nx += 1; budget = 8
            CAP = int(OPT.get('cap', 24))
            for ff in (fa, fb):
                if i == last[ff] + 3: units.extend([(ff, 0), (ff, 1)])
            if not q and units and (CAP == 0 or sum(map(cost, epi(units[0][0], False, (0,)))) <= 1.5*CAP*(N - i)):
                u_ = units.pop(0); q += epi(u_[0], False, (u_[1],))
            if xw >= 6:
                if i > last[fa]:
                    if CAP: budget = CAP
                    else:
                        rem = sum(map(cost, q)) + (len(units) + (2 if i < last[fb] + 3 else 0)) * sum(map(cost, epi(fb, False, (0,))))
                        budget = max(16, -(-rem // max(1, N - i)))
                while q and budget >= min(cost(q[0]), 8):
                    if q[0] == 'WAITDS':
                        if 'mark' not in ready: ready['mark'] = nds[0]
                        if dsat[i] < ready['mark']: break
                        q.pop(0); continue
                    t = q.pop(0); budget -= cost(t); a(t)
                    if t.startswith('buffer'): nvm[0] += 1
                    if t.startswith('ds_'): nds[0] += 1
        for t in q: a(t)
        st(tag + ' loop')
        for u_ in units:
            for t in epi(u_[0], True, (u_[1],)): a(t)
        for t in epi(fc, True): a(t)

    WOA = 0; W2A = 64
    NW2PRE = 18
    def wB_loads(wo, steps):
        KS = 32 if wo else W2KS
        base = WOA if wo else W2A
        first = steps[0]
        pre = []
        for i, ft in enumerate((22, 23)):
            pre.append(f's_mul_i32 s{67+i}, s{ft}, {KS}')
            if wo:
                pre.append('s_lshl_b32 s29, s12, 3'); pre.append(f's_add_u32 s{67+i}, s{67+i}, s29')
            else:
                pre.append(f's_add_u32 s{67+i}, s{67+i}, s33')
            pre.append(f's_lshl_b32 s{67+i}, s{67+i}, 10')
            pre.append(f's_add_u32 s{67+i}, s{67+i}, {(L.WOF if wo else L.W2F) + first*1024}')
        groups = [pre]
        for n0 in range(0, len(steps), 4):
            for i in range(2):
                g = [f'buffer_load_dwordx4 {areg(base + 8*stp + 4*i)}, v{L16}, s[4:7], s{67+i} offen offset:{1024*q} sc1' for q, stp in enumerate(steps[n0:n0+4])]
                g.append(f's_add_u32 s{67+i}, s{67+i}, 4096')
                groups.append(g)
        return groups

    BACC = [[16 + 16*(2*i+j) for j in range(2)] for i in range(2)]
    BAD = 240
    def gemmB_pre(wo):
        KS = 32 if wo else 86
        actsz = L.ACT[1] - L.ACT[0]
        a(f's_mul_i32 s56, s21, {KS}')
        if wo:
            a('s_lshl_b32 s29, s12, 3'); a('s_add_u32 s56, s56, s29')
        else:
            a('s_add_u32 s56, s56, s33')
        a('s_lshl_b32 s56, s56, 10')
        if wo:
            a('s_add_u32 s56, s56, s27'); a(f's_add_u32 s56, s56, {L.O[0]}')
        else:
            a(f's_mul_i32 s29, s26, {actsz}'); a('s_add_u32 s56, s56, s29'); a(f's_add_u32 s56, s56, {L.ACT[0]}')
        a(f's_add_u32 s57, s56, {KS*1024}')
        xo = 1 if wo else 2
        stsz = L.ST[1] - L.ST[0]
        a('s_lshl_b32 s58, s27, 1'); a('s_add_u32 s58, s58, s32'); a(f's_add_u32 s58, s58, {L.X[xo]}')
        a('s_lshl_b32 s59, s20, 12'); a('s_lshl_b32 s54, s22, 8'); a('s_add_u32 s59, s59, s54')
        a(f's_mul_i32 s54, s26, {2*stsz}'); a('s_add_u32 s59, s59, s54'); a(f's_add_u32 s59, s59, {L.ST[xo]}')
        for i in range(2):
            for j in range(2):
                a('s_and_b32 s54, s12, 1')
                if j: a('s_xor_b32 s54, s54, 1')
                a(f's_add_u32 s54, s54, {2*i}')
                a('s_xor_b32 s55, s54, s12')
                a('s_mul_i32 s54, s54, 3'); a('s_add_u32 s54, s54, s55'); a('s_lshl_b32 s54, s54, 12')
                a(f's_add_u32 s54, s54, {RED - 4096}')
                a(f'v_add_u32 v{BAD+2*i+j}, s54, v{L16}')
        a(f's_mul_i32 s55, s12, {3*4096}'); a(f's_add_u32 s55, s55, {RED}')
        a(f'v_add_u32 v{BAD+4}, s55, v{L16}')
        if not wo:
            a(f'v_and_b32 v{BAD+5}, 31, v{LN}'); a(f'v_lshlrev_b32 v{BAD+5}, 10, v{BAD+5}')
            a(f'v_lshrrev_b32 v{BAD+6}, 5, v{LN}'); a(f'v_lshl_add_u32 v{BAD+5}, v{BAD+6}, 4, v{BAD+5}')
            a('s_lshl_b32 s53, s20, 15'); a('s_lshl_b32 s54, s22, 6'); a('s_add_u32 s53, s53, s54')

    def sig_try(state, wait=None):
        e = a.lab('sge')
        a(f's_cmp_lg_u32 s41, {state}')
        a(f's_cbranch_scc1 {e}')
        if wait is not None: a(f's_waitcnt vmcnt({wait})')
        if state == 1:
            sig_atomic(); a('s_mov_b32 s41, s97')
        else:
            sig_finish(); a('s_mov_b32 s41, 0')
        a.label(e)
    def sig_slot(wait):
        d = a.lab('sgd'); e = a.lab('sge')
        a('s_cmp_lg_u32 s41, 1')
        a(f's_cbranch_scc1 {d}')
        a(f's_waitcnt vmcnt({wait})')
        sig_atomic(); a('s_mov_b32 s41, s97')
        a(f's_branch {e}')
        a.label(d)
        a('s_mov_b64 exec, 2')
        a(f'buffer_load_dword v0, v{L4}, s[4:7], 0 offen')
        a('s_mov_b64 exec, -1')
        a.label(e)
    def sig_step():
        sig_try(2); sig_try(1)
    def sig_block():
        sig_try(1, 0); sig_try(2, 0)

    def gemmB(wo, tail=()):
        tag = 'wo' if wo else 'ffn2'
        nst = 8 if wo else 22
        wbase = WOA if wo else W2A
        FB = 80
        NSL = 24
        RB = 176
        WIN = min(int(OPT['bwin']), nst)
        LAG = 3
        st(tag + 'A go')
        class St: pass
        z = St(); z.nvm = 0; z.at = {}; z.issued = 0; z.tail = list(tail)
        def xr(n): return FB + 4*(n % NSL)
        def load(z):
            n = z.issued; i, k = divmod(n, nst)
            a(f'buffer_load_dwordx4 {v(xr(n),4)}, v{L16}, s[4:7], s{56+i} offen offset:{1024*(k%4)} sc1'); z.nvm += 1
            if k % 4 == 3: a(f's_add_u32 s{56+i}, s{56+i}, 4096')
            z.at[n] = z.nvm; z.issued += 1
        def mm(i, j, k):
            cc = '0' if k == 0 else v(BACC[i][j],16)
            a(f'{MFMA} {v(BACC[i][j],16)}, {areg(wbase+8*k+4*j)}, {v(xr(i*nst+k),4)}, {cc}')
        def zero0(n):
            if wo: return
            sk = a.lab('ffn2_s0')
            a('s_cmp_lt_u32 s12, 2')
            a(f's_cbranch_scc1 {sk}')
            for r_ in range(4): a(f'v_mov_b32 v{xr(n)+r_}, 0')
            a.label(sk)
        def wr(i, j): return [f'ds_write_b128 v{BAD+2*i+j}, {v(BACC[i][j]+4*q,4)} offset:{q*1024}' for q in range(4)]
        def epilogue(i, pk):
            A0 = BACC[i][0]; o = []
            for k in range(3):
                for q in range(4): o.append(f'ds_read_b128 {v(RB+16*k+4*q,4)}, v{BAD+4} offset:{k*4096 + q*1024}')
            U = RB + 48
            for r_ in range(8):
                o.append(f'v_lshlrev_b32 v{U+2*r_}, 16, v{RES+r_}')
                o.append(f'v_and_b32 v{U+2*r_+1}, 0xffff0000, v{RES+r_}')
            def addv(src):
                if pk:
                    for r_ in range(0, 16, 2): o.append(f'v_pk_add_f32 {v(A0+r_,2)}, {v(A0+r_,2)}, {v(src+r_,2)}')
                else:
                    for r_ in range(16): o.append(f'v_add_f32 v{A0+r_}, v{A0+r_}, v{src+r_}')
            addv(U)
            for k in range(3):
                o.append(f's_waitcnt lgkmcnt({8-4*k})')
                addv(RB + 16*k)
            for r_ in range(8): o.append(f'v_cvt_pk_bf16_f32 v{RES+r_}, v{A0+2*r_}, v{A0+2*r_+1}')
            o.append('STORE')
            if pk:
                o.append(f'v_pk_add_f32 {v(RB,2)}, {v(A0,2)}, {v(A0+2,2)}')
                o.append(f'v_pk_mul_f32 {v(RB+2,2)}, {v(A0,2)}, {v(A0,2)}')
                o.append(f'v_pk_fma_f32 {v(RB+2,2)}, {v(A0+2,2)}, {v(A0+2,2)}, {v(RB+2,2)}')
                for r_ in range(4, 16, 2):
                    o.append(f'v_pk_add_f32 {v(RB,2)}, {v(RB,2)}, {v(A0+r_,2)}')
                    o.append(f'v_pk_fma_f32 {v(RB+2,2)}, {v(A0+r_,2)}, {v(A0+r_,2)}, {v(RB+2,2)}')
                o.append(f'v_add_f32 v{T2}, v{RB}, v{RB+1}')
                o.append(f'v_add_f32 v{T3}, v{RB+2}, v{RB+3}')
            else:
                o.append(f'v_add_f32 v{T2}, v{A0}, v{A0+1}')
                o.append(f'v_mul_f32 v{T3}, v{A0}, v{A0}')
                o.append(f'v_fmac_f32 v{T3}, v{A0+1}, v{A0+1}')
                for r_ in range(2, 16):
                    o.append(f'v_add_f32 v{T2}, v{T2}, v{A0+r_}')
                    o.append(f'v_fmac_f32 v{T3}, v{A0+r_}, v{A0+r_}')
            o.append(f'v_permlane32_swap_b32 v{T2}, v{T3}')
            o.append(f'v_add_f32 v{T2}, v{T2}, v{T3}')
            o.append(f'buffer_store_dword v{T2}, v{L4}, s[4:7], s59 offen sc1')
            o.append('OWED')
            return o
        def emit(t, z):
            if t == 'STORE':
                if not wo:
                    nf = a.lab('notfinal'); dn = a.lab('stored')
                    a('s_cmp_eq_u32 s26, 0')
                    a(f's_cbranch_scc1 {nf}')
                    for g in range(2):
                        a(f'v_permlane32_swap_b32 v{RES+4*g}, v{RES+4*g+2}')
                        a(f'v_permlane32_swap_b32 v{RES+4*g+1}, v{RES+4*g+3}')
                        a(f'buffer_store_dwordx4 {v(RES+4*g,4)}, v{BAD+5}, s[8:11], s53 offen offset:{32*g} {OPT.get("of", "").replace("_", " ")}')
                    a(f's_branch {z.fin}')
                    a.label(nf)
                a(f'buffer_store_dwordx4 {v(RES,4)}, v{L16}, s[4:7], s58 offen sc1')
                a(f'buffer_store_dwordx4 {v(RES+4,4)}, v{L16}, s[4:7], s58 offen offset:1024 sc1')
                z.nvm += 2
            elif t == 'OWED':
                sig_addr(2 if wo else 4, 84)
                a('s_mov_b32 s41, 1')
                z.owed = z.nvm
            else:
                a(t)
                if t.startswith('buffer'): z.nvm += 1
        def part(i, z, kat=None):
            for k in range(nst):
                n = i*nst + k
                a(f's_waitcnt vmcnt({z.nvm - z.at[n]})')
                if k == 0:
                    if i == 1 and wo: sig_step(); z.mark = z.nvm
                    zero0(n)
                mm(i, 1, k)
                if i == 0 and k == (4 if not (SLOT and (wo or SLOT == 2)) else nst - 1): sig_try(2, z.nvm - z.mark)
                W2 = int(OPT.get('bwin2', 22))
                if not wo and i == 1 and W2 >= nst and k == nst - 1: sig_try(1, 0)
                if not wo and i == 1 and W2 < nst and k == W2: sig_try(1)
                if not wo and i == 1 and W2 < nst and k == nst - 1: sig_try(2, 0)
                if z.issued < (i + 1)*nst: load(z)
                elif z.tail and (wo or k >= 10):
                    for t in z.tail.pop(0): emit(t, z)
                if k < nst - LAG: mm(i, 0, k)
            assert not z.tail, len(z.tail)
            for k in range(nst - LAG, nst): mm(i, 0, k)
        def writes(i, wt):
            sk = a.lab('b_self')
            for t in wr(i, 1): a(t)
            a('s_lshr_b32 s54, s12, 1')
            a(f's_cmp_eq_u32 s54, {i}')
            a(f's_cbranch_scc1 {sk}')
            for t in wr(i, 0): a(t)
            a.label(sk)
            a(wt)
        def owner_epi(i):
            sk = a.lab('b_notown')
            a('s_lshr_b32 s54, s12, 1')
            a(f's_cmp_lg_u32 s54, {i}')
            a(f's_cbranch_scc1 {sk}')
            y = St(); y.nvm = 0; y.fin = sk
            for t in epilogue(i, True): emit(t, y)
            a.label(sk)
        import copy
        SLOT = int(OPT.get('slot', 1))
        if SLOT and (wo or SLOT == 2):
            for _ in range(nst): load(z)
            sig_slot(nst); z.nvm += 1; z.mark = z.nvm
        else:
            for _ in range(4): load(z)
            sig_try(2, 4); sig_try(1, 4); z.mark = z.nvm
            for _ in range(WIN - 4): load(z)
        if wo:
            TA = int(OPT.get('ta', 1))
            z.tail = list(tail) if TA else []
            part(0, z)
            poll_setup(1, 38, add=32)
            writes(0, 's_waitcnt lgkmcnt(0)')
            a('s_barrier')
            owner_epi(0)
            if int(OPT.get('w1l', 0)) == 2:
                sig_try(1, 0); run_groups(wtile_dma(False))
            st(tag + 'A end')
            poll_spin(8, a.lab('go'), hook=sig_step)
            st(tag + 'B go')
            for _ in range(WIN): load(z)
            z.tail = [] if TA else list(tail)
            part(1, z)
            sig_try(2, z.nvm - z.mark)
        elif int(OPT.get('fuse', 1)):
            KC = nst - WIN + int(OPT.get('kc', 0))
            tl = list(z.tail)
            for k in range(nst):
                a(f's_waitcnt vmcnt({z.nvm - z.at[k]})')
                if k == 0: zero0(0)
                mm(0, 1, k)
                if k == 4: sig_try(2, z.nvm - z.mark)
                if k == KC:
                    mm(0, 0, k)
                    a('s_cmp_lg_u32 s12, 3')
                    a('s_cbranch_scc1 f2_nopoll')
                    poll(3, 86, add=16)
                    a.label('f2_nopoll')
                    a('s_barrier')
                    st(tag + 'B go')
                    for _ in range(KC - (nst - WIN) + 1): load(z)
                    continue
                if z.issued < nst or k > KC: load(z)
                mm(0, 0, k)
            own = a.lab('f2_own'); jn = a.lab('f2_join')
            a('s_cmp_lt_u32 s12, 2')
            a(f's_cbranch_scc1 {own}')
            for variant in (1, 0):
                y = copy.deepcopy(z); y.fin = a.lab('f2_fin')
                if variant == 0: a.label(own)
                q = ['NOP', 'NOP'] + wr(0, 1) + (wr(0, 0) if variant == 1 else ['NOP']*4) + ['NOP', 'NOP', 's_waitcnt lgkmcnt(0)', 's_barrier']
                nsync = len(q)
                if variant == 0: q += epilogue(0, False)
                done_ = 0
                for k in range(nst):
                    n = nst + k
                    a(f's_waitcnt vmcnt({y.nvm - y.at[n]})')
                    if k == 0: zero0(n)
                    for j in (1, 0):
                        if j == 0 and k >= nst - LAG: continue
                        mm(1, j, k)
                        if j == 1 and y.issued < 2*nst: load(y)
                        for _ in range(2 if done_ < nsync else 6):
                            if not q: break
                            t = q.pop(0); done_ += 1
                            if t == 'NOP': continue
                            if t == 'STORE':
                                nf = a.lab('notfinal'); dn = a.lab('stored')
                                a('s_cmp_eq_u32 s26, 0'); a(f's_cbranch_scc1 {nf}')
                                for g in range(2):
                                    a(f'v_permlane32_swap_b32 v{RES+4*g}, v{RES+4*g+2}')
                                    a(f'v_permlane32_swap_b32 v{RES+4*g+1}, v{RES+4*g+3}')
                                    a(f'buffer_store_dwordx4 {v(RES+4*g,4)}, v{BAD+5}, s[8:11], s53 offen offset:{32*g}')
                                a(f's_branch {dn}')
                                a.label(nf)
                                a(f'buffer_store_dwordx4 {v(RES,4)}, v{L16}, s[4:7], s58 offen sc1')
                                a(f'buffer_store_dwordx4 {v(RES+4,4)}, v{L16}, s[4:7], s58 offen offset:1024 sc1')
                                a.label(dn)
                                y.nvm += 2
                            else: emit(t, y)
                assert not q, len(q)
                for k in range(nst - LAG, nst): mm(1, 0, k)
                if variant == 1:
                    a(f's_branch {jn}')
                else:
                    a('s_cmp_eq_u32 s26, 1'); a('s_cselect_b32 s41, 0, s41')
                    sig_try(1, 0)
            a.label(jn)
            FUSED = True
        else:
            nod = a.lab('f2_nodma'); jn = a.lab('f2_join')
            a('s_lshl_b32 s54, s26, 2'); a('s_add_u32 s54, s54, s12')
            a('s_cmp_ge_u32 s54, 2')
            a(f's_cbranch_scc1 {nod}')
            y = copy.deepcopy(z)
            part(0, y)
            a(f's_branch {jn}')
            a.label(nod)
            z.tail = []
            part(0, z)
            a.label(jn)
            writes(0, 's_waitcnt lgkmcnt(0)')
            a('s_cmp_lg_u32 s12, 3')
            a('s_cbranch_scc1 f2_nopoll')
            poll(3, 86, add=16)
            a.label('f2_nopoll')
            st(tag + 'A end')
            a('s_barrier')
            st(tag + 'B go')
            for _ in range(int(OPT.get('bwin2', 22))): load(z)
            owner_epi(0)
            part(1, z)
        poll_setup(2 if wo else 4, 85)
        poll_load(16)
        writes(1, 's_waitcnt lgkmcnt(0)')
        a('s_barrier')
        owner_epi(1)
        st(tag + 'B end')
        if not wo and int(OPT.get('fuse', 1)):
            sk_ = a.lab('f2_nc')
            sig_try(1, 0)
            a('s_lshr_b32 s54, s12, 1'); a('s_andn2_b32 s54, s54, s26'); a(f's_cbranch_scc0 {sk_}')
            run_groups(tail[:3]); sig_try(2, 8); run_groups(tail[3:])
            a('s_waitcnt vmcnt(0)')
            a(f'v_mov_b32 v{T2}, {CNTL}'); a(f'v_mov_b32 v{T3}, 1')
            a('s_mov_b64 exec, 1'); a(f'ds_add_u32 v{T2}, v{T3} offset:8'); a('s_mov_b64 exec, -1')
            a.label(sk_)
        sig_block()
        st(tag + ' sig')

    SB = [16, 32]; PB = [48, 52]; OA = [56, 72]; QF = [88, 92]; VR = 96
    TMP = 240
    def kreg(kt): return v(224 + 4*kt, 4) if kt < 4 else areg(208 + 4*(kt-4))
    def vreg(kt, g): return v(VR + 8*kt + 4*g, 4)
    VOFF, PADDR = T2, T3
    PA4 = TMP + 12
    def qaddr(p_, sreg=53):
        return [f's_add_u32 s{sreg}, s12, {1 + p_}', f's_and_b32 s{sreg}, s{sreg}, 3', f's_lshl_b32 s{sreg}, s{sreg}, 11', f's_add_u32 s{sreg}, s{sreg}, s{48 + (p_ >> 2)}']
    def attn_pre():
        a(f'v_and_b32 v{T0}, 27, v{LN}')
        a(f'v_cmp_eq_u32 vcc, 16, v{T0}')
        a(f'v_mov_b32 v{T1}, {ONES}')
        a(f'v_cndmask_b32 v{VR}, 0, v{T1}, vcc')
        a(f'v_cndmask_b32 v{VR+1}, 0, v{T1}, vcc')
        for r_ in range(2, 128, 2): a(f'v_pk_mov_b32 {v(VR+r_,2)}, {v(VR,2)}, {v(VR,2)}')
        a.label('main_attpre2')
        a(f'v_and_b32 v{T1}, 15, v{LN}'); a(f'v_lshlrev_b32 v{T1}, 4, v{T1}')
        a(f'v_lshrrev_b32 v{VOFF}, 5, v{LN}'); a(f'v_lshl_add_u32 v{VOFF}, v{VOFF}, 8, v{T1}')
        a('s_lshl_b32 s44, s24, 16'); a('s_add_u32 s44, s44, s27')
        a('s_lshl_b32 s45, s12, 14'); a('s_add_u32 s45, s45, s44')
        a(f's_add_u32 s46, s45, {L.K[0]}'); a(f's_add_u32 s47, s45, {L.V[0]}')
        a('s_lshl_b32 s48, s25, 13'); a('s_add_u32 s48, s48, s44'); a('s_add_u32 s49, s48, 1024')
        for t in qaddr(0, 53) + qaddr(1, 54): a(t)
        a('s_lshl_b32 s39, s25, 2'); a('s_add_u32 s39, s39, s12'); a('s_lshl_b32 s39, s39, 16')
        a('s_lshl_b32 s55, s24, 10'); a('s_add_u32 s39, s39, s55')
        a('s_add_u32 s39, s39, s27'); a(f's_add_u32 s39, s39, {L.O[0]}')
        a(f's_mov_b32 s56, {f32(2.0**-90)}'); a(f's_mov_b32 s57, {f32(2.0**120)}')
        a('s_mov_b32 s40, 0')

    def check_ops(Oa, U):
        return [f'v_add_f32 v{U}, abs(v{Oa}), abs(v{Oa+1})', f'v_add_f32 v{U+1}, abs(v{Oa+2}), abs(v{Oa+3})',
                f'v_add_f32 v{U+2}, abs(v{Oa+4}), abs(v{Oa+5})', f'v_add_f32 v{U+3}, abs(v{Oa+6}), abs(v{Oa+7})',
                f'v_add_f32 v{U}, v{U}, v{U+1}', f'v_add_f32 v{U+2}, v{U+2}, v{U+3}', f'v_add_f32 v{U}, v{U}, v{U+2}',
                f'v_cmp_gt_f32 s[70:71], s57, v{U}', f'v_cmp_gt_f32 s[72:73], s57, v{Oa+8}', f'v_cmp_lt_f32 s[74:75], s56, v{Oa+8}',
                's_and_b64 s[70:71], s[70:71], s[72:73]', 's_and_b64 s[70:71], s[70:71], s[74:75]', 's_cmp_eq_u64 s[70:71], -1']

    def attn(extra_groups):
        nvm = [0]
        atk, atv, atq = {}, {}, {}
        def qload(p_, sreg=53):
            a(f'buffer_load_dwordx4 {v(QF[p_%2],4)}, v{L16}, s[4:7], s{sreg} offen sc1'); nvm[0] += 1
            atq[p_] = nvm[0]
        def kvbase(kt, sreg):
            pass
        def kload(kts):
            for kt in kts:
                a(f'buffer_load_dwordx4 {kreg(kt)}, v{L16}, s[4:7], s{76 + kt//4} offen offset:{1024*(kt%4)} sc1'); nvm[0] += 1
                atk[kt] = nvm[0]
        def vload(kts):
            a('s_mov_b64 exec, s[30:31]')
            for kt in kts:
                for g in range(2):
                    a(f'buffer_load_dwordx4 {vreg(kt,g)}, v{VOFF}, s[4:7], s{80 + kt//4} offen offset:{1024*(kt%4)+512*g} sc1'); nvm[0] += 1
                atv[kt] = nvm[0]
            a('s_mov_b64 exec, -1')
        EV = list(range(0, 16, 2)); OD = list(range(1, 16, 2))
        steps = [(0, k) for k in EV] + [(1, k) for k in EV] + [(0, k) for k in OD] + [(1, k) for k in OD]
        steps += [(p_, k) for p_ in range(2, 8) for k in range(16)]
        N = len(steps)
        firstof = {}; lastof = {}
        for n, (p_, k) in enumerate(steps):
            firstof.setdefault(p_, n); lastof[p_] = n
        qload(0)
        kload([0, 2]); vload([0])
        sig_try(1, nvm[0]); mark0 = nvm[0]
        kload([4]); vload([2]); kload([6]); vload([4])
        waited = [0]
        def need_vm(at):
            if at > waited[0]:
                a(f's_waitcnt vmcnt({nvm[0] - at})'); waited[0] = at
        need_vm(atk[0])
        a(f'{MFMA} {v(SB[0],16)}, {kreg(0)}, {v(QF[0],4)}, 0')
        kload([8]); vload([6])
        extra = list(extra_groups)
        sal = []
        def hide():
            if sal: a(sal.pop(0))
        ev_sal, ev_a, ev_b = {}, {}, {}
        def add(d, n, f): d.setdefault(n, []).append(f)
        for p_ in range(2, 8):
            n0 = lastof[p_ - 2] + 1
            add(ev_sal, n0 - 2, qaddr(p_))
            add(ev_a, n0, lambda p_=p_: qload(p_))
        def pwrite(pp):
            Op = OA[pp % 2]
            a(f'v_add_u32 v{PADDR}, s53, v{L16}')
            a(f'v_add_u32 v{PA4}, s53, v{L4}')
            a(f'ds_write_b128 v{PADDR}, {v(Op,4)}')
            a(f'ds_write_b128 v{PADDR}, {v(Op+4,4)} offset:1024')
            a(f'ds_write_b32 v{PA4}, v{Op+8} offset:2048')
        for pp in (0, 1, 2, 4, 5, 6):
            n0 = lastof[pp] + 2
            slot = 2 - pp % 4
            add(ev_sal, n0, [f's_add_u32 s53, s12, {1 + pp}', 's_and_b32 s53, s53, 3', f's_mul_i32 s53, s53, {6*2304}',
                             f's_add_u32 s53, s53, {PART + (3*(pp >> 2) + slot)*2304}'])
            add(ev_b, n0 + 2, lambda pp=pp: pwrite(pp))
        pb = []
        poll_setup(0, 35, add=1, out=pb)
        def b_issue():
            for t in pb: a(t)
            poll_load(32); nvm[0] += 1; atq['flag'] = nvm[0]
        def b_check():
            go = a.lab('bgo')
            need_vm(atq['flag'])
            poll_test(32, go)
            poll_spin(32, go)
            kload([1, 3]); vload([1])
        add(ev_a, 0, lambda: (kload([10]), vload([8])))
        add(ev_a, 1, lambda: (kload([12]), vload([10])))
        add(ev_a, 2, lambda: (sig_try(2, nvm[0] - mark0), kload([14]), vload([12])))
        add(ev_a, 3, lambda: (qload(1, 54), vload([14])))
        add(ev_a, 6, b_issue)
        add(ev_a, 11, b_check)
        for j_ in range(7):
            add(ev_a, 12 + j_, lambda j_=j_: (kload([5 + 2*j_] if j_ < 6 else []), vload([3 + 2*j_])))
        def own_addr(b):
            if b == 0:
                a(f'v_mov_b32 v{TMP}, {CNTL}'); a(f'v_mov_b32 v{TMP+2}, 0'); a(f'v_mov_b32 v{TMP+3}, 0')
                a(f'ds_write_b64 v{TMP}, {v(TMP+2,2)}'); a(f'ds_write_b32 v{TMP}, v{TMP+2} offset:8')
            a('s_waitcnt lgkmcnt(0)' if b == 0 else 's_waitcnt vmcnt(0) lgkmcnt(0)')
            a('s_barrier')
            a(f's_mul_i32 s53, s12, {6*2304}'); a(f's_add_u32 s53, s53, {PART + 3*b*2304}')
            a(f'v_add_u32 v{PADDR}, s53, v{L16}')
            a(f'v_add_u32 v{PA4}, s53, v{L4}')
        def pread(b_, sl):
            a(f'ds_read_b128 {v(b_,4)}, v{PADDR} offset:{sl*2304}')
            a(f'ds_read_b128 {v(b_+4,4)}, v{PADDR} offset:{sl*2304+1024}')
            a(f'ds_read_b32 v{b_+8}, v{PA4} offset:{sl*2304+2048}')
        n4 = firstof[4]
        Oa = OA[1]
        def padd():
            a('s_waitcnt lgkmcnt(0)')
            for r_ in range(9): a(f'v_add_f32 v{Oa+r_}, v{Oa+r_}, v{TMP+r_}')
        add(ev_b, n4 + 2, lambda: (own_addr(0), pread(TMP, 0)))
        add(ev_b, n4 + 3, lambda: (padd(), pread(TMP, 1)))
        add(ev_b, n4 + 4, lambda: (padd(), pread(TMP, 2)))
        def finA():
            padd()
            for t in check_ops(Oa, TMP): a(t)
            sk = a.lab('a_later')
            a(f's_cbranch_scc0 {sk}')
            a(f'v_rcp_f32 v{TMP}, v{Oa+8}')
            for r_ in range(8): a(f'v_mul_f32 v{Oa+r_}, v{TMP}, v{Oa+r_}')
            for r_ in range(4): a(f'v_cvt_pk_bf16_f32 v{TMP+4+r_}, v{Oa+2*r_}, v{Oa+2*r_+1}')
            a(f'buffer_store_dwordx4 {v(TMP+4,4)}, v{L16}, s[4:7], s39 offen sc1')
            a('s_mov_b32 s40, 1'); a('s_mov_b32 s41, 1')
            a.label(sk)
        add(ev_b, n4 + 5, finA)
        sa = []; sig_addr(1, 37, out=sa)
        add(ev_sal, n4 + 6, sa)
        def sstep():
            a('s_waitcnt vmcnt(0)'); waited[0] = nvm[0]
            sig_step()
        add(ev_b, n4 + 9, sstep)
        n7 = firstof[7]
        add(ev_b, n7 + 8, lambda: own_addr(1))
        for sl in range(3):
            add(ev_b, n7 + 9 + sl, lambda sl=sl: pread(VR + 12*sl, sl))
        def wr_issue():
            a(f's_mov_b32 s50, {WCELL}'); a(f'v_mul_u32_u24 v{T0}, {CST}, v{LN}')
            poll_load(8, FOFF); nvm[0] += 1; atq['wflag'] = nvm[0]
        def wr_check():
            go = a.lab('wgo')
            need_vm(atq['wflag'])
            poll_test(8, go)
            poll_spin(8, go, off=FOFF)
        add(ev_a, 20, wr_issue)
        add(ev_a, 26, wr_check)
        def w_issue():
            poll_setup(1, 38); poll_load(8); nvm[0] += 1
        add(ev_a, n7 + 10, w_issue)
        GS = int(OPT['gs'])
        if GS < 4:
            ex2 = []
            for g in extra:
                cur = []; nm = 0
                for t in g:
                    if t.startswith('buffer'):
                        if nm == GS: ex2.append(cur); cur = []; nm = 0
                        nm += 1
                    cur.append(t)
                ex2.append(cur)
            extra = ex2
        slots = [n for n in range(28 if GS < 4 else 34, N - 12, 1 if GS < 4 else 2) if n not in ev_a and n not in ev_b and not (n4 - 4 <= n <= n4 + 9)]
        assert len(slots) >= len(extra), (len(slots), len(extra))
        gslot = dict(zip(slots, extra))
        for n, (p_, kt) in enumerate(steps):
            S = SB[n % 2]; O = OA[p_ % 2]
            e = [f'v_exp_f32 v{S+r}, v{S+r}' for r in range(16)]
            c = [f'v_cvt_pk_bf16_f32 v{PB[r//4]+r%4}, v{S+2*r}, v{S+2*r+1}' for r in range(8)]
            if OPT.get('fine') == 'att' and n in (0, 8, 16, 32, 48, 64, 80, 96, 112): st(f'att n{n}')
            for l_ in ev_sal.get(n, []):
                assert not sal, n
                sal += l_
            if n + 1 < N:
                p2, kt2 = steps[n + 1]
                if n < 32: need_vm(atk[kt2])
                if n + 1 == firstof[p2]: need_vm(atq[p2])
                a(f'{MFMA} {v(SB[(n+1)%2],16)}, {kreg(kt2)}, {v(QF[p2%2],4)}, 0')
                hide()
            for f in ev_a.get(n, []):
                assert not sal, n
                f()
            a(e[0]); a(e[1]); a(e[2]); a(e[3]); a(c[0]); a(c[1]); a(e[4])
            if n > 0:
                pp, pk = steps[n - 1]
                a(f'{MFMA} {v(OA[pp%2],16)}, {vreg(pk,1)}, {v(PB[1],4)}, {v(OA[pp%2],16)}')
                hide()
            if n in gslot:
                for t in gslot[n]:
                    a(t)
                    if t.startswith('buffer'): nvm[0] += 1
            a(e[5]); a(e[6]); a(e[7]); a(c[2]); a(c[3]); a(e[8]); a(e[9]); a(e[10])
            if n < 32: need_vm(atv[kt])
            a(f'{MFMA} {v(O,16)}, {vreg(kt,0)}, {v(PB[0],4)}, {"0" if n == firstof[p_] else v(O,16)}')
            hide()
            a(e[11]); a(c[4]); a(c[5]); a(e[12]); a(e[13])
            for f in ev_b.get(n, []):
                assert not sal, n
                f()
            a(e[14]); a(e[15]); a(c[6]); a(c[7])
        a(f'{MFMA} {v(OA[1],16)}, {vreg(15,1)}, {v(PB[1],4)}, {v(OA[1],16)}')
        st('att loop')
        U = SB[0]
        Oa = OA[1]
        a('s_waitcnt lgkmcnt(0)')
        a(f's_add_u32 s55, s39, {32*1024}')
        a('s_mov_b32 s43, 1')
        sig_addr(1, 37, add=32)
        for sl in range(3):
            b = VR + 12*sl
            for r_ in range(0, 8, 2): a(f'v_pk_add_f32 {v(Oa+r_,2)}, {v(Oa+r_,2)}, {v(b+r_,2)}')
            a(f'v_add_f32 v{Oa+8}, v{Oa+8}, v{b+8}')
        for t in check_ops(Oa, U): a(t)
        a('s_cbranch_scc1 attn_fin')
        a.label('attn_slow')
        S = SB[0]; M = SB[1]; AL = M + 1; TA = M + 2; TB = M + 3
        KT = 224; V0 = 228; V1 = 232
        a('s_lshl_b32 s53, s12, 11'); a('s_lshl_b32 s54, s43, 10'); a('s_add_u32 s53, s53, s54'); a('s_add_u32 s53, s53, s48')
        a(f'buffer_load_dwordx4 {v(QF[0],4)}, v{L16}, s[4:7], s53 offen sc1')
        a(f'v_and_b32 v{TA}, 27, v{LN}')
        a(f'v_cmp_eq_u32 vcc, 16, v{TA}')
        a(f'v_mov_b32 v{TB}, {ONES}')
        a(f'v_cndmask_b32 v{TA}, 0, v{TB}, vcc')
        for r_ in range(8): a(f'v_mov_b32 v{V0+r_}, v{TA}')
        a(f'v_mov_b32 v{M}, {f32(-3.0e38)}')
        for r_ in range(16): a(f'v_mov_b32 v{Oa+r_}, 0')
        a(f's_add_u32 s46, s44, {L.K[0]}'); a(f's_add_u32 s47, s44, {L.V[0]}')
        a('s_mov_b32 s54, 64')
        a.label('attn_slow_loop')
        a(f'buffer_load_dwordx4 {v(KT,4)}, v{L16}, s[4:7], s46 offen sc1')
        a('s_mov_b64 exec, s[30:31]')
        a(f'buffer_load_dwordx4 {v(V0,4)}, v{VOFF}, s[4:7], s47 offen sc1')
        a(f'buffer_load_dwordx4 {v(V1,4)}, v{VOFF}, s[4:7], s47 offen offset:512 sc1')
        a('s_mov_b64 exec, -1')
        a('s_add_u32 s46, s46, 1024'); a('s_add_u32 s47, s47, 1024')
        a('s_waitcnt vmcnt(0)')
        a(f'{MFMA} {v(S,16)}, {v(KT,4)}, {v(QF[0],4)}, 0')
        a(f'v_max3_f32 v{TA}, v{S}, v{S+1}, v{M}')
        for r_ in range(2, 16, 2): a(f'v_max3_f32 v{TA}, v{S+r_}, v{S+r_+1}, v{TA}')
        a(f'v_mov_b32 v{TB}, v{TA}')
        a(f'v_permlane32_swap_b32 v{TA}, v{TB}')
        a(f'v_max_f32 v{TA}, v{TA}, v{TB}')
        a(f'v_sub_f32 v{AL}, v{M}, v{TA}')
        a(f'v_exp_f32 v{AL}, v{AL}')
        a(f'v_mov_b32 v{M}, v{TA}')
        for r_ in range(16):
            a(f'v_sub_f32 v{S+r_}, v{S+r_}, v{M}')
            a(f'v_exp_f32 v{S+r_}, v{S+r_}')
        for r_ in range(16): a(f'v_mul_f32 v{Oa+r_}, v{AL}, v{Oa+r_}')
        for r_ in range(8): a(f'v_cvt_pk_bf16_f32 v{PB[r_//4]+r_%4}, v{S+2*r_}, v{S+2*r_+1}')
        a(f'{MFMA} {v(Oa,16)}, {v(V0,4)}, {v(PB[0],4)}, {v(Oa,16)}')
        a(f'{MFMA} {v(Oa,16)}, {v(V1,4)}, {v(PB[1],4)}, {v(Oa,16)}')
        a('s_sub_u32 s54, s54, 1')
        a('s_cmp_lg_u32 s54, 0')
        a('s_nop 7')
        a('s_cbranch_scc1 attn_slow_loop')
        a('s_nop 7')
        a.label('attn_fin')
        a(f'v_rcp_f32 v{U}, v{Oa+8}')
        for r_ in range(0, 8, 2): a(f'v_pk_mul_f32 {v(Oa+r_,2)}, {v(Oa+r_,2)}, {v(U,2)} op_sel:[0,0] op_sel_hi:[1,0]')
        for r_ in range(4): a(f'v_cvt_pk_bf16_f32 v{TMP+8+r_}, v{Oa+2*r_}, v{Oa+2*r_+1}')
        a(f'buffer_store_dwordx4 {v(TMP+8,4)}, v{L16}, s[4:7], s55 offen sc1')
        a('s_mov_b32 s41, 1')
        a('s_cmp_eq_u32 s40, 1')
        a('s_cbranch_scc1 attn_done')
        sig_block()
        a('s_cmp_eq_u32 s43, 0')
        a('s_cbranch_scc1 attn_done')
        a('s_mov_b32 s43, 0'); a('s_mov_b32 s55, s39')
        sig_addr(1, 37)
        a('s_branch attn_slow')
        a.label('attn_done')

    def touch_wqkv():
        per = L.FT_QKV * FT // 32
        g = [f's_mul_i32 s60, s14, {per}', f's_mul_i32 s61, s12, {per//4}', 's_add_u32 s60, s60, s61', f's_add_u32 s60, s60, {L.WQKVF}',
             f'v_lshlrev_b32 v{T0}, 7, v{LN}', 's_add_u32 s61, s60, 4480',
             f'buffer_load_dword v{T1}, v{T0}, s[4:7], s60 offen sc1', f'buffer_load_dword v{T1}, v{T0}, s[4:7], s61 offen sc1']
        return [g]

    def touch_w1():
        per = 44 * FT // 32
        g = [f's_mul_i32 s60, s14, {per}', f's_mul_i32 s61, s12, {per//4}', 's_add_u32 s60, s60, s61', f's_add_u32 s60, s60, {L.W1F}',
             f'v_lshlrev_b32 v{T0}, 7, v{LN}', 's_add_u32 s61, s60, 3584',
             f'buffer_load_dword v{T1}, v{T0}, s[4:7], s60 offen sc1', f'buffer_load_dword v{T1}, v{T0}, s[4:7], s61 offen sc1']
        return [g]

    def touch_flags():
        return [['s_lshl_b32 s60, s2, 2', 's_add_u32 s60, s60, s12', f's_mul_i32 s60, s60, {11*256}', f's_add_u32 s60, s60, {CNT}',
                 f'v_lshlrev_b32 v{T0}, 8, v{LN}', 's_mov_b64 exec, 0x7ff', f'buffer_load_dword v{T1}, v{T0}, s[4:7], s60 offen sc1', 's_mov_b64 exec, -1']]

    def dump():
        if not STAMP: return
        a('s_lshl_b32 s90, s2, 2'); a('s_add_u32 s90, s90, s12'); a('s_lshl_b32 s90, s90, 1'); a('s_add_u32 s90, s90, s26')
        a('s_lshl_b32 s90, s90, 8'); a(f's_add_u32 s90, s90, {L.FLAGS + 7*L.MB}')
        a(f'buffer_store_dword v0, v{L4}, s[4:7], s90 offen')
        a('s_waitcnt vmcnt(0)')
        if os.environ.get('DBG'):
            sk = a.lab('dbg')
            a('s_lshl_b32 s90, s2, 2'); a('s_add_u32 s90, s90, s12'); a('s_cmp_lg_u32 s90, 2'); a(f's_cbranch_scc1 {sk}')
            a('s_load_dwordx2 s[92:93], s[0:1], 64'); a('s_waitcnt lgkmcnt(0)')
            srd(a, 92, 92, 256)
            a(f'v_readlane_b32 s91, v0, {2*STAMPS.index("p0 prek")+3}')
            names = ['p0 sig', 'att go', 'att loop', 'woB end', 'ffn1 sig', 'end']
            for j, nm in enumerate(names):
                a(f'v_readlane_b32 s90, v0, {2*STAMPS.index(nm)+3}')
                a('s_sub_u32 s90, s90, s91')
                a(f'v_mov_b32 v{T2}, s90')
                a('s_mul_i32 s90, s26, 24'); a(f's_add_u32 s90, s90, {8 + 4*j}')
                a('s_mov_b64 exec, 1')
                a(f'buffer_store_dword v{T2}, v{L4}, s[92:95], s90 offen')
                a('s_mov_b64 exec, -1')
            a('s_waitcnt vmcnt(0)')
            a.label(sk)

    a('s_branch main_attpre2')
    a.label('main_layer')
    st('start')
    gemmA_pre(True)
    a('s_waitcnt vmcnt(0)')
    poll_test(16, 'main_q_go'); poll_spin(16, 'main_q_go')
    a.label('main_qkv')
    st('qkv go')
    def first_sync(n):
        sk = a.lab('nosync')
        a('s_cmp_eq_u32 s26, 1')
        a(f's_cbranch_scc1 {sk}')
        a(f's_waitcnt vmcnt({n})')
        a('s_barrier')
        a.label(sk)
    gemmA(True, None if K1 else first_sync)
    sig_addr(0, 34)
    a('s_mov_b32 s41, 1')
    a.label('main_attpre')
    attn_pre()
    for i in range(4):
        a(f's_add_u32 s{76+i}, s46, {4096*i}'); a(f's_add_u32 s{80+i}, s47, {4096*i}')
    st('qkv sig')
    a('s_cmp_eq_u32 s26, 1')
    a('s_cbranch_scc1 main_nores')
    a('s_waitcnt vmcnt(0)')
    for g in range(2):
        a(f'v_permlane32_swap_b32 v{RES+4*g}, v{RES+4*g+2}')
        a(f'v_permlane32_swap_b32 v{RES+4*g+1}, v{RES+4*g+3}')
    a.label('main_nores')
    a('s_cmp_ge_u32 s12, 2')
    a('s_cbranch_scc1 main_att_bar')
    sig_block()
    poll(0, 35)
    a.label('main_att_bar')
    if 'a' in OPT.get('es', 'f'):
        a('s_cmp_eq_u32 s26, 0'); a('s_cbranch_scc1 main_noes')
        sig_try(1, 0)
        a.label('main_noes')
    a('s_barrier')
    a.label('main_att_go')
    st('att go')
    W1L = int(OPT.get('w1l', 0))
    extra = (touch_flags() if int(OPT.get('tf', 0)) else []) + (touch_w1() if W1L else wtile_dma(False)) + wB_loads(True, list(range(8))) + wB_loads(False, list(range(NW2PRE))) + touch_wqkv()
    attn(extra)
    st('att sig')
    gemmB_pre(True)
    a('s_waitcnt vmcnt(1)')
    poll_test(8, 'main_wo_go')
    poll_spin(8, 'main_wo_go', hook=sig_step)
    if 'w' in OPT.get('es', 'f'): sig_try(1, 0)
    a('s_barrier')
    gemmB(True, tail=wB_loads(False, list(range(NW2PRE, 22))))
    a('s_cmp_eq_u32 s16, 15')
    a('s_cbranch_scc1 main_skip_ffn1')
    gemmA_pre(False)
    a('s_waitcnt vmcnt(0)')
    poll_test(16, 'main_f1_go'); poll_spin(16, 'main_f1_go')
    st('ffn1 go')
    gemmA(False)
    sig_addr(3, 36)
    a('s_mov_b32 s41, 1')
    a.label('main_skip_ffn1')
    gemmB_pre(False)
    st('ffn1 sig')
    a('s_cmp_ge_u32 s12, 2')
    a('s_cbranch_scc1 main_f2_bar')
    sig_try(1, 0)
    a('s_cmp_eq_u32 s26, 1'); a('s_cbranch_scc1 main_noq')
    a('s_cmp_eq_u32 s16, 15'); a('s_cselect_b32 s63, 0, 4')
    a(f'v_mov_b32 v{T0}, {CNTL}')
    for region in range(2):
        lp = a.lab('lspin'); ok = a.lab('lok')
        a('s_mov_b32 s51, 0')
        a.label(lp)
        a(f'ds_read_b32 v{T1}, v{T0} offset:{4*region}')
        a('s_add_u32 s51, s51, 1')
        a('s_waitcnt lgkmcnt(0)')
        a(f'v_readfirstlane_b32 s52, v{T1}')
        a('s_cmp_ge_u32 s52, s63'); a(f's_cbranch_scc1 {ok}')
        a(f's_cmp_lt_u32 s51, {8*SPIN}'); a(f's_cbranch_scc1 {lp}')
        a.label(ok)
        gs_ = wq_third(region, 2)
        if region == 0:
            run_groups(gs_[:3]); sig_try(2, 8); run_groups(gs_[3:])
        else: run_groups(gs_)
    a.label('main_noq')
    sig_try(2, 0)
    poll(3, 86)
    a.label('main_f2_bar')
    if 'f' in OPT.get('es', 'f'): sig_try(1, 0)
    a('s_barrier')
    gemmB(False, tail=wq_third(2, 2))
    if STAMP: a('s_waitcnt vmcnt(0)'); st('end')
    dump()
    a('s_cmp_eq_u32 s26, 1')
    a('s_cbranch_scc1 main_end')
    a('s_mov_b32 s26, 1'); a(f's_mov_b32 s27, {2*L.MB}'); a(f's_add_u32 s28, s28, {LST}')
    a('s_branch main_layer')
    a.label('main_end')
    a('s_endpgm')
    return 256, 160*1024


if __name__ == '__main__':
    p = Prog()
    cfg = gen_main(p)
    p.launches.append((KNAME, 256, *cfg))
    errs = p.a.check_branches()
    for e in errs: print('HAZARD', e, file=sys.stderr)
    txt = p.text()
    if os.environ.get('SINGLE'):
        txt = txt.replace(f'; @launch kernel={KNAME} ', '; @launch ')
    open(sys.argv[1], 'w').write(txt)
    if STAMP: open(sys.argv[1] + '.names', 'w').write('\n'.join(STAMPS))
    print('pads', p.a.pads, 'instrs', sum(1 for i in p.a.ins if i.states), file=sys.stderr)
```
